```python
import torch

def _softmax(x, axis=-1):
    return torch.softmax(x, dim=axis)
def _gelu(x):
    return torch.nn.functional.gelu(x, approximate="tanh")
def _silu(x):
    return torch.nn.functional.silu(x)
def _sigmoid(x):
    return torch.sigmoid(x)
def _layernorm(x, axis=-1, eps=1e-5):
    m = x.mean(dim=axis, keepdim=True)
    v = x.var(dim=axis, keepdim=True, unbiased=False)
    return (x - m) / torch.sqrt(v + eps)
def _scatter_add(tgt, idx, src, axis=0):
    return tgt.clone().index_add_(axis, idx, src)
def _segment_sum(src, seg, n):
    out = torch.zeros((n,) + src.shape[1:], dtype=src.dtype)
    return out.index_add_(0, seg, src)
def _pad(x, pw):
    flat = tuple(v for pair in reversed(pw) for v in pair)
    return torch.nn.functional.pad(x, flat)

kernel_name = 'concat_heads__linear_attn_block__sliding_block__prompt'

def setup_inputs():

    _w = (lambda a: (lambda t: t.to(torch.bfloat16) if t.is_floating_point() else t)(torch.as_tensor(a)))
    def _A_setup():
        B, S, D = 1, 2048, 512
        return {
            "x": _w((lambda *s: torch.randn(*s, dtype=torch.bfloat16) * 0.05)(B, S, D)),
            "wqkv": _w((lambda *s: torch.randn(*s, dtype=torch.bfloat16) * 0.8)(D, 3 * D)),
            "wo": _w((lambda *s: torch.randn(*s, dtype=torch.bfloat16) * 0.8)(D, D)),
        }
    _A_in = _A_setup()

    def _B_setup():
        B, S, D = 1, 2048, 512
        return {
            "x": _w((lambda *s: torch.randn(*s, dtype=torch.bfloat16) * 0.2)(B, S, D)),
            "wqkv": _w((lambda *s: torch.randn(*s, dtype=torch.bfloat16) * 0.2)(D, 3 * D)),
            "wo": _w((lambda *s: torch.randn(*s, dtype=torch.bfloat16) * 0.05)(D, D)),
        }
    _B_in = _B_setup()

    return {
        "A_x": _A_in["x"],
        "A_wqkv": _A_in["wqkv"],
        "A_wo": _A_in["wo"],
        "B_x": _B_in["x"],
        "B_wqkv": _B_in["wqkv"],
        "B_wo": _B_in["wo"],
    }

def reference(A_x, A_wqkv, A_wo, B_x, B_wqkv, B_wo):
    def _A_ref(x, wqkv, wo):
        B, S, D = x.shape
        H = 32; Dh = D // H
        qkv = (lambda x, *d: x.permute(*d))((x @ wqkv).reshape(B, S, 3, H, Dh), 2, 0, 3, 1, 4)
        q, k, v = qkv[0], qkv[1], qkv[2]
        phi = lambda t: torch.where(t > 0, t + 1, torch.exp(t)) + 1e-6
        pq, pk = phi(q), phi(k)
        kv = torch.einsum("bhsd,bhse->bhde", pk, v)
        z = torch.einsum("bhsd->bhd", pk)
        num = torch.einsum("bhqd,bhde->bhqe", pq, kv)
        den = torch.einsum("bhqd,bhd->bhq", pq, z)[..., None] + 1e-6
        o = num / den
        return (lambda x, *d: x.permute(*d))(o, 0, 2, 1, 3).reshape(B, S, D) @ wo

    def _B_ref(x, wqkv, wo):
        B, S, D = x.shape
        H = 32; Dh = D // H; W = 256
        qkv = (lambda x, *d: x.permute(*d))((x @ wqkv).reshape(B, S, 3, H, Dh), 2, 0, 3, 1, 4)
        q, k, v = qkv[0], qkv[1], qkv[2]
        scores = torch.einsum("bhqd,bhkd->bhqk", q, k) * (Dh ** -0.5)
        idx = torch.arange(S)
        mask = (idx[:, None] - idx[None, :] >= 0) & (idx[:, None] - idx[None, :] < W)
        scores = torch.where(mask[None, None], scores, -1e9)
        p = _softmax(scores, axis=-1)
        o = torch.einsum("bhqk,bhkd->bhqd", p, v)
        return (lambda x, *d: x.permute(*d))(o, 0, 2, 1, 3).reshape(B, S, D) @ wo

    a = _A_ref(A_x, A_wqkv, A_wo)
    b = _B_ref(B_x, B_wqkv, B_wo)
    return torch.concatenate([a, b], axis=-1)
```

```python
import re, sys

def parse_regs(tok):
    tok = tok.strip()
    neg = tok.lstrip('-')
    m = re.fullmatch(r'\|?(abs\()?([vsa])(\d+)\)?\|?', neg)
    if m: return [(m.group(2), int(m.group(3)))]
    m = re.fullmatch(r'([vsa])\[(\d+):(\d+)\]', neg)
    if m: return [(m.group(1), i) for i in range(int(m.group(2)), int(m.group(3)) + 1)]
    if neg in ('vcc',): return [('vcc', 0)]
    if neg in ('vcc_lo', 'vcc_hi'): return [('vcc', 0)]
    if neg in ('exec', 'exec_lo', 'exec_hi'): return [('exec', 0)]
    if neg == 'm0': return [('m0', 0)]
    return []

TRANS = ('v_exp_f32', 'v_log_f32', 'v_rcp_f32', 'v_rsq_f32', 'v_sqrt_f32', 'v_sin_f32', 'v_cos_f32', 'v_exp_f16')

class Inst:
    def __init__(self, text, line):
        self.text = text; self.line = line
        t = text.split(';')[0].strip()
        parts = t.split(None, 1)
        self.op = parts[0]
        rest = parts[1] if len(parts) > 1 else ''
        ops = [o.strip() for o in rest.split(',')] if rest else []
        self.mods = ''
        if ops:
            sp = ops[-1].split()
            if len(sp) > 1:
                ops[-1] = sp[0]; self.mods = ' '.join(sp[1:])
        self.ops = ops
        op = self.op
        self.is_mfma = op.startswith('v_mfma')
        self.is_valu = op.startswith('v_') and not self.is_mfma
        self.is_trans = op.replace('_e32','').replace('_e64','') in TRANS
        self.is_salu = op.startswith('s_')
        self.is_ds = op.startswith('ds_')
        self.is_vmem = op.startswith('buffer_') or op.startswith('global_')
        self.w = []; self.r = []
        R = parse_regs
        if self.is_mfma:
            self.w = R(ops[0]); self.ra = R(ops[1]); self.rb = R(ops[2]); self.rc = R(ops[3])
            self.r = self.ra + self.rb + self.rc
            self.passes = 8 if '32x32' in op else 4
        elif op.startswith('v_cmp'):
            self.w = R(ops[0]); self.r = sum((R(o) for o in ops[1:]), [])
            if op.startswith('v_cmpx'): self.w += [('exec', 0)]
        elif op in ('v_readfirstlane_b32', 'v_readlane_b32'):
            self.w = R(ops[0]); self.r = sum((R(o) for o in ops[1:]), [])
        elif op.startswith('v_permlane') and 'swap' in op:
            self.w = R(ops[0]) + R(ops[1]); self.r = self.w[:]
        elif op.startswith('v_add_co') or op.startswith('v_sub_co') or op.startswith('v_addc_co'):
            self.w = R(ops[0]) + R(ops[1]); self.r = sum((R(o) for o in ops[2:]), [])
        elif self.is_valu:
            self.w = R(ops[0]); self.r = sum((R(o) for o in ops[1:]), [])
            if op.startswith('v_fmac') or op.startswith('v_pk_fmac') or 'sdwa' in op: self.r += self.w
            if op.startswith('v_cndmask') and len(ops) == 3: self.r += [('vcc', 0)]
        elif self.is_ds:
            if op.startswith('ds_read') or op.startswith('ds_bpermute') or op.startswith('ds_permute') or op.startswith('ds_swizzle'):
                self.w = R(ops[0]); self.r = sum((R(o) for o in ops[1:]), [])
            else:
                self.r = sum((R(o) for o in ops), [])
        elif self.is_vmem:
            lds = ' lds' in (' ' + self.mods + ' ') or self.mods.endswith('lds')
            self.lds = lds
            if '_load' in op and not lds:
                self.w = R(ops[0]); self.r = sum((R(o) for o in ops[1:]), [])
            elif '_load' in op and lds:
                self.r = sum((R(o) for o in ops), []) + [('m0', 0)]
            else:
                self.r = sum((R(o) for o in ops), [])
                self.wide_store = ('x3' in op or 'x4' in op) and 'store' in op
                self.data = R(ops[0]) if op.startswith('buffer_') else R(ops[1])
        elif self.is_salu:
            if op in ('s_nop', 's_waitcnt', 's_barrier', 's_endpgm', 's_branch', 's_sleep', 's_setprio') or op.startswith('s_cbranch'):
                pass
            elif op.startswith('s_cmp'):
                self.r = sum((R(o) for o in ops), [])
            elif op.startswith('s_load') or op in ('s_memtime', 's_memrealtime', 's_getpc_b64', 's_getreg_b32'):
                self.w = R(ops[0]); self.r = sum((R(o) for o in ops[1:2]), []) if op.startswith('s_load') else []
            else:
                self.w = R(ops[0]); self.r = sum((R(o) for o in ops[1:]), [])
                if 'saveexec' in op: self.w += [('exec', 0)]; self.r += [('exec', 0)]
    def ws(self):
        if self.op == 's_nop': return int(self.ops[0], 0) + 1
        return 1

def load(text):
    insts = []; labels = {}
    for n, line in enumerate(text.split('\n'), 1):
        t = line.split(';')[0].strip()
        if not t or t.startswith('.'): continue
        m = re.fullmatch(r'([\w.$]+):', t)
        if m: labels[m.group(1)] = len(insts); continue
        insts.append(Inst(t, n))
    return insts, labels

def preds(insts, labels):
    P = [[] for _ in insts]
    for i, ins in enumerate(insts):
        if ins.op == 's_endpgm': continue
        if ins.op == 's_branch' or ins.op.startswith('s_cbranch'):
            tgt = labels.get(ins.ops[0])
            if tgt is not None and tgt < len(insts): P[tgt].append(i)
            if ins.op == 's_branch': continue
        if i + 1 < len(insts): P[i + 1].append(i)
    return P

def inter(a, b): return bool(set(a) & set(b))
def vonly(l): return [x for x in l if x[0] in ('v', 'a')]
def sonly(l): return [x for x in l if x[0] in ('s', 'vcc')]

def required(prod, cons):
    need = 0; why = ''
    def up(n, w):
        nonlocal need, why
        if n > need: need = n; why = w
    pw = prod.w
    if prod.is_mfma:
        n_valu = {8: 12, 4: 8}[prod.passes]; n_ab = n_valu; n_cpart = {8: 10, 4: 6}[prod.passes]
        if cons.is_mfma:
            if inter(pw, cons.ra + cons.rb): up(n_ab, 'mfma D->mfma A/B')
            if inter(pw, cons.rc):
                same = (pw == cons.rc) and cons.passes == prod.passes
                if not same: up(n_cpart, 'mfma D->mfma C partial')
            elif inter(pw, cons.w) and pw != cons.w: up(n_cpart, 'mfma D->mfma D partial WAW')
        else:
            if inter(pw, vonly(cons.r)) or inter(pw, vonly(cons.w)): up(n_valu, 'mfma D->valu/mem')
        if cons.is_valu and inter(prod.rc, vonly(cons.w)): up({8: 7, 4: 3}[prod.passes], 'mfma C WAR')
    if prod.is_valu:
        vw = vonly(pw)
        if cons.is_mfma and inter(vw, cons.r): up(2, 'valu->mfma')
        if cons.op in ('v_readfirstlane_b32', 'v_readlane_b32') and inter(vw, vonly(cons.r)): up(1, 'valu->readlane')
        if cons.op.startswith('v_permlane') and inter(vw, vonly(cons.r)): up(2, 'valu->permlane')
        if ('dpp' in cons.op or 'row_' in cons.mods or 'quad_perm' in cons.mods) and inter(vw, vonly(cons.r)): up(2, 'valu->dpp')
        if prod.is_trans and cons.is_valu and not cons.is_trans and inter(vw, vonly(cons.r)): up(1, 'trans->valu')
        if prod.is_trans and cons.is_mfma and inter(vw, cons.r): up(2, 'trans->mfma')
        sw = sonly(pw)
        if sw:
            if cons.is_vmem and inter(sw, sonly(cons.r)): up(5, 'valu sgpr->vmem')
            if cons.is_valu and inter(sw, sonly(cons.r)): up(2, 'valu sgpr->valu const')
            if cons.op in ('v_readlane_b32', 'v_writelane_b32') and inter(sw, sonly(cons.r)): up(4, 'valu sgpr->lane sel')
            if cons.is_salu and inter(sw, sonly(cons.r)): up(1, 'valu sgpr->salu (pad)')
            if cons.op in ('s_cbranch_vccz', 's_cbranch_vccnz') and ('vcc', 0) in sw: up(1, 'vcc->branch (pad)')
        if ('exec', 0) in pw:
            if cons.is_mfma: up(4, 'valu exec->mfma')
            if cons.op.startswith('v_permlane') or cons.op in ('v_readlane_b32', 'v_readfirstlane_b32'): up(4, 'cmpx->lane op')
    if prod.is_salu and ('m0', 0) in pw:
        if cons.is_vmem and getattr(cons, 'lds', False): up(1, 'm0->lds dma')
    if prod.is_vmem and getattr(prod, 'wide_store', False):
        if cons.is_valu and inter(prod.data, vonly(cons.w)): up(2, 'wide store data WAR')
        elif (cons.is_ds or cons.is_vmem) and inter(prod.data, vonly(cons.w)): up(1, 'wide store data WAR')
    return need, why

def check(text, verbose=True, window=20):
    insts, labels = load(text)
    P = preds(insts, labels)
    problems = []
    for i, cons in enumerate(insts):
        stack = [(p, 0) for p in P[i]]
        seen = {}
        while stack:
            j, dist = stack.pop()
            if j in seen and seen[j] <= dist: continue
            seen[j] = dist
            prod = insts[j]
            need, why = required(prod, cons)
            if need > dist:
                problems.append((cons.line, prod.line, need, dist, why, prod.text, cons.text))
            nd = dist + prod.ws()
            if nd < window:
                for p in P[j]: stack.append((p, nd))
    if verbose:
        for c in sorted(set(problems)):
            print(f"HAZARD line {c[0]} (prod line {c[1]}): need {c[2]} have {c[3]} [{c[4]}]\n    {c[5]}\n    {c[6]}")
    return problems

if __name__ == '__main__':
    pr = check(open(sys.argv[1]).read())
    print(len(pr), "hazards")
```

```python
import sys, math, struct

KNAME = "concat_heads__linear_attn_block__sliding_block__prompt_kernel"

KB_G   = 0
VB_G   = 2 << 20
O_G    = 4 << 20
KVACC  = 8 << 20
FL     = (8 << 20) + (64 << 10)
F1B    = FL
F1A    = FL + 4096
F2     = FL + 8192
STAMP  = 9 << 20
SLOT   = 32768
NONCE_L = 131072
K_L, V_L, Q_L, SCR_L, WO_L = 0, 40960, 81920, 90112, 98304
CS = 0.25 * math.log2(math.e)
LOG2E = math.log2(math.e)
BIG = 1.0e28
SPIN_MAX = 100000

def f2u(x): return struct.unpack('<I', struct.pack('<f', x))[0]
def lit(x): return "0x%08x" % f2u(x)

class K:
    def __init__(self, stamps=False, stop=None):
        self.L = []; self.stamps = stamps; self.stop = stop; self.nst = 0; self.uid = 0
    def e(self, s): self.L.append("    " + s)
    def c(self, s): self.L.append("    ; " + s)
    def lab(self, s): self.L.append(s + ":")
    def u(self, p):
        self.uid += 1; return f"L_{p}_{self.uid}"
    def stamp(self, k):
        if not self.stamps: return
        self.e("s_memrealtime s[70:71]")
        self.e("s_waitcnt lgkmcnt(0)")
        self.e(f"s_mov_b32 s{72+k}, s70")

def vr(a, n): return f"v[{a}:{a+n-1}]"
def sr(a, n): return f"s[{a}:{a+n-1}]"

S_WAVE, S_RB, S_G, S_NONCE = 22, 23, 24, 25
SRD_WS, SRD_X, SRD_W, SRD_T, SRD_WO = 28, 32, 36, 40, 44
P_AX, P_AW, P_AWO, P_BX, P_BW, P_BWO, P_OUT, P_DBG, P_WS = 4, 6, 8, 10, 12, 14, 16, 18, 20

def srd(k, dst, ptr, size):
    k.e(f"s_mov_b32 s{dst}, s{ptr}")
    k.e(f"s_mov_b32 s{dst+1}, s{ptr+1}")
    k.e(f"s_mov_b32 s{dst+2}, 0x{size:x}")
    k.e(f"s_mov_b32 s{dst+3}, 0x20000")

def spin_guard(k, sreg, exit_label):
    k.e(f"s_add_u32 s{sreg}, s{sreg}, 1")
    k.e(f"s_cmp_gt_u32 s{sreg}, {SPIN_MAX}")
    k.e(f"s_cbranch_scc1 {exit_label}")

def poll_flags(k, vaddr, vtmp, name, sleep=1):
    lp = k.u(name + "_poll"); ex = k.u(name + "_done")
    k.e("s_mov_b32 s60, 0")
    k.lab(lp)
    k.e(f"buffer_load_dword v{vtmp}, v{vaddr}, {sr(SRD_WS,4)}, 0 offen sc1")
    spin_guard(k, 60, ex)
    k.e("s_waitcnt vmcnt(0)")
    k.e(f"v_cmp_ne_u32 vcc, s{S_NONCE}, v{vtmp}")
    k.e("s_nop 1")
    k.e(f"s_cbranch_vccz {ex}")
    if sleep: k.e(f"s_sleep {sleep}")
    k.e(f"s_branch {lp}")
    k.lab(ex)
    k.e("s_waitcnt vmcnt(0)")

ACC_B, ACC_A = 8, 56
BUF = [104, 120]
VXA, VWA = 136, 140
QF, KF, VF = 144, 152, 160
PQ = 168

def frag_reads(k, buf, j):
    b = BUF[buf]
    k.e(f"ds_read_b128 {vr(b,4)}, v{VXA+j}")
    for p in range(3):
        for s2 in range(2):
            k.e(f"ds_read_b64_tr_b16 {vr(b+4+4*p+2*s2,2)}, v{VWA} offset:{p*8192 + j*2048 + s2*512}")

def mfmas(k, buf, acc, branch):
    b = BUF[buf]; X = vr(b,4); W = [vr(b+4+4*p,4) for p in range(3)]
    q, kk, v = vr(acc,16), vr(acc+16,16), vr(acc+32,16)
    k.e(f"v_mfma_f32_32x32x16_bf16 {q}, {W[0]}, {X}, {q}")
    if branch == 'B': k.e(f"v_mfma_f32_32x32x16_bf16 {kk}, {W[1]}, {X}, {kk}")
    else:             k.e(f"v_mfma_f32_32x32x16_bf16 {kk}, {X}, {W[1]}, {kk}")
    k.e(f"v_mfma_f32_32x32x16_bf16 {v}, {X}, {W[2]}, {v}")

def consumer_loop(k, branch, acc):
    lp = k.u("cons"+branch)
    k.e("s_mov_b32 s48, 0")
    k.lab(lp)
    frag_reads(k, 1, 1); k.e("s_waitcnt lgkmcnt(7)"); mfmas(k, 0, acc, branch)
    frag_reads(k, 0, 2); k.e("s_waitcnt lgkmcnt(7)"); mfmas(k, 1, acc, branch)
    frag_reads(k, 1, 3); k.e("s_waitcnt lgkmcnt(7)"); mfmas(k, 0, acc, branch)
    k.e("s_add_u32 s49, s49, 1")
    k.e("s_and_b32 s50, s49, 3")
    k.e("s_cmp_eq_u32 s50, 0")
    k.e(f"s_cselect_b32 s50, 0x{(-3*SLOT) & 0xffffffff:x}, s69")
    if branch == 'A':
        sk = k.u("novm")
        k.e("s_cmp_eq_u32 s48, 2")
        k.e(f"s_cbranch_scc0 {sk}")
        k.e("s_waitcnt vmcnt(0)")
        k.lab(sk)
    k.e("s_waitcnt lgkmcnt(0)")
    k.e("s_barrier")
    for j in range(4): k.e(f"v_add_u32 v{VXA+j}, s50, v{VXA+j}")
    k.e(f"v_add_u32 v{VWA}, s50, v{VWA}")
    frag_reads(k, 0, 0)
    mfmas(k, 1, acc, branch)
    k.e("s_add_u32 s48, s48, 1")
    k.e("s_cmp_lt_u32 s48, 8")
    k.e(f"s_cbranch_scc1 {lp}")

def issue_stage(k):
    k.e("s_mov_b32 m0, s51")
    k.e("s_add_u32 s54, s53, 23552")
    k.e(f"buffer_load_dwordx4 v1, {sr(SRD_X,4)}, s52 offen lds")
    k.e(f"buffer_load_dwordx4 v2, {sr(SRD_X,4)}, s52 offen offset:1024 lds")
    for p in range(3):
        k.e(f"s_add_u32 s55, s51, {8192 + p*8192}")
        k.e("s_mov_b32 m0, s55")
        if p: k.e(f"s_add_u32 s56, s53, {p*1024}"); so0 = "s56"
        else: so0 = "s53"; k.e("s_nop 0")
        k.e(f"buffer_load_dwordx4 v3, {sr(SRD_W,4)}, {so0} offen lds")
        if p: k.e(f"s_add_u32 s56, s54, {p*1024}"); so1 = "s56"
        else: so1 = "s54"
        k.e(f"buffer_load_dwordx4 v3, {sr(SRD_W,4)}, {so1} offen offset:1024 lds")
    k.e("s_add_u32 s57, s57, 1")
    k.e("s_add_u32 s52, s52, 128")
    k.e("s_add_u32 s53, s53, 196608")
    k.e(f"s_add_u32 s51, s51, {SLOT}")
    k.e("s_and_b32 s58, s57, 3")
    sk = k.u("nowrap")
    k.e("s_cmp_eq_u32 s58, 0")
    k.e(f"s_cbranch_scc0 {sk}")
    k.e(f"s_sub_u32 s51, s51, {4*SLOT}")
    k.lab(sk)
    sk2 = k.u("nosw")
    k.e("s_cmp_eq_u32 s57, 8")
    k.e(f"s_cbranch_scc0 {sk2}")
    srd(k, SRD_X, P_AX, 2 << 20)
    srd(k, SRD_W, P_AW, 512*3072)
    k.e("s_mov_b32 s52, 0")
    k.e("s_mov_b32 s53, 0")
    k.lab(sk2)

def phi(k, r, n, t):
    for i in range(0, n, 4):
        for j in range(4): k.e(f"v_mul_f32 v{t+j}, s61, v{r+i+j}")
        for j in range(4): k.e(f"v_exp_f32 v{t+j}, v{t+j} clamp")
        for j in range(4): k.e(f"v_max_f32 v{r+i+j}, 0, v{r+i+j}")
        for j in range(4): k.e(f"v_add_f32 v{r+i+j}, s62, v{r+i+j}")
        for j in range(4): k.e(f"v_add_f32 v{r+i+j}, v{t+j}, v{r+i+j}")

def cvt8(k, dst, src):
    for j in range(4): k.e(f"v_cvt_pk_bf16_f32 v{dst+j}, v{src+2*j}, v{src+2*j+1}")

def gen(stamps=False, stop=None):
    k = K(stamps, stop)
    k.lab(KNAME)
    k.e("s_cmp_ge_u32 s2, 256")
    k.e("s_cbranch_scc1 L_end")
    if stamps:
        k.e("s_memrealtime s[70:71]")
    k.e("s_load_dwordx16 s[4:19], s[0:1], 0")
    k.e("s_load_dwordx2 s[20:21], s[0:1], 64")
    k.e("v_lshrrev_b32 v1, 6, v0")
    k.e("v_and_b32 v0, 63, v0")
    k.e(f"v_readfirstlane_b32 s{S_WAVE}, v1")
    k.e("s_and_b32 s26, s2, 7")
    k.e("s_lshr_b32 s27, s2, 3")
    k.e("s_and_b32 s48, s26, 3")
    k.e("s_lshl_b32 s48, s48, 3")
    k.e("s_and_b32 s49, s27, 7")
    k.e(f"s_add_u32 s{S_RB}, s48, s49")
    k.e("s_lshr_b32 s48, s26, 2")
    k.e("s_lshl_b32 s48, s48, 2")
    k.e("s_lshr_b32 s49, s27, 3")
    k.e(f"s_add_u32 s{S_G}, s48, s49")
    k.e("s_waitcnt lgkmcnt(0)")
    if stamps: k.e("s_mov_b32 s72, s70")
    srd(k, SRD_WS, P_WS, 256 << 20)
    k.e(f"s_cmp_ge_u32 s{S_WAVE}, 4")
    k.e("s_cbranch_scc1 L_loader")

    k.c("consumer setup: i'=w&1 (s26) c=w>>1 (s27)")
    k.e(f"s_and_b32 s26, s{S_WAVE}, 1")
    k.e(f"s_lshr_b32 s27, s{S_WAVE}, 1")
    nn = k.u("nononce")
    srd(k, SRD_T, P_DBG, 256)
    k.e(f"s_cmp_eq_u32 s{S_WAVE}, 0")
    k.e(f"s_cbranch_scc0 {nn}")
    k.e("v_mov_b32 v2, 0")
    nl = k.u("nolead")
    k.e("s_cmp_eq_u32 s2, 0")
    k.e(f"s_cbranch_scc0 {nl}")
    k.e("s_memrealtime s[58:59]")
    k.e("s_waitcnt lgkmcnt(0)")
    k.e("s_or_b32 s58, s58, 1")
    k.e("v_mov_b32 v3, s58")
    k.e(f"buffer_store_dword v3, v2, {sr(SRD_T,4)}, 0 offen sc1")
    k.lab(nl)
    k.lab(nn)
    k.e("v_and_b32 v1, 31, v0")
    k.e("v_lshrrev_b32 v2, 5, v0")
    k.e("v_bfe_u32 v3, v0, 1, 3")
    k.e("v_xor_b32 v3, v3, v2")
    k.e("v_lshlrev_b32 v3, 4, v3")
    k.e("s_lshl_b32 s48, s26, 5")
    k.e("v_add_u32 v1, s48, v1")
    k.e("v_lshlrev_b32 v1, 7, v1")
    k.e(f"v_add_u32 v{VXA}, v1, v3")
    for j in range(1, 4): k.e(f"v_xor_b32 v{VXA+j}, {j<<5}, v{VXA}")
    k.e("v_bfe_u32 v1, v0, 2, 2")
    k.e("v_and_b32 v2, 3, v0")
    k.e("v_bfe_u32 v3, v0, 4, 1")
    k.e("v_lshrrev_b32 v4, 5, v0")
    k.e("v_lshlrev_b32 v4, 3, v4")
    k.e("v_add_u32 v4, v4, v1")
    k.e("v_lshlrev_b32 v4, 7, v4")
    k.e("v_lshlrev_b32 v3, 1, v3")
    k.e("v_lshrrev_b32 v5, 1, v2")
    k.e("v_add_u32 v3, v3, v5")
    k.e("s_lshl_b32 s48, s27, 2")
    k.e("v_add_u32 v3, s48, v3")
    k.e("v_and_b32 v5, 2, v1")
    k.e("v_lshlrev_b32 v5, 1, v5")
    k.e("v_xor_b32 v3, v3, v5")
    k.e("v_lshlrev_b32 v3, 4, v3")
    k.e("v_and_b32 v2, 1, v2")
    k.e("v_lshlrev_b32 v2, 3, v2")
    k.e("v_add3_u32 v4, v4, v3, v2")
    k.e(f"v_add_u32 v{VWA}, 8192, v4")
    for i in range(96): k.e(f"v_mov_b32 v{ACC_B+i}, 0")
    nn2 = k.u("nononce2")
    k.e(f"s_cmp_eq_u32 s{S_WAVE}, 0")
    k.e(f"s_cbranch_scc0 {nn2}")
    lp = k.u("np"); ex = k.u("npx")
    k.e("v_mov_b32 v2, 0")
    k.e("s_mov_b32 s60, 0")
    k.lab(lp)
    k.e(f"buffer_load_dword v3, v2, {sr(SRD_T,4)}, 0 offen sc1")
    spin_guard(k, 60, ex)
    k.e("s_waitcnt vmcnt(0)")
    k.e("v_readfirstlane_b32 s58, v3")
    k.e("s_nop 0")
    k.e("s_cmp_eq_u32 s58, 0")
    k.e(f"s_cbranch_scc0 {ex}")
    k.e("s_sleep 1")
    k.e(f"s_branch {lp}")
    k.lab(ex)
    k.e("s_waitcnt vmcnt(0)")
    k.e(f"v_mov_b32 v2, {NONCE_L}")
    k.e("ds_write_b32 v2, v3")
    k.e("s_waitcnt lgkmcnt(0)")
    k.lab(nn2)
    k.e("s_barrier")
    k.e(f"v_mov_b32 v2, {NONCE_L}")
    k.e("ds_read_b32 v3, v2")
    k.e("s_waitcnt lgkmcnt(0)")
    k.e(f"v_readfirstlane_b32 s{S_NONCE}, v3")
    k.stamp(1)
    k.e("s_mov_b32 s49, 0")
    k.e(f"s_mov_b32 s69, {SLOT}")
    frag_reads(k, 0, 0)
    consumer_loop(k, 'B', ACC_B)
    k.stamp(2)
    k.c("B epilogue")
    k.e(f"s_mov_b32 s61, {lit(CS)}")
    k.e("s_nop 9")
    for i in range(16): k.e(f"v_mul_f32 v{ACC_B+i}, s61, v{ACC_B+i}")
    cvt8(k, KF, ACC_B+16); cvt8(k, KF+4, ACC_B+24)
    cvt8(k, VF, ACC_B+32); cvt8(k, VF+4, ACC_B+40)
    cvt8(k, QF, ACC_B); cvt8(k, QF+4, ACC_B+8)
    k.e(f"s_lshl_b32 s62, s{S_G}, 2")
    k.e("s_lshl_b32 s63, s27, 1")
    k.e("s_add_u32 s62, s62, s63")
    k.e("s_lshl_b32 s62, s62, 6")
    k.e(f"s_lshl_b32 s63, s{S_RB}, 1")
    k.e("s_add_u32 s63, s63, s26")
    k.e("s_add_u32 s62, s62, s63")
    k.e("s_lshl_b32 s62, s62, 10")
    k.e("v_lshlrev_b32 v1, 4, v0")
    k.e(f"s_add_u32 s63, s62, {KB_G + 65536}")
    if KB_G: k.e(f"s_add_u32 s64, s62, {KB_G}")
    else: k.e("s_mov_b32 s64, s62")
    k.e(f"buffer_store_dwordx4 {vr(KF,4)}, v1, {sr(SRD_WS,4)}, s64 offen sc1")
    k.e(f"buffer_store_dwordx4 {vr(KF+4,4)}, v1, {sr(SRD_WS,4)}, s63 offen sc1")
    k.e("v_bfe_u32 v2, v0, 4, 1")
    k.e("v_lshlrev_b32 v2, 16, v2")
    k.e("v_lshrrev_b32 v3, 5, v0")
    k.e("v_lshlrev_b32 v3, 8, v3")
    k.e("v_and_b32 v4, 15, v0")
    k.e("v_lshlrev_b32 v4, 4, v4")
    k.e("v_add3_u32 v2, v2, v3, v4")
    k.e(f"s_add_u32 s64, s62, {VB_G}")
    k.e(f"buffer_store_dwordx4 {vr(VF,4)}, v2, {sr(SRD_WS,4)}, s64 offen sc1")
    k.e(f"buffer_store_dwordx4 {vr(VF+4,4)}, v2, {sr(SRD_WS,4)}, s64 offen offset:512 sc1")
    k.stamp(3)
    consumer_loop(k, 'A', ACC_A)
    k.e("s_waitcnt lgkmcnt(0)")
    k.stamp(4)
    k.c("A epilogue")
    T = 104
    k.e(f"s_mov_b32 s61, {lit(LOG2E)}")
    k.e(f"s_mov_b32 s62, {lit(1e-6)}")
    k.e("s_nop 6")
    AQ, AK, AV = ACC_A, ACC_A+16, ACC_A+32
    k.e("s_mul_i32 s63, s27, 20480")
    k.e("s_lshl_b32 s64, s26, 10")
    k.e("s_add_u32 s63, s63, s64")
    k.e(f"s_add_u32 s63, s63, {K_L + 8192}")
    k.e("v_lshlrev_b32 v1, 4, v0")
    k.e("v_add_u32 v2, s63, v1")
    k.e(f"ds_write_b128 v2, {vr(KF,4)}")
    k.e(f"ds_write_b128 v2, {vr(KF+4,4)} offset:10240")
    k.e("v_bfe_u32 v3, v0, 4, 1")
    k.e("v_mul_u32_u24 v3, 10240, v3")
    k.e("v_lshrrev_b32 v4, 5, v0")
    k.e("v_lshlrev_b32 v4, 8, v4")
    k.e("v_and_b32 v5, 15, v0")
    k.e("v_lshlrev_b32 v5, 4, v5")
    k.e("v_add3_u32 v3, v3, v4, v5")
    k.e(f"s_add_u32 s64, s63, {V_L - K_L}")
    k.e("v_add_u32 v3, s64, v3")
    k.e(f"ds_write_b128 v3, {vr(VF,4)}")
    k.e(f"ds_write_b128 v3, {vr(VF+4,4)} offset:512")
    k.e("s_lshl_b32 s63, s27, 12")
    k.e("s_lshl_b32 s64, s26, 10")
    k.e("s_add_u32 s63, s63, s64")
    k.e(f"s_add_u32 s63, s63, {Q_L}")
    k.e("v_add_u32 v2, s63, v1")
    k.e(f"ds_write_b128 v2, {vr(QF,4)}")
    k.e(f"ds_write_b128 v2, {vr(QF+4,4)} offset:2048")
    phi(k, AK, 16, T)
    PK, VV = 112, 120
    cvt8(k, PK, AK); cvt8(k, PK+4, AK+8)
    cvt8(k, VV, AV); cvt8(k, VV+4, AV+8)
    ONES = 128
    for j in range(4): k.e(f"v_mov_b32 v{ONES+j}, 0x3f803f80")
    DKV, DZ = AK, AV
    k.e("s_nop 1")
    k.e(f"v_mfma_f32_32x32x16_bf16 {vr(DKV,16)}, {vr(PK,4)}, {vr(VV,4)}, 0")
    k.e(f"v_mfma_f32_32x32x16_bf16 {vr(DZ,16)}, {vr(ONES,4)}, {vr(PK,4)}, 0")
    k.e(f"v_mfma_f32_32x32x16_bf16 {vr(DKV,16)}, {vr(PK+4,4)}, {vr(VV+4,4)}, {vr(DKV,16)}")
    k.e(f"v_mfma_f32_32x32x16_bf16 {vr(DZ,16)}, {vr(ONES,4)}, {vr(PK+4,4)}, {vr(DZ,16)}")
    phi(k, AQ, 16, T)
    cvt8(k, PQ, AQ); cvt8(k, PQ+4, AQ+8)
    k.e("s_mov_b32 s64, 0xffff0000")
    k.e("s_mov_b32 s65, 0xffff0000")
    RS = 144
    k.e("s_waitcnt lgkmcnt(0)")
    for t in range(8): k.e(f"v_cndmask_b32 v{RS+t}, v{DKV+t}, v{DKV+8+t}, s[64:65]")
    k.e(f"v_mov_b32 v{RS+8}, v{DZ}")
    sk = k.u("noscr")
    k.e("s_lshl_b32 s63, s27, 12")
    k.e(f"s_add_u32 s63, s63, {SCR_L}")
    k.e("v_add_u32 v2, s63, v1")
    k.e("s_cmp_eq_u32 s26, 1")
    k.e(f"s_cbranch_scc0 {sk}")
    k.e(f"ds_write_b128 v2, {vr(RS,4)}")
    k.e(f"ds_write_b128 v2, {vr(RS+4,4)} offset:1024")
    k.e("v_lshlrev_b32 v3, 2, v0")
    k.e("v_add_u32 v3, s63, v3")
    k.e(f"ds_write_b32 v3, v{RS+8} offset:2048")
    k.lab(sk)
    k.e("s_waitcnt lgkmcnt(0)")
    k.stamp(5)
    k.e("s_barrier")
    sk = k.u("noatom")
    k.e("s_cmp_eq_u32 s26, 0")
    k.e(f"s_cbranch_scc0 {sk}")
    k.e(f"ds_read_b128 {vr(T,4)}, v2")
    k.e(f"ds_read_b128 {vr(T+4,4)}, v2 offset:1024")
    k.e("v_lshlrev_b32 v3, 2, v0")
    k.e("v_add_u32 v4, s63, v3")
    k.e(f"ds_read_b32 v{T+8}, v4 offset:2048")
    k.e("s_waitcnt lgkmcnt(0)")
    for t in range(9): k.e(f"v_add_f32 v{RS+t}, v{RS+t}, v{T+t}")
    k.e(f"s_lshl_b32 s63, s{S_G}, 1")
    k.e("s_add_u32 s63, s63, s27")
    k.e("s_lshl_b32 s63, s63, 12")
    k.e(f"s_add_u32 s63, s63, {KVACC}")
    for t in range(8): k.e(f"buffer_atomic_add_f32 v{RS+t}, v3, {sr(SRD_WS,4)}, s63 offen offset:{t*256}")
    k.e("s_mov_b32 exec_hi, 0")
    k.e(f"buffer_atomic_add_f32 v{RS+8}, v3, {sr(SRD_WS,4)}, s63 offen offset:2048")
    k.e("s_mov_b64 exec, -1")
    k.lab(sk)
    k.e("s_branch L_attn")

    k.lab("L_loader")
    k.e(f"s_sub_u32 s26, s{S_WAVE}, 4")
    sk = k.u("nopf")
    k.e("s_cmp_eq_u32 s26, 3")
    k.e(f"s_cbranch_scc0 {sk}")
    k.e("s_getpc_b64 s[58:59]")
    k.lab("L_pc")
    k.e("s_and_b32 s58, s58, 0xffffff00")
    k.e("v_lshlrev_b32 v8, 7, v0")
    k.e(f"s_sub_u32 s58, s58, PF_BACK")
    k.e("s_subb_u32 s59, s59, 0")
    k.e("global_load_dword v9, v8, s[58:59]")
    k.e("v_add_u32 v8, 8192, v8")
    k.e("global_load_dword v10, v8, s[58:59]")
    k.lab(sk)
    srd(k, SRD_X, P_BX, 2 << 20)
    srd(k, SRD_W, P_BW, 512*3072)
    k.e("v_lshrrev_b32 v4, 3, v0")
    k.e("v_and_b32 v5, 7, v0")
    k.e("v_lshrrev_b32 v6, 1, v4")
    k.e("v_xor_b32 v7, v5, v6")
    k.e("v_lshlrev_b32 v7, 4, v7")
    k.e(f"s_lshl_b32 s48, s{S_RB}, 6")
    k.e("s_lshl_b32 s49, s26, 4")
    k.e("s_add_u32 s48, s48, s49")
    k.e("v_add_u32 v1, s48, v4")
    k.e("v_lshlrev_b32 v1, 10, v1")
    k.e("v_add_u32 v2, 7168, v1")
    k.e("v_add_u32 v1, v1, v7")
    k.e("v_xor_b32 v7, 64, v7")
    k.e("v_add_u32 v2, v2, v7")
    k.e("s_lshl_b32 s49, s26, 4")
    k.e("v_add_u32 v3, s49, v4")
    k.e("v_mul_u32_u24 v3, 3072, v3")
    k.e("v_and_b32 v6, 2, v4")
    k.e("v_lshlrev_b32 v6, 1, v6")
    k.e("v_xor_b32 v6, v5, v6")
    k.e("v_lshlrev_b32 v6, 4, v6")
    k.e(f"s_lshl_b32 s49, s{S_G}, 7")
    k.e("v_add3_u32 v3, v3, v6, s49")
    sk = k.u("nozero")
    k.e(f"s_cmp_eq_u32 s{S_RB}, 0")
    k.e(f"s_cbranch_scc0 {sk}")
    k.e("s_cmp_lt_u32 s26, 2")
    k.e(f"s_cbranch_scc0 {sk}")
    k.e(f"s_lshl_b32 s48, s{S_G}, 1")
    k.e("s_add_u32 s48, s48, s26")
    k.e("s_lshl_b32 s48, s48, 12")
    k.e(f"s_add_u32 s48, s48, {KVACC}")
    for j in range(4): k.e(f"v_mov_b32 v{12+j}, 0")
    k.e("v_lshlrev_b32 v8, 4, v0")
    for j in range(3): k.e(f"buffer_store_dwordx4 v[12:15], v8, {sr(SRD_WS,4)}, s48 offen offset:{j*1024} sc1")
    k.lab(sk)
    k.e("s_lshl_b32 s51, s26, 11")
    k.e("s_mov_b32 s52, 0")
    k.e("s_mov_b32 s53, 0")
    k.e("s_mov_b32 s57, 0")
    lp = k.u("ldpro")
    k.lab(lp)
    issue_stage(k)
    k.e("s_cmp_lt_u32 s57, 4")
    k.e(f"s_cbranch_scc1 {lp}")
    k.e("s_waitcnt vmcnt(24)")
    k.e("s_barrier")
    k.e(f"v_mov_b32 v8, {NONCE_L}")
    k.e("ds_read_b32 v9, v8")
    k.e("s_waitcnt lgkmcnt(0)")
    k.e(f"v_readfirstlane_b32 s{S_NONCE}, v9")
    k.stamp(1)
    k.e("s_mov_b32 s48, 0")
    lp = k.u("ldloop")
    if stamps:
        k.e("s_mov_b32 s86, 0"); k.e("s_mov_b32 s87, 0"); k.e("s_mov_b32 s88, 0")
    k.lab(lp)
    if stamps:
        k.e("s_memtime s[90:91]"); k.e("s_waitcnt lgkmcnt(0)")
    k.e("s_waitcnt vmcnt(16)")
    if stamps:
        k.e("s_memtime s[92:93]"); k.e("s_waitcnt lgkmcnt(0)")
    k.e("s_barrier")
    if stamps:
        k.e("s_memtime s[94:95]"); k.e("s_waitcnt lgkmcnt(0)")
        k.e("s_sub_u32 s96, s92, s90"); k.e("s_add_u32 s86, s86, s96")
        k.e("s_sub_u32 s96, s94, s92"); k.e("s_add_u32 s87, s87, s96")
    sk = k.u("nosig")
    k.e("s_cmp_eq_u32 s48, 10")
    k.e(f"s_cbranch_scc0 {sk}")
    k.e("s_cmp_eq_u32 s26, 0")
    k.e(f"s_cbranch_scc0 {sk}")
    k.e(f"s_lshl_b32 s49, s{S_G}, 8")
    k.e(f"s_lshl_b32 s50, s{S_RB}, 2")
    k.e("s_add_u32 s49, s49, s50")
    k.e(f"s_add_u32 s49, s49, {F1B}")
    k.e(f"v_mov_b32 v8, s{S_NONCE}")
    k.e("v_mov_b32 v9, 0")
    k.e("s_mov_b64 exec, 1")
    k.e(f"buffer_store_dword v8, v9, {sr(SRD_WS,4)}, s49 offen sc1")
    k.e("s_mov_b64 exec, -1")
    k.lab(sk)
    issue_stage(k)
    if stamps:
        k.e("s_memtime s[96:97]"); k.e("s_waitcnt lgkmcnt(0)")
        k.e("s_sub_u32 s96, s96, s94"); k.e("s_add_u32 s88, s88, s96")
    k.e("s_add_u32 s48, s48, 1")
    k.e("s_cmp_lt_u32 s48, 12")
    k.e(f"s_cbranch_scc1 {lp}")
    k.e("s_waitcnt vmcnt(16)"); k.e("s_barrier")
    k.e("s_waitcnt vmcnt(8)");  k.e("s_barrier")
    k.e("s_waitcnt vmcnt(0)");  k.e("s_barrier")
    k.e("s_barrier")
    if stamps: k.e("s_mov_b32 s74, s88")
    k.stamp(4)
    k.e(f"s_sub_u32 s48, s{S_RB}, 4")
    k.e("v_add_u32 v8, s48, v0")
    k.e("v_max_i32 v8, 0, v8")
    k.e("v_cmp_gt_u32 vcc, 4, v0")
    k.e("s_nop 1")
    k.e("v_cndmask_b32 v8, 0, v8, vcc")
    k.e("v_lshlrev_b32 v8, 2, v8")
    k.e(f"s_lshl_b32 s49, s{S_G}, 8")
    k.e(f"s_add_u32 s49, s49, {F1B}")
    k.e("v_add_u32 v8, s49, v8")
    poll_flags(k, 8, 9, "f1b")
    k.stamp(5)
    sk = k.u("norem")
    k.e(f"s_cmp_eq_u32 s{S_RB}, 0")
    k.e(f"s_cbranch_scc1 {sk}")
    k.e("v_lshlrev_b32 v8, 4, v0")
    k.e(f"s_lshl_b32 s48, s{S_G}, 2")
    k.e("s_add_u32 s48, s48, s26")
    k.e("s_lshl_b32 s48, s48, 6")
    k.e(f"s_lshl_b32 s49, s{S_RB}, 1")
    k.e("s_sub_u32 s49, s49, 8")
    for j in range(8):
        k.e(f"s_add_i32 s50, s49, {j}")
        k.e("s_max_i32 s50, s50, 0")
        k.e("s_add_u32 s50, s50, s48")
        k.e("s_lshl_b32 s50, s50, 10")
        k.e(f"s_add_u32 s51, s50, {VB_G}")
        if KB_G: k.e(f"s_add_u32 s50, s50, {KB_G}")
        k.e(f"buffer_load_dwordx4 {vr(16+4*j,4)}, v8, {sr(SRD_WS,4)}, s50 offen sc1")
        k.e(f"buffer_load_dwordx4 {vr(48+4*j,4)}, v8, {sr(SRD_WS,4)}, s51 offen sc1")
    k.e("s_mul_i32 s48, s26, 10240")
    k.e("v_add_u32 v9, s48, v8")
    for j in range(8):
        k.e(f"s_waitcnt vmcnt({14-2*j})")
        k.e(f"ds_write_b128 v9, {vr(16+4*j,4)} offset:{K_L + j*1024}")
        k.e(f"ds_write_b128 v9, {vr(48+4*j,4)} offset:{V_L + j*1024}")
    k.lab(sk)
    k.e("s_waitcnt lgkmcnt(0)")
    k.stamp(6)
    k.e("s_barrier")
    k.e("s_and_b32 s48, s2, 7")
    k.e("s_lshr_b32 s49, s2, 3")
    k.e("s_lshr_b32 s66, s48, 2")
    k.e("s_lshr_b32 s68, s49, 2")
    k.e("s_cmp_eq_u32 s66, 0")
    k.e(f"s_cselect_b32 s{SRD_WO}, s{P_AWO}, s{P_BWO}")
    k.e(f"s_cselect_b32 s{SRD_WO+1}, s{P_AWO+1}, s{P_BWO+1}")
    k.e(f"s_mov_b32 s{SRD_WO+2}, 0x{512*1024:x}")
    k.e(f"s_mov_b32 s{SRD_WO+3}, 0x20000")
    k.e("v_lshrrev_b32 v4, 3, v0")
    k.e("v_and_b32 v5, 7, v0")
    k.e("v_and_b32 v6, 2, v4")
    k.e("v_lshlrev_b32 v6, 1, v6")
    k.e("v_xor_b32 v6, v5, v6")
    k.e("v_lshlrev_b32 v6, 4, v6")
    k.e("s_lshl_b32 s48, s26, 7")
    k.e("v_add_u32 v4, s48, v4")
    k.e("v_lshlrev_b32 v4, 10, v4")
    k.e("s_lshl_b32 s48, s68, 7")
    k.e("v_add3_u32 v4, v4, v6, s48")
    k.e("s_lshl_b32 s48, s26, 14")
    k.e(f"s_add_u32 s48, s48, {WO_L}")
    k.e("s_mov_b32 s49, 0")
    for jj in range(8):
        k.e("s_mov_b32 m0, s48")
        k.e("s_add_u32 s50, s49, 7168")
        k.e(f"buffer_load_dwordx4 v4, {sr(SRD_WO,4)}, s49 offen lds")
        k.e(f"buffer_load_dwordx4 v4, {sr(SRD_WO,4)}, s50 offen offset:1024 lds")
        k.e("s_add_u32 s48, s48, 2048")
        k.e("s_add_u32 s49, s49, 16384")

    k.lab("L_attn")
    k.stamp(7)
    attention(k)
    k.stamp(9)
    apart(k)
    k.stamp(10)
    k.e("s_waitcnt vmcnt(0) lgkmcnt(0)")
    k.e("s_barrier")
    k.stamp(11)
    sk = k.u("nof2")
    k.e(f"s_cmp_eq_u32 s{S_WAVE}, 4")
    k.e(f"s_cbranch_scc0 {sk}")
    k.e(f"s_lshr_b32 s48, s{S_RB}, 1")
    k.e("s_lshl_b32 s48, s48, 8")
    k.e(f"s_and_b32 s49, s{S_RB}, 1")
    k.e("s_lshl_b32 s49, s49, 3")
    k.e(f"s_add_u32 s49, s49, s{S_G}")
    k.e("s_lshl_b32 s49, s49, 2")
    k.e("s_add_u32 s48, s48, s49")
    k.e(f"s_add_u32 s48, s48, {F2}")
    k.e(f"v_mov_b32 v8, s{S_NONCE}")
    k.e("v_mov_b32 v9, 0")
    k.e("s_mov_b64 exec, 1")
    k.e(f"buffer_store_dword v8, v9, {sr(SRD_WS,4)}, s48 offen sc1")
    k.e("s_mov_b64 exec, -1")
    k.lab(sk)
    k.e(f"s_cmp_ge_u32 s{S_WAVE}, 4")
    k.e("s_cbranch_scc1 L_fin")
    p3(k)
    k.lab("L_fin")
    if stamps:
        k.stamp(13)
        k.e(f"s_lshl_b32 s48, s2, 3")
        k.e(f"s_add_u32 s48, s48, s{S_WAVE}")
        k.e("s_lshl_b32 s48, s48, 6")
        k.e(f"s_add_u32 s48, s48, {STAMP}")
        k.e("v_mov_b32 v9, 0")
        for j in range(16):
            k.e(f"v_mov_b32 v8, s{72+j}")
            k.e(f"buffer_store_dword v8, v9, {sr(SRD_WS,4)}, s48 offen offset:{4*j}")
            k.e("s_nop 0")
    k.lab("L_end")
    k.e("s_endpgm")
    return k

AQ_, AKF, AS, AMD, AMF, ACN, AP, AVB, AO = 4, 8, [44, 60, 76], 92, 108, 124, 140, [148, 156], 176
AM, AT, AKA, AVA = 192, 193, 196, 197
VMASK = 0x0000FFFF0000FFFF

def v_reads(k, buf, vaddr, off):
    k.e("s_mov_b64 exec, s[64:65]")
    k.e(f"ds_read_b128 {vr(AVB[buf],4)}, v{vaddr} offset:{off}")
    k.e(f"ds_read_b128 {vr(AVB[buf]+4,4)}, v{vaddr} offset:{off+512}")
    k.e("s_mov_b64 exec, -1")

def attention(k):
    k.c("attention: i = w&1 (s26), hh = w>>1 (s27)")
    k.e(f"s_and_b32 s26, s{S_WAVE}, 1")
    k.e(f"s_lshr_b32 s27, s{S_WAVE}, 1")
    k.e(f"s_lshl_b32 s48, s{S_RB}, 1")
    k.e("s_add_u32 s48, s48, s26")
    k.e("v_lshlrev_b32 v1, 4, v0")
    k.e("s_lshl_b32 s49, s27, 11")
    k.e("s_lshl_b32 s50, s26, 10")
    k.e("s_add_u32 s49, s49, s50")
    k.e(f"s_add_u32 s49, s49, {Q_L}")
    k.e("v_add_u32 v2, s49, v1")
    k.e(f"ds_read_b128 {vr(AQ_,4)}, v2")
    k.e("s_mul_i32 s49, s27, 10240")
    k.e("s_add_u32 s49, s49, s50")
    k.e(f"v_add_u32 v{AKA}, s49, v1")
    k.e("v_lshrrev_b32 v2, 5, v0")
    k.e("v_lshlrev_b32 v2, 8, v2")
    k.e("v_and_b32 v3, 15, v0")
    k.e("v_lshlrev_b32 v3, 4, v3")
    k.e(f"s_add_u32 s49, s49, {V_L}")
    k.e(f"v_add3_u32 v{AVA}, v2, v3, s49")
    k.e("s_mov_b32 s64, 0xffff")
    k.e("s_mov_b32 s65, 0xffff")
    k.e("v_and_b32 v2, 31, v0")
    k.e("v_lshrrev_b32 v3, 5, v0")
    k.e("v_lshlrev_b32 v3, 2, v3")
    k.e("v_sub_u32 v2, v2, v3")
    k.e("v_cvt_f32_i32 v2, v2")
    k.e(f"v_mov_b32 v3, {lit(BIG)}")
    short = k.u("short"); done = k.u("attdone")
    k.e("s_cmp_lt_u32 s48, 8")
    k.e(f"s_cbranch_scc1 {short}")
    for p in range(9): k.e(f"ds_read_b128 {vr(AKF+4*p,4)}, v{AKA} offset:{K_L + p*1024}")
    for i in range(16):
        ci = 8*(i >> 2) + (i & 3)
        k.e(f"v_fmaak_f32 v{AMD+i}, v2, v3, {lit((0.5-ci)*BIG)}")
    for i in range(16): k.e(f"v_min_f32 v{AMF+i}, -v{AMD+i}, 0")
    for i in range(16): k.e(f"v_min_f32 v{AMD+i}, 0, v{AMD+i}")
    for b in range(2):
        for j in range(8): k.e(f"v_mov_b32 v{AVB[b]+j}, 0x3f803f80")
    k.e(f"v_mov_b32 v{AM}, 0xff7fffff")
    k.e("s_waitcnt lgkmcnt(0)")
    Q = vr(AQ_, 4)
    def qk(dst, p, c): k.e(f"v_mfma_f32_32x32x16_bf16 {vr(dst,16)}, {vr(AKF+4*p,4)}, {Q}, {c}")
    qk(AS[0], 0, vr(AMF,16)); qk(AS[1], 1, "0"); qk(AS[2], 2, "0")
    v_reads(k, 0, AVA, 0)
    k.e("s_nop 5")
    for p in range(9):
        s = AS[p % 3]
        for j in range(8): k.e(f"v_max3_f32 v{AM}, v{s+2*j}, v{s+2*j+1}, v{AM}")
        if p + 3 <= 8: qk(s, p + 3, vr(AMD,16) if p + 3 == 8 else "0")
    k.e(f"v_mov_b32 v{AT}, v{AM}")
    k.e("s_nop 1")
    k.e(f"v_permlane32_swap_b32 v{AM}, v{AT}")
    k.e(f"v_max_f32 v{AM}, v{AM}, v{AT}")
    k.e(f"v_sub_f32 v{AM}, 0, v{AM}")
    for i in range(16): k.e(f"v_add_f32 v{AMF+i}, v{AMF+i}, v{AM}")
    for i in range(16): k.e(f"v_mov_b32 v{ACN+i}, v{AM}")
    k.e("s_nop 0")
    qk(AS[0], 0, vr(AMF,16))
    for i in range(16): k.e(f"v_add_f32 v{AMD+i}, v{AMD+i}, v{AM}")
    for p in range(9):
        cur = AS[p % 2]; nxt = AS[(p + 1) % 2]
        if p < 8:
            qk(nxt, p + 1, vr(AMD,16) if p + 1 == 8 else vr(ACN,16))
            v_reads(k, (p + 1) % 2, AVA, (p + 1) * 1024)
        for j in range(16): k.e(f"v_exp_f32 v{cur+j}, v{cur+j}")
        for j in range(8): k.e(f"v_cvt_pk_bf16_f32 v{AP+j}, v{cur+2*j}, v{cur+2*j+1}")
        k.e(f"s_waitcnt lgkmcnt({2 if p < 8 else 0})")
        vb = AVB[p % 2]
        k.e(f"v_mfma_f32_32x32x16_bf16 {vr(AO,16)}, {vr(vb,4)}, {vr(AP,4)}, {'0' if p == 0 else vr(AO,16)}")
        k.e("s_nop 0")
        k.e(f"v_mfma_f32_32x32x16_bf16 {vr(AO,16)}, {vr(vb+4,4)}, {vr(AP+4,4)}, {vr(AO,16)}")
    k.e(f"s_branch {done}")
    k.lab(short)
    for i in range(16):
        ci = 8*(i >> 2) + (i & 3)
        k.e(f"v_fmaak_f32 v{AMD+i}, v2, v3, {lit((0.5-ci)*BIG)}")
    for i in range(16): k.e(f"v_min_f32 v{AMD+i}, 0, v{AMD+i}")
    for j in range(8): k.e(f"v_mov_b32 v{AVB[0]+j}, 0x3f803f80")
    for i in range(16): k.e(f"v_mov_b32 v{AO+i}, 0")
    k.e(f"v_mov_b32 v{AM}, 0xff7fffff")
    k.e("s_sub_u32 s49, 8, s48")
    k.e("s_lshl_b32 s50, s49, 10")
    k.e(f"v_add_u32 v{AKA}, s50, v{AKA}")
    k.e(f"v_add_u32 v{AVA}, s50, v{AVA}")
    k.e(f"v_mov_b32 v{AT+1}, v{AKA}")
    S = AS[0]; KT = AKF
    l1 = k.u("s1"); l1e = k.u("s1e")
    k.e("s_mov_b32 s51, s49")
    k.lab(l1)
    k.e("s_cmp_lt_u32 s51, 8")
    k.e(f"s_cbranch_scc0 {l1e}")
    k.e(f"ds_read_b128 {vr(KT,4)}, v{AKA}")
    k.e("s_waitcnt lgkmcnt(0)")
    k.e(f"v_mfma_f32_32x32x16_bf16 {vr(S,16)}, {vr(KT,4)}, {Q}, 0")
    k.e(f"v_add_u32 v{AKA}, 1024, v{AKA}")
    k.e("s_add_u32 s51, s51, 1")
    k.e("s_nop 10")
    for j in range(8): k.e(f"v_max3_f32 v{AM}, v{S+2*j}, v{S+2*j+1}, v{AM}")
    k.e(f"s_branch {l1}")
    k.lab(l1e)
    k.e(f"ds_read_b128 {vr(KT,4)}, v{AKA}")
    k.e("s_waitcnt lgkmcnt(0)")
    k.e(f"v_mfma_f32_32x32x16_bf16 {vr(S,16)}, {vr(KT,4)}, {Q}, {vr(AMD,16)}")
    k.e("s_nop 11")
    for j in range(8): k.e(f"v_max3_f32 v{AM}, v{S+2*j}, v{S+2*j+1}, v{AM}")
    k.e(f"v_mov_b32 v{AT}, v{AM}")
    k.e("s_nop 1")
    k.e(f"v_permlane32_swap_b32 v{AM}, v{AT}")
    k.e(f"v_max_f32 v{AM}, v{AM}, v{AT}")
    k.e(f"v_sub_f32 v{AM}, 0, v{AM}")
    for i in range(16): k.e(f"v_add_f32 v{AMD+i}, v{AMD+i}, v{AM}")
    for i in range(16): k.e(f"v_mov_b32 v{ACN+i}, v{AM}")
    k.e(f"v_mov_b32 v{AKA}, v{AT+1}")
    l2 = k.u("s2"); l2e = k.u("s2e")
    def tile2(cregs):
        k.e(f"ds_read_b128 {vr(KT,4)}, v{AKA}")
        v_reads(k, 0, AVA, 0)
        k.e("s_waitcnt lgkmcnt(0)")
        k.e(f"v_mfma_f32_32x32x16_bf16 {vr(S,16)}, {vr(KT,4)}, {Q}, {cregs}")
        k.e(f"v_add_u32 v{AKA}, 1024, v{AKA}")
        k.e(f"v_add_u32 v{AVA}, 1024, v{AVA}")
        k.e("s_add_u32 s51, s51, 1")
        k.e("s_nop 9")
        for j in range(16): k.e(f"v_exp_f32 v{S+j}, v{S+j}")
        for j in range(8): k.e(f"v_cvt_pk_bf16_f32 v{AP+j}, v{S+2*j}, v{S+2*j+1}")
        k.e("s_nop 1")
        k.e(f"v_mfma_f32_32x32x16_bf16 {vr(AO,16)}, {vr(AVB[0],4)}, {vr(AP,4)}, {vr(AO,16)}")
        k.e(f"v_mfma_f32_32x32x16_bf16 {vr(AO,16)}, {vr(AVB[0]+4,4)}, {vr(AP+4,4)}, {vr(AO,16)}")
    k.e("s_mov_b32 s51, s49")
    k.lab(l2)
    k.e("s_cmp_lt_u32 s51, 8")
    k.e(f"s_cbranch_scc0 {l2e}")
    tile2(vr(ACN,16))
    k.e(f"s_branch {l2}")
    k.lab(l2e)
    tile2(vr(AMD,16))
    k.lab(done)
    k.e("s_nop 11")
    k.e(f"v_rcp_f32 v{AT}, v{AO+8}")
    k.e("s_nop 0")
    for j in range(8): k.e(f"v_mul_f32 v{AO+j}, v{AO+j}, v{AT}")
    cvt8(k, AP, AO)
    k.e(f"s_lshl_b32 s49, s{S_G}, 2")
    k.e("s_add_u32 s49, s49, s27")
    k.e("s_lshl_b32 s50, s48, 5")
    k.e("s_add_u32 s49, s49, s50")
    k.e("s_lshl_b32 s49, s49, 10")
    k.e(f"s_add_u32 s49, s49, {O_G + (2<<20)}")
    k.e(f"buffer_store_dwordx4 {vr(AP,4)}, v1, {sr(SRD_WS,4)}, s49 offen sc1")

def apart(k):
    sk = k.u("noapart")
    k.e(f"s_cmp_ge_u32 s{S_WAVE}, 4")
    k.e(f"s_cbranch_scc1 {sk}")
    sk2 = k.u("nosigA")
    k.e("s_cmp_eq_u32 s26, 0")
    k.e(f"s_cbranch_scc0 {sk2}")
    k.e("s_waitcnt vmcnt(0)")
    k.e(f"s_lshl_b32 s48, s{S_G}, 8")
    k.e(f"s_lshl_b32 s49, s{S_RB}, 1")
    k.e("s_add_u32 s49, s49, s27")
    k.e("s_lshl_b32 s49, s49, 2")
    k.e("s_add_u32 s48, s48, s49")
    k.e(f"s_add_u32 s48, s48, {F1A}")
    k.e(f"v_mov_b32 v8, s{S_NONCE}")
    k.e("v_mov_b32 v9, 0")
    k.e("s_mov_b64 exec, 1")
    k.e(f"buffer_store_dword v8, v9, {sr(SRD_WS,4)}, s48 offen sc1")
    k.e("s_mov_b64 exec, -1")
    k.lab(sk2)
    k.e(f"s_lshl_b32 s48, s{S_G}, 8")
    k.e(f"s_add_u32 s48, s48, {F1A}")
    k.e("v_lshlrev_b32 v8, 2, v0")
    k.e("v_add_u32 v8, s48, v8")
    poll_flags(k, 8, 9, "f1a")
    k.e(f"s_lshl_b32 s48, s{S_G}, 1")
    k.e("s_add_u32 s48, s48, s27")
    k.e("s_lshl_b32 s48, s48, 12")
    k.e(f"s_add_u32 s48, s48, {KVACC}")
    k.e("v_lshrrev_b32 v2, 5, v0")
    k.e("v_and_b32 v3, 15, v0")
    k.e("v_lshlrev_b32 v4, 5, v2")
    k.e("v_add_u32 v4, v4, v3")
    k.e("v_lshlrev_b32 v4, 2, v4")
    k.e("v_lshlrev_b32 v5, 4, v2")
    k.e("s_mov_b32 s64, 0xffff")
    k.e("s_mov_b32 s65, 0xffff")
    KVR = [8, 16]
    for hb in range(2):
        k.e("s_mov_b64 exec, s[64:65]")
        for t in range(8):
            k.e(f"buffer_load_dword v{KVR[hb]+t}, v4, {sr(SRD_WS,4)}, s48 offen offset:{t*256 + hb*64} sc1")
        k.e("s_not_b64 exec, s[64:65]")
        k.e(f"buffer_load_dwordx4 {vr(KVR[hb],4)}, v5, {sr(SRD_WS,4)}, s48 offen offset:{2048 + hb*64} sc1")
        k.e(f"buffer_load_dwordx4 {vr(KVR[hb]+4,4)}, v5, {sr(SRD_WS,4)}, s48 offen offset:{2048 + hb*64 + 32} sc1")
    k.e("s_mov_b64 exec, -1")
    k.e("s_waitcnt vmcnt(0)")
    AOP = [24, 28]; D = [32, 48]
    for hb in range(2): cvt8(k, AOP[hb], KVR[hb])
    k.e("s_nop 1")
    for hb in range(2):
        k.e(f"v_mfma_f32_32x32x16_bf16 {vr(D[hb],16)}, {vr(AOP[hb],4)}, {vr(PQ+4*hb,4)}, 0")
    k.e(f"s_mov_b32 s62, {lit(1e-6)}")
    k.e("s_nop 10")
    for hb in range(2):
        k.e(f"v_add_f32 v{64+hb}, s62, v{D[hb]+8}")
    for hb in range(2):
        k.e(f"v_rcp_f32 v{64+hb}, v{64+hb}")
    k.e("s_nop 0")
    for hb in range(2):
        for j in range(8): k.e(f"v_mul_f32 v{D[hb]+j}, v{D[hb]+j}, v{64+hb}")
        cvt8(k, 68+4*hb, D[hb])
    k.e(f"s_lshl_b32 s48, s{S_RB}, 1")
    k.e("s_add_u32 s48, s48, s26")
    k.e("s_lshl_b32 s48, s48, 5")
    k.e(f"s_lshl_b32 s49, s{S_G}, 2")
    k.e("s_add_u32 s48, s48, s49")
    k.e("s_lshl_b32 s49, s27, 1")
    k.e("s_add_u32 s48, s48, s49")
    k.e("s_lshl_b32 s48, s48, 10")
    k.e(f"s_add_u32 s48, s48, {O_G}")
    k.e("v_lshlrev_b32 v1, 4, v0")
    k.e(f"buffer_store_dwordx4 {vr(68,4)}, v1, {sr(SRD_WS,4)}, s48 offen sc1")
    k.e(f"buffer_store_dwordx4 {vr(72,4)}, v1, {sr(SRD_WS,4)}, s48 offen offset:1024 sc1")
    k.lab(sk)

def p3(k):
    k.c("P3: out tile 128x64")
    k.e("s_and_b32 s48, s2, 7")
    k.e("s_lshr_b32 s49, s2, 3")
    k.e("s_lshr_b32 s66, s48, 2")
    k.e("s_and_b32 s67, s48, 3")
    k.e("s_lshl_b32 s67, s67, 2")
    k.e("s_and_b32 s50, s49, 3")
    k.e("s_add_u32 s67, s67, s50")
    k.e("s_lshr_b32 s68, s49, 2")
    k.e("s_lshl_b32 s48, s67, 8")
    k.e(f"s_add_u32 s48, s48, {F2}")
    k.e("v_and_b32 v8, 15, v0")
    k.e("v_lshlrev_b32 v8, 2, v8")
    k.e("v_add_u32 v8, s48, v8")
    poll_flags(k, 8, 9, "f2")
    k.stamp(12)
    OF, ACC, WF = 8, 136, [168, 176]
    VA0, VA1 = 184, 185
    k.e("s_lshl_b32 s48, s67, 2")
    k.e(f"s_add_u32 s48, s48, s{S_WAVE}")
    k.e("s_lshl_b32 s49, s48, 15")
    k.e("s_lshl_b32 s50, s66, 21")
    k.e("s_add_u32 s49, s49, s50")
    k.e(f"s_add_u32 s49, s49, {O_G}")
    k.e("v_lshlrev_b32 v1, 4, v0")
    for hd in range(32):
        k.e(f"buffer_load_dwordx4 {vr(OF+4*hd,4)}, v1, {sr(SRD_WS,4)}, s49 offen offset:{(hd%4)*1024} sc1")
        if hd % 4 == 3 and hd < 31: k.e("s_add_u32 s49, s49, 4096")
    k.e("v_bfe_u32 v2, v0, 2, 2")
    k.e("v_and_b32 v3, 3, v0")
    k.e("v_bfe_u32 v4, v0, 4, 1")
    k.e("v_lshrrev_b32 v5, 5, v0")
    k.e("v_lshlrev_b32 v5, 2, v5")
    k.e("v_add_u32 v5, v5, v2")
    k.e("v_lshlrev_b32 v5, 7, v5")
    k.e("v_and_b32 v6, 1, v3")
    k.e("v_lshlrev_b32 v6, 1, v6")
    k.e("v_add_u32 v6, v6, v4")
    k.e("v_and_b32 v7, 2, v2")
    k.e("v_lshlrev_b32 v7, 1, v7")
    k.e("v_xor_b32 v6, v6, v7")
    k.e("v_lshlrev_b32 v6, 4, v6")
    k.e("v_lshrrev_b32 v3, 1, v3")
    k.e("v_lshlrev_b32 v3, 3, v3")
    k.e("v_add3_u32 v5, v5, v6, v3")
    k.e(f"v_add_u32 v{VA0}, {WO_L}, v5")
    k.e(f"v_xor_b32 v{VA1}, 64, v{VA0}")
    def wreads(buf, hd):
        for b in range(2):
            for s2 in range(2):
                k.e(f"ds_read_b64_tr_b16 {vr(WF[buf]+4*b+2*s2,2)}, v{VA0+b} offset:{hd*2048 + s2*1024}")
    wreads(0, 0)
    for hd in range(32):
        if hd < 31: wreads((hd + 1) % 2, hd + 1)
        k.e(f"s_waitcnt vmcnt({31-hd}) lgkmcnt({4 if hd < 31 else 0})")
        for b in range(2):
            k.e(f"v_mfma_f32_32x32x16_bf16 {vr(ACC+16*b,16)}, {vr(WF[hd%2]+4*b,4)}, {vr(OF+4*hd,4)}, {'0' if hd == 0 else vr(ACC+16*b,16)}")
    srd(k, SRD_T, P_OUT, 4 << 20)
    k.e("v_and_b32 v2, 31, v0")
    k.e("s_lshl_b32 s49, s48, 5")
    k.e("v_add_u32 v2, s49, v2")
    k.e("v_lshlrev_b32 v2, 11, v2")
    k.e("v_lshrrev_b32 v3, 5, v0")
    k.e("v_lshlrev_b32 v3, 5, v3")
    k.e("s_lshl_b32 s49, s66, 10")
    k.e("s_lshl_b32 s50, s68, 7")
    k.e("s_add_u32 s49, s49, s50")
    k.e("v_add3_u32 v2, v2, v3, s49")
    k.e("s_nop 3")
    for b in range(2):
        for j in range(8): k.e(f"v_cvt_pk_bf16_f32 v{8+8*b+j}, v{ACC+16*b+2*j}, v{ACC+16*b+2*j+1}")
    for b in range(2):
        k.e(f"buffer_store_dwordx4 {vr(8+8*b,4)}, v2, {sr(SRD_T,4)}, 0 offen offset:{64*b}")
        k.e(f"buffer_store_dwordx4 {vr(12+8*b,4)}, v2, {sr(SRD_T,4)}, 0 offen offset:{64*b+16}")

HDR = """; Kernarg layout for this problem (72 bytes, ptrs only, base s[0:1]):
;   offset   0: d_in[0] A_x  shape=(1, 2048, 512) dtype=bfloat16
;   offset   8: d_in[1] A_wqkv  shape=(512, 1536) dtype=bfloat16
;   offset  16: d_in[2] A_wo  shape=(512, 512) dtype=bfloat16
;   offset  24: d_in[3] B_x  shape=(1, 2048, 512) dtype=bfloat16
;   offset  32: d_in[4] B_wqkv  shape=(512, 1536) dtype=bfloat16
;   offset  40: d_in[5] B_wo  shape=(512, 512) dtype=bfloat16
;   offset  48: d_out     shape=(1, 2048, 1024) dtype=bfloat16
;   offset  56: d_debug   256 bytes
;   offset  64: d_ws      268435456 bytes workspace
; @launch grid=(256,1,1) block=(512,1,1) lds=163840
.amdgcn_target "amdgcn-amd-amdhsa--gfx950"
.text
.globl KNAME
.p2align 8
.type KNAME,@function
""".replace("KNAME", KNAME)

TAIL = """.section .rodata,"a"
.p2align 6
.amdhsa_kernel KNAME
  .amdhsa_next_free_vgpr 256
  .amdhsa_next_free_sgpr 102
  .amdhsa_accum_offset 256
  .amdhsa_group_segment_fixed_size 0
  .amdhsa_kernarg_size 72
  .amdhsa_user_sgpr_count 2
  .amdhsa_user_sgpr_kernarg_segment_ptr 1
  .amdhsa_system_sgpr_workgroup_id_x 1
.end_amdhsa_kernel
""".replace("KNAME", KNAME)

def build(stamps=False):
    k = gen(stamps)
    body = "\n".join(k.L)
    body = body.replace("PF_BACK", f"((L_pc - {KNAME}) & 0xffffff00)")
    pad = "\n    .fill 4096, 4, 0xbf800000\n"
    return HDR + body + pad + "\n" + TAIL

if __name__ == "__main__":
    out = sys.argv[1] if len(sys.argv) > 1 else "out.s"
    stamps = len(sys.argv) > 2 and sys.argv[2] == "stamps"
    txt = build(stamps)
    open(out, "w").write(txt)
    import hz
    pr = hz.check(txt)
    print("hazards:", len(pr), "lines:", txt.count("\n"))
```

```python
import sys, math, struct

KNAME = "concat_heads__linear_attn_block__sliding_block__prompt_kernel"

KB_G   = 0
VB_G   = 2 << 20
O_G    = 4 << 20
KVACC  = 8 << 20
FL     = (8 << 20) + (64 << 10)
F1B    = FL
F1A    = FL + 4096
F2     = FL + 8192
STAMP  = 9 << 20
SLOT   = 32768
NONCE_L = 131072
K_L, V_L, Q_L, SCR_L, WO_L = 0, 40960, 81920, 90112, 98304
CS = 0.25 * math.log2(math.e)
LOG2E = math.log2(math.e)
BIG = 1.0e28
SPIN_MAX = 100000
OPT = dict(rot=0, pfB=1, pfA=1, ldstamps=0, nodma=0, noreads=0)

def f2u(x): return struct.unpack('<I', struct.pack('<f', x))[0]
def lit(x): return "0x%08x" % f2u(x)

class K:
    def __init__(self, stamps=False, stop=None):
        self.L = []; self.stamps = stamps; self.stop = stop; self.nst = 0; self.uid = 0
    def e(self, s): self.L.append("    " + s)
    def c(self, s): self.L.append("    ; " + s)
    def lab(self, s): self.L.append(s + ":")
    def u(self, p):
        self.uid += 1; return f"L_{p}_{self.uid}"
    def stamp(self, k):
        if not self.stamps: return
        self.e("s_memrealtime s[70:71]")
        self.e("s_waitcnt lgkmcnt(0)")
        self.e(f"s_mov_b32 s{72+k}, s70")

def vr(a, n): return f"v[{a}:{a+n-1}]"
def sr(a, n): return f"s[{a}:{a+n-1}]"

S_WAVE, S_RB, S_G, S_NONCE = 22, 23, 24, 25
SRD_WS, SRD_X, SRD_W, SRD_T, SRD_WO = 28, 32, 36, 40, 44
P_AX, P_AW, P_AWO, P_BX, P_BW, P_BWO, P_OUT, P_DBG, P_WS = 4, 6, 8, 10, 12, 14, 16, 18, 20

def srd(k, dst, ptr, size):
    k.e(f"s_mov_b32 s{dst}, s{ptr}")
    k.e(f"s_mov_b32 s{dst+1}, s{ptr+1}")
    k.e(f"s_mov_b32 s{dst+2}, 0x{size:x}")
    k.e(f"s_mov_b32 s{dst+3}, 0x20000")

def spin_guard(k, sreg, exit_label):
    k.e(f"s_add_u32 s{sreg}, s{sreg}, 1")
    k.e(f"s_cmp_gt_u32 s{sreg}, {SPIN_MAX}")
    k.e(f"s_cbranch_scc1 {exit_label}")

def poll_flags(k, vaddr, vtmp, name, sleep=1):
    lp = k.u(name + "_poll"); ex = k.u(name + "_done")
    k.e("s_mov_b32 s60, 0")
    k.lab(lp)
    k.e(f"buffer_load_dword v{vtmp}, v{vaddr}, {sr(SRD_WS,4)}, 0 offen sc1")
    spin_guard(k, 60, ex)
    k.e("s_waitcnt vmcnt(0)")
    k.e(f"v_cmp_ne_u32 vcc, s{S_NONCE}, v{vtmp}")
    k.e("s_nop 1")
    k.e(f"s_cbranch_vccz {ex}")
    if sleep: k.e(f"s_sleep {sleep}")
    k.e(f"s_branch {lp}")
    k.lab(ex)
    k.e("s_waitcnt vmcnt(0)")

ACC_B, ACC_A = 8, 56
BUF = [104, 120, 136, 152]
VXA, VWA = 168, 172
QF, KF, VF = 176, 184, 192
PQ = 200
PFD = 208

def rd_x(k, buf, j):
    if OPT['noreads']: return
    k.e(f"ds_read_b128 {vr(BUF[buf],4)}, v{VXA+j}")
def rd_w(k, buf, j, p):
    if OPT['noreads']: return
    b = BUF[buf]
    for s2 in range(2):
        k.e(f"ds_read_b64_tr_b16 {vr(b+4+4*p+2*s2,2)}, v{VWA} offset:{p*8192 + j*2048 + s2*512}")
def frag_reads(k, buf, j):
    rd_x(k, buf, j)
    for p in range(3): rd_w(k, buf, j, p)

def mfma1(k, buf, acc, branch, p):
    b = BUF[buf]; X = vr(b,4); W = vr(b+4+4*p,4); D = vr(acc+16*p,16)
    if p == 0 or (p == 1 and branch == 'B'): k.e(f"v_mfma_f32_32x32x16_bf16 {D}, {W}, {X}, {D}")
    else: k.e(f"v_mfma_f32_32x32x16_bf16 {D}, {X}, {W}, {D}")

def kstep(k, j, acc, branch):
    nb = (j + 2) & 3
    k.e("s_waitcnt lgkmcnt(7)")
    mfma1(k, j, acc, branch, 0)
    rd_x(k, nb, nb); rd_w(k, nb, nb, 0)
    mfma1(k, j, acc, branch, 1)
    rd_w(k, nb, nb, 1)
    mfma1(k, j, acc, branch, 2)
    rd_w(k, nb, nb, 2)

def consumer_loop(k, branch, acc):
    lp = k.u("cons"+branch)
    k.e("s_mov_b32 s48, 0")
    k.lab(lp)
    kstep(k, 0, acc, branch)
    k.e("s_add_u32 s49, s49, 1")
    k.e("s_and_b32 s50, s49, 3")
    k.e("s_cmp_eq_u32 s50, 0")
    k.e(f"s_cselect_b32 s50, 0x{(-3*SLOT) & 0xffffffff:x}, s69")
    kstep(k, 1, acc, branch)
    if branch == 'A':
        sk = k.u("novm")
        k.e("s_cmp_eq_u32 s48, 2")
        k.e(f"s_cbranch_scc0 {sk}")
        k.e("s_waitcnt vmcnt(0)")
        k.lab(sk)
    for j in range(4): k.e(f"v_add_u32 v{VXA+j}, s50, v{VXA+j}")
    k.e(f"v_add_u32 v{VWA}, s50, v{VWA}")
    k.e("s_barrier")
    kstep(k, 2, acc, branch)
    kstep(k, 3, acc, branch)
    k.e("s_add_u32 s48, s48, 1")
    k.e("s_cmp_lt_u32 s48, 8")
    k.e(f"s_cbranch_scc1 {lp}")

def issue_stage(k):
    k.e("s_lshl_b32 s52, s59, 7")
    k.e("s_mul_i32 s53, s59, 196608")
    k.e("s_mov_b32 m0, s51")
    k.e("s_add_u32 s54, s53, 23552")
    k.e(f"buffer_load_dwordx4 v1, {sr(SRD_X,4)}, s52 offen lds")
    k.e(f"buffer_load_dwordx4 v2, {sr(SRD_X,4)}, s52 offen offset:1024 lds")
    for p in range(3):
        k.e(f"s_add_u32 s55, s51, {8192 + p*8192}")
        k.e("s_mov_b32 m0, s55")
        if p: k.e(f"s_add_u32 s56, s53, {p*1024}"); so0 = "s56"
        else: so0 = "s53"; k.e("s_nop 0")
        k.e(f"buffer_load_dwordx4 v3, {sr(SRD_W,4)}, {so0} offen lds")
        if p: k.e(f"s_add_u32 s56, s54, {p*1024}"); so1 = "s56"
        else: so1 = "s54"
        k.e(f"buffer_load_dwordx4 v3, {sr(SRD_W,4)}, {so1} offen offset:1024 lds")
    k.e("s_add_u32 s57, s57, 1")
    k.e("s_add_u32 s59, s59, 1")
    k.e("s_and_b32 s59, s59, 7")
    k.e(f"s_add_u32 s51, s51, {SLOT}")
    k.e("s_and_b32 s58, s57, 3")
    sk = k.u("nowrap")
    k.e("s_cmp_eq_u32 s58, 0")
    k.e(f"s_cbranch_scc0 {sk}")
    k.e(f"s_sub_u32 s51, s51, {4*SLOT}")
    k.lab(sk)
    sk2 = k.u("nosw")
    k.e("s_cmp_eq_u32 s57, 8")
    k.e(f"s_cbranch_scc0 {sk2}")
    srd(k, SRD_X, P_AX, 2 << 20)
    srd(k, SRD_W, P_AW, 512*3072)
    k.lab(sk2)

def prefetch(k, pw, px, PFV, with_wo):
    k.e("s_and_b32 s50, s2, 7")
    k.e("s_lshr_b32 s51, s2, 3")
    w1 = k.u("pf1"); w2 = k.u("pf2"); ex = k.u("pfx")
    k.e(f"s_cmp_eq_u32 s{S_WAVE}, 0")
    k.e(f"s_cbranch_scc0 {w1}")
    srd(k, SRD_X, pw, 512*3072)
    k.e("v_lshrrev_b32 v1, 2, v0")
    k.e("s_lshl_b32 s52, s51, 4")
    k.e("v_add_u32 v1, s52, v1")
    k.e("v_mul_u32_u24 v1, 3072, v1")
    k.e("v_and_b32 v2, 3, v0")
    k.e("s_lshr_b32 s52, s50, 2")
    k.e("s_lshl_b32 s52, s52, 2")
    k.e("v_add_u32 v2, s52, v2")
    k.e("v_lshlrev_b32 v2, 7, v2")
    k.e("v_add_u32 v1, v1, v2")
    for p in range(3): k.e(f"buffer_load_dword v{PFV+p}, v1, {sr(SRD_X,4)}, 0 offen offset:{p*1024}")
    k.e(f"s_branch {ex}")
    k.lab(w1)
    k.e(f"s_cmp_eq_u32 s{S_WAVE}, 1")
    k.e(f"s_cbranch_scc0 {w2}")
    srd(k, SRD_X, px, 2 << 20)
    k.e("s_and_b32 s52, s50, 3")
    k.e("s_lshl_b32 s52, s52, 9")
    k.e("s_lshl_b32 s53, s51, 4")
    k.e("s_add_u32 s52, s52, s53")
    k.e("s_lshl_b32 s52, s52, 10")
    k.e("v_lshlrev_b32 v1, 7, v0")
    k.e(f"buffer_load_dword v{PFV}, v1, {sr(SRD_X,4)}, s52 offen")
    k.e("s_add_u32 s52, s52, 8192")
    k.e(f"buffer_load_dword v{PFV+1}, v1, {sr(SRD_X,4)}, s52 offen")
    k.e(f"s_branch {ex}")
    k.lab(w2)
    if with_wo:
        k.e(f"s_cmp_eq_u32 s{S_WAVE}, 2")
        k.e(f"s_cbranch_scc0 {ex}")
        k.e("s_lshr_b32 s52, s50, 2")
        k.e("s_cmp_eq_u32 s52, 0")
        k.e(f"s_cselect_b32 s{SRD_X}, s{P_AWO}, s{P_BWO}")
        k.e(f"s_cselect_b32 s{SRD_X+1}, s{P_AWO+1}, s{P_BWO+1}")
        k.e(f"s_mov_b32 s{SRD_X+2}, 0x{512*1024:x}")
        k.e(f"s_mov_b32 s{SRD_X+3}, 0x20000")
        k.e("s_lshl_b32 s52, s51, 14")
        k.e("v_lshlrev_b32 v1, 7, v0")
        k.e(f"buffer_load_dword v{PFV}, v1, {sr(SRD_X,4)}, s52 offen")
        k.e("s_add_u32 s52, s52, 8192")
        k.e(f"buffer_load_dword v{PFV+1}, v1, {sr(SRD_X,4)}, s52 offen")
    k.lab(ex)

def phi(k, r, n, t):
    for i in range(0, n, 4):
        for j in range(4): k.e(f"v_mul_f32 v{t+j}, s61, v{r+i+j}")
        for j in range(4): k.e(f"v_exp_f32 v{t+j}, v{t+j} clamp")
        for j in range(4): k.e(f"v_max_f32 v{r+i+j}, 0, v{r+i+j}")
        for j in range(4): k.e(f"v_add_f32 v{r+i+j}, s62, v{r+i+j}")
        for j in range(4): k.e(f"v_add_f32 v{r+i+j}, v{t+j}, v{r+i+j}")

def cvt8(k, dst, src):
    for j in range(4): k.e(f"v_cvt_pk_bf16_f32 v{dst+j}, v{src+2*j}, v{src+2*j+1}")

def gen(stamps=False, stop=None):
    k = K(stamps, stop)
    k.lab(KNAME)
    k.e("s_cmp_ge_u32 s2, 256")
    k.e("s_cbranch_scc1 L_end")
    if stamps:
        k.e("s_memrealtime s[70:71]")
    k.e("s_load_dwordx16 s[4:19], s[0:1], 0")
    k.e("s_load_dwordx2 s[20:21], s[0:1], 64")
    k.e("v_lshrrev_b32 v1, 6, v0")
    k.e("v_and_b32 v0, 63, v0")
    k.e(f"v_readfirstlane_b32 s{S_WAVE}, v1")
    k.e("s_and_b32 s26, s2, 7")
    k.e("s_lshr_b32 s27, s2, 3")
    k.e("s_and_b32 s48, s26, 3")
    k.e("s_lshl_b32 s48, s48, 3")
    k.e("s_and_b32 s49, s27, 7")
    k.e(f"s_add_u32 s{S_RB}, s48, s49")
    k.e("s_lshr_b32 s48, s26, 2")
    k.e("s_lshl_b32 s48, s48, 2")
    k.e("s_lshr_b32 s49, s27, 3")
    k.e(f"s_add_u32 s{S_G}, s48, s49")
    k.e("s_waitcnt lgkmcnt(0)")
    if stamps: k.e("s_mov_b32 s72, s70")
    srd(k, SRD_WS, P_WS, 256 << 20)
    k.e(f"s_cmp_ge_u32 s{S_WAVE}, 4")
    k.e("s_cbranch_scc1 L_loader")

    k.c("consumer setup: i'=w&1 (s26) c=w>>1 (s27)")
    k.e(f"s_and_b32 s26, s{S_WAVE}, 1")
    k.e(f"s_lshr_b32 s27, s{S_WAVE}, 1")
    nn = k.u("nononce")
    srd(k, SRD_T, P_DBG, 256)
    k.e(f"s_cmp_eq_u32 s{S_WAVE}, 0")
    k.e(f"s_cbranch_scc0 {nn}")
    k.e("v_mov_b32 v2, 0")
    nl = k.u("nolead")
    k.e("s_cmp_eq_u32 s2, 0")
    k.e(f"s_cbranch_scc0 {nl}")
    k.e("s_memrealtime s[58:59]")
    k.e("s_waitcnt lgkmcnt(0)")
    k.e("s_or_b32 s58, s58, 1")
    k.e("v_mov_b32 v3, s58")
    k.e(f"buffer_store_dword v3, v2, {sr(SRD_T,4)}, 0 offen sc1")
    k.lab(nl)
    k.lab(nn)
    if OPT['pfB']: prefetch(k, P_BW, P_BX, PFD, False)
    k.e("v_and_b32 v1, 31, v0")
    k.e("v_lshrrev_b32 v2, 5, v0")
    k.e("v_bfe_u32 v3, v0, 1, 3")
    k.e("v_xor_b32 v3, v3, v2")
    k.e("v_lshlrev_b32 v3, 4, v3")
    k.e("s_lshl_b32 s48, s26, 5")
    k.e("v_add_u32 v1, s48, v1")
    k.e("v_lshlrev_b32 v1, 7, v1")
    k.e(f"v_add_u32 v{VXA}, v1, v3")
    for j in range(1, 4): k.e(f"v_xor_b32 v{VXA+j}, {j<<5}, v{VXA}")
    k.e("v_bfe_u32 v1, v0, 2, 2")
    k.e("v_and_b32 v2, 3, v0")
    k.e("v_bfe_u32 v3, v0, 4, 1")
    k.e("v_lshrrev_b32 v4, 5, v0")
    k.e("v_lshlrev_b32 v4, 3, v4")
    k.e("v_add_u32 v4, v4, v1")
    k.e("v_lshlrev_b32 v4, 7, v4")
    k.e("v_lshlrev_b32 v3, 1, v3")
    k.e("v_lshrrev_b32 v5, 1, v2")
    k.e("v_add_u32 v3, v3, v5")
    k.e("s_lshl_b32 s48, s27, 2")
    k.e("v_add_u32 v3, s48, v3")
    k.e("v_and_b32 v5, 2, v1")
    k.e("v_lshlrev_b32 v5, 1, v5")
    k.e("v_xor_b32 v3, v3, v5")
    k.e("v_lshlrev_b32 v3, 4, v3")
    k.e("v_and_b32 v2, 1, v2")
    k.e("v_lshlrev_b32 v2, 3, v2")
    k.e("v_add3_u32 v4, v4, v3, v2")
    k.e(f"v_add_u32 v{VWA}, 8192, v4")
    for i in range(96): k.e(f"v_mov_b32 v{ACC_B+i}, 0")
    nn2 = k.u("nononce2")
    k.e(f"s_cmp_eq_u32 s{S_WAVE}, 0")
    k.e(f"s_cbranch_scc0 {nn2}")
    lp = k.u("np"); ex = k.u("npx")
    k.e("v_mov_b32 v2, 0")
    k.e("s_mov_b32 s60, 0")
    k.lab(lp)
    k.e(f"buffer_load_dword v3, v2, {sr(SRD_T,4)}, 0 offen sc1")
    spin_guard(k, 60, ex)
    k.e("s_waitcnt vmcnt(0)")
    k.e("v_readfirstlane_b32 s58, v3")
    k.e("s_nop 0")
    k.e("s_cmp_eq_u32 s58, 0")
    k.e(f"s_cbranch_scc0 {ex}")
    k.e("s_sleep 1")
    k.e(f"s_branch {lp}")
    k.lab(ex)
    k.e("s_waitcnt vmcnt(0)")
    k.e(f"v_mov_b32 v2, {NONCE_L}")
    k.e("ds_write_b32 v2, v3")
    k.e("s_waitcnt lgkmcnt(0)")
    k.lab(nn2)
    k.e("s_barrier")
    k.e(f"v_mov_b32 v2, {NONCE_L}")
    k.e("ds_read_b32 v3, v2")
    k.e("s_waitcnt lgkmcnt(0)")
    k.e(f"v_readfirstlane_b32 s{S_NONCE}, v3")
    k.stamp(1)
    if OPT['pfA']: prefetch(k, P_AW, P_AX, PFD+4, True)
    k.e("s_mov_b32 s49, 0")
    k.e(f"s_mov_b32 s69, {SLOT}")
    frag_reads(k, 0, 0)
    frag_reads(k, 1, 1)
    consumer_loop(k, 'B', ACC_B)
    k.stamp(2)
    k.c("B epilogue")
    k.e(f"s_mov_b32 s61, {lit(CS)}")
    k.e("s_nop 9")
    for i in range(16): k.e(f"v_mul_f32 v{ACC_B+i}, s61, v{ACC_B+i}")
    cvt8(k, KF, ACC_B+16); cvt8(k, KF+4, ACC_B+24)
    cvt8(k, VF, ACC_B+32); cvt8(k, VF+4, ACC_B+40)
    cvt8(k, QF, ACC_B); cvt8(k, QF+4, ACC_B+8)
    k.e(f"s_lshl_b32 s62, s{S_G}, 2")
    k.e("s_lshl_b32 s63, s27, 1")
    k.e("s_add_u32 s62, s62, s63")
    k.e("s_lshl_b32 s62, s62, 6")
    k.e(f"s_lshl_b32 s63, s{S_RB}, 1")
    k.e("s_add_u32 s63, s63, s26")
    k.e("s_add_u32 s62, s62, s63")
    k.e("s_lshl_b32 s62, s62, 10")
    k.e("v_lshlrev_b32 v1, 4, v0")
    k.e(f"s_add_u32 s63, s62, {KB_G + 65536}")
    if KB_G: k.e(f"s_add_u32 s64, s62, {KB_G}")
    else: k.e("s_mov_b32 s64, s62")
    k.e(f"buffer_store_dwordx4 {vr(KF,4)}, v1, {sr(SRD_WS,4)}, s64 offen sc1")
    k.e(f"buffer_store_dwordx4 {vr(KF+4,4)}, v1, {sr(SRD_WS,4)}, s63 offen sc1")
    k.e("v_bfe_u32 v2, v0, 4, 1")
    k.e("v_lshlrev_b32 v2, 16, v2")
    k.e("v_lshrrev_b32 v3, 5, v0")
    k.e("v_lshlrev_b32 v3, 8, v3")
    k.e("v_and_b32 v4, 15, v0")
    k.e("v_lshlrev_b32 v4, 4, v4")
    k.e("v_add3_u32 v2, v2, v3, v4")
    k.e(f"s_add_u32 s64, s62, {VB_G}")
    k.e(f"buffer_store_dwordx4 {vr(VF,4)}, v2, {sr(SRD_WS,4)}, s64 offen sc1")
    k.e(f"buffer_store_dwordx4 {vr(VF+4,4)}, v2, {sr(SRD_WS,4)}, s64 offen offset:512 sc1")
    k.stamp(3)
    if stamps: k.e("s_memtime s[90:91]"); k.e("s_waitcnt lgkmcnt(0)")
    consumer_loop(k, 'A', ACC_A)
    k.e("s_waitcnt lgkmcnt(0)")
    if stamps:
        k.e("s_memtime s[92:93]"); k.e("s_waitcnt lgkmcnt(0)"); k.e("s_sub_u32 s86, s92, s90")
    k.e("s_barrier")
    k.stamp(4)
    k.c("A epilogue")
    T = 104
    k.e(f"s_mov_b32 s61, {lit(LOG2E)}")
    k.e(f"s_mov_b32 s62, {lit(1e-6)}")
    k.e("s_nop 6")
    AQ, AK, AV = ACC_A, ACC_A+16, ACC_A+32
    k.e("s_mul_i32 s63, s27, 20480")
    k.e("s_lshl_b32 s64, s26, 10")
    k.e("s_add_u32 s63, s63, s64")
    k.e(f"s_add_u32 s63, s63, {K_L + 8192}")
    k.e("v_lshlrev_b32 v1, 4, v0")
    k.e("v_add_u32 v2, s63, v1")
    k.e(f"ds_write_b128 v2, {vr(KF,4)}")
    k.e(f"ds_write_b128 v2, {vr(KF+4,4)} offset:10240")
    k.e("v_bfe_u32 v3, v0, 4, 1")
    k.e("v_mul_u32_u24 v3, 10240, v3")
    k.e("v_lshrrev_b32 v4, 5, v0")
    k.e("v_lshlrev_b32 v4, 8, v4")
    k.e("v_and_b32 v5, 15, v0")
    k.e("v_lshlrev_b32 v5, 4, v5")
    k.e("v_add3_u32 v3, v3, v4, v5")
    k.e(f"s_add_u32 s64, s63, {V_L - K_L}")
    k.e("v_add_u32 v3, s64, v3")
    k.e(f"ds_write_b128 v3, {vr(VF,4)}")
    k.e(f"ds_write_b128 v3, {vr(VF+4,4)} offset:512")
    k.e("s_lshl_b32 s63, s27, 12")
    k.e("s_lshl_b32 s64, s26, 10")
    k.e("s_add_u32 s63, s63, s64")
    k.e(f"s_add_u32 s63, s63, {Q_L}")
    k.e("v_add_u32 v2, s63, v1")
    k.e(f"ds_write_b128 v2, {vr(QF,4)}")
    k.e(f"ds_write_b128 v2, {vr(QF+4,4)} offset:2048")
    phi(k, AK, 16, T)
    PK, VV = 112, 120
    cvt8(k, PK, AK); cvt8(k, PK+4, AK+8)
    cvt8(k, VV, AV); cvt8(k, VV+4, AV+8)
    ONES = 128
    for j in range(4): k.e(f"v_mov_b32 v{ONES+j}, 0x3f803f80")
    DKV, DZ = AK, AV
    k.e("s_nop 1")
    k.e(f"v_mfma_f32_32x32x16_bf16 {vr(DKV,16)}, {vr(PK,4)}, {vr(VV,4)}, 0")
    k.e(f"v_mfma_f32_32x32x16_bf16 {vr(DZ,16)}, {vr(ONES,4)}, {vr(PK,4)}, 0")
    k.e(f"v_mfma_f32_32x32x16_bf16 {vr(DKV,16)}, {vr(PK+4,4)}, {vr(VV+4,4)}, {vr(DKV,16)}")
    k.e(f"v_mfma_f32_32x32x16_bf16 {vr(DZ,16)}, {vr(ONES,4)}, {vr(PK+4,4)}, {vr(DZ,16)}")
    phi(k, AQ, 16, T)
    cvt8(k, PQ, AQ); cvt8(k, PQ+4, AQ+8)
    k.e("s_mov_b32 s64, 0xffff0000")
    k.e("s_mov_b32 s65, 0xffff0000")
    RS = 144
    k.e("s_waitcnt lgkmcnt(0)")
    for t in range(8): k.e(f"v_cndmask_b32 v{RS+t}, v{DKV+t}, v{DKV+8+t}, s[64:65]")
    k.e(f"v_mov_b32 v{RS+8}, v{DZ}")
    sk = k.u("noscr")
    k.e("s_lshl_b32 s63, s27, 12")
    k.e(f"s_add_u32 s63, s63, {SCR_L}")
    k.e("v_add_u32 v2, s63, v1")
    k.e("s_cmp_eq_u32 s26, 1")
    k.e(f"s_cbranch_scc0 {sk}")
    k.e(f"ds_write_b128 v2, {vr(RS,4)}")
    k.e(f"ds_write_b128 v2, {vr(RS+4,4)} offset:1024")
    k.e("v_lshlrev_b32 v3, 2, v0")
    k.e("v_add_u32 v3, s63, v3")
    k.e(f"ds_write_b32 v3, v{RS+8} offset:2048")
    k.lab(sk)
    k.e("s_waitcnt lgkmcnt(0)")
    k.stamp(5)
    k.e("s_barrier")
    sk = k.u("noatom")
    k.e("s_cmp_eq_u32 s26, 0")
    k.e(f"s_cbranch_scc0 {sk}")
    k.e(f"ds_read_b128 {vr(T,4)}, v2")
    k.e(f"ds_read_b128 {vr(T+4,4)}, v2 offset:1024")
    k.e("v_lshlrev_b32 v3, 2, v0")
    k.e("v_add_u32 v4, s63, v3")
    k.e(f"ds_read_b32 v{T+8}, v4 offset:2048")
    k.e("s_waitcnt lgkmcnt(0)")
    for t in range(9): k.e(f"v_add_f32 v{RS+t}, v{RS+t}, v{T+t}")
    k.e(f"s_lshl_b32 s63, s{S_G}, 1")
    k.e("s_add_u32 s63, s63, s27")
    k.e("s_lshl_b32 s63, s63, 12")
    k.e(f"s_add_u32 s63, s63, {KVACC}")
    for t in range(8): k.e(f"buffer_atomic_add_f32 v{RS+t}, v3, {sr(SRD_WS,4)}, s63 offen offset:{t*256}")
    k.e("s_mov_b32 exec_hi, 0")
    k.e(f"buffer_atomic_add_f32 v{RS+8}, v3, {sr(SRD_WS,4)}, s63 offen offset:2048")
    k.e("s_mov_b64 exec, -1")
    k.lab(sk)
    k.e("s_branch L_attn")

    k.lab("L_loader")
    k.e(f"s_sub_u32 s26, s{S_WAVE}, 4")
    sk = k.u("nopf")
    k.e("s_cmp_eq_u32 s26, 3")
    k.e(f"s_cbranch_scc0 {sk}")
    k.e("s_getpc_b64 s[58:59]")
    k.lab("L_pc")
    k.e("s_and_b32 s58, s58, 0xffffff00")
    k.e("v_lshlrev_b32 v8, 7, v0")
    k.e(f"s_sub_u32 s58, s58, PF_BACK")
    k.e("s_subb_u32 s59, s59, 0")
    k.e("global_load_dword v9, v8, s[58:59]")
    k.e("v_add_u32 v8, 8192, v8")
    k.e("global_load_dword v10, v8, s[58:59]")
    k.lab(sk)
    srd(k, SRD_X, P_BX, 2 << 20)
    srd(k, SRD_W, P_BW, 512*3072)
    k.e("v_lshrrev_b32 v4, 3, v0")
    k.e("v_and_b32 v5, 7, v0")
    k.e("v_lshrrev_b32 v6, 1, v4")
    k.e("v_xor_b32 v7, v5, v6")
    k.e("v_lshlrev_b32 v7, 4, v7")
    k.e(f"s_lshl_b32 s48, s{S_RB}, 6")
    k.e("s_lshl_b32 s49, s26, 4")
    k.e("s_add_u32 s48, s48, s49")
    k.e("v_add_u32 v1, s48, v4")
    k.e("v_lshlrev_b32 v1, 10, v1")
    k.e("v_add_u32 v2, 7168, v1")
    k.e("v_add_u32 v1, v1, v7")
    k.e("v_xor_b32 v7, 64, v7")
    k.e("v_add_u32 v2, v2, v7")
    k.e("s_lshl_b32 s49, s26, 4")
    k.e("v_add_u32 v3, s49, v4")
    k.e("v_mul_u32_u24 v3, 3072, v3")
    k.e("v_and_b32 v6, 2, v4")
    k.e("v_lshlrev_b32 v6, 1, v6")
    k.e("v_xor_b32 v6, v5, v6")
    k.e("v_lshlrev_b32 v6, 4, v6")
    k.e(f"s_lshl_b32 s49, s{S_G}, 7")
    k.e("v_add3_u32 v3, v3, v6, s49")
    sk = k.u("nozero")
    k.e(f"s_cmp_eq_u32 s{S_RB}, 0")
    k.e(f"s_cbranch_scc0 {sk}")
    k.e("s_cmp_lt_u32 s26, 2")
    k.e(f"s_cbranch_scc0 {sk}")
    k.e(f"s_lshl_b32 s48, s{S_G}, 1")
    k.e("s_add_u32 s48, s48, s26")
    k.e("s_lshl_b32 s48, s48, 12")
    k.e(f"s_add_u32 s48, s48, {KVACC}")
    for j in range(4): k.e(f"v_mov_b32 v{12+j}, 0")
    k.e("v_lshlrev_b32 v8, 4, v0")
    for j in range(3): k.e(f"buffer_store_dwordx4 v[12:15], v8, {sr(SRD_WS,4)}, s48 offen offset:{j*1024} sc1")
    k.lab(sk)
    k.e("s_lshl_b32 s51, s26, 11")
    k.e("s_mov_b32 s57, 0")
    if OPT['rot'] == 8:
        k.e(f"s_and_b32 s59, s{S_G}, 3")
        k.e("s_lshl_b32 s59, s59, 1")
        k.e(f"s_add_u32 s59, s59, s{S_RB}")
        k.e("s_and_b32 s59, s59, 7")
    elif OPT['rot'] == 2:
        k.e(f"s_add_u32 s59, s{S_G}, s{S_RB}")
        k.e("s_and_b32 s59, s59, 1")
        k.e("s_lshl_b32 s59, s59, 2")
    else:
        k.e("s_mov_b32 s59, 0")
    lp = k.u("ldpro")
    k.lab(lp)
    issue_stage(k)
    k.e("s_cmp_lt_u32 s57, 2")
    k.e(f"s_cbranch_scc1 {lp}")
    k.e("s_waitcnt vmcnt(8)")
    k.e("s_barrier")
    issue_stage(k)
    k.e(f"v_mov_b32 v8, {NONCE_L}")
    k.e("ds_read_b32 v9, v8")
    k.e("s_waitcnt lgkmcnt(0)")
    k.e(f"v_readfirstlane_b32 s{S_NONCE}, v9")
    k.stamp(1)
    k.e("s_mov_b32 s48, 0")
    lp = k.u("ldloop")
    ls = stamps and OPT['ldstamps']
    if stamps:
        k.e("s_mov_b32 s86, 0"); k.e("s_mov_b32 s87, 0"); k.e("s_mov_b32 s88, 0")
    k.lab(lp)
    if ls:
        k.e("s_memtime s[90:91]"); k.e("s_waitcnt lgkmcnt(0)")
    k.e("s_waitcnt vmcnt(8)")
    if ls:
        k.e("s_memtime s[92:93]"); k.e("s_waitcnt lgkmcnt(0)")
    k.e("s_barrier")
    if ls:
        k.e("s_memtime s[94:95]"); k.e("s_waitcnt lgkmcnt(0)")
        k.e("s_sub_u32 s96, s92, s90"); k.e("s_add_u32 s86, s86, s96")
        k.e("s_sub_u32 s96, s94, s92"); k.e("s_add_u32 s87, s87, s96")
    sk = k.u("nosig")
    k.e("s_cmp_eq_u32 s48, 10")
    k.e(f"s_cbranch_scc0 {sk}")
    k.e("s_cmp_eq_u32 s26, 0")
    k.e(f"s_cbranch_scc0 {sk}")
    k.e(f"s_lshl_b32 s49, s{S_G}, 8")
    k.e(f"s_lshl_b32 s50, s{S_RB}, 2")
    k.e("s_add_u32 s49, s49, s50")
    k.e(f"s_add_u32 s49, s49, {F1B}")
    k.e(f"v_mov_b32 v8, s{S_NONCE}")
    k.e("v_mov_b32 v9, 0")
    k.e("s_mov_b64 exec, 1")
    k.e(f"buffer_store_dword v8, v9, {sr(SRD_WS,4)}, s49 offen sc1")
    k.e("s_mov_b64 exec, -1")
    k.lab(sk)
    if not OPT['nodma']: issue_stage(k)
    if ls:
        k.e("s_memtime s[96:97]"); k.e("s_waitcnt lgkmcnt(0)")
        k.e("s_sub_u32 s96, s96, s94"); k.e("s_add_u32 s88, s88, s96")
    k.e("s_add_u32 s48, s48, 1")
    k.e("s_cmp_lt_u32 s48, 13")
    k.e(f"s_cbranch_scc1 {lp}")
    k.e("s_waitcnt vmcnt(8)");  k.e("s_barrier")
    k.e("s_waitcnt vmcnt(0)");  k.e("s_barrier")
    k.e("s_barrier")
    k.e("s_barrier")
    if stamps: k.e("s_mov_b32 s74, s88")
    k.stamp(4)
    k.e(f"s_sub_u32 s48, s{S_RB}, 4")
    k.e("v_add_u32 v8, s48, v0")
    k.e("v_max_i32 v8, 0, v8")
    k.e("v_cmp_gt_u32 vcc, 4, v0")
    k.e("s_nop 1")
    k.e("v_cndmask_b32 v8, 0, v8, vcc")
    k.e("v_lshlrev_b32 v8, 2, v8")
    k.e(f"s_lshl_b32 s49, s{S_G}, 8")
    k.e(f"s_add_u32 s49, s49, {F1B}")
    k.e("v_add_u32 v8, s49, v8")
    poll_flags(k, 8, 9, "f1b")
    k.stamp(5)
    sk = k.u("norem")
    k.e(f"s_cmp_eq_u32 s{S_RB}, 0")
    k.e(f"s_cbranch_scc1 {sk}")
    k.e("v_lshlrev_b32 v8, 4, v0")
    k.e(f"s_lshl_b32 s48, s{S_G}, 2")
    k.e("s_add_u32 s48, s48, s26")
    k.e("s_lshl_b32 s48, s48, 6")
    k.e(f"s_lshl_b32 s49, s{S_RB}, 1")
    k.e("s_sub_u32 s49, s49, 8")
    for j in range(8):
        k.e(f"s_add_i32 s50, s49, {j}")
        k.e("s_max_i32 s50, s50, 0")
        k.e("s_add_u32 s50, s50, s48")
        k.e("s_lshl_b32 s50, s50, 10")
        k.e(f"s_add_u32 s51, s50, {VB_G}")
        if KB_G: k.e(f"s_add_u32 s50, s50, {KB_G}")
        k.e(f"buffer_load_dwordx4 {vr(16+4*j,4)}, v8, {sr(SRD_WS,4)}, s50 offen sc1")
        k.e(f"buffer_load_dwordx4 {vr(48+4*j,4)}, v8, {sr(SRD_WS,4)}, s51 offen sc1")
    k.e("s_mul_i32 s48, s26, 10240")
    k.e("v_add_u32 v9, s48, v8")
    for j in range(8):
        k.e(f"s_waitcnt vmcnt({14-2*j})")
        k.e(f"ds_write_b128 v9, {vr(16+4*j,4)} offset:{K_L + j*1024}")
        k.e(f"ds_write_b128 v9, {vr(48+4*j,4)} offset:{V_L + j*1024}")
    k.lab(sk)
    k.e("s_waitcnt lgkmcnt(0)")
    k.stamp(6)
    k.e("s_barrier")
    k.e("s_and_b32 s48, s2, 7")
    k.e("s_lshr_b32 s49, s2, 3")
    k.e("s_lshr_b32 s66, s48, 2")
    k.e("s_lshr_b32 s68, s49, 2")
    k.e("s_cmp_eq_u32 s66, 0")
    k.e(f"s_cselect_b32 s{SRD_WO}, s{P_AWO}, s{P_BWO}")
    k.e(f"s_cselect_b32 s{SRD_WO+1}, s{P_AWO+1}, s{P_BWO+1}")
    k.e(f"s_mov_b32 s{SRD_WO+2}, 0x{512*1024:x}")
    k.e(f"s_mov_b32 s{SRD_WO+3}, 0x20000")
    k.e("v_lshrrev_b32 v4, 3, v0")
    k.e("v_and_b32 v5, 7, v0")
    k.e("v_and_b32 v6, 2, v4")
    k.e("v_lshlrev_b32 v6, 1, v6")
    k.e("v_xor_b32 v6, v5, v6")
    k.e("v_lshlrev_b32 v6, 4, v6")
    k.e("s_lshl_b32 s48, s26, 7")
    k.e("v_add_u32 v4, s48, v4")
    k.e("v_lshlrev_b32 v4, 10, v4")
    k.e("s_lshl_b32 s48, s68, 7")
    k.e("v_add3_u32 v4, v4, v6, s48")
    k.e("s_lshl_b32 s48, s26, 14")
    k.e(f"s_add_u32 s48, s48, {WO_L}")
    k.e("s_mov_b32 s49, 0")
    for jj in range(8):
        k.e("s_mov_b32 m0, s48")
        k.e("s_add_u32 s50, s49, 7168")
        k.e(f"buffer_load_dwordx4 v4, {sr(SRD_WO,4)}, s49 offen lds")
        k.e(f"buffer_load_dwordx4 v4, {sr(SRD_WO,4)}, s50 offen offset:1024 lds")
        k.e("s_add_u32 s48, s48, 2048")
        k.e("s_add_u32 s49, s49, 16384")

    k.lab("L_attn")
    k.stamp(7)
    attention(k)
    k.stamp(9)
    apart(k)
    k.stamp(10)
    k.e("s_waitcnt vmcnt(0) lgkmcnt(0)")
    k.e("s_barrier")
    k.stamp(11)
    sk = k.u("nof2")
    k.e(f"s_cmp_eq_u32 s{S_WAVE}, 4")
    k.e(f"s_cbranch_scc0 {sk}")
    k.e(f"s_lshr_b32 s48, s{S_RB}, 1")
    k.e("s_lshl_b32 s48, s48, 8")
    k.e(f"s_and_b32 s49, s{S_RB}, 1")
    k.e("s_lshl_b32 s49, s49, 3")
    k.e(f"s_add_u32 s49, s49, s{S_G}")
    k.e("s_lshl_b32 s49, s49, 2")
    k.e("s_add_u32 s48, s48, s49")
    k.e(f"s_add_u32 s48, s48, {F2}")
    k.e(f"v_mov_b32 v8, s{S_NONCE}")
    k.e("v_mov_b32 v9, 0")
    k.e("s_mov_b64 exec, 1")
    k.e(f"buffer_store_dword v8, v9, {sr(SRD_WS,4)}, s48 offen sc1")
    k.e("s_mov_b64 exec, -1")
    k.lab(sk)
    k.e(f"s_cmp_ge_u32 s{S_WAVE}, 4")
    k.e("s_cbranch_scc1 L_fin")
    p3(k)
    k.lab("L_fin")
    if stamps:
        k.stamp(13)
        k.e(f"s_lshl_b32 s48, s2, 3")
        k.e(f"s_add_u32 s48, s48, s{S_WAVE}")
        k.e("s_lshl_b32 s48, s48, 6")
        k.e(f"s_add_u32 s48, s48, {STAMP}")
        k.e("v_mov_b32 v9, 0")
        for j in range(16):
            k.e(f"v_mov_b32 v8, s{72+j}")
            k.e(f"buffer_store_dword v8, v9, {sr(SRD_WS,4)}, s48 offen offset:{4*j}")
            k.e("s_nop 0")
    k.lab("L_end")
    k.e("s_endpgm")
    return k

AQ_, AKF, AS, AMD, AMF, ACN, AP, AVB, AO = 4, 8, [44, 60, 76], 92, 108, 124, 140, [148, 156], 176
AM, AT, AKA, AVA = 192, 193, 196, 197
VMASK = 0x0000FFFF0000FFFF

def v_reads(k, buf, vaddr, off):
    k.e("s_mov_b64 exec, s[64:65]")
    k.e(f"ds_read_b128 {vr(AVB[buf],4)}, v{vaddr} offset:{off}")
    k.e(f"ds_read_b128 {vr(AVB[buf]+4,4)}, v{vaddr} offset:{off+512}")
    k.e("s_mov_b64 exec, -1")

def attention(k):
    k.c("attention: i = w&1 (s26), hh = w>>1 (s27)")
    k.e(f"s_and_b32 s26, s{S_WAVE}, 1")
    k.e(f"s_lshr_b32 s27, s{S_WAVE}, 1")
    k.e(f"s_lshl_b32 s48, s{S_RB}, 1")
    k.e("s_add_u32 s48, s48, s26")
    k.e("v_lshlrev_b32 v1, 4, v0")
    k.e("s_lshl_b32 s49, s27, 11")
    k.e("s_lshl_b32 s50, s26, 10")
    k.e("s_add_u32 s49, s49, s50")
    k.e(f"s_add_u32 s49, s49, {Q_L}")
    k.e("v_add_u32 v2, s49, v1")
    k.e(f"ds_read_b128 {vr(AQ_,4)}, v2")
    k.e("s_mul_i32 s49, s27, 10240")
    k.e("s_add_u32 s49, s49, s50")
    k.e(f"v_add_u32 v{AKA}, s49, v1")
    k.e("v_lshrrev_b32 v2, 5, v0")
    k.e("v_lshlrev_b32 v2, 8, v2")
    k.e("v_and_b32 v3, 15, v0")
    k.e("v_lshlrev_b32 v3, 4, v3")
    k.e(f"s_add_u32 s49, s49, {V_L}")
    k.e(f"v_add3_u32 v{AVA}, v2, v3, s49")
    k.e("s_mov_b32 s64, 0xffff")
    k.e("s_mov_b32 s65, 0xffff")
    k.e("v_and_b32 v2, 31, v0")
    k.e("v_lshrrev_b32 v3, 5, v0")
    k.e("v_lshlrev_b32 v3, 2, v3")
    k.e("v_sub_u32 v2, v2, v3")
    k.e("v_cvt_f32_i32 v2, v2")
    k.e(f"v_mov_b32 v3, {lit(BIG)}")
    short = k.u("short"); done = k.u("attdone")
    k.e("s_cmp_lt_u32 s48, 8")
    k.e(f"s_cbranch_scc1 {short}")
    for p in range(9): k.e(f"ds_read_b128 {vr(AKF+4*p,4)}, v{AKA} offset:{K_L + p*1024}")
    for i in range(16):
        ci = 8*(i >> 2) + (i & 3)
        k.e(f"v_fmaak_f32 v{AMD+i}, v2, v3, {lit((0.5-ci)*BIG)}")
    for i in range(16): k.e(f"v_min_f32 v{AMF+i}, -v{AMD+i}, 0")
    for i in range(16): k.e(f"v_min_f32 v{AMD+i}, 0, v{AMD+i}")
    for b in range(2):
        for j in range(8): k.e(f"v_mov_b32 v{AVB[b]+j}, 0x3f803f80")
    k.e(f"v_mov_b32 v{AM}, 0xff7fffff")
    k.e("s_waitcnt lgkmcnt(0)")
    Q = vr(AQ_, 4)
    def qk(dst, p, c): k.e(f"v_mfma_f32_32x32x16_bf16 {vr(dst,16)}, {vr(AKF+4*p,4)}, {Q}, {c}")
    qk(AS[0], 0, vr(AMF,16)); qk(AS[1], 1, "0"); qk(AS[2], 2, "0")
    v_reads(k, 0, AVA, 0)
    k.e("s_nop 5")
    for p in range(9):
        s = AS[p % 3]
        for j in range(8): k.e(f"v_max3_f32 v{AM}, v{s+2*j}, v{s+2*j+1}, v{AM}")
        if p + 3 <= 8: qk(s, p + 3, vr(AMD,16) if p + 3 == 8 else "0")
    k.e(f"v_mov_b32 v{AT}, v{AM}")
    k.e("s_nop 1")
    k.e(f"v_permlane32_swap_b32 v{AM}, v{AT}")
    k.e(f"v_max_f32 v{AM}, v{AM}, v{AT}")
    k.e(f"v_sub_f32 v{AM}, 0, v{AM}")
    for i in range(16): k.e(f"v_add_f32 v{AMF+i}, v{AMF+i}, v{AM}")
    for i in range(16): k.e(f"v_mov_b32 v{ACN+i}, v{AM}")
    k.e("s_nop 0")
    qk(AS[0], 0, vr(AMF,16))
    for i in range(16): k.e(f"v_add_f32 v{AMD+i}, v{AMD+i}, v{AM}")
    for p in range(9):
        cur = AS[p % 2]; nxt = AS[(p + 1) % 2]
        if p < 8:
            qk(nxt, p + 1, vr(AMD,16) if p + 1 == 8 else vr(ACN,16))
            v_reads(k, (p + 1) % 2, AVA, (p + 1) * 1024)
        for j in range(16): k.e(f"v_exp_f32 v{cur+j}, v{cur+j}")
        for j in range(8): k.e(f"v_cvt_pk_bf16_f32 v{AP+j}, v{cur+2*j}, v{cur+2*j+1}")
        k.e(f"s_waitcnt lgkmcnt({2 if p < 8 else 0})")
        vb = AVB[p % 2]
        k.e(f"v_mfma_f32_32x32x16_bf16 {vr(AO,16)}, {vr(vb,4)}, {vr(AP,4)}, {'0' if p == 0 else vr(AO,16)}")
        k.e("s_nop 0")
        k.e(f"v_mfma_f32_32x32x16_bf16 {vr(AO,16)}, {vr(vb+4,4)}, {vr(AP+4,4)}, {vr(AO,16)}")
    k.e(f"s_branch {done}")
    k.lab(short)
    for i in range(16):
        ci = 8*(i >> 2) + (i & 3)
        k.e(f"v_fmaak_f32 v{AMD+i}, v2, v3, {lit((0.5-ci)*BIG)}")
    for i in range(16): k.e(f"v_min_f32 v{AMD+i}, 0, v{AMD+i}")
    for j in range(8): k.e(f"v_mov_b32 v{AVB[0]+j}, 0x3f803f80")
    for i in range(16): k.e(f"v_mov_b32 v{AO+i}, 0")
    k.e(f"v_mov_b32 v{AM}, 0xff7fffff")
    k.e("s_sub_u32 s49, 8, s48")
    k.e("s_lshl_b32 s50, s49, 10")
    k.e(f"v_add_u32 v{AKA}, s50, v{AKA}")
    k.e(f"v_add_u32 v{AVA}, s50, v{AVA}")
    k.e(f"v_mov_b32 v{AT+1}, v{AKA}")
    S = AS[0]; KT = AKF
    l1 = k.u("s1"); l1e = k.u("s1e")
    k.e("s_mov_b32 s51, s49")
    k.lab(l1)
    k.e("s_cmp_lt_u32 s51, 8")
    k.e(f"s_cbranch_scc0 {l1e}")
    k.e(f"ds_read_b128 {vr(KT,4)}, v{AKA}")
    k.e("s_waitcnt lgkmcnt(0)")
    k.e(f"v_mfma_f32_32x32x16_bf16 {vr(S,16)}, {vr(KT,4)}, {Q}, 0")
    k.e(f"v_add_u32 v{AKA}, 1024, v{AKA}")
    k.e("s_add_u32 s51, s51, 1")
    k.e("s_nop 10")
    for j in range(8): k.e(f"v_max3_f32 v{AM}, v{S+2*j}, v{S+2*j+1}, v{AM}")
    k.e(f"s_branch {l1}")
    k.lab(l1e)
    k.e(f"ds_read_b128 {vr(KT,4)}, v{AKA}")
    k.e("s_waitcnt lgkmcnt(0)")
    k.e(f"v_mfma_f32_32x32x16_bf16 {vr(S,16)}, {vr(KT,4)}, {Q}, {vr(AMD,16)}")
    k.e("s_nop 11")
    for j in range(8): k.e(f"v_max3_f32 v{AM}, v{S+2*j}, v{S+2*j+1}, v{AM}")
    k.e(f"v_mov_b32 v{AT}, v{AM}")
    k.e("s_nop 1")
    k.e(f"v_permlane32_swap_b32 v{AM}, v{AT}")
    k.e(f"v_max_f32 v{AM}, v{AM}, v{AT}")
    k.e(f"v_sub_f32 v{AM}, 0, v{AM}")
    for i in range(16): k.e(f"v_add_f32 v{AMD+i}, v{AMD+i}, v{AM}")
    for i in range(16): k.e(f"v_mov_b32 v{ACN+i}, v{AM}")
    k.e(f"v_mov_b32 v{AKA}, v{AT+1}")
    l2 = k.u("s2"); l2e = k.u("s2e")
    def tile2(cregs):
        k.e(f"ds_read_b128 {vr(KT,4)}, v{AKA}")
        v_reads(k, 0, AVA, 0)
        k.e("s_waitcnt lgkmcnt(0)")
        k.e(f"v_mfma_f32_32x32x16_bf16 {vr(S,16)}, {vr(KT,4)}, {Q}, {cregs}")
        k.e(f"v_add_u32 v{AKA}, 1024, v{AKA}")
        k.e(f"v_add_u32 v{AVA}, 1024, v{AVA}")
        k.e("s_add_u32 s51, s51, 1")
        k.e("s_nop 9")
        for j in range(16): k.e(f"v_exp_f32 v{S+j}, v{S+j}")
        for j in range(8): k.e(f"v_cvt_pk_bf16_f32 v{AP+j}, v{S+2*j}, v{S+2*j+1}")
        k.e("s_nop 1")
        k.e(f"v_mfma_f32_32x32x16_bf16 {vr(AO,16)}, {vr(AVB[0],4)}, {vr(AP,4)}, {vr(AO,16)}")
        k.e(f"v_mfma_f32_32x32x16_bf16 {vr(AO,16)}, {vr(AVB[0]+4,4)}, {vr(AP+4,4)}, {vr(AO,16)}")
    k.e("s_mov_b32 s51, s49")
    k.lab(l2)
    k.e("s_cmp_lt_u32 s51, 8")
    k.e(f"s_cbranch_scc0 {l2e}")
    tile2(vr(ACN,16))
    k.e(f"s_branch {l2}")
    k.lab(l2e)
    tile2(vr(AMD,16))
    k.lab(done)
    k.e("s_nop 11")
    k.e(f"v_rcp_f32 v{AT}, v{AO+8}")
    k.e("s_nop 0")
    for j in range(8): k.e(f"v_mul_f32 v{AO+j}, v{AO+j}, v{AT}")
    cvt8(k, AP, AO)
    k.e(f"s_lshl_b32 s49, s{S_G}, 2")
    k.e("s_add_u32 s49, s49, s27")
    k.e("s_lshl_b32 s50, s48, 5")
    k.e("s_add_u32 s49, s49, s50")
    k.e("s_lshl_b32 s49, s49, 10")
    k.e(f"s_add_u32 s49, s49, {O_G + (2<<20)}")
    k.e(f"buffer_store_dwordx4 {vr(AP,4)}, v1, {sr(SRD_WS,4)}, s49 offen sc1")

def apart(k):
    sk = k.u("noapart")
    k.e(f"s_cmp_ge_u32 s{S_WAVE}, 4")
    k.e(f"s_cbranch_scc1 {sk}")
    sk2 = k.u("nosigA")
    k.e("s_cmp_eq_u32 s26, 0")
    k.e(f"s_cbranch_scc0 {sk2}")
    k.e("s_waitcnt vmcnt(0)")
    k.e(f"s_lshl_b32 s48, s{S_G}, 8")
    k.e(f"s_lshl_b32 s49, s{S_RB}, 1")
    k.e("s_add_u32 s49, s49, s27")
    k.e("s_lshl_b32 s49, s49, 2")
    k.e("s_add_u32 s48, s48, s49")
    k.e(f"s_add_u32 s48, s48, {F1A}")
    k.e(f"v_mov_b32 v8, s{S_NONCE}")
    k.e("v_mov_b32 v9, 0")
    k.e("s_mov_b64 exec, 1")
    k.e(f"buffer_store_dword v8, v9, {sr(SRD_WS,4)}, s48 offen sc1")
    k.e("s_mov_b64 exec, -1")
    k.lab(sk2)
    k.e(f"s_lshl_b32 s48, s{S_G}, 8")
    k.e(f"s_add_u32 s48, s48, {F1A}")
    k.e("v_lshlrev_b32 v8, 2, v0")
    k.e("v_add_u32 v8, s48, v8")
    poll_flags(k, 8, 9, "f1a")
    k.e(f"s_lshl_b32 s48, s{S_G}, 1")
    k.e("s_add_u32 s48, s48, s27")
    k.e("s_lshl_b32 s48, s48, 12")
    k.e(f"s_add_u32 s48, s48, {KVACC}")
    k.e("v_lshrrev_b32 v2, 5, v0")
    k.e("v_and_b32 v3, 15, v0")
    k.e("v_lshlrev_b32 v4, 5, v2")
    k.e("v_add_u32 v4, v4, v3")
    k.e("v_lshlrev_b32 v4, 2, v4")
    k.e("v_lshlrev_b32 v5, 4, v2")
    k.e("s_mov_b32 s64, 0xffff")
    k.e("s_mov_b32 s65, 0xffff")
    KVR = [8, 16]
    for hb in range(2):
        k.e("s_mov_b64 exec, s[64:65]")
        for t in range(8):
            k.e(f"buffer_load_dword v{KVR[hb]+t}, v4, {sr(SRD_WS,4)}, s48 offen offset:{t*256 + hb*64} sc1")
        k.e("s_not_b64 exec, s[64:65]")
        k.e(f"buffer_load_dwordx4 {vr(KVR[hb],4)}, v5, {sr(SRD_WS,4)}, s48 offen offset:{2048 + hb*64} sc1")
        k.e(f"buffer_load_dwordx4 {vr(KVR[hb]+4,4)}, v5, {sr(SRD_WS,4)}, s48 offen offset:{2048 + hb*64 + 32} sc1")
    k.e("s_mov_b64 exec, -1")
    k.e("s_waitcnt vmcnt(0)")
    AOP = [24, 28]; D = [32, 48]
    for hb in range(2): cvt8(k, AOP[hb], KVR[hb])
    k.e("s_nop 1")
    for hb in range(2):
        k.e(f"v_mfma_f32_32x32x16_bf16 {vr(D[hb],16)}, {vr(AOP[hb],4)}, {vr(PQ+4*hb,4)}, 0")
    k.e(f"s_mov_b32 s62, {lit(1e-6)}")
    k.e("s_nop 10")
    for hb in range(2):
        k.e(f"v_add_f32 v{64+hb}, s62, v{D[hb]+8}")
    for hb in range(2):
        k.e(f"v_rcp_f32 v{64+hb}, v{64+hb}")
    k.e("s_nop 0")
    for hb in range(2):
        for j in range(8): k.e(f"v_mul_f32 v{D[hb]+j}, v{D[hb]+j}, v{64+hb}")
        cvt8(k, 68+4*hb, D[hb])
    k.e(f"s_lshl_b32 s48, s{S_RB}, 1")
    k.e("s_add_u32 s48, s48, s26")
    k.e("s_lshl_b32 s48, s48, 5")
    k.e(f"s_lshl_b32 s49, s{S_G}, 2")
    k.e("s_add_u32 s48, s48, s49")
    k.e("s_lshl_b32 s49, s27, 1")
    k.e("s_add_u32 s48, s48, s49")
    k.e("s_lshl_b32 s48, s48, 10")
    k.e(f"s_add_u32 s48, s48, {O_G}")
    k.e("v_lshlrev_b32 v1, 4, v0")
    k.e(f"buffer_store_dwordx4 {vr(68,4)}, v1, {sr(SRD_WS,4)}, s48 offen sc1")
    k.e(f"buffer_store_dwordx4 {vr(72,4)}, v1, {sr(SRD_WS,4)}, s48 offen offset:1024 sc1")
    k.lab(sk)

def p3(k):
    k.c("P3: out tile 128x64")
    k.e("s_and_b32 s48, s2, 7")
    k.e("s_lshr_b32 s49, s2, 3")
    k.e("s_lshr_b32 s66, s48, 2")
    k.e("s_and_b32 s67, s48, 3")
    k.e("s_lshl_b32 s67, s67, 2")
    k.e("s_and_b32 s50, s49, 3")
    k.e("s_add_u32 s67, s67, s50")
    k.e("s_lshr_b32 s68, s49, 2")
    k.e("s_lshl_b32 s48, s67, 8")
    k.e(f"s_add_u32 s48, s48, {F2}")
    k.e("v_and_b32 v8, 15, v0")
    k.e("v_lshlrev_b32 v8, 2, v8")
    k.e("v_add_u32 v8, s48, v8")
    poll_flags(k, 8, 9, "f2")
    k.stamp(12)
    OF, ACC, WF = 8, 136, [168, 176]
    VA0, VA1 = 184, 185
    k.e("s_lshl_b32 s48, s67, 2")
    k.e(f"s_add_u32 s48, s48, s{S_WAVE}")
    k.e("s_lshl_b32 s49, s48, 15")
    k.e("s_lshl_b32 s50, s66, 21")
    k.e("s_add_u32 s49, s49, s50")
    k.e(f"s_add_u32 s49, s49, {O_G}")
    k.e("v_lshlrev_b32 v1, 4, v0")
    for hd in range(32):
        k.e(f"buffer_load_dwordx4 {vr(OF+4*hd,4)}, v1, {sr(SRD_WS,4)}, s49 offen offset:{(hd%4)*1024} sc1")
        if hd % 4 == 3 and hd < 31: k.e("s_add_u32 s49, s49, 4096")
    k.e("v_bfe_u32 v2, v0, 2, 2")
    k.e("v_and_b32 v3, 3, v0")
    k.e("v_bfe_u32 v4, v0, 4, 1")
    k.e("v_lshrrev_b32 v5, 5, v0")
    k.e("v_lshlrev_b32 v5, 2, v5")
    k.e("v_add_u32 v5, v5, v2")
    k.e("v_lshlrev_b32 v5, 7, v5")
    k.e("v_and_b32 v6, 1, v3")
    k.e("v_lshlrev_b32 v6, 1, v6")
    k.e("v_add_u32 v6, v6, v4")
    k.e("v_and_b32 v7, 2, v2")
    k.e("v_lshlrev_b32 v7, 1, v7")
    k.e("v_xor_b32 v6, v6, v7")
    k.e("v_lshlrev_b32 v6, 4, v6")
    k.e("v_lshrrev_b32 v3, 1, v3")
    k.e("v_lshlrev_b32 v3, 3, v3")
    k.e("v_add3_u32 v5, v5, v6, v3")
    k.e(f"v_add_u32 v{VA0}, {WO_L}, v5")
    k.e(f"v_xor_b32 v{VA1}, 64, v{VA0}")
    def wreads(buf, hd):
        for b in range(2):
            for s2 in range(2):
                k.e(f"ds_read_b64_tr_b16 {vr(WF[buf]+4*b+2*s2,2)}, v{VA0+b} offset:{hd*2048 + s2*1024}")
    wreads(0, 0)
    for hd in range(32):
        if hd < 31: wreads((hd + 1) % 2, hd + 1)
        k.e(f"s_waitcnt vmcnt({31-hd}) lgkmcnt({4 if hd < 31 else 0})")
        for b in range(2):
            k.e(f"v_mfma_f32_32x32x16_bf16 {vr(ACC+16*b,16)}, {vr(WF[hd%2]+4*b,4)}, {vr(OF+4*hd,4)}, {'0' if hd == 0 else vr(ACC+16*b,16)}")
    srd(k, SRD_T, P_OUT, 4 << 20)
    k.e("v_and_b32 v2, 31, v0")
    k.e("s_lshl_b32 s49, s48, 5")
    k.e("v_add_u32 v2, s49, v2")
    k.e("v_lshlrev_b32 v2, 11, v2")
    k.e("v_lshrrev_b32 v3, 5, v0")
    k.e("v_lshlrev_b32 v3, 5, v3")
    k.e("s_lshl_b32 s49, s66, 10")
    k.e("s_lshl_b32 s50, s68, 7")
    k.e("s_add_u32 s49, s49, s50")
    k.e("v_add3_u32 v2, v2, v3, s49")
    k.e("s_nop 3")
    for b in range(2):
        for j in range(8): k.e(f"v_cvt_pk_bf16_f32 v{8+8*b+j}, v{ACC+16*b+2*j}, v{ACC+16*b+2*j+1}")
    for b in range(2):
        k.e(f"buffer_store_dwordx4 {vr(8+8*b,4)}, v2, {sr(SRD_T,4)}, 0 offen offset:{64*b}")
        k.e(f"buffer_store_dwordx4 {vr(12+8*b,4)}, v2, {sr(SRD_T,4)}, 0 offen offset:{64*b+16}")

HDR = """; Kernarg layout for this problem (72 bytes, ptrs only, base s[0:1]):
;   offset   0: d_in[0] A_x  shape=(1, 2048, 512) dtype=bfloat16
;   offset   8: d_in[1] A_wqkv  shape=(512, 1536) dtype=bfloat16
;   offset  16: d_in[2] A_wo  shape=(512, 512) dtype=bfloat16
;   offset  24: d_in[3] B_x  shape=(1, 2048, 512) dtype=bfloat16
;   offset  32: d_in[4] B_wqkv  shape=(512, 1536) dtype=bfloat16
;   offset  40: d_in[5] B_wo  shape=(512, 512) dtype=bfloat16
;   offset  48: d_out     shape=(1, 2048, 1024) dtype=bfloat16
;   offset  56: d_debug   256 bytes
;   offset  64: d_ws      268435456 bytes workspace
; @launch grid=(256,1,1) block=(512,1,1) lds=163840
.amdgcn_target "amdgcn-amd-amdhsa--gfx950"
.text
.globl KNAME
.p2align 8
.type KNAME,@function
""".replace("KNAME", KNAME)

TAIL = """.section .rodata,"a"
.p2align 6
.amdhsa_kernel KNAME
  .amdhsa_next_free_vgpr 256
  .amdhsa_next_free_sgpr 102
  .amdhsa_accum_offset 256
  .amdhsa_group_segment_fixed_size 0
  .amdhsa_kernarg_size 72
  .amdhsa_user_sgpr_count 2
  .amdhsa_user_sgpr_kernarg_segment_ptr 1
  .amdhsa_system_sgpr_workgroup_id_x 1
.end_amdhsa_kernel
""".replace("KNAME", KNAME)

def build(stamps=False):
    k = gen(stamps)
    body = "\n".join(k.L)
    body = body.replace("PF_BACK", f"((L_pc - {KNAME}) & 0xffffff00)")
    pad = "\n    .fill 4096, 4, 0xbf800000\n"
    return HDR + body + pad + "\n" + TAIL

if __name__ == "__main__":
    out = sys.argv[1] if len(sys.argv) > 1 else "out.s"
    stamps = "stamps" in sys.argv[2:]
    for a in sys.argv[2:]:
        if "=" in a:
            kk, vv = a.split("="); OPT[kk] = int(vv)
    txt = build(stamps)
    open(out, "w").write(txt)
    import hz
    pr = hz.check(txt)
    print("hazards:", len(pr), "lines:", txt.count("\n"))
```

```python
import sys, math, struct

KNAME = "concat_heads__linear_attn_block__sliding_block__prompt_kernel"

KB_G   = 0
VB_G   = 2 << 20
O_G    = 4 << 20
KVACC  = 8 << 20
FL     = (8 << 20) + (64 << 10)
F1B    = FL
F1A    = FL + 4096
F2     = FL + 8192
STAMP  = 9 << 20
SLOT   = 32768
NONCE_L = 131072
K_L, V_L, Q_L, SCR_L, WO_L = 0, 40960, 81920, 90112, 98304
CS = 0.25 * math.log2(math.e)
LOG2E = math.log2(math.e)
BIG = 1.0e28
SPIN_MAX = 100000
OPT = dict(rot=0, pfB=1, pfA=1, ldstamps=0, nodma=0, noreads=0, nomfma=0, dbgstamps=0)

def f2u(x): return struct.unpack('<I', struct.pack('<f', x))[0]
def lit(x): return "0x%08x" % f2u(x)

class K:
    def __init__(self, stamps=False, stop=None):
        self.L = []; self.stamps = stamps; self.stop = stop; self.nst = 0; self.uid = 0
    def e(self, s): self.L.append("    " + s)
    def c(self, s): self.L.append("    ; " + s)
    def lab(self, s): self.L.append(s + ":")
    def u(self, p):
        self.uid += 1; return f"L_{p}_{self.uid}"
    def stamp(self, k):
        if not self.stamps: return
        self.e("s_memrealtime s[70:71]")
        self.e("s_waitcnt lgkmcnt(0)")
        self.e(f"s_mov_b32 s{72+k}, s70")

def vr(a, n): return f"v[{a}:{a+n-1}]"
def sr(a, n): return f"s[{a}:{a+n-1}]"

S_WAVE, S_RB, S_G, S_NONCE = 22, 23, 24, 25
SRD_WS, SRD_X, SRD_W, SRD_T, SRD_WO = 28, 32, 36, 40, 44
P_AX, P_AW, P_AWO, P_BX, P_BW, P_BWO, P_OUT, P_DBG, P_WS = 4, 6, 8, 10, 12, 14, 16, 18, 20

def srd(k, dst, ptr, size):
    k.e(f"s_mov_b32 s{dst}, s{ptr}")
    k.e(f"s_mov_b32 s{dst+1}, s{ptr+1}")
    k.e(f"s_mov_b32 s{dst+2}, 0x{size:x}")
    k.e(f"s_mov_b32 s{dst+3}, 0x20000")

def spin_guard(k, sreg, exit_label):
    k.e(f"s_add_u32 s{sreg}, s{sreg}, 1")
    k.e(f"s_cmp_gt_u32 s{sreg}, {SPIN_MAX}")
    k.e(f"s_cbranch_scc1 {exit_label}")

def poll_flags(k, vaddr, vtmp, name, sleep=1):
    lp = k.u(name + "_poll"); ex = k.u(name + "_done")
    k.e("s_mov_b32 s60, 0")
    k.lab(lp)
    k.e(f"buffer_load_dword v{vtmp}, v{vaddr}, {sr(SRD_WS,4)}, 0 offen sc1")
    spin_guard(k, 60, ex)
    k.e("s_waitcnt vmcnt(0)")
    k.e(f"v_cmp_ne_u32 vcc, s{S_NONCE}, v{vtmp}")
    k.e("s_nop 1")
    k.e(f"s_cbranch_vccz {ex}")
    if sleep: k.e(f"s_sleep {sleep}")
    k.e(f"s_branch {lp}")
    k.lab(ex)
    k.e("s_waitcnt vmcnt(0)")

ACC_B, ACC_A = 8, 56
BUF = [104, 120, 136, 152]
VXA, VWA = 168, 172
QF, KF, VF = 176, 184, 192
PQ = 200
PFD = 208

def rd_x(k, buf, j):
    if OPT['noreads']: return
    k.e(f"ds_read_b128 {vr(BUF[buf],4)}, v{VXA+j}")
def rd_w(k, buf, j, p):
    if OPT['noreads']: return
    b = BUF[buf]
    for s2 in range(2):
        k.e(f"ds_read_b64_tr_b16 {vr(b+4+4*p+2*s2,2)}, v{VWA} offset:{p*8192 + j*2048 + s2*512}")
def frag_reads(k, buf, j):
    rd_x(k, buf, j)
    for p in range(3): rd_w(k, buf, j, p)

def mfma1(k, buf, acc, branch, p):
    if OPT['nomfma']: return
    b = BUF[buf]; X = vr(b,4); W = vr(b+4+4*p,4); D = vr(acc+16*p,16)
    if p == 0 or (p == 1 and branch == 'B'): k.e(f"v_mfma_f32_32x32x16_bf16 {D}, {W}, {X}, {D}")
    else: k.e(f"v_mfma_f32_32x32x16_bf16 {D}, {X}, {W}, {D}")

def kstep(k, j, acc, branch):
    nb = (j + 2) & 3
    k.e("s_waitcnt lgkmcnt(7)")
    mfma1(k, j, acc, branch, 0)
    rd_x(k, nb, nb); rd_w(k, nb, nb, 0)
    mfma1(k, j, acc, branch, 1)
    rd_w(k, nb, nb, 1)
    mfma1(k, j, acc, branch, 2)
    rd_w(k, nb, nb, 2)

def consumer_loop(k, branch, acc):
    lp = k.u("cons"+branch)
    k.e("s_mov_b32 s48, 0")
    k.lab(lp)
    kstep(k, 0, acc, branch)
    k.e("s_add_u32 s49, s49, 1")
    k.e("s_and_b32 s50, s49, 3")
    k.e("s_cmp_eq_u32 s50, 0")
    k.e(f"s_cselect_b32 s50, 0x{(-3*SLOT) & 0xffffffff:x}, s69")
    kstep(k, 1, acc, branch)
    if branch == 'A':
        sk = k.u("novm")
        k.e("s_cmp_eq_u32 s48, 2")
        k.e(f"s_cbranch_scc0 {sk}")
        k.e("s_waitcnt vmcnt(0)")
        k.lab(sk)
    for j in range(4): k.e(f"v_add_u32 v{VXA+j}, s50, v{VXA+j}")
    k.e(f"v_add_u32 v{VWA}, s50, v{VWA}")
    k.e("s_barrier")
    kstep(k, 2, acc, branch)
    kstep(k, 3, acc, branch)
    k.e("s_add_u32 s48, s48, 1")
    k.e("s_cmp_lt_u32 s48, 8")
    k.e(f"s_cbranch_scc1 {lp}")

def issue_stage(k):
    k.e("s_lshl_b32 s52, s59, 7")
    k.e("s_mul_i32 s53, s59, 196608")
    k.e("s_mov_b32 m0, s51")
    k.e("s_add_u32 s54, s53, 23552")
    k.e(f"buffer_load_dwordx4 v1, {sr(SRD_X,4)}, s52 offen lds")
    k.e(f"buffer_load_dwordx4 v2, {sr(SRD_X,4)}, s52 offen offset:1024 lds")
    for p in range(3):
        k.e(f"s_add_u32 s55, s51, {8192 + p*8192}")
        k.e("s_mov_b32 m0, s55")
        if p: k.e(f"s_add_u32 s56, s53, {p*1024}"); so0 = "s56"
        else: so0 = "s53"; k.e("s_nop 0")
        k.e(f"buffer_load_dwordx4 v3, {sr(SRD_W,4)}, {so0} offen lds")
        if p: k.e(f"s_add_u32 s56, s54, {p*1024}"); so1 = "s56"
        else: so1 = "s54"
        k.e(f"buffer_load_dwordx4 v3, {sr(SRD_W,4)}, {so1} offen offset:1024 lds")
    k.e("s_add_u32 s57, s57, 1")
    k.e("s_add_u32 s59, s59, 1")
    k.e("s_and_b32 s59, s59, 7")
    k.e(f"s_add_u32 s51, s51, {SLOT}")
    k.e("s_and_b32 s58, s57, 3")
    sk = k.u("nowrap")
    k.e("s_cmp_eq_u32 s58, 0")
    k.e(f"s_cbranch_scc0 {sk}")
    k.e(f"s_sub_u32 s51, s51, {4*SLOT}")
    k.lab(sk)
    sk2 = k.u("nosw")
    k.e("s_cmp_eq_u32 s57, 8")
    k.e(f"s_cbranch_scc0 {sk2}")
    srd(k, SRD_X, P_AX, 2 << 20)
    srd(k, SRD_W, P_AW, 512*3072)
    k.lab(sk2)

def prefetch(k, pw, px, PFV, with_wo):
    k.e("s_and_b32 s50, s2, 7")
    k.e("s_lshr_b32 s51, s2, 3")
    w1 = k.u("pf1"); w2 = k.u("pf2"); ex = k.u("pfx")
    k.e(f"s_cmp_eq_u32 s{S_WAVE}, 0")
    k.e(f"s_cbranch_scc0 {w1}")
    srd(k, SRD_X, pw, 512*3072)
    k.e("v_lshrrev_b32 v1, 2, v0")
    k.e("s_lshl_b32 s52, s51, 4")
    k.e("v_add_u32 v1, s52, v1")
    k.e("v_mul_u32_u24 v1, 3072, v1")
    k.e("v_and_b32 v2, 3, v0")
    k.e("s_lshr_b32 s52, s50, 2")
    k.e("s_lshl_b32 s52, s52, 2")
    k.e("v_add_u32 v2, s52, v2")
    k.e("v_lshlrev_b32 v2, 7, v2")
    k.e("v_add_u32 v1, v1, v2")
    for p in range(3): k.e(f"buffer_load_dword v{PFV+p}, v1, {sr(SRD_X,4)}, 0 offen offset:{p*1024}")
    k.e(f"s_branch {ex}")
    k.lab(w1)
    k.e(f"s_cmp_eq_u32 s{S_WAVE}, 1")
    k.e(f"s_cbranch_scc0 {w2}")
    srd(k, SRD_X, px, 2 << 20)
    k.e("s_and_b32 s52, s50, 3")
    k.e("s_lshl_b32 s52, s52, 9")
    k.e("s_lshl_b32 s53, s51, 4")
    k.e("s_add_u32 s52, s52, s53")
    k.e("s_lshl_b32 s52, s52, 10")
    k.e("v_lshlrev_b32 v1, 7, v0")
    k.e(f"buffer_load_dword v{PFV}, v1, {sr(SRD_X,4)}, s52 offen")
    k.e("s_add_u32 s52, s52, 8192")
    k.e(f"buffer_load_dword v{PFV+1}, v1, {sr(SRD_X,4)}, s52 offen")
    k.e(f"s_branch {ex}")
    k.lab(w2)
    if with_wo:
        k.e(f"s_cmp_eq_u32 s{S_WAVE}, 2")
        k.e(f"s_cbranch_scc0 {ex}")
        k.e("s_lshr_b32 s52, s50, 2")
        k.e("s_cmp_eq_u32 s52, 0")
        k.e(f"s_cselect_b32 s{SRD_X}, s{P_AWO}, s{P_BWO}")
        k.e(f"s_cselect_b32 s{SRD_X+1}, s{P_AWO+1}, s{P_BWO+1}")
        k.e(f"s_mov_b32 s{SRD_X+2}, 0x{512*1024:x}")
        k.e(f"s_mov_b32 s{SRD_X+3}, 0x20000")
        k.e("s_lshl_b32 s52, s51, 14")
        k.e("v_lshlrev_b32 v1, 7, v0")
        k.e(f"buffer_load_dword v{PFV}, v1, {sr(SRD_X,4)}, s52 offen")
        k.e("s_add_u32 s52, s52, 8192")
        k.e(f"buffer_load_dword v{PFV+1}, v1, {sr(SRD_X,4)}, s52 offen")
    k.lab(ex)

def phi(k, r, n, t):
    for i in range(0, n, 4):
        for j in range(4): k.e(f"v_mul_f32 v{t+j}, s61, v{r+i+j}")
        for j in range(4): k.e(f"v_exp_f32 v{t+j}, v{t+j} clamp")
        for j in range(4): k.e(f"v_max_f32 v{r+i+j}, 0, v{r+i+j}")
        for j in range(4): k.e(f"v_add_f32 v{r+i+j}, s62, v{r+i+j}")
        for j in range(4): k.e(f"v_add_f32 v{r+i+j}, v{t+j}, v{r+i+j}")

def cvt8(k, dst, src):
    for j in range(4): k.e(f"v_cvt_pk_bf16_f32 v{dst+j}, v{src+2*j}, v{src+2*j+1}")

def gen(stamps=False, stop=None):
    k = K(stamps, stop)
    k.lab(KNAME)
    k.e("s_cmp_ge_u32 s2, 256")
    k.e("s_cbranch_scc1 L_end")
    if stamps:
        k.e("s_memrealtime s[70:71]")
    k.e("s_load_dwordx16 s[4:19], s[0:1], 0")
    k.e("s_load_dwordx2 s[20:21], s[0:1], 64")
    k.e("v_lshrrev_b32 v1, 6, v0")
    k.e("v_and_b32 v0, 63, v0")
    k.e(f"v_readfirstlane_b32 s{S_WAVE}, v1")
    k.e("s_and_b32 s26, s2, 7")
    k.e("s_lshr_b32 s27, s2, 3")
    k.e("s_and_b32 s48, s26, 3")
    k.e("s_lshl_b32 s48, s48, 3")
    k.e("s_and_b32 s49, s27, 7")
    k.e(f"s_add_u32 s{S_RB}, s48, s49")
    k.e("s_lshr_b32 s48, s26, 2")
    k.e("s_lshl_b32 s48, s48, 2")
    k.e("s_lshr_b32 s49, s27, 3")
    k.e(f"s_add_u32 s{S_G}, s48, s49")
    k.e("s_waitcnt lgkmcnt(0)")
    if stamps: k.e("s_mov_b32 s72, s70")
    srd(k, SRD_WS, P_WS, 256 << 20)
    k.e(f"s_cmp_ge_u32 s{S_WAVE}, 4")
    k.e("s_cbranch_scc1 L_loader")

    k.c("consumer setup: i'=w&1 (s26) c=w>>1 (s27)")
    k.e(f"s_and_b32 s26, s{S_WAVE}, 1")
    k.e(f"s_lshr_b32 s27, s{S_WAVE}, 1")
    nn = k.u("nononce")
    srd(k, SRD_T, P_DBG, 256)
    k.e(f"s_cmp_eq_u32 s{S_WAVE}, 0")
    k.e(f"s_cbranch_scc0 {nn}")
    k.e("v_mov_b32 v2, 0")
    nl = k.u("nolead")
    k.e("s_cmp_eq_u32 s2, 0")
    k.e(f"s_cbranch_scc0 {nl}")
    k.e("s_memrealtime s[58:59]")
    k.e("s_waitcnt lgkmcnt(0)")
    k.e("s_or_b32 s58, s58, 1")
    k.e("v_mov_b32 v3, s58")
    k.e(f"buffer_store_dword v3, v2, {sr(SRD_T,4)}, 0 offen sc1")
    k.lab(nl)
    k.lab(nn)
    if OPT['pfB']: prefetch(k, P_BW, P_BX, PFD, False)
    k.e("v_and_b32 v1, 31, v0")
    k.e("v_lshrrev_b32 v2, 5, v0")
    k.e("v_bfe_u32 v3, v0, 1, 3")
    k.e("v_xor_b32 v3, v3, v2")
    k.e("v_lshlrev_b32 v3, 4, v3")
    k.e("s_lshl_b32 s48, s26, 5")
    k.e("v_add_u32 v1, s48, v1")
    k.e("v_lshlrev_b32 v1, 7, v1")
    k.e(f"v_add_u32 v{VXA}, v1, v3")
    for j in range(1, 4): k.e(f"v_xor_b32 v{VXA+j}, {j<<5}, v{VXA}")
    k.e("v_bfe_u32 v1, v0, 2, 2")
    k.e("v_and_b32 v2, 3, v0")
    k.e("v_bfe_u32 v3, v0, 4, 1")
    k.e("v_lshrrev_b32 v4, 5, v0")
    k.e("v_lshlrev_b32 v4, 3, v4")
    k.e("v_add_u32 v4, v4, v1")
    k.e("v_lshlrev_b32 v4, 7, v4")
    k.e("v_lshlrev_b32 v3, 1, v3")
    k.e("v_lshrrev_b32 v5, 1, v2")
    k.e("v_add_u32 v3, v3, v5")
    k.e("s_lshl_b32 s48, s27, 2")
    k.e("v_add_u32 v3, s48, v3")
    k.e("v_and_b32 v5, 2, v1")
    k.e("v_lshlrev_b32 v5, 1, v5")
    k.e("v_xor_b32 v3, v3, v5")
    k.e("v_lshlrev_b32 v3, 4, v3")
    k.e("v_and_b32 v2, 1, v2")
    k.e("v_lshlrev_b32 v2, 3, v2")
    k.e("v_add3_u32 v4, v4, v3, v2")
    k.e(f"v_add_u32 v{VWA}, 8192, v4")
    for i in range(96): k.e(f"v_mov_b32 v{ACC_B+i}, 0")
    nn2 = k.u("nononce2")
    k.e(f"s_cmp_eq_u32 s{S_WAVE}, 0")
    k.e(f"s_cbranch_scc0 {nn2}")
    lp = k.u("np"); ex = k.u("npx")
    k.e("v_mov_b32 v2, 0")
    k.e("s_mov_b32 s60, 0")
    k.lab(lp)
    k.e(f"buffer_load_dword v3, v2, {sr(SRD_T,4)}, 0 offen sc1")
    spin_guard(k, 60, ex)
    k.e("s_waitcnt vmcnt(0)")
    k.e("v_readfirstlane_b32 s58, v3")
    k.e("s_nop 0")
    k.e("s_cmp_eq_u32 s58, 0")
    k.e(f"s_cbranch_scc0 {ex}")
    k.e("s_sleep 1")
    k.e(f"s_branch {lp}")
    k.lab(ex)
    k.e("s_waitcnt vmcnt(0)")
    k.e(f"v_mov_b32 v2, {NONCE_L}")
    k.e("ds_write_b32 v2, v3")
    k.e("s_waitcnt lgkmcnt(0)")
    k.lab(nn2)
    k.e("s_barrier")
    k.e(f"v_mov_b32 v2, {NONCE_L}")
    k.e("ds_read_b32 v3, v2")
    k.e("s_waitcnt lgkmcnt(0)")
    k.e(f"v_readfirstlane_b32 s{S_NONCE}, v3")
    k.stamp(1)
    if OPT['pfA']: prefetch(k, P_AW, P_AX, PFD+4, True)
    k.e("s_mov_b32 s49, 0")
    k.e(f"s_mov_b32 s69, {SLOT}")
    frag_reads(k, 0, 0)
    frag_reads(k, 1, 1)
    consumer_loop(k, 'B', ACC_B)
    k.stamp(2)
    k.c("B epilogue")
    k.e(f"s_mov_b32 s61, {lit(CS)}")
    k.e("s_nop 9")
    for i in range(16): k.e(f"v_mul_f32 v{ACC_B+i}, s61, v{ACC_B+i}")
    cvt8(k, KF, ACC_B+16); cvt8(k, KF+4, ACC_B+24)
    cvt8(k, VF, ACC_B+32); cvt8(k, VF+4, ACC_B+40)
    cvt8(k, QF, ACC_B); cvt8(k, QF+4, ACC_B+8)
    k.e(f"s_lshl_b32 s62, s{S_G}, 2")
    k.e("s_lshl_b32 s63, s27, 1")
    k.e("s_add_u32 s62, s62, s63")
    k.e("s_lshl_b32 s62, s62, 6")
    k.e(f"s_lshl_b32 s63, s{S_RB}, 1")
    k.e("s_add_u32 s63, s63, s26")
    k.e("s_add_u32 s62, s62, s63")
    k.e("s_lshl_b32 s62, s62, 10")
    k.e("v_lshlrev_b32 v1, 4, v0")
    k.e(f"s_add_u32 s63, s62, {KB_G + 65536}")
    if KB_G: k.e(f"s_add_u32 s64, s62, {KB_G}")
    else: k.e("s_mov_b32 s64, s62")
    k.e(f"buffer_store_dwordx4 {vr(KF,4)}, v1, {sr(SRD_WS,4)}, s64 offen sc1")
    k.e(f"buffer_store_dwordx4 {vr(KF+4,4)}, v1, {sr(SRD_WS,4)}, s63 offen sc1")
    k.e("v_bfe_u32 v2, v0, 4, 1")
    k.e("v_lshlrev_b32 v2, 16, v2")
    k.e("v_lshrrev_b32 v3, 5, v0")
    k.e("v_lshlrev_b32 v3, 8, v3")
    k.e("v_and_b32 v4, 15, v0")
    k.e("v_lshlrev_b32 v4, 4, v4")
    k.e("v_add3_u32 v2, v2, v3, v4")
    k.e(f"s_add_u32 s64, s62, {VB_G}")
    k.e(f"buffer_store_dwordx4 {vr(VF,4)}, v2, {sr(SRD_WS,4)}, s64 offen sc1")
    k.e(f"buffer_store_dwordx4 {vr(VF+4,4)}, v2, {sr(SRD_WS,4)}, s64 offen offset:512 sc1")
    k.stamp(3)
    if stamps: k.e("s_memtime s[90:91]"); k.e("s_waitcnt lgkmcnt(0)")
    consumer_loop(k, 'A', ACC_A)
    k.e("s_waitcnt lgkmcnt(0)")
    if stamps:
        k.e("s_memtime s[92:93]"); k.e("s_waitcnt lgkmcnt(0)"); k.e("s_sub_u32 s86, s92, s90")
    k.e("s_barrier")
    k.stamp(4)
    k.c("A epilogue")
    T = 104
    k.e(f"s_mov_b32 s61, {lit(LOG2E)}")
    k.e(f"s_mov_b32 s62, {lit(1e-6)}")
    k.e("s_nop 6")
    AQ, AK, AV = ACC_A, ACC_A+16, ACC_A+32
    k.e("s_mul_i32 s63, s27, 20480")
    k.e("s_lshl_b32 s64, s26, 10")
    k.e("s_add_u32 s63, s63, s64")
    k.e(f"s_add_u32 s63, s63, {K_L + 8192}")
    k.e("v_lshlrev_b32 v1, 4, v0")
    k.e("v_add_u32 v2, s63, v1")
    k.e(f"ds_write_b128 v2, {vr(KF,4)}")
    k.e(f"ds_write_b128 v2, {vr(KF+4,4)} offset:10240")
    k.e("v_bfe_u32 v3, v0, 4, 1")
    k.e("v_mul_u32_u24 v3, 10240, v3")
    k.e("v_lshrrev_b32 v4, 5, v0")
    k.e("v_lshlrev_b32 v4, 8, v4")
    k.e("v_and_b32 v5, 15, v0")
    k.e("v_lshlrev_b32 v5, 4, v5")
    k.e("v_add3_u32 v3, v3, v4, v5")
    k.e(f"s_add_u32 s64, s63, {V_L - K_L}")
    k.e("v_add_u32 v3, s64, v3")
    k.e(f"ds_write_b128 v3, {vr(VF,4)}")
    k.e(f"ds_write_b128 v3, {vr(VF+4,4)} offset:512")
    k.e("s_lshl_b32 s63, s27, 12")
    k.e("s_lshl_b32 s64, s26, 10")
    k.e("s_add_u32 s63, s63, s64")
    k.e(f"s_add_u32 s63, s63, {Q_L}")
    k.e("v_add_u32 v2, s63, v1")
    k.e(f"ds_write_b128 v2, {vr(QF,4)}")
    k.e(f"ds_write_b128 v2, {vr(QF+4,4)} offset:2048")
    phi(k, AK, 16, T)
    PK, VV = 112, 120
    cvt8(k, PK, AK); cvt8(k, PK+4, AK+8)
    cvt8(k, VV, AV); cvt8(k, VV+4, AV+8)
    ONES = 128
    for j in range(4): k.e(f"v_mov_b32 v{ONES+j}, 0x3f803f80")
    DKV, DZ = AK, AV
    k.e("s_nop 1")
    k.e(f"v_mfma_f32_32x32x16_bf16 {vr(DKV,16)}, {vr(PK,4)}, {vr(VV,4)}, 0")
    k.e(f"v_mfma_f32_32x32x16_bf16 {vr(DZ,16)}, {vr(ONES,4)}, {vr(PK,4)}, 0")
    k.e(f"v_mfma_f32_32x32x16_bf16 {vr(DKV,16)}, {vr(PK+4,4)}, {vr(VV+4,4)}, {vr(DKV,16)}")
    k.e(f"v_mfma_f32_32x32x16_bf16 {vr(DZ,16)}, {vr(ONES,4)}, {vr(PK+4,4)}, {vr(DZ,16)}")
    phi(k, AQ, 16, T)
    cvt8(k, PQ, AQ); cvt8(k, PQ+4, AQ+8)
    k.e("s_mov_b32 s64, 0xffff0000")
    k.e("s_mov_b32 s65, 0xffff0000")
    RS = 144
    k.e("s_waitcnt lgkmcnt(0)")
    for t in range(8): k.e(f"v_cndmask_b32 v{RS+t}, v{DKV+t}, v{DKV+8+t}, s[64:65]")
    k.e(f"v_mov_b32 v{RS+8}, v{DZ}")
    sk = k.u("noscr")
    k.e("s_lshl_b32 s63, s27, 12")
    k.e(f"s_add_u32 s63, s63, {SCR_L}")
    k.e("v_add_u32 v2, s63, v1")
    k.e("s_cmp_eq_u32 s26, 1")
    k.e(f"s_cbranch_scc0 {sk}")
    k.e(f"ds_write_b128 v2, {vr(RS,4)}")
    k.e(f"ds_write_b128 v2, {vr(RS+4,4)} offset:1024")
    k.e("v_lshlrev_b32 v3, 2, v0")
    k.e("v_add_u32 v3, s63, v3")
    k.e(f"ds_write_b32 v3, v{RS+8} offset:2048")
    k.lab(sk)
    k.e("s_waitcnt lgkmcnt(0)")
    k.stamp(5)
    k.e("s_barrier")
    sk = k.u("noatom")
    k.e("s_cmp_eq_u32 s26, 0")
    k.e(f"s_cbranch_scc0 {sk}")
    k.e(f"ds_read_b128 {vr(T,4)}, v2")
    k.e(f"ds_read_b128 {vr(T+4,4)}, v2 offset:1024")
    k.e("v_lshlrev_b32 v3, 2, v0")
    k.e("v_add_u32 v4, s63, v3")
    k.e(f"ds_read_b32 v{T+8}, v4 offset:2048")
    k.e("s_waitcnt lgkmcnt(0)")
    for t in range(9): k.e(f"v_add_f32 v{RS+t}, v{RS+t}, v{T+t}")
    k.e(f"s_lshl_b32 s63, s{S_G}, 1")
    k.e("s_add_u32 s63, s63, s27")
    k.e("s_lshl_b32 s63, s63, 12")
    k.e(f"s_add_u32 s63, s63, {KVACC}")
    for t in range(8): k.e(f"buffer_atomic_add_f32 v{RS+t}, v3, {sr(SRD_WS,4)}, s63 offen offset:{t*256}")
    k.e("s_mov_b32 exec_hi, 0")
    k.e(f"buffer_atomic_add_f32 v{RS+8}, v3, {sr(SRD_WS,4)}, s63 offen offset:2048")
    k.e("s_mov_b64 exec, -1")
    k.lab(sk)
    k.e("s_branch L_attn")

    k.lab("L_loader")
    k.e(f"s_sub_u32 s26, s{S_WAVE}, 4")
    sk = k.u("nopf")
    k.e("s_cmp_eq_u32 s26, 3")
    k.e(f"s_cbranch_scc0 {sk}")
    k.e("s_getpc_b64 s[58:59]")
    k.lab("L_pc")
    k.e("s_and_b32 s58, s58, 0xffffff00")
    k.e("v_lshlrev_b32 v8, 7, v0")
    k.e(f"s_sub_u32 s58, s58, PF_BACK")
    k.e("s_subb_u32 s59, s59, 0")
    k.e("global_load_dword v9, v8, s[58:59]")
    k.e("v_add_u32 v8, 8192, v8")
    k.e("global_load_dword v10, v8, s[58:59]")
    k.lab(sk)
    srd(k, SRD_X, P_BX, 2 << 20)
    srd(k, SRD_W, P_BW, 512*3072)
    k.e("v_lshrrev_b32 v4, 3, v0")
    k.e("v_and_b32 v5, 7, v0")
    k.e("v_lshrrev_b32 v6, 1, v4")
    k.e("v_xor_b32 v7, v5, v6")
    k.e("v_lshlrev_b32 v7, 4, v7")
    k.e(f"s_lshl_b32 s48, s{S_RB}, 6")
    k.e("s_lshl_b32 s49, s26, 4")
    k.e("s_add_u32 s48, s48, s49")
    k.e("v_add_u32 v1, s48, v4")
    k.e("v_lshlrev_b32 v1, 10, v1")
    k.e("v_add_u32 v2, 7168, v1")
    k.e("v_add_u32 v1, v1, v7")
    k.e("v_xor_b32 v7, 64, v7")
    k.e("v_add_u32 v2, v2, v7")
    k.e("s_lshl_b32 s49, s26, 4")
    k.e("v_add_u32 v3, s49, v4")
    k.e("v_mul_u32_u24 v3, 3072, v3")
    k.e("v_and_b32 v6, 2, v4")
    k.e("v_lshlrev_b32 v6, 1, v6")
    k.e("v_xor_b32 v6, v5, v6")
    k.e("v_lshlrev_b32 v6, 4, v6")
    k.e(f"s_lshl_b32 s49, s{S_G}, 7")
    k.e("v_add3_u32 v3, v3, v6, s49")
    sk = k.u("nozero")
    k.e(f"s_cmp_eq_u32 s{S_RB}, 0")
    k.e(f"s_cbranch_scc0 {sk}")
    k.e("s_cmp_lt_u32 s26, 2")
    k.e(f"s_cbranch_scc0 {sk}")
    k.e(f"s_lshl_b32 s48, s{S_G}, 1")
    k.e("s_add_u32 s48, s48, s26")
    k.e("s_lshl_b32 s48, s48, 12")
    k.e(f"s_add_u32 s48, s48, {KVACC}")
    for j in range(4): k.e(f"v_mov_b32 v{12+j}, 0")
    k.e("v_lshlrev_b32 v8, 4, v0")
    for j in range(3): k.e(f"buffer_store_dwordx4 v[12:15], v8, {sr(SRD_WS,4)}, s48 offen offset:{j*1024} sc1")
    k.lab(sk)
    k.e("s_lshl_b32 s51, s26, 11")
    k.e("s_mov_b32 s57, 0")
    if OPT['rot'] == 8:
        k.e(f"s_and_b32 s59, s{S_G}, 3")
        k.e("s_lshl_b32 s59, s59, 1")
        k.e(f"s_add_u32 s59, s59, s{S_RB}")
        k.e("s_and_b32 s59, s59, 7")
    elif OPT['rot'] == 2:
        k.e(f"s_add_u32 s59, s{S_G}, s{S_RB}")
        k.e("s_and_b32 s59, s59, 1")
        k.e("s_lshl_b32 s59, s59, 2")
    else:
        k.e("s_mov_b32 s59, 0")
    lp = k.u("ldpro")
    k.lab(lp)
    issue_stage(k)
    k.e("s_cmp_lt_u32 s57, 2")
    k.e(f"s_cbranch_scc1 {lp}")
    k.e("s_waitcnt vmcnt(8)")
    k.e("s_barrier")
    issue_stage(k)
    k.e(f"v_mov_b32 v8, {NONCE_L}")
    k.e("ds_read_b32 v9, v8")
    k.e("s_waitcnt lgkmcnt(0)")
    k.e(f"v_readfirstlane_b32 s{S_NONCE}, v9")
    k.stamp(1)
    k.e("s_mov_b32 s48, 0")
    lp = k.u("ldloop")
    ls = stamps and OPT['ldstamps']
    if stamps:
        k.e("s_mov_b32 s86, 0"); k.e("s_mov_b32 s87, 0"); k.e("s_mov_b32 s88, 0")
    k.lab(lp)
    if ls:
        k.e("s_memtime s[90:91]"); k.e("s_waitcnt lgkmcnt(0)")
    k.e("s_waitcnt vmcnt(8)")
    if ls:
        k.e("s_memtime s[92:93]"); k.e("s_waitcnt lgkmcnt(0)")
    k.e("s_barrier")
    if ls:
        k.e("s_memtime s[94:95]"); k.e("s_waitcnt lgkmcnt(0)")
        k.e("s_sub_u32 s96, s92, s90"); k.e("s_add_u32 s86, s86, s96")
        k.e("s_sub_u32 s96, s94, s92"); k.e("s_add_u32 s87, s87, s96")
    sk = k.u("nosig")
    k.e("s_cmp_eq_u32 s48, 10")
    k.e(f"s_cbranch_scc0 {sk}")
    k.e("s_cmp_eq_u32 s26, 0")
    k.e(f"s_cbranch_scc0 {sk}")
    k.e(f"s_lshl_b32 s49, s{S_G}, 8")
    k.e(f"s_lshl_b32 s50, s{S_RB}, 2")
    k.e("s_add_u32 s49, s49, s50")
    k.e(f"s_add_u32 s49, s49, {F1B}")
    k.e(f"v_mov_b32 v8, s{S_NONCE}")
    k.e("v_mov_b32 v9, 0")
    k.e("s_mov_b64 exec, 1")
    k.e(f"buffer_store_dword v8, v9, {sr(SRD_WS,4)}, s49 offen sc1")
    k.e("s_mov_b64 exec, -1")
    k.lab(sk)
    if not OPT['nodma']: issue_stage(k)
    if ls:
        k.e("s_memtime s[96:97]"); k.e("s_waitcnt lgkmcnt(0)")
        k.e("s_sub_u32 s96, s96, s94"); k.e("s_add_u32 s88, s88, s96")
    k.e("s_add_u32 s48, s48, 1")
    k.e("s_cmp_lt_u32 s48, 13")
    k.e(f"s_cbranch_scc1 {lp}")
    k.e("s_waitcnt vmcnt(8)");  k.e("s_barrier")
    k.e("s_waitcnt vmcnt(0)");  k.e("s_barrier")
    k.e("s_barrier")
    k.e("s_barrier")
    if stamps: k.e("s_mov_b32 s74, s88")
    k.stamp(4)
    k.e(f"s_sub_u32 s48, s{S_RB}, 4")
    k.e("v_add_u32 v8, s48, v0")
    k.e("v_max_i32 v8, 0, v8")
    k.e("v_cmp_gt_u32 vcc, 4, v0")
    k.e("s_nop 1")
    k.e("v_cndmask_b32 v8, 0, v8, vcc")
    k.e("v_lshlrev_b32 v8, 2, v8")
    k.e(f"s_lshl_b32 s49, s{S_G}, 8")
    k.e(f"s_add_u32 s49, s49, {F1B}")
    k.e("v_add_u32 v8, s49, v8")
    poll_flags(k, 8, 9, "f1b")
    k.stamp(5)
    sk = k.u("norem")
    k.e(f"s_cmp_eq_u32 s{S_RB}, 0")
    k.e(f"s_cbranch_scc1 {sk}")
    k.e("v_lshlrev_b32 v8, 4, v0")
    k.e(f"s_lshl_b32 s48, s{S_G}, 2")
    k.e("s_add_u32 s48, s48, s26")
    k.e("s_lshl_b32 s48, s48, 6")
    k.e(f"s_lshl_b32 s49, s{S_RB}, 1")
    k.e("s_sub_u32 s49, s49, 8")
    for j in range(8):
        k.e(f"s_add_i32 s50, s49, {j}")
        k.e("s_max_i32 s50, s50, 0")
        k.e("s_add_u32 s50, s50, s48")
        k.e("s_lshl_b32 s50, s50, 10")
        k.e(f"s_add_u32 s51, s50, {VB_G}")
        if KB_G: k.e(f"s_add_u32 s50, s50, {KB_G}")
        k.e(f"buffer_load_dwordx4 {vr(16+4*j,4)}, v8, {sr(SRD_WS,4)}, s50 offen sc1")
        k.e(f"buffer_load_dwordx4 {vr(48+4*j,4)}, v8, {sr(SRD_WS,4)}, s51 offen sc1")
    k.e("s_mul_i32 s48, s26, 10240")
    k.e("v_add_u32 v9, s48, v8")
    for j in range(8):
        k.e(f"s_waitcnt vmcnt({14-2*j})")
        k.e(f"ds_write_b128 v9, {vr(16+4*j,4)} offset:{K_L + j*1024}")
        k.e(f"ds_write_b128 v9, {vr(48+4*j,4)} offset:{V_L + j*1024}")
    k.lab(sk)
    k.e("s_waitcnt lgkmcnt(0)")
    k.stamp(6)
    k.e("s_barrier")
    k.e("s_and_b32 s48, s2, 7")
    k.e("s_lshr_b32 s49, s2, 3")
    k.e("s_lshr_b32 s66, s48, 2")
    k.e("s_lshr_b32 s68, s49, 2")
    k.e("s_cmp_eq_u32 s66, 0")
    k.e(f"s_cselect_b32 s{SRD_WO}, s{P_AWO}, s{P_BWO}")
    k.e(f"s_cselect_b32 s{SRD_WO+1}, s{P_AWO+1}, s{P_BWO+1}")
    k.e(f"s_mov_b32 s{SRD_WO+2}, 0x{512*1024:x}")
    k.e(f"s_mov_b32 s{SRD_WO+3}, 0x20000")
    k.e("v_lshrrev_b32 v4, 3, v0")
    k.e("v_and_b32 v5, 7, v0")
    k.e("v_and_b32 v6, 2, v4")
    k.e("v_lshlrev_b32 v6, 1, v6")
    k.e("v_xor_b32 v6, v5, v6")
    k.e("v_lshlrev_b32 v6, 4, v6")
    k.e("s_lshl_b32 s48, s26, 7")
    k.e("v_add_u32 v4, s48, v4")
    k.e("v_lshlrev_b32 v4, 10, v4")
    k.e("s_lshl_b32 s48, s68, 7")
    k.e("v_add3_u32 v4, v4, v6, s48")
    k.e("s_lshl_b32 s48, s26, 14")
    k.e(f"s_add_u32 s48, s48, {WO_L}")
    k.e("s_mov_b32 s49, 0")
    for jj in range(8):
        k.e("s_mov_b32 m0, s48")
        k.e("s_add_u32 s50, s49, 7168")
        k.e(f"buffer_load_dwordx4 v4, {sr(SRD_WO,4)}, s49 offen lds")
        k.e(f"buffer_load_dwordx4 v4, {sr(SRD_WO,4)}, s50 offen offset:1024 lds")
        k.e("s_add_u32 s48, s48, 2048")
        k.e("s_add_u32 s49, s49, 16384")

    k.lab("L_attn")
    k.stamp(7)
    attention(k)
    k.stamp(9)
    apart(k)
    k.stamp(10)
    k.e("s_waitcnt vmcnt(0) lgkmcnt(0)")
    k.e("s_barrier")
    k.stamp(11)
    sk = k.u("nof2")
    k.e(f"s_cmp_eq_u32 s{S_WAVE}, 4")
    k.e(f"s_cbranch_scc0 {sk}")
    k.e(f"s_lshr_b32 s48, s{S_RB}, 1")
    k.e("s_lshl_b32 s48, s48, 8")
    k.e(f"s_and_b32 s49, s{S_RB}, 1")
    k.e("s_lshl_b32 s49, s49, 3")
    k.e(f"s_add_u32 s49, s49, s{S_G}")
    k.e("s_lshl_b32 s49, s49, 2")
    k.e("s_add_u32 s48, s48, s49")
    k.e(f"s_add_u32 s48, s48, {F2}")
    k.e(f"v_mov_b32 v8, s{S_NONCE}")
    k.e("v_mov_b32 v9, 0")
    k.e("s_mov_b64 exec, 1")
    k.e(f"buffer_store_dword v8, v9, {sr(SRD_WS,4)}, s48 offen sc1")
    k.e("s_mov_b64 exec, -1")
    k.lab(sk)
    k.e(f"s_cmp_ge_u32 s{S_WAVE}, 4")
    k.e("s_cbranch_scc1 L_fin")
    p3(k)
    k.lab("L_fin")
    if stamps:
        k.stamp(13)
        k.e(f"s_lshl_b32 s48, s2, 3")
        k.e(f"s_add_u32 s48, s48, s{S_WAVE}")
        k.e("s_lshl_b32 s48, s48, 6")
        k.e(f"s_add_u32 s48, s48, {STAMP}")
        k.e("v_mov_b32 v9, 0")
        for j in range(16):
            k.e(f"v_mov_b32 v8, s{72+j}")
            k.e(f"buffer_store_dword v8, v9, {sr(SRD_WS,4)}, s48 offen offset:{4*j}")
            k.e("s_nop 0")
    if stamps and OPT['dbgstamps']:
        sk = k.u("nodbg")
        srd(k, SRD_T, P_DBG, 256)
        k.e("s_cmp_eq_u32 s2, 37")
        k.e(f"s_cbranch_scc0 {sk}")
        k.e(f"s_cmp_eq_u32 s{S_WAVE}, 0")
        k.e(f"s_cbranch_scc0 {sk}")
        k.e("v_mov_b32 v9, 0")
        for j in range(1, 14):
            k.e(f"s_sub_u32 s48, s{72+j}, s72")
            k.e("v_mov_b32 v8, s48")
            k.e(f"buffer_store_dword v8, v9, {sr(SRD_T,4)}, 0 offen offset:{4*j}")
            k.e("s_nop 0")
        k.lab(sk)
    k.lab("L_end")
    k.e("s_endpgm")
    return k

AQ_, AKF, AS, AMD, AMF, ACN, AP, AVB, AO = 4, 8, [44, 60, 76], 92, 108, 124, 140, [148, 156], 176
AM, AT, AKA, AVA = 192, 193, 196, 197
VMASK = 0x0000FFFF0000FFFF

def v_reads(k, buf, vaddr, off):
    k.e("s_mov_b64 exec, s[64:65]")
    k.e(f"ds_read_b128 {vr(AVB[buf],4)}, v{vaddr} offset:{off}")
    k.e(f"ds_read_b128 {vr(AVB[buf]+4,4)}, v{vaddr} offset:{off+512}")
    k.e("s_mov_b64 exec, -1")

def attention(k):
    k.c("attention: i = w&1 (s26), hh = w>>1 (s27)")
    k.e(f"s_and_b32 s26, s{S_WAVE}, 1")
    k.e(f"s_lshr_b32 s27, s{S_WAVE}, 1")
    k.e(f"s_lshl_b32 s48, s{S_RB}, 1")
    k.e("s_add_u32 s48, s48, s26")
    k.e("v_lshlrev_b32 v1, 4, v0")
    k.e("s_lshl_b32 s49, s27, 11")
    k.e("s_lshl_b32 s50, s26, 10")
    k.e("s_add_u32 s49, s49, s50")
    k.e(f"s_add_u32 s49, s49, {Q_L}")
    k.e("v_add_u32 v2, s49, v1")
    k.e(f"ds_read_b128 {vr(AQ_,4)}, v2")
    k.e("s_mul_i32 s49, s27, 10240")
    k.e("s_add_u32 s49, s49, s50")
    k.e(f"v_add_u32 v{AKA}, s49, v1")
    k.e("v_lshrrev_b32 v2, 5, v0")
    k.e("v_lshlrev_b32 v2, 8, v2")
    k.e("v_and_b32 v3, 15, v0")
    k.e("v_lshlrev_b32 v3, 4, v3")
    k.e(f"s_add_u32 s49, s49, {V_L}")
    k.e(f"v_add3_u32 v{AVA}, v2, v3, s49")
    k.e("s_mov_b32 s64, 0xffff")
    k.e("s_mov_b32 s65, 0xffff")
    k.e("v_and_b32 v2, 31, v0")
    k.e("v_lshrrev_b32 v3, 5, v0")
    k.e("v_lshlrev_b32 v3, 2, v3")
    k.e("v_sub_u32 v2, v2, v3")
    k.e("v_cvt_f32_i32 v2, v2")
    k.e(f"v_mov_b32 v3, {lit(BIG)}")
    short = k.u("short"); done = k.u("attdone")
    k.e("s_cmp_lt_u32 s48, 8")
    k.e(f"s_cbranch_scc1 {short}")
    for p in range(9): k.e(f"ds_read_b128 {vr(AKF+4*p,4)}, v{AKA} offset:{K_L + p*1024}")
    for i in range(16):
        ci = 8*(i >> 2) + (i & 3)
        k.e(f"v_fmaak_f32 v{AMD+i}, v2, v3, {lit((0.5-ci)*BIG)}")
    for i in range(16): k.e(f"v_min_f32 v{AMF+i}, -v{AMD+i}, 0")
    for i in range(16): k.e(f"v_min_f32 v{AMD+i}, 0, v{AMD+i}")
    for b in range(2):
        for j in range(8): k.e(f"v_mov_b32 v{AVB[b]+j}, 0x3f803f80")
    k.e(f"v_mov_b32 v{AM}, 0xff7fffff")
    k.e("s_waitcnt lgkmcnt(0)")
    Q = vr(AQ_, 4)
    def qk(dst, p, c): k.e(f"v_mfma_f32_32x32x16_bf16 {vr(dst,16)}, {vr(AKF+4*p,4)}, {Q}, {c}")
    qk(AS[0], 0, vr(AMF,16)); qk(AS[1], 1, "0"); qk(AS[2], 2, "0")
    v_reads(k, 0, AVA, 0)
    k.e("s_nop 5")
    for p in range(9):
        s = AS[p % 3]
        for j in range(8): k.e(f"v_max3_f32 v{AM}, v{s+2*j}, v{s+2*j+1}, v{AM}")
        if p + 3 <= 8: qk(s, p + 3, vr(AMD,16) if p + 3 == 8 else "0")
    k.e(f"v_mov_b32 v{AT}, v{AM}")
    k.e("s_nop 1")
    k.e(f"v_permlane32_swap_b32 v{AM}, v{AT}")
    k.e(f"v_max_f32 v{AM}, v{AM}, v{AT}")
    k.e(f"v_sub_f32 v{AM}, 0, v{AM}")
    for i in range(16): k.e(f"v_add_f32 v{AMF+i}, v{AMF+i}, v{AM}")
    for i in range(16): k.e(f"v_mov_b32 v{ACN+i}, v{AM}")
    k.e("s_nop 0")
    qk(AS[0], 0, vr(AMF,16))
    for i in range(16): k.e(f"v_add_f32 v{AMD+i}, v{AMD+i}, v{AM}")
    for p in range(9):
        cur = AS[p % 2]; nxt = AS[(p + 1) % 2]
        if p < 8:
            qk(nxt, p + 1, vr(AMD,16) if p + 1 == 8 else vr(ACN,16))
            v_reads(k, (p + 1) % 2, AVA, (p + 1) * 1024)
        for j in range(16): k.e(f"v_exp_f32 v{cur+j}, v{cur+j}")
        for j in range(8): k.e(f"v_cvt_pk_bf16_f32 v{AP+j}, v{cur+2*j}, v{cur+2*j+1}")
        k.e(f"s_waitcnt lgkmcnt({2 if p < 8 else 0})")
        vb = AVB[p % 2]
        k.e(f"v_mfma_f32_32x32x16_bf16 {vr(AO,16)}, {vr(vb,4)}, {vr(AP,4)}, {'0' if p == 0 else vr(AO,16)}")
        k.e("s_nop 0")
        k.e(f"v_mfma_f32_32x32x16_bf16 {vr(AO,16)}, {vr(vb+4,4)}, {vr(AP+4,4)}, {vr(AO,16)}")
    k.e(f"s_branch {done}")
    k.lab(short)
    for i in range(16):
        ci = 8*(i >> 2) + (i & 3)
        k.e(f"v_fmaak_f32 v{AMD+i}, v2, v3, {lit((0.5-ci)*BIG)}")
    for i in range(16): k.e(f"v_min_f32 v{AMD+i}, 0, v{AMD+i}")
    for j in range(8): k.e(f"v_mov_b32 v{AVB[0]+j}, 0x3f803f80")
    for i in range(16): k.e(f"v_mov_b32 v{AO+i}, 0")
    k.e(f"v_mov_b32 v{AM}, 0xff7fffff")
    k.e("s_sub_u32 s49, 8, s48")
    k.e("s_lshl_b32 s50, s49, 10")
    k.e(f"v_add_u32 v{AKA}, s50, v{AKA}")
    k.e(f"v_add_u32 v{AVA}, s50, v{AVA}")
    k.e(f"v_mov_b32 v{AT+1}, v{AKA}")
    S = AS[0]; KT = AKF
    l1 = k.u("s1"); l1e = k.u("s1e")
    k.e("s_mov_b32 s51, s49")
    k.lab(l1)
    k.e("s_cmp_lt_u32 s51, 8")
    k.e(f"s_cbranch_scc0 {l1e}")
    k.e(f"ds_read_b128 {vr(KT,4)}, v{AKA}")
    k.e("s_waitcnt lgkmcnt(0)")
    k.e(f"v_mfma_f32_32x32x16_bf16 {vr(S,16)}, {vr(KT,4)}, {Q}, 0")
    k.e(f"v_add_u32 v{AKA}, 1024, v{AKA}")
    k.e("s_add_u32 s51, s51, 1")
    k.e("s_nop 10")
    for j in range(8): k.e(f"v_max3_f32 v{AM}, v{S+2*j}, v{S+2*j+1}, v{AM}")
    k.e(f"s_branch {l1}")
    k.lab(l1e)
    k.e(f"ds_read_b128 {vr(KT,4)}, v{AKA}")
    k.e("s_waitcnt lgkmcnt(0)")
    k.e(f"v_mfma_f32_32x32x16_bf16 {vr(S,16)}, {vr(KT,4)}, {Q}, {vr(AMD,16)}")
    k.e("s_nop 11")
    for j in range(8): k.e(f"v_max3_f32 v{AM}, v{S+2*j}, v{S+2*j+1}, v{AM}")
    k.e(f"v_mov_b32 v{AT}, v{AM}")
    k.e("s_nop 1")
    k.e(f"v_permlane32_swap_b32 v{AM}, v{AT}")
    k.e(f"v_max_f32 v{AM}, v{AM}, v{AT}")
    k.e(f"v_sub_f32 v{AM}, 0, v{AM}")
    for i in range(16): k.e(f"v_add_f32 v{AMD+i}, v{AMD+i}, v{AM}")
    for i in range(16): k.e(f"v_mov_b32 v{ACN+i}, v{AM}")
    k.e(f"v_mov_b32 v{AKA}, v{AT+1}")
    l2 = k.u("s2"); l2e = k.u("s2e")
    def tile2(cregs):
        k.e(f"ds_read_b128 {vr(KT,4)}, v{AKA}")
        v_reads(k, 0, AVA, 0)
        k.e("s_waitcnt lgkmcnt(0)")
        k.e(f"v_mfma_f32_32x32x16_bf16 {vr(S,16)}, {vr(KT,4)}, {Q}, {cregs}")
        k.e(f"v_add_u32 v{AKA}, 1024, v{AKA}")
        k.e(f"v_add_u32 v{AVA}, 1024, v{AVA}")
        k.e("s_add_u32 s51, s51, 1")
        k.e("s_nop 9")
        for j in range(16): k.e(f"v_exp_f32 v{S+j}, v{S+j}")
        for j in range(8): k.e(f"v_cvt_pk_bf16_f32 v{AP+j}, v{S+2*j}, v{S+2*j+1}")
        k.e("s_nop 1")
        k.e(f"v_mfma_f32_32x32x16_bf16 {vr(AO,16)}, {vr(AVB[0],4)}, {vr(AP,4)}, {vr(AO,16)}")
        k.e(f"v_mfma_f32_32x32x16_bf16 {vr(AO,16)}, {vr(AVB[0]+4,4)}, {vr(AP+4,4)}, {vr(AO,16)}")
    k.e("s_mov_b32 s51, s49")
    k.lab(l2)
    k.e("s_cmp_lt_u32 s51, 8")
    k.e(f"s_cbranch_scc0 {l2e}")
    tile2(vr(ACN,16))
    k.e(f"s_branch {l2}")
    k.lab(l2e)
    tile2(vr(AMD,16))
    k.lab(done)
    k.e("s_nop 11")
    k.e(f"v_rcp_f32 v{AT}, v{AO+8}")
    k.e("s_nop 0")
    for j in range(8): k.e(f"v_mul_f32 v{AO+j}, v{AO+j}, v{AT}")
    cvt8(k, AP, AO)
    k.e(f"s_lshl_b32 s49, s{S_G}, 2")
    k.e("s_add_u32 s49, s49, s27")
    k.e("s_lshl_b32 s50, s48, 5")
    k.e("s_add_u32 s49, s49, s50")
    k.e("s_lshl_b32 s49, s49, 10")
    k.e(f"s_add_u32 s49, s49, {O_G + (2<<20)}")
    k.e(f"buffer_store_dwordx4 {vr(AP,4)}, v1, {sr(SRD_WS,4)}, s49 offen sc1")

def apart(k):
    sk = k.u("noapart")
    k.e(f"s_cmp_ge_u32 s{S_WAVE}, 4")
    k.e(f"s_cbranch_scc1 {sk}")
    sk2 = k.u("nosigA")
    k.e("s_cmp_eq_u32 s26, 0")
    k.e(f"s_cbranch_scc0 {sk2}")
    k.e("s_waitcnt vmcnt(0)")
    k.e(f"s_lshl_b32 s48, s{S_G}, 8")
    k.e(f"s_lshl_b32 s49, s{S_RB}, 1")
    k.e("s_add_u32 s49, s49, s27")
    k.e("s_lshl_b32 s49, s49, 2")
    k.e("s_add_u32 s48, s48, s49")
    k.e(f"s_add_u32 s48, s48, {F1A}")
    k.e(f"v_mov_b32 v8, s{S_NONCE}")
    k.e("v_mov_b32 v9, 0")
    k.e("s_mov_b64 exec, 1")
    k.e(f"buffer_store_dword v8, v9, {sr(SRD_WS,4)}, s48 offen sc1")
    k.e("s_mov_b64 exec, -1")
    k.lab(sk2)
    k.e(f"s_lshl_b32 s48, s{S_G}, 8")
    k.e(f"s_add_u32 s48, s48, {F1A}")
    k.e("v_lshlrev_b32 v8, 2, v0")
    k.e("v_add_u32 v8, s48, v8")
    poll_flags(k, 8, 9, "f1a")
    k.e(f"s_lshl_b32 s48, s{S_G}, 1")
    k.e("s_add_u32 s48, s48, s27")
    k.e("s_lshl_b32 s48, s48, 12")
    k.e(f"s_add_u32 s48, s48, {KVACC}")
    k.e("v_lshrrev_b32 v2, 5, v0")
    k.e("v_and_b32 v3, 15, v0")
    k.e("v_lshlrev_b32 v4, 5, v2")
    k.e("v_add_u32 v4, v4, v3")
    k.e("v_lshlrev_b32 v4, 2, v4")
    k.e("v_lshlrev_b32 v5, 4, v2")
    k.e("s_mov_b32 s64, 0xffff")
    k.e("s_mov_b32 s65, 0xffff")
    KVR = [8, 16]
    for hb in range(2):
        k.e("s_mov_b64 exec, s[64:65]")
        for t in range(8):
            k.e(f"buffer_load_dword v{KVR[hb]+t}, v4, {sr(SRD_WS,4)}, s48 offen offset:{t*256 + hb*64} sc1")
        k.e("s_not_b64 exec, s[64:65]")
        k.e(f"buffer_load_dwordx4 {vr(KVR[hb],4)}, v5, {sr(SRD_WS,4)}, s48 offen offset:{2048 + hb*64} sc1")
        k.e(f"buffer_load_dwordx4 {vr(KVR[hb]+4,4)}, v5, {sr(SRD_WS,4)}, s48 offen offset:{2048 + hb*64 + 32} sc1")
    k.e("s_mov_b64 exec, -1")
    k.e("s_waitcnt vmcnt(0)")
    AOP = [24, 28]; D = [32, 48]
    for hb in range(2): cvt8(k, AOP[hb], KVR[hb])
    k.e("s_nop 1")
    for hb in range(2):
        k.e(f"v_mfma_f32_32x32x16_bf16 {vr(D[hb],16)}, {vr(AOP[hb],4)}, {vr(PQ+4*hb,4)}, 0")
    k.e(f"s_mov_b32 s62, {lit(1e-6)}")
    k.e("s_nop 10")
    for hb in range(2):
        k.e(f"v_add_f32 v{64+hb}, s62, v{D[hb]+8}")
    for hb in range(2):
        k.e(f"v_rcp_f32 v{64+hb}, v{64+hb}")
    k.e("s_nop 0")
    for hb in range(2):
        for j in range(8): k.e(f"v_mul_f32 v{D[hb]+j}, v{D[hb]+j}, v{64+hb}")
        cvt8(k, 68+4*hb, D[hb])
    k.e(f"s_lshl_b32 s48, s{S_RB}, 1")
    k.e("s_add_u32 s48, s48, s26")
    k.e("s_lshl_b32 s48, s48, 5")
    k.e(f"s_lshl_b32 s49, s{S_G}, 2")
    k.e("s_add_u32 s48, s48, s49")
    k.e("s_lshl_b32 s49, s27, 1")
    k.e("s_add_u32 s48, s48, s49")
    k.e("s_lshl_b32 s48, s48, 10")
    k.e(f"s_add_u32 s48, s48, {O_G}")
    k.e("v_lshlrev_b32 v1, 4, v0")
    k.e(f"buffer_store_dwordx4 {vr(68,4)}, v1, {sr(SRD_WS,4)}, s48 offen sc1")
    k.e(f"buffer_store_dwordx4 {vr(72,4)}, v1, {sr(SRD_WS,4)}, s48 offen offset:1024 sc1")
    k.lab(sk)

def p3(k):
    k.c("P3: out tile 128x64")
    k.e("s_and_b32 s48, s2, 7")
    k.e("s_lshr_b32 s49, s2, 3")
    k.e("s_lshr_b32 s66, s48, 2")
    k.e("s_and_b32 s67, s48, 3")
    k.e("s_lshl_b32 s67, s67, 2")
    k.e("s_and_b32 s50, s49, 3")
    k.e("s_add_u32 s67, s67, s50")
    k.e("s_lshr_b32 s68, s49, 2")
    k.e("s_lshl_b32 s48, s67, 8")
    k.e(f"s_add_u32 s48, s48, {F2}")
    k.e("v_and_b32 v8, 15, v0")
    k.e("v_lshlrev_b32 v8, 2, v8")
    k.e("v_add_u32 v8, s48, v8")
    poll_flags(k, 8, 9, "f2")
    k.stamp(12)
    OF, ACC, WF = 8, 136, [168, 176]
    VA0, VA1 = 184, 185
    k.e("s_lshl_b32 s48, s67, 2")
    k.e(f"s_add_u32 s48, s48, s{S_WAVE}")
    k.e("s_lshl_b32 s49, s48, 15")
    k.e("s_lshl_b32 s50, s66, 21")
    k.e("s_add_u32 s49, s49, s50")
    k.e(f"s_add_u32 s49, s49, {O_G}")
    k.e("v_lshlrev_b32 v1, 4, v0")
    for hd in range(32):
        k.e(f"buffer_load_dwordx4 {vr(OF+4*hd,4)}, v1, {sr(SRD_WS,4)}, s49 offen offset:{(hd%4)*1024} sc1")
        if hd % 4 == 3 and hd < 31: k.e("s_add_u32 s49, s49, 4096")
    k.e("v_bfe_u32 v2, v0, 2, 2")
    k.e("v_and_b32 v3, 3, v0")
    k.e("v_bfe_u32 v4, v0, 4, 1")
    k.e("v_lshrrev_b32 v5, 5, v0")
    k.e("v_lshlrev_b32 v5, 2, v5")
    k.e("v_add_u32 v5, v5, v2")
    k.e("v_lshlrev_b32 v5, 7, v5")
    k.e("v_and_b32 v6, 1, v3")
    k.e("v_lshlrev_b32 v6, 1, v6")
    k.e("v_add_u32 v6, v6, v4")
    k.e("v_and_b32 v7, 2, v2")
    k.e("v_lshlrev_b32 v7, 1, v7")
    k.e("v_xor_b32 v6, v6, v7")
    k.e("v_lshlrev_b32 v6, 4, v6")
    k.e("v_lshrrev_b32 v3, 1, v3")
    k.e("v_lshlrev_b32 v3, 3, v3")
    k.e("v_add3_u32 v5, v5, v6, v3")
    k.e(f"v_add_u32 v{VA0}, {WO_L}, v5")
    k.e(f"v_xor_b32 v{VA1}, 64, v{VA0}")
    def wreads(buf, hd):
        for b in range(2):
            for s2 in range(2):
                k.e(f"ds_read_b64_tr_b16 {vr(WF[buf]+4*b+2*s2,2)}, v{VA0+b} offset:{hd*2048 + s2*1024}")
    wreads(0, 0)
    for hd in range(32):
        if hd < 31: wreads((hd + 1) % 2, hd + 1)
        k.e(f"s_waitcnt vmcnt({31-hd}) lgkmcnt({4 if hd < 31 else 0})")
        for b in range(2):
            k.e(f"v_mfma_f32_32x32x16_bf16 {vr(ACC+16*b,16)}, {vr(WF[hd%2]+4*b,4)}, {vr(OF+4*hd,4)}, {'0' if hd == 0 else vr(ACC+16*b,16)}")
    srd(k, SRD_T, P_OUT, 4 << 20)
    k.e("v_and_b32 v2, 31, v0")
    k.e("s_lshl_b32 s49, s48, 5")
    k.e("v_add_u32 v2, s49, v2")
    k.e("v_lshlrev_b32 v2, 11, v2")
    k.e("v_lshrrev_b32 v3, 5, v0")
    k.e("v_lshlrev_b32 v3, 5, v3")
    k.e("s_lshl_b32 s49, s66, 10")
    k.e("s_lshl_b32 s50, s68, 7")
    k.e("s_add_u32 s49, s49, s50")
    k.e("v_add3_u32 v2, v2, v3, s49")
    k.e("s_nop 3")
    for b in range(2):
        for j in range(8): k.e(f"v_cvt_pk_bf16_f32 v{8+8*b+j}, v{ACC+16*b+2*j}, v{ACC+16*b+2*j+1}")
    for b in range(2):
        k.e(f"buffer_store_dwordx4 {vr(8+8*b,4)}, v2, {sr(SRD_T,4)}, 0 offen offset:{64*b}")
        k.e(f"buffer_store_dwordx4 {vr(12+8*b,4)}, v2, {sr(SRD_T,4)}, 0 offen offset:{64*b+16}")

HDR = """; Kernarg layout for this problem (72 bytes, ptrs only, base s[0:1]):
;   offset   0: d_in[0] A_x  shape=(1, 2048, 512) dtype=bfloat16
;   offset   8: d_in[1] A_wqkv  shape=(512, 1536) dtype=bfloat16
;   offset  16: d_in[2] A_wo  shape=(512, 512) dtype=bfloat16
;   offset  24: d_in[3] B_x  shape=(1, 2048, 512) dtype=bfloat16
;   offset  32: d_in[4] B_wqkv  shape=(512, 1536) dtype=bfloat16
;   offset  40: d_in[5] B_wo  shape=(512, 512) dtype=bfloat16
;   offset  48: d_out     shape=(1, 2048, 1024) dtype=bfloat16
;   offset  56: d_debug   256 bytes
;   offset  64: d_ws      268435456 bytes workspace
; @launch grid=(256,1,1) block=(512,1,1) lds=163840
.amdgcn_target "amdgcn-amd-amdhsa--gfx950"
.text
.globl KNAME
.p2align 8
.type KNAME,@function
""".replace("KNAME", KNAME)

TAIL = """.section .rodata,"a"
.p2align 6
.amdhsa_kernel KNAME
  .amdhsa_next_free_vgpr 256
  .amdhsa_next_free_sgpr 102
  .amdhsa_accum_offset 256
  .amdhsa_group_segment_fixed_size 0
  .amdhsa_kernarg_size 72
  .amdhsa_user_sgpr_count 2
  .amdhsa_user_sgpr_kernarg_segment_ptr 1
  .amdhsa_system_sgpr_workgroup_id_x 1
.end_amdhsa_kernel
""".replace("KNAME", KNAME)

def build(stamps=False):
    k = gen(stamps)
    body = "\n".join(k.L)
    body = body.replace("PF_BACK", f"((L_pc - {KNAME}) & 0xffffff00)")
    pad = "\n    .fill 4096, 4, 0xbf800000\n"
    return HDR + body + pad + "\n" + TAIL

if __name__ == "__main__":
    out = sys.argv[1] if len(sys.argv) > 1 else "out.s"
    stamps = "stamps" in sys.argv[2:]
    for a in sys.argv[2:]:
        if "=" in a:
            kk, vv = a.split("="); OPT[kk] = int(vv)
    txt = build(stamps)
    open(out, "w").write(txt)
    import hz
    pr = hz.check(txt)
    print("hazards:", len(pr), "lines:", txt.count("\n"))
```

```python
import sys, math, struct

KNAME = "concat_heads__linear_attn_block__sliding_block__prompt_kernel"

KB_G   = 0
VB_G   = 2 << 20
O_G    = 4 << 20
KVACC  = 8 << 20
FL     = (8 << 20) + (64 << 10)
F1B    = FL
F1A    = FL + 4096
F2     = FL + 8192
STAMP  = 9 << 20
SLOT   = 32768
NONCE_L = 131072
K_L, V_L, Q_L, SCR_L, WO_L = 0, 40960, 81920, 90112, 98304
CS = 0.25 * math.log2(math.e)
LOG2E = math.log2(math.e)
BIG = 1.0e28
SPIN_MAX = 100000
OPT = dict(rot=0, pfB=1, pfA=1, ldstamps=0, nodma=0, noreads=0, nomfma=0, dbgstamps=0, tmax=0)

def f2u(x): return struct.unpack('<I', struct.pack('<f', x))[0]
def lit(x): return "0x%08x" % f2u(x)

class K:
    def __init__(self, stamps=False, stop=None):
        self.L = []; self.stamps = stamps; self.stop = stop; self.nst = 0; self.uid = 0
    def e(self, s): self.L.append("    " + s)
    def c(self, s): self.L.append("    ; " + s)
    def lab(self, s): self.L.append(s + ":")
    def u(self, p):
        self.uid += 1; return f"L_{p}_{self.uid}"
    def stamp(self, k):
        if not self.stamps: return
        self.e("s_memrealtime s[70:71]")
        self.e("s_waitcnt lgkmcnt(0)")
        self.e(f"s_mov_b32 s{72+k}, s70")

def vr(a, n): return f"v[{a}:{a+n-1}]"
def sr(a, n): return f"s[{a}:{a+n-1}]"

S_WAVE, S_RB, S_G, S_NONCE = 22, 23, 24, 25
SRD_WS, SRD_X, SRD_W, SRD_T, SRD_WO = 28, 32, 36, 40, 44
P_AX, P_AW, P_AWO, P_BX, P_BW, P_BWO, P_OUT, P_DBG, P_WS = 4, 6, 8, 10, 12, 14, 16, 18, 20

def srd(k, dst, ptr, size):
    k.e(f"s_mov_b32 s{dst}, s{ptr}")
    k.e(f"s_mov_b32 s{dst+1}, s{ptr+1}")
    k.e(f"s_mov_b32 s{dst+2}, 0x{size:x}")
    k.e(f"s_mov_b32 s{dst+3}, 0x20000")

def spin_guard(k, sreg, exit_label):
    k.e(f"s_add_u32 s{sreg}, s{sreg}, 1")
    k.e(f"s_cmp_gt_u32 s{sreg}, {SPIN_MAX}")
    k.e(f"s_cbranch_scc1 {exit_label}")

def poll_flags(k, vaddr, vtmp, name, sleep=1):
    lp = k.u(name + "_poll"); ex = k.u(name + "_done")
    k.e("s_mov_b32 s60, 0")
    k.lab(lp)
    k.e(f"buffer_load_dword v{vtmp}, v{vaddr}, {sr(SRD_WS,4)}, 0 offen sc1")
    spin_guard(k, 60, ex)
    k.e("s_waitcnt vmcnt(0)")
    k.e(f"v_cmp_ne_u32 vcc, s{S_NONCE}, v{vtmp}")
    k.e("s_nop 1")
    k.e(f"s_cbranch_vccz {ex}")
    if sleep: k.e(f"s_sleep {sleep}")
    k.e(f"s_branch {lp}")
    k.lab(ex)
    k.e("s_waitcnt vmcnt(0)")

ACC_B, ACC_A = 8, 56
BUF = [104, 120, 136, 152]
VXA, VWA = 168, 172
QF, KF, VF = 176, 184, 192
PQ = 200
PFD = 208

def rd_x(k, buf, j):
    if OPT['noreads']: return
    k.e(f"ds_read_b128 {vr(BUF[buf],4)}, v{VXA+j}")
def rd_w(k, buf, j, p):
    if OPT['noreads']: return
    b = BUF[buf]
    for s2 in range(2):
        k.e(f"ds_read_b64_tr_b16 {vr(b+4+4*p+2*s2,2)}, v{VWA} offset:{p*8192 + j*2048 + s2*512}")
def frag_reads(k, buf, j):
    rd_x(k, buf, j)
    for p in range(3): rd_w(k, buf, j, p)

def mfma1(k, buf, acc, branch, p):
    if OPT['nomfma']: return
    b = BUF[buf]; X = vr(b,4); W = vr(b+4+4*p,4); D = vr(acc+16*p,16)
    if p == 0 or (p == 1 and branch == 'B'): k.e(f"v_mfma_f32_32x32x16_bf16 {D}, {W}, {X}, {D}")
    else: k.e(f"v_mfma_f32_32x32x16_bf16 {D}, {X}, {W}, {D}")

def kstep(k, j, acc, branch):
    nb = (j + 2) & 3
    k.e("s_waitcnt lgkmcnt(7)")
    mfma1(k, j, acc, branch, 0)
    rd_x(k, nb, nb); rd_w(k, nb, nb, 0)
    mfma1(k, j, acc, branch, 1)
    rd_w(k, nb, nb, 1)
    mfma1(k, j, acc, branch, 2)
    rd_w(k, nb, nb, 2)

def consumer_loop(k, branch, acc):
    lp = k.u("cons"+branch)
    k.e("s_mov_b32 s48, 0")
    k.lab(lp)
    kstep(k, 0, acc, branch)
    k.e("s_add_u32 s49, s49, 1")
    k.e("s_and_b32 s50, s49, 3")
    k.e("s_cmp_eq_u32 s50, 0")
    k.e(f"s_cselect_b32 s50, 0x{(-3*SLOT) & 0xffffffff:x}, s69")
    kstep(k, 1, acc, branch)
    if branch == 'A':
        sk = k.u("novm")
        k.e("s_cmp_eq_u32 s48, 2")
        k.e(f"s_cbranch_scc0 {sk}")
        k.e("s_waitcnt vmcnt(0)")
        k.lab(sk)
    for j in range(4): k.e(f"v_add_u32 v{VXA+j}, s50, v{VXA+j}")
    k.e(f"v_add_u32 v{VWA}, s50, v{VWA}")
    k.e("s_barrier")
    kstep(k, 2, acc, branch)
    kstep(k, 3, acc, branch)
    k.e("s_add_u32 s48, s48, 1")
    k.e("s_cmp_lt_u32 s48, 8")
    k.e(f"s_cbranch_scc1 {lp}")

def issue_stage(k):
    k.e("s_lshl_b32 s52, s59, 7")
    k.e("s_mul_i32 s53, s59, 196608")
    k.e("s_mov_b32 m0, s51")
    k.e("s_add_u32 s54, s53, 23552")
    k.e(f"buffer_load_dwordx4 v1, {sr(SRD_X,4)}, s52 offen lds")
    k.e(f"buffer_load_dwordx4 v2, {sr(SRD_X,4)}, s52 offen offset:1024 lds")
    for p in range(3):
        k.e(f"s_add_u32 s55, s51, {8192 + p*8192}")
        k.e("s_mov_b32 m0, s55")
        if p: k.e(f"s_add_u32 s56, s53, {p*1024}"); so0 = "s56"
        else: so0 = "s53"; k.e("s_nop 0")
        k.e(f"buffer_load_dwordx4 v3, {sr(SRD_W,4)}, {so0} offen lds")
        if p: k.e(f"s_add_u32 s56, s54, {p*1024}"); so1 = "s56"
        else: so1 = "s54"
        k.e(f"buffer_load_dwordx4 v3, {sr(SRD_W,4)}, {so1} offen offset:1024 lds")
    k.e("s_add_u32 s57, s57, 1")
    k.e("s_add_u32 s59, s59, 1")
    k.e("s_and_b32 s59, s59, 7")
    k.e(f"s_add_u32 s51, s51, {SLOT}")
    k.e("s_and_b32 s58, s57, 3")
    sk = k.u("nowrap")
    k.e("s_cmp_eq_u32 s58, 0")
    k.e(f"s_cbranch_scc0 {sk}")
    k.e(f"s_sub_u32 s51, s51, {4*SLOT}")
    k.lab(sk)
    sk2 = k.u("nosw")
    k.e("s_cmp_eq_u32 s57, 8")
    k.e(f"s_cbranch_scc0 {sk2}")
    srd(k, SRD_X, P_AX, 2 << 20)
    srd(k, SRD_W, P_AW, 512*3072)
    k.lab(sk2)

def prefetch(k, pw, px, PFV, with_wo):
    k.e("s_and_b32 s50, s2, 7")
    k.e("s_lshr_b32 s51, s2, 3")
    w1 = k.u("pf1"); w2 = k.u("pf2"); ex = k.u("pfx")
    k.e(f"s_cmp_eq_u32 s{S_WAVE}, 0")
    k.e(f"s_cbranch_scc0 {w1}")
    srd(k, SRD_X, pw, 512*3072)
    k.e("v_lshrrev_b32 v1, 2, v0")
    k.e("s_lshl_b32 s52, s51, 4")
    k.e("v_add_u32 v1, s52, v1")
    k.e("v_mul_u32_u24 v1, 3072, v1")
    k.e("v_and_b32 v2, 3, v0")
    k.e("s_lshr_b32 s52, s50, 2")
    k.e("s_lshl_b32 s52, s52, 2")
    k.e("v_add_u32 v2, s52, v2")
    k.e("v_lshlrev_b32 v2, 7, v2")
    k.e("v_add_u32 v1, v1, v2")
    for p in range(3): k.e(f"buffer_load_dword v{PFV+p}, v1, {sr(SRD_X,4)}, 0 offen offset:{p*1024}")
    k.e(f"s_branch {ex}")
    k.lab(w1)
    k.e(f"s_cmp_eq_u32 s{S_WAVE}, 1")
    k.e(f"s_cbranch_scc0 {w2}")
    srd(k, SRD_X, px, 2 << 20)
    k.e("s_and_b32 s52, s50, 3")
    k.e("s_lshl_b32 s52, s52, 9")
    k.e("s_lshl_b32 s53, s51, 4")
    k.e("s_add_u32 s52, s52, s53")
    k.e("s_lshl_b32 s52, s52, 10")
    k.e("v_lshlrev_b32 v1, 7, v0")
    k.e(f"buffer_load_dword v{PFV}, v1, {sr(SRD_X,4)}, s52 offen")
    k.e("s_add_u32 s52, s52, 8192")
    k.e(f"buffer_load_dword v{PFV+1}, v1, {sr(SRD_X,4)}, s52 offen")
    k.e(f"s_branch {ex}")
    k.lab(w2)
    if with_wo:
        k.e(f"s_cmp_eq_u32 s{S_WAVE}, 2")
        k.e(f"s_cbranch_scc0 {ex}")
        k.e("s_lshr_b32 s52, s50, 2")
        k.e("s_cmp_eq_u32 s52, 0")
        k.e(f"s_cselect_b32 s{SRD_X}, s{P_AWO}, s{P_BWO}")
        k.e(f"s_cselect_b32 s{SRD_X+1}, s{P_AWO+1}, s{P_BWO+1}")
        k.e(f"s_mov_b32 s{SRD_X+2}, 0x{512*1024:x}")
        k.e(f"s_mov_b32 s{SRD_X+3}, 0x20000")
        k.e("s_lshl_b32 s52, s51, 14")
        k.e("v_lshlrev_b32 v1, 7, v0")
        k.e(f"buffer_load_dword v{PFV}, v1, {sr(SRD_X,4)}, s52 offen")
        k.e("s_add_u32 s52, s52, 8192")
        k.e(f"buffer_load_dword v{PFV+1}, v1, {sr(SRD_X,4)}, s52 offen")
    k.lab(ex)

def phi(k, r, n, t):
    for i in range(0, n, 4):
        for j in range(4): k.e(f"v_mul_f32 v{t+j}, s61, v{r+i+j}")
        for j in range(4): k.e(f"v_exp_f32 v{t+j}, v{t+j} clamp")
        for j in range(4): k.e(f"v_max_f32 v{r+i+j}, 0, v{r+i+j}")
        for j in range(4): k.e(f"v_add_f32 v{r+i+j}, s62, v{r+i+j}")
        for j in range(4): k.e(f"v_add_f32 v{r+i+j}, v{t+j}, v{r+i+j}")

def cvt8(k, dst, src):
    for j in range(4): k.e(f"v_cvt_pk_bf16_f32 v{dst+j}, v{src+2*j}, v{src+2*j+1}")

def gen(stamps=False, stop=None):
    k = K(stamps, stop)
    k.lab(KNAME)
    k.e("s_cmp_ge_u32 s2, 256")
    k.e("s_cbranch_scc1 L_end")
    if stamps:
        k.e("s_memrealtime s[70:71]")
    k.e("s_load_dwordx16 s[4:19], s[0:1], 0")
    k.e("s_load_dwordx2 s[20:21], s[0:1], 64")
    k.e("v_lshrrev_b32 v1, 6, v0")
    k.e("v_and_b32 v0, 63, v0")
    k.e(f"v_readfirstlane_b32 s{S_WAVE}, v1")
    k.e("s_and_b32 s26, s2, 7")
    k.e("s_lshr_b32 s27, s2, 3")
    k.e("s_and_b32 s48, s26, 3")
    k.e("s_lshl_b32 s48, s48, 3")
    k.e("s_and_b32 s49, s27, 7")
    k.e(f"s_add_u32 s{S_RB}, s48, s49")
    k.e("s_lshr_b32 s48, s26, 2")
    k.e("s_lshl_b32 s48, s48, 2")
    k.e("s_lshr_b32 s49, s27, 3")
    k.e(f"s_add_u32 s{S_G}, s48, s49")
    k.e("s_waitcnt lgkmcnt(0)")
    if stamps: k.e("s_mov_b32 s72, s70")
    srd(k, SRD_WS, P_WS, 256 << 20)
    srd(k, SRD_T, P_DBG, 256)
    k.e(f"s_cmp_ge_u32 s{S_WAVE}, 4")
    k.e("s_cbranch_scc1 L_loader")

    k.c("consumer setup: i'=w&1 (s26) c=w>>1 (s27)")
    k.e(f"s_and_b32 s26, s{S_WAVE}, 1")
    k.e(f"s_lshr_b32 s27, s{S_WAVE}, 1")
    nn = k.u("nononce")
    k.e(f"s_cmp_eq_u32 s{S_WAVE}, 0")
    k.e(f"s_cbranch_scc0 {nn}")
    k.e("v_mov_b32 v2, 0")
    nl = k.u("nolead")
    k.e("s_cmp_eq_u32 s2, 0")
    k.e(f"s_cbranch_scc0 {nl}")
    k.e("s_memrealtime s[58:59]")
    k.e("s_waitcnt lgkmcnt(0)")
    k.e("s_or_b32 s58, s58, 1")
    k.e("v_mov_b32 v3, s58")
    k.e(f"buffer_store_dword v3, v2, {sr(SRD_T,4)}, 0 offen sc1")
    k.lab(nl)
    k.lab(nn)
    if OPT['pfB']: prefetch(k, P_BW, P_BX, PFD, False)
    k.e("v_and_b32 v1, 31, v0")
    k.e("v_lshrrev_b32 v2, 5, v0")
    k.e("v_bfe_u32 v3, v0, 1, 3")
    k.e("v_xor_b32 v3, v3, v2")
    k.e("v_lshlrev_b32 v3, 4, v3")
    k.e("s_lshl_b32 s48, s26, 5")
    k.e("v_add_u32 v1, s48, v1")
    k.e("v_lshlrev_b32 v1, 7, v1")
    k.e(f"v_add_u32 v{VXA}, v1, v3")
    for j in range(1, 4): k.e(f"v_xor_b32 v{VXA+j}, {j<<5}, v{VXA}")
    k.e("v_bfe_u32 v1, v0, 2, 2")
    k.e("v_and_b32 v2, 3, v0")
    k.e("v_bfe_u32 v3, v0, 4, 1")
    k.e("v_lshrrev_b32 v4, 5, v0")
    k.e("v_lshlrev_b32 v4, 3, v4")
    k.e("v_add_u32 v4, v4, v1")
    k.e("v_lshlrev_b32 v4, 7, v4")
    k.e("v_lshlrev_b32 v3, 1, v3")
    k.e("v_lshrrev_b32 v5, 1, v2")
    k.e("v_add_u32 v3, v3, v5")
    k.e("s_lshl_b32 s48, s27, 2")
    k.e("v_add_u32 v3, s48, v3")
    k.e("v_and_b32 v5, 2, v1")
    k.e("v_lshlrev_b32 v5, 1, v5")
    k.e("v_xor_b32 v3, v3, v5")
    k.e("v_lshlrev_b32 v3, 4, v3")
    k.e("v_and_b32 v2, 1, v2")
    k.e("v_lshlrev_b32 v2, 3, v2")
    k.e("v_add3_u32 v4, v4, v3, v2")
    k.e(f"v_add_u32 v{VWA}, 8192, v4")
    for i in range(96): k.e(f"v_mov_b32 v{ACC_B+i}, 0")
    nn2 = k.u("nononce2")
    k.e(f"s_cmp_eq_u32 s{S_WAVE}, 0")
    k.e(f"s_cbranch_scc0 {nn2}")
    lp = k.u("np"); ex = k.u("npx")
    k.e("v_mov_b32 v2, 0")
    k.e("s_mov_b32 s60, 0")
    k.lab(lp)
    k.e(f"buffer_load_dword v3, v2, {sr(SRD_T,4)}, 0 offen sc1")
    spin_guard(k, 60, ex)
    k.e("s_waitcnt vmcnt(0)")
    k.e("v_readfirstlane_b32 s58, v3")
    k.e("s_nop 0")
    k.e("s_cmp_eq_u32 s58, 0")
    k.e(f"s_cbranch_scc0 {ex}")
    k.e("s_sleep 1")
    k.e(f"s_branch {lp}")
    k.lab(ex)
    k.e("s_waitcnt vmcnt(0)")
    k.e(f"v_mov_b32 v2, {NONCE_L}")
    k.e("ds_write_b32 v2, v3")
    k.e("s_waitcnt lgkmcnt(0)")
    k.lab(nn2)
    k.e("s_barrier")
    k.e(f"v_mov_b32 v2, {NONCE_L}")
    k.e("ds_read_b32 v3, v2")
    k.e("s_waitcnt lgkmcnt(0)")
    k.e(f"v_readfirstlane_b32 s{S_NONCE}, v3")
    k.stamp(1)
    if OPT['pfA']: prefetch(k, P_AW, P_AX, PFD+4, True)
    k.e("s_mov_b32 s49, 0")
    k.e(f"s_mov_b32 s69, {SLOT}")
    frag_reads(k, 0, 0)
    frag_reads(k, 1, 1)
    consumer_loop(k, 'B', ACC_B)
    k.stamp(2)
    k.c("B epilogue")
    k.e(f"s_mov_b32 s61, {lit(CS)}")
    k.e("s_nop 9")
    for i in range(16): k.e(f"v_mul_f32 v{ACC_B+i}, s61, v{ACC_B+i}")
    cvt8(k, KF, ACC_B+16); cvt8(k, KF+4, ACC_B+24)
    cvt8(k, VF, ACC_B+32); cvt8(k, VF+4, ACC_B+40)
    cvt8(k, QF, ACC_B); cvt8(k, QF+4, ACC_B+8)
    k.e(f"s_lshl_b32 s62, s{S_G}, 2")
    k.e("s_lshl_b32 s63, s27, 1")
    k.e("s_add_u32 s62, s62, s63")
    k.e("s_lshl_b32 s62, s62, 6")
    k.e(f"s_lshl_b32 s63, s{S_RB}, 1")
    k.e("s_add_u32 s63, s63, s26")
    k.e("s_add_u32 s62, s62, s63")
    k.e("s_lshl_b32 s62, s62, 10")
    k.e("v_lshlrev_b32 v1, 4, v0")
    k.e(f"s_add_u32 s63, s62, {KB_G + 65536}")
    if KB_G: k.e(f"s_add_u32 s64, s62, {KB_G}")
    else: k.e("s_mov_b32 s64, s62")
    k.e(f"buffer_store_dwordx4 {vr(KF,4)}, v1, {sr(SRD_WS,4)}, s64 offen sc1")
    k.e(f"buffer_store_dwordx4 {vr(KF+4,4)}, v1, {sr(SRD_WS,4)}, s63 offen sc1")
    k.e("v_bfe_u32 v2, v0, 4, 1")
    k.e("v_lshlrev_b32 v2, 16, v2")
    k.e("v_lshrrev_b32 v3, 5, v0")
    k.e("v_lshlrev_b32 v3, 8, v3")
    k.e("v_and_b32 v4, 15, v0")
    k.e("v_lshlrev_b32 v4, 4, v4")
    k.e("v_add3_u32 v2, v2, v3, v4")
    k.e(f"s_add_u32 s64, s62, {VB_G}")
    k.e(f"buffer_store_dwordx4 {vr(VF,4)}, v2, {sr(SRD_WS,4)}, s64 offen sc1")
    k.e(f"buffer_store_dwordx4 {vr(VF+4,4)}, v2, {sr(SRD_WS,4)}, s64 offen offset:512 sc1")
    k.stamp(3)
    if stamps: k.e("s_memtime s[90:91]"); k.e("s_waitcnt lgkmcnt(0)")
    consumer_loop(k, 'A', ACC_A)
    k.e("s_waitcnt lgkmcnt(0)")
    if stamps:
        k.e("s_memtime s[92:93]"); k.e("s_waitcnt lgkmcnt(0)"); k.e("s_sub_u32 s86, s92, s90")
    k.e("s_barrier")
    k.stamp(4)
    k.c("A epilogue")
    T = 104
    k.e(f"s_mov_b32 s61, {lit(LOG2E)}")
    k.e(f"s_mov_b32 s62, {lit(1e-6)}")
    k.e("s_nop 6")
    AQ, AK, AV = ACC_A, ACC_A+16, ACC_A+32
    k.e("s_mul_i32 s63, s27, 20480")
    k.e("s_lshl_b32 s64, s26, 10")
    k.e("s_add_u32 s63, s63, s64")
    k.e(f"s_add_u32 s63, s63, {K_L + 8192}")
    k.e("v_lshlrev_b32 v1, 4, v0")
    k.e("v_add_u32 v2, s63, v1")
    k.e(f"ds_write_b128 v2, {vr(KF,4)}")
    k.e(f"ds_write_b128 v2, {vr(KF+4,4)} offset:10240")
    k.e("v_bfe_u32 v3, v0, 4, 1")
    k.e("v_mul_u32_u24 v3, 10240, v3")
    k.e("v_lshrrev_b32 v4, 5, v0")
    k.e("v_lshlrev_b32 v4, 8, v4")
    k.e("v_and_b32 v5, 15, v0")
    k.e("v_lshlrev_b32 v5, 4, v5")
    k.e("v_add3_u32 v3, v3, v4, v5")
    k.e(f"s_add_u32 s64, s63, {V_L - K_L}")
    k.e("v_add_u32 v3, s64, v3")
    k.e(f"ds_write_b128 v3, {vr(VF,4)}")
    k.e(f"ds_write_b128 v3, {vr(VF+4,4)} offset:512")
    k.e("s_lshl_b32 s63, s27, 12")
    k.e("s_lshl_b32 s64, s26, 10")
    k.e("s_add_u32 s63, s63, s64")
    k.e(f"s_add_u32 s63, s63, {Q_L}")
    k.e("v_add_u32 v2, s63, v1")
    k.e(f"ds_write_b128 v2, {vr(QF,4)}")
    k.e(f"ds_write_b128 v2, {vr(QF+4,4)} offset:2048")
    phi(k, AK, 16, T)
    PK, VV = 112, 120
    cvt8(k, PK, AK); cvt8(k, PK+4, AK+8)
    cvt8(k, VV, AV); cvt8(k, VV+4, AV+8)
    ONES = 128
    for j in range(4): k.e(f"v_mov_b32 v{ONES+j}, 0x3f803f80")
    DKV, DZ = AK, AV
    k.e("s_nop 1")
    k.e(f"v_mfma_f32_32x32x16_bf16 {vr(DKV,16)}, {vr(PK,4)}, {vr(VV,4)}, 0")
    k.e(f"v_mfma_f32_32x32x16_bf16 {vr(DZ,16)}, {vr(ONES,4)}, {vr(PK,4)}, 0")
    k.e(f"v_mfma_f32_32x32x16_bf16 {vr(DKV,16)}, {vr(PK+4,4)}, {vr(VV+4,4)}, {vr(DKV,16)}")
    k.e(f"v_mfma_f32_32x32x16_bf16 {vr(DZ,16)}, {vr(ONES,4)}, {vr(PK+4,4)}, {vr(DZ,16)}")
    phi(k, AQ, 16, T)
    cvt8(k, PQ, AQ); cvt8(k, PQ+4, AQ+8)
    k.e("s_mov_b32 s64, 0xffff0000")
    k.e("s_mov_b32 s65, 0xffff0000")
    RS = 144
    k.e("s_waitcnt lgkmcnt(0)")
    for t in range(8): k.e(f"v_cndmask_b32 v{RS+t}, v{DKV+t}, v{DKV+8+t}, s[64:65]")
    k.e(f"v_mov_b32 v{RS+8}, v{DZ}")
    sk = k.u("noscr")
    k.e("s_lshl_b32 s63, s27, 12")
    k.e(f"s_add_u32 s63, s63, {SCR_L}")
    k.e("v_add_u32 v2, s63, v1")
    k.e("s_cmp_eq_u32 s26, 1")
    k.e(f"s_cbranch_scc0 {sk}")
    k.e(f"ds_write_b128 v2, {vr(RS,4)}")
    k.e(f"ds_write_b128 v2, {vr(RS+4,4)} offset:1024")
    k.e("v_lshlrev_b32 v3, 2, v0")
    k.e("v_add_u32 v3, s63, v3")
    k.e(f"ds_write_b32 v3, v{RS+8} offset:2048")
    k.lab(sk)
    k.e("s_waitcnt lgkmcnt(0)")
    k.stamp(5)
    k.e("s_barrier")
    sk = k.u("noatom")
    k.e("s_cmp_eq_u32 s26, 0")
    k.e(f"s_cbranch_scc0 {sk}")
    k.e(f"ds_read_b128 {vr(T,4)}, v2")
    k.e(f"ds_read_b128 {vr(T+4,4)}, v2 offset:1024")
    k.e("v_lshlrev_b32 v3, 2, v0")
    k.e("v_add_u32 v4, s63, v3")
    k.e(f"ds_read_b32 v{T+8}, v4 offset:2048")
    k.e("s_waitcnt lgkmcnt(0)")
    for t in range(9): k.e(f"v_add_f32 v{RS+t}, v{RS+t}, v{T+t}")
    k.e(f"s_lshl_b32 s63, s{S_G}, 1")
    k.e("s_add_u32 s63, s63, s27")
    k.e("s_lshl_b32 s63, s63, 12")
    k.e(f"s_add_u32 s63, s63, {KVACC}")
    for t in range(8): k.e(f"buffer_atomic_add_f32 v{RS+t}, v3, {sr(SRD_WS,4)}, s63 offen offset:{t*256}")
    k.e("s_mov_b32 exec_hi, 0")
    k.e(f"buffer_atomic_add_f32 v{RS+8}, v3, {sr(SRD_WS,4)}, s63 offen offset:2048")
    k.e("s_mov_b64 exec, -1")
    k.lab(sk)
    k.e("s_branch L_attn")

    k.lab("L_loader")
    k.e(f"s_sub_u32 s26, s{S_WAVE}, 4")
    sk = k.u("nopf")
    k.e("s_cmp_eq_u32 s26, 3")
    k.e(f"s_cbranch_scc0 {sk}")
    k.e("s_getpc_b64 s[58:59]")
    k.lab("L_pc")
    k.e("s_and_b32 s58, s58, 0xffffff00")
    k.e("v_lshlrev_b32 v8, 7, v0")
    k.e(f"s_sub_u32 s58, s58, PF_BACK")
    k.e("s_subb_u32 s59, s59, 0")
    k.e("global_load_dword v9, v8, s[58:59]")
    k.e("v_add_u32 v8, 8192, v8")
    k.e("global_load_dword v10, v8, s[58:59]")
    k.lab(sk)
    srd(k, SRD_X, P_BX, 2 << 20)
    srd(k, SRD_W, P_BW, 512*3072)
    k.e("v_lshrrev_b32 v4, 3, v0")
    k.e("v_and_b32 v5, 7, v0")
    k.e("v_lshrrev_b32 v6, 1, v4")
    k.e("v_xor_b32 v7, v5, v6")
    k.e("v_lshlrev_b32 v7, 4, v7")
    k.e(f"s_lshl_b32 s48, s{S_RB}, 6")
    k.e("s_lshl_b32 s49, s26, 4")
    k.e("s_add_u32 s48, s48, s49")
    k.e("v_add_u32 v1, s48, v4")
    k.e("v_lshlrev_b32 v1, 10, v1")
    k.e("v_add_u32 v2, 7168, v1")
    k.e("v_add_u32 v1, v1, v7")
    k.e("v_xor_b32 v7, 64, v7")
    k.e("v_add_u32 v2, v2, v7")
    k.e("s_lshl_b32 s49, s26, 4")
    k.e("v_add_u32 v3, s49, v4")
    k.e("v_mul_u32_u24 v3, 3072, v3")
    k.e("v_and_b32 v6, 2, v4")
    k.e("v_lshlrev_b32 v6, 1, v6")
    k.e("v_xor_b32 v6, v5, v6")
    k.e("v_lshlrev_b32 v6, 4, v6")
    k.e(f"s_lshl_b32 s49, s{S_G}, 7")
    k.e("v_add3_u32 v3, v3, v6, s49")
    sk = k.u("nozero")
    k.e(f"s_cmp_eq_u32 s{S_RB}, 0")
    k.e(f"s_cbranch_scc0 {sk}")
    k.e("s_cmp_lt_u32 s26, 2")
    k.e(f"s_cbranch_scc0 {sk}")
    k.e(f"s_lshl_b32 s48, s{S_G}, 1")
    k.e("s_add_u32 s48, s48, s26")
    k.e("s_lshl_b32 s48, s48, 12")
    k.e(f"s_add_u32 s48, s48, {KVACC}")
    for j in range(4): k.e(f"v_mov_b32 v{12+j}, 0")
    k.e("v_lshlrev_b32 v8, 4, v0")
    for j in range(3): k.e(f"buffer_store_dwordx4 v[12:15], v8, {sr(SRD_WS,4)}, s48 offen offset:{j*1024} sc1")
    k.lab(sk)
    k.e("s_lshl_b32 s51, s26, 11")
    k.e("s_mov_b32 s57, 0")
    if OPT['rot'] == 8:
        k.e(f"s_and_b32 s59, s{S_G}, 3")
        k.e("s_lshl_b32 s59, s59, 1")
        k.e(f"s_add_u32 s59, s59, s{S_RB}")
        k.e("s_and_b32 s59, s59, 7")
    elif OPT['rot'] == 2:
        k.e(f"s_add_u32 s59, s{S_G}, s{S_RB}")
        k.e("s_and_b32 s59, s59, 1")
        k.e("s_lshl_b32 s59, s59, 2")
    else:
        k.e("s_mov_b32 s59, 0")
    lp = k.u("ldpro")
    k.lab(lp)
    issue_stage(k)
    k.e("s_cmp_lt_u32 s57, 2")
    k.e(f"s_cbranch_scc1 {lp}")
    k.e("s_waitcnt vmcnt(8)")
    k.e("s_barrier")
    issue_stage(k)
    k.e(f"v_mov_b32 v8, {NONCE_L}")
    k.e("ds_read_b32 v9, v8")
    k.e("s_waitcnt lgkmcnt(0)")
    k.e(f"v_readfirstlane_b32 s{S_NONCE}, v9")
    k.stamp(1)
    k.e("s_mov_b32 s48, 0")
    lp = k.u("ldloop")
    ls = stamps and OPT['ldstamps']
    if stamps:
        k.e("s_mov_b32 s86, 0"); k.e("s_mov_b32 s87, 0"); k.e("s_mov_b32 s88, 0")
    k.lab(lp)
    if ls:
        k.e("s_memtime s[90:91]"); k.e("s_waitcnt lgkmcnt(0)")
    k.e("s_waitcnt vmcnt(8)")
    if ls:
        k.e("s_memtime s[92:93]"); k.e("s_waitcnt lgkmcnt(0)")
    k.e("s_barrier")
    if ls:
        k.e("s_memtime s[94:95]"); k.e("s_waitcnt lgkmcnt(0)")
        k.e("s_sub_u32 s96, s92, s90"); k.e("s_add_u32 s86, s86, s96")
        k.e("s_sub_u32 s96, s94, s92"); k.e("s_add_u32 s87, s87, s96")
    sk = k.u("nosig")
    k.e("s_cmp_eq_u32 s48, 10")
    k.e(f"s_cbranch_scc0 {sk}")
    k.e("s_cmp_eq_u32 s26, 0")
    k.e(f"s_cbranch_scc0 {sk}")
    k.e(f"s_lshl_b32 s49, s{S_G}, 8")
    k.e(f"s_lshl_b32 s50, s{S_RB}, 2")
    k.e("s_add_u32 s49, s49, s50")
    k.e(f"s_add_u32 s49, s49, {F1B}")
    k.e(f"v_mov_b32 v8, s{S_NONCE}")
    k.e("v_mov_b32 v9, 0")
    k.e("s_mov_b64 exec, 1")
    k.e(f"buffer_store_dword v8, v9, {sr(SRD_WS,4)}, s49 offen sc1")
    k.e("s_mov_b64 exec, -1")
    k.lab(sk)
    if not OPT['nodma']: issue_stage(k)
    if ls:
        k.e("s_memtime s[96:97]"); k.e("s_waitcnt lgkmcnt(0)")
        k.e("s_sub_u32 s96, s96, s94"); k.e("s_add_u32 s88, s88, s96")
    k.e("s_add_u32 s48, s48, 1")
    k.e("s_cmp_lt_u32 s48, 13")
    k.e(f"s_cbranch_scc1 {lp}")
    k.e("s_waitcnt vmcnt(8)");  k.e("s_barrier")
    k.e("s_waitcnt vmcnt(0)");  k.e("s_barrier")
    k.e("s_barrier")
    k.e("s_barrier")
    if stamps: k.e("s_mov_b32 s74, s88")
    k.stamp(4)
    k.e(f"s_sub_u32 s48, s{S_RB}, 4")
    k.e("v_add_u32 v8, s48, v0")
    k.e("v_max_i32 v8, 0, v8")
    k.e("v_cmp_gt_u32 vcc, 4, v0")
    k.e("s_nop 1")
    k.e("v_cndmask_b32 v8, 0, v8, vcc")
    k.e("v_lshlrev_b32 v8, 2, v8")
    k.e(f"s_lshl_b32 s49, s{S_G}, 8")
    k.e(f"s_add_u32 s49, s49, {F1B}")
    k.e("v_add_u32 v8, s49, v8")
    poll_flags(k, 8, 9, "f1b")
    k.stamp(5)
    sk = k.u("norem")
    k.e(f"s_cmp_eq_u32 s{S_RB}, 0")
    k.e(f"s_cbranch_scc1 {sk}")
    k.e("v_lshlrev_b32 v8, 4, v0")
    k.e(f"s_lshl_b32 s48, s{S_G}, 2")
    k.e("s_add_u32 s48, s48, s26")
    k.e("s_lshl_b32 s48, s48, 6")
    k.e(f"s_lshl_b32 s49, s{S_RB}, 1")
    k.e("s_sub_u32 s49, s49, 8")
    for j in range(8):
        k.e(f"s_add_i32 s50, s49, {j}")
        k.e("s_max_i32 s50, s50, 0")
        k.e("s_add_u32 s50, s50, s48")
        k.e("s_lshl_b32 s50, s50, 10")
        k.e(f"s_add_u32 s51, s50, {VB_G}")
        if KB_G: k.e(f"s_add_u32 s50, s50, {KB_G}")
        k.e(f"buffer_load_dwordx4 {vr(16+4*j,4)}, v8, {sr(SRD_WS,4)}, s50 offen sc1")
        k.e(f"buffer_load_dwordx4 {vr(48+4*j,4)}, v8, {sr(SRD_WS,4)}, s51 offen sc1")
    k.e("s_mul_i32 s48, s26, 10240")
    k.e("v_add_u32 v9, s48, v8")
    for j in range(8):
        k.e(f"s_waitcnt vmcnt({14-2*j})")
        k.e(f"ds_write_b128 v9, {vr(16+4*j,4)} offset:{K_L + j*1024}")
        k.e(f"ds_write_b128 v9, {vr(48+4*j,4)} offset:{V_L + j*1024}")
    k.lab(sk)
    k.e("s_waitcnt lgkmcnt(0)")
    k.stamp(6)
    k.e("s_barrier")
    k.e("s_and_b32 s48, s2, 7")
    k.e("s_lshr_b32 s49, s2, 3")
    k.e("s_lshr_b32 s66, s48, 2")
    k.e("s_lshr_b32 s68, s49, 2")
    k.e("s_cmp_eq_u32 s66, 0")
    k.e(f"s_cselect_b32 s{SRD_WO}, s{P_AWO}, s{P_BWO}")
    k.e(f"s_cselect_b32 s{SRD_WO+1}, s{P_AWO+1}, s{P_BWO+1}")
    k.e(f"s_mov_b32 s{SRD_WO+2}, 0x{512*1024:x}")
    k.e(f"s_mov_b32 s{SRD_WO+3}, 0x20000")
    k.e("v_lshrrev_b32 v4, 3, v0")
    k.e("v_and_b32 v5, 7, v0")
    k.e("v_and_b32 v6, 2, v4")
    k.e("v_lshlrev_b32 v6, 1, v6")
    k.e("v_xor_b32 v6, v5, v6")
    k.e("v_lshlrev_b32 v6, 4, v6")
    k.e("s_lshl_b32 s48, s26, 7")
    k.e("v_add_u32 v4, s48, v4")
    k.e("v_lshlrev_b32 v4, 10, v4")
    k.e("s_lshl_b32 s48, s68, 7")
    k.e("v_add3_u32 v4, v4, v6, s48")
    k.e("s_lshl_b32 s48, s26, 14")
    k.e(f"s_add_u32 s48, s48, {WO_L}")
    k.e("s_mov_b32 s49, 0")
    for jj in range(8):
        k.e("s_mov_b32 m0, s48")
        k.e("s_add_u32 s50, s49, 7168")
        k.e(f"buffer_load_dwordx4 v4, {sr(SRD_WO,4)}, s49 offen lds")
        k.e(f"buffer_load_dwordx4 v4, {sr(SRD_WO,4)}, s50 offen offset:1024 lds")
        k.e("s_add_u32 s48, s48, 2048")
        k.e("s_add_u32 s49, s49, 16384")

    k.lab("L_attn")
    k.stamp(7)
    attention(k)
    k.stamp(9)
    apart(k)
    k.stamp(10)
    k.e("s_waitcnt vmcnt(0) lgkmcnt(0)")
    k.e("s_barrier")
    k.stamp(11)
    sk = k.u("nof2")
    k.e(f"s_cmp_eq_u32 s{S_WAVE}, 4")
    k.e(f"s_cbranch_scc0 {sk}")
    k.e(f"s_lshr_b32 s48, s{S_RB}, 1")
    k.e("s_lshl_b32 s48, s48, 8")
    k.e(f"s_and_b32 s49, s{S_RB}, 1")
    k.e("s_lshl_b32 s49, s49, 3")
    k.e(f"s_add_u32 s49, s49, s{S_G}")
    k.e("s_lshl_b32 s49, s49, 2")
    k.e("s_add_u32 s48, s48, s49")
    k.e(f"s_add_u32 s48, s48, {F2}")
    k.e(f"v_mov_b32 v8, s{S_NONCE}")
    k.e("v_mov_b32 v9, 0")
    k.e("s_mov_b64 exec, 1")
    k.e(f"buffer_store_dword v8, v9, {sr(SRD_WS,4)}, s48 offen sc1")
    k.e("s_mov_b64 exec, -1")
    k.lab(sk)
    k.e(f"s_cmp_ge_u32 s{S_WAVE}, 4")
    k.e("s_cbranch_scc1 L_fin")
    p3(k)
    k.lab("L_fin")
    if stamps:
        k.stamp(13)
        k.e(f"s_lshl_b32 s48, s2, 3")
        k.e(f"s_add_u32 s48, s48, s{S_WAVE}")
        k.e("s_lshl_b32 s48, s48, 6")
        k.e(f"s_add_u32 s48, s48, {STAMP}")
        k.e("v_mov_b32 v9, 0")
        for j in range(16):
            k.e(f"v_mov_b32 v8, s{72+j}")
            k.e(f"buffer_store_dword v8, v9, {sr(SRD_WS,4)}, s48 offen offset:{4*j}")
            k.e("s_nop 0")
    if stamps and OPT['tmax']:
        sk = k.u("notmax")
        k.e(f"s_cmp_ge_u32 s{S_WAVE}, 4")
        k.e(f"s_cbranch_scc1 {sk}")
        k.e("s_sub_u32 s48, s85, s72")
        k.e(f"s_cmp_gt_u32 s48, {OPT['tmax']}")
        k.e(f"s_cbranch_scc0 {sk}")
        k.e("s_waitcnt vmcnt(0)")
        srd(k, SRD_T, P_OUT, 4 << 20)
        k.e("v_mov_b32 v8, 0x7fc07fc0")
        k.e("v_lshlrev_b32 v2, 2, v0")
        k.e(f"buffer_store_dword v8, v2, {sr(SRD_T,4)}, 0 offen")
        k.lab(sk)
    if stamps and OPT['dbgstamps']:
        sk = k.u("nodbg")
        srd(k, SRD_T, P_DBG, 256)
        k.e("s_cmp_eq_u32 s2, 37")
        k.e(f"s_cbranch_scc0 {sk}")
        k.e(f"s_cmp_eq_u32 s{S_WAVE}, 0")
        k.e(f"s_cbranch_scc0 {sk}")
        k.e("v_mov_b32 v9, 0")
        for j in range(1, 14):
            k.e(f"s_sub_u32 s48, s{72+j}, s72")
            k.e("v_mov_b32 v8, s48")
            k.e(f"buffer_store_dword v8, v9, {sr(SRD_T,4)}, 0 offen offset:{4*j}")
            k.e("s_nop 0")
        k.lab(sk)
    k.lab("L_end")
    k.e("s_endpgm")
    return k

AQ_, AKF, AS, AMD, AMF, ACN, AP, AVB, AO = 4, 8, [44, 60, 76], 92, 108, 124, 140, [148, 156], 176
AM, AT, AKA, AVA = 192, 193, 196, 197
VMASK = 0x0000FFFF0000FFFF

def v_reads(k, buf, vaddr, off):
    k.e("s_mov_b64 exec, s[64:65]")
    k.e(f"ds_read_b128 {vr(AVB[buf],4)}, v{vaddr} offset:{off}")
    k.e(f"ds_read_b128 {vr(AVB[buf]+4,4)}, v{vaddr} offset:{off+512}")
    k.e("s_mov_b64 exec, -1")

def attention(k):
    k.c("attention: i = w&1 (s26), hh = w>>1 (s27)")
    k.e(f"s_and_b32 s26, s{S_WAVE}, 1")
    k.e(f"s_lshr_b32 s27, s{S_WAVE}, 1")
    k.e(f"s_lshl_b32 s48, s{S_RB}, 1")
    k.e("s_add_u32 s48, s48, s26")
    k.e("v_lshlrev_b32 v1, 4, v0")
    k.e("s_lshl_b32 s49, s27, 11")
    k.e("s_lshl_b32 s50, s26, 10")
    k.e("s_add_u32 s49, s49, s50")
    k.e(f"s_add_u32 s49, s49, {Q_L}")
    k.e("v_add_u32 v2, s49, v1")
    k.e(f"ds_read_b128 {vr(AQ_,4)}, v2")
    k.e("s_mul_i32 s49, s27, 10240")
    k.e("s_add_u32 s49, s49, s50")
    k.e(f"v_add_u32 v{AKA}, s49, v1")
    k.e("v_lshrrev_b32 v2, 5, v0")
    k.e("v_lshlrev_b32 v2, 8, v2")
    k.e("v_and_b32 v3, 15, v0")
    k.e("v_lshlrev_b32 v3, 4, v3")
    k.e(f"s_add_u32 s49, s49, {V_L}")
    k.e(f"v_add3_u32 v{AVA}, v2, v3, s49")
    k.e("s_mov_b32 s64, 0xffff")
    k.e("s_mov_b32 s65, 0xffff")
    k.e("v_and_b32 v2, 31, v0")
    k.e("v_lshrrev_b32 v3, 5, v0")
    k.e("v_lshlrev_b32 v3, 2, v3")
    k.e("v_sub_u32 v2, v2, v3")
    k.e("v_cvt_f32_i32 v2, v2")
    k.e(f"v_mov_b32 v3, {lit(BIG)}")
    short = k.u("short"); done = k.u("attdone")
    k.e("s_cmp_lt_u32 s48, 8")
    k.e(f"s_cbranch_scc1 {short}")
    for p in range(9): k.e(f"ds_read_b128 {vr(AKF+4*p,4)}, v{AKA} offset:{K_L + p*1024}")
    for i in range(16):
        ci = 8*(i >> 2) + (i & 3)
        k.e(f"v_fmaak_f32 v{AMD+i}, v2, v3, {lit((0.5-ci)*BIG)}")
    for i in range(16): k.e(f"v_min_f32 v{AMF+i}, -v{AMD+i}, 0")
    for i in range(16): k.e(f"v_min_f32 v{AMD+i}, 0, v{AMD+i}")
    for b in range(2):
        for j in range(8): k.e(f"v_mov_b32 v{AVB[b]+j}, 0x3f803f80")
    k.e(f"v_mov_b32 v{AM}, 0xff7fffff")
    k.e("s_waitcnt lgkmcnt(0)")
    Q = vr(AQ_, 4)
    def qk(dst, p, c): k.e(f"v_mfma_f32_32x32x16_bf16 {vr(dst,16)}, {vr(AKF+4*p,4)}, {Q}, {c}")
    qk(AS[0], 0, vr(AMF,16)); qk(AS[1], 1, "0"); qk(AS[2], 2, "0")
    v_reads(k, 0, AVA, 0)
    k.e("s_nop 5")
    for p in range(9):
        s = AS[p % 3]
        for j in range(8): k.e(f"v_max3_f32 v{AM}, v{s+2*j}, v{s+2*j+1}, v{AM}")
        if p + 3 <= 8: qk(s, p + 3, vr(AMD,16) if p + 3 == 8 else "0")
    k.e(f"v_mov_b32 v{AT}, v{AM}")
    k.e("s_nop 1")
    k.e(f"v_permlane32_swap_b32 v{AM}, v{AT}")
    k.e(f"v_max_f32 v{AM}, v{AM}, v{AT}")
    k.e(f"v_sub_f32 v{AM}, 0, v{AM}")
    for i in range(16): k.e(f"v_add_f32 v{AMF+i}, v{AMF+i}, v{AM}")
    for i in range(16): k.e(f"v_mov_b32 v{ACN+i}, v{AM}")
    k.e("s_nop 0")
    qk(AS[0], 0, vr(AMF,16))
    for i in range(16): k.e(f"v_add_f32 v{AMD+i}, v{AMD+i}, v{AM}")
    for p in range(9):
        cur = AS[p % 2]; nxt = AS[(p + 1) % 2]
        if p < 8:
            qk(nxt, p + 1, vr(AMD,16) if p + 1 == 8 else vr(ACN,16))
            v_reads(k, (p + 1) % 2, AVA, (p + 1) * 1024)
        for j in range(16): k.e(f"v_exp_f32 v{cur+j}, v{cur+j}")
        for j in range(8): k.e(f"v_cvt_pk_bf16_f32 v{AP+j}, v{cur+2*j}, v{cur+2*j+1}")
        k.e(f"s_waitcnt lgkmcnt({2 if p < 8 else 0})")
        vb = AVB[p % 2]
        k.e(f"v_mfma_f32_32x32x16_bf16 {vr(AO,16)}, {vr(vb,4)}, {vr(AP,4)}, {'0' if p == 0 else vr(AO,16)}")
        k.e("s_nop 0")
        k.e(f"v_mfma_f32_32x32x16_bf16 {vr(AO,16)}, {vr(vb+4,4)}, {vr(AP+4,4)}, {vr(AO,16)}")
    k.e(f"s_branch {done}")
    k.lab(short)
    for i in range(16):
        ci = 8*(i >> 2) + (i & 3)
        k.e(f"v_fmaak_f32 v{AMD+i}, v2, v3, {lit((0.5-ci)*BIG)}")
    for i in range(16): k.e(f"v_min_f32 v{AMD+i}, 0, v{AMD+i}")
    for j in range(8): k.e(f"v_mov_b32 v{AVB[0]+j}, 0x3f803f80")
    for i in range(16): k.e(f"v_mov_b32 v{AO+i}, 0")
    k.e(f"v_mov_b32 v{AM}, 0xff7fffff")
    k.e("s_sub_u32 s49, 8, s48")
    k.e("s_lshl_b32 s50, s49, 10")
    k.e(f"v_add_u32 v{AKA}, s50, v{AKA}")
    k.e(f"v_add_u32 v{AVA}, s50, v{AVA}")
    k.e(f"v_mov_b32 v{AT+1}, v{AKA}")
    S = AS[0]; KT = AKF
    l1 = k.u("s1"); l1e = k.u("s1e")
    k.e("s_mov_b32 s51, s49")
    k.lab(l1)
    k.e("s_cmp_lt_u32 s51, 8")
    k.e(f"s_cbranch_scc0 {l1e}")
    k.e(f"ds_read_b128 {vr(KT,4)}, v{AKA}")
    k.e("s_waitcnt lgkmcnt(0)")
    k.e(f"v_mfma_f32_32x32x16_bf16 {vr(S,16)}, {vr(KT,4)}, {Q}, 0")
    k.e(f"v_add_u32 v{AKA}, 1024, v{AKA}")
    k.e("s_add_u32 s51, s51, 1")
    k.e("s_nop 10")
    for j in range(8): k.e(f"v_max3_f32 v{AM}, v{S+2*j}, v{S+2*j+1}, v{AM}")
    k.e(f"s_branch {l1}")
    k.lab(l1e)
    k.e(f"ds_read_b128 {vr(KT,4)}, v{AKA}")
    k.e("s_waitcnt lgkmcnt(0)")
    k.e(f"v_mfma_f32_32x32x16_bf16 {vr(S,16)}, {vr(KT,4)}, {Q}, {vr(AMD,16)}")
    k.e("s_nop 11")
    for j in range(8): k.e(f"v_max3_f32 v{AM}, v{S+2*j}, v{S+2*j+1}, v{AM}")
    k.e(f"v_mov_b32 v{AT}, v{AM}")
    k.e("s_nop 1")
    k.e(f"v_permlane32_swap_b32 v{AM}, v{AT}")
    k.e(f"v_max_f32 v{AM}, v{AM}, v{AT}")
    k.e(f"v_sub_f32 v{AM}, 0, v{AM}")
    for i in range(16): k.e(f"v_add_f32 v{AMD+i}, v{AMD+i}, v{AM}")
    for i in range(16): k.e(f"v_mov_b32 v{ACN+i}, v{AM}")
    k.e(f"v_mov_b32 v{AKA}, v{AT+1}")
    l2 = k.u("s2"); l2e = k.u("s2e")
    def tile2(cregs):
        k.e(f"ds_read_b128 {vr(KT,4)}, v{AKA}")
        v_reads(k, 0, AVA, 0)
        k.e("s_waitcnt lgkmcnt(0)")
        k.e(f"v_mfma_f32_32x32x16_bf16 {vr(S,16)}, {vr(KT,4)}, {Q}, {cregs}")
        k.e(f"v_add_u32 v{AKA}, 1024, v{AKA}")
        k.e(f"v_add_u32 v{AVA}, 1024, v{AVA}")
        k.e("s_add_u32 s51, s51, 1")
        k.e("s_nop 9")
        for j in range(16): k.e(f"v_exp_f32 v{S+j}, v{S+j}")
        for j in range(8): k.e(f"v_cvt_pk_bf16_f32 v{AP+j}, v{S+2*j}, v{S+2*j+1}")
        k.e("s_nop 1")
        k.e(f"v_mfma_f32_32x32x16_bf16 {vr(AO,16)}, {vr(AVB[0],4)}, {vr(AP,4)}, {vr(AO,16)}")
        k.e(f"v_mfma_f32_32x32x16_bf16 {vr(AO,16)}, {vr(AVB[0]+4,4)}, {vr(AP+4,4)}, {vr(AO,16)}")
    k.e("s_mov_b32 s51, s49")
    k.lab(l2)
    k.e("s_cmp_lt_u32 s51, 8")
    k.e(f"s_cbranch_scc0 {l2e}")
    tile2(vr(ACN,16))
    k.e(f"s_branch {l2}")
    k.lab(l2e)
    tile2(vr(AMD,16))
    k.lab(done)
    k.e("s_nop 11")
    k.e(f"v_rcp_f32 v{AT}, v{AO+8}")
    k.e("s_nop 0")
    for j in range(8): k.e(f"v_mul_f32 v{AO+j}, v{AO+j}, v{AT}")
    cvt8(k, AP, AO)
    k.e(f"s_lshl_b32 s49, s{S_G}, 2")
    k.e("s_add_u32 s49, s49, s27")
    k.e("s_lshl_b32 s50, s48, 5")
    k.e("s_add_u32 s49, s49, s50")
    k.e("s_lshl_b32 s49, s49, 10")
    k.e(f"s_add_u32 s49, s49, {O_G + (2<<20)}")
    k.e(f"buffer_store_dwordx4 {vr(AP,4)}, v1, {sr(SRD_WS,4)}, s49 offen sc1")

def apart(k):
    sk = k.u("noapart")
    k.e(f"s_cmp_ge_u32 s{S_WAVE}, 4")
    k.e(f"s_cbranch_scc1 {sk}")
    sk2 = k.u("nosigA")
    k.e("s_cmp_eq_u32 s26, 0")
    k.e(f"s_cbranch_scc0 {sk2}")
    k.e("s_waitcnt vmcnt(0)")
    k.e(f"s_lshl_b32 s48, s{S_G}, 8")
    k.e(f"s_lshl_b32 s49, s{S_RB}, 1")
    k.e("s_add_u32 s49, s49, s27")
    k.e("s_lshl_b32 s49, s49, 2")
    k.e("s_add_u32 s48, s48, s49")
    k.e(f"s_add_u32 s48, s48, {F1A}")
    k.e(f"v_mov_b32 v8, s{S_NONCE}")
    k.e("v_mov_b32 v9, 0")
    k.e("s_mov_b64 exec, 1")
    k.e(f"buffer_store_dword v8, v9, {sr(SRD_WS,4)}, s48 offen sc1")
    k.e("s_mov_b64 exec, -1")
    k.lab(sk2)
    k.e(f"s_lshl_b32 s48, s{S_G}, 8")
    k.e(f"s_add_u32 s48, s48, {F1A}")
    k.e("v_lshlrev_b32 v8, 2, v0")
    k.e("v_add_u32 v8, s48, v8")
    poll_flags(k, 8, 9, "f1a")
    k.e(f"s_lshl_b32 s48, s{S_G}, 1")
    k.e("s_add_u32 s48, s48, s27")
    k.e("s_lshl_b32 s48, s48, 12")
    k.e(f"s_add_u32 s48, s48, {KVACC}")
    k.e("v_lshrrev_b32 v2, 5, v0")
    k.e("v_and_b32 v3, 15, v0")
    k.e("v_lshlrev_b32 v4, 5, v2")
    k.e("v_add_u32 v4, v4, v3")
    k.e("v_lshlrev_b32 v4, 2, v4")
    k.e("v_lshlrev_b32 v5, 4, v2")
    k.e("s_mov_b32 s64, 0xffff")
    k.e("s_mov_b32 s65, 0xffff")
    KVR = [8, 16]
    for hb in range(2):
        k.e("s_mov_b64 exec, s[64:65]")
        for t in range(8):
            k.e(f"buffer_load_dword v{KVR[hb]+t}, v4, {sr(SRD_WS,4)}, s48 offen offset:{t*256 + hb*64} sc1")
        k.e("s_not_b64 exec, s[64:65]")
        k.e(f"buffer_load_dwordx4 {vr(KVR[hb],4)}, v5, {sr(SRD_WS,4)}, s48 offen offset:{2048 + hb*64} sc1")
        k.e(f"buffer_load_dwordx4 {vr(KVR[hb]+4,4)}, v5, {sr(SRD_WS,4)}, s48 offen offset:{2048 + hb*64 + 32} sc1")
    k.e("s_mov_b64 exec, -1")
    k.e("s_waitcnt vmcnt(0)")
    AOP = [24, 28]; D = [32, 48]
    for hb in range(2): cvt8(k, AOP[hb], KVR[hb])
    k.e("s_nop 1")
    for hb in range(2):
        k.e(f"v_mfma_f32_32x32x16_bf16 {vr(D[hb],16)}, {vr(AOP[hb],4)}, {vr(PQ+4*hb,4)}, 0")
    k.e(f"s_mov_b32 s62, {lit(1e-6)}")
    k.e("s_nop 10")
    for hb in range(2):
        k.e(f"v_add_f32 v{64+hb}, s62, v{D[hb]+8}")
    for hb in range(2):
        k.e(f"v_rcp_f32 v{64+hb}, v{64+hb}")
    k.e("s_nop 0")
    for hb in range(2):
        for j in range(8): k.e(f"v_mul_f32 v{D[hb]+j}, v{D[hb]+j}, v{64+hb}")
        cvt8(k, 68+4*hb, D[hb])
    k.e(f"s_lshl_b32 s48, s{S_RB}, 1")
    k.e("s_add_u32 s48, s48, s26")
    k.e("s_lshl_b32 s48, s48, 5")
    k.e(f"s_lshl_b32 s49, s{S_G}, 2")
    k.e("s_add_u32 s48, s48, s49")
    k.e("s_lshl_b32 s49, s27, 1")
    k.e("s_add_u32 s48, s48, s49")
    k.e("s_lshl_b32 s48, s48, 10")
    k.e(f"s_add_u32 s48, s48, {O_G}")
    k.e("v_lshlrev_b32 v1, 4, v0")
    k.e(f"buffer_store_dwordx4 {vr(68,4)}, v1, {sr(SRD_WS,4)}, s48 offen sc1")
    k.e(f"buffer_store_dwordx4 {vr(72,4)}, v1, {sr(SRD_WS,4)}, s48 offen offset:1024 sc1")
    k.lab(sk)

def p3(k):
    k.c("P3: out tile 128x64")
    k.e("s_and_b32 s48, s2, 7")
    k.e("s_lshr_b32 s49, s2, 3")
    k.e("s_lshr_b32 s66, s48, 2")
    k.e("s_and_b32 s67, s48, 3")
    k.e("s_lshl_b32 s67, s67, 2")
    k.e("s_and_b32 s50, s49, 3")
    k.e("s_add_u32 s67, s67, s50")
    k.e("s_lshr_b32 s68, s49, 2")
    k.e("s_lshl_b32 s48, s67, 8")
    k.e(f"s_add_u32 s48, s48, {F2}")
    k.e("v_and_b32 v8, 15, v0")
    k.e("v_lshlrev_b32 v8, 2, v8")
    k.e("v_add_u32 v8, s48, v8")
    poll_flags(k, 8, 9, "f2")
    k.stamp(12)
    OF, ACC, WF = 8, 136, [168, 176]
    VA0, VA1 = 184, 185
    k.e("s_lshl_b32 s48, s67, 2")
    k.e(f"s_add_u32 s48, s48, s{S_WAVE}")
    k.e("s_lshl_b32 s49, s48, 15")
    k.e("s_lshl_b32 s50, s66, 21")
    k.e("s_add_u32 s49, s49, s50")
    k.e(f"s_add_u32 s49, s49, {O_G}")
    k.e("v_lshlrev_b32 v1, 4, v0")
    for hd in range(32):
        k.e(f"buffer_load_dwordx4 {vr(OF+4*hd,4)}, v1, {sr(SRD_WS,4)}, s49 offen offset:{(hd%4)*1024} sc1")
        if hd % 4 == 3 and hd < 31: k.e("s_add_u32 s49, s49, 4096")
    k.e("v_bfe_u32 v2, v0, 2, 2")
    k.e("v_and_b32 v3, 3, v0")
    k.e("v_bfe_u32 v4, v0, 4, 1")
    k.e("v_lshrrev_b32 v5, 5, v0")
    k.e("v_lshlrev_b32 v5, 2, v5")
    k.e("v_add_u32 v5, v5, v2")
    k.e("v_lshlrev_b32 v5, 7, v5")
    k.e("v_and_b32 v6, 1, v3")
    k.e("v_lshlrev_b32 v6, 1, v6")
    k.e("v_add_u32 v6, v6, v4")
    k.e("v_and_b32 v7, 2, v2")
    k.e("v_lshlrev_b32 v7, 1, v7")
    k.e("v_xor_b32 v6, v6, v7")
    k.e("v_lshlrev_b32 v6, 4, v6")
    k.e("v_lshrrev_b32 v3, 1, v3")
    k.e("v_lshlrev_b32 v3, 3, v3")
    k.e("v_add3_u32 v5, v5, v6, v3")
    k.e(f"v_add_u32 v{VA0}, {WO_L}, v5")
    k.e(f"v_xor_b32 v{VA1}, 64, v{VA0}")
    def wreads(buf, hd):
        for b in range(2):
            for s2 in range(2):
                k.e(f"ds_read_b64_tr_b16 {vr(WF[buf]+4*b+2*s2,2)}, v{VA0+b} offset:{hd*2048 + s2*1024}")
    wreads(0, 0)
    for hd in range(32):
        if hd < 31: wreads((hd + 1) % 2, hd + 1)
        k.e(f"s_waitcnt vmcnt({31-hd}) lgkmcnt({4 if hd < 31 else 0})")
        for b in range(2):
            k.e(f"v_mfma_f32_32x32x16_bf16 {vr(ACC+16*b,16)}, {vr(WF[hd%2]+4*b,4)}, {vr(OF+4*hd,4)}, {'0' if hd == 0 else vr(ACC+16*b,16)}")
    srd(k, SRD_T, P_OUT, 4 << 20)
    k.e("v_and_b32 v2, 31, v0")
    k.e("s_lshl_b32 s49, s48, 5")
    k.e("v_add_u32 v2, s49, v2")
    k.e("v_lshlrev_b32 v2, 11, v2")
    k.e("v_lshrrev_b32 v3, 5, v0")
    k.e("v_lshlrev_b32 v3, 5, v3")
    k.e("s_lshl_b32 s49, s66, 10")
    k.e("s_lshl_b32 s50, s68, 7")
    k.e("s_add_u32 s49, s49, s50")
    k.e("v_add3_u32 v2, v2, v3, s49")
    k.e("s_nop 3")
    for b in range(2):
        for j in range(8): k.e(f"v_cvt_pk_bf16_f32 v{8+8*b+j}, v{ACC+16*b+2*j}, v{ACC+16*b+2*j+1}")
    for b in range(2):
        k.e(f"buffer_store_dwordx4 {vr(8+8*b,4)}, v2, {sr(SRD_T,4)}, 0 offen offset:{64*b}")
        k.e(f"buffer_store_dwordx4 {vr(12+8*b,4)}, v2, {sr(SRD_T,4)}, 0 offen offset:{64*b+16}")

HDR = """; Kernarg layout for this problem (72 bytes, ptrs only, base s[0:1]):
;   offset   0: d_in[0] A_x  shape=(1, 2048, 512) dtype=bfloat16
;   offset   8: d_in[1] A_wqkv  shape=(512, 1536) dtype=bfloat16
;   offset  16: d_in[2] A_wo  shape=(512, 512) dtype=bfloat16
;   offset  24: d_in[3] B_x  shape=(1, 2048, 512) dtype=bfloat16
;   offset  32: d_in[4] B_wqkv  shape=(512, 1536) dtype=bfloat16
;   offset  40: d_in[5] B_wo  shape=(512, 512) dtype=bfloat16
;   offset  48: d_out     shape=(1, 2048, 1024) dtype=bfloat16
;   offset  56: d_debug   256 bytes
;   offset  64: d_ws      268435456 bytes workspace
; @launch grid=(256,1,1) block=(512,1,1) lds=163840
.amdgcn_target "amdgcn-amd-amdhsa--gfx950"
.text
.globl KNAME
.p2align 8
.type KNAME,@function
""".replace("KNAME", KNAME)

TAIL = """.section .rodata,"a"
.p2align 6
.amdhsa_kernel KNAME
  .amdhsa_next_free_vgpr 256
  .amdhsa_next_free_sgpr 102
  .amdhsa_accum_offset 256
  .amdhsa_group_segment_fixed_size 0
  .amdhsa_kernarg_size 72
  .amdhsa_user_sgpr_count 2
  .amdhsa_user_sgpr_kernarg_segment_ptr 1
  .amdhsa_system_sgpr_workgroup_id_x 1
.end_amdhsa_kernel
""".replace("KNAME", KNAME)

def build(stamps=False):
    k = gen(stamps)
    body = "\n".join(k.L)
    body = body.replace("PF_BACK", f"((L_pc - {KNAME}) & 0xffffff00)")
    pad = "\n    .fill 4096, 4, 0xbf800000\n"
    return HDR + body + pad + "\n" + TAIL

if __name__ == "__main__":
    out = sys.argv[1] if len(sys.argv) > 1 else "out.s"
    stamps = "stamps" in sys.argv[2:]
    for a in sys.argv[2:]:
        if "=" in a:
            kk, vv = a.split("="); OPT[kk] = int(vv)
    txt = build(stamps)
    open(out, "w").write(txt)
    import hz
    pr = hz.check(txt)
    print("hazards:", len(pr), "lines:", txt.count("\n"))
```

```python
import sys, math, struct

KNAME = "concat_heads__linear_attn_block__sliding_block__prompt_kernel"

KB_G   = 0
VB_G   = 2 << 20
O_G    = 4 << 20
KVACC  = 8 << 20
FL     = (8 << 20) + (64 << 10)
F1B    = FL
F1A    = FL + 4096
F2     = FL + 8192
STAMP  = 9 << 20
SLOT   = 32768
OK_L, OV_L, Q_L, PQ_L = 131072, 139264, 147456, 155648
NONCE_L = PQ_L
RK_L, RV_L, WO_L = 0, 32768, 65536
CS = 0.25 * math.log2(math.e)
LOG2E = math.log2(math.e)
BIG = 1.0e28
SPIN_MAX = 100000
OPT = dict(rot=0, pfB=0, pfA=1, dbgstamps=0, stagest=0, pfs=1, tpf=1)

def f2u(x): return struct.unpack('<I', struct.pack('<f', x))[0]
def lit(x): return "0x%08x" % f2u(x)

class K:
    def __init__(self, stamps=False):
        self.L = []; self.stamps = stamps; self.uid = 0
    def e(self, s): self.L.append("    " + s)
    def c(self, s): self.L.append("    ; " + s)
    def lab(self, s): self.L.append(s + ":")
    def u(self, p):
        self.uid += 1; return f"L_{p}_{self.uid}"
    def stamp(self, k):
        if not self.stamps: return
        self.e("s_memrealtime s[70:71]")
        self.e("s_waitcnt lgkmcnt(0)")
        self.e(f"s_mov_b32 s{72+k}, s70")

def vr(a, n): return f"v[{a}:{a+n-1}]"
def sr(a, n): return f"s[{a}:{a+n-1}]"
MF = "v_mfma_f32_32x32x16_bf16"

S_WAVE, S_RB, S_G, S_NONCE = 22, 23, 24, 25
SRD_WS, SRD_X, SRD_W, SRD_T, SRD_WO = 28, 32, 36, 40, 44
P_AX, P_AW, P_AWO, P_BX, P_BW, P_BWO, P_OUT, P_DBG, P_WS = 4, 6, 8, 10, 12, 14, 16, 18, 20
WS = sr(SRD_WS, 4)

def srd(k, dst, ptr, size):
    k.e(f"s_mov_b32 s{dst}, s{ptr}")
    k.e(f"s_mov_b32 s{dst+1}, s{ptr+1}")
    k.e(f"s_mov_b32 s{dst+2}, 0x{size:x}")
    k.e(f"s_mov_b32 s{dst+3}, 0x20000")

def spin_guard(k, sreg, exit_label):
    k.e(f"s_add_u32 s{sreg}, s{sreg}, 1")
    k.e(f"s_cmp_gt_u32 s{sreg}, {SPIN_MAX}")
    k.e(f"s_cbranch_scc1 {exit_label}")

def poll_flags(k, vaddr, vtmp, name, first_issued=False, sleep=1):
    lp = k.u(name + "_poll"); ex = k.u(name + "_done"); chk = k.u(name + "_chk")
    k.e("s_mov_b32 s60, 0")
    if first_issued: k.e(f"s_branch {chk}")
    k.lab(lp)
    k.e(f"buffer_load_dword v{vtmp}, v{vaddr}, {WS}, 0 offen sc1")
    k.lab(chk)
    spin_guard(k, 60, ex)
    k.e("s_waitcnt vmcnt(0)")
    k.e(f"v_cmp_ne_u32 vcc, s{S_NONCE}, v{vtmp}")
    k.e("s_nop 1")
    k.e(f"s_cbranch_vccz {ex}")
    if sleep: k.e(f"s_sleep {sleep}")
    k.e(f"s_branch {lp}")
    k.lab(ex)
    k.e("s_waitcnt vmcnt(0)")

def store_flag(k, soff):
    k.e(f"v_mov_b32 v250, s{S_NONCE}")
    k.e("v_mov_b32 v251, 0")
    k.e("s_mov_b64 exec, 1")
    k.e(f"buffer_store_dword v250, v251, {WS}, s{soff} offen sc1")
    k.e("s_mov_b64 exec, -1")

def cvt8(k, dst, src):
    for j in range(4): k.e(f"v_cvt_pk_bf16_f32 v{dst+j}, v{src+2*j}, v{src+2*j+1}")

def phi(k, r, n, t):
    for i in range(0, n, 4):
        for j in range(4): k.e(f"v_mul_f32 v{t+j}, s61, v{r+i+j}")
        for j in range(4): k.e(f"v_exp_f32 v{t+j}, v{t+j} clamp")
        for j in range(4): k.e(f"v_max_f32 v{r+i+j}, 0, v{r+i+j}")
        for j in range(4): k.e(f"v_add_f32 v{r+i+j}, s62, v{r+i+j}")
        for j in range(4): k.e(f"v_add_f32 v{r+i+j}, v{t+j}, v{r+i+j}")

ACC = 8
BUF = [72, 88, 104, 120]
VXA, VWA = 136, 140
EP = 144
PFD = 208

def rd_x(k, buf, j, t): k.e(f"ds_read_b128 {vr(BUF[buf]+4*t,4)}, v{VXA+j} offset:{t*4096}")
def rd_w(k, buf, j, p, slot):
    for s2 in range(2):
        k.e(f"ds_read_b64_tr_b16 {vr(BUF[buf]+8+4*slot+2*s2,2)}, v{VWA} offset:{p*8192 + j*2048 + s2*512}")
def reads(k, role, buf, j):
    rd_x(k, buf, j, 0); rd_x(k, buf, j, 1)
    if role == 'kv': rd_w(k, buf, j, 1, 0); rd_w(k, buf, j, 2, 1)
    else: rd_w(k, buf, j, 0, 0)

def kstep(k, role, br, j, first=False):
    nb = (j + 2) & 3; b = BUF[j]
    X = [vr(b,4), vr(b+4,4)]; W = [vr(b+8,4), vr(b+12,4)]
    def C(a): return "0" if first else vr(a,16)
    if role == 'kv':
        k.e("s_waitcnt lgkmcnt(6)")
        for t in range(2):
            a = ACC + 16*t
            if br == 'B': k.e(f"{MF} {vr(a,16)}, {W[0]}, {X[t]}, {C(a)}")
            else:         k.e(f"{MF} {vr(a,16)}, {X[t]}, {W[0]}, {C(a)}")
            if t == 0: rd_x(k, nb, nb, 0); rd_x(k, nb, nb, 1)
            else: rd_w(k, nb, nb, 1, 0)
        for t in range(2):
            a = ACC + 32 + 16*t
            k.e(f"{MF} {vr(a,16)}, {X[t]}, {W[1]}, {C(a)}")
            if t == 0: rd_w(k, nb, nb, 2, 1)
    else:
        k.e("s_waitcnt lgkmcnt(4)")
        for t in range(2):
            a = ACC + 16*t
            k.e(f"{MF} {vr(a,16)}, {W[0]}, {X[t]}, {C(a)}")
            if t == 0: rd_x(k, nb, nb, 0); rd_x(k, nb, nb, 1)
            else: rd_w(k, nb, nb, 0, 0)

def consumer_tile(k, role, br, extra=None):
    lp = k.u("c"+role+br); ex = k.u("cx"+role+br)
    k.e("s_mov_b32 s48, 0")
    kstep(k, role, br, 0, first=True)
    k.lab(lp)
    k.e("s_add_u32 s49, s49, 1")
    k.e("s_and_b32 s50, s49, 3")
    k.e("s_cmp_eq_u32 s50, 0")
    k.e(f"s_cselect_b32 s50, 0x{(-3*SLOT) & 0xffffffff:x}, s69")
    kstep(k, role, br, 1)
    if extra: extra(k)
    if br == 'A':
        sk = k.u("novm")
        k.e("s_cmp_eq_u32 s48, 2")
        k.e(f"s_cbranch_scc0 {sk}")
        k.e("s_waitcnt vmcnt(0)")
        k.lab(sk)
    for j in range(4): k.e(f"v_add_u32 v{VXA+j}, s50, v{VXA+j}")
    k.e(f"v_add_u32 v{VWA}, s50, v{VWA}")
    k.e("s_barrier")
    kstep(k, role, br, 2)
    kstep(k, role, br, 3)
    k.e("s_add_u32 s48, s48, 1")
    k.e("s_cmp_lt_u32 s48, 8")
    k.e(f"s_cbranch_scc0 {ex}")
    kstep(k, role, br, 0)
    k.e(f"s_branch {lp}")
    k.lab(ex)

def consumer_setup(k):
    k.e("v_and_b32 v1, 31, v0")
    k.e("v_lshrrev_b32 v2, 5, v0")
    k.e("v_bfe_u32 v3, v0, 1, 3")
    k.e("v_xor_b32 v3, v3, v2")
    k.e("v_lshlrev_b32 v3, 4, v3")
    k.e("v_lshlrev_b32 v1, 7, v1")
    k.e(f"v_add_u32 v{VXA}, v1, v3")
    for j in range(1, 4): k.e(f"v_xor_b32 v{VXA+j}, {j<<5}, v{VXA}")
    k.e("v_bfe_u32 v1, v0, 2, 2")
    k.e("v_and_b32 v2, 3, v0")
    k.e("v_bfe_u32 v3, v0, 4, 1")
    k.e("v_lshrrev_b32 v4, 5, v0")
    k.e("v_lshlrev_b32 v4, 3, v4")
    k.e("v_add_u32 v4, v4, v1")
    k.e("v_lshlrev_b32 v4, 7, v4")
    k.e("v_lshlrev_b32 v3, 1, v3")
    k.e("v_lshrrev_b32 v5, 1, v2")
    k.e("v_add_u32 v3, v3, v5")
    k.e("s_lshl_b32 s48, s27, 2")
    k.e("v_add_u32 v3, s48, v3")
    k.e("v_and_b32 v5, 2, v1")
    k.e("v_lshlrev_b32 v5, 1, v5")
    k.e("v_xor_b32 v3, v3, v5")
    k.e("v_lshlrev_b32 v3, 4, v3")
    k.e("v_and_b32 v2, 1, v2")
    k.e("v_lshlrev_b32 v2, 3, v2")
    k.e("v_add3_u32 v4, v4, v3, v2")
    k.e(f"v_add_u32 v{VWA}, 8192, v4")

def read_nonce(k, va, vb):
    k.e(f"v_mov_b32 v{va}, {NONCE_L}")
    k.e(f"ds_read_b32 v{vb}, v{va}")
    k.e("s_waitcnt lgkmcnt(0)")
    k.e(f"v_readfirstlane_b32 s{S_NONCE}, v{vb}")

def pf_setup(k, pw, px):
    k.e("s_and_b32 s50, s2, 7")
    k.e("s_lshr_b32 s51, s2, 3")
    k.e("v_lshrrev_b32 v5, 2, v0")
    k.e("s_lshl_b32 s52, s51, 4")
    k.e("v_add_u32 v5, s52, v5")
    k.e("v_mul_u32_u24 v5, 3072, v5")
    k.e("v_and_b32 v6, 3, v0")
    k.e("s_lshr_b32 s52, s50, 2")
    k.e("s_lshl_b32 s52, s52, 2")
    k.e("v_add_u32 v6, s52, v6")
    k.e("v_lshlrev_b32 v6, 7, v6")
    k.e("v_add_u32 v5, v5, v6")
    k.e("v_lshlrev_b32 v6, 7, v0")
    k.e("s_and_b32 s52, s50, 3")
    k.e("s_lshl_b32 s52, s52, 9")
    k.e("s_lshl_b32 s53, s51, 4")
    k.e("s_add_u32 s52, s52, s53")
    k.e("s_lshl_b32 s66, s52, 10")
    k.e("s_lshl_b32 s67, s51, 14")
    k.e("s_lshr_b32 s68, s50, 2")

def gen(stamps=False):
    k = K(stamps)
    k.lab(KNAME)
    k.e("s_cmp_ge_u32 s2, 256")
    k.e("s_cbranch_scc1 L_end")
    if stamps: k.e("s_memrealtime s[70:71]")
    k.e("s_load_dwordx16 s[4:19], s[0:1], 0")
    k.e("s_load_dwordx2 s[20:21], s[0:1], 64")
    k.e("v_lshrrev_b32 v1, 6, v0")
    k.e("v_and_b32 v0, 63, v0")
    k.e(f"v_readfirstlane_b32 s{S_WAVE}, v1")
    k.e("s_and_b32 s26, s2, 7")
    k.e("s_lshr_b32 s27, s2, 3")
    k.e("s_and_b32 s48, s26, 3")
    k.e("s_lshl_b32 s48, s48, 3")
    k.e("s_and_b32 s49, s27, 7")
    k.e(f"s_add_u32 s{S_RB}, s48, s49")
    k.e("s_lshr_b32 s48, s26, 2")
    k.e("s_lshl_b32 s48, s48, 2")
    k.e("s_lshr_b32 s49, s27, 3")
    k.e(f"s_add_u32 s{S_G}, s48, s49")
    k.e(f"s_cmp_lt_u32 s{S_WAVE}, 4")
    k.e("s_cbranch_scc1 L_consumer")

    loader(k)
    k.e("s_branch L_attn")

    k.lab("L_consumer")
    k.e("s_waitcnt lgkmcnt(0)")
    if stamps: k.e("s_mov_b32 s72, s70")
    srd(k, SRD_WS, P_WS, 256 << 20)
    srd(k, SRD_T, P_DBG, 256)
    srd(k, SRD_X, P_AW, 512*3072)
    k.e(f"s_and_b32 s27, s{S_WAVE}, 1")
    consumer_setup(k)
    nn = k.u("nononce")
    k.e(f"s_cmp_eq_u32 s{S_WAVE}, 0")
    k.e(f"s_cbranch_scc0 {nn}")
    k.e("v_mov_b32 v2, 0")
    nl = k.u("nolead")
    k.e("s_cmp_eq_u32 s2, 0")
    k.e(f"s_cbranch_scc0 {nl}")
    k.e("s_memrealtime s[58:59]")
    k.e("s_waitcnt lgkmcnt(0)")
    k.e("s_or_b32 s58, s58, 1")
    k.e("v_mov_b32 v3, s58")
    k.e(f"buffer_store_dword v3, v2, {sr(SRD_T,4)}, 0 offen sc1")
    k.lab(nl)
    k.lab(nn)
    k.e("s_mov_b32 s49, 0")
    k.e(f"s_mov_b32 s69, {SLOT}")
    k.e(f"s_cmp_ge_u32 s{S_WAVE}, 2")
    k.e("s_cbranch_scc1 L_qwave")

    k.e("s_barrier")
    k.stamp(1)
    reads(k, 'kv', 0, 0); reads(k, 'kv', 1, 1)
    consumer_tile(k, 'kv', 'B')
    k.stamp(2)
    k.c("B epilogue (kv)")
    read_nonce(k, 2, 3)
    k.e(f"s_lshl_b32 s62, s{S_G}, 2")
    k.e("s_lshl_b32 s63, s27, 1")
    k.e("s_add_u32 s62, s62, s63")
    k.e("s_lshl_b32 s62, s62, 6")
    k.e(f"s_lshl_b32 s63, s{S_RB}, 1")
    k.e("s_add_u32 s62, s62, s63")
    k.e("s_lshl_b32 s62, s62, 10")
    k.e("v_lshlrev_b32 v1, 4, v0")
    k.e("s_lshl_b32 s63, s27, 12")
    k.e(f"s_add_u32 s63, s63, {OK_L}")
    k.e("v_add_u32 v4, s63, v1")
    k.e("v_bfe_u32 v2, v0, 4, 1")
    k.e("v_lshrrev_b32 v3, 5, v0")
    k.e("v_lshlrev_b32 v3, 8, v3")
    k.e("v_and_b32 v5, 15, v0")
    k.e("v_lshlrev_b32 v5, 4, v5")
    k.e("v_add_u32 v3, v3, v5")
    k.e("v_lshlrev_b32 v5, 11, v2")
    k.e("v_add_u32 v5, v5, v3")
    k.e(f"s_add_u32 s63, s63, {OV_L - OK_L}")
    k.e("v_add_u32 v5, s63, v5")
    k.e("v_lshlrev_b32 v2, 16, v2")
    k.e("v_add_u32 v2, v2, v3")
    k.e(f"s_add_u32 s64, s62, {KB_G + 65536}")
    k.e(f"s_add_u32 s65, s62, {VB_G}")
    k.e("s_nop 3")
    for t in range(2):
        KF = EP + 16*t; VF = KF + 8
        cvt8(k, KF, ACC+16*t); cvt8(k, KF+4, ACC+16*t+8)
        cvt8(k, VF, ACC+32+16*t); cvt8(k, VF+4, ACC+32+16*t+8)
        k.e(f"buffer_store_dwordx4 {vr(KF,4)}, v1, {WS}, s62 offen offset:{t*1024} sc1")
        k.e(f"buffer_store_dwordx4 {vr(KF+4,4)}, v1, {WS}, s64 offen offset:{t*1024} sc1")
        k.e(f"buffer_store_dwordx4 {vr(VF,4)}, v2, {WS}, s65 offen offset:{t*1024} sc1")
        k.e(f"buffer_store_dwordx4 {vr(VF+4,4)}, v2, {WS}, s65 offen offset:{t*1024+512} sc1")
        k.e(f"ds_write_b128 v4, {vr(KF,4)} offset:{t*1024}")
        k.e(f"ds_write_b128 v4, {vr(KF+4,4)} offset:{t*1024+2048}")
        k.e(f"ds_write_b128 v5, {vr(VF,4)} offset:{t*1024}")
        k.e(f"ds_write_b128 v5, {vr(VF+4,4)} offset:{t*1024+512}")
    k.stamp(3)
    consumer_tile(k, 'kv', 'A')
    k.e("s_waitcnt lgkmcnt(0)")
    k.e("s_barrier")
    k.stamp(4)
    k.c("A epilogue (kv)")
    T = 72
    k.e(f"s_mov_b32 s61, {lit(LOG2E)}")
    k.e(f"s_mov_b32 s62, {lit(1e-6)}")
    PK, VV, ONES = 80, 96, 112
    for j in range(4): k.e(f"v_mov_b32 v{ONES+j}, 0x3f803f80")
    for t in range(2):
        cvt8(k, VV+8*t, ACC+32+16*t); cvt8(k, VV+8*t+4, ACC+32+16*t+8)
    DKV, DZ = ACC+32, ACC+48
    for t in range(2):
        phi(k, ACC+16*t, 16, T)
        cvt8(k, PK+8*t, ACC+16*t); cvt8(k, PK+8*t+4, ACC+16*t+8)
        k.e("s_nop 1")
        for m in range(2):
            first = (t == 0 and m == 0)
            k.e(f"{MF} {vr(DKV,16)}, {vr(PK+8*t+4*m,4)}, {vr(VV+8*t+4*m,4)}, {'0' if first else vr(DKV,16)}")
            k.e(f"{MF} {vr(DZ,16)}, {vr(ONES,4)}, {vr(PK+8*t+4*m,4)}, {'0' if first else vr(DZ,16)}")
    k.e("s_mov_b32 s64, 0xffff0000")
    k.e("s_mov_b32 s65, 0xffff0000")
    k.e(f"s_lshl_b32 s63, s{S_G}, 1")
    k.e("s_add_u32 s63, s63, s27")
    k.e("s_lshl_b32 s63, s63, 12")
    k.e(f"s_add_u32 s63, s63, {KVACC}")
    k.e("v_lshlrev_b32 v3, 2, v0")
    k.e("s_nop 5")
    RS = 120
    for t in range(8): k.e(f"v_cndmask_b32 v{RS+t}, v{DKV+t}, v{DKV+8+t}, s[64:65]")
    for t in range(8): k.e(f"buffer_atomic_add_f32 v{RS+t}, v3, {WS}, s63 offen offset:{t*256}")
    k.e("s_mov_b32 exec_hi, 0")
    k.e(f"buffer_atomic_add_f32 v{DZ}, v3, {WS}, s63 offen offset:2048")
    k.e("s_mov_b64 exec, -1")
    k.e("s_branch L_e1")

    k.lab("L_qwave")
    k.e("v_mov_b32 v251, 0")
    k.e("s_barrier")
    k.stamp(1)
    reads(k, 'q', 0, 0); reads(k, 'q', 1, 1)
    def pf_extra(k):
        ex = k.u("pfx"); w3 = k.u("pfw3")
        n1 = k.u("nn1"); n2 = k.u("nn2")
        k.e(f"s_cmp_eq_u32 s{S_WAVE}, 2")
        k.e(f"s_cbranch_scc0 {n2}")
        k.e("s_cmp_eq_u32 s48, 0")
        k.e(f"s_cbranch_scc0 {n1}")
        k.e(f"buffer_load_dword v7, v251, {sr(SRD_T,4)}, 0 offen sc1")
        k.lab(n1)
        k.e("s_cmp_eq_u32 s48, 1")
        k.e(f"s_cbranch_scc0 {n2}")
        lp = k.u("np"); npx = k.u("npx"); chk = k.u("npc")
        k.e("s_mov_b32 s60, 0")
        k.e(f"s_branch {chk}")
        k.lab(lp)
        k.e(f"buffer_load_dword v7, v251, {sr(SRD_T,4)}, 0 offen sc1")
        k.lab(chk)
        spin_guard(k, 60, npx)
        k.e("s_waitcnt vmcnt(0)")
        k.e("v_readfirstlane_b32 s58, v7")
        k.e("s_nop 0")
        k.e("s_cmp_eq_u32 s58, 0")
        k.e(f"s_cbranch_scc1 {lp}")
        k.lab(npx)
        k.e("s_waitcnt vmcnt(0)")
        k.e(f"v_mov_b32 v250, {NONCE_L}")
        k.e("ds_write_b32 v250, v7")
        k.lab(n2)
    consumer_tile(k, 'q', 'B', pf_extra)
    k.stamp(2)
    k.c("B epilogue (q)")
    read_nonce(k, 2, 3)
    k.e(f"s_mov_b32 s61, {lit(CS)}")
    k.e("v_lshlrev_b32 v1, 4, v0")
    k.e("s_lshl_b32 s63, s27, 12")
    k.e(f"s_add_u32 s63, s63, {Q_L}")
    k.e("v_add_u32 v4, s63, v1")
    k.e("s_nop 6")
    for t in range(2):
        for i in range(16): k.e(f"v_mul_f32 v{ACC+16*t+i}, s61, v{ACC+16*t+i}")
        QF = EP + 8*t
        cvt8(k, QF, ACC+16*t); cvt8(k, QF+4, ACC+16*t+8)
        k.e(f"ds_write_b128 v4, {vr(QF,4)} offset:{t*1024}")
        k.e(f"ds_write_b128 v4, {vr(QF+4,4)} offset:{t*1024+2048}")
    k.stamp(3)
    consumer_tile(k, 'q', 'A')
    k.e("s_waitcnt lgkmcnt(0)")
    k.e("s_barrier")
    k.stamp(4)
    k.c("A epilogue (q)")
    k.e(f"s_mov_b32 s61, {lit(LOG2E)}")
    k.e(f"s_mov_b32 s62, {lit(1e-6)}")
    k.e("v_lshlrev_b32 v1, 4, v0")
    k.e("s_lshl_b32 s63, s27, 12")
    k.e(f"s_add_u32 s63, s63, {PQ_L}")
    k.e("v_add_u32 v4, s63, v1")
    k.e("s_nop 4")
    for t in range(2):
        phi(k, ACC+16*t, 16, 72)
        QF = EP + 8*t
        cvt8(k, QF, ACC+16*t); cvt8(k, QF+4, ACC+16*t+8)
        k.e(f"ds_write_b128 v4, {vr(QF,4)} offset:{t*1024}")
        k.e(f"ds_write_b128 v4, {vr(QF+4,4)} offset:{t*1024+2048}")
    k.lab("L_e1")

    k.lab("L_attn")
    attention(k)
    k.stamp(9)
    apart(k)
    k.stamp(10)
    k.e("s_waitcnt vmcnt(0) lgkmcnt(0)")
    k.e("s_barrier")
    k.stamp(11)
    sk = k.u("nof2")
    k.e(f"s_cmp_eq_u32 s{S_WAVE}, 4")
    k.e(f"s_cbranch_scc0 {sk}")
    k.e(f"s_lshr_b32 s48, s{S_RB}, 1")
    k.e("s_lshl_b32 s48, s48, 8")
    k.e(f"s_and_b32 s49, s{S_RB}, 1")
    k.e("s_lshl_b32 s49, s49, 3")
    k.e(f"s_add_u32 s49, s49, s{S_G}")
    k.e("s_lshl_b32 s49, s49, 2")
    k.e("s_add_u32 s48, s48, s49")
    k.e(f"s_add_u32 s48, s48, {F2}")
    store_flag(k, 48)
    k.lab(sk)
    k.e(f"s_cmp_ge_u32 s{S_WAVE}, 4")
    k.e("s_cbranch_scc1 L_fin")
    p3(k)
    k.lab("L_fin")
    if stamps:
        k.stamp(13)
        k.e(f"s_lshl_b32 s48, s2, 3")
        k.e(f"s_add_u32 s48, s48, s{S_WAVE}")
        k.e("s_lshl_b32 s48, s48, 6")
        k.e(f"s_add_u32 s48, s48, {STAMP}")
        k.e("v_mov_b32 v9, 0")
        for j in range(16):
            k.e(f"v_mov_b32 v8, s{72+j}")
            k.e(f"buffer_store_dword v8, v9, {WS}, s48 offen offset:{4*j}")
            k.e("s_nop 0")
    if stamps and OPT['dbgstamps']:
        sk = k.u("nodbg")
        srd(k, SRD_T, P_DBG, 256)
        k.e(f"s_cmp_eq_u32 s2, {OPT['dbgstamps']}")
        k.e(f"s_cbranch_scc0 {sk}")
        k.e(f"s_cmp_eq_u32 s{S_WAVE}, 0")
        k.e(f"s_cbranch_scc0 {sk}")
        k.e("v_mov_b32 v9, 0")
        for j in range(1, 14):
            k.e(f"s_sub_u32 s48, s{72+j}, s72")
            k.e("v_mov_b32 v8, s48")
            k.e(f"buffer_store_dword v8, v9, {sr(SRD_T,4)}, 0 offen offset:{4*j}")
            k.e("s_nop 0")
        k.lab(sk)
    if OPT['stagest']:
        sk = k.u("nost")
        k.e(f"s_cmp_eq_u32 s{S_WAVE}, 4")
        k.e(f"s_cbranch_scc0 {sk}")
        k.e("s_lshl_b32 s48, s2, 8")
        k.e(f"s_add_u32 s48, s48, {STAMP + (1<<19)}")
        k.e("v_lshlrev_b32 v9, 2, v0")
        k.e(f"buffer_store_dword v252, v9, {WS}, s48 offen")
        k.lab(sk)
    k.lab("L_end")
    k.e("s_endpgm")
    return k

def issue_stage(k):
    k.e("s_lshl_b32 s52, s59, 7")
    k.e("s_mul_i32 s53, s59, 196608")
    k.e("s_mov_b32 m0, s51")
    k.e("s_add_u32 s54, s53, 23552")
    k.e(f"buffer_load_dwordx4 v1, {sr(SRD_X,4)}, s52 offen lds")
    k.e(f"buffer_load_dwordx4 v2, {sr(SRD_X,4)}, s52 offen offset:1024 lds")
    for p in range(3):
        k.e(f"s_add_u32 s55, s51, {8192 + p*8192}")
        k.e("s_mov_b32 m0, s55")
        if p: k.e(f"s_add_u32 s56, s53, {p*1024}"); so0 = "s56"
        else: so0 = "s53"; k.e("s_nop 0")
        k.e(f"buffer_load_dwordx4 v3, {sr(SRD_W,4)}, {so0} offen lds")
        if p: k.e(f"s_add_u32 s56, s54, {p*1024}"); so1 = "s56"
        else: so1 = "s54"
        k.e(f"buffer_load_dwordx4 v3, {sr(SRD_W,4)}, {so1} offen offset:1024 lds")
    k.e("s_add_u32 s57, s57, 1")
    k.e("s_add_u32 s59, s59, 1")
    k.e("s_and_b32 s59, s59, 7")
    k.e(f"s_add_u32 s51, s51, {SLOT}")
    k.e("s_and_b32 s58, s57, 3")
    sk = k.u("nowrap")
    k.e("s_cmp_eq_u32 s58, 0")
    k.e(f"s_cbranch_scc0 {sk}")
    k.e(f"s_sub_u32 s51, s51, {4*SLOT}")
    k.lab(sk)
    sk2 = k.u("nosw")
    k.e("s_cmp_eq_u32 s57, 8")
    k.e(f"s_cbranch_scc0 {sk2}")
    srd(k, SRD_X, P_AX, 2 << 20)
    srd(k, SRD_W, P_AW, 512*3072)
    k.lab(sk2)

def pfsetup(k):
    k.e("s_and_b32 s50, s2, 7")
    k.e("s_lshr_b32 s52, s2, 3")
    k.e("s_mov_b32 s66, 1")
    wx = k.u("pfwx"); wo = k.u("pfwo"); ex = k.u("pfex")
    k.e("s_cmp_lt_u32 s26, 2")
    k.e(f"s_cbranch_scc0 {wx}")
    srd(k, SRD_T, P_BW, 512*3072)
    k.e("v_min_u32 v4, 11, v0")
    k.e("v_lshrrev_b32 v5, 2, v4")
    k.e("v_lshlrev_b32 v5, 10, v5")
    k.e("v_and_b32 v4, 3, v4")
    k.e("s_lshr_b32 s53, s50, 2")
    k.e("s_lshl_b32 s53, s53, 2")
    k.e("v_add_u32 v4, s53, v4")
    k.e("v_lshlrev_b32 v4, 7, v4")
    k.e("s_lshl_b32 s53, s52, 1")
    k.e("s_add_u32 s53, s53, s26")
    k.e("s_mul_i32 s53, s53, 3072")
    k.e("v_add3_u32 v4, v4, v5, s53")
    k.e("s_mov_b32 s65, 196608")
    k.e("s_mov_b32 s64, 196608")
    k.e(f"s_branch {ex}")
    k.lab(wx)
    k.e("s_cmp_eq_u32 s26, 2")
    k.e(f"s_cbranch_scc0 {wo}")
    srd(k, SRD_T, P_BX, 2 << 20)
    k.e("v_min_u32 v4, 15, v0")
    k.e("s_and_b32 s53, s50, 3")
    k.e("s_lshl_b32 s53, s53, 9")
    k.e("s_lshl_b32 s54, s52, 4")
    k.e("s_add_u32 s53, s53, s54")
    k.e("v_add_u32 v4, s53, v4")
    k.e("v_lshlrev_b32 v4, 10, v4")
    k.e("s_mov_b32 s65, 128")
    k.e("s_mov_b32 s64, 128")
    k.e(f"s_branch {ex}")
    k.lab(wo)
    k.e("s_lshr_b32 s53, s50, 2")
    k.e("s_cmp_eq_u32 s53, 0")
    k.e(f"s_cselect_b32 s{SRD_T}, s{P_AWO}, s{P_BWO}")
    k.e(f"s_cselect_b32 s{SRD_T+1}, s{P_AWO+1}, s{P_BWO+1}")
    k.e(f"s_mov_b32 s{SRD_T+2}, 0x{512*1024:x}")
    k.e(f"s_mov_b32 s{SRD_T+3}, 0x20000")
    k.e("v_min_u32 v4, 8, v0")
    k.e("v_lshlrev_b32 v4, 7, v4")
    k.e("s_lshl_b32 s53, s52, 14")
    k.e("v_add_u32 v4, s53, v4")
    k.e("s_mov_b32 s65, 1152")
    k.e("s_mov_b32 s64, 0")
    k.lab(ex)

def pf_issue(k):
    sk = k.u("pfsw")
    k.e("s_cmp_eq_u32 s66, 8")
    k.e(f"s_cbranch_scc0 {sk}")
    k.e("s_cmp_lt_u32 s26, 3")
    k.e(f"s_cbranch_scc0 {sk}")
    k.e("s_mov_b32 s64, 0")
    k.e("s_cmp_lt_u32 s26, 2")
    k.e(f"s_cselect_b32 s{SRD_T}, s{P_AW}, s{P_AX}")
    k.e(f"s_cselect_b32 s{SRD_T+1}, s{P_AW+1}, s{P_AX+1}")
    k.lab(sk)
    k.e(f"buffer_load_dword v5, v4, {sr(SRD_T,4)}, s64 offen")
    k.e("s_add_u32 s64, s64, s65")
    k.e("s_add_u32 s66, s66, 1")

def loader(k):
    k.e(f"s_sub_u32 s26, s{S_WAVE}, 4")
    k.e("v_lshrrev_b32 v4, 3, v0")
    k.e("v_and_b32 v5, 7, v0")
    k.e("v_lshrrev_b32 v6, 1, v4")
    k.e("v_xor_b32 v7, v5, v6")
    k.e("v_lshlrev_b32 v7, 4, v7")
    k.e(f"s_lshl_b32 s48, s{S_RB}, 6")
    k.e("s_lshl_b32 s49, s26, 4")
    k.e("s_add_u32 s48, s48, s49")
    k.e("v_add_u32 v1, s48, v4")
    k.e("v_lshlrev_b32 v1, 10, v1")
    k.e("v_add_u32 v2, 7168, v1")
    k.e("v_add_u32 v1, v1, v7")
    k.e("v_xor_b32 v7, 64, v7")
    k.e("v_add_u32 v2, v2, v7")
    k.e("v_add_u32 v3, s49, v4")
    k.e("v_mul_u32_u24 v3, 3072, v3")
    k.e("v_and_b32 v6, 2, v4")
    k.e("v_lshlrev_b32 v6, 1, v6")
    k.e("v_xor_b32 v6, v5, v6")
    k.e("v_lshlrev_b32 v6, 4, v6")
    k.e(f"s_lshl_b32 s49, s{S_G}, 7")
    k.e("v_add3_u32 v3, v3, v6, s49")
    k.e("s_lshl_b32 s51, s26, 11")
    k.e("s_mov_b32 s57, 0")
    if OPT['rot'] == 8:
        k.e(f"s_and_b32 s59, s{S_G}, 3")
        k.e("s_lshl_b32 s59, s59, 1")
        k.e(f"s_add_u32 s59, s59, s{S_RB}")
        k.e("s_and_b32 s59, s59, 7")
    elif OPT['rot'] == 2:
        k.e(f"s_add_u32 s59, s{S_G}, s{S_RB}")
        k.e("s_and_b32 s59, s59, 1")
        k.e("s_lshl_b32 s59, s59, 2")
    elif OPT['rot'] == 4:
        k.e(f"s_add_u32 s59, s{S_G}, s{S_RB}")
        k.e("s_and_b32 s59, s59, 3")
        k.e("s_lshl_b32 s59, s59, 1")
    else:
        k.e("s_mov_b32 s59, 0")
    k.e("s_waitcnt lgkmcnt(0)")
    if k.stamps: k.e("s_mov_b32 s72, s70")
    srd(k, SRD_X, P_BX, 2 << 20)
    srd(k, SRD_W, P_BW, 512*3072)
    issue_stage(k)
    if OPT['tpf']:
        pfsetup(k)
        for j in range(4): pf_issue(k)
    else:
        issue_stage(k)
    srd(k, SRD_WS, P_WS, 256 << 20)
    sk = k.u("nopf")
    k.e("s_cmp_eq_u32 s26, 3")
    k.e(f"s_cbranch_scc0 {sk}")
    k.e("s_getpc_b64 s[62:63]")
    k.lab("L_pc")
    k.e("s_and_b32 s62, s62, 0xffffff00")
    k.e("v_lshlrev_b32 v8, 7, v0")
    k.e(f"s_sub_u32 s62, s62, PF_BACK")
    k.e("s_subb_u32 s63, s63, 0")
    k.e("global_load_dword v9, v8, s[62:63]")
    k.e("v_add_u32 v8, 8192, v8")
    k.e("global_load_dword v10, v8, s[62:63]")
    k.e("v_add_u32 v8, 8192, v8")
    k.e("global_load_dword v11, v8, s[62:63]")
    k.lab(sk)
    ny = 4 if OPT['tpf'] else 8
    k.e(f"s_waitcnt vmcnt({ny+3})")
    sk = k.u("w7")
    k.e("s_cmp_eq_u32 s26, 3")
    k.e(f"s_cbranch_scc1 {sk}")
    k.e(f"s_waitcnt vmcnt({ny})")
    k.lab(sk)
    k.e("s_barrier")
    if OPT['tpf']: issue_stage(k)
    issue_stage(k)
    sk = k.u("nozero")
    k.e(f"s_cmp_eq_u32 s{S_RB}, 0")
    k.e(f"s_cbranch_scc0 {sk}")
    k.e("s_cmp_lt_u32 s26, 2")
    k.e(f"s_cbranch_scc0 {sk}")
    k.e(f"s_lshl_b32 s48, s{S_G}, 1")
    k.e("s_add_u32 s48, s48, s26")
    k.e("s_lshl_b32 s48, s48, 12")
    k.e(f"s_add_u32 s48, s48, {KVACC}")
    for j in range(4): k.e(f"v_mov_b32 v{12+j}, 0")
    k.e("v_lshlrev_b32 v8, 4, v0")
    for j in range(3): k.e(f"buffer_store_dwordx4 v[12:15], v8, {WS}, s48 offen offset:{j*1024} sc1")
    k.e("s_waitcnt vmcnt(3)")
    k.lab(sk)
    k.stamp(1)
    k.e("s_mov_b32 s48, 0")
    lp = k.u("ldloop")
    k.lab(lp)
    w8 = k.u("w8"); w9 = k.u("w9"); wd = k.u("wd")
    if not OPT['tpf']: k.e(f"s_branch {w8}")
    k.e("s_cmp_eq_u32 s48, 0")
    k.e(f"s_cbranch_scc1 {w8}")
    k.e("s_cmp_eq_u32 s48, 1")
    k.e(f"s_cbranch_scc1 {w9}")
    k.e("s_cmp_eq_u32 s48, 12")
    k.e(f"s_cbranch_scc1 {w9}")
    k.e("s_waitcnt vmcnt(10)")
    k.e(f"s_branch {wd}")
    k.lab(w9)
    k.e("s_waitcnt vmcnt(9)")
    k.e(f"s_branch {wd}")
    k.lab(w8)
    k.e("s_waitcnt vmcnt(8)")
    k.lab(wd)
    k.e("s_barrier")
    if OPT['stagest']:
        k.e("s_memrealtime s[90:91]"); k.e("s_waitcnt lgkmcnt(0)")
        k.e("s_mov_b32 m0, s48")
        k.e("s_nop 0")
        k.e("v_writelane_b32 v252, s90, m0")
    sk = k.u("nonn")
    k.e("s_cmp_eq_u32 s48, 5")
    k.e(f"s_cbranch_scc0 {sk}")
    read_nonce(k, 8, 9)
    k.lab(sk)
    sk = k.u("nosig")
    k.e("s_cmp_eq_u32 s48, 10")
    k.e(f"s_cbranch_scc0 {sk}")
    k.e("s_cmp_eq_u32 s26, 0")
    k.e(f"s_cbranch_scc0 {sk}")
    k.e(f"s_lshl_b32 s49, s{S_G}, 8")
    k.e(f"s_lshl_b32 s50, s{S_RB}, 2")
    k.e("s_add_u32 s49, s49, s50")
    k.e(f"s_add_u32 s49, s49, {F1B}")
    store_flag(k, 49)
    k.lab(sk)
    issue_stage(k)
    if OPT['tpf']:
        sk = k.u("nopfi")
        k.e("s_cmp_le_u32 s48, 10")
        k.e(f"s_cbranch_scc0 {sk}")
        pf_issue(k)
        k.lab(sk)
    k.e("s_add_u32 s48, s48, 1")
    k.e("s_cmp_lt_u32 s48, 13")
    k.e(f"s_cbranch_scc1 {lp}")
    k.e(f"s_sub_u32 s48, s{S_RB}, 4")
    k.e("v_add_u32 v8, s48, v0")
    k.e("v_max_i32 v8, 0, v8")
    k.e("v_cmp_gt_u32 vcc, 4, v0")
    k.e(f"s_lshl_b32 s49, s{S_G}, 8")
    k.e(f"s_add_u32 s49, s49, {F1B}")
    k.e("v_cndmask_b32 v8, 0, v8, vcc")
    k.e("v_lshlrev_b32 v8, 2, v8")
    k.e("v_add_u32 v8, s49, v8")
    k.e("s_waitcnt vmcnt(8)");  k.e("s_barrier")
    k.e(f"buffer_load_dword v9, v8, {WS}, 0 offen sc1")
    k.e("s_waitcnt vmcnt(1)");  k.e("s_barrier")
    poll_flags(k, 8, 9, "f1b", first_issued=True)
    k.stamp(5)
    sk = k.u("norem")
    k.e(f"s_cmp_eq_u32 s{S_RB}, 0")
    k.e(f"s_cbranch_scc1 {sk}")
    k.e("v_lshlrev_b32 v8, 4, v0")
    k.e(f"s_lshl_b32 s48, s{S_G}, 2")
    k.e("s_add_u32 s48, s48, s26")
    k.e("s_lshl_b32 s48, s48, 6")
    k.e(f"s_lshl_b32 s49, s{S_RB}, 1")
    k.e("s_sub_u32 s49, s49, 8")
    for j in range(8):
        k.e(f"s_add_i32 s50, s49, {j}")
        k.e("s_max_i32 s50, s50, 0")
        k.e("s_add_u32 s50, s50, s48")
        k.e("s_lshl_b32 s50, s50, 10")
        k.e(f"s_add_u32 s51, s50, {VB_G}")
        k.e(f"buffer_load_dwordx4 {vr(16+4*j,4)}, v8, {WS}, s50 offen sc1")
        k.e(f"buffer_load_dwordx4 {vr(48+4*j,4)}, v8, {WS}, s51 offen sc1")
    k.lab(sk)
    k.e("s_barrier")
    k.e("s_barrier")
    k.stamp(4)
    sk = k.u("norem2")
    k.e(f"s_cmp_eq_u32 s{S_RB}, 0")
    k.e(f"s_cbranch_scc1 {sk}")
    k.e("s_lshl_b32 s48, s26, 13")
    k.e("v_add_u32 v9, s48, v8")
    for j in range(8):
        k.e(f"s_waitcnt vmcnt({14-2*j})")
        k.e(f"ds_write_b128 v9, {vr(16+4*j,4)} offset:{RK_L + j*1024}")
        k.e(f"ds_write_b128 v9, {vr(48+4*j,4)} offset:{RV_L + j*1024}")
    k.lab(sk)
    k.stamp(6)
    k.e("s_and_b32 s48, s2, 7")
    k.e("s_lshr_b32 s49, s2, 3")
    k.e("s_lshr_b32 s66, s48, 2")
    k.e("s_lshr_b32 s68, s49, 2")
    k.e("s_cmp_eq_u32 s66, 0")
    k.e(f"s_cselect_b32 s{SRD_WO}, s{P_AWO}, s{P_BWO}")
    k.e(f"s_cselect_b32 s{SRD_WO+1}, s{P_AWO+1}, s{P_BWO+1}")
    k.e(f"s_mov_b32 s{SRD_WO+2}, 0x{512*1024:x}")
    k.e(f"s_mov_b32 s{SRD_WO+3}, 0x20000")
    k.e("v_lshrrev_b32 v4, 3, v0")
    k.e("v_and_b32 v5, 7, v0")
    k.e("v_and_b32 v6, 2, v4")
    k.e("v_lshlrev_b32 v6, 1, v6")
    k.e("v_xor_b32 v6, v5, v6")
    k.e("v_lshlrev_b32 v6, 4, v6")
    k.e("s_lshl_b32 s48, s26, 7")
    k.e("v_add_u32 v4, s48, v4")
    k.e("v_lshlrev_b32 v4, 10, v4")
    k.e("s_lshl_b32 s48, s68, 7")
    k.e("v_add3_u32 v4, v4, v6, s48")
    k.e("s_lshl_b32 s48, s26, 14")
    k.e(f"s_add_u32 s48, s48, {WO_L}")
    k.e("s_mov_b32 s49, 0")
    for jj in range(8):
        k.e("s_mov_b32 m0, s48")
        k.e("s_add_u32 s50, s49, 7168")
        k.e(f"buffer_load_dwordx4 v4, {sr(SRD_WO,4)}, s49 offen lds")
        k.e(f"buffer_load_dwordx4 v4, {sr(SRD_WO,4)}, s50 offen offset:1024 lds")
        k.e("s_add_u32 s48, s48, 2048")
        k.e("s_add_u32 s49, s49, 16384")

AQ_, AKF, AS, AMD, AMF, ACN, AP, AVB, AO = 4, 8, [44, 60, 76], 92, 108, 124, 140, [148, 156], 176
AM, AT = 192, 193
AK0, AK7, AK8, AV0, AV7, AV8 = 196, 197, 198, 199, 200, 201
KVR = 208
VPOLL, VPA = 216, 217

def v_reads(k, buf, vaddr, off):
    k.e("s_mov_b64 exec, s[64:65]")
    k.e(f"ds_read_b128 {vr(AVB[buf],4)}, v{vaddr} offset:{off}")
    k.e(f"ds_read_b128 {vr(AVB[buf]+4,4)}, v{vaddr} offset:{off+512}")
    k.e("s_mov_b64 exec, -1")

def sig_f1a(k):
    sk = k.u("nosigA")
    k.e(f"s_cmp_lt_u32 s{S_WAVE}, 2")
    k.e(f"s_cbranch_scc0 {sk}")
    k.e("s_waitcnt vmcnt(0)")
    k.e(f"s_lshl_b32 s52, s{S_G}, 8")
    k.e(f"s_lshl_b32 s53, s{S_RB}, 1")
    k.e(f"s_add_u32 s53, s53, s{S_WAVE}")
    k.e("s_lshl_b32 s53, s53, 2")
    k.e("s_add_u32 s52, s52, s53")
    k.e(f"s_add_u32 s52, s52, {F1A}")
    store_flag(k, 52)
    k.lab(sk)

def attention(k):
    k.c("attention: i = w&1 (s26), hh = w>>1 (s27)")
    k.e(f"s_and_b32 s26, s{S_WAVE}, 1")
    k.e(f"s_lshr_b32 s27, s{S_WAVE}, 1")
    k.e(f"s_lshl_b32 s48, s{S_RB}, 1")
    k.e("s_add_u32 s48, s48, s26")
    k.e("v_lshlrev_b32 v1, 4, v0")
    k.e("s_lshl_b32 s49, s27, 13")
    k.e("s_lshl_b32 s50, s26, 10")
    k.e("s_add_u32 s51, s49, s50")
    k.e("s_lshl_b32 s52, s27, 11")
    k.e("s_add_u32 s53, s52, s50")
    k.e(f"s_add_u32 s54, s49, {7*1024}")
    k.e(f"s_add_u32 s55, s52, {OK_L - RK_L}")
    k.e("s_cmp_eq_u32 s26, 0")
    k.e("s_cselect_b32 s54, s54, s55")
    k.e(f"s_add_u32 s55, s54, {RV_L - RK_L}")
    k.e(f"s_add_u32 s56, s52, {OV_L}")
    k.e("s_cmp_eq_u32 s26, 0")
    k.e("s_cselect_b32 s55, s55, s56")
    k.e(f"v_add_u32 v{AK0}, s51, v1")
    k.e(f"v_add_u32 v{AK7}, s54, v1")
    k.e(f"s_add_u32 s56, s53, {OK_L}")
    k.e(f"v_add_u32 v{AK8}, s56, v1")
    k.e("v_lshrrev_b32 v2, 5, v0")
    k.e("v_lshlrev_b32 v2, 8, v2")
    k.e("v_and_b32 v3, 15, v0")
    k.e("v_lshlrev_b32 v3, 4, v3")
    k.e("v_add_u32 v2, v2, v3")
    k.e(f"s_add_u32 s56, s51, {RV_L}")
    k.e(f"v_add_u32 v{AV0}, s56, v2")
    k.e(f"v_add_u32 v{AV7}, s55, v2")
    k.e(f"s_add_u32 s56, s53, {OV_L}")
    k.e(f"v_add_u32 v{AV8}, s56, v2")
    k.e("s_mov_b32 s64, 0xffff")
    k.e("s_mov_b32 s65, 0xffff")
    k.e("v_and_b32 v2, 31, v0")
    k.e("v_lshrrev_b32 v3, 5, v0")
    k.e("v_lshlrev_b32 v3, 2, v3")
    k.e("v_sub_u32 v2, v2, v3")
    k.e("v_cvt_f32_i32 v2, v2")
    k.e(f"v_mov_b32 v3, {lit(BIG)}")
    for i in range(16):
        ci = 8*(i >> 2) + (i & 3)
        k.e(f"v_fmaak_f32 v{AMD+i}, v2, v3, {lit((0.5-ci)*BIG)}")
    for i in range(16): k.e(f"v_min_f32 v{AMF+i}, -v{AMD+i}, 0")
    for i in range(16): k.e(f"v_min_f32 v{AMD+i}, 0, v{AMD+i}")
    for b in range(2):
        for j in range(8): k.e(f"v_mov_b32 v{AVB[b]+j}, 0x3f803f80")
    k.e(f"v_mov_b32 v{AM}, 0xff7fffff")
    k.e(f"s_lshl_b32 s49, s{S_G}, 8")
    k.e(f"s_add_u32 s49, s49, {F1A}")
    k.e(f"v_lshlrev_b32 v{VPA}, 2, v0")
    k.e(f"v_add_u32 v{VPA}, s49, v{VPA}")
    k.e("s_waitcnt lgkmcnt(0)")
    k.stamp(7)
    k.e("s_barrier")
    k.stamp(8)
    k.e("s_lshl_b32 s49, s27, 11")
    k.e("s_add_u32 s49, s49, s50")
    k.e(f"s_add_u32 s49, s49, {Q_L}")
    k.e("v_add_u32 v2, s49, v1")
    k.e(f"ds_read_b128 {vr(AQ_,4)}, v2")
    short = k.u("short"); done = k.u("attdone")
    k.e("s_cmp_lt_u32 s48, 8")
    k.e(f"s_cbranch_scc1 {short}")
    def kaddr(p): return (AK0, RK_L + p*1024) if p <= 6 else ((AK7, 0) if p == 7 else (AK8, 0))
    def vaddr(p): return (AV0, p*1024) if p <= 6 else ((AV7, 0) if p == 7 else (AV8, 0))
    for p in range(9):
        a, o = kaddr(p); k.e(f"ds_read_b128 {vr(AKF+4*p,4)}, v{a} offset:{o}")
    Q = vr(AQ_, 4)
    def qk(dst, p, c): k.e(f"{MF} {vr(dst,16)}, {vr(AKF+4*p,4)}, {Q}, {c}")
    k.e("s_waitcnt lgkmcnt(6)")
    qk(AS[0], 0, vr(AMF,16)); qk(AS[1], 1, "0"); qk(AS[2], 2, "0")
    v_reads(k, 0, *vaddr(0))
    k.e("s_waitcnt lgkmcnt(2)")
    k.e("s_nop 4")
    for p in range(9):
        s = AS[p % 3]
        for j in range(8): k.e(f"v_max3_f32 v{AM}, v{s+2*j}, v{s+2*j+1}, v{AM}")
        if p + 3 <= 8: qk(s, p + 3, vr(AMD,16) if p + 3 == 8 else "0")
    k.e(f"v_mov_b32 v{AT}, v{AM}")
    k.e("s_nop 1")
    k.e(f"v_permlane32_swap_b32 v{AM}, v{AT}")
    k.e(f"v_max_f32 v{AM}, v{AM}, v{AT}")
    k.e(f"v_sub_f32 v{AM}, 0, v{AM}")
    for i in range(16): k.e(f"v_add_f32 v{AMF+i}, v{AMF+i}, v{AM}")
    for i in range(16): k.e(f"v_mov_b32 v{ACN+i}, v{AM}")
    k.e("s_nop 0")
    qk(AS[0], 0, vr(AMF,16))
    for i in range(16): k.e(f"v_add_f32 v{AMD+i}, v{AMD+i}, v{AM}")
    for p in range(9):
        cur = AS[p % 2]; nxt = AS[(p + 1) % 2]
        if p < 8:
            qk(nxt, p + 1, vr(AMD,16) if p + 1 == 8 else vr(ACN,16))
            v_reads(k, (p + 1) % 2, *vaddr(p + 1))
        if p == 3: sig_f1a(k)
        if p == 6: k.e(f"buffer_load_dword v{VPOLL}, v{VPA}, {WS}, 0 offen sc1")
        for j in range(16): k.e(f"v_exp_f32 v{cur+j}, v{cur+j}")
        for j in range(8): k.e(f"v_cvt_pk_bf16_f32 v{AP+j}, v{cur+2*j}, v{cur+2*j+1}")
        k.e(f"s_waitcnt lgkmcnt({2 if p < 8 else 0})")
        vb = AVB[p % 2]
        k.e(f"{MF} {vr(AO,16)}, {vr(vb,4)}, {vr(AP,4)}, {'0' if p == 0 else vr(AO,16)}")
        k.e("s_nop 0")
        k.e(f"{MF} {vr(AO,16)}, {vr(vb+4,4)}, {vr(AP+4,4)}, {vr(AO,16)}")
    k.e(f"s_branch {done}")
    k.lab(short)
    for i in range(16): k.e(f"v_mov_b32 v{AO+i}, 0")
    k.e("s_sub_u32 s49, 8, s48")
    S = AS[0]; KT = AKF
    AKA, AVA = AK0, AV0
    def tile_addr():
        k.e("s_add_u32 s52, s51, s26")
        k.e("s_lshl_b32 s53, s27, 13")
        k.e("s_lshl_b32 s54, s52, 10")
        k.e("s_add_u32 s53, s53, s54")
        k.e("s_lshl_b32 s55, s27, 11")
        k.e("s_add_u32 s55, s55, s54")
        k.e(f"s_add_u32 s55, s55, {OK_L - 8192}")
        k.e("s_cmp_lt_u32 s52, 8")
        k.e("s_cselect_b32 s56, s53, s55")
        k.e(f"s_add_u32 s53, s53, {RV_L}")
        k.e(f"s_add_u32 s55, s55, {OV_L - OK_L}")
        k.e("s_cmp_lt_u32 s52, 8")
        k.e("s_cselect_b32 s57, s53, s55")
        k.e(f"v_add_u32 v{AT+1}, s56, v1")
        k.e(f"v_add_u32 v{AT+2}, s57, v202")
    k.e("v_lshrrev_b32 v202, 5, v0")
    k.e("v_lshlrev_b32 v202, 8, v202")
    k.e("v_and_b32 v203, 15, v0")
    k.e("v_lshlrev_b32 v203, 4, v203")
    k.e("v_add_u32 v202, v202, v203")
    l1 = k.u("s1"); l1e = k.u("s1e")
    k.e("s_mov_b32 s51, s49")
    k.lab(l1)
    tile_addr()
    k.e(f"ds_read_b128 {vr(KT,4)}, v{AT+1}")
    k.e("s_waitcnt lgkmcnt(0)")
    k.e("s_cmp_lt_u32 s51, 8")
    k.e(f"s_cbranch_scc0 {l1e}")
    k.e(f"{MF} {vr(S,16)}, {vr(KT,4)}, {Q}, 0")
    k.e("s_add_u32 s51, s51, 1")
    k.e("s_nop 10")
    for j in range(8): k.e(f"v_max3_f32 v{AM}, v{S+2*j}, v{S+2*j+1}, v{AM}")
    k.e(f"s_branch {l1}")
    k.lab(l1e)
    k.e(f"{MF} {vr(S,16)}, {vr(KT,4)}, {Q}, {vr(AMD,16)}")
    k.e("s_nop 11")
    for j in range(8): k.e(f"v_max3_f32 v{AM}, v{S+2*j}, v{S+2*j+1}, v{AM}")
    k.e(f"v_mov_b32 v{AT}, v{AM}")
    k.e("s_nop 1")
    k.e(f"v_permlane32_swap_b32 v{AM}, v{AT}")
    k.e(f"v_max_f32 v{AM}, v{AM}, v{AT}")
    k.e(f"v_sub_f32 v{AM}, 0, v{AM}")
    for i in range(16): k.e(f"v_add_f32 v{AMD+i}, v{AMD+i}, v{AM}")
    for i in range(16): k.e(f"v_mov_b32 v{ACN+i}, v{AM}")
    sig_f1a(k)
    l2 = k.u("s2"); l2e = k.u("s2e")
    def tile2(cregs):
        k.e(f"{MF} {vr(S,16)}, {vr(KT,4)}, {Q}, {cregs}")
        k.e("s_add_u32 s51, s51, 1")
        k.e("s_nop 10")
        for j in range(16): k.e(f"v_exp_f32 v{S+j}, v{S+j}")
        for j in range(8): k.e(f"v_cvt_pk_bf16_f32 v{AP+j}, v{S+2*j}, v{S+2*j+1}")
        k.e("s_nop 1")
        k.e(f"{MF} {vr(AO,16)}, {vr(AVB[0],4)}, {vr(AP,4)}, {vr(AO,16)}")
        k.e(f"{MF} {vr(AO,16)}, {vr(AVB[0]+4,4)}, {vr(AP+4,4)}, {vr(AO,16)}")
    k.e("s_mov_b32 s51, s49")
    k.lab(l2)
    tile_addr()
    k.e(f"ds_read_b128 {vr(KT,4)}, v{AT+1}")
    v_reads(k, 0, AT+2, 0)
    k.e("s_waitcnt lgkmcnt(0)")
    k.e("s_cmp_lt_u32 s51, 8")
    k.e(f"s_cbranch_scc0 {l2e}")
    tile2(vr(ACN,16))
    k.e(f"s_branch {l2}")
    k.lab(l2e)
    tile2(vr(AMD,16))
    k.e(f"buffer_load_dword v{VPOLL}, v{VPA}, {WS}, 0 offen sc1")
    k.lab(done)

def apart(k):
    poll_flags(k, VPA, VPOLL, "f1a", first_issued=True)
    k.e(f"s_lshl_b32 s50, s{S_G}, 1")
    k.e("s_lshr_b32 s51, s27, 1")
    k.e("s_add_u32 s50, s50, s51")
    k.e("s_lshl_b32 s50, s50, 12")
    k.e("s_and_b32 s51, s27, 1")
    k.e("s_lshl_b32 s51, s51, 6")
    k.e("s_add_u32 s50, s50, s51")
    k.e(f"s_add_u32 s50, s50, {KVACC}")
    k.e("v_lshrrev_b32 v2, 5, v0")
    k.e("v_and_b32 v3, 15, v0")
    k.e("v_lshlrev_b32 v4, 5, v2")
    k.e("v_add_u32 v4, v4, v3")
    k.e("v_lshlrev_b32 v4, 2, v4")
    k.e("v_lshlrev_b32 v5, 4, v2")
    k.e("s_mov_b64 exec, s[64:65]")
    for t in range(8):
        k.e(f"buffer_load_dword v{KVR+t}, v4, {WS}, s50 offen offset:{t*256} sc1")
    k.e("s_not_b64 exec, s[64:65]")
    k.e(f"buffer_load_dwordx4 {vr(KVR,4)}, v5, {WS}, s50 offen offset:2048 sc1")
    k.e(f"buffer_load_dwordx4 {vr(KVR+4,4)}, v5, {WS}, s50 offen offset:{2048+32} sc1")
    k.e("s_mov_b64 exec, -1")
    k.e("s_lshl_b32 s49, s27, 11")
    k.e("s_lshl_b32 s50, s26, 10")
    k.e("s_add_u32 s49, s49, s50")
    k.e(f"s_add_u32 s49, s49, {PQ_L}")
    k.e("v_add_u32 v2, s49, v1")
    k.e(f"ds_read_b128 {vr(AQ_,4)}, v2")
    k.e(f"v_rcp_f32 v{AT}, v{AO+8}")
    k.e("s_nop 0")
    for j in range(8): k.e(f"v_mul_f32 v{AO+j}, v{AO+j}, v{AT}")
    cvt8(k, AP, AO)
    k.e(f"s_lshl_b32 s49, s{S_G}, 2")
    k.e("s_add_u32 s49, s49, s27")
    k.e("s_lshl_b32 s50, s48, 5")
    k.e("s_add_u32 s49, s49, s50")
    k.e("s_lshl_b32 s49, s49, 10")
    k.e(f"s_add_u32 s50, s49, {O_G + (2<<20)}")
    k.e(f"buffer_store_dwordx4 {vr(AP,4)}, v1, {WS}, s50 offen sc1")
    k.e("s_waitcnt vmcnt(1) lgkmcnt(0)")
    cvt8(k, 8, KVR)
    k.e("s_nop 1")
    k.e(f"{MF} {vr(44,16)}, {vr(8,4)}, {vr(AQ_,4)}, 0")
    k.e(f"s_mov_b32 s62, {lit(1e-6)}")
    k.e("s_nop 10")
    k.e("v_add_f32 v12, s62, v52")
    k.e("v_rcp_f32 v12, v12")
    k.e("s_nop 0")
    for j in range(8): k.e(f"v_mul_f32 v{44+j}, v{44+j}, v12")
    cvt8(k, 16, 44)
    k.e(f"s_add_u32 s50, s49, {O_G}")
    k.e(f"buffer_store_dwordx4 {vr(16,4)}, v1, {WS}, s50 offen sc1")

def p3(k):
    k.c("P3: out tile 128x64")
    k.e("s_and_b32 s48, s2, 7")
    k.e("s_lshr_b32 s49, s2, 3")
    k.e("s_lshr_b32 s66, s48, 2")
    k.e("s_and_b32 s67, s48, 3")
    k.e("s_lshl_b32 s67, s67, 2")
    k.e("s_and_b32 s50, s49, 3")
    k.e("s_add_u32 s67, s67, s50")
    k.e("s_lshr_b32 s68, s49, 2")
    k.e("s_lshl_b32 s48, s67, 8")
    k.e(f"s_add_u32 s48, s48, {F2}")
    k.e("v_and_b32 v8, 15, v0")
    k.e("v_lshlrev_b32 v8, 2, v8")
    k.e("v_add_u32 v8, s48, v8")
    OF, ACC3, WF = 8+4, 144, [176, 184]
    VA0, VA1 = 192, 193
    k.e("v_bfe_u32 v2, v0, 2, 2")
    k.e("v_and_b32 v3, 3, v0")
    k.e("v_bfe_u32 v4, v0, 4, 1")
    k.e("v_lshrrev_b32 v5, 5, v0")
    k.e("v_lshlrev_b32 v5, 2, v5")
    k.e("v_add_u32 v5, v5, v2")
    k.e("v_lshlrev_b32 v5, 7, v5")
    k.e("v_and_b32 v6, 1, v3")
    k.e("v_lshlrev_b32 v6, 1, v6")
    k.e("v_add_u32 v6, v6, v4")
    k.e("v_and_b32 v7, 2, v2")
    k.e("v_lshlrev_b32 v7, 1, v7")
    k.e("v_xor_b32 v6, v6, v7")
    k.e("v_lshlrev_b32 v6, 4, v6")
    k.e("v_lshrrev_b32 v3, 1, v3")
    k.e("v_lshlrev_b32 v3, 3, v3")
    k.e("v_add3_u32 v5, v5, v6, v3")
    k.e("s_and_b32 s51, s68, 3")
    k.e("s_lshl_b32 s52, s51, 14")
    k.e(f"s_add_u32 s52, s52, {WO_L}")
    k.e(f"v_add_u32 v{VA0}, s52, v5")
    k.e(f"v_xor_b32 v{VA1}, 64, v{VA0}")
    k.e("s_lshl_b32 s48, s67, 2")
    k.e(f"s_add_u32 s48, s48, s{S_WAVE}")
    k.e("s_lshl_b32 s49, s48, 15")
    k.e("s_lshl_b32 s50, s66, 21")
    k.e("s_add_u32 s49, s49, s50")
    k.e(f"s_add_u32 s49, s49, {O_G}")
    k.e("v_lshlrev_b32 v1, 4, v0")
    poll_flags(k, 8, 9, "f2")
    k.stamp(12)
    for blk in range(4):
        k.e(f"s_add_u32 s52, s51, {blk}")
        k.e("s_and_b32 s52, s52, 3")
        k.e("s_lshl_b32 s52, s52, 13")
        k.e("s_add_u32 s52, s52, s49")
        k.e("s_add_u32 s53, s52, 4096")
        for j in range(8):
            hd = blk*8 + j
            k.e(f"buffer_load_dwordx4 {vr(OF+4*hd,4)}, v1, {WS}, {'s52' if j < 4 else 's53'} offen offset:{(j%4)*1024} sc1")
    def wreads(buf, j):
        for b in range(2):
            for s2 in range(2):
                k.e(f"ds_read_b64_tr_b16 {vr(WF[buf]+4*b+2*s2,2)}, v{VA0+b} offset:{j*2048 + s2*1024}")
    def advance(blk):
        k.e(f"s_add_u32 s52, s51, {blk}")
        k.e("s_and_b32 s52, s52, 3")
        k.e("s_cmp_eq_u32 s52, 0")
        k.e(f"s_cselect_b32 s52, 0x{(-3*16384) & 0xffffffff:x}, s69")
        k.e(f"v_add_u32 v{VA0}, s52, v{VA0}")
        k.e(f"v_add_u32 v{VA1}, s52, v{VA1}")
    k.e("s_mov_b32 s69, 16384")
    wreads(0, 0)
    for hd in range(32):
        if hd < 31:
            nj = (hd + 1) % 8
            if nj == 0: advance((hd + 1)//8)
            wreads((hd + 1) % 2, nj)
        k.e(f"s_waitcnt vmcnt({31-hd}) lgkmcnt({4 if hd < 31 else 0})")
        for b in range(2):
            k.e(f"{MF} {vr(ACC3+16*b,16)}, {vr(WF[hd%2]+4*b,4)}, {vr(OF+4*hd,4)}, {'0' if hd == 0 else vr(ACC3+16*b,16)}")
    srd(k, SRD_T, P_OUT, 4 << 20)
    k.e("v_and_b32 v2, 31, v0")
    k.e("s_lshl_b32 s49, s48, 5")
    k.e("v_add_u32 v2, s49, v2")
    k.e("v_lshlrev_b32 v2, 11, v2")
    k.e("v_lshrrev_b32 v3, 5, v0")
    k.e("v_lshlrev_b32 v3, 5, v3")
    k.e("s_lshl_b32 s49, s66, 10")
    k.e("s_lshl_b32 s50, s68, 7")
    k.e("s_add_u32 s49, s49, s50")
    k.e("v_add3_u32 v2, v2, v3, s49")
    k.e("s_nop 3")
    for b in range(2):
        for j in range(8): k.e(f"v_cvt_pk_bf16_f32 v{12+8*b+j}, v{ACC3+16*b+2*j}, v{ACC3+16*b+2*j+1}")
    for b in range(2):
        k.e(f"buffer_store_dwordx4 {vr(12+8*b,4)}, v2, {sr(SRD_T,4)}, 0 offen offset:{64*b}")
        k.e(f"buffer_store_dwordx4 {vr(16+8*b,4)}, v2, {sr(SRD_T,4)}, 0 offen offset:{64*b+16}")

HDR = """; Kernarg layout for this problem (72 bytes, ptrs only, base s[0:1]):
;   offset   0: d_in[0] A_x  shape=(1, 2048, 512) dtype=bfloat16
;   offset   8: d_in[1] A_wqkv  shape=(512, 1536) dtype=bfloat16
;   offset  16: d_in[2] A_wo  shape=(512, 512) dtype=bfloat16
;   offset  24: d_in[3] B_x  shape=(1, 2048, 512) dtype=bfloat16
;   offset  32: d_in[4] B_wqkv  shape=(512, 1536) dtype=bfloat16
;   offset  40: d_in[5] B_wo  shape=(512, 512) dtype=bfloat16
;   offset  48: d_out     shape=(1, 2048, 1024) dtype=bfloat16
;   offset  56: d_debug   256 bytes
;   offset  64: d_ws      268435456 bytes workspace
; @launch grid=(256,1,1) block=(512,1,1) lds=163840
.amdgcn_target "amdgcn-amd-amdhsa--gfx950"
.text
.globl KNAME
.p2align 8
.type KNAME,@function
""".replace("KNAME", KNAME)

TAIL = """.section .rodata,"a"
.p2align 6
.amdhsa_kernel KNAME
  .amdhsa_next_free_vgpr 256
  .amdhsa_next_free_sgpr 102
  .amdhsa_accum_offset 256
  .amdhsa_group_segment_fixed_size 0
  .amdhsa_kernarg_size 72
  .amdhsa_user_sgpr_count 2
  .amdhsa_user_sgpr_kernarg_segment_ptr 1
  .amdhsa_system_sgpr_workgroup_id_x 1
.end_amdhsa_kernel
""".replace("KNAME", KNAME)

def build(stamps=False):
    k = gen(stamps)
    body = "\n".join(k.L)
    body = body.replace("PF_BACK", f"((L_pc - {KNAME}) & 0xffffff00)")
    pad = "\n    .fill 2048, 4, 0xbf800000\n"
    return HDR + body + pad + "\n" + TAIL

if __name__ == "__main__":
    out = sys.argv[1] if len(sys.argv) > 1 else "out.s"
    stamps = "stamps" in sys.argv[2:]
    for a in sys.argv[2:]:
        if "=" in a:
            kk, vv = a.split("="); OPT[kk] = int(vv)
    txt = build(stamps)
    open(out, "w").write(txt)
    import hz
    pr = hz.check(txt)
    import subprocess
    r = subprocess.run(["clang", "-x", "assembler", "-target", "amdgcn-amd-amdhsa", "-mcpu=gfx950", "-c", out, "-o", "_chk.o"], capture_output=True, text=True)
    print("hazards:", len(pr), "lines:", txt.count("\n"), "asm:", "ok" if r.returncode == 0 else r.stderr)
```

```python
import sys, math, struct

KNAME = "concat_heads__linear_attn_block__sliding_block__prompt_kernel"

KB_G   = 0
VB_G   = 2 << 20
O_G    = 4 << 20
KVACC  = 8 << 20
FL     = (8 << 20) + (64 << 10)
F1B    = FL
F1A    = FL + (32 << 10)
F2     = FL + (96 << 10)
STAMP  = 9 << 20
SLOT   = 32768
OK_L, OV_L, Q_L, PQ_L = 131072, 139264, 147456, 155648
NONCE_L = PQ_L
RK_L, RV_L, WO_L = 0, 32768, 65536
CS = 0.25 * math.log2(math.e)
LOG2E = math.log2(math.e)
BIG = 1.0e28
SPIN_MAX = 100000
OPT = dict(rot=8, pfB=0, pfA=1, dbgstamps=0, stagest=0, pfs=1, tpf=0, p3st=0, map=0)

def f2u(x): return struct.unpack('<I', struct.pack('<f', x))[0]
def lit(x): return "0x%08x" % f2u(x)

class K:
    def __init__(self, stamps=False):
        self.L = []; self.stamps = stamps; self.uid = 0
    def e(self, s): self.L.append("    " + s)
    def c(self, s): self.L.append("    ; " + s)
    def lab(self, s): self.L.append(s + ":")
    def u(self, p):
        self.uid += 1; return f"L_{p}_{self.uid}"
    def stamp(self, k):
        if not self.stamps: return
        self.e("s_memrealtime s[70:71]")
        self.e("s_waitcnt lgkmcnt(0)")
        self.e(f"s_mov_b32 s{72+k}, s70")

def vr(a, n): return f"v[{a}:{a+n-1}]"
def sr(a, n): return f"s[{a}:{a+n-1}]"
MF = "v_mfma_f32_32x32x16_bf16"

S_WAVE, S_RB, S_G, S_NONCE = 22, 23, 24, 25
SRD_WS, SRD_X, SRD_W, SRD_T, SRD_WO = 28, 32, 36, 40, 44
P_AX, P_AW, P_AWO, P_BX, P_BW, P_BWO, P_OUT, P_DBG, P_WS = 4, 6, 8, 10, 12, 14, 16, 18, 20
WS = sr(SRD_WS, 4)

def srd(k, dst, ptr, size):
    k.e(f"s_mov_b32 s{dst}, s{ptr}")
    k.e(f"s_mov_b32 s{dst+1}, s{ptr+1}")
    k.e(f"s_mov_b32 s{dst+2}, 0x{size:x}")
    k.e(f"s_mov_b32 s{dst+3}, 0x20000")

def spin_guard(k, sreg, exit_label):
    k.e(f"s_add_u32 s{sreg}, s{sreg}, 1")
    k.e(f"s_cmp_gt_u32 s{sreg}, {SPIN_MAX}")
    k.e(f"s_cbranch_scc1 {exit_label}")

def poll_flags(k, vaddr, vtmp, name, first_issued=False, sleep=1):
    lp = k.u(name + "_poll"); ex = k.u(name + "_done"); chk = k.u(name + "_chk")
    k.e("s_mov_b32 s60, 0")
    if first_issued: k.e(f"s_branch {chk}")
    k.lab(lp)
    k.e(f"buffer_load_dword v{vtmp}, v{vaddr}, {WS}, 0 offen sc1")
    k.lab(chk)
    spin_guard(k, 60, ex)
    k.e("s_waitcnt vmcnt(0)")
    k.e(f"v_cmp_ne_u32 vcc, s{S_NONCE}, v{vtmp}")
    k.e("s_nop 1")
    k.e(f"s_cbranch_vccz {ex}")
    if sleep: k.e(f"s_sleep {sleep}")
    k.e(f"s_branch {lp}")
    k.lab(ex)
    k.e("s_waitcnt vmcnt(0)")

def store_flag(k, soff):
    k.e(f"v_mov_b32 v250, s{S_NONCE}")
    k.e("v_mov_b32 v251, 0")
    k.e("s_mov_b64 exec, 1")
    k.e(f"buffer_store_dword v250, v251, {WS}, s{soff} offen sc1")
    k.e("s_mov_b64 exec, -1")

def cvt8(k, dst, src):
    for j in range(4): k.e(f"v_cvt_pk_bf16_f32 v{dst+j}, v{src+2*j}, v{src+2*j+1}")

def phi(k, r, n, t):
    for i in range(0, n, 4):
        for j in range(4): k.e(f"v_mul_f32 v{t+j}, s61, v{r+i+j}")
        for j in range(4): k.e(f"v_exp_f32 v{t+j}, v{t+j} clamp")
        for j in range(4): k.e(f"v_max_f32 v{r+i+j}, 0, v{r+i+j}")
        for j in range(4): k.e(f"v_add_f32 v{r+i+j}, s62, v{r+i+j}")
        for j in range(4): k.e(f"v_add_f32 v{r+i+j}, v{t+j}, v{r+i+j}")

ACC = 8
BUF = [72, 88, 104, 120]
VXA, VWA = 136, 140
EP = 144
PFD = 208

def rd_x(k, buf, j, t): k.e(f"ds_read_b128 {vr(BUF[buf]+4*t,4)}, v{VXA+j} offset:{t*4096}")
def rd_w(k, buf, j, p, slot):
    for s2 in range(2):
        k.e(f"ds_read_b64_tr_b16 {vr(BUF[buf]+8+4*slot+2*s2,2)}, v{VWA} offset:{p*8192 + j*2048 + s2*512}")
def reads(k, role, buf, j):
    rd_x(k, buf, j, 0); rd_x(k, buf, j, 1)
    if role == 'kv': rd_w(k, buf, j, 1, 0); rd_w(k, buf, j, 2, 1)
    else: rd_w(k, buf, j, 0, 0)

def kstep(k, role, br, j, first=False):
    nb = (j + 2) & 3; b = BUF[j]
    X = [vr(b,4), vr(b+4,4)]; W = [vr(b+8,4), vr(b+12,4)]
    def C(a): return "0" if first else vr(a,16)
    if role == 'kv':
        k.e("s_waitcnt lgkmcnt(6)")
        for t in range(2):
            a = ACC + 16*t
            if br == 'B': k.e(f"{MF} {vr(a,16)}, {W[0]}, {X[t]}, {C(a)}")
            else:         k.e(f"{MF} {vr(a,16)}, {X[t]}, {W[0]}, {C(a)}")
            if t == 0: rd_x(k, nb, nb, 0); rd_x(k, nb, nb, 1)
            else: rd_w(k, nb, nb, 1, 0)
        for t in range(2):
            a = ACC + 32 + 16*t
            k.e(f"{MF} {vr(a,16)}, {X[t]}, {W[1]}, {C(a)}")
            if t == 0: rd_w(k, nb, nb, 2, 1)
    else:
        k.e("s_waitcnt lgkmcnt(4)")
        for t in range(2):
            a = ACC + 16*t
            k.e(f"{MF} {vr(a,16)}, {W[0]}, {X[t]}, {C(a)}")
            if t == 0: rd_x(k, nb, nb, 0); rd_x(k, nb, nb, 1)
            else: rd_w(k, nb, nb, 0, 0)

def consumer_tile(k, role, br, extra=None):
    lp = k.u("c"+role+br); ex = k.u("cx"+role+br)
    k.e("s_mov_b32 s48, 0")
    kstep(k, role, br, 0, first=True)
    k.lab(lp)
    k.e("s_add_u32 s49, s49, 1")
    k.e("s_and_b32 s50, s49, 3")
    k.e("s_cmp_eq_u32 s50, 0")
    k.e(f"s_cselect_b32 s50, 0x{(-3*SLOT) & 0xffffffff:x}, s69")
    kstep(k, role, br, 1)
    if extra: extra(k)
    if br == 'A':
        sk = k.u("novm")
        k.e("s_cmp_eq_u32 s48, 2")
        k.e(f"s_cbranch_scc0 {sk}")
        k.e("s_waitcnt vmcnt(0)")
        k.lab(sk)
    for j in range(4): k.e(f"v_add_u32 v{VXA+j}, s50, v{VXA+j}")
    k.e(f"v_add_u32 v{VWA}, s50, v{VWA}")
    k.e("s_barrier")
    kstep(k, role, br, 2)
    kstep(k, role, br, 3)
    k.e("s_add_u32 s48, s48, 1")
    k.e("s_cmp_lt_u32 s48, 8")
    k.e(f"s_cbranch_scc0 {ex}")
    kstep(k, role, br, 0)
    k.e(f"s_branch {lp}")
    k.lab(ex)

def consumer_setup(k):
    k.e("v_and_b32 v1, 31, v0")
    k.e("v_lshrrev_b32 v2, 5, v0")
    k.e("v_bfe_u32 v3, v0, 1, 3")
    k.e("v_xor_b32 v3, v3, v2")
    k.e("v_lshlrev_b32 v3, 4, v3")
    k.e("v_lshlrev_b32 v1, 7, v1")
    k.e(f"v_add_u32 v{VXA}, v1, v3")
    for j in range(1, 4): k.e(f"v_xor_b32 v{VXA+j}, {j<<5}, v{VXA}")
    k.e("v_bfe_u32 v1, v0, 2, 2")
    k.e("v_and_b32 v2, 3, v0")
    k.e("v_bfe_u32 v3, v0, 4, 1")
    k.e("v_lshrrev_b32 v4, 5, v0")
    k.e("v_lshlrev_b32 v4, 3, v4")
    k.e("v_add_u32 v4, v4, v1")
    k.e("v_lshlrev_b32 v4, 7, v4")
    k.e("v_lshlrev_b32 v3, 1, v3")
    k.e("v_lshrrev_b32 v5, 1, v2")
    k.e("v_add_u32 v3, v3, v5")
    k.e("s_lshl_b32 s48, s27, 2")
    k.e("v_add_u32 v3, s48, v3")
    k.e("v_and_b32 v5, 2, v1")
    k.e("v_lshlrev_b32 v5, 1, v5")
    k.e("v_xor_b32 v3, v3, v5")
    k.e("v_lshlrev_b32 v3, 4, v3")
    k.e("v_and_b32 v2, 1, v2")
    k.e("v_lshlrev_b32 v2, 3, v2")
    k.e("v_add3_u32 v4, v4, v3, v2")
    k.e(f"v_add_u32 v{VWA}, 8192, v4")

def read_nonce(k, va, vb):
    k.e(f"v_mov_b32 v{va}, {NONCE_L}")
    k.e(f"ds_read_b32 v{vb}, v{va}")
    k.e("s_waitcnt lgkmcnt(0)")
    k.e(f"v_readfirstlane_b32 s{S_NONCE}, v{vb}")

def pf_setup(k, pw, px):
    k.e("s_and_b32 s50, s2, 7")
    k.e("s_lshr_b32 s51, s2, 3")
    k.e("v_lshrrev_b32 v5, 2, v0")
    k.e("s_lshl_b32 s52, s51, 4")
    k.e("v_add_u32 v5, s52, v5")
    k.e("v_mul_u32_u24 v5, 3072, v5")
    k.e("v_and_b32 v6, 3, v0")
    k.e("s_lshr_b32 s52, s50, 2")
    k.e("s_lshl_b32 s52, s52, 2")
    k.e("v_add_u32 v6, s52, v6")
    k.e("v_lshlrev_b32 v6, 7, v6")
    k.e("v_add_u32 v5, v5, v6")
    k.e("v_lshlrev_b32 v6, 7, v0")
    k.e("s_and_b32 s52, s50, 3")
    k.e("s_lshl_b32 s52, s52, 9")
    k.e("s_lshl_b32 s53, s51, 4")
    k.e("s_add_u32 s52, s52, s53")
    k.e("s_lshl_b32 s66, s52, 10")
    k.e("s_lshl_b32 s67, s51, 14")
    k.e("s_lshr_b32 s68, s50, 2")

def gen(stamps=False):
    k = K(stamps)
    k.lab(KNAME)
    k.e("s_cmp_ge_u32 s2, 256")
    k.e("s_cbranch_scc1 L_end")
    if stamps: k.e("s_memrealtime s[70:71]")
    k.e("s_load_dwordx16 s[4:19], s[0:1], 0")
    k.e("s_load_dwordx2 s[20:21], s[0:1], 64")
    k.e("v_lshrrev_b32 v1, 6, v0")
    k.e("v_and_b32 v0, 63, v0")
    k.e(f"v_readfirstlane_b32 s{S_WAVE}, v1")
    k.e("s_and_b32 s26, s2, 7")
    k.e("s_lshr_b32 s27, s2, 3")
    k.e("s_and_b32 s48, s26, 3")
    k.e("s_lshl_b32 s48, s48, 3")
    if OPT['map'] == 0:
        k.e("s_and_b32 s49, s27, 7")
    else:
        k.e("s_lshr_b32 s49, s27, 2")
    k.e(f"s_add_u32 s{S_RB}, s48, s49")
    k.e("s_lshr_b32 s48, s26, 2")
    k.e("s_lshl_b32 s48, s48, 2")
    if OPT['map'] == 0:
        k.e("s_lshr_b32 s49, s27, 3")
    else:
        k.e("s_and_b32 s49, s27, 3")
    k.e(f"s_add_u32 s{S_G}, s48, s49")
    k.e(f"s_cmp_lt_u32 s{S_WAVE}, 4")
    k.e("s_cbranch_scc1 L_consumer")

    loader(k)
    k.e("s_branch L_attn")

    k.lab("L_consumer")
    k.e("s_waitcnt lgkmcnt(0)")
    if stamps: k.e("s_mov_b32 s72, s70")
    srd(k, SRD_WS, P_WS, 256 << 20)
    srd(k, SRD_T, P_DBG, 256)
    srd(k, SRD_X, P_AW, 512*3072)
    k.e(f"s_and_b32 s27, s{S_WAVE}, 1")
    consumer_setup(k)
    attn_setup(k)
    nn = k.u("nononce")
    k.e(f"s_cmp_eq_u32 s{S_WAVE}, 0")
    k.e(f"s_cbranch_scc0 {nn}")
    k.e("v_mov_b32 v2, 0")
    nl = k.u("nolead")
    k.e("s_cmp_eq_u32 s2, 0")
    k.e(f"s_cbranch_scc0 {nl}")
    k.e("s_memrealtime s[58:59]")
    k.e("s_waitcnt lgkmcnt(0)")
    k.e("s_or_b32 s58, s58, 1")
    k.e("v_mov_b32 v3, s58")
    k.e(f"buffer_store_dword v3, v2, {sr(SRD_T,4)}, 0 offen sc1")
    k.lab(nl)
    k.lab(nn)
    k.e("s_mov_b32 s49, 0")
    k.e(f"s_mov_b32 s69, {SLOT}")
    k.e(f"s_cmp_ge_u32 s{S_WAVE}, 2")
    k.e("s_cbranch_scc1 L_qwave")

    k.e("s_barrier")
    k.stamp(1)
    reads(k, 'kv', 0, 0); reads(k, 'kv', 1, 1)
    consumer_tile(k, 'kv', 'B')
    k.stamp(2)
    k.c("B epilogue (kv)")
    read_nonce(k, 2, 3)
    k.e(f"s_lshl_b32 s62, s{S_G}, 2")
    k.e("s_lshl_b32 s63, s27, 1")
    k.e("s_add_u32 s62, s62, s63")
    k.e("s_lshl_b32 s62, s62, 6")
    k.e(f"s_lshl_b32 s63, s{S_RB}, 1")
    k.e("s_add_u32 s62, s62, s63")
    k.e("s_lshl_b32 s62, s62, 10")
    k.e("v_lshlrev_b32 v1, 4, v0")
    k.e("s_lshl_b32 s63, s27, 12")
    k.e(f"s_add_u32 s63, s63, {OK_L}")
    k.e("v_add_u32 v4, s63, v1")
    k.e("v_bfe_u32 v2, v0, 4, 1")
    k.e("v_lshrrev_b32 v3, 5, v0")
    k.e("v_lshlrev_b32 v3, 8, v3")
    k.e("v_and_b32 v5, 15, v0")
    k.e("v_lshlrev_b32 v5, 4, v5")
    k.e("v_add_u32 v3, v3, v5")
    k.e("v_lshlrev_b32 v5, 11, v2")
    k.e("v_add_u32 v5, v5, v3")
    k.e(f"s_add_u32 s63, s63, {OV_L - OK_L}")
    k.e("v_add_u32 v5, s63, v5")
    k.e("v_lshlrev_b32 v2, 16, v2")
    k.e("v_add_u32 v2, v2, v3")
    k.e(f"s_add_u32 s64, s62, {KB_G + 65536}")
    k.e(f"s_add_u32 s65, s62, {VB_G}")
    k.e("s_nop 3")
    for t in range(2):
        KF = EP + 16*t; VF = KF + 8
        cvt8(k, KF, ACC+16*t); cvt8(k, KF+4, ACC+16*t+8)
        cvt8(k, VF, ACC+32+16*t); cvt8(k, VF+4, ACC+32+16*t+8)
        k.e(f"buffer_store_dwordx4 {vr(KF,4)}, v1, {WS}, s62 offen offset:{t*1024} sc1")
        k.e(f"buffer_store_dwordx4 {vr(KF+4,4)}, v1, {WS}, s64 offen offset:{t*1024} sc1")
        k.e(f"buffer_store_dwordx4 {vr(VF,4)}, v2, {WS}, s65 offen offset:{t*1024} sc1")
        k.e(f"buffer_store_dwordx4 {vr(VF+4,4)}, v2, {WS}, s65 offen offset:{t*1024+512} sc1")
        k.e(f"ds_write_b128 v4, {vr(KF,4)} offset:{t*1024}")
        k.e(f"ds_write_b128 v4, {vr(KF+4,4)} offset:{t*1024+2048}")
        k.e(f"ds_write_b128 v5, {vr(VF,4)} offset:{t*1024}")
        k.e(f"ds_write_b128 v5, {vr(VF+4,4)} offset:{t*1024+512}")
    k.stamp(3)
    consumer_tile(k, 'kv', 'A')
    k.e("s_waitcnt lgkmcnt(0)")
    k.e("s_barrier")
    k.stamp(4)
    k.c("A epilogue (kv)")
    T = 72
    k.e(f"s_mov_b32 s61, {lit(LOG2E)}")
    k.e(f"s_mov_b32 s62, {lit(1e-6)}")
    PK, VV, ONES = 80, 96, 112
    for j in range(4): k.e(f"v_mov_b32 v{ONES+j}, 0x3f803f80")
    for t in range(2):
        cvt8(k, VV+8*t, ACC+32+16*t); cvt8(k, VV+8*t+4, ACC+32+16*t+8)
    DKV, DZ = ACC+32, ACC+48
    for t in range(2):
        phi(k, ACC+16*t, 16, T)
        cvt8(k, PK+8*t, ACC+16*t); cvt8(k, PK+8*t+4, ACC+16*t+8)
        k.e("s_nop 1")
        for m in range(2):
            first = (t == 0 and m == 0)
            k.e(f"{MF} {vr(DKV,16)}, {vr(PK+8*t+4*m,4)}, {vr(VV+8*t+4*m,4)}, {'0' if first else vr(DKV,16)}")
            k.e(f"{MF} {vr(DZ,16)}, {vr(ONES,4)}, {vr(PK+8*t+4*m,4)}, {'0' if first else vr(DZ,16)}")
    k.e("s_mov_b32 s64, 0xffff0000")
    k.e("s_mov_b32 s65, 0xffff0000")
    k.e(f"s_lshl_b32 s63, s{S_G}, 1")
    k.e("s_add_u32 s63, s63, s27")
    k.e("s_lshl_b32 s63, s63, 12")
    k.e(f"s_add_u32 s63, s63, {KVACC}")
    k.e("v_lshlrev_b32 v3, 2, v0")
    k.e("s_nop 5")
    RS = 120
    for t in range(8): k.e(f"v_cndmask_b32 v{RS+t}, v{DKV+t}, v{DKV+8+t}, s[64:65]")
    for t in range(8): k.e(f"buffer_atomic_add_f32 v{RS+t}, v3, {WS}, s63 offen offset:{t*256}")
    k.e("s_mov_b32 exec_hi, 0")
    k.e(f"buffer_atomic_add_f32 v{DZ}, v3, {WS}, s63 offen offset:2048")
    k.e("s_mov_b64 exec, -1")
    k.e("s_branch L_e1")

    k.lab("L_qwave")
    k.e("v_mov_b32 v251, 0")
    k.e("s_barrier")
    k.stamp(1)
    reads(k, 'q', 0, 0); reads(k, 'q', 1, 1)
    def pf_extra(k):
        ex = k.u("pfx"); w3 = k.u("pfw3")
        n1 = k.u("nn1"); n2 = k.u("nn2")
        k.e(f"s_cmp_eq_u32 s{S_WAVE}, 2")
        k.e(f"s_cbranch_scc0 {n2}")
        k.e("s_cmp_eq_u32 s48, 0")
        k.e(f"s_cbranch_scc0 {n1}")
        k.e(f"buffer_load_dword v7, v251, {sr(SRD_T,4)}, 0 offen sc1")
        k.lab(n1)
        k.e("s_cmp_eq_u32 s48, 6")
        k.e(f"s_cbranch_scc0 {n2}")
        lp = k.u("np"); npx = k.u("npx"); chk = k.u("npc")
        k.e("s_mov_b32 s60, 0")
        k.e(f"s_branch {chk}")
        k.lab(lp)
        k.e(f"buffer_load_dword v7, v251, {sr(SRD_T,4)}, 0 offen sc1")
        k.lab(chk)
        spin_guard(k, 60, npx)
        k.e("s_waitcnt vmcnt(0)")
        k.e("v_readfirstlane_b32 s58, v7")
        k.e("s_nop 0")
        k.e("s_cmp_eq_u32 s58, 0")
        k.e(f"s_cbranch_scc1 {lp}")
        k.lab(npx)
        k.e("s_waitcnt vmcnt(0)")
        k.e(f"v_mov_b32 v250, {NONCE_L}")
        k.e("ds_write_b32 v250, v7")
        k.lab(n2)
    consumer_tile(k, 'q', 'B', pf_extra)
    k.stamp(2)
    k.c("B epilogue (q)")
    read_nonce(k, 2, 3)
    k.e(f"s_mov_b32 s61, {lit(CS)}")
    k.e("v_lshlrev_b32 v1, 4, v0")
    k.e("s_lshl_b32 s63, s27, 12")
    k.e(f"s_add_u32 s63, s63, {Q_L}")
    k.e("v_add_u32 v4, s63, v1")
    k.e("s_nop 6")
    for t in range(2):
        for i in range(16): k.e(f"v_mul_f32 v{ACC+16*t+i}, s61, v{ACC+16*t+i}")
        QF = EP + 8*t
        cvt8(k, QF, ACC+16*t); cvt8(k, QF+4, ACC+16*t+8)
        k.e(f"ds_write_b128 v4, {vr(QF,4)} offset:{t*1024}")
        k.e(f"ds_write_b128 v4, {vr(QF+4,4)} offset:{t*1024+2048}")
    k.stamp(3)
    consumer_tile(k, 'q', 'A')
    k.e("s_waitcnt lgkmcnt(0)")
    k.e("s_barrier")
    k.stamp(4)
    k.c("A epilogue (q)")
    k.e(f"s_mov_b32 s61, {lit(LOG2E)}")
    k.e(f"s_mov_b32 s62, {lit(1e-6)}")
    k.e("v_lshlrev_b32 v1, 4, v0")
    k.e("s_lshl_b32 s63, s27, 12")
    k.e(f"s_add_u32 s63, s63, {PQ_L}")
    k.e("v_add_u32 v4, s63, v1")
    k.e("s_nop 4")
    for t in range(2):
        phi(k, ACC+16*t, 16, 72)
        QF = EP + 8*t
        cvt8(k, QF, ACC+16*t); cvt8(k, QF+4, ACC+16*t+8)
        k.e(f"ds_write_b128 v4, {vr(QF,4)} offset:{t*1024}")
        k.e(f"ds_write_b128 v4, {vr(QF+4,4)} offset:{t*1024+2048}")
    k.e("s_waitcnt lgkmcnt(0)")
    k.lab("L_e1")

    k.lab("L_attn")
    k.stamp(7)
    attention(k)
    k.stamp(9)
    apart(k)
    k.stamp(10)
    k.e("s_waitcnt vmcnt(0) lgkmcnt(0)")
    k.e("s_barrier")
    k.stamp(11)
    sk = k.u("nof2")
    k.e(f"s_cmp_eq_u32 s{S_WAVE}, 4")
    k.e(f"s_cbranch_scc0 {sk}")
    k.e(f"s_lshr_b32 s48, s{S_RB}, 1")
    k.e("s_lshl_b32 s48, s48, 11")
    k.e(f"s_and_b32 s49, s{S_RB}, 1")
    k.e("s_lshl_b32 s49, s49, 3")
    k.e(f"s_add_u32 s49, s49, s{S_G}")
    k.e("s_lshl_b32 s49, s49, 7")
    k.e("s_add_u32 s48, s48, s49")
    k.e(f"s_add_u32 s48, s48, {F2}")
    store_flag(k, 48)
    k.lab(sk)
    p3(k)
    k.lab("L_fin")
    if stamps:
        k.stamp(13)
        k.e(f"s_lshl_b32 s48, s2, 3")
        k.e(f"s_add_u32 s48, s48, s{S_WAVE}")
        k.e("s_lshl_b32 s48, s48, 6")
        k.e(f"s_add_u32 s48, s48, {STAMP}")
        k.e("v_mov_b32 v9, 0")
        for j in range(16):
            k.e(f"v_mov_b32 v8, s{72+j}")
            k.e(f"buffer_store_dword v8, v9, {WS}, s48 offen offset:{4*j}")
            k.e("s_nop 0")
    if stamps and OPT['dbgstamps']:
        sk = k.u("nodbg")
        srd(k, SRD_T, P_DBG, 256)
        k.e(f"s_cmp_eq_u32 s2, {OPT['dbgstamps']}")
        k.e(f"s_cbranch_scc0 {sk}")
        k.e(f"s_cmp_eq_u32 s{S_WAVE}, 0")
        k.e(f"s_cbranch_scc0 {sk}")
        k.e("v_mov_b32 v9, 0")
        for j in range(1, 14):
            k.e(f"s_sub_u32 s48, s{72+j}, s72")
            k.e("v_mov_b32 v8, s48")
            k.e(f"buffer_store_dword v8, v9, {sr(SRD_T,4)}, 0 offen offset:{4*j}")
            k.e("s_nop 0")
        k.lab(sk)
    if OPT['stagest']:
        sk = k.u("nost")
        k.e(f"s_cmp_eq_u32 s{S_WAVE}, 4")
        k.e(f"s_cbranch_scc0 {sk}")
        k.e("s_lshl_b32 s48, s2, 8")
        k.e(f"s_add_u32 s48, s48, {STAMP + (1<<19)}")
        k.e("v_lshlrev_b32 v9, 2, v0")
        k.e(f"buffer_store_dword v252, v9, {WS}, s48 offen")
        k.lab(sk)
    k.lab("L_end")
    k.e("s_endpgm")
    return k

def issue_stage(k):
    k.e("s_lshl_b32 s52, s59, 7")
    k.e("s_mul_i32 s53, s59, 196608")
    k.e("s_mov_b32 m0, s51")
    k.e("s_add_u32 s54, s53, 23552")
    k.e(f"buffer_load_dwordx4 v1, {sr(SRD_X,4)}, s52 offen lds")
    k.e(f"buffer_load_dwordx4 v2, {sr(SRD_X,4)}, s52 offen offset:1024 lds")
    for p in range(3):
        k.e(f"s_add_u32 s55, s51, {8192 + p*8192}")
        k.e("s_mov_b32 m0, s55")
        if p: k.e(f"s_add_u32 s56, s53, {p*1024}"); so0 = "s56"
        else: so0 = "s53"; k.e("s_nop 0")
        k.e(f"buffer_load_dwordx4 v3, {sr(SRD_W,4)}, {so0} offen lds")
        if p: k.e(f"s_add_u32 s56, s54, {p*1024}"); so1 = "s56"
        else: so1 = "s54"
        k.e(f"buffer_load_dwordx4 v3, {sr(SRD_W,4)}, {so1} offen offset:1024 lds")
    k.e("s_add_u32 s57, s57, 1")
    k.e("s_add_u32 s59, s59, 1")
    k.e("s_and_b32 s59, s59, 7")
    k.e(f"s_add_u32 s51, s51, {SLOT}")
    k.e("s_and_b32 s58, s57, 3")
    sk = k.u("nowrap")
    k.e("s_cmp_eq_u32 s58, 0")
    k.e(f"s_cbranch_scc0 {sk}")
    k.e(f"s_sub_u32 s51, s51, {4*SLOT}")
    k.lab(sk)
    sk2 = k.u("nosw")
    k.e("s_cmp_eq_u32 s57, 8")
    k.e(f"s_cbranch_scc0 {sk2}")
    srd(k, SRD_X, P_AX, 2 << 20)
    srd(k, SRD_W, P_AW, 512*3072)
    k.lab(sk2)

def pfsetup(k):
    k.e("s_and_b32 s50, s2, 7")
    k.e("s_lshr_b32 s52, s2, 3")
    k.e("s_mov_b32 s66, 1")
    wx = k.u("pfwx"); wo = k.u("pfwo"); ex = k.u("pfex")
    k.e("s_cmp_lt_u32 s26, 2")
    k.e(f"s_cbranch_scc0 {wx}")
    srd(k, SRD_T, P_BW, 512*3072)
    k.e("v_min_u32 v4, 11, v0")
    k.e("v_lshrrev_b32 v5, 2, v4")
    k.e("v_lshlrev_b32 v5, 10, v5")
    k.e("v_and_b32 v4, 3, v4")
    k.e("s_lshr_b32 s53, s50, 2")
    k.e("s_lshl_b32 s53, s53, 2")
    k.e("v_add_u32 v4, s53, v4")
    k.e("v_lshlrev_b32 v4, 7, v4")
    k.e("s_lshl_b32 s53, s52, 1")
    k.e("s_add_u32 s53, s53, s26")
    k.e("s_mul_i32 s53, s53, 3072")
    k.e("v_add3_u32 v4, v4, v5, s53")
    k.e("s_mov_b32 s65, 196608")
    k.e("s_mov_b32 s64, 196608")
    k.e(f"s_branch {ex}")
    k.lab(wx)
    k.e("s_cmp_eq_u32 s26, 2")
    k.e(f"s_cbranch_scc0 {wo}")
    srd(k, SRD_T, P_BX, 2 << 20)
    k.e("v_min_u32 v4, 15, v0")
    k.e("s_and_b32 s53, s50, 3")
    k.e("s_lshl_b32 s53, s53, 9")
    k.e("s_lshl_b32 s54, s52, 4")
    k.e("s_add_u32 s53, s53, s54")
    k.e("v_add_u32 v4, s53, v4")
    k.e("v_lshlrev_b32 v4, 10, v4")
    k.e("s_mov_b32 s65, 128")
    k.e("s_mov_b32 s64, 128")
    k.e(f"s_branch {ex}")
    k.lab(wo)
    k.e("s_lshr_b32 s53, s50, 2")
    k.e("s_cmp_eq_u32 s53, 0")
    k.e(f"s_cselect_b32 s{SRD_T}, s{P_AWO}, s{P_BWO}")
    k.e(f"s_cselect_b32 s{SRD_T+1}, s{P_AWO+1}, s{P_BWO+1}")
    k.e(f"s_mov_b32 s{SRD_T+2}, 0x{512*1024:x}")
    k.e(f"s_mov_b32 s{SRD_T+3}, 0x20000")
    k.e("v_min_u32 v4, 8, v0")
    k.e("v_lshlrev_b32 v4, 7, v4")
    k.e("s_lshl_b32 s53, s52, 14")
    k.e("v_add_u32 v4, s53, v4")
    k.e("s_mov_b32 s65, 1152")
    k.e("s_mov_b32 s64, 0")
    k.lab(ex)

def pf_issue(k):
    sk = k.u("pfsw")
    k.e("s_cmp_eq_u32 s66, 8")
    k.e(f"s_cbranch_scc0 {sk}")
    k.e("s_cmp_lt_u32 s26, 3")
    k.e(f"s_cbranch_scc0 {sk}")
    k.e("s_mov_b32 s64, 0")
    k.e("s_cmp_lt_u32 s26, 2")
    k.e(f"s_cselect_b32 s{SRD_T}, s{P_AW}, s{P_AX}")
    k.e(f"s_cselect_b32 s{SRD_T+1}, s{P_AW+1}, s{P_AX+1}")
    k.lab(sk)
    k.e(f"buffer_load_dword v5, v4, {sr(SRD_T,4)}, s64 offen")
    k.e("s_add_u32 s64, s64, s65")
    k.e("s_add_u32 s66, s66, 1")

def loader(k):
    k.e(f"s_sub_u32 s26, s{S_WAVE}, 4")
    k.e("v_lshrrev_b32 v4, 3, v0")
    k.e("v_and_b32 v5, 7, v0")
    k.e("v_lshrrev_b32 v6, 1, v4")
    k.e("v_xor_b32 v7, v5, v6")
    k.e("v_lshlrev_b32 v7, 4, v7")
    k.e(f"s_lshl_b32 s48, s{S_RB}, 6")
    k.e("s_lshl_b32 s49, s26, 4")
    k.e("s_add_u32 s48, s48, s49")
    k.e("v_add_u32 v1, s48, v4")
    k.e("v_lshlrev_b32 v1, 10, v1")
    k.e("v_add_u32 v2, 7168, v1")
    k.e("v_add_u32 v1, v1, v7")
    k.e("v_xor_b32 v7, 64, v7")
    k.e("v_add_u32 v2, v2, v7")
    k.e("v_add_u32 v3, s49, v4")
    k.e("v_mul_u32_u24 v3, 3072, v3")
    k.e("v_and_b32 v6, 2, v4")
    k.e("v_lshlrev_b32 v6, 1, v6")
    k.e("v_xor_b32 v6, v5, v6")
    k.e("v_lshlrev_b32 v6, 4, v6")
    k.e(f"s_lshl_b32 s49, s{S_G}, 7")
    k.e("v_add3_u32 v3, v3, v6, s49")
    k.e("s_lshl_b32 s51, s26, 11")
    k.e("s_mov_b32 s57, 0")
    if OPT['rot'] == 8:
        k.e(f"s_and_b32 s59, s{S_G}, 3")
        k.e("s_lshl_b32 s59, s59, 1")
        k.e(f"s_add_u32 s59, s59, s{S_RB}")
        k.e("s_and_b32 s59, s59, 7")
    elif OPT['rot'] == 2:
        k.e(f"s_add_u32 s59, s{S_G}, s{S_RB}")
        k.e("s_and_b32 s59, s59, 1")
        k.e("s_lshl_b32 s59, s59, 2")
    elif OPT['rot'] == 4:
        k.e(f"s_add_u32 s59, s{S_G}, s{S_RB}")
        k.e("s_and_b32 s59, s59, 3")
        k.e("s_lshl_b32 s59, s59, 1")
    else:
        k.e("s_mov_b32 s59, 0")
    k.e("s_waitcnt lgkmcnt(0)")
    if k.stamps: k.e("s_mov_b32 s72, s70")
    srd(k, SRD_X, P_BX, 2 << 20)
    srd(k, SRD_W, P_BW, 512*3072)
    issue_stage(k)
    if OPT['tpf']:
        pfsetup(k)
        for j in range(4): pf_issue(k)
    else:
        issue_stage(k)
    srd(k, SRD_WS, P_WS, 256 << 20)
    sk = k.u("nopf")
    k.e("s_cmp_eq_u32 s26, 3")
    k.e(f"s_cbranch_scc0 {sk}")
    k.e("s_getpc_b64 s[62:63]")
    k.lab("L_pc")
    k.e("s_and_b32 s62, s62, 0xffffff00")
    k.e("v_lshlrev_b32 v8, 7, v0")
    k.e(f"s_sub_u32 s62, s62, PF_BACK")
    k.e("s_subb_u32 s63, s63, 0")
    k.e("global_load_dword v9, v8, s[62:63]")
    k.e("v_add_u32 v8, 8192, v8")
    k.e("global_load_dword v10, v8, s[62:63]")
    k.e("v_add_u32 v8, 8192, v8")
    k.e("global_load_dword v11, v8, s[62:63]")
    k.lab(sk)
    ny = 4 if OPT['tpf'] else 8
    k.e(f"s_waitcnt vmcnt({ny+3})")
    sk = k.u("w7")
    k.e("s_cmp_eq_u32 s26, 3")
    k.e(f"s_cbranch_scc1 {sk}")
    k.e(f"s_waitcnt vmcnt({ny})")
    k.lab(sk)
    k.e("s_barrier")
    if OPT['tpf']: issue_stage(k)
    issue_stage(k)
    sk = k.u("nozero")
    k.e(f"s_cmp_eq_u32 s{S_RB}, 0")
    k.e(f"s_cbranch_scc0 {sk}")
    k.e("s_cmp_lt_u32 s26, 2")
    k.e(f"s_cbranch_scc0 {sk}")
    k.e(f"s_lshl_b32 s48, s{S_G}, 1")
    k.e("s_add_u32 s48, s48, s26")
    k.e("s_lshl_b32 s48, s48, 12")
    k.e(f"s_add_u32 s48, s48, {KVACC}")
    for j in range(4): k.e(f"v_mov_b32 v{12+j}, 0")
    k.e("v_lshlrev_b32 v8, 4, v0")
    for j in range(3): k.e(f"buffer_store_dwordx4 v[12:15], v8, {WS}, s48 offen offset:{j*1024} sc1")
    k.e("s_waitcnt vmcnt(3)")
    k.lab(sk)
    attn_setup(k)
    k.stamp(1)
    k.e("s_mov_b32 s48, 0")
    lp = k.u("ldloop")
    k.lab(lp)
    w8 = k.u("w8"); w9 = k.u("w9"); wd = k.u("wd")
    if not OPT['tpf']: k.e(f"s_branch {w8}")
    k.e("s_cmp_eq_u32 s48, 0")
    k.e(f"s_cbranch_scc1 {w8}")
    k.e("s_cmp_eq_u32 s48, 1")
    k.e(f"s_cbranch_scc1 {w9}")
    k.e("s_cmp_eq_u32 s48, 12")
    k.e(f"s_cbranch_scc1 {w9}")
    k.e("s_waitcnt vmcnt(10)")
    k.e(f"s_branch {wd}")
    k.lab(w9)
    k.e("s_waitcnt vmcnt(9)")
    k.e(f"s_branch {wd}")
    k.lab(w8)
    k.e("s_waitcnt vmcnt(8)")
    k.lab(wd)
    k.e("s_barrier")
    if OPT['stagest']:
        k.e("s_memrealtime s[90:91]"); k.e("s_waitcnt lgkmcnt(0)")
        k.e("s_mov_b32 m0, s48")
        k.e("s_nop 0")
        k.e("v_writelane_b32 v252, s90, m0")
    sk = k.u("nonn")
    k.e("s_cmp_eq_u32 s48, 8")
    k.e(f"s_cbranch_scc0 {sk}")
    read_nonce(k, 8, 9)
    k.lab(sk)
    sk = k.u("nosig")
    k.e("s_cmp_eq_u32 s48, 10")
    k.e(f"s_cbranch_scc0 {sk}")
    k.e("s_cmp_eq_u32 s26, 0")
    k.e(f"s_cbranch_scc0 {sk}")
    k.e(f"s_lshl_b32 s49, s{S_G}, 12")
    k.e(f"s_lshl_b32 s50, s{S_RB}, 7")
    k.e("s_add_u32 s49, s49, s50")
    k.e(f"s_add_u32 s49, s49, {F1B}")
    store_flag(k, 49)
    k.lab(sk)
    issue_stage(k)
    if OPT['tpf']:
        sk = k.u("nopfi")
        k.e("s_cmp_le_u32 s48, 10")
        k.e(f"s_cbranch_scc0 {sk}")
        pf_issue(k)
        k.lab(sk)
    k.e("s_add_u32 s48, s48, 1")
    k.e("s_cmp_lt_u32 s48, 13")
    k.e(f"s_cbranch_scc1 {lp}")
    k.e(f"s_sub_u32 s48, s{S_RB}, 4")
    k.e("v_add_u32 v8, s48, v0")
    k.e("v_max_i32 v8, 0, v8")
    k.e("v_cmp_gt_u32 vcc, 4, v0")
    k.e(f"s_lshl_b32 s49, s{S_G}, 12")
    k.e(f"s_add_u32 s49, s49, {F1B}")
    k.e("v_cndmask_b32 v8, 0, v8, vcc")
    k.e("v_lshlrev_b32 v8, 7, v8")
    k.e("v_add_u32 v8, s49, v8")
    k.e("s_waitcnt vmcnt(8)");  k.e("s_barrier")
    np_ = k.u("nopollw"); j14 = k.u("j14")
    k.e("s_cmp_eq_u32 s26, 0")
    k.e(f"s_cbranch_scc0 {np_}")
    k.e("s_mov_b64 exec, 31")
    k.e(f"buffer_load_dword v9, v8, {WS}, 0 offen sc1")
    poll_flags(k, 8, 9, "f1b", first_issued=True)
    k.e("s_mov_b64 exec, -1")
    k.lab(np_)
    k.e("s_waitcnt vmcnt(0)");  k.e("s_barrier")
    k.stamp(5)
    sk = k.u("norem")
    k.e(f"s_cmp_eq_u32 s{S_RB}, 0")
    k.e(f"s_cbranch_scc1 {sk}")
    k.e("v_lshlrev_b32 v8, 4, v0")
    k.e(f"s_lshl_b32 s48, s{S_G}, 2")
    k.e("s_add_u32 s48, s48, s26")
    k.e("s_lshl_b32 s48, s48, 6")
    k.e(f"s_lshl_b32 s49, s{S_RB}, 1")
    k.e("s_sub_u32 s49, s49, 8")
    for j in range(8):
        k.e(f"s_add_i32 s50, s49, {j}")
        k.e("s_max_i32 s50, s50, 0")
        k.e("s_add_u32 s50, s50, s48")
        k.e("s_lshl_b32 s50, s50, 10")
        k.e(f"s_add_u32 s51, s50, {VB_G}")
        k.e(f"buffer_load_dwordx4 {vr(16+4*j,4)}, v8, {WS}, s50 offen sc1")
        k.e(f"buffer_load_dwordx4 {vr(48+4*j,4)}, v8, {WS}, s51 offen sc1")
    k.lab(sk)
    k.e("s_barrier")
    sk = k.u("norem2")
    k.e(f"s_cmp_eq_u32 s{S_RB}, 0")
    k.e(f"s_cbranch_scc1 {sk}")
    k.e("s_lshl_b32 s48, s26, 13")
    k.e("v_add_u32 v9, s48, v8")
    for j in range(8):
        k.e(f"s_waitcnt vmcnt({14-2*j})")
        k.e(f"ds_write_b128 v9, {vr(16+4*j,4)} offset:{RK_L + j*1024}")
        k.e(f"ds_write_b128 v9, {vr(48+4*j,4)} offset:{RV_L + j*1024}")
    k.lab(sk)
    k.e("s_waitcnt lgkmcnt(0)")
    k.stamp(6)
    k.e("s_barrier")
    k.stamp(4)

AQ_, AKF, AS, AMD, AMF, ACN, AP, AVB, AO = 4, 8, [44, 60, 76], 216, 232, 124, 140, [148, 156], 176
AM, AT = 192, 193
AK0, AK7, AK8, AV0, AV7, AV8 = 196, 197, 198, 199, 200, 201
KVR = 208
VPOLL, VPA = 248, 249

def v_reads(k, buf, vaddr, off):
    k.e("s_mov_b64 exec, s[64:65]")
    k.e(f"ds_read_b128 {vr(AVB[buf],4)}, v{vaddr} offset:{off}")
    k.e(f"ds_read_b128 {vr(AVB[buf]+4,4)}, v{vaddr} offset:{off+512}")
    k.e("s_mov_b64 exec, -1")

def sig_f1a(k):
    sk = k.u("nosigA")
    k.e(f"s_cmp_lt_u32 s{S_WAVE}, 2")
    k.e(f"s_cbranch_scc0 {sk}")
    k.e("s_waitcnt vmcnt(0)")
    k.e(f"s_lshl_b32 s52, s{S_G}, 13")
    k.e(f"s_lshl_b32 s53, s{S_RB}, 1")
    k.e(f"s_add_u32 s53, s53, s{S_WAVE}")
    k.e("s_lshl_b32 s53, s53, 7")
    k.e("s_add_u32 s52, s52, s53")
    k.e(f"s_add_u32 s52, s52, {F1A}")
    store_flag(k, 52)
    k.lab(sk)

def attn_setup(k):
    k.e(f"s_and_b32 s86, s{S_WAVE}, 1")
    k.e(f"s_lshr_b32 s87, s{S_WAVE}, 1")
    k.e(f"v_lshlrev_b32 v{AT}, 4, v0")
    k.e("s_lshl_b32 s88, s86, 10")
    k.e("s_lshl_b32 s89, s87, 13")
    k.e("s_lshl_b32 s92, s87, 11")
    k.e("s_add_u32 s93, s89, s88")
    k.e(f"v_add_u32 v{AK0}, s93, v{AT}")
    k.e(f"s_add_u32 s94, s89, {7*1024}")
    k.e(f"s_add_u32 s100, s92, {OK_L}")
    k.e("s_cmp_eq_u32 s86, 0")
    k.e("s_cselect_b32 s94, s94, s100")
    k.e(f"v_add_u32 v{AK7}, s94, v{AT}")
    k.e("s_add_u32 s100, s100, s88")
    k.e(f"v_add_u32 v{AK8}, s100, v{AT}")
    k.e("v_lshrrev_b32 v202, 5, v0")
    k.e("v_lshlrev_b32 v202, 8, v202")
    k.e("v_and_b32 v203, 15, v0")
    k.e("v_lshlrev_b32 v203, 4, v203")
    k.e("v_add_u32 v202, v202, v203")
    k.e(f"s_add_u32 s94, s93, {RV_L}")
    k.e(f"v_add_u32 v{AV0}, s94, v202")
    k.e(f"s_add_u32 s94, s89, {RV_L + 7*1024}")
    k.e(f"s_add_u32 s100, s92, {OV_L}")
    k.e("s_cmp_eq_u32 s86, 0")
    k.e("s_cselect_b32 s94, s94, s100")
    k.e(f"v_add_u32 v{AV7}, s94, v202")
    k.e("s_add_u32 s100, s100, s88")
    k.e(f"v_add_u32 v{AV8}, s100, v202")
    k.e("v_and_b32 v202, 31, v0")
    k.e("v_lshrrev_b32 v203, 5, v0")
    k.e("v_lshlrev_b32 v203, 2, v203")
    k.e("v_sub_u32 v202, v202, v203")
    k.e("v_cvt_f32_i32 v202, v202")
    k.e(f"v_mov_b32 v203, {lit(BIG)}")
    for i in range(16):
        ci = 8*(i >> 2) + (i & 3)
        k.e(f"v_fmaak_f32 v{AMD+i}, v202, v203, {lit((0.5-ci)*BIG)}")
    for i in range(16): k.e(f"v_min_f32 v{AMF+i}, -v{AMD+i}, 0")
    for i in range(16): k.e(f"v_min_f32 v{AMD+i}, 0, v{AMD+i}")
    k.e(f"v_mov_b32 v{AM}, 0xff7fffff")
    k.e(f"s_lshl_b32 s87, s{S_G}, 13")
    k.e(f"s_add_u32 s87, s87, {F1A}")
    k.e(f"v_lshlrev_b32 v{VPA}, 7, v0")
    k.e(f"v_add_u32 v{VPA}, s87, v{VPA}")

def wo_setup(k):
    k.e("s_and_b32 s50, s2, 7")
    k.e("s_lshr_b32 s51, s2, 3")
    k.e("s_lshr_b32 s52, s50, 2")
    k.e("s_lshr_b32 s53, s51, 2")
    k.e("s_cmp_eq_u32 s52, 0")
    k.e(f"s_cselect_b32 s{SRD_WO}, s{P_AWO}, s{P_BWO}")
    k.e(f"s_cselect_b32 s{SRD_WO+1}, s{P_AWO+1}, s{P_BWO+1}")
    k.e(f"s_mov_b32 s{SRD_WO+2}, 0x{512*1024:x}")
    k.e(f"s_mov_b32 s{SRD_WO+3}, 0x20000")
    k.e("v_lshrrev_b32 v204, 3, v0")
    k.e("v_and_b32 v205, 7, v0")
    k.e("v_and_b32 v206, 2, v204")
    k.e("v_lshlrev_b32 v206, 1, v206")
    k.e("v_xor_b32 v206, v205, v206")
    k.e("v_lshlrev_b32 v206, 4, v206")
    k.e(f"s_sub_u32 s54, s{S_WAVE}, 4")
    k.e("s_lshl_b32 s50, s54, 7")
    k.e("v_add_u32 v204, s50, v204")
    k.e("v_lshlrev_b32 v204, 10, v204")
    k.e("s_lshl_b32 s50, s53, 7")
    k.e("v_add3_u32 v205, v204, v206, s50")
    k.e("s_lshl_b32 s96, s54, 14")
    k.e(f"s_add_u32 s96, s96, {WO_L}")
    k.e("s_mov_b32 s97, 0")

def wo_pair(k):
    k.e("s_mov_b32 m0, s96")
    k.e("s_add_u32 s98, s97, 7168")
    k.e(f"buffer_load_dwordx4 v205, {sr(SRD_WO,4)}, s97 offen lds")
    k.e(f"buffer_load_dwordx4 v205, {sr(SRD_WO,4)}, s98 offen offset:1024 lds")
    k.e("s_add_u32 s96, s96, 2048")
    k.e("s_add_u32 s97, s97, 16384")

KVL = 0
def kv_loads(k):
    k.e(f"s_lshl_b32 s50, s{S_G}, 13")
    k.e(f"s_add_u32 s50, s50, {KVACC}")
    k.e("s_add_u32 s51, s50, 4096")
    k.e(f"buffer_load_dwordx4 {vr(KVR,4)}, v1, {WS}, s50 offen sc1")
    k.e(f"buffer_load_dwordx4 {vr(KVR+4,4)}, v1, {WS}, s50 offen offset:1024 sc1")
    k.e(f"buffer_load_dwordx4 {vr(164,4)}, v1, {WS}, s51 offen sc1")
    k.e(f"buffer_load_dwordx4 {vr(168,4)}, v1, {WS}, s51 offen offset:1024 sc1")
    k.e("v_lshrrev_b32 v202, 5, v0")
    k.e("v_lshlrev_b32 v202, 12, v202")
    k.e("v_and_b32 v203, 31, v0")
    k.e("v_lshl_add_u32 v202, v203, 2, v202")
    k.e(f"buffer_load_dword v172, v202, {WS}, s50 offen offset:2048 sc1")

def attention(k):
    k.c("attention: i = w&1 (s26), hh = w>>1 (s27), qt = s48, s99 = kv loads issued flag")
    k.e(f"s_and_b32 s26, s{S_WAVE}, 1")
    k.e(f"s_lshr_b32 s27, s{S_WAVE}, 1")
    k.e(f"s_lshl_b32 s48, s{S_RB}, 1")
    k.e("s_add_u32 s48, s48, s26")
    k.e("v_lshlrev_b32 v1, 4, v0")
    k.e("s_lshl_b32 s49, s27, 11")
    k.e("s_lshl_b32 s50, s26, 10")
    k.e("s_add_u32 s49, s49, s50")
    k.e(f"s_add_u32 s49, s49, {Q_L}")
    k.e("v_add_u32 v2, s49, v1")
    k.e(f"ds_read_b128 {vr(AQ_,4)}, v2")
    def kaddr(p): return (AK0, RK_L + p*1024) if p <= 6 else ((AK7, 0) if p == 7 else (AK8, 0))
    def vaddr(p): return (AV0, p*1024) if p <= 6 else ((AV7, 0) if p == 7 else (AV8, 0))
    for p in range(9):
        a, o = kaddr(p); k.e(f"ds_read_b128 {vr(AKF+4*p,4)}, v{a} offset:{o}")
    k.e("s_mov_b32 s64, 0xffff")
    k.e("s_mov_b32 s65, 0xffff")
    k.e("s_mov_b32 s99, 0")
    for b in range(2):
        for j in range(8): k.e(f"v_mov_b32 v{AVB[b]+j}, 0x3f803f80")
    sk = k.u("nowo")
    k.e(f"s_cmp_ge_u32 s{S_WAVE}, 4")
    k.e(f"s_cbranch_scc0 {sk}")
    wo_setup(k)
    for j in range(8): wo_pair(k)
    k.lab(sk)
    Q = vr(AQ_, 4)
    def qk(dst, p, c): k.e(f"{MF} {vr(dst,16)}, {vr(AKF+4*p,4)}, {Q}, {c}")
    def c1(p): return vr(AMF,16) if p == 0 else (vr(AMD,16) if p == 8 else "0")
    def c2(p): return vr(AMF,16) if p == 0 else (vr(AMD,16) if p == 8 else vr(ACN,16))
    k.e("s_sub_i32 s95, 8, s48")
    k.e("s_max_i32 s95, s95, 0")
    P1 = [k.u(f"p1_{p}") for p in range(9)]
    P2 = [k.u(f"p2_{p}") for p in range(9)]
    E1 = [k.u(f"e1_{p}") for p in range(9)]
    E2 = [k.u(f"e2_{p}") for p in range(9)]
    k.e("s_waitcnt lgkmcnt(0)")
    for p in range(1, 9):
        k.e(f"s_cmp_eq_u32 s95, {p}")
        k.e(f"s_cbranch_scc1 {E1[p]}")
    qk(AS[0], 0, c1(0)); qk(AS[1], 1, c1(1)); qk(AS[2], 2, c1(2))
    k.e("s_nop 9")
    for p in range(9):
        k.lab(P1[p])
        s_ = AS[p % 3]
        for j in range(8): k.e(f"v_max3_f32 v{AM}, v{s_+2*j}, v{s_+2*j+1}, v{AM}")
        if p + 3 <= 8: qk(s_, p + 3, c1(p + 3))
    k.e(f"v_mov_b32 v{AT}, v{AM}")
    k.e("s_nop 1")
    k.e(f"v_permlane32_swap_b32 v{AM}, v{AT}")
    k.e(f"v_max_f32 v{AM}, v{AM}, v{AT}")
    k.e(f"v_sub_f32 v{AM}, 0, v{AM}")
    for i in range(16): k.e(f"v_mov_b32 v{ACN+i}, v{AM}")
    for i in range(16): k.e(f"v_add_f32 v{AMD+i}, v{AMD+i}, v{AM}")
    k.stamp(8)
    k.e("s_cmp_eq_u32 s95, 0")
    sh = k.u("short2")
    k.e(f"s_cbranch_scc0 {sh}")
    for i in range(16): k.e(f"v_add_f32 v{AMF+i}, v{AMF+i}, v{AM}")
    v_reads(k, 0, *vaddr(0))
    k.e("s_nop 0")
    qk(AS[0], 0, c2(0))
    k.e("s_nop 6")
    for p in range(9):
        k.lab(P2[p])
        cur = AS[p % 2]; nxt = AS[(p + 1) % 2]
        if p < 8:
            qk(nxt, p + 1, c2(p + 1))
            v_reads(k, (p + 1) % 2, *vaddr(p + 1))
        hooks = k.u("nohook")
        if p in (3, 5, 8):
            k.e("s_cmp_eq_u32 s95, 0")
            k.e(f"s_cbranch_scc0 {hooks}")
            if p == 3: sig_f1a(k)
            if p in (5, 8):
                k.e(f"s_cmp_eq_u32 s{S_WAVE}, 4")
                k.e(f"s_cbranch_scc0 {hooks}")
            if p == 5: k.e(f"buffer_load_dword v{VPOLL}, v{VPA}, {WS}, 0 offen sc1")
            if p == 8:
                k.stamp(14)
                k.e("s_waitcnt vmcnt(0)")
                k.stamp(15)
                k.e(f"v_cmp_ne_u32 vcc, s{S_NONCE}, v{VPOLL}")
                k.e("s_nop 1")
                k.e(f"s_cbranch_vccnz {hooks}")
                kv_loads(k)
                k.e("s_mov_b32 s99, 1")
            k.lab(hooks)
        for j in range(16): k.e(f"v_exp_f32 v{cur+j}, v{cur+j}")
        for j in range(8): k.e(f"v_cvt_pk_bf16_f32 v{AP+j}, v{cur+2*j}, v{cur+2*j+1}")
        k.e(f"s_waitcnt lgkmcnt({2 if p < 8 else 0})")
        vb = AVB[p % 2]
        k.e(f"{MF} {vr(AO,16)}, {vr(vb,4)}, {vr(AP,4)}, {'0' if p == 0 else vr(AO,16)}")
        k.e("s_nop 0")
        k.e(f"{MF} {vr(AO,16)}, {vr(vb+4,4)}, {vr(AP+4,4)}, {vr(AO,16)}")
    done = k.u("attdone")
    k.e(f"s_branch {done}")
    for p in range(1, 9):
        k.lab(E1[p])
        for q in range(p, min(p + 3, 9)): qk(AS[q % 3], q, c1(q))
        k.e("s_nop 10")
        k.e(f"s_branch {P1[p]}")
    k.lab(sh)
    for i in range(16): k.e(f"v_mov_b32 v{AO+i}, 0")
    sig_f1a(k)
    sk = k.u("shpoll")
    k.e(f"s_cmp_eq_u32 s{S_WAVE}, 4")
    k.e(f"s_cbranch_scc0 {sk}")
    k.e(f"buffer_load_dword v{VPOLL}, v{VPA}, {WS}, 0 offen sc1")
    k.lab(sk)
    for p in range(1, 9):
        k.e(f"s_cmp_eq_u32 s95, {p}")
        k.e(f"s_cbranch_scc1 {E2[p]}")
    k.e(f"s_branch {E2[8]}")
    for p in range(1, 9):
        k.lab(E2[p])
        qk(AS[p % 2], p, c2(p))
        v_reads(k, p % 2, *vaddr(p))
        k.e("s_nop 6")
        k.e(f"s_branch {P2[p]}")
    k.lab(done)

def apart(k):
    sk = k.u("kvdone")
    k.e(f"s_cmp_eq_u32 s{S_WAVE}, 4")
    k.e(f"s_cbranch_scc0 {sk}")
    k.e("s_cmp_eq_u32 s99, 1")
    k.e(f"s_cbranch_scc1 {sk}")
    poll_flags(k, VPA, VPOLL, "f1a", first_issued=True)
    kv_loads(k)
    k.lab(sk)
    k.e("s_nop 8")
    k.e(f"v_rcp_f32 v{AT}, v{AO+8}")
    k.e("s_nop 0")
    for j in range(8): k.e(f"v_mul_f32 v{AO+j}, v{AO+j}, v{AT}")
    cvt8(k, AP, AO)
    k.e(f"s_lshl_b32 s49, s{S_G}, 2")
    k.e("s_add_u32 s49, s49, s27")
    k.e("s_lshl_b32 s50, s48, 5")
    k.e("s_add_u32 s49, s49, s50")
    k.e("s_lshl_b32 s49, s49, 10")
    k.e(f"s_add_u32 s50, s49, {O_G + (2<<20)}")
    k.e(f"buffer_store_dwordx4 {vr(AP,4)}, v1, {WS}, s50 offen sc1")
    k.e("s_barrier")
    sk = k.u("nokvw")
    k.e(f"s_cmp_eq_u32 s{S_WAVE}, 4")
    k.e(f"s_cbranch_scc0 {sk}")
    k.e("s_waitcnt vmcnt(1)")
    k.e(f"ds_write_b128 v1, {vr(KVR,4)} offset:{KVL}")
    k.e(f"ds_write_b128 v1, {vr(KVR+4,4)} offset:{KVL+1024}")
    k.e(f"ds_write_b128 v1, {vr(164,4)} offset:{KVL+4096}")
    k.e(f"ds_write_b128 v1, {vr(168,4)} offset:{KVL+4096+1024}")
    k.e("v_lshrrev_b32 v202, 5, v0")
    k.e("v_lshlrev_b32 v202, 12, v202")
    k.e("v_and_b32 v203, 31, v0")
    k.e("v_lshl_add_u32 v202, v203, 2, v202")
    k.e(f"ds_write_b32 v202, v172 offset:{KVL+2048}")
    k.e("s_waitcnt lgkmcnt(0)")
    k.lab(sk)
    k.e("s_lshr_b32 s51, s27, 1")
    k.e("s_lshl_b32 s51, s51, 12")
    k.e("s_and_b32 s52, s27, 1")
    k.e("s_lshl_b32 s52, s52, 6")
    k.e("s_add_u32 s51, s51, s52")
    k.e("v_lshrrev_b32 v203, 5, v0")
    k.e("v_and_b32 v202, 15, v0")
    k.e("v_lshl_add_u32 v202, v203, 5, v202")
    k.e("v_lshlrev_b32 v202, 2, v202")
    k.e("v_add_u32 v202, s51, v202")
    k.e("v_lshlrev_b32 v203, 4, v203")
    k.e("v_add_u32 v203, s51, v203")
    k.e("s_lshl_b32 s51, s27, 11")
    k.e("s_lshl_b32 s50, s26, 10")
    k.e("s_add_u32 s51, s51, s50")
    k.e(f"s_add_u32 s51, s51, {PQ_L}")
    k.e("v_add_u32 v2, s51, v1")
    k.e(f"ds_read_b128 {vr(AQ_,4)}, v2")
    k.e("s_barrier")
    k.e("s_mov_b64 exec, s[64:65]")
    for t in range(8): k.e(f"ds_read_b32 v{KVR+t}, v202 offset:{KVL + t*256}")
    k.e("s_not_b64 exec, s[64:65]")
    k.e(f"ds_read_b128 {vr(KVR,4)}, v203 offset:{KVL+2048}")
    k.e(f"ds_read_b128 {vr(KVR+4,4)}, v203 offset:{KVL+2048+32}")
    k.e("s_mov_b64 exec, -1")
    k.e("s_waitcnt lgkmcnt(0)")
    cvt8(k, 8, KVR)
    k.e("s_nop 1")
    k.e(f"{MF} {vr(44,16)}, {vr(8,4)}, {vr(AQ_,4)}, 0")
    k.e(f"s_mov_b32 s62, {lit(1e-6)}")
    k.e("s_nop 10")
    k.e("v_add_f32 v12, s62, v52")
    k.e("v_rcp_f32 v12, v12")
    k.e("s_nop 0")
    for j in range(8): k.e(f"v_mul_f32 v{44+j}, v{44+j}, v12")
    cvt8(k, 16, 44)
    k.e(f"s_add_u32 s50, s49, {O_G}")
    k.e(f"buffer_store_dwordx4 {vr(16,4)}, v1, {WS}, s50 offen sc1")

def p3(k):
    k.c("P3: out tile 128x64")
    k.e("s_and_b32 s48, s2, 7")
    k.e("s_lshr_b32 s49, s2, 3")
    k.e("s_lshr_b32 s66, s48, 2")
    k.e("s_and_b32 s67, s48, 3")
    k.e("s_lshl_b32 s67, s67, 2")
    k.e("s_and_b32 s50, s49, 3")
    k.e("s_add_u32 s67, s67, s50")
    k.e("s_lshr_b32 s68, s49, 2")
    k.e("s_lshl_b32 s48, s67, 11")
    k.e(f"s_add_u32 s48, s48, {F2}")
    k.e("v_and_b32 v8, 15, v0")
    k.e("v_lshlrev_b32 v8, 7, v8")
    k.e("v_add_u32 v8, s48, v8")
    OF, ACC3, WF = 8+4, 144, [176, 184]
    VA0, VA1 = 192, 193
    k.e("v_bfe_u32 v2, v0, 2, 2")
    k.e("v_and_b32 v3, 3, v0")
    k.e("v_bfe_u32 v4, v0, 4, 1")
    k.e("v_lshrrev_b32 v5, 5, v0")
    k.e("v_lshlrev_b32 v5, 2, v5")
    k.e("v_add_u32 v5, v5, v2")
    k.e("v_lshlrev_b32 v5, 7, v5")
    k.e("v_and_b32 v6, 1, v3")
    k.e("v_lshlrev_b32 v6, 1, v6")
    k.e("v_add_u32 v6, v6, v4")
    k.e("v_and_b32 v7, 2, v2")
    k.e("v_lshlrev_b32 v7, 1, v7")
    k.e("v_xor_b32 v6, v6, v7")
    k.e("v_lshlrev_b32 v6, 4, v6")
    k.e("v_lshrrev_b32 v3, 1, v3")
    k.e("v_lshlrev_b32 v3, 3, v3")
    k.e("v_add3_u32 v5, v5, v6, v3")
    k.e("s_and_b32 s51, s68, 3")
    k.e("s_lshl_b32 s52, s51, 14")
    k.e(f"s_add_u32 s52, s52, {WO_L}")
    k.e(f"v_add_u32 v{VA0}, s52, v5")
    k.e(f"v_xor_b32 v{VA1}, 64, v{VA0}")
    k.e("s_lshl_b32 s48, s67, 2")
    k.e(f"s_add_u32 s48, s48, s{S_WAVE}")
    k.e("s_lshl_b32 s49, s48, 15")
    k.e("s_lshl_b32 s50, s66, 21")
    k.e("s_add_u32 s49, s49, s50")
    k.e(f"s_add_u32 s49, s49, {O_G}")
    k.e("v_lshlrev_b32 v1, 4, v0")
    sk = k.u("nof2poll")
    k.e(f"s_cmp_eq_u32 s{S_WAVE}, 0")
    k.e(f"s_cbranch_scc0 {sk}")
    k.e("s_mov_b64 exec, 0xffff")
    poll_flags(k, 8, 9, "f2")
    k.e("s_mov_b64 exec, -1")
    k.lab(sk)
    k.e("s_barrier")
    k.e(f"s_cmp_ge_u32 s{S_WAVE}, 4")
    k.e("s_cbranch_scc1 L_fin")
    k.stamp(12)
    for blk in range(4):
        k.e(f"s_add_u32 s52, s51, {blk}")
        k.e("s_and_b32 s52, s52, 3")
        k.e("s_lshl_b32 s52, s52, 13")
        k.e("s_add_u32 s52, s52, s49")
        k.e("s_add_u32 s53, s52, 4096")
        for j in range(8):
            hd = blk*8 + j
            k.e(f"buffer_load_dwordx4 {vr(OF+4*hd,4)}, v1, {WS}, {'s52' if j < 4 else 's53'} offen offset:{(j%4)*1024} sc1")
    def wreads(buf, j):
        for b in range(2):
            for s2 in range(2):
                k.e(f"ds_read_b64_tr_b16 {vr(WF[buf]+4*b+2*s2,2)}, v{VA0+b} offset:{j*2048 + s2*1024}")
    def advance(blk):
        k.e(f"s_add_u32 s52, s51, {blk}")
        k.e("s_and_b32 s52, s52, 3")
        k.e("s_cmp_eq_u32 s52, 0")
        k.e(f"s_cselect_b32 s52, 0x{(-3*16384) & 0xffffffff:x}, s69")
        k.e(f"v_add_u32 v{VA0}, s52, v{VA0}")
        k.e(f"v_add_u32 v{VA1}, s52, v{VA1}")
    k.e("s_mov_b32 s69, 16384")
    wreads(0, 0)
    for hd in range(32):
        if hd < 31:
            nj = (hd + 1) % 8
            if nj == 0: advance((hd + 1)//8)
            wreads((hd + 1) % 2, nj)
        k.e(f"s_waitcnt vmcnt({31-hd}) lgkmcnt({4 if hd < 31 else 0})")
        if OPT.get('p3st') and hd in (0, 8, 31):
            k.stamp({0: 5, 8: 6, 31: 8}[hd])
        for b in range(2):
            k.e(f"{MF} {vr(ACC3+16*b,16)}, {vr(WF[hd%2]+4*b,4)}, {vr(OF+4*hd,4)}, {'0' if hd == 0 else vr(ACC3+16*b,16)}")
    srd(k, SRD_T, P_OUT, 4 << 20)
    k.e("v_and_b32 v2, 31, v0")
    k.e("s_lshl_b32 s49, s48, 5")
    k.e("v_add_u32 v2, s49, v2")
    k.e("v_lshlrev_b32 v2, 11, v2")
    k.e("v_lshrrev_b32 v3, 5, v0")
    k.e("v_lshlrev_b32 v3, 5, v3")
    k.e("s_lshl_b32 s49, s66, 10")
    k.e("s_lshl_b32 s50, s68, 7")
    k.e("s_add_u32 s49, s49, s50")
    k.e("v_add3_u32 v2, v2, v3, s49")
    k.e("s_nop 3")
    for b in range(2):
        for j in range(8): k.e(f"v_cvt_pk_bf16_f32 v{12+8*b+j}, v{ACC3+16*b+2*j}, v{ACC3+16*b+2*j+1}")
    for b in range(2):
        k.e(f"buffer_store_dwordx4 {vr(12+8*b,4)}, v2, {sr(SRD_T,4)}, 0 offen offset:{64*b}")
        k.e(f"buffer_store_dwordx4 {vr(16+8*b,4)}, v2, {sr(SRD_T,4)}, 0 offen offset:{64*b+16}")

HDR = """; Kernarg layout for this problem (72 bytes, ptrs only, base s[0:1]):
;   offset   0: d_in[0] A_x  shape=(1, 2048, 512) dtype=bfloat16
;   offset   8: d_in[1] A_wqkv  shape=(512, 1536) dtype=bfloat16
;   offset  16: d_in[2] A_wo  shape=(512, 512) dtype=bfloat16
;   offset  24: d_in[3] B_x  shape=(1, 2048, 512) dtype=bfloat16
;   offset  32: d_in[4] B_wqkv  shape=(512, 1536) dtype=bfloat16
;   offset  40: d_in[5] B_wo  shape=(512, 512) dtype=bfloat16
;   offset  48: d_out     shape=(1, 2048, 1024) dtype=bfloat16
;   offset  56: d_debug   256 bytes
;   offset  64: d_ws      268435456 bytes workspace
; @launch grid=(256,1,1) block=(512,1,1) lds=163840
.amdgcn_target "amdgcn-amd-amdhsa--gfx950"
.text
.globl KNAME
.p2align 8
.type KNAME,@function
""".replace("KNAME", KNAME)

TAIL = """.section .rodata,"a"
.p2align 6
.amdhsa_kernel KNAME
  .amdhsa_next_free_vgpr 256
  .amdhsa_next_free_sgpr 102
  .amdhsa_accum_offset 256
  .amdhsa_group_segment_fixed_size 0
  .amdhsa_kernarg_size 72
  .amdhsa_user_sgpr_count 2
  .amdhsa_user_sgpr_kernarg_segment_ptr 1
  .amdhsa_system_sgpr_workgroup_id_x 1
.end_amdhsa_kernel
""".replace("KNAME", KNAME)

def build(stamps=False):
    k = gen(stamps)
    body = "\n".join(k.L)
    body = body.replace("PF_BACK", f"((L_pc - {KNAME}) & 0xffffff00)")
    pad = "\n    .fill 2048, 4, 0xbf800000\n"
    return HDR + body + pad + "\n" + TAIL

if __name__ == "__main__":
    out = sys.argv[1] if len(sys.argv) > 1 else "out.s"
    stamps = "stamps" in sys.argv[2:]
    for a in sys.argv[2:]:
        if "=" in a:
            kk, vv = a.split("="); OPT[kk] = int(vv)
    txt = build(stamps)
    open(out, "w").write(txt)
    import hz
    pr = hz.check(txt)
    import subprocess
    r = subprocess.run(["clang", "-x", "assembler", "-target", "amdgcn-amd-amdhsa", "-mcpu=gfx950", "-c", out, "-o", "_chk.o"], capture_output=True, text=True)
    print("hazards:", len(pr), "lines:", txt.count("\n"), "asm:", "ok" if r.returncode == 0 else r.stderr)
```

```python
import sys, math, struct

KNAME = "concat_heads__linear_attn_block__sliding_block__prompt_kernel"

KB_G   = 0
VB_G   = 2 << 20
O_G    = 4 << 20
KVACC  = 8 << 20
FL     = (8 << 20) + (64 << 10)
F1B    = FL
F1A    = FL + (32 << 10)
F2     = FL + (96 << 10)
STAMP  = 9 << 20
SLOT   = 32768
OK_L, OV_L, Q_L, PQ_L = 131072, 139264, 147456, 155648
NONCE_L = PQ_L
RK_L, RV_L, WO_L = 0, 32768, 65536
CS = 0.25 * math.log2(math.e)
LOG2E = math.log2(math.e)
BIG = 1.0e28
SPIN_MAX = 100000
OPT = dict(rot=8, pfB=0, pfA=1, dbgstamps=0, stagest=0, pfs=1, tpf=0, p3st=0, map=0, outf=0, extra=0)

def f2u(x): return struct.unpack('<I', struct.pack('<f', x))[0]
def lit(x): return "0x%08x" % f2u(x)

class K:
    def __init__(self, stamps=False):
        self.L = []; self.stamps = stamps; self.uid = 0
    def e(self, s): self.L.append("    " + s)
    def c(self, s): self.L.append("    ; " + s)
    def lab(self, s): self.L.append(s + ":")
    def u(self, p):
        self.uid += 1; return f"L_{p}_{self.uid}"
    def stamp(self, k):
        if not self.stamps: return
        self.e("s_memrealtime s[70:71]")
        self.e("s_waitcnt lgkmcnt(0)")
        self.e(f"s_mov_b32 s{72+k}, s70")

def vr(a, n): return f"v[{a}:{a+n-1}]"
def sr(a, n): return f"s[{a}:{a+n-1}]"
MF = "v_mfma_f32_32x32x16_bf16"

S_WAVE, S_RB, S_G, S_NONCE = 22, 23, 24, 25
SRD_WS, SRD_X, SRD_W, SRD_T, SRD_WO = 28, 32, 36, 40, 44
P_AX, P_AW, P_AWO, P_BX, P_BW, P_BWO, P_OUT, P_DBG, P_WS = 4, 6, 8, 10, 12, 14, 16, 18, 20
WS = sr(SRD_WS, 4)

def srd(k, dst, ptr, size):
    k.e(f"s_mov_b32 s{dst}, s{ptr}")
    k.e(f"s_mov_b32 s{dst+1}, s{ptr+1}")
    k.e(f"s_mov_b32 s{dst+2}, 0x{size:x}")
    k.e(f"s_mov_b32 s{dst+3}, 0x20000")

def spin_guard(k, sreg, exit_label):
    k.e(f"s_add_u32 s{sreg}, s{sreg}, 1")
    k.e(f"s_cmp_gt_u32 s{sreg}, {SPIN_MAX}")
    k.e(f"s_cbranch_scc1 {exit_label}")

def poll_flags(k, vaddr, vtmp, name, first_issued=False, sleep=1):
    lp = k.u(name + "_poll"); ex = k.u(name + "_done"); chk = k.u(name + "_chk")
    k.e("s_mov_b32 s60, 0")
    if first_issued: k.e(f"s_branch {chk}")
    k.lab(lp)
    k.e(f"buffer_load_dword v{vtmp}, v{vaddr}, {WS}, 0 offen sc1")
    k.lab(chk)
    spin_guard(k, 60, ex)
    k.e("s_waitcnt vmcnt(0)")
    k.e(f"v_cmp_ne_u32 vcc, s{S_NONCE}, v{vtmp}")
    k.e("s_nop 1")
    k.e(f"s_cbranch_vccz {ex}")
    if sleep: k.e(f"s_sleep {sleep}")
    k.e(f"s_branch {lp}")
    k.lab(ex)
    k.e("s_waitcnt vmcnt(0)")

def store_flag(k, soff):
    k.e(f"v_mov_b32 v250, s{S_NONCE}")
    k.e("v_mov_b32 v251, 0")
    k.e("s_mov_b64 exec, 1")
    k.e(f"buffer_store_dword v250, v251, {WS}, s{soff} offen sc1")
    k.e("s_mov_b64 exec, -1")

def cvt8(k, dst, src):
    for j in range(4): k.e(f"v_cvt_pk_bf16_f32 v{dst+j}, v{src+2*j}, v{src+2*j+1}")

def phi(k, r, n, t):
    for i in range(0, n, 4):
        for j in range(4): k.e(f"v_mul_f32 v{t+j}, s61, v{r+i+j}")
        for j in range(4): k.e(f"v_exp_f32 v{t+j}, v{t+j} clamp")
        for j in range(4): k.e(f"v_max_f32 v{r+i+j}, 0, v{r+i+j}")
        for j in range(4): k.e(f"v_add_f32 v{r+i+j}, s62, v{r+i+j}")
        for j in range(4): k.e(f"v_add_f32 v{r+i+j}, v{t+j}, v{r+i+j}")

ACC = 8
BUF = [72, 88, 104, 120]
VXA, VWA = 136, 140
EP = 144
PFD = 208

def rd_x(k, buf, j, t): k.e(f"ds_read_b128 {vr(BUF[buf]+4*t,4)}, v{VXA+j} offset:{t*4096}")
def rd_w(k, buf, j, p, slot):
    for s2 in range(2):
        k.e(f"ds_read_b64_tr_b16 {vr(BUF[buf]+8+4*slot+2*s2,2)}, v{VWA} offset:{p*8192 + j*2048 + s2*512}")
def reads(k, role, buf, j):
    rd_x(k, buf, j, 0); rd_x(k, buf, j, 1)
    if role == 'kv': rd_w(k, buf, j, 1, 0); rd_w(k, buf, j, 2, 1)
    else: rd_w(k, buf, j, 0, 0)

def kstep(k, role, br, j, first=False):
    nb = (j + 2) & 3; b = BUF[j]
    X = [vr(b,4), vr(b+4,4)]; W = [vr(b+8,4), vr(b+12,4)]
    def C(a): return "0" if first else vr(a,16)
    if role == 'kv':
        k.e("s_waitcnt lgkmcnt(6)")
        for t in range(2):
            a = ACC + 16*t
            if br == 'B': k.e(f"{MF} {vr(a,16)}, {W[0]}, {X[t]}, {C(a)}")
            else:         k.e(f"{MF} {vr(a,16)}, {X[t]}, {W[0]}, {C(a)}")
            if t == 0: rd_x(k, nb, nb, 0); rd_x(k, nb, nb, 1)
            else: rd_w(k, nb, nb, 1, 0)
        for t in range(2):
            a = ACC + 32 + 16*t
            k.e(f"{MF} {vr(a,16)}, {X[t]}, {W[1]}, {C(a)}")
            if t == 0: rd_w(k, nb, nb, 2, 1)
    else:
        k.e("s_waitcnt lgkmcnt(4)")
        for t in range(2):
            a = ACC + 16*t
            k.e(f"{MF} {vr(a,16)}, {W[0]}, {X[t]}, {C(a)}")
            if t == 0: rd_x(k, nb, nb, 0); rd_x(k, nb, nb, 1)
            else: rd_w(k, nb, nb, 0, 0)

def consumer_tile(k, role, br, extra=None):
    lp = k.u("c"+role+br); ex = k.u("cx"+role+br)
    k.e("s_mov_b32 s48, 0")
    kstep(k, role, br, 0, first=True)
    k.lab(lp)
    k.e("s_add_u32 s49, s49, 1")
    k.e("s_and_b32 s50, s49, 3")
    k.e("s_cmp_eq_u32 s50, 0")
    k.e(f"s_cselect_b32 s50, 0x{(-3*SLOT) & 0xffffffff:x}, s69")
    kstep(k, role, br, 1)
    if extra: extra(k)
    if br == 'A':
        sk = k.u("novm")
        k.e("s_cmp_eq_u32 s48, 2")
        k.e(f"s_cbranch_scc0 {sk}")
        k.e("s_waitcnt vmcnt(0)")
        k.lab(sk)
    for j in range(4): k.e(f"v_add_u32 v{VXA+j}, s50, v{VXA+j}")
    k.e(f"v_add_u32 v{VWA}, s50, v{VWA}")
    k.e("s_barrier")
    kstep(k, role, br, 2)
    kstep(k, role, br, 3)
    k.e("s_add_u32 s48, s48, 1")
    k.e("s_cmp_lt_u32 s48, 8")
    k.e(f"s_cbranch_scc0 {ex}")
    kstep(k, role, br, 0)
    k.e(f"s_branch {lp}")
    k.lab(ex)

def consumer_setup(k):
    k.e("v_and_b32 v1, 31, v0")
    k.e("v_lshrrev_b32 v2, 5, v0")
    k.e("v_bfe_u32 v3, v0, 1, 3")
    k.e("v_xor_b32 v3, v3, v2")
    k.e("v_lshlrev_b32 v3, 4, v3")
    k.e("v_lshlrev_b32 v1, 7, v1")
    k.e(f"v_add_u32 v{VXA}, v1, v3")
    for j in range(1, 4): k.e(f"v_xor_b32 v{VXA+j}, {j<<5}, v{VXA}")
    k.e("v_bfe_u32 v1, v0, 2, 2")
    k.e("v_and_b32 v2, 3, v0")
    k.e("v_bfe_u32 v3, v0, 4, 1")
    k.e("v_lshrrev_b32 v4, 5, v0")
    k.e("v_lshlrev_b32 v4, 3, v4")
    k.e("v_add_u32 v4, v4, v1")
    k.e("v_lshlrev_b32 v4, 7, v4")
    k.e("v_lshlrev_b32 v3, 1, v3")
    k.e("v_lshrrev_b32 v5, 1, v2")
    k.e("v_add_u32 v3, v3, v5")
    k.e("s_lshl_b32 s48, s27, 2")
    k.e("v_add_u32 v3, s48, v3")
    k.e("v_and_b32 v5, 2, v1")
    k.e("v_lshlrev_b32 v5, 1, v5")
    k.e("v_xor_b32 v3, v3, v5")
    k.e("v_lshlrev_b32 v3, 4, v3")
    k.e("v_and_b32 v2, 1, v2")
    k.e("v_lshlrev_b32 v2, 3, v2")
    k.e("v_add3_u32 v4, v4, v3, v2")
    k.e(f"v_add_u32 v{VWA}, 8192, v4")

def read_nonce(k, va, vb):
    k.e(f"v_mov_b32 v{va}, {NONCE_L}")
    k.e(f"ds_read_b32 v{vb}, v{va}")
    k.e("s_waitcnt lgkmcnt(0)")
    k.e(f"v_readfirstlane_b32 s{S_NONCE}, v{vb}")

def pf_setup(k, pw, px):
    k.e("s_and_b32 s50, s2, 7")
    k.e("s_lshr_b32 s51, s2, 3")
    k.e("v_lshrrev_b32 v5, 2, v0")
    k.e("s_lshl_b32 s52, s51, 4")
    k.e("v_add_u32 v5, s52, v5")
    k.e("v_mul_u32_u24 v5, 3072, v5")
    k.e("v_and_b32 v6, 3, v0")
    k.e("s_lshr_b32 s52, s50, 2")
    k.e("s_lshl_b32 s52, s52, 2")
    k.e("v_add_u32 v6, s52, v6")
    k.e("v_lshlrev_b32 v6, 7, v6")
    k.e("v_add_u32 v5, v5, v6")
    k.e("v_lshlrev_b32 v6, 7, v0")
    k.e("s_and_b32 s52, s50, 3")
    k.e("s_lshl_b32 s52, s52, 9")
    k.e("s_lshl_b32 s53, s51, 4")
    k.e("s_add_u32 s52, s52, s53")
    k.e("s_lshl_b32 s66, s52, 10")
    k.e("s_lshl_b32 s67, s51, 14")
    k.e("s_lshr_b32 s68, s50, 2")

def gen(stamps=False):
    k = K(stamps)
    k.lab(KNAME)
    k.e("s_cmp_ge_u32 s2, 256")
    k.e("s_cbranch_scc1 L_end")
    if stamps: k.e("s_memrealtime s[70:71]")
    k.e("s_load_dwordx16 s[4:19], s[0:1], 0")
    k.e("s_load_dwordx2 s[20:21], s[0:1], 64")
    k.e("v_lshrrev_b32 v1, 6, v0")
    k.e("v_and_b32 v0, 63, v0")
    k.e(f"v_readfirstlane_b32 s{S_WAVE}, v1")
    k.e("s_and_b32 s26, s2, 7")
    k.e("s_lshr_b32 s27, s2, 3")
    k.e("s_and_b32 s48, s26, 3")
    k.e("s_lshl_b32 s48, s48, 3")
    if OPT['map'] == 0:
        k.e("s_and_b32 s49, s27, 7")
    else:
        k.e("s_lshr_b32 s49, s27, 2")
    k.e(f"s_add_u32 s{S_RB}, s48, s49")
    k.e("s_lshr_b32 s48, s26, 2")
    k.e("s_lshl_b32 s48, s48, 2")
    if OPT['map'] == 0:
        k.e("s_lshr_b32 s49, s27, 3")
    else:
        k.e("s_and_b32 s49, s27, 3")
    k.e(f"s_add_u32 s{S_G}, s48, s49")
    k.e(f"s_cmp_lt_u32 s{S_WAVE}, 4")
    k.e("s_cbranch_scc1 L_consumer")

    loader(k)
    k.e("s_branch L_attn")

    k.lab("L_consumer")
    k.e("s_waitcnt lgkmcnt(0)")
    if stamps: k.e("s_mov_b32 s72, s70")
    srd(k, SRD_WS, P_WS, 256 << 20)
    srd(k, SRD_T, P_DBG, 256)
    srd(k, SRD_X, P_AW, 512*3072)
    k.e(f"s_and_b32 s27, s{S_WAVE}, 1")
    consumer_setup(k)
    attn_setup(k)
    nn = k.u("nononce")
    k.e(f"s_cmp_eq_u32 s{S_WAVE}, 0")
    k.e(f"s_cbranch_scc0 {nn}")
    k.e("v_mov_b32 v2, 0")
    nl = k.u("nolead")
    k.e("s_cmp_eq_u32 s2, 0")
    k.e(f"s_cbranch_scc0 {nl}")
    k.e("s_memrealtime s[58:59]")
    k.e("s_waitcnt lgkmcnt(0)")
    k.e("s_or_b32 s58, s58, 1")
    k.e("v_mov_b32 v3, s58")
    k.e(f"buffer_store_dword v3, v2, {sr(SRD_T,4)}, 0 offen sc1")
    k.lab(nl)
    k.lab(nn)
    k.e("s_mov_b32 s49, 0")
    k.e(f"s_mov_b32 s69, {SLOT}")
    k.e(f"s_cmp_ge_u32 s{S_WAVE}, 2")
    k.e("s_cbranch_scc1 L_qwave")

    k.e("s_barrier")
    k.stamp(1)
    reads(k, 'kv', 0, 0); reads(k, 'kv', 1, 1)
    consumer_tile(k, 'kv', 'B')
    k.stamp(2)
    k.c("B epilogue (kv)")
    read_nonce(k, 2, 3)
    k.e(f"s_lshl_b32 s62, s{S_G}, 2")
    k.e("s_lshl_b32 s63, s27, 1")
    k.e("s_add_u32 s62, s62, s63")
    k.e("s_lshl_b32 s62, s62, 6")
    k.e(f"s_lshl_b32 s63, s{S_RB}, 1")
    k.e("s_add_u32 s62, s62, s63")
    k.e("s_lshl_b32 s62, s62, 10")
    k.e("v_lshlrev_b32 v1, 4, v0")
    k.e("s_lshl_b32 s63, s27, 12")
    k.e(f"s_add_u32 s63, s63, {OK_L}")
    k.e("v_add_u32 v4, s63, v1")
    k.e("v_bfe_u32 v2, v0, 4, 1")
    k.e("v_lshrrev_b32 v3, 5, v0")
    k.e("v_lshlrev_b32 v3, 8, v3")
    k.e("v_and_b32 v5, 15, v0")
    k.e("v_lshlrev_b32 v5, 4, v5")
    k.e("v_add_u32 v3, v3, v5")
    k.e("v_lshlrev_b32 v5, 11, v2")
    k.e("v_add_u32 v5, v5, v3")
    k.e(f"s_add_u32 s63, s63, {OV_L - OK_L}")
    k.e("v_add_u32 v5, s63, v5")
    k.e("v_lshlrev_b32 v2, 16, v2")
    k.e("v_add_u32 v2, v2, v3")
    k.e(f"s_add_u32 s64, s62, {KB_G + 65536}")
    k.e(f"s_add_u32 s65, s62, {VB_G}")
    k.e("s_nop 3")
    for t in range(2):
        KF = EP + 16*t; VF = KF + 8
        cvt8(k, KF, ACC+16*t); cvt8(k, KF+4, ACC+16*t+8)
        cvt8(k, VF, ACC+32+16*t); cvt8(k, VF+4, ACC+32+16*t+8)
        k.e(f"buffer_store_dwordx4 {vr(KF,4)}, v1, {WS}, s62 offen offset:{t*1024} sc1")
        k.e(f"buffer_store_dwordx4 {vr(KF+4,4)}, v1, {WS}, s64 offen offset:{t*1024} sc1")
        k.e(f"buffer_store_dwordx4 {vr(VF,4)}, v2, {WS}, s65 offen offset:{t*1024} sc1")
        k.e(f"buffer_store_dwordx4 {vr(VF+4,4)}, v2, {WS}, s65 offen offset:{t*1024+512} sc1")
        k.e(f"ds_write_b128 v4, {vr(KF,4)} offset:{t*1024}")
        k.e(f"ds_write_b128 v4, {vr(KF+4,4)} offset:{t*1024+2048}")
        k.e(f"ds_write_b128 v5, {vr(VF,4)} offset:{t*1024}")
        k.e(f"ds_write_b128 v5, {vr(VF+4,4)} offset:{t*1024+512}")
    k.stamp(3)
    consumer_tile(k, 'kv', 'A')
    k.e("s_waitcnt lgkmcnt(0)")
    k.e("s_barrier")
    k.stamp(4)
    k.c("A epilogue (kv)")
    T = 72
    k.e(f"s_mov_b32 s61, {lit(LOG2E)}")
    k.e(f"s_mov_b32 s62, {lit(1e-6)}")
    PK, VV, ONES = 80, 96, 112
    for j in range(4): k.e(f"v_mov_b32 v{ONES+j}, 0x3f803f80")
    for t in range(2):
        cvt8(k, VV+8*t, ACC+32+16*t); cvt8(k, VV+8*t+4, ACC+32+16*t+8)
    DKV, DZ = ACC+32, ACC+48
    for t in range(2):
        phi(k, ACC+16*t, 16, T)
        cvt8(k, PK+8*t, ACC+16*t); cvt8(k, PK+8*t+4, ACC+16*t+8)
        k.e("s_nop 1")
        for m in range(2):
            first = (t == 0 and m == 0)
            k.e(f"{MF} {vr(DKV,16)}, {vr(PK+8*t+4*m,4)}, {vr(VV+8*t+4*m,4)}, {'0' if first else vr(DKV,16)}")
            k.e(f"{MF} {vr(DZ,16)}, {vr(ONES,4)}, {vr(PK+8*t+4*m,4)}, {'0' if first else vr(DZ,16)}")
    k.e("s_mov_b32 s64, 0xffff0000")
    k.e("s_mov_b32 s65, 0xffff0000")
    k.e(f"s_lshl_b32 s63, s{S_G}, 1")
    k.e("s_add_u32 s63, s63, s27")
    k.e("s_lshl_b32 s63, s63, 12")
    k.e(f"s_add_u32 s63, s63, {KVACC}")
    k.e("v_lshlrev_b32 v3, 2, v0")
    k.e("s_nop 5")
    RS = 120
    for t in range(8): k.e(f"v_cndmask_b32 v{RS+t}, v{DKV+t}, v{DKV+8+t}, s[64:65]")
    for t in range(8): k.e(f"buffer_atomic_add_f32 v{RS+t}, v3, {WS}, s63 offen offset:{t*256}")
    k.e("s_mov_b32 exec_hi, 0")
    k.e(f"buffer_atomic_add_f32 v{DZ}, v3, {WS}, s63 offen offset:2048")
    k.e("s_mov_b64 exec, -1")
    k.e("s_branch L_e1")

    k.lab("L_qwave")
    k.e("v_mov_b32 v251, 0")
    k.e("s_barrier")
    k.stamp(1)
    reads(k, 'q', 0, 0); reads(k, 'q', 1, 1)
    def pf_extra(k):
        ex = k.u("pfx"); w3 = k.u("pfw3")
        n1 = k.u("nn1"); n2 = k.u("nn2")
        k.e(f"s_cmp_eq_u32 s{S_WAVE}, 2")
        k.e(f"s_cbranch_scc0 {n2}")
        k.e("s_cmp_eq_u32 s48, 0")
        k.e(f"s_cbranch_scc0 {n1}")
        k.e(f"buffer_load_dword v7, v251, {sr(SRD_T,4)}, 0 offen sc1")
        k.lab(n1)
        k.e("s_cmp_eq_u32 s48, 6")
        k.e(f"s_cbranch_scc0 {n2}")
        lp = k.u("np"); npx = k.u("npx"); chk = k.u("npc")
        k.e("s_mov_b32 s60, 0")
        k.e(f"s_branch {chk}")
        k.lab(lp)
        k.e(f"buffer_load_dword v7, v251, {sr(SRD_T,4)}, 0 offen sc1")
        k.lab(chk)
        spin_guard(k, 60, npx)
        k.e("s_waitcnt vmcnt(0)")
        k.e("v_readfirstlane_b32 s58, v7")
        k.e("s_nop 0")
        k.e("s_cmp_eq_u32 s58, 0")
        k.e(f"s_cbranch_scc1 {lp}")
        k.lab(npx)
        k.e("s_waitcnt vmcnt(0)")
        k.e(f"v_mov_b32 v250, {NONCE_L}")
        k.e("ds_write_b32 v250, v7")
        k.lab(n2)
    consumer_tile(k, 'q', 'B', pf_extra)
    k.stamp(2)
    k.c("B epilogue (q)")
    read_nonce(k, 2, 3)
    k.e(f"s_mov_b32 s61, {lit(CS)}")
    k.e("v_lshlrev_b32 v1, 4, v0")
    k.e("s_lshl_b32 s63, s27, 12")
    k.e(f"s_add_u32 s63, s63, {Q_L}")
    k.e("v_add_u32 v4, s63, v1")
    k.e("s_nop 6")
    for t in range(2):
        for i in range(16): k.e(f"v_mul_f32 v{ACC+16*t+i}, s61, v{ACC+16*t+i}")
        QF = EP + 8*t
        cvt8(k, QF, ACC+16*t); cvt8(k, QF+4, ACC+16*t+8)
        k.e(f"ds_write_b128 v4, {vr(QF,4)} offset:{t*1024}")
        k.e(f"ds_write_b128 v4, {vr(QF+4,4)} offset:{t*1024+2048}")
    k.stamp(3)
    consumer_tile(k, 'q', 'A')
    k.e("s_waitcnt lgkmcnt(0)")
    k.e("s_barrier")
    k.stamp(4)
    k.c("A epilogue (q)")
    k.e(f"s_mov_b32 s61, {lit(LOG2E)}")
    k.e(f"s_mov_b32 s62, {lit(1e-6)}")
    k.e("v_lshlrev_b32 v1, 4, v0")
    k.e("s_lshl_b32 s63, s27, 12")
    k.e(f"s_add_u32 s63, s63, {PQ_L}")
    k.e("v_add_u32 v4, s63, v1")
    k.e("s_nop 4")
    for t in range(2):
        phi(k, ACC+16*t, 16, 72)
        QF = EP + 8*t
        cvt8(k, QF, ACC+16*t); cvt8(k, QF+4, ACC+16*t+8)
        k.e(f"ds_write_b128 v4, {vr(QF,4)} offset:{t*1024}")
        k.e(f"ds_write_b128 v4, {vr(QF+4,4)} offset:{t*1024+2048}")
    k.e("s_waitcnt lgkmcnt(0)")
    k.lab("L_e1")

    k.lab("L_attn")
    k.stamp(7)
    attention(k)
    k.stamp(9)
    apart(k)
    k.stamp(10)
    k.e("s_waitcnt vmcnt(0) lgkmcnt(0)")
    k.e("s_barrier")
    k.stamp(11)
    sk = k.u("nof2")
    k.e(f"s_cmp_eq_u32 s{S_WAVE}, 4")
    k.e(f"s_cbranch_scc0 {sk}")
    k.e(f"s_lshr_b32 s48, s{S_RB}, 1")
    k.e("s_lshl_b32 s48, s48, 11")
    k.e(f"s_and_b32 s49, s{S_RB}, 1")
    k.e("s_lshl_b32 s49, s49, 3")
    k.e(f"s_add_u32 s49, s49, s{S_G}")
    k.e("s_lshl_b32 s49, s49, 7")
    k.e("s_add_u32 s48, s48, s49")
    k.e(f"s_add_u32 s48, s48, {F2}")
    store_flag(k, 48)
    k.lab(sk)
    p3(k)
    k.lab("L_fin")
    if stamps:
        k.stamp(13)
        k.e(f"s_lshl_b32 s48, s2, 3")
        k.e(f"s_add_u32 s48, s48, s{S_WAVE}")
        k.e("s_lshl_b32 s48, s48, 6")
        k.e(f"s_add_u32 s48, s48, {STAMP}")
        k.e("v_mov_b32 v9, 0")
        for j in range(16):
            k.e(f"v_mov_b32 v8, s{72+j}")
            k.e(f"buffer_store_dword v8, v9, {WS}, s48 offen offset:{4*j}")
            k.e("s_nop 0")
    if stamps and OPT['dbgstamps']:
        sk = k.u("nodbg")
        srd(k, SRD_T, P_DBG, 256)
        k.e(f"s_cmp_eq_u32 s2, {OPT['dbgstamps']}")
        k.e(f"s_cbranch_scc0 {sk}")
        k.e(f"s_cmp_eq_u32 s{S_WAVE}, 0")
        k.e(f"s_cbranch_scc0 {sk}")
        k.e("v_mov_b32 v9, 0")
        for j in range(1, 14):
            k.e(f"s_sub_u32 s48, s{72+j}, s72")
            k.e("v_mov_b32 v8, s48")
            k.e(f"buffer_store_dword v8, v9, {sr(SRD_T,4)}, 0 offen offset:{4*j}")
            k.e("s_nop 0")
        k.lab(sk)
    if OPT['stagest']:
        sk = k.u("nost")
        k.e(f"s_cmp_eq_u32 s{S_WAVE}, 4")
        k.e(f"s_cbranch_scc0 {sk}")
        k.e("s_lshl_b32 s48, s2, 8")
        k.e(f"s_add_u32 s48, s48, {STAMP + (1<<19)}")
        k.e("v_lshlrev_b32 v9, 2, v0")
        k.e(f"buffer_store_dword v252, v9, {WS}, s48 offen")
        k.lab(sk)
    k.lab("L_end")
    k.e("s_endpgm")
    return k

def issue_stage(k):
    k.e("s_lshl_b32 s52, s59, 7")
    k.e("s_mul_i32 s53, s59, 196608")
    k.e("s_mov_b32 m0, s51")
    k.e("s_add_u32 s54, s53, 23552")
    k.e(f"buffer_load_dwordx4 v1, {sr(SRD_X,4)}, s52 offen lds")
    k.e(f"buffer_load_dwordx4 v2, {sr(SRD_X,4)}, s52 offen offset:1024 lds")
    for p in range(3):
        k.e(f"s_add_u32 s55, s51, {8192 + p*8192}")
        k.e("s_mov_b32 m0, s55")
        if p: k.e(f"s_add_u32 s56, s53, {p*1024}"); so0 = "s56"
        else: so0 = "s53"; k.e("s_nop 0")
        k.e(f"buffer_load_dwordx4 v3, {sr(SRD_W,4)}, {so0} offen lds")
        if p: k.e(f"s_add_u32 s56, s54, {p*1024}"); so1 = "s56"
        else: so1 = "s54"
        k.e(f"buffer_load_dwordx4 v3, {sr(SRD_W,4)}, {so1} offen offset:1024 lds")
    k.e("s_add_u32 s57, s57, 1")
    k.e("s_add_u32 s59, s59, 1")
    k.e("s_and_b32 s59, s59, 7")
    k.e(f"s_add_u32 s51, s51, {SLOT}")
    k.e("s_and_b32 s58, s57, 3")
    sk = k.u("nowrap")
    k.e("s_cmp_eq_u32 s58, 0")
    k.e(f"s_cbranch_scc0 {sk}")
    k.e(f"s_sub_u32 s51, s51, {4*SLOT}")
    k.lab(sk)
    sk2 = k.u("nosw")
    k.e("s_cmp_eq_u32 s57, 8")
    k.e(f"s_cbranch_scc0 {sk2}")
    srd(k, SRD_X, P_AX, 2 << 20)
    srd(k, SRD_W, P_AW, 512*3072)
    k.lab(sk2)

def pfsetup(k):
    k.e("s_and_b32 s50, s2, 7")
    k.e("s_lshr_b32 s52, s2, 3")
    k.e("s_mov_b32 s66, 1")
    wx = k.u("pfwx"); wo = k.u("pfwo"); ex = k.u("pfex")
    k.e("s_cmp_lt_u32 s26, 2")
    k.e(f"s_cbranch_scc0 {wx}")
    srd(k, SRD_T, P_BW, 512*3072)
    k.e("v_min_u32 v4, 11, v0")
    k.e("v_lshrrev_b32 v5, 2, v4")
    k.e("v_lshlrev_b32 v5, 10, v5")
    k.e("v_and_b32 v4, 3, v4")
    k.e("s_lshr_b32 s53, s50, 2")
    k.e("s_lshl_b32 s53, s53, 2")
    k.e("v_add_u32 v4, s53, v4")
    k.e("v_lshlrev_b32 v4, 7, v4")
    k.e("s_lshl_b32 s53, s52, 1")
    k.e("s_add_u32 s53, s53, s26")
    k.e("s_mul_i32 s53, s53, 3072")
    k.e("v_add3_u32 v4, v4, v5, s53")
    k.e("s_mov_b32 s65, 196608")
    k.e("s_mov_b32 s64, 196608")
    k.e(f"s_branch {ex}")
    k.lab(wx)
    k.e("s_cmp_eq_u32 s26, 2")
    k.e(f"s_cbranch_scc0 {wo}")
    srd(k, SRD_T, P_BX, 2 << 20)
    k.e("v_min_u32 v4, 15, v0")
    k.e("s_and_b32 s53, s50, 3")
    k.e("s_lshl_b32 s53, s53, 9")
    k.e("s_lshl_b32 s54, s52, 4")
    k.e("s_add_u32 s53, s53, s54")
    k.e("v_add_u32 v4, s53, v4")
    k.e("v_lshlrev_b32 v4, 10, v4")
    k.e("s_mov_b32 s65, 128")
    k.e("s_mov_b32 s64, 128")
    k.e(f"s_branch {ex}")
    k.lab(wo)
    k.e("s_lshr_b32 s53, s50, 2")
    k.e("s_cmp_eq_u32 s53, 0")
    k.e(f"s_cselect_b32 s{SRD_T}, s{P_AWO}, s{P_BWO}")
    k.e(f"s_cselect_b32 s{SRD_T+1}, s{P_AWO+1}, s{P_BWO+1}")
    k.e(f"s_mov_b32 s{SRD_T+2}, 0x{512*1024:x}")
    k.e(f"s_mov_b32 s{SRD_T+3}, 0x20000")
    k.e("v_min_u32 v4, 8, v0")
    k.e("v_lshlrev_b32 v4, 7, v4")
    k.e("s_lshl_b32 s53, s52, 14")
    k.e("v_add_u32 v4, s53, v4")
    k.e("s_mov_b32 s65, 1152")
    k.e("s_mov_b32 s64, 0")
    k.lab(ex)

def pf_issue(k):
    sk = k.u("pfsw")
    k.e("s_cmp_eq_u32 s66, 8")
    k.e(f"s_cbranch_scc0 {sk}")
    k.e("s_cmp_lt_u32 s26, 3")
    k.e(f"s_cbranch_scc0 {sk}")
    k.e("s_mov_b32 s64, 0")
    k.e("s_cmp_lt_u32 s26, 2")
    k.e(f"s_cselect_b32 s{SRD_T}, s{P_AW}, s{P_AX}")
    k.e(f"s_cselect_b32 s{SRD_T+1}, s{P_AW+1}, s{P_AX+1}")
    k.lab(sk)
    k.e(f"buffer_load_dword v5, v4, {sr(SRD_T,4)}, s64 offen")
    k.e("s_add_u32 s64, s64, s65")
    k.e("s_add_u32 s66, s66, 1")

def loader(k):
    k.e(f"s_sub_u32 s26, s{S_WAVE}, 4")
    k.e("v_lshrrev_b32 v4, 3, v0")
    k.e("v_and_b32 v5, 7, v0")
    k.e("v_lshrrev_b32 v6, 1, v4")
    k.e("v_xor_b32 v7, v5, v6")
    k.e("v_lshlrev_b32 v7, 4, v7")
    k.e(f"s_lshl_b32 s48, s{S_RB}, 6")
    k.e("s_lshl_b32 s49, s26, 4")
    k.e("s_add_u32 s48, s48, s49")
    k.e("v_add_u32 v1, s48, v4")
    k.e("v_lshlrev_b32 v1, 10, v1")
    k.e("v_add_u32 v2, 7168, v1")
    k.e("v_add_u32 v1, v1, v7")
    k.e("v_xor_b32 v7, 64, v7")
    k.e("v_add_u32 v2, v2, v7")
    k.e("v_add_u32 v3, s49, v4")
    k.e("v_mul_u32_u24 v3, 3072, v3")
    k.e("v_and_b32 v6, 2, v4")
    k.e("v_lshlrev_b32 v6, 1, v6")
    k.e("v_xor_b32 v6, v5, v6")
    k.e("v_lshlrev_b32 v6, 4, v6")
    k.e(f"s_lshl_b32 s49, s{S_G}, 7")
    k.e("v_add3_u32 v3, v3, v6, s49")
    k.e("s_lshl_b32 s51, s26, 11")
    k.e("s_mov_b32 s57, 0")
    if OPT['rot'] == 8:
        k.e(f"s_and_b32 s59, s{S_G}, 3")
        k.e("s_lshl_b32 s59, s59, 1")
        k.e(f"s_add_u32 s59, s59, s{S_RB}")
        k.e("s_and_b32 s59, s59, 7")
    elif OPT['rot'] == 2:
        k.e(f"s_add_u32 s59, s{S_G}, s{S_RB}")
        k.e("s_and_b32 s59, s59, 1")
        k.e("s_lshl_b32 s59, s59, 2")
    elif OPT['rot'] == 4:
        k.e(f"s_add_u32 s59, s{S_G}, s{S_RB}")
        k.e("s_and_b32 s59, s59, 3")
        k.e("s_lshl_b32 s59, s59, 1")
    else:
        k.e("s_mov_b32 s59, 0")
    k.e("s_waitcnt lgkmcnt(0)")
    if k.stamps: k.e("s_mov_b32 s72, s70")
    srd(k, SRD_X, P_BX, 2 << 20)
    srd(k, SRD_W, P_BW, 512*3072)
    issue_stage(k)
    if OPT['tpf']:
        pfsetup(k)
        for j in range(4): pf_issue(k)
    else:
        issue_stage(k)
    srd(k, SRD_WS, P_WS, 256 << 20)
    sk = k.u("nopf")
    k.e("s_cmp_eq_u32 s26, 3")
    k.e(f"s_cbranch_scc0 {sk}")
    k.e("s_getpc_b64 s[62:63]")
    k.lab("L_pc")
    k.e("s_and_b32 s62, s62, 0xffffff00")
    k.e("v_lshlrev_b32 v8, 7, v0")
    k.e(f"s_sub_u32 s62, s62, PF_BACK")
    k.e("s_subb_u32 s63, s63, 0")
    k.e("global_load_dword v9, v8, s[62:63]")
    k.e("v_add_u32 v8, 8192, v8")
    k.e("global_load_dword v10, v8, s[62:63]")
    k.e("v_add_u32 v8, 8192, v8")
    k.e("global_load_dword v11, v8, s[62:63]")
    k.lab(sk)
    ny = 4 if OPT['tpf'] else 8
    k.e(f"s_waitcnt vmcnt({ny+3})")
    sk = k.u("w7")
    k.e("s_cmp_eq_u32 s26, 3")
    k.e(f"s_cbranch_scc1 {sk}")
    k.e(f"s_waitcnt vmcnt({ny})")
    k.lab(sk)
    k.e("s_barrier")
    if OPT['tpf']: issue_stage(k)
    issue_stage(k)
    sk = k.u("nozero")
    k.e(f"s_cmp_eq_u32 s{S_RB}, 0")
    k.e(f"s_cbranch_scc0 {sk}")
    k.e("s_cmp_lt_u32 s26, 2")
    k.e(f"s_cbranch_scc0 {sk}")
    k.e(f"s_lshl_b32 s48, s{S_G}, 1")
    k.e("s_add_u32 s48, s48, s26")
    k.e("s_lshl_b32 s48, s48, 12")
    k.e(f"s_add_u32 s48, s48, {KVACC}")
    for j in range(4): k.e(f"v_mov_b32 v{12+j}, 0")
    k.e("v_lshlrev_b32 v8, 4, v0")
    for j in range(3): k.e(f"buffer_store_dwordx4 v[12:15], v8, {WS}, s48 offen offset:{j*1024} sc1")
    k.e("s_waitcnt vmcnt(3)")
    k.lab(sk)
    attn_setup(k)
    k.stamp(1)
    k.e("s_mov_b32 s48, 0")
    lp = k.u("ldloop")
    k.lab(lp)
    w8 = k.u("w8"); w9 = k.u("w9"); wd = k.u("wd")
    if not OPT['tpf']: k.e(f"s_branch {w8}")
    k.e("s_cmp_eq_u32 s48, 0")
    k.e(f"s_cbranch_scc1 {w8}")
    k.e("s_cmp_eq_u32 s48, 1")
    k.e(f"s_cbranch_scc1 {w9}")
    k.e("s_cmp_eq_u32 s48, 12")
    k.e(f"s_cbranch_scc1 {w9}")
    k.e("s_waitcnt vmcnt(10)")
    k.e(f"s_branch {wd}")
    k.lab(w9)
    k.e("s_waitcnt vmcnt(9)")
    k.e(f"s_branch {wd}")
    k.lab(w8)
    k.e("s_waitcnt vmcnt(8)")
    k.lab(wd)
    k.e("s_barrier")
    if OPT['stagest']:
        k.e("s_memrealtime s[90:91]"); k.e("s_waitcnt lgkmcnt(0)")
        k.e("s_mov_b32 m0, s48")
        k.e("s_nop 0")
        k.e("v_writelane_b32 v252, s90, m0")
    sk = k.u("nonn")
    k.e("s_cmp_eq_u32 s48, 8")
    k.e(f"s_cbranch_scc0 {sk}")
    read_nonce(k, 8, 9)
    k.lab(sk)
    sk = k.u("nosig")
    k.e("s_cmp_eq_u32 s48, 10")
    k.e(f"s_cbranch_scc0 {sk}")
    k.e("s_cmp_eq_u32 s26, 0")
    k.e(f"s_cbranch_scc0 {sk}")
    k.e(f"s_lshl_b32 s49, s{S_G}, 12")
    k.e(f"s_lshl_b32 s50, s{S_RB}, 7")
    k.e("s_add_u32 s49, s49, s50")
    k.e(f"s_add_u32 s49, s49, {F1B}")
    store_flag(k, 49)
    k.lab(sk)
    issue_stage(k)
    if OPT['tpf']:
        sk = k.u("nopfi")
        k.e("s_cmp_le_u32 s48, 10")
        k.e(f"s_cbranch_scc0 {sk}")
        pf_issue(k)
        k.lab(sk)
    k.e("s_add_u32 s48, s48, 1")
    k.e("s_cmp_lt_u32 s48, 13")
    k.e(f"s_cbranch_scc1 {lp}")
    k.e(f"s_sub_u32 s48, s{S_RB}, 4")
    k.e("v_add_u32 v8, s48, v0")
    k.e("v_max_i32 v8, 0, v8")
    k.e("v_cmp_gt_u32 vcc, 4, v0")
    k.e(f"s_lshl_b32 s49, s{S_G}, 12")
    k.e(f"s_add_u32 s49, s49, {F1B}")
    k.e("v_cndmask_b32 v8, 0, v8, vcc")
    k.e("v_lshlrev_b32 v8, 7, v8")
    k.e("v_add_u32 v8, s49, v8")
    k.e("s_waitcnt vmcnt(8)");  k.e("s_barrier")
    np_ = k.u("nopollw"); j14 = k.u("j14")
    k.e("s_cmp_eq_u32 s26, 0")
    k.e(f"s_cbranch_scc0 {np_}")
    k.e("s_mov_b64 exec, 31")
    k.e(f"buffer_load_dword v9, v8, {WS}, 0 offen sc1")
    poll_flags(k, 8, 9, "f1b", first_issued=True)
    k.e("s_mov_b64 exec, -1")
    k.lab(np_)
    k.e("s_waitcnt vmcnt(0)");  k.e("s_barrier")
    k.stamp(5)
    sk = k.u("norem")
    k.e(f"s_cmp_eq_u32 s{S_RB}, 0")
    k.e(f"s_cbranch_scc1 {sk}")
    k.e("v_lshlrev_b32 v8, 4, v0")
    k.e(f"s_lshl_b32 s48, s{S_G}, 2")
    k.e("s_add_u32 s48, s48, s26")
    k.e("s_lshl_b32 s48, s48, 6")
    k.e(f"s_lshl_b32 s49, s{S_RB}, 1")
    k.e("s_sub_u32 s49, s49, 8")
    for j in range(8):
        k.e(f"s_add_i32 s50, s49, {j}")
        k.e("s_max_i32 s50, s50, 0")
        k.e("s_add_u32 s50, s50, s48")
        k.e("s_lshl_b32 s50, s50, 10")
        k.e(f"s_add_u32 s51, s50, {VB_G}")
        k.e(f"buffer_load_dwordx4 {vr(16+4*j,4)}, v8, {WS}, s50 offen sc1")
        k.e(f"buffer_load_dwordx4 {vr(48+4*j,4)}, v8, {WS}, s51 offen sc1")
    k.lab(sk)
    k.e("s_barrier")
    sk = k.u("norem2")
    k.e(f"s_cmp_eq_u32 s{S_RB}, 0")
    k.e(f"s_cbranch_scc1 {sk}")
    k.e("s_lshl_b32 s48, s26, 13")
    k.e("v_add_u32 v9, s48, v8")
    for j in range(8):
        k.e(f"s_waitcnt vmcnt({14-2*j})")
        k.e(f"ds_write_b128 v9, {vr(16+4*j,4)} offset:{RK_L + j*1024}")
        k.e(f"ds_write_b128 v9, {vr(48+4*j,4)} offset:{RV_L + j*1024}")
    k.lab(sk)
    k.e("s_waitcnt lgkmcnt(0)")
    k.stamp(6)
    k.e("s_barrier")
    k.stamp(4)

AQ_, AKF, AS, AMD, AMF, ACN, AP, AVB, AO = 4, 8, [44, 60, 76], 216, 232, 124, 140, [148, 156], 176
AM, AT = 192, 193
AK0, AK7, AK8, AV0, AV7, AV8 = 196, 197, 198, 199, 200, 201
KVR = 208
VPOLL, VPA = 248, 249

def v_reads(k, buf, vaddr, off):
    k.e("s_mov_b64 exec, s[64:65]")
    k.e(f"ds_read_b128 {vr(AVB[buf],4)}, v{vaddr} offset:{off}")
    k.e(f"ds_read_b128 {vr(AVB[buf]+4,4)}, v{vaddr} offset:{off+512}")
    k.e("s_mov_b64 exec, -1")

def sig_f1a(k):
    sk = k.u("nosigA")
    k.e(f"s_cmp_lt_u32 s{S_WAVE}, 2")
    k.e(f"s_cbranch_scc0 {sk}")
    k.e("s_waitcnt vmcnt(0)")
    k.e(f"s_lshl_b32 s52, s{S_G}, 13")
    k.e(f"s_lshl_b32 s53, s{S_RB}, 1")
    k.e(f"s_add_u32 s53, s53, s{S_WAVE}")
    k.e("s_lshl_b32 s53, s53, 7")
    k.e("s_add_u32 s52, s52, s53")
    k.e(f"s_add_u32 s52, s52, {F1A}")
    store_flag(k, 52)
    k.lab(sk)

def attn_setup(k):
    k.e(f"s_and_b32 s86, s{S_WAVE}, 1")
    k.e(f"s_lshr_b32 s87, s{S_WAVE}, 1")
    k.e(f"v_lshlrev_b32 v{AT}, 4, v0")
    k.e("s_lshl_b32 s88, s86, 10")
    k.e("s_lshl_b32 s89, s87, 13")
    k.e("s_lshl_b32 s92, s87, 11")
    k.e("s_add_u32 s93, s89, s88")
    k.e(f"v_add_u32 v{AK0}, s93, v{AT}")
    k.e(f"s_add_u32 s94, s89, {7*1024}")
    k.e(f"s_add_u32 s100, s92, {OK_L}")
    k.e("s_cmp_eq_u32 s86, 0")
    k.e("s_cselect_b32 s94, s94, s100")
    k.e(f"v_add_u32 v{AK7}, s94, v{AT}")
    k.e("s_add_u32 s100, s100, s88")
    k.e(f"v_add_u32 v{AK8}, s100, v{AT}")
    k.e("v_lshrrev_b32 v202, 5, v0")
    k.e("v_lshlrev_b32 v202, 8, v202")
    k.e("v_and_b32 v203, 15, v0")
    k.e("v_lshlrev_b32 v203, 4, v203")
    k.e("v_add_u32 v202, v202, v203")
    k.e(f"s_add_u32 s94, s93, {RV_L}")
    k.e(f"v_add_u32 v{AV0}, s94, v202")
    k.e(f"s_add_u32 s94, s89, {RV_L + 7*1024}")
    k.e(f"s_add_u32 s100, s92, {OV_L}")
    k.e("s_cmp_eq_u32 s86, 0")
    k.e("s_cselect_b32 s94, s94, s100")
    k.e(f"v_add_u32 v{AV7}, s94, v202")
    k.e("s_add_u32 s100, s100, s88")
    k.e(f"v_add_u32 v{AV8}, s100, v202")
    k.e("v_and_b32 v202, 31, v0")
    k.e("v_lshrrev_b32 v203, 5, v0")
    k.e("v_lshlrev_b32 v203, 2, v203")
    k.e("v_sub_u32 v202, v202, v203")
    k.e("v_cvt_f32_i32 v202, v202")
    k.e(f"v_mov_b32 v203, {lit(BIG)}")
    for i in range(16):
        ci = 8*(i >> 2) + (i & 3)
        k.e(f"v_fmaak_f32 v{AMD+i}, v202, v203, {lit((0.5-ci)*BIG)}")
    for i in range(16): k.e(f"v_min_f32 v{AMF+i}, -v{AMD+i}, 0")
    for i in range(16): k.e(f"v_min_f32 v{AMD+i}, 0, v{AMD+i}")
    k.e(f"v_mov_b32 v{AM}, 0xff7fffff")
    k.e(f"s_lshl_b32 s87, s{S_G}, 13")
    k.e(f"s_add_u32 s87, s87, {F1A}")
    k.e(f"v_lshlrev_b32 v{VPA}, 7, v0")
    k.e(f"v_add_u32 v{VPA}, s87, v{VPA}")

def wo_setup(k):
    k.e("s_and_b32 s50, s2, 7")
    k.e("s_lshr_b32 s51, s2, 3")
    k.e("s_lshr_b32 s52, s50, 2")
    k.e("s_lshr_b32 s53, s51, 2")
    k.e("s_cmp_eq_u32 s52, 0")
    k.e(f"s_cselect_b32 s{SRD_WO}, s{P_AWO}, s{P_BWO}")
    k.e(f"s_cselect_b32 s{SRD_WO+1}, s{P_AWO+1}, s{P_BWO+1}")
    k.e(f"s_mov_b32 s{SRD_WO+2}, 0x{512*1024:x}")
    k.e(f"s_mov_b32 s{SRD_WO+3}, 0x20000")
    k.e("v_lshrrev_b32 v204, 3, v0")
    k.e("v_and_b32 v205, 7, v0")
    k.e("v_and_b32 v206, 2, v204")
    k.e("v_lshlrev_b32 v206, 1, v206")
    k.e("v_xor_b32 v206, v205, v206")
    k.e("v_lshlrev_b32 v206, 4, v206")
    k.e(f"s_sub_u32 s54, s{S_WAVE}, 4")
    k.e("s_lshl_b32 s50, s54, 7")
    k.e("v_add_u32 v204, s50, v204")
    k.e("v_lshlrev_b32 v204, 10, v204")
    k.e("s_lshl_b32 s50, s53, 7")
    k.e("v_add3_u32 v205, v204, v206, s50")
    k.e("s_lshl_b32 s96, s54, 14")
    k.e(f"s_add_u32 s96, s96, {WO_L}")
    k.e("s_mov_b32 s97, 0")

def wo_pair(k):
    k.e("s_mov_b32 m0, s96")
    k.e("s_add_u32 s98, s97, 7168")
    k.e(f"buffer_load_dwordx4 v205, {sr(SRD_WO,4)}, s97 offen lds")
    k.e(f"buffer_load_dwordx4 v205, {sr(SRD_WO,4)}, s98 offen offset:1024 lds")
    k.e("s_add_u32 s96, s96, 2048")
    k.e("s_add_u32 s97, s97, 16384")

KVL = 0
def kv_loads(k):
    k.e(f"s_lshl_b32 s50, s{S_G}, 13")
    k.e(f"s_add_u32 s50, s50, {KVACC}")
    k.e("s_add_u32 s51, s50, 4096")
    k.e(f"buffer_load_dwordx4 {vr(KVR,4)}, v1, {WS}, s50 offen sc1")
    k.e(f"buffer_load_dwordx4 {vr(KVR+4,4)}, v1, {WS}, s50 offen offset:1024 sc1")
    k.e(f"buffer_load_dwordx4 {vr(164,4)}, v1, {WS}, s51 offen sc1")
    k.e(f"buffer_load_dwordx4 {vr(168,4)}, v1, {WS}, s51 offen offset:1024 sc1")
    k.e("v_lshrrev_b32 v202, 5, v0")
    k.e("v_lshlrev_b32 v202, 12, v202")
    k.e("v_and_b32 v203, 31, v0")
    k.e("v_lshl_add_u32 v202, v203, 2, v202")
    k.e(f"buffer_load_dword v172, v202, {WS}, s50 offen offset:2048 sc1")

def attention(k):
    k.c("attention: i = w&1 (s26), hh = w>>1 (s27), qt = s48, s99 = kv loads issued flag")
    k.e(f"s_and_b32 s26, s{S_WAVE}, 1")
    k.e(f"s_lshr_b32 s27, s{S_WAVE}, 1")
    k.e(f"s_lshl_b32 s48, s{S_RB}, 1")
    k.e("s_add_u32 s48, s48, s26")
    k.e("v_lshlrev_b32 v1, 4, v0")
    k.e("s_lshl_b32 s49, s27, 11")
    k.e("s_lshl_b32 s50, s26, 10")
    k.e("s_add_u32 s49, s49, s50")
    k.e(f"s_add_u32 s49, s49, {Q_L}")
    k.e("v_add_u32 v2, s49, v1")
    k.e(f"ds_read_b128 {vr(AQ_,4)}, v2")
    def kaddr(p): return (AK0, RK_L + p*1024) if p <= 6 else ((AK7, 0) if p == 7 else (AK8, 0))
    def vaddr(p): return (AV0, p*1024) if p <= 6 else ((AV7, 0) if p == 7 else (AV8, 0))
    for p in range(9):
        a, o = kaddr(p); k.e(f"ds_read_b128 {vr(AKF+4*p,4)}, v{a} offset:{o}")
    k.e("s_mov_b32 s64, 0xffff")
    k.e("s_mov_b32 s65, 0xffff")
    k.e("s_mov_b32 s99, 0")
    for b in range(2):
        for j in range(8): k.e(f"v_mov_b32 v{AVB[b]+j}, 0x3f803f80")
    sk = k.u("nowo")
    k.e(f"s_cmp_ge_u32 s{S_WAVE}, 4")
    k.e(f"s_cbranch_scc0 {sk}")
    wo_setup(k)
    for j in range(8): wo_pair(k)
    k.lab(sk)
    Q = vr(AQ_, 4)
    def qk(dst, p, c): k.e(f"{MF} {vr(dst,16)}, {vr(AKF+4*p,4)}, {Q}, {c}")
    def c1(p): return vr(AMF,16) if p == 0 else (vr(AMD,16) if p == 8 else "0")
    def c2(p): return vr(AMF,16) if p == 0 else (vr(AMD,16) if p == 8 else vr(ACN,16))
    k.e("s_sub_i32 s95, 8, s48")
    k.e("s_max_i32 s95, s95, 0")
    P1 = [k.u(f"p1_{p}") for p in range(9)]
    P2 = [k.u(f"p2_{p}") for p in range(9)]
    E1 = [k.u(f"e1_{p}") for p in range(9)]
    E2 = [k.u(f"e2_{p}") for p in range(9)]
    k.e("s_waitcnt lgkmcnt(0)")
    for p in range(1, 9):
        k.e(f"s_cmp_eq_u32 s95, {p}")
        k.e(f"s_cbranch_scc1 {E1[p]}")
    qk(AS[0], 0, c1(0)); qk(AS[1], 1, c1(1)); qk(AS[2], 2, c1(2))
    k.e("s_nop 9")
    for p in range(9):
        k.lab(P1[p])
        s_ = AS[p % 3]
        for j in range(8): k.e(f"v_max3_f32 v{AM}, v{s_+2*j}, v{s_+2*j+1}, v{AM}")
        if p + 3 <= 8: qk(s_, p + 3, c1(p + 3))
    k.e(f"v_mov_b32 v{AT}, v{AM}")
    k.e("s_nop 1")
    k.e(f"v_permlane32_swap_b32 v{AM}, v{AT}")
    k.e(f"v_max_f32 v{AM}, v{AM}, v{AT}")
    k.e(f"v_sub_f32 v{AM}, 0, v{AM}")
    for i in range(16): k.e(f"v_mov_b32 v{ACN+i}, v{AM}")
    for i in range(16): k.e(f"v_add_f32 v{AMD+i}, v{AMD+i}, v{AM}")
    k.stamp(8)
    k.e("s_cmp_eq_u32 s95, 0")
    sh = k.u("short2")
    k.e(f"s_cbranch_scc0 {sh}")
    for i in range(16): k.e(f"v_add_f32 v{AMF+i}, v{AMF+i}, v{AM}")
    v_reads(k, 0, *vaddr(0))
    k.e("s_nop 0")
    qk(AS[0], 0, c2(0))
    k.e("s_nop 6")
    for p in range(9):
        k.lab(P2[p])
        cur = AS[p % 2]; nxt = AS[(p + 1) % 2]
        if p < 8:
            qk(nxt, p + 1, c2(p + 1))
            v_reads(k, (p + 1) % 2, *vaddr(p + 1))
        hooks = k.u("nohook")
        if p in (3, 5, 8):
            k.e("s_cmp_eq_u32 s95, 0")
            k.e(f"s_cbranch_scc0 {hooks}")
            if p == 3: sig_f1a(k)
            if p in (5, 8):
                k.e(f"s_cmp_eq_u32 s{S_WAVE}, 4")
                k.e(f"s_cbranch_scc0 {hooks}")
            if p == 5: k.e(f"buffer_load_dword v{VPOLL}, v{VPA}, {WS}, 0 offen sc1")
            if p == 8:
                k.stamp(14)
                k.e("s_waitcnt vmcnt(0)")
                k.stamp(15)
                k.e(f"v_cmp_ne_u32 vcc, s{S_NONCE}, v{VPOLL}")
                k.e("s_nop 1")
                k.e(f"s_cbranch_vccnz {hooks}")
                kv_loads(k)
                k.e("s_mov_b32 s99, 1")
            k.lab(hooks)
        for j in range(16): k.e(f"v_exp_f32 v{cur+j}, v{cur+j}")
        for j in range(8): k.e(f"v_cvt_pk_bf16_f32 v{AP+j}, v{cur+2*j}, v{cur+2*j+1}")
        k.e(f"s_waitcnt lgkmcnt({2 if p < 8 else 0})")
        vb = AVB[p % 2]
        k.e(f"{MF} {vr(AO,16)}, {vr(vb,4)}, {vr(AP,4)}, {'0' if p == 0 else vr(AO,16)}")
        k.e("s_nop 0")
        k.e(f"{MF} {vr(AO,16)}, {vr(vb+4,4)}, {vr(AP+4,4)}, {vr(AO,16)}")
    done = k.u("attdone")
    k.e(f"s_branch {done}")
    for p in range(1, 9):
        k.lab(E1[p])
        for q in range(p, min(p + 3, 9)): qk(AS[q % 3], q, c1(q))
        k.e("s_nop 10")
        k.e(f"s_branch {P1[p]}")
    k.lab(sh)
    for i in range(16): k.e(f"v_mov_b32 v{AO+i}, 0")
    sig_f1a(k)
    sk = k.u("shpoll")
    k.e(f"s_cmp_eq_u32 s{S_WAVE}, 4")
    k.e(f"s_cbranch_scc0 {sk}")
    k.e(f"buffer_load_dword v{VPOLL}, v{VPA}, {WS}, 0 offen sc1")
    k.lab(sk)
    for p in range(1, 9):
        k.e(f"s_cmp_eq_u32 s95, {p}")
        k.e(f"s_cbranch_scc1 {E2[p]}")
    k.e(f"s_branch {E2[8]}")
    for p in range(1, 9):
        k.lab(E2[p])
        qk(AS[p % 2], p, c2(p))
        v_reads(k, p % 2, *vaddr(p))
        k.e("s_nop 6")
        k.e(f"s_branch {P2[p]}")
    k.lab(done)

def apart(k):
    sk = k.u("kvdone")
    k.e(f"s_cmp_eq_u32 s{S_WAVE}, 4")
    k.e(f"s_cbranch_scc0 {sk}")
    k.e("s_cmp_eq_u32 s99, 1")
    k.e(f"s_cbranch_scc1 {sk}")
    poll_flags(k, VPA, VPOLL, "f1a", first_issued=True)
    kv_loads(k)
    k.lab(sk)
    k.e("s_nop 8")
    k.e(f"v_rcp_f32 v{AT}, v{AO+8}")
    k.e("s_nop 0")
    for j in range(8): k.e(f"v_mul_f32 v{AO+j}, v{AO+j}, v{AT}")
    cvt8(k, AP, AO)
    k.e(f"s_lshl_b32 s49, s{S_G}, 2")
    k.e("s_add_u32 s49, s49, s27")
    k.e("s_lshl_b32 s50, s48, 5")
    k.e("s_add_u32 s49, s49, s50")
    k.e("s_lshl_b32 s49, s49, 10")
    k.e(f"s_add_u32 s50, s49, {O_G + (2<<20)}")
    k.e(f"buffer_store_dwordx4 {vr(AP,4)}, v1, {WS}, s50 offen sc1")
    k.e("s_barrier")
    sk = k.u("nokvw")
    k.e(f"s_cmp_eq_u32 s{S_WAVE}, 4")
    k.e(f"s_cbranch_scc0 {sk}")
    k.e("s_waitcnt vmcnt(1)")
    k.e(f"ds_write_b128 v1, {vr(KVR,4)} offset:{KVL}")
    k.e(f"ds_write_b128 v1, {vr(KVR+4,4)} offset:{KVL+1024}")
    k.e(f"ds_write_b128 v1, {vr(164,4)} offset:{KVL+4096}")
    k.e(f"ds_write_b128 v1, {vr(168,4)} offset:{KVL+4096+1024}")
    k.e("v_lshrrev_b32 v202, 5, v0")
    k.e("v_lshlrev_b32 v202, 12, v202")
    k.e("v_and_b32 v203, 31, v0")
    k.e("v_lshl_add_u32 v202, v203, 2, v202")
    k.e(f"ds_write_b32 v202, v172 offset:{KVL+2048}")
    k.e("s_waitcnt lgkmcnt(0)")
    k.lab(sk)
    k.e("s_lshr_b32 s51, s27, 1")
    k.e("s_lshl_b32 s51, s51, 12")
    k.e("s_and_b32 s52, s27, 1")
    k.e("s_lshl_b32 s52, s52, 6")
    k.e("s_add_u32 s51, s51, s52")
    k.e("v_lshrrev_b32 v203, 5, v0")
    k.e("v_and_b32 v202, 15, v0")
    k.e("v_lshl_add_u32 v202, v203, 5, v202")
    k.e("v_lshlrev_b32 v202, 2, v202")
    k.e("v_add_u32 v202, s51, v202")
    k.e("v_lshlrev_b32 v203, 4, v203")
    k.e("v_add_u32 v203, s51, v203")
    k.e("s_lshl_b32 s51, s27, 11")
    k.e("s_lshl_b32 s50, s26, 10")
    k.e("s_add_u32 s51, s51, s50")
    k.e(f"s_add_u32 s51, s51, {PQ_L}")
    k.e("v_add_u32 v2, s51, v1")
    k.e(f"ds_read_b128 {vr(AQ_,4)}, v2")
    k.e("s_barrier")
    k.e("s_mov_b64 exec, s[64:65]")
    for t in range(8): k.e(f"ds_read_b32 v{KVR+t}, v202 offset:{KVL + t*256}")
    k.e("s_not_b64 exec, s[64:65]")
    k.e(f"ds_read_b128 {vr(KVR,4)}, v203 offset:{KVL+2048}")
    k.e(f"ds_read_b128 {vr(KVR+4,4)}, v203 offset:{KVL+2048+32}")
    k.e("s_mov_b64 exec, -1")
    k.e("s_waitcnt lgkmcnt(0)")
    cvt8(k, 8, KVR)
    k.e("s_nop 1")
    k.e(f"{MF} {vr(44,16)}, {vr(8,4)}, {vr(AQ_,4)}, 0")
    k.e(f"s_mov_b32 s62, {lit(1e-6)}")
    k.e("s_nop 10")
    k.e("v_add_f32 v12, s62, v52")
    k.e("v_rcp_f32 v12, v12")
    k.e("s_nop 0")
    for j in range(8): k.e(f"v_mul_f32 v{44+j}, v{44+j}, v12")
    cvt8(k, 16, 44)
    k.e(f"s_add_u32 s50, s49, {O_G}")
    k.e(f"buffer_store_dwordx4 {vr(16,4)}, v1, {WS}, s50 offen sc1")

def p3(k):
    k.c("P3: out tile 128x64")
    k.e("s_and_b32 s48, s2, 7")
    k.e("s_lshr_b32 s49, s2, 3")
    k.e("s_lshr_b32 s66, s48, 2")
    k.e("s_and_b32 s67, s48, 3")
    k.e("s_lshl_b32 s67, s67, 2")
    k.e("s_and_b32 s50, s49, 3")
    k.e("s_add_u32 s67, s67, s50")
    k.e("s_lshr_b32 s68, s49, 2")
    k.e("s_lshl_b32 s48, s67, 11")
    k.e(f"s_add_u32 s48, s48, {F2}")
    k.e("v_and_b32 v8, 15, v0")
    k.e("v_lshlrev_b32 v8, 7, v8")
    k.e("v_add_u32 v8, s48, v8")
    OF, ACC3, WF = 8+4, 144, [176, 184]
    VA0, VA1 = 192, 193
    k.e("v_bfe_u32 v2, v0, 2, 2")
    k.e("v_and_b32 v3, 3, v0")
    k.e("v_bfe_u32 v4, v0, 4, 1")
    k.e("v_lshrrev_b32 v5, 5, v0")
    k.e("v_lshlrev_b32 v5, 2, v5")
    k.e("v_add_u32 v5, v5, v2")
    k.e("v_lshlrev_b32 v5, 7, v5")
    k.e("v_and_b32 v6, 1, v3")
    k.e("v_lshlrev_b32 v6, 1, v6")
    k.e("v_add_u32 v6, v6, v4")
    k.e("v_and_b32 v7, 2, v2")
    k.e("v_lshlrev_b32 v7, 1, v7")
    k.e("v_xor_b32 v6, v6, v7")
    k.e("v_lshlrev_b32 v6, 4, v6")
    k.e("v_lshrrev_b32 v3, 1, v3")
    k.e("v_lshlrev_b32 v3, 3, v3")
    k.e("v_add3_u32 v5, v5, v6, v3")
    k.e("s_and_b32 s51, s68, 3")
    k.e("s_lshl_b32 s52, s51, 14")
    k.e(f"s_add_u32 s52, s52, {WO_L}")
    k.e(f"v_add_u32 v{VA0}, s52, v5")
    k.e(f"v_xor_b32 v{VA1}, 64, v{VA0}")
    k.e("s_lshl_b32 s48, s67, 2")
    k.e(f"s_add_u32 s48, s48, s{S_WAVE}")
    k.e("s_lshl_b32 s49, s48, 15")
    k.e("s_lshl_b32 s50, s66, 21")
    k.e("s_add_u32 s49, s49, s50")
    k.e(f"s_add_u32 s49, s49, {O_G}")
    k.e("v_lshlrev_b32 v1, 4, v0")
    sk = k.u("nof2poll")
    k.e(f"s_cmp_eq_u32 s{S_WAVE}, 0")
    k.e(f"s_cbranch_scc0 {sk}")
    k.e("s_mov_b64 exec, 0xffff")
    poll_flags(k, 8, 9, "f2")
    k.e("s_mov_b64 exec, -1")
    k.lab(sk)
    k.e("s_barrier")
    k.e(f"s_cmp_ge_u32 s{S_WAVE}, 4")
    k.e("s_cbranch_scc1 L_fin")
    k.stamp(12)
    for blk in range(4):
        k.e(f"s_add_u32 s52, s51, {blk}")
        k.e("s_and_b32 s52, s52, 3")
        k.e("s_lshl_b32 s52, s52, 13")
        k.e("s_add_u32 s52, s52, s49")
        k.e("s_add_u32 s53, s52, 4096")
        for j in range(8):
            hd = blk*8 + j
            k.e(f"buffer_load_dwordx4 {vr(OF+4*hd,4)}, v1, {WS}, {'s52' if j < 4 else 's53'} offen offset:{(j%4)*1024} sc1")
    def wreads(buf, j):
        for b in range(2):
            for s2 in range(2):
                k.e(f"ds_read_b64_tr_b16 {vr(WF[buf]+4*b+2*s2,2)}, v{VA0+b} offset:{j*2048 + s2*1024}")
    def advance(blk):
        k.e(f"s_add_u32 s52, s51, {blk}")
        k.e("s_and_b32 s52, s52, 3")
        k.e("s_cmp_eq_u32 s52, 0")
        k.e(f"s_cselect_b32 s52, 0x{(-3*16384) & 0xffffffff:x}, s69")
        k.e(f"v_add_u32 v{VA0}, s52, v{VA0}")
        k.e(f"v_add_u32 v{VA1}, s52, v{VA1}")
    k.e("s_mov_b32 s69, 16384")
    wreads(0, 0)
    for hd in range(32):
        if hd < 31:
            nj = (hd + 1) % 8
            if nj == 0: advance((hd + 1)//8)
            wreads((hd + 1) % 2, nj)
        k.e(f"s_waitcnt vmcnt({31-hd}) lgkmcnt({4 if hd < 31 else 0})")
        if OPT.get('p3st') and hd in (0, 8, 31):
            k.stamp({0: 5, 8: 6, 31: 8}[hd])
        for b in range(2):
            k.e(f"{MF} {vr(ACC3+16*b,16)}, {vr(WF[hd%2]+4*b,4)}, {vr(OF+4*hd,4)}, {'0' if hd == 0 else vr(ACC3+16*b,16)}")
    srd(k, SRD_T, P_OUT, 4 << 20)
    k.e("v_and_b32 v2, 31, v0")
    k.e("s_lshl_b32 s49, s48, 5")
    k.e("v_add_u32 v2, s49, v2")
    k.e("v_lshlrev_b32 v2, 11, v2")
    k.e("v_lshrrev_b32 v3, 5, v0")
    k.e("v_lshlrev_b32 v3, 5, v3")
    k.e("s_lshl_b32 s49, s66, 10")
    k.e("s_lshl_b32 s50, s68, 7")
    k.e("s_add_u32 s49, s49, s50")
    k.e("v_add3_u32 v2, v2, v3, s49")
    k.e("s_nop 3")
    for b in range(2):
        for j in range(8): k.e(f"v_cvt_pk_bf16_f32 v{12+8*b+j}, v{ACC3+16*b+2*j}, v{ACC3+16*b+2*j+1}")
    for b in range(2):
        fl = {0: "", 1: " sc1", 2: " nt", 3: " sc0 sc1"}[OPT['outf']]
        k.e(f"buffer_store_dwordx4 {vr(12+8*b,4)}, v2, {sr(SRD_T,4)}, 0 offen offset:{64*b}{fl}")
        k.e(f"buffer_store_dwordx4 {vr(16+8*b,4)}, v2, {sr(SRD_T,4)}, 0 offen offset:{64*b+16}{fl}")

HDR = """; Kernarg layout for this problem (72 bytes, ptrs only, base s[0:1]):
;   offset   0: d_in[0] A_x  shape=(1, 2048, 512) dtype=bfloat16
;   offset   8: d_in[1] A_wqkv  shape=(512, 1536) dtype=bfloat16
;   offset  16: d_in[2] A_wo  shape=(512, 512) dtype=bfloat16
;   offset  24: d_in[3] B_x  shape=(1, 2048, 512) dtype=bfloat16
;   offset  32: d_in[4] B_wqkv  shape=(512, 1536) dtype=bfloat16
;   offset  40: d_in[5] B_wo  shape=(512, 512) dtype=bfloat16
;   offset  48: d_out     shape=(1, 2048, 1024) dtype=bfloat16
;   offset  56: d_debug   256 bytes
;   offset  64: d_ws      268435456 bytes workspace
; @launch grid=(256,1,1) block=(512,1,1) lds=163840
.amdgcn_target "amdgcn-amd-amdhsa--gfx950"
.text
.globl KNAME
.p2align 8
.type KNAME,@function
""".replace("KNAME", KNAME)

TAIL = """.section .rodata,"a"
.p2align 6
.amdhsa_kernel KNAME
  .amdhsa_next_free_vgpr 256
  .amdhsa_next_free_sgpr 102
  .amdhsa_accum_offset 256
  .amdhsa_group_segment_fixed_size 0
  .amdhsa_kernarg_size 72
  .amdhsa_user_sgpr_count 2
  .amdhsa_user_sgpr_kernarg_segment_ptr 1
  .amdhsa_system_sgpr_workgroup_id_x 1
.end_amdhsa_kernel
""".replace("KNAME", KNAME)

def build(stamps=False):
    k = gen(stamps)
    body = "\n".join(k.L)
    body = body.replace("PF_BACK", f"((L_pc - {KNAME}) & 0xffffff00)")
    pad = "\n    .fill 2048, 4, 0xbf800000\n"
    hdr, tail = HDR, TAIL
    if OPT['extra']:
        hdr = hdr.replace("; @launch grid=(256,1,1) block=(512,1,1) lds=163840", f"; @launch kernel={KNAME} grid=(256,1,1) block=(512,1,1) lds=163840\n; @launch kernel=nop_kernel grid=(1,1,1) block=(64,1,1) lds=0")
        pad += ".globl nop_kernel\n.p2align 8\n.type nop_kernel,@function\nnop_kernel:\n    s_endpgm\n"
        tail += """.p2align 6
.amdhsa_kernel nop_kernel
  .amdhsa_next_free_vgpr 8
  .amdhsa_next_free_sgpr 16
  .amdhsa_accum_offset 8
  .amdhsa_group_segment_fixed_size 0
  .amdhsa_kernarg_size 72
  .amdhsa_user_sgpr_count 2
  .amdhsa_user_sgpr_kernarg_segment_ptr 1
  .amdhsa_system_sgpr_workgroup_id_x 1
.end_amdhsa_kernel
"""
    return hdr + body + pad + "\n" + tail

if __name__ == "__main__":
    out = sys.argv[1] if len(sys.argv) > 1 else "out.s"
    stamps = "stamps" in sys.argv[2:]
    for a in sys.argv[2:]:
        if "=" in a:
            kk, vv = a.split("="); OPT[kk] = int(vv)
    txt = build(stamps)
    open(out, "w").write(txt)
    import hz
    pr = hz.check(txt)
    import subprocess
    r = subprocess.run(["clang", "-x", "assembler", "-target", "amdgcn-amd-amdhsa", "-mcpu=gfx950", "-c", out, "-o", "_chk.o"], capture_output=True, text=True)
    print("hazards:", len(pr), "lines:", txt.count("\n"), "asm:", "ok" if r.returncode == 0 else r.stderr)
```

```python
import sys, math, struct

KNAME = "concat_heads__linear_attn_block__sliding_block__prompt_kernel"

KB_G   = 0
VB_G   = 2 << 20
O_G    = 4 << 20
KVACC  = 8 << 20
FL     = (8 << 20) + (64 << 10)
F1B    = FL
F1A    = FL + (32 << 10)
F2     = FL + (96 << 10)
STAMP  = 9 << 20
SLOT   = 32768
OK_L, OV_L, Q_L, PQ_L = 131072, 139264, 147456, 155648
NONCE_L = PQ_L
RK_L, RV_L, WO_L = 0, 32768, 65536
CS = 0.25 * math.log2(math.e)
LOG2E = math.log2(math.e)
BIG = 1.0e28
SPIN_MAX = 100000
OPT = dict(rot=8, pfB=0, pfA=1, dbgstamps=0, stagest=0, pfs=1, tpf=0, p3st=0, map=0, outf=0, extra=0, sigs=9, pf0=0, late9=0, remdma=1)

def f2u(x): return struct.unpack('<I', struct.pack('<f', x))[0]
def lit(x): return "0x%08x" % f2u(x)

class K:
    def __init__(self, stamps=False):
        self.L = []; self.stamps = stamps; self.uid = 0
    def e(self, s): self.L.append("    " + s)
    def c(self, s): self.L.append("    ; " + s)
    def lab(self, s): self.L.append(s + ":")
    def u(self, p):
        self.uid += 1; return f"L_{p}_{self.uid}"
    def stamp(self, k):
        if not self.stamps: return
        self.e("s_memrealtime s[70:71]")
        self.e("s_waitcnt lgkmcnt(0)")
        self.e(f"s_mov_b32 s{72+k}, s70")

def vr(a, n): return f"v[{a}:{a+n-1}]"
def sr(a, n): return f"s[{a}:{a+n-1}]"
MF = "v_mfma_f32_32x32x16_bf16"

S_WAVE, S_RB, S_G, S_NONCE = 22, 23, 24, 25
SRD_WS, SRD_X, SRD_W, SRD_T, SRD_WO = 28, 32, 36, 40, 44
P_AX, P_AW, P_AWO, P_BX, P_BW, P_BWO, P_OUT, P_DBG, P_WS = 4, 6, 8, 10, 12, 14, 16, 18, 20
WS = sr(SRD_WS, 4)

def srd(k, dst, ptr, size):
    k.e(f"s_mov_b32 s{dst}, s{ptr}")
    k.e(f"s_mov_b32 s{dst+1}, s{ptr+1}")
    k.e(f"s_mov_b32 s{dst+2}, 0x{size:x}")
    k.e(f"s_mov_b32 s{dst+3}, 0x20000")

def spin_guard(k, sreg, exit_label):
    k.e(f"s_add_u32 s{sreg}, s{sreg}, 1")
    k.e(f"s_cmp_gt_u32 s{sreg}, {SPIN_MAX}")
    k.e(f"s_cbranch_scc1 {exit_label}")

def poll_flags(k, vaddr, vtmp, name, first_issued=False, sleep=1):
    lp = k.u(name + "_poll"); ex = k.u(name + "_done"); chk = k.u(name + "_chk")
    k.e("s_mov_b32 s60, 0")
    if first_issued: k.e(f"s_branch {chk}")
    k.lab(lp)
    k.e(f"buffer_load_dword v{vtmp}, v{vaddr}, {WS}, 0 offen sc1")
    k.lab(chk)
    spin_guard(k, 60, ex)
    k.e("s_waitcnt vmcnt(0)")
    k.e(f"v_cmp_ne_u32 vcc, s{S_NONCE}, v{vtmp}")
    k.e("s_nop 1")
    k.e(f"s_cbranch_vccz {ex}")
    if sleep: k.e(f"s_sleep {sleep}")
    k.e(f"s_branch {lp}")
    k.lab(ex)
    k.e("s_waitcnt vmcnt(0)")

def store_flag(k, soff):
    k.e(f"v_mov_b32 v250, s{S_NONCE}")
    k.e("v_mov_b32 v251, 0")
    k.e("s_mov_b64 exec, 1")
    k.e(f"buffer_store_dword v250, v251, {WS}, s{soff} offen sc1")
    k.e("s_mov_b64 exec, -1")

def cvt8(k, dst, src):
    for j in range(4): k.e(f"v_cvt_pk_bf16_f32 v{dst+j}, v{src+2*j}, v{src+2*j+1}")

def phi(k, r, n, t):
    for i in range(0, n, 4):
        for j in range(4): k.e(f"v_mul_f32 v{t+j}, s61, v{r+i+j}")
        for j in range(4): k.e(f"v_exp_f32 v{t+j}, v{t+j} clamp")
        for j in range(4): k.e(f"v_max_f32 v{r+i+j}, 0, v{r+i+j}")
        for j in range(4): k.e(f"v_add_f32 v{r+i+j}, s62, v{r+i+j}")
        for j in range(4): k.e(f"v_add_f32 v{r+i+j}, v{t+j}, v{r+i+j}")

ACC = 8
BUF = [72, 88, 104, 120]
VXA, VWA = 136, 140
EP = 144
PFD = 208

def rd_x(k, buf, j, t): k.e(f"ds_read_b128 {vr(BUF[buf]+4*t,4)}, v{VXA+j} offset:{t*4096}")
def rd_w(k, buf, j, p, slot):
    for s2 in range(2):
        k.e(f"ds_read_b64_tr_b16 {vr(BUF[buf]+8+4*slot+2*s2,2)}, v{VWA} offset:{p*8192 + j*2048 + s2*512}")
def reads(k, role, buf, j):
    rd_x(k, buf, j, 0); rd_x(k, buf, j, 1)
    if role == 'kv': rd_w(k, buf, j, 1, 0); rd_w(k, buf, j, 2, 1)
    else: rd_w(k, buf, j, 0, 0)

def kstep(k, role, br, j, first=False, noreads=False, wait=None):
    nb = (j + 2) & 3; b = BUF[j]
    if noreads:
        X = [vr(b,4), vr(b+4,4)]; W = [vr(b+8,4), vr(b+12,4)]
        k.e(f"s_waitcnt lgkmcnt({wait})")
        for t in range(2):
            a = ACC + 16*t
            if role == 'kv' and br == 'A': k.e(f"{MF} {vr(a,16)}, {X[t]}, {W[0]}, {vr(a,16)}")
            else: k.e(f"{MF} {vr(a,16)}, {W[0]}, {X[t]}, {vr(a,16)}")
        if role == 'kv':
            for t in range(2):
                a = ACC + 32 + 16*t
                k.e(f"{MF} {vr(a,16)}, {X[t]}, {W[1]}, {vr(a,16)}")
        return
    X = [vr(b,4), vr(b+4,4)]; W = [vr(b+8,4), vr(b+12,4)]
    def C(a): return "0" if first else vr(a,16)
    if role == 'kv':
        k.e("s_waitcnt lgkmcnt(6)")
        for t in range(2):
            a = ACC + 16*t
            if br == 'B': k.e(f"{MF} {vr(a,16)}, {W[0]}, {X[t]}, {C(a)}")
            else:         k.e(f"{MF} {vr(a,16)}, {X[t]}, {W[0]}, {C(a)}")
            if t == 0: rd_x(k, nb, nb, 0); rd_x(k, nb, nb, 1)
            else: rd_w(k, nb, nb, 1, 0)
        for t in range(2):
            a = ACC + 32 + 16*t
            k.e(f"{MF} {vr(a,16)}, {X[t]}, {W[1]}, {C(a)}")
            if t == 0: rd_w(k, nb, nb, 2, 1)
    else:
        k.e("s_waitcnt lgkmcnt(4)")
        for t in range(2):
            a = ACC + 16*t
            k.e(f"{MF} {vr(a,16)}, {W[0]}, {X[t]}, {C(a)}")
            if t == 0: rd_x(k, nb, nb, 0); rd_x(k, nb, nb, 1)
            else: rd_w(k, nb, nb, 0, 0)

def consumer_tile(k, role, br, extra=None):
    lp = k.u("c"+role+br); ex = k.u("cx"+role+br)
    k.e("s_mov_b32 s48, 0")
    kstep(k, role, br, 0, first=True)
    k.lab(lp)
    k.e("s_add_u32 s49, s49, 1")
    k.e("s_and_b32 s50, s49, 3")
    k.e("s_cmp_eq_u32 s50, 0")
    k.e(f"s_cselect_b32 s50, 0x{(-3*SLOT) & 0xffffffff:x}, s69")
    kstep(k, role, br, 1)
    if extra: extra(k)
    if br == 'A' and role == 'kv':
        sk = k.u("novm")
        k.e(f"s_cmp_eq_u32 s48, {OPT['sigs']-8}")
        k.e(f"s_cbranch_scc0 {sk}")
        k.e("s_waitcnt vmcnt(0)")
        k.lab(sk)
    for j in range(4): k.e(f"v_add_u32 v{VXA+j}, s50, v{VXA+j}")
    k.e(f"v_add_u32 v{VWA}, s50, v{VWA}")
    k.e("s_barrier")
    k.e("s_cmp_lt_u32 s48, 7")
    k.e(f"s_cbranch_scc0 {ex}")
    kstep(k, role, br, 2)
    kstep(k, role, br, 3)
    k.e("s_add_u32 s48, s48, 1")
    kstep(k, role, br, 0)
    k.e(f"s_branch {lp}")
    k.lab(ex)
    n = 6 if role == 'kv' else 4
    kstep(k, role, br, 2, noreads=True, wait=n)
    kstep(k, role, br, 3, noreads=True, wait=0)

def consumer_setup(k):
    k.e("v_and_b32 v1, 31, v0")
    k.e("v_lshrrev_b32 v2, 5, v0")
    k.e("v_bfe_u32 v3, v0, 1, 3")
    k.e("v_xor_b32 v3, v3, v2")
    k.e("v_lshlrev_b32 v3, 4, v3")
    k.e("v_lshlrev_b32 v1, 7, v1")
    k.e(f"v_add_u32 v{VXA}, v1, v3")
    for j in range(1, 4): k.e(f"v_xor_b32 v{VXA+j}, {j<<5}, v{VXA}")
    k.e("v_bfe_u32 v1, v0, 2, 2")
    k.e("v_and_b32 v2, 3, v0")
    k.e("v_bfe_u32 v3, v0, 4, 1")
    k.e("v_lshrrev_b32 v4, 5, v0")
    k.e("v_lshlrev_b32 v4, 3, v4")
    k.e("v_add_u32 v4, v4, v1")
    k.e("v_lshlrev_b32 v4, 7, v4")
    k.e("v_lshlrev_b32 v3, 1, v3")
    k.e("v_lshrrev_b32 v5, 1, v2")
    k.e("v_add_u32 v3, v3, v5")
    k.e("s_lshl_b32 s48, s27, 2")
    k.e("v_add_u32 v3, s48, v3")
    k.e("v_and_b32 v5, 2, v1")
    k.e("v_lshlrev_b32 v5, 1, v5")
    k.e("v_xor_b32 v3, v3, v5")
    k.e("v_lshlrev_b32 v3, 4, v3")
    k.e("v_and_b32 v2, 1, v2")
    k.e("v_lshlrev_b32 v2, 3, v2")
    k.e("v_add3_u32 v4, v4, v3, v2")
    k.e(f"v_add_u32 v{VWA}, 8192, v4")

def read_nonce(k, va, vb):
    k.e(f"v_mov_b32 v{va}, {NONCE_L}")
    k.e(f"ds_read_b32 v{vb}, v{va}")
    k.e("s_waitcnt lgkmcnt(0)")
    k.e(f"v_readfirstlane_b32 s{S_NONCE}, v{vb}")

def pf_setup(k, pw, px):
    k.e("s_and_b32 s50, s2, 7")
    k.e("s_lshr_b32 s51, s2, 3")
    k.e("v_lshrrev_b32 v5, 2, v0")
    k.e("s_lshl_b32 s52, s51, 4")
    k.e("v_add_u32 v5, s52, v5")
    k.e("v_mul_u32_u24 v5, 3072, v5")
    k.e("v_and_b32 v6, 3, v0")
    k.e("s_lshr_b32 s52, s50, 2")
    k.e("s_lshl_b32 s52, s52, 2")
    k.e("v_add_u32 v6, s52, v6")
    k.e("v_lshlrev_b32 v6, 7, v6")
    k.e("v_add_u32 v5, v5, v6")
    k.e("v_lshlrev_b32 v6, 7, v0")
    k.e("s_and_b32 s52, s50, 3")
    k.e("s_lshl_b32 s52, s52, 9")
    k.e("s_lshl_b32 s53, s51, 4")
    k.e("s_add_u32 s52, s52, s53")
    k.e("s_lshl_b32 s66, s52, 10")
    k.e("s_lshl_b32 s67, s51, 14")
    k.e("s_lshr_b32 s68, s50, 2")

def gen(stamps=False):
    k = K(stamps)
    k.lab(KNAME)
    k.e("s_cmp_ge_u32 s2, 256")
    k.e("s_cbranch_scc1 L_end")
    if stamps: k.e("s_memrealtime s[70:71]")
    k.e("s_load_dwordx16 s[4:19], s[0:1], 0")
    k.e("s_load_dwordx2 s[20:21], s[0:1], 64")
    k.e("v_lshrrev_b32 v1, 6, v0")
    k.e("v_and_b32 v0, 63, v0")
    k.e(f"v_readfirstlane_b32 s{S_WAVE}, v1")
    k.e("s_and_b32 s26, s2, 7")
    k.e("s_lshr_b32 s27, s2, 3")
    k.e("s_and_b32 s48, s26, 3")
    k.e("s_lshl_b32 s48, s48, 3")
    if OPT['map'] == 0:
        k.e("s_and_b32 s49, s27, 7")
    else:
        k.e("s_lshr_b32 s49, s27, 2")
    k.e(f"s_add_u32 s{S_RB}, s48, s49")
    k.e("s_lshr_b32 s48, s26, 2")
    k.e("s_lshl_b32 s48, s48, 2")
    if OPT['map'] == 0:
        k.e("s_lshr_b32 s49, s27, 3")
    else:
        k.e("s_and_b32 s49, s27, 3")
    k.e(f"s_add_u32 s{S_G}, s48, s49")
    k.e(f"s_cmp_lt_u32 s{S_WAVE}, 4")
    k.e("s_cbranch_scc1 L_consumer")

    loader(k)
    k.e("s_branch L_attn")

    k.lab("L_consumer")
    k.e("s_waitcnt lgkmcnt(0)")
    if stamps: k.e("s_mov_b32 s72, s70")
    srd(k, SRD_WS, P_WS, 256 << 20)
    srd(k, SRD_T, P_DBG, 256)
    srd(k, SRD_X, P_AW, 512*3072)
    k.e(f"s_and_b32 s27, s{S_WAVE}, 1")
    consumer_setup(k)
    attn_setup(k)
    nn = k.u("nononce")
    k.e(f"s_cmp_eq_u32 s{S_WAVE}, 0")
    k.e(f"s_cbranch_scc0 {nn}")
    k.e("v_mov_b32 v2, 0")
    nl = k.u("nolead")
    k.e("s_cmp_eq_u32 s2, 0")
    k.e(f"s_cbranch_scc0 {nl}")
    k.e("s_memrealtime s[58:59]")
    k.e("s_waitcnt lgkmcnt(0)")
    k.e("s_or_b32 s58, s58, 1")
    k.e("v_mov_b32 v3, s58")
    k.e(f"buffer_store_dword v3, v2, {sr(SRD_T,4)}, 0 offen sc1")
    k.lab(nl)
    k.lab(nn)
    k.e("s_mov_b32 s49, 0")
    k.e(f"s_mov_b32 s69, {SLOT}")
    k.e(f"s_cmp_ge_u32 s{S_WAVE}, 2")
    k.e("s_cbranch_scc1 L_qwave")

    k.e("s_barrier")
    k.stamp(1)
    reads(k, 'kv', 0, 0); reads(k, 'kv', 1, 1)
    consumer_tile(k, 'kv', 'B')
    k.stamp(2)
    k.c("B epilogue (kv)")
    read_nonce(k, 2, 3)
    k.e(f"s_lshl_b32 s62, s{S_G}, 2")
    k.e("s_lshl_b32 s63, s27, 1")
    k.e("s_add_u32 s62, s62, s63")
    k.e("s_lshl_b32 s62, s62, 6")
    k.e(f"s_lshl_b32 s63, s{S_RB}, 1")
    k.e("s_add_u32 s62, s62, s63")
    k.e("s_lshl_b32 s62, s62, 10")
    k.e("v_lshlrev_b32 v1, 4, v0")
    k.e("s_lshl_b32 s63, s27, 12")
    k.e(f"s_add_u32 s63, s63, {OK_L}")
    k.e("v_add_u32 v4, s63, v1")
    k.e("v_bfe_u32 v2, v0, 4, 1")
    k.e("v_lshrrev_b32 v3, 5, v0")
    k.e("v_lshlrev_b32 v3, 8, v3")
    k.e("v_and_b32 v5, 15, v0")
    k.e("v_lshlrev_b32 v5, 4, v5")
    k.e("v_add_u32 v3, v3, v5")
    k.e("v_lshlrev_b32 v5, 11, v2")
    k.e("v_add_u32 v5, v5, v3")
    k.e(f"s_add_u32 s63, s63, {OV_L - OK_L}")
    k.e("v_add_u32 v5, s63, v5")
    k.e("v_lshlrev_b32 v2, 16, v2")
    k.e("v_add_u32 v2, v2, v3")
    k.e(f"s_add_u32 s64, s62, {KB_G + 65536}")
    k.e(f"s_add_u32 s65, s62, {VB_G}")
    k.e("s_nop 3")
    for t in range(2):
        KF = EP + 16*t; VF = KF + 8
        cvt8(k, KF, ACC+16*t); cvt8(k, KF+4, ACC+16*t+8)
        cvt8(k, VF, ACC+32+16*t); cvt8(k, VF+4, ACC+32+16*t+8)
        k.e(f"buffer_store_dwordx4 {vr(KF,4)}, v1, {WS}, s62 offen offset:{t*1024} sc1")
        k.e(f"buffer_store_dwordx4 {vr(KF+4,4)}, v1, {WS}, s64 offen offset:{t*1024} sc1")
        k.e(f"buffer_store_dwordx4 {vr(VF,4)}, v2, {WS}, s65 offen offset:{t*1024} sc1")
        k.e(f"buffer_store_dwordx4 {vr(VF+4,4)}, v2, {WS}, s65 offen offset:{t*1024+512} sc1")
        k.e(f"ds_write_b128 v4, {vr(KF,4)} offset:{t*1024}")
        k.e(f"ds_write_b128 v4, {vr(KF+4,4)} offset:{t*1024+2048}")
        k.e(f"ds_write_b128 v5, {vr(VF,4)} offset:{t*1024}")
        k.e(f"ds_write_b128 v5, {vr(VF+4,4)} offset:{t*1024+512}")
    k.stamp(3)
    k.e("s_barrier")
    reads(k, 'kv', 0, 0); reads(k, 'kv', 1, 1)
    consumer_tile(k, 'kv', 'A')
    k.e("s_waitcnt lgkmcnt(0)")
    k.e("s_barrier")
    k.stamp(4)
    k.c("A epilogue (kv)")
    T = 72
    k.e(f"s_mov_b32 s61, {lit(LOG2E)}")
    k.e(f"s_mov_b32 s62, {lit(1e-6)}")
    PK, VV, ONES = 80, 96, 112
    for j in range(4): k.e(f"v_mov_b32 v{ONES+j}, 0x3f803f80")
    k.e("s_nop 3")
    for t in range(2):
        cvt8(k, VV+8*t, ACC+32+16*t); cvt8(k, VV+8*t+4, ACC+32+16*t+8)
    DKV, DZ = ACC+32, ACC+48
    for t in range(2):
        phi(k, ACC+16*t, 16, T)
        cvt8(k, PK+8*t, ACC+16*t); cvt8(k, PK+8*t+4, ACC+16*t+8)
        k.e("s_nop 1")
        for m in range(2):
            first = (t == 0 and m == 0)
            k.e(f"{MF} {vr(DKV,16)}, {vr(PK+8*t+4*m,4)}, {vr(VV+8*t+4*m,4)}, {'0' if first else vr(DKV,16)}")
            k.e(f"{MF} {vr(DZ,16)}, {vr(ONES,4)}, {vr(PK+8*t+4*m,4)}, {'0' if first else vr(DZ,16)}")
    k.e("s_mov_b32 s64, 0xffff0000")
    k.e("s_mov_b32 s65, 0xffff0000")
    k.e(f"s_lshl_b32 s63, s{S_G}, 1")
    k.e("s_add_u32 s63, s63, s27")
    k.e("s_lshl_b32 s63, s63, 12")
    k.e(f"s_add_u32 s63, s63, {KVACC}")
    k.e("v_lshlrev_b32 v3, 2, v0")
    k.e("s_nop 5")
    RS = 120
    for t in range(8): k.e(f"v_cndmask_b32 v{RS+t}, v{DKV+t}, v{DKV+8+t}, s[64:65]")
    for t in range(8): k.e(f"buffer_atomic_add_f32 v{RS+t}, v3, {WS}, s63 offen offset:{t*256}")
    k.e("s_mov_b32 exec_hi, 0")
    k.e(f"buffer_atomic_add_f32 v{DZ}, v3, {WS}, s63 offen offset:2048")
    k.e("s_mov_b64 exec, -1")
    k.e("s_branch L_e1")

    k.lab("L_qwave")
    k.e("v_mov_b32 v251, 0")
    k.e("s_barrier")
    k.stamp(1)
    reads(k, 'q', 0, 0); reads(k, 'q', 1, 1)
    def pf_extra(k):
        ex = k.u("pfx"); w3 = k.u("pfw3")
        n1 = k.u("nn1"); n2 = k.u("nn2")
        k.e(f"s_cmp_eq_u32 s{S_WAVE}, 2")
        k.e(f"s_cbranch_scc0 {n2}")
        k.e("s_cmp_eq_u32 s48, 0")
        k.e(f"s_cbranch_scc0 {n1}")
        k.e(f"buffer_load_dword v7, v251, {sr(SRD_T,4)}, 0 offen sc1")
        k.lab(n1)
        k.e("s_cmp_eq_u32 s48, 6")
        k.e(f"s_cbranch_scc0 {n2}")
        lp = k.u("np"); npx = k.u("npx"); chk = k.u("npc")
        k.e("s_mov_b32 s60, 0")
        k.e(f"s_branch {chk}")
        k.lab(lp)
        k.e(f"buffer_load_dword v7, v251, {sr(SRD_T,4)}, 0 offen sc1")
        k.lab(chk)
        spin_guard(k, 60, npx)
        k.e("s_waitcnt vmcnt(0)")
        k.e("v_readfirstlane_b32 s58, v7")
        k.e("s_nop 0")
        k.e("s_cmp_eq_u32 s58, 0")
        k.e(f"s_cbranch_scc1 {lp}")
        k.lab(npx)
        k.e("s_waitcnt vmcnt(0)")
        k.e(f"v_mov_b32 v250, {NONCE_L}")
        k.e("ds_write_b32 v250, v7")
        k.lab(n2)
    consumer_tile(k, 'q', 'B', pf_extra)
    k.stamp(2)
    k.c("B epilogue (q)")
    read_nonce(k, 2, 3)
    k.e(f"s_mov_b32 s61, {lit(CS)}")
    k.e("v_lshlrev_b32 v1, 4, v0")
    k.e("s_lshl_b32 s63, s27, 12")
    k.e(f"s_add_u32 s63, s63, {Q_L}")
    k.e("v_add_u32 v4, s63, v1")
    k.e("s_nop 6")
    for t in range(2):
        for i in range(16): k.e(f"v_mul_f32 v{ACC+16*t+i}, s61, v{ACC+16*t+i}")
        QF = EP + 8*t
        cvt8(k, QF, ACC+16*t); cvt8(k, QF+4, ACC+16*t+8)
        k.e(f"ds_write_b128 v4, {vr(QF,4)} offset:{t*1024}")
        k.e(f"ds_write_b128 v4, {vr(QF+4,4)} offset:{t*1024+2048}")
    k.stamp(3)
    k.e("s_barrier")
    reads(k, 'q', 0, 0); reads(k, 'q', 1, 1)
    consumer_tile(k, 'q', 'A')
    k.e("s_waitcnt lgkmcnt(0)")
    k.e("s_barrier")
    k.stamp(4)
    k.c("A epilogue (q)")
    k.e(f"s_mov_b32 s61, {lit(LOG2E)}")
    k.e(f"s_mov_b32 s62, {lit(1e-6)}")
    k.e("v_lshlrev_b32 v1, 4, v0")
    k.e("s_lshl_b32 s63, s27, 12")
    k.e(f"s_add_u32 s63, s63, {PQ_L}")
    k.e("v_add_u32 v4, s63, v1")
    k.e("s_nop 4")
    for t in range(2):
        phi(k, ACC+16*t, 16, 72)
        QF = EP + 8*t
        cvt8(k, QF, ACC+16*t); cvt8(k, QF+4, ACC+16*t+8)
        k.e(f"ds_write_b128 v4, {vr(QF,4)} offset:{t*1024}")
        k.e(f"ds_write_b128 v4, {vr(QF+4,4)} offset:{t*1024+2048}")
    k.e("s_waitcnt lgkmcnt(0)")
    k.lab("L_e1")

    k.lab("L_attn")
    k.stamp(7)
    attention(k)
    k.stamp(9)
    apart(k)
    k.stamp(10)
    k.e("s_waitcnt vmcnt(0) lgkmcnt(0)")
    k.e("s_barrier")
    k.stamp(11)
    sk = k.u("nof2")
    k.e(f"s_cmp_eq_u32 s{S_WAVE}, 4")
    k.e(f"s_cbranch_scc0 {sk}")
    k.e(f"s_lshr_b32 s48, s{S_RB}, 1")
    k.e("s_lshl_b32 s48, s48, 11")
    k.e(f"s_and_b32 s49, s{S_RB}, 1")
    k.e("s_lshl_b32 s49, s49, 3")
    k.e(f"s_add_u32 s49, s49, s{S_G}")
    k.e("s_lshl_b32 s49, s49, 7")
    k.e("s_add_u32 s48, s48, s49")
    k.e(f"s_add_u32 s48, s48, {F2}")
    store_flag(k, 48)
    k.lab(sk)
    p3(k)
    k.lab("L_fin")
    if stamps:
        k.stamp(13)
        k.e(f"s_lshl_b32 s48, s2, 3")
        k.e(f"s_add_u32 s48, s48, s{S_WAVE}")
        k.e("s_lshl_b32 s48, s48, 6")
        k.e(f"s_add_u32 s48, s48, {STAMP}")
        k.e("v_mov_b32 v9, 0")
        for j in range(16):
            k.e(f"v_mov_b32 v8, s{72+j}")
            k.e(f"buffer_store_dword v8, v9, {WS}, s48 offen offset:{4*j}")
            k.e("s_nop 0")
    if stamps and OPT['dbgstamps']:
        sk = k.u("nodbg")
        srd(k, SRD_T, P_DBG, 256)
        k.e(f"s_cmp_eq_u32 s2, {OPT['dbgstamps']}")
        k.e(f"s_cbranch_scc0 {sk}")
        k.e(f"s_cmp_eq_u32 s{S_WAVE}, 0")
        k.e(f"s_cbranch_scc0 {sk}")
        k.e("v_mov_b32 v9, 0")
        for j in range(1, 14):
            k.e(f"s_sub_u32 s48, s{72+j}, s72")
            k.e("v_mov_b32 v8, s48")
            k.e(f"buffer_store_dword v8, v9, {sr(SRD_T,4)}, 0 offen offset:{4*j}")
            k.e("s_nop 0")
        k.lab(sk)
    if OPT['stagest']:
        sk = k.u("nost")
        k.e(f"s_cmp_eq_u32 s{S_WAVE}, 4")
        k.e(f"s_cbranch_scc0 {sk}")
        k.e("s_lshl_b32 s48, s2, 8")
        k.e(f"s_add_u32 s48, s48, {STAMP + (1<<19)}")
        k.e("v_lshlrev_b32 v9, 2, v0")
        k.e(f"buffer_store_dword v252, v9, {WS}, s48 offen")
        k.lab(sk)
    k.lab("L_end")
    k.e("s_endpgm")
    return k

def issue_stage(k):
    k.e("s_lshl_b32 s52, s59, 7")
    k.e("s_mul_i32 s53, s59, 196608")
    k.e("s_mov_b32 m0, s51")
    k.e("s_add_u32 s54, s53, 23552")
    k.e(f"buffer_load_dwordx4 v1, {sr(SRD_X,4)}, s52 offen lds")
    k.e(f"buffer_load_dwordx4 v2, {sr(SRD_X,4)}, s52 offen offset:1024 lds")
    for p in range(3):
        k.e(f"s_add_u32 s55, s51, {8192 + p*8192}")
        k.e("s_mov_b32 m0, s55")
        if p: k.e(f"s_add_u32 s56, s53, {p*1024}"); so0 = "s56"
        else: so0 = "s53"; k.e("s_nop 0")
        k.e(f"buffer_load_dwordx4 v3, {sr(SRD_W,4)}, {so0} offen lds")
        if p: k.e(f"s_add_u32 s56, s54, {p*1024}"); so1 = "s56"
        else: so1 = "s54"
        k.e(f"buffer_load_dwordx4 v3, {sr(SRD_W,4)}, {so1} offen offset:1024 lds")
    k.e("s_add_u32 s57, s57, 1")
    k.e("s_add_u32 s59, s59, 1")
    k.e("s_and_b32 s59, s59, 7")
    k.e(f"s_add_u32 s51, s51, {SLOT}")
    k.e("s_and_b32 s58, s57, 3")
    sk = k.u("nowrap")
    k.e("s_cmp_eq_u32 s58, 0")
    k.e(f"s_cbranch_scc0 {sk}")
    k.e(f"s_sub_u32 s51, s51, {4*SLOT}")
    k.lab(sk)
    sk2 = k.u("nosw")
    k.e("s_cmp_eq_u32 s57, 8")
    k.e(f"s_cbranch_scc0 {sk2}")
    srd(k, SRD_X, P_AX, 2 << 20)
    srd(k, SRD_W, P_AW, 512*3072)
    k.lab(sk2)

def pf0(k):
    k.e("s_and_b32 s50, s2, 7")
    k.e("s_lshr_b32 s52, s2, 3")
    wx = k.u("pf0x"); ex = k.u("pf0e")
    k.e("s_cmp_lt_u32 s26, 3")
    k.e(f"s_cbranch_scc0 {wx}")
    srd(k, SRD_T, P_AW, 512*3072)
    k.e("v_lshrrev_b32 v5, 2, v0")
    k.e("s_lshl_b32 s53, s52, 4")
    k.e("v_add_u32 v5, s53, v5")
    k.e("v_mul_u32_u24 v5, 3072, v5")
    k.e("v_and_b32 v6, 3, v0")
    k.e("s_lshr_b32 s53, s50, 2")
    k.e("s_lshl_b32 s53, s53, 2")
    k.e("v_add_u32 v6, s53, v6")
    k.e("v_lshlrev_b32 v6, 7, v6")
    k.e("v_add_u32 v5, v5, v6")
    k.e("s_lshl_b32 s53, s26, 10")
    k.e(f"buffer_load_dword v6, v5, {sr(SRD_T,4)}, s53 offen")
    k.e(f"buffer_load_dword v7, v5, {sr(SRD_T,4)}, s53 offen")
    k.e(f"s_branch {ex}")
    k.lab(wx)
    srd(k, SRD_T, P_AX, 2 << 20)
    k.e("s_and_b32 s53, s50, 3")
    k.e("s_lshl_b32 s53, s53, 9")
    k.e("s_lshl_b32 s54, s52, 4")
    k.e("s_add_u32 s53, s53, s54")
    k.e("s_lshl_b32 s53, s53, 10")
    k.e("v_lshlrev_b32 v5, 7, v0")
    k.e(f"buffer_load_dword v6, v5, {sr(SRD_T,4)}, s53 offen")
    k.e("s_add_u32 s53, s53, 8192")
    k.e(f"buffer_load_dword v7, v5, {sr(SRD_T,4)}, s53 offen")
    k.lab(ex)

def pfsetup(k):
    k.e("s_and_b32 s50, s2, 7")
    k.e("s_lshr_b32 s52, s2, 3")
    k.e("s_mov_b32 s66, 1")
    wx = k.u("pfwx"); wo = k.u("pfwo"); ex = k.u("pfex")
    k.e("s_cmp_lt_u32 s26, 2")
    k.e(f"s_cbranch_scc0 {wx}")
    srd(k, SRD_T, P_BW, 512*3072)
    k.e("v_min_u32 v4, 11, v0")
    k.e("v_lshrrev_b32 v5, 2, v4")
    k.e("v_lshlrev_b32 v5, 10, v5")
    k.e("v_and_b32 v4, 3, v4")
    k.e("s_lshr_b32 s53, s50, 2")
    k.e("s_lshl_b32 s53, s53, 2")
    k.e("v_add_u32 v4, s53, v4")
    k.e("v_lshlrev_b32 v4, 7, v4")
    k.e("s_lshl_b32 s53, s52, 1")
    k.e("s_add_u32 s53, s53, s26")
    k.e("s_mul_i32 s53, s53, 3072")
    k.e("v_add3_u32 v4, v4, v5, s53")
    k.e("s_mov_b32 s65, 196608")
    k.e("s_mov_b32 s64, 196608")
    k.e(f"s_branch {ex}")
    k.lab(wx)
    k.e("s_cmp_eq_u32 s26, 2")
    k.e(f"s_cbranch_scc0 {wo}")
    srd(k, SRD_T, P_BX, 2 << 20)
    k.e("v_min_u32 v4, 15, v0")
    k.e("s_and_b32 s53, s50, 3")
    k.e("s_lshl_b32 s53, s53, 9")
    k.e("s_lshl_b32 s54, s52, 4")
    k.e("s_add_u32 s53, s53, s54")
    k.e("v_add_u32 v4, s53, v4")
    k.e("v_lshlrev_b32 v4, 10, v4")
    k.e("s_mov_b32 s65, 128")
    k.e("s_mov_b32 s64, 128")
    k.e(f"s_branch {ex}")
    k.lab(wo)
    k.e("s_lshr_b32 s53, s50, 2")
    k.e("s_cmp_eq_u32 s53, 0")
    k.e(f"s_cselect_b32 s{SRD_T}, s{P_AWO}, s{P_BWO}")
    k.e(f"s_cselect_b32 s{SRD_T+1}, s{P_AWO+1}, s{P_BWO+1}")
    k.e(f"s_mov_b32 s{SRD_T+2}, 0x{512*1024:x}")
    k.e(f"s_mov_b32 s{SRD_T+3}, 0x20000")
    k.e("v_min_u32 v4, 8, v0")
    k.e("v_lshlrev_b32 v4, 7, v4")
    k.e("s_lshl_b32 s53, s52, 14")
    k.e("v_add_u32 v4, s53, v4")
    k.e("s_mov_b32 s65, 1152")
    k.e("s_mov_b32 s64, 0")
    k.lab(ex)

def pf_issue(k):
    sk = k.u("pfsw")
    k.e("s_cmp_eq_u32 s66, 8")
    k.e(f"s_cbranch_scc0 {sk}")
    k.e("s_cmp_lt_u32 s26, 3")
    k.e(f"s_cbranch_scc0 {sk}")
    k.e("s_mov_b32 s64, 0")
    k.e("s_cmp_lt_u32 s26, 2")
    k.e(f"s_cselect_b32 s{SRD_T}, s{P_AW}, s{P_AX}")
    k.e(f"s_cselect_b32 s{SRD_T+1}, s{P_AW+1}, s{P_AX+1}")
    k.lab(sk)
    k.e(f"buffer_load_dword v5, v4, {sr(SRD_T,4)}, s64 offen")
    k.e("s_add_u32 s64, s64, s65")
    k.e("s_add_u32 s66, s66, 1")

def loader(k):
    k.e(f"s_sub_u32 s26, s{S_WAVE}, 4")
    k.e("v_lshrrev_b32 v4, 3, v0")
    k.e("v_and_b32 v5, 7, v0")
    k.e("v_lshrrev_b32 v6, 1, v4")
    k.e("v_xor_b32 v7, v5, v6")
    k.e("v_lshlrev_b32 v7, 4, v7")
    k.e(f"s_lshl_b32 s48, s{S_RB}, 6")
    k.e("s_lshl_b32 s49, s26, 4")
    k.e("s_add_u32 s48, s48, s49")
    k.e("v_add_u32 v1, s48, v4")
    k.e("v_lshlrev_b32 v1, 10, v1")
    k.e("v_add_u32 v2, 7168, v1")
    k.e("v_add_u32 v1, v1, v7")
    k.e("v_xor_b32 v7, 64, v7")
    k.e("v_add_u32 v2, v2, v7")
    k.e("v_add_u32 v3, s49, v4")
    k.e("v_mul_u32_u24 v3, 3072, v3")
    k.e("v_and_b32 v6, 2, v4")
    k.e("v_lshlrev_b32 v6, 1, v6")
    k.e("v_xor_b32 v6, v5, v6")
    k.e("v_lshlrev_b32 v6, 4, v6")
    k.e(f"s_lshl_b32 s49, s{S_G}, 7")
    k.e("v_add3_u32 v3, v3, v6, s49")
    k.e("s_lshl_b32 s51, s26, 11")
    k.e("s_mov_b32 s57, 0")
    if OPT['rot'] == 9:
        k.e(f"s_and_b32 s59, s{S_G}, 3")
        k.e("s_sub_u32 s59, 3, s59")
        k.e("s_lshl_b32 s59, s59, 1")
        k.e(f"s_add_u32 s59, s59, s{S_RB}")
        k.e("s_and_b32 s59, s59, 7")
    elif OPT['rot'] == 8:
        k.e(f"s_and_b32 s59, s{S_G}, 3")
        k.e("s_lshl_b32 s59, s59, 1")
        k.e(f"s_add_u32 s59, s59, s{S_RB}")
        k.e("s_and_b32 s59, s59, 7")
    elif OPT['rot'] == 2:
        k.e(f"s_add_u32 s59, s{S_G}, s{S_RB}")
        k.e("s_and_b32 s59, s59, 1")
        k.e("s_lshl_b32 s59, s59, 2")
    elif OPT['rot'] == 4:
        k.e(f"s_add_u32 s59, s{S_G}, s{S_RB}")
        k.e("s_and_b32 s59, s59, 3")
        k.e("s_lshl_b32 s59, s59, 1")
    else:
        k.e("s_mov_b32 s59, 0")
    k.e("s_waitcnt lgkmcnt(0)")
    if k.stamps: k.e("s_mov_b32 s72, s70")
    srd(k, SRD_X, P_BX, 2 << 20)
    srd(k, SRD_W, P_BW, 512*3072)
    issue_stage(k)
    if OPT['tpf']:
        pfsetup(k)
        for j in range(4): pf_issue(k)
    else:
        if OPT['pf0']: pf0(k)
        issue_stage(k)
    srd(k, SRD_WS, P_WS, 256 << 20)
    sk = k.u("nopf")
    k.e("s_cmp_eq_u32 s26, 3")
    k.e(f"s_cbranch_scc0 {sk}")
    k.e("s_getpc_b64 s[62:63]")
    k.lab("L_pc")
    k.e("s_and_b32 s62, s62, 0xffffff00")
    k.e("v_lshlrev_b32 v8, 7, v0")
    k.e(f"s_sub_u32 s62, s62, PF_BACK")
    k.e("s_subb_u32 s63, s63, 0")
    k.e("global_load_dword v9, v8, s[62:63]")
    k.e("v_add_u32 v8, 8192, v8")
    k.e("global_load_dword v10, v8, s[62:63]")
    k.e("v_add_u32 v8, 8192, v8")
    k.e("global_load_dword v11, v8, s[62:63]")
    k.lab(sk)
    attn_setup(k)
    ny = 4 if OPT['tpf'] else (10 if OPT['pf0'] else 8)
    k.e(f"s_waitcnt vmcnt({ny+3})")
    sk = k.u("w7")
    k.e("s_cmp_eq_u32 s26, 3")
    k.e(f"s_cbranch_scc1 {sk}")
    k.e(f"s_waitcnt vmcnt({ny})")
    k.lab(sk)
    k.e("s_barrier")
    if OPT['tpf']: issue_stage(k)
    issue_stage(k)
    sk = k.u("nozero")
    k.e(f"s_cmp_eq_u32 s{S_RB}, 0")
    k.e(f"s_cbranch_scc0 {sk}")
    k.e("s_cmp_lt_u32 s26, 2")
    k.e(f"s_cbranch_scc0 {sk}")
    k.e(f"s_lshl_b32 s48, s{S_G}, 1")
    k.e("s_add_u32 s48, s48, s26")
    k.e("s_lshl_b32 s48, s48, 12")
    k.e(f"s_add_u32 s48, s48, {KVACC}")
    for j in range(4): k.e(f"v_mov_b32 v{12+j}, 0")
    k.e("v_lshlrev_b32 v8, 4, v0")
    for j in range(3): k.e(f"buffer_store_dwordx4 v[12:15], v8, {WS}, s48 offen offset:{j*1024} sc1")
    k.e("s_waitcnt vmcnt(3)")
    k.lab(sk)
    k.stamp(1)
    k.e("s_mov_b32 s48, 0")
    lp = k.u("ldloop")
    k.lab(lp)
    w8 = k.u("w8"); w9 = k.u("w9"); wd = k.u("wd")
    k.e("s_cmp_eq_u32 s48, 7")
    k.e(f"s_cbranch_scc1 {wd}")
    if not OPT['tpf']: k.e(f"s_branch {w8}")
    k.e("s_cmp_eq_u32 s48, 0")
    k.e(f"s_cbranch_scc1 {w8}")
    k.e("s_cmp_eq_u32 s48, 1")
    k.e(f"s_cbranch_scc1 {w9}")
    k.e("s_cmp_eq_u32 s48, 12")
    k.e(f"s_cbranch_scc1 {w9}")
    k.e("s_waitcnt vmcnt(10)")
    k.e(f"s_branch {wd}")
    k.lab(w9)
    k.e("s_waitcnt vmcnt(9)")
    k.e(f"s_branch {wd}")
    k.lab(w8)
    k.e("s_waitcnt vmcnt(8)")
    k.lab(wd)
    k.e("s_barrier")
    if OPT['stagest']:
        k.e("s_memrealtime s[90:91]"); k.e("s_waitcnt lgkmcnt(0)")
        k.e("s_mov_b32 m0, s48")
        k.e("s_nop 0")
        k.e("v_writelane_b32 v252, s90, m0")
    sk = k.u("nonn")
    k.e("s_cmp_eq_u32 s48, 7")
    k.e(f"s_cbranch_scc0 {sk}")
    read_nonce(k, 8, 9)
    k.lab(sk)
    sk = k.u("nosig2")
    k.e(f"s_cmp_eq_u32 s48, {OPT['sigs']}")
    k.e(f"s_cbranch_scc0 {sk}")
    k.e("s_cmp_eq_u32 s26, 0")
    k.e(f"s_cbranch_scc0 {sk}")
    k.e(f"s_lshl_b32 s49, s{S_G}, 12")
    k.e(f"s_lshl_b32 s50, s{S_RB}, 7")
    k.e("s_add_u32 s49, s49, s50")
    k.e(f"s_add_u32 s49, s49, {F1B}")
    store_flag(k, 49)
    k.lab(sk)
    if OPT['late9']:
        sk6 = k.u("skip6")
        k.e("s_cmp_eq_u32 s48, 6")
        k.e(f"s_cbranch_scc1 {sk6}")
    issue_stage(k)
    if OPT['late9']: k.lab(sk6)
    sk = k.u("nosig")
    k.e("s_cmp_eq_u32 s48, 7")
    k.e(f"s_cbranch_scc0 {sk}")
    if OPT['late9']: issue_stage(k)
    k.e("s_waitcnt vmcnt(16)")
    k.e("s_barrier")
    k.lab(sk)

    if OPT['tpf']:
        sk = k.u("nopfi")
        k.e("s_cmp_le_u32 s48, 10")
        k.e(f"s_cbranch_scc0 {sk}")
        pf_issue(k)
        k.lab(sk)
    k.e("s_add_u32 s48, s48, 1")
    k.e("s_cmp_lt_u32 s48, 12")
    k.e(f"s_cbranch_scc1 {lp}")
    k.e(f"s_sub_u32 s48, s{S_RB}, 4")
    k.e("v_add_u32 v8, s48, v0")
    k.e("v_max_i32 v8, 0, v8")
    k.e("v_cmp_gt_u32 vcc, 4, v0")
    k.e(f"s_lshl_b32 s49, s{S_G}, 12")
    k.e(f"s_add_u32 s49, s49, {F1B}")
    k.e("v_cndmask_b32 v8, 0, v8, vcc")
    k.e("v_lshlrev_b32 v8, 7, v8")
    k.e("v_add_u32 v8, s49, v8")
    k.e("s_cmp_eq_u32 s26, 0")
    k.e("s_cselect_b32 s62, 31, 15")
    k.e("s_mov_b32 s63, 0")
    k.e("s_waitcnt vmcnt(8)");  k.e("s_barrier")
    k.e("s_mov_b64 exec, s[62:63]")
    k.e(f"buffer_load_dword v9, v8, {WS}, 0 offen sc1")
    k.e("s_mov_b64 exec, -1")
    issue_stage(k)
    k.e("s_waitcnt vmcnt(9)");  k.e("s_barrier")
    lp = k.u("f1b_lp"); ok = k.u("f1b_ok")
    k.e("s_mov_b64 exec, s[62:63]")
    k.e("s_waitcnt vmcnt(8)")
    k.e(f"v_cmp_ne_u32 vcc, s{S_NONCE}, v9")
    k.e("s_nop 1")
    k.e(f"s_cbranch_vccz {ok}")
    poll_flags(k, 8, 9, "f1b")
    k.lab(ok)
    k.e("s_mov_b64 exec, -1")
    k.stamp(5)
    if OPT['remdma']:
        sk = k.u("norem"); jn = k.u("remj")
        k.e(f"s_cmp_eq_u32 s{S_RB}, 0")
        k.e(f"s_cbranch_scc1 {sk}")
        k.e("v_lshlrev_b32 v8, 4, v0")
        k.e(f"s_lshl_b32 s48, s{S_G}, 2")
        k.e("s_add_u32 s48, s48, s26")
        k.e("s_lshl_b32 s48, s48, 6")
        k.e(f"s_lshl_b32 s49, s{S_RB}, 1")
        k.e("s_sub_u32 s49, s49, 8")
        k.e("s_lshl_b32 s52, s26, 13")
        def rem(base_g, base_l):
            for j in range(8):
                k.e(f"s_add_i32 s50, s49, {j}")
                k.e("s_max_i32 s50, s50, 0")
                k.e("s_add_u32 s50, s50, s48")
                k.e("s_lshl_b32 s50, s50, 10")
                if base_g: k.e(f"s_add_u32 s50, s50, {base_g}")
                k.e(f"s_add_u32 s51, s52, {base_l + j*1024}")
                k.e("s_mov_b32 m0, s51")
                k.e("s_nop 0")
                k.e(f"buffer_load_dwordx4 v8, {WS}, s50 offen sc1 lds")
        rem(KB_G, RK_L)
        k.e("s_waitcnt vmcnt(8)");  k.e("s_barrier")
        rem(VB_G, RV_L)
        k.e("s_barrier")
        k.e("s_waitcnt vmcnt(0)")
        k.e(f"s_branch {jn}")
        k.lab(sk)
        k.e("s_waitcnt vmcnt(0)");  k.e("s_barrier")
        k.e("s_barrier")
        k.lab(jn)
    else:
        sk = k.u("norem"); jn = k.u("remj")
        k.e(f"s_cmp_eq_u32 s{S_RB}, 0")
        k.e(f"s_cbranch_scc1 {sk}")
        k.e("v_lshlrev_b32 v8, 4, v0")
        k.e(f"s_lshl_b32 s48, s{S_G}, 2")
        k.e("s_add_u32 s48, s48, s26")
        k.e("s_lshl_b32 s48, s48, 6")
        k.e(f"s_lshl_b32 s49, s{S_RB}, 1")
        k.e("s_sub_u32 s49, s49, 8")
        for j in range(8):
            k.e(f"s_add_i32 s50, s49, {j}")
            k.e("s_max_i32 s50, s50, 0")
            k.e("s_add_u32 s50, s50, s48")
            k.e("s_lshl_b32 s50, s50, 10")
            k.e(f"s_add_u32 s51, s50, {VB_G}")
            k.e(f"buffer_load_dwordx4 {vr(16+4*j,4)}, v8, {WS}, s50 offen sc1")
            k.e(f"buffer_load_dwordx4 {vr(48+4*j,4)}, v8, {WS}, s51 offen sc1")
        k.e("s_waitcnt vmcnt(16)");  k.e("s_barrier")
        k.e("s_lshl_b32 s48, s26, 13")
        k.e("v_add_u32 v9, s48, v8")
        for j in range(8):
            k.e(f"s_waitcnt vmcnt({14-2*j})")
            k.e(f"ds_write_b128 v9, {vr(16+4*j,4)} offset:{RK_L + j*1024}")
            k.e(f"ds_write_b128 v9, {vr(48+4*j,4)} offset:{RV_L + j*1024}")
            if j == 3: k.e("s_barrier")
        k.e(f"s_branch {jn}")
        k.lab(sk)
        k.e("s_waitcnt vmcnt(0)");  k.e("s_barrier")
        k.e("s_barrier")
        k.lab(jn)
    k.e("s_waitcnt lgkmcnt(0)")
    k.stamp(6)
    k.e("s_barrier")
    k.stamp(4)

AQ_, AKF, AS, AMD, AMF, ACN, AP, AVB, AO = 4, 8, [44, 60, 76], 216, 232, 124, 140, [148, 156], 176
AM, AT = 192, 193
AK0, AK7, AK8, AV0, AV7, AV8 = 196, 197, 198, 199, 200, 201
KVR = 208
VPOLL, VPA = 248, 249

def v_reads(k, buf, vaddr, off):
    k.e("s_mov_b64 exec, s[64:65]")
    k.e(f"ds_read_b128 {vr(AVB[buf],4)}, v{vaddr} offset:{off}")
    k.e(f"ds_read_b128 {vr(AVB[buf]+4,4)}, v{vaddr} offset:{off+512}")
    k.e("s_mov_b64 exec, -1")

def sig_f1a(k):
    sk = k.u("nosigA")
    k.e(f"s_cmp_lt_u32 s{S_WAVE}, 2")
    k.e(f"s_cbranch_scc0 {sk}")
    k.e("s_waitcnt vmcnt(0)")
    k.e(f"s_lshl_b32 s52, s{S_G}, 13")
    k.e(f"s_lshl_b32 s53, s{S_RB}, 1")
    k.e(f"s_add_u32 s53, s53, s{S_WAVE}")
    k.e("s_lshl_b32 s53, s53, 7")
    k.e("s_add_u32 s52, s52, s53")
    k.e(f"s_add_u32 s52, s52, {F1A}")
    store_flag(k, 52)
    k.lab(sk)

def attn_setup(k):
    k.e(f"s_and_b32 s86, s{S_WAVE}, 1")
    k.e(f"s_lshr_b32 s87, s{S_WAVE}, 1")
    k.e(f"v_lshlrev_b32 v{AT}, 4, v0")
    k.e("s_lshl_b32 s88, s86, 10")
    k.e("s_lshl_b32 s89, s87, 13")
    k.e("s_lshl_b32 s92, s87, 11")
    k.e("s_add_u32 s93, s89, s88")
    k.e(f"v_add_u32 v{AK0}, s93, v{AT}")
    k.e(f"s_add_u32 s94, s89, {7*1024}")
    k.e(f"s_add_u32 s100, s92, {OK_L}")
    k.e("s_cmp_eq_u32 s86, 0")
    k.e("s_cselect_b32 s94, s94, s100")
    k.e(f"v_add_u32 v{AK7}, s94, v{AT}")
    k.e("s_add_u32 s100, s100, s88")
    k.e(f"v_add_u32 v{AK8}, s100, v{AT}")
    k.e("v_lshrrev_b32 v202, 5, v0")
    k.e("v_lshlrev_b32 v202, 8, v202")
    k.e("v_and_b32 v203, 15, v0")
    k.e("v_lshlrev_b32 v203, 4, v203")
    k.e("v_add_u32 v202, v202, v203")
    k.e(f"s_add_u32 s94, s93, {RV_L}")
    k.e(f"v_add_u32 v{AV0}, s94, v202")
    k.e(f"s_add_u32 s94, s89, {RV_L + 7*1024}")
    k.e(f"s_add_u32 s100, s92, {OV_L}")
    k.e("s_cmp_eq_u32 s86, 0")
    k.e("s_cselect_b32 s94, s94, s100")
    k.e(f"v_add_u32 v{AV7}, s94, v202")
    k.e("s_add_u32 s100, s100, s88")
    k.e(f"v_add_u32 v{AV8}, s100, v202")
    k.e("v_and_b32 v202, 31, v0")
    k.e("v_lshrrev_b32 v203, 5, v0")
    k.e("v_lshlrev_b32 v203, 2, v203")
    k.e("v_sub_u32 v202, v202, v203")
    k.e("v_cvt_f32_i32 v202, v202")
    k.e(f"v_mov_b32 v203, {lit(BIG)}")
    for i in range(16):
        ci = 8*(i >> 2) + (i & 3)
        k.e(f"v_fmaak_f32 v{AMD+i}, v202, v203, {lit((0.5-ci)*BIG)}")
    for i in range(16): k.e(f"v_min_f32 v{AMF+i}, -v{AMD+i}, 0")
    for i in range(16): k.e(f"v_min_f32 v{AMD+i}, 0, v{AMD+i}")
    k.e(f"v_mov_b32 v{AM}, 0xff7fffff")
    k.e(f"s_lshl_b32 s87, s{S_G}, 13")
    k.e(f"s_add_u32 s87, s87, {F1A}")
    k.e(f"v_lshlrev_b32 v{VPA}, 7, v0")
    k.e(f"v_add_u32 v{VPA}, s87, v{VPA}")

def wo_setup(k):
    k.e("s_and_b32 s50, s2, 7")
    k.e("s_lshr_b32 s51, s2, 3")
    k.e("s_lshr_b32 s52, s50, 2")
    k.e("s_lshr_b32 s53, s51, 2")
    k.e("s_cmp_eq_u32 s52, 0")
    k.e(f"s_cselect_b32 s{SRD_WO}, s{P_AWO}, s{P_BWO}")
    k.e(f"s_cselect_b32 s{SRD_WO+1}, s{P_AWO+1}, s{P_BWO+1}")
    k.e(f"s_mov_b32 s{SRD_WO+2}, 0x{512*1024:x}")
    k.e(f"s_mov_b32 s{SRD_WO+3}, 0x20000")
    k.e("v_lshrrev_b32 v204, 3, v0")
    k.e("v_and_b32 v205, 7, v0")
    k.e("v_and_b32 v206, 2, v204")
    k.e("v_lshlrev_b32 v206, 1, v206")
    k.e("v_xor_b32 v206, v205, v206")
    k.e("v_lshlrev_b32 v206, 4, v206")
    k.e(f"s_sub_u32 s54, s{S_WAVE}, 4")
    k.e("s_lshl_b32 s50, s54, 7")
    k.e("v_add_u32 v204, s50, v204")
    k.e("v_lshlrev_b32 v204, 10, v204")
    k.e("s_lshl_b32 s50, s53, 7")
    k.e("v_add3_u32 v205, v204, v206, s50")
    k.e("s_lshl_b32 s96, s54, 14")
    k.e(f"s_add_u32 s96, s96, {WO_L}")
    k.e("s_mov_b32 s97, 0")

def wo_pair(k):
    k.e("s_mov_b32 m0, s96")
    k.e("s_add_u32 s98, s97, 7168")
    k.e(f"buffer_load_dwordx4 v205, {sr(SRD_WO,4)}, s97 offen lds")
    k.e(f"buffer_load_dwordx4 v205, {sr(SRD_WO,4)}, s98 offen offset:1024 lds")
    k.e("s_add_u32 s96, s96, 2048")
    k.e("s_add_u32 s97, s97, 16384")

KVL = 0
def kv_loads(k):
    k.e(f"s_lshl_b32 s50, s{S_G}, 13")
    k.e(f"s_add_u32 s50, s50, {KVACC}")
    k.e("s_add_u32 s51, s50, 4096")
    k.e(f"buffer_load_dwordx4 {vr(KVR,4)}, v1, {WS}, s50 offen sc1")
    k.e(f"buffer_load_dwordx4 {vr(KVR+4,4)}, v1, {WS}, s50 offen offset:1024 sc1")
    k.e(f"buffer_load_dwordx4 {vr(164,4)}, v1, {WS}, s51 offen sc1")
    k.e(f"buffer_load_dwordx4 {vr(168,4)}, v1, {WS}, s51 offen offset:1024 sc1")
    k.e("v_lshrrev_b32 v202, 5, v0")
    k.e("v_lshlrev_b32 v202, 12, v202")
    k.e("v_and_b32 v203, 31, v0")
    k.e("v_lshl_add_u32 v202, v203, 2, v202")
    k.e(f"buffer_load_dword v172, v202, {WS}, s50 offen offset:2048 sc1")

def attention(k):
    k.c("attention: i = w&1 (s26), hh = w>>1 (s27), qt = s48, s99 = kv loads issued flag")
    k.e(f"s_and_b32 s26, s{S_WAVE}, 1")
    k.e(f"s_lshr_b32 s27, s{S_WAVE}, 1")
    k.e(f"s_lshl_b32 s48, s{S_RB}, 1")
    k.e("s_add_u32 s48, s48, s26")
    k.e("v_lshlrev_b32 v1, 4, v0")
    k.e("s_lshl_b32 s49, s27, 11")
    k.e("s_lshl_b32 s50, s26, 10")
    k.e("s_add_u32 s49, s49, s50")
    k.e(f"s_add_u32 s49, s49, {Q_L}")
    k.e("v_add_u32 v2, s49, v1")
    k.e(f"ds_read_b128 {vr(AQ_,4)}, v2")
    def kaddr(p): return (AK0, RK_L + p*1024) if p <= 6 else ((AK7, 0) if p == 7 else (AK8, 0))
    def vaddr(p): return (AV0, p*1024) if p <= 6 else ((AV7, 0) if p == 7 else (AV8, 0))
    for p in range(9):
        a, o = kaddr(p); k.e(f"ds_read_b128 {vr(AKF+4*p,4)}, v{a} offset:{o}")
    k.e("s_mov_b32 s64, 0xffff")
    k.e("s_mov_b32 s65, 0xffff")
    k.e("s_mov_b32 s99, 0")
    for b in range(2):
        for j in range(8): k.e(f"v_mov_b32 v{AVB[b]+j}, 0x3f803f80")
    sk = k.u("nowo")
    k.e(f"s_cmp_ge_u32 s{S_WAVE}, 4")
    k.e(f"s_cbranch_scc0 {sk}")
    wo_setup(k)
    for j in range(8): wo_pair(k)
    k.lab(sk)
    Q = vr(AQ_, 4)
    def qk(dst, p, c): k.e(f"{MF} {vr(dst,16)}, {vr(AKF+4*p,4)}, {Q}, {c}")
    def c1(p): return vr(AMF,16) if p == 0 else (vr(AMD,16) if p == 8 else "0")
    def c2(p): return vr(AMF,16) if p == 0 else (vr(AMD,16) if p == 8 else vr(ACN,16))
    k.e("s_sub_i32 s95, 8, s48")
    k.e("s_max_i32 s95, s95, 0")
    P1 = [k.u(f"p1_{p}") for p in range(9)]
    P2 = [k.u(f"p2_{p}") for p in range(9)]
    E1 = [k.u(f"e1_{p}") for p in range(9)]
    E2 = [k.u(f"e2_{p}") for p in range(9)]
    k.e("s_waitcnt lgkmcnt(0)")
    for p in range(1, 9):
        k.e(f"s_cmp_eq_u32 s95, {p}")
        k.e(f"s_cbranch_scc1 {E1[p]}")
    qk(AS[0], 0, c1(0)); qk(AS[1], 1, c1(1)); qk(AS[2], 2, c1(2))
    k.e("s_nop 9")
    for p in range(9):
        k.lab(P1[p])
        s_ = AS[p % 3]
        for j in range(8): k.e(f"v_max3_f32 v{AM}, v{s_+2*j}, v{s_+2*j+1}, v{AM}")
        if p + 3 <= 8: qk(s_, p + 3, c1(p + 3))
    k.e(f"v_mov_b32 v{AT}, v{AM}")
    k.e("s_nop 1")
    k.e(f"v_permlane32_swap_b32 v{AM}, v{AT}")
    k.e(f"v_max_f32 v{AM}, v{AM}, v{AT}")
    k.e(f"v_sub_f32 v{AM}, 0, v{AM}")
    for i in range(16): k.e(f"v_mov_b32 v{ACN+i}, v{AM}")
    for i in range(16): k.e(f"v_add_f32 v{AMD+i}, v{AMD+i}, v{AM}")
    k.stamp(8)
    k.e("s_cmp_eq_u32 s95, 0")
    sh = k.u("short2")
    k.e(f"s_cbranch_scc0 {sh}")
    for i in range(16): k.e(f"v_add_f32 v{AMF+i}, v{AMF+i}, v{AM}")
    v_reads(k, 0, *vaddr(0))
    k.e("s_nop 0")
    qk(AS[0], 0, c2(0))
    k.e("s_nop 6")
    for p in range(9):
        k.lab(P2[p])
        cur = AS[p % 2]; nxt = AS[(p + 1) % 2]
        if p < 8:
            qk(nxt, p + 1, c2(p + 1))
            v_reads(k, (p + 1) % 2, *vaddr(p + 1))
        hooks = k.u("nohook")
        if p in (3, 5, 8):
            k.e("s_cmp_eq_u32 s95, 0")
            k.e(f"s_cbranch_scc0 {hooks}")
            if p == 3: sig_f1a(k)
            if p in (5, 8):
                k.e(f"s_cmp_eq_u32 s{S_WAVE}, 4")
                k.e(f"s_cbranch_scc0 {hooks}")
            if p == 5: k.e(f"buffer_load_dword v{VPOLL}, v{VPA}, {WS}, 0 offen sc1")
            if p == 8:
                k.stamp(14)
                k.e("s_waitcnt vmcnt(0)")
                k.stamp(15)
                k.e(f"v_cmp_ne_u32 vcc, s{S_NONCE}, v{VPOLL}")
                k.e("s_nop 1")
                k.e(f"s_cbranch_vccnz {hooks}")
                kv_loads(k)
                k.e("s_mov_b32 s99, 1")
            k.lab(hooks)
        for j in range(16): k.e(f"v_exp_f32 v{cur+j}, v{cur+j}")
        for j in range(8): k.e(f"v_cvt_pk_bf16_f32 v{AP+j}, v{cur+2*j}, v{cur+2*j+1}")
        k.e(f"s_waitcnt lgkmcnt({2 if p < 8 else 0})")
        vb = AVB[p % 2]
        k.e(f"{MF} {vr(AO,16)}, {vr(vb,4)}, {vr(AP,4)}, {'0' if p == 0 else vr(AO,16)}")
        k.e("s_nop 0")
        k.e(f"{MF} {vr(AO,16)}, {vr(vb+4,4)}, {vr(AP+4,4)}, {vr(AO,16)}")
    done = k.u("attdone")
    k.e(f"s_branch {done}")
    for p in range(1, 9):
        k.lab(E1[p])
        for q in range(p, min(p + 3, 9)): qk(AS[q % 3], q, c1(q))
        k.e("s_nop 10")
        k.e(f"s_branch {P1[p]}")
    k.lab(sh)
    for i in range(16): k.e(f"v_mov_b32 v{AO+i}, 0")
    sig_f1a(k)
    sk = k.u("shpoll")
    k.e(f"s_cmp_eq_u32 s{S_WAVE}, 4")
    k.e(f"s_cbranch_scc0 {sk}")
    k.e(f"buffer_load_dword v{VPOLL}, v{VPA}, {WS}, 0 offen sc1")
    k.lab(sk)
    for p in range(1, 9):
        k.e(f"s_cmp_eq_u32 s95, {p}")
        k.e(f"s_cbranch_scc1 {E2[p]}")
    k.e(f"s_branch {E2[8]}")
    for p in range(1, 9):
        k.lab(E2[p])
        qk(AS[p % 2], p, c2(p))
        v_reads(k, p % 2, *vaddr(p))
        k.e("s_nop 6")
        k.e(f"s_branch {P2[p]}")
    k.lab(done)

def apart(k):
    sk = k.u("kvdone")
    k.e(f"s_cmp_eq_u32 s{S_WAVE}, 4")
    k.e(f"s_cbranch_scc0 {sk}")
    k.e("s_cmp_eq_u32 s99, 1")
    k.e(f"s_cbranch_scc1 {sk}")
    poll_flags(k, VPA, VPOLL, "f1a", first_issued=True)
    kv_loads(k)
    k.lab(sk)
    k.e("s_nop 8")
    k.e(f"v_rcp_f32 v{AT}, v{AO+8}")
    k.e("s_nop 0")
    for j in range(8): k.e(f"v_mul_f32 v{AO+j}, v{AO+j}, v{AT}")
    cvt8(k, AP, AO)
    k.e(f"s_lshl_b32 s49, s{S_G}, 2")
    k.e("s_add_u32 s49, s49, s27")
    k.e("s_lshl_b32 s50, s48, 5")
    k.e("s_add_u32 s49, s49, s50")
    k.e("s_lshl_b32 s49, s49, 10")
    k.e(f"s_add_u32 s50, s49, {O_G + (2<<20)}")
    k.e(f"buffer_store_dwordx4 {vr(AP,4)}, v1, {WS}, s50 offen sc1")
    k.e("s_barrier")
    sk = k.u("nokvw")
    k.e(f"s_cmp_eq_u32 s{S_WAVE}, 4")
    k.e(f"s_cbranch_scc0 {sk}")
    k.e("s_waitcnt vmcnt(1)")
    k.e(f"ds_write_b128 v1, {vr(KVR,4)} offset:{KVL}")
    k.e(f"ds_write_b128 v1, {vr(KVR+4,4)} offset:{KVL+1024}")
    k.e(f"ds_write_b128 v1, {vr(164,4)} offset:{KVL+4096}")
    k.e(f"ds_write_b128 v1, {vr(168,4)} offset:{KVL+4096+1024}")
    k.e("v_lshrrev_b32 v202, 5, v0")
    k.e("v_lshlrev_b32 v202, 12, v202")
    k.e("v_and_b32 v203, 31, v0")
    k.e("v_lshl_add_u32 v202, v203, 2, v202")
    k.e(f"ds_write_b32 v202, v172 offset:{KVL+2048}")
    k.e("s_waitcnt lgkmcnt(0)")
    k.lab(sk)
    k.e("s_lshr_b32 s51, s27, 1")
    k.e("s_lshl_b32 s51, s51, 12")
    k.e("s_and_b32 s52, s27, 1")
    k.e("s_lshl_b32 s52, s52, 6")
    k.e("s_add_u32 s51, s51, s52")
    k.e("v_lshrrev_b32 v203, 5, v0")
    k.e("v_and_b32 v202, 15, v0")
    k.e("v_lshl_add_u32 v202, v203, 5, v202")
    k.e("v_lshlrev_b32 v202, 2, v202")
    k.e("v_add_u32 v202, s51, v202")
    k.e("v_lshlrev_b32 v203, 4, v203")
    k.e("v_add_u32 v203, s51, v203")
    k.e("s_lshl_b32 s51, s27, 11")
    k.e("s_lshl_b32 s50, s26, 10")
    k.e("s_add_u32 s51, s51, s50")
    k.e(f"s_add_u32 s51, s51, {PQ_L}")
    k.e("v_add_u32 v2, s51, v1")
    k.e(f"ds_read_b128 {vr(AQ_,4)}, v2")
    k.e("s_barrier")
    k.e("s_mov_b64 exec, s[64:65]")
    for t in range(8): k.e(f"ds_read_b32 v{KVR+t}, v202 offset:{KVL + t*256}")
    k.e("s_not_b64 exec, s[64:65]")
    k.e(f"ds_read_b128 {vr(KVR,4)}, v203 offset:{KVL+2048}")
    k.e(f"ds_read_b128 {vr(KVR+4,4)}, v203 offset:{KVL+2048+32}")
    k.e("s_mov_b64 exec, -1")
    k.e("s_waitcnt lgkmcnt(0)")
    cvt8(k, 8, KVR)
    k.e("s_nop 1")
    k.e(f"{MF} {vr(44,16)}, {vr(8,4)}, {vr(AQ_,4)}, 0")
    k.e(f"s_mov_b32 s62, {lit(1e-6)}")
    k.e("s_nop 10")
    k.e("v_add_f32 v12, s62, v52")
    k.e("v_rcp_f32 v12, v12")
    k.e("s_nop 0")
    for j in range(8): k.e(f"v_mul_f32 v{44+j}, v{44+j}, v12")
    cvt8(k, 16, 44)
    k.e(f"s_add_u32 s50, s49, {O_G}")
    k.e(f"buffer_store_dwordx4 {vr(16,4)}, v1, {WS}, s50 offen sc1")

def p3(k):
    k.c("P3: out tile 128x64")
    k.e("s_and_b32 s48, s2, 7")
    k.e("s_lshr_b32 s49, s2, 3")
    k.e("s_lshr_b32 s66, s48, 2")
    k.e("s_and_b32 s67, s48, 3")
    k.e("s_lshl_b32 s67, s67, 2")
    k.e("s_and_b32 s50, s49, 3")
    k.e("s_add_u32 s67, s67, s50")
    k.e("s_lshr_b32 s68, s49, 2")
    k.e("s_lshl_b32 s48, s67, 11")
    k.e(f"s_add_u32 s48, s48, {F2}")
    k.e("v_and_b32 v8, 15, v0")
    k.e("v_lshlrev_b32 v8, 7, v8")
    k.e("v_add_u32 v8, s48, v8")
    OF, ACC3, WF = 8+4, 144, [176, 184]
    VA0, VA1 = 192, 193
    k.e("v_bfe_u32 v2, v0, 2, 2")
    k.e("v_and_b32 v3, 3, v0")
    k.e("v_bfe_u32 v4, v0, 4, 1")
    k.e("v_lshrrev_b32 v5, 5, v0")
    k.e("v_lshlrev_b32 v5, 2, v5")
    k.e("v_add_u32 v5, v5, v2")
    k.e("v_lshlrev_b32 v5, 7, v5")
    k.e("v_and_b32 v6, 1, v3")
    k.e("v_lshlrev_b32 v6, 1, v6")
    k.e("v_add_u32 v6, v6, v4")
    k.e("v_and_b32 v7, 2, v2")
    k.e("v_lshlrev_b32 v7, 1, v7")
    k.e("v_xor_b32 v6, v6, v7")
    k.e("v_lshlrev_b32 v6, 4, v6")
    k.e("v_lshrrev_b32 v3, 1, v3")
    k.e("v_lshlrev_b32 v3, 3, v3")
    k.e("v_add3_u32 v5, v5, v6, v3")
    k.e("s_and_b32 s51, s68, 3")
    k.e("s_lshl_b32 s52, s51, 14")
    k.e(f"s_add_u32 s52, s52, {WO_L}")
    k.e(f"v_add_u32 v{VA0}, s52, v5")
    k.e(f"v_xor_b32 v{VA1}, 64, v{VA0}")
    k.e("s_lshl_b32 s48, s67, 2")
    k.e(f"s_add_u32 s48, s48, s{S_WAVE}")
    k.e("s_lshl_b32 s49, s48, 15")
    k.e("s_lshl_b32 s50, s66, 21")
    k.e("s_add_u32 s49, s49, s50")
    k.e(f"s_add_u32 s49, s49, {O_G}")
    k.e("v_lshlrev_b32 v1, 4, v0")
    sk = k.u("nof2poll")
    k.e(f"s_cmp_eq_u32 s{S_WAVE}, 0")
    k.e(f"s_cbranch_scc0 {sk}")
    k.e("s_mov_b64 exec, 0xffff")
    poll_flags(k, 8, 9, "f2")
    k.e("s_mov_b64 exec, -1")
    k.lab(sk)
    k.e("s_barrier")
    k.e(f"s_cmp_ge_u32 s{S_WAVE}, 4")
    k.e("s_cbranch_scc1 L_fin")
    k.stamp(12)
    for blk in range(4):
        k.e(f"s_add_u32 s52, s51, {blk}")
        k.e("s_and_b32 s52, s52, 3")
        k.e("s_lshl_b32 s52, s52, 13")
        k.e("s_add_u32 s52, s52, s49")
        k.e("s_add_u32 s53, s52, 4096")
        for j in range(8):
            hd = blk*8 + j
            k.e(f"buffer_load_dwordx4 {vr(OF+4*hd,4)}, v1, {WS}, {'s52' if j < 4 else 's53'} offen offset:{(j%4)*1024} sc1")
    def wreads(buf, j):
        for b in range(2):
            for s2 in range(2):
                k.e(f"ds_read_b64_tr_b16 {vr(WF[buf]+4*b+2*s2,2)}, v{VA0+b} offset:{j*2048 + s2*1024}")
    def advance(blk):
        k.e(f"s_add_u32 s52, s51, {blk}")
        k.e("s_and_b32 s52, s52, 3")
        k.e("s_cmp_eq_u32 s52, 0")
        k.e(f"s_cselect_b32 s52, 0x{(-3*16384) & 0xffffffff:x}, s69")
        k.e(f"v_add_u32 v{VA0}, s52, v{VA0}")
        k.e(f"v_add_u32 v{VA1}, s52, v{VA1}")
    k.e("s_mov_b32 s69, 16384")
    wreads(0, 0)
    for hd in range(32):
        if hd < 31:
            nj = (hd + 1) % 8
            if nj == 0: advance((hd + 1)//8)
            wreads((hd + 1) % 2, nj)
        k.e(f"s_waitcnt vmcnt({31-hd}) lgkmcnt({4 if hd < 31 else 0})")
        if OPT.get('p3st') and hd in (0, 8, 31):
            k.stamp({0: 5, 8: 6, 31: 8}[hd])
        for b in range(2):
            k.e(f"{MF} {vr(ACC3+16*b,16)}, {vr(WF[hd%2]+4*b,4)}, {vr(OF+4*hd,4)}, {'0' if hd == 0 else vr(ACC3+16*b,16)}")
    srd(k, SRD_T, P_OUT, 4 << 20)
    k.e("v_and_b32 v2, 31, v0")
    k.e("s_lshl_b32 s49, s48, 5")
    k.e("v_add_u32 v2, s49, v2")
    k.e("v_lshlrev_b32 v2, 11, v2")
    k.e("v_lshrrev_b32 v3, 5, v0")
    k.e("v_lshlrev_b32 v3, 5, v3")
    k.e("s_lshl_b32 s49, s66, 10")
    k.e("s_lshl_b32 s50, s68, 7")
    k.e("s_add_u32 s49, s49, s50")
    k.e("v_add3_u32 v2, v2, v3, s49")
    k.e("s_nop 3")
    for b in range(2):
        for j in range(8): k.e(f"v_cvt_pk_bf16_f32 v{12+8*b+j}, v{ACC3+16*b+2*j}, v{ACC3+16*b+2*j+1}")
    for b in range(2):
        fl = {0: "", 1: " sc1", 2: " nt", 3: " sc0 sc1"}[OPT['outf']]
        k.e(f"buffer_store_dwordx4 {vr(12+8*b,4)}, v2, {sr(SRD_T,4)}, 0 offen offset:{64*b}{fl}")
        k.e(f"buffer_store_dwordx4 {vr(16+8*b,4)}, v2, {sr(SRD_T,4)}, 0 offen offset:{64*b+16}{fl}")

HDR = """; Kernarg layout for this problem (72 bytes, ptrs only, base s[0:1]):
;   offset   0: d_in[0] A_x  shape=(1, 2048, 512) dtype=bfloat16
;   offset   8: d_in[1] A_wqkv  shape=(512, 1536) dtype=bfloat16
;   offset  16: d_in[2] A_wo  shape=(512, 512) dtype=bfloat16
;   offset  24: d_in[3] B_x  shape=(1, 2048, 512) dtype=bfloat16
;   offset  32: d_in[4] B_wqkv  shape=(512, 1536) dtype=bfloat16
;   offset  40: d_in[5] B_wo  shape=(512, 512) dtype=bfloat16
;   offset  48: d_out     shape=(1, 2048, 1024) dtype=bfloat16
;   offset  56: d_debug   256 bytes
;   offset  64: d_ws      268435456 bytes workspace
; @launch grid=(256,1,1) block=(512,1,1) lds=163840
.amdgcn_target "amdgcn-amd-amdhsa--gfx950"
.text
.globl KNAME
.p2align 8
.type KNAME,@function
""".replace("KNAME", KNAME)

TAIL = """.section .rodata,"a"
.p2align 6
.amdhsa_kernel KNAME
  .amdhsa_next_free_vgpr 256
  .amdhsa_next_free_sgpr 102
  .amdhsa_accum_offset 256
  .amdhsa_group_segment_fixed_size 0
  .amdhsa_kernarg_size 72
  .amdhsa_user_sgpr_count 2
  .amdhsa_user_sgpr_kernarg_segment_ptr 1
  .amdhsa_system_sgpr_workgroup_id_x 1
.end_amdhsa_kernel
""".replace("KNAME", KNAME)

def build(stamps=False):
    k = gen(stamps)
    body = "\n".join(k.L)
    body = body.replace("PF_BACK", f"((L_pc - {KNAME}) & 0xffffff00)")
    pad = "\n    .fill 2048, 4, 0xbf800000\n"
    hdr, tail = HDR, TAIL
    if OPT['extra']:
        hdr = hdr.replace("; @launch grid=(256,1,1) block=(512,1,1) lds=163840", f"; @launch kernel={KNAME} grid=(256,1,1) block=(512,1,1) lds=163840\n; @launch kernel=nop_kernel grid=(1,1,1) block=(64,1,1) lds=0")
        pad += ".globl nop_kernel\n.p2align 8\n.type nop_kernel,@function\nnop_kernel:\n    s_endpgm\n"
        tail += """.p2align 6
.amdhsa_kernel nop_kernel
  .amdhsa_next_free_vgpr 8
  .amdhsa_next_free_sgpr 16
  .amdhsa_accum_offset 8
  .amdhsa_group_segment_fixed_size 0
  .amdhsa_kernarg_size 72
  .amdhsa_user_sgpr_count 2
  .amdhsa_user_sgpr_kernarg_segment_ptr 1
  .amdhsa_system_sgpr_workgroup_id_x 1
.end_amdhsa_kernel
"""
    return hdr + body + pad + "\n" + tail

if __name__ == "__main__":
    out = sys.argv[1] if len(sys.argv) > 1 else "out.s"
    stamps = "stamps" in sys.argv[2:]
    for a in sys.argv[2:]:
        if "=" in a:
            kk, vv = a.split("="); OPT[kk] = int(vv)
    txt = build(stamps)
    open(out, "w").write(txt)
    import hz
    pr = hz.check(txt)
    import subprocess
    r = subprocess.run(["clang", "-x", "assembler", "-target", "amdgcn-amd-amdhsa", "-mcpu=gfx950", "-c", out, "-o", "_chk.o"], capture_output=True, text=True)
    print("hazards:", len(pr), "lines:", txt.count("\n"), "asm:", "ok" if r.returncode == 0 else r.stderr)
```

```python
import sys, math, struct

KNAME = "concat_heads__linear_attn_block__sliding_block__prompt_kernel"

KB_G   = 0
VB_G   = 2 << 20
O_G    = 4 << 20
KVACC  = 8 << 20
FL     = (8 << 20) + (64 << 10)
F1B    = FL
F1A    = FL + (32 << 10)
F2     = FL + (96 << 10)
STAMP  = 9 << 20
SLOT   = 32768
OK_L, OV_L, Q_L, PQ_L = 131072, 139264, 147456, 155648
NONCE_L = PQ_L
RK_L, RV_L, WO_L = 0, 32768, 65536
CS = 0.25 * math.log2(math.e)
LOG2E = math.log2(math.e)
BIG = 1.0e28
SPIN_MAX = 100000
OPT = dict(rot=8, pfB=0, pfA=1, dbgstamps=0, stagest=0, pfs=1, tpf=0, p3st=0, map=0, outf=0, extra=0, sigs=9, pf0=0, late9=0, remdma=1, m16=0, npre=16, pf4=0, pkphi=1, prio=0, kvprio=0, pollp=5, sigp=3)

def f2u(x): return struct.unpack('<I', struct.pack('<f', x))[0]
def lit(x): return "0x%08x" % f2u(x)

class K:
    def __init__(self, stamps=False):
        self.L = []; self.stamps = stamps; self.uid = 0; self.inp1 = False
    def e(self, s):
        if self.inp1 and OPT['m16'] and s.startswith("v_mfma_f32_32x32x16_bf16"):
            import re
            m = re.match(r"v_mfma_f32_32x32x16_bf16 v\[(\d+):\d+\], (v\[\d+:\d+\]), (v\[\d+:\d+\]), (.*)", s)
            d = int(m.group(1)); c = m.group(4)
            for h in range(2):
                cc = "0" if c == "0" else f"v[{d+4*h}:{d+4*h+3}]"
                self.L.append(f"    v_mfma_f32_16x16x32_bf16 v[{d+4*h}:{d+4*h+3}], {m.group(2)}, {m.group(3)}, {cc}")
            return
        self.L.append("    " + s)
    def c(self, s): self.L.append("    ; " + s)
    def lab(self, s): self.L.append(s + ":")
    def u(self, p):
        self.uid += 1; return f"L_{p}_{self.uid}"
    def stamp(self, k):
        if not self.stamps: return
        self.e("s_memrealtime s[70:71]")
        self.e("s_waitcnt lgkmcnt(0)")
        self.e(f"s_mov_b32 s{72+k}, s70")

def vr(a, n): return f"v[{a}:{a+n-1}]"
def sr(a, n): return f"s[{a}:{a+n-1}]"
MF = "v_mfma_f32_32x32x16_bf16"

S_WAVE, S_RB, S_G, S_NONCE = 22, 23, 24, 25
SRD_WS, SRD_X, SRD_W, SRD_T, SRD_WO = 28, 32, 36, 40, 44
P_AX, P_AW, P_AWO, P_BX, P_BW, P_BWO, P_OUT, P_DBG, P_WS = 4, 6, 8, 10, 12, 14, 16, 18, 20
WS = sr(SRD_WS, 4)

def srd(k, dst, ptr, size):
    k.e(f"s_mov_b32 s{dst}, s{ptr}")
    k.e(f"s_mov_b32 s{dst+1}, s{ptr+1}")
    k.e(f"s_mov_b32 s{dst+2}, 0x{size:x}")
    k.e(f"s_mov_b32 s{dst+3}, 0x20000")

def spin_guard(k, sreg, exit_label):
    k.e(f"s_add_u32 s{sreg}, s{sreg}, 1")
    k.e(f"s_cmp_gt_u32 s{sreg}, {SPIN_MAX}")
    k.e(f"s_cbranch_scc1 {exit_label}")

def poll_flags(k, vaddr, vtmp, name, first_issued=False, sleep=1):
    lp = k.u(name + "_poll"); ex = k.u(name + "_done"); chk = k.u(name + "_chk")
    k.e("s_mov_b32 s60, 0")
    if first_issued: k.e(f"s_branch {chk}")
    k.lab(lp)
    k.e(f"buffer_load_dword v{vtmp}, v{vaddr}, {WS}, 0 offen sc1")
    k.lab(chk)
    spin_guard(k, 60, ex)
    k.e("s_waitcnt vmcnt(0)")
    k.e(f"v_cmp_ne_u32 vcc, s{S_NONCE}, v{vtmp}")
    k.e("s_nop 1")
    k.e(f"s_cbranch_vccz {ex}")
    if sleep: k.e(f"s_sleep {sleep}")
    k.e(f"s_branch {lp}")
    k.lab(ex)
    k.e("s_waitcnt vmcnt(0)")

def store_flag(k, soff):
    k.e(f"v_mov_b32 v250, s{S_NONCE}")
    k.e("v_mov_b32 v251, 0")
    k.e("s_mov_b64 exec, 1")
    k.e(f"buffer_store_dword v250, v251, {WS}, s{soff} offen sc1")
    k.e("s_mov_b64 exec, -1")

def cvt8(k, dst, src):
    for j in range(4): k.e(f"v_cvt_pk_bf16_f32 v{dst+j}, v{src+2*j}, v{src+2*j+1}")

def phi(k, r, n, t):
    if not OPT['pkphi']:
        for i in range(0, n, 4):
            for j in range(4): k.e(f"v_mul_f32 v{t+j}, s61, v{r+i+j}")
            for j in range(4): k.e(f"v_exp_f32 v{t+j}, v{t+j} clamp")
            for j in range(4): k.e(f"v_max_f32 v{r+i+j}, 0, v{r+i+j}")
            for j in range(4): k.e(f"v_add_f32 v{r+i+j}, s62, v{r+i+j}")
            for j in range(4): k.e(f"v_add_f32 v{r+i+j}, v{t+j}, v{r+i+j}")
        return
    for i in range(0, n, 8):
        for j in range(0, 8, 2): k.e(f"v_pk_mul_f32 {vr(t+j,2)}, {vr(r+i+j,2)}, s[66:67]")
        for j in range(8): k.e(f"v_exp_f32 v{t+j}, v{t+j} clamp")
        for j in range(8): k.e(f"v_max_f32 v{r+i+j}, 0, v{r+i+j}")
        for j in range(0, 8, 2): k.e(f"v_pk_add_f32 {vr(r+i+j,2)}, {vr(r+i+j,2)}, s[62:63]")
        for j in range(0, 8, 2): k.e(f"v_pk_add_f32 {vr(r+i+j,2)}, {vr(r+i+j,2)}, {vr(t+j,2)}")

ACC = 8
BUF = [72, 88, 104, 120]
VXA, VWA = 136, 140
EP = 144
PFD = 208

def rd_x(k, buf, j, t): k.e(f"ds_read_b128 {vr(BUF[buf]+4*t,4)}, v{VXA+j} offset:{t*4096}")
def rd_w(k, buf, j, p, slot):
    for s2 in range(2):
        k.e(f"ds_read_b64_tr_b16 {vr(BUF[buf]+8+4*slot+2*s2,2)}, v{VWA} offset:{p*8192 + j*2048 + s2*512}")
def reads(k, role, buf, j):
    rd_x(k, buf, j, 0); rd_x(k, buf, j, 1)
    if role == 'kv': rd_w(k, buf, j, 1, 0); rd_w(k, buf, j, 2, 1)
    else: rd_w(k, buf, j, 0, 0)

def kstep(k, role, br, j, first=False, noreads=False, wait=None):
    nb = (j + 2) & 3; b = BUF[j]
    if noreads:
        X = [vr(b,4), vr(b+4,4)]; W = [vr(b+8,4), vr(b+12,4)]
        k.e(f"s_waitcnt lgkmcnt({wait})")
        for t in range(2):
            a = ACC + 16*t
            if role == 'kv' and br == 'A': k.e(f"{MF} {vr(a,16)}, {X[t]}, {W[0]}, {vr(a,16)}")
            else: k.e(f"{MF} {vr(a,16)}, {W[0]}, {X[t]}, {vr(a,16)}")
        if role == 'kv':
            for t in range(2):
                a = ACC + 32 + 16*t
                k.e(f"{MF} {vr(a,16)}, {X[t]}, {W[1]}, {vr(a,16)}")
        return
    X = [vr(b,4), vr(b+4,4)]; W = [vr(b+8,4), vr(b+12,4)]
    def C(a): return "0" if first else vr(a,16)
    if role == 'kv':
        k.e("s_waitcnt lgkmcnt(6)")
        for t in range(2):
            a = ACC + 16*t
            if br == 'B': k.e(f"{MF} {vr(a,16)}, {W[0]}, {X[t]}, {C(a)}")
            else:         k.e(f"{MF} {vr(a,16)}, {X[t]}, {W[0]}, {C(a)}")
            if t == 0: rd_x(k, nb, nb, 0); rd_x(k, nb, nb, 1)
            else: rd_w(k, nb, nb, 1, 0)
        for t in range(2):
            a = ACC + 32 + 16*t
            k.e(f"{MF} {vr(a,16)}, {X[t]}, {W[1]}, {C(a)}")
            if t == 0: rd_w(k, nb, nb, 2, 1)
    else:
        k.e("s_waitcnt lgkmcnt(4)")
        for t in range(2):
            a = ACC + 16*t
            k.e(f"{MF} {vr(a,16)}, {W[0]}, {X[t]}, {C(a)}")
            if t == 0: rd_x(k, nb, nb, 0); rd_x(k, nb, nb, 1)
            else: rd_w(k, nb, nb, 0, 0)

def consumer_tile(k, role, br, extra=None):
    lp = k.u("c"+role+br); ex = k.u("cx"+role+br)
    k.inp1 = True
    k.e("s_mov_b32 s48, 0")
    kstep(k, role, br, 0, first=True)
    k.lab(lp)
    k.e("s_add_u32 s49, s49, 1")
    k.e("s_and_b32 s50, s49, 3")
    k.e("s_cmp_eq_u32 s50, 0")
    k.e(f"s_cselect_b32 s50, 0x{(-3*SLOT) & 0xffffffff:x}, s69")
    kstep(k, role, br, 1)
    if extra: extra(k)
    if br == 'A' and role == 'kv':
        sk = k.u("novm")
        k.e(f"s_cmp_eq_u32 s48, {OPT['sigs']-8}")
        k.e(f"s_cbranch_scc0 {sk}")
        k.e("s_waitcnt vmcnt(0)")
        k.lab(sk)
    for j in range(4): k.e(f"v_add_u32 v{VXA+j}, s50, v{VXA+j}")
    k.e(f"v_add_u32 v{VWA}, s50, v{VWA}")
    k.e("s_barrier")
    k.e("s_cmp_lt_u32 s48, 7")
    k.e(f"s_cbranch_scc0 {ex}")
    kstep(k, role, br, 2)
    kstep(k, role, br, 3)
    k.e("s_add_u32 s48, s48, 1")
    kstep(k, role, br, 0)
    k.e(f"s_branch {lp}")
    k.lab(ex)
    n = 6 if role == 'kv' else 4
    kstep(k, role, br, 2, noreads=True, wait=n)
    kstep(k, role, br, 3, noreads=True, wait=0)
    k.inp1 = False

def consumer_setup(k):
    k.e("v_and_b32 v1, 31, v0")
    k.e("v_lshrrev_b32 v2, 5, v0")
    k.e("v_bfe_u32 v3, v0, 1, 3")
    k.e("v_xor_b32 v3, v3, v2")
    k.e("v_lshlrev_b32 v3, 4, v3")
    k.e("v_lshlrev_b32 v1, 7, v1")
    k.e(f"v_add_u32 v{VXA}, v1, v3")
    for j in range(1, 4): k.e(f"v_xor_b32 v{VXA+j}, {j<<5}, v{VXA}")
    k.e("v_bfe_u32 v1, v0, 2, 2")
    k.e("v_and_b32 v2, 3, v0")
    k.e("v_bfe_u32 v3, v0, 4, 1")
    k.e("v_lshrrev_b32 v4, 5, v0")
    k.e("v_lshlrev_b32 v4, 3, v4")
    k.e("v_add_u32 v4, v4, v1")
    k.e("v_lshlrev_b32 v4, 7, v4")
    k.e("v_lshlrev_b32 v3, 1, v3")
    k.e("v_lshrrev_b32 v5, 1, v2")
    k.e("v_add_u32 v3, v3, v5")
    k.e("s_lshl_b32 s48, s27, 2")
    k.e("v_add_u32 v3, s48, v3")
    k.e("v_and_b32 v5, 2, v1")
    k.e("v_lshlrev_b32 v5, 1, v5")
    k.e("v_xor_b32 v3, v3, v5")
    k.e("v_lshlrev_b32 v3, 4, v3")
    k.e("v_and_b32 v2, 1, v2")
    k.e("v_lshlrev_b32 v2, 3, v2")
    k.e("v_add3_u32 v4, v4, v3, v2")
    k.e(f"v_add_u32 v{VWA}, 8192, v4")

def read_nonce(k, va, vb):
    k.e(f"v_mov_b32 v{va}, {NONCE_L}")
    k.e(f"ds_read_b32 v{vb}, v{va}")
    k.e("s_waitcnt lgkmcnt(0)")
    k.e(f"v_readfirstlane_b32 s{S_NONCE}, v{vb}")

def pf_setup(k, pw, px):
    k.e("s_and_b32 s50, s2, 7")
    k.e("s_lshr_b32 s51, s2, 3")
    k.e("v_lshrrev_b32 v5, 2, v0")
    k.e("s_lshl_b32 s52, s51, 4")
    k.e("v_add_u32 v5, s52, v5")
    k.e("v_mul_u32_u24 v5, 3072, v5")
    k.e("v_and_b32 v6, 3, v0")
    k.e("s_lshr_b32 s52, s50, 2")
    k.e("s_lshl_b32 s52, s52, 2")
    k.e("v_add_u32 v6, s52, v6")
    k.e("v_lshlrev_b32 v6, 7, v6")
    k.e("v_add_u32 v5, v5, v6")
    k.e("v_lshlrev_b32 v6, 7, v0")
    k.e("s_and_b32 s52, s50, 3")
    k.e("s_lshl_b32 s52, s52, 9")
    k.e("s_lshl_b32 s53, s51, 4")
    k.e("s_add_u32 s52, s52, s53")
    k.e("s_lshl_b32 s66, s52, 10")
    k.e("s_lshl_b32 s67, s51, 14")
    k.e("s_lshr_b32 s68, s50, 2")

def gen(stamps=False):
    k = K(stamps)
    k.lab(KNAME)
    k.e("s_cmp_ge_u32 s2, 256")
    k.e("s_cbranch_scc1 L_end")
    if stamps: k.e("s_memrealtime s[70:71]")
    k.e("s_load_dwordx16 s[4:19], s[0:1], 0")
    k.e("s_load_dwordx2 s[20:21], s[0:1], 64")
    k.e("v_lshrrev_b32 v1, 6, v0")
    k.e("v_and_b32 v0, 63, v0")
    k.e(f"v_readfirstlane_b32 s{S_WAVE}, v1")
    k.e("s_and_b32 s26, s2, 7")
    k.e("s_lshr_b32 s27, s2, 3")
    k.e("s_and_b32 s48, s26, 3")
    k.e("s_lshl_b32 s48, s48, 3")
    if OPT['map'] == 0:
        k.e("s_and_b32 s49, s27, 7")
    else:
        k.e("s_lshr_b32 s49, s27, 2")
    k.e(f"s_add_u32 s{S_RB}, s48, s49")
    k.e("s_lshr_b32 s48, s26, 2")
    k.e("s_lshl_b32 s48, s48, 2")
    if OPT['map'] == 0:
        k.e("s_lshr_b32 s49, s27, 3")
    else:
        k.e("s_and_b32 s49, s27, 3")
    k.e(f"s_add_u32 s{S_G}, s48, s49")
    k.e(f"s_cmp_lt_u32 s{S_WAVE}, 4")
    k.e("s_cbranch_scc1 L_consumer")

    loader(k)
    k.e("s_branch L_attn")

    k.lab("L_consumer")
    k.e("s_waitcnt lgkmcnt(0)")
    if stamps: k.e("s_mov_b32 s72, s70")
    srd(k, SRD_WS, P_WS, 256 << 20)
    srd(k, SRD_T, P_DBG, 256)
    srd(k, SRD_X, P_AW, 512*3072)
    k.e(f"s_and_b32 s27, s{S_WAVE}, 1")
    consumer_setup(k)
    attn_setup(k)
    nn = k.u("nononce")
    k.e(f"s_cmp_eq_u32 s{S_WAVE}, 0")
    k.e(f"s_cbranch_scc0 {nn}")
    k.e("v_mov_b32 v2, 0")
    nl = k.u("nolead")
    k.e("s_cmp_eq_u32 s2, 0")
    k.e(f"s_cbranch_scc0 {nl}")
    k.e("s_memrealtime s[58:59]")
    k.e("s_waitcnt lgkmcnt(0)")
    k.e("s_or_b32 s58, s58, 1")
    k.e("v_mov_b32 v3, s58")
    k.e(f"buffer_store_dword v3, v2, {sr(SRD_T,4)}, 0 offen sc1")
    k.lab(nl)
    k.lab(nn)
    k.e("s_mov_b32 s49, 0")
    k.e(f"s_mov_b32 s69, {SLOT}")
    k.e(f"s_cmp_ge_u32 s{S_WAVE}, 2")
    k.e("s_cbranch_scc1 L_qwave")

    k.e("s_barrier")
    k.stamp(1)
    reads(k, 'kv', 0, 0); reads(k, 'kv', 1, 1)
    consumer_tile(k, 'kv', 'B')
    k.stamp(2)
    k.c("B epilogue (kv)")
    read_nonce(k, 2, 3)
    k.e(f"s_lshl_b32 s62, s{S_G}, 2")
    k.e("s_lshl_b32 s63, s27, 1")
    k.e("s_add_u32 s62, s62, s63")
    k.e("s_lshl_b32 s62, s62, 6")
    k.e(f"s_lshl_b32 s63, s{S_RB}, 1")
    k.e("s_add_u32 s62, s62, s63")
    k.e("s_lshl_b32 s62, s62, 10")
    k.e("v_lshlrev_b32 v1, 4, v0")
    k.e("s_lshl_b32 s63, s27, 12")
    k.e(f"s_add_u32 s63, s63, {OK_L}")
    k.e("v_add_u32 v4, s63, v1")
    k.e("v_bfe_u32 v2, v0, 4, 1")
    k.e("v_lshrrev_b32 v3, 5, v0")
    k.e("v_lshlrev_b32 v3, 8, v3")
    k.e("v_and_b32 v5, 15, v0")
    k.e("v_lshlrev_b32 v5, 4, v5")
    k.e("v_add_u32 v3, v3, v5")
    k.e("v_lshlrev_b32 v5, 11, v2")
    k.e("v_add_u32 v5, v5, v3")
    k.e(f"s_add_u32 s63, s63, {OV_L - OK_L}")
    k.e("v_add_u32 v5, s63, v5")
    k.e("v_lshlrev_b32 v2, 16, v2")
    k.e("v_add_u32 v2, v2, v3")
    k.e(f"s_add_u32 s64, s62, {KB_G + 65536}")
    k.e(f"s_add_u32 s65, s62, {VB_G}")
    k.e("s_nop 3")
    for t in range(2):
        KF = EP + 16*t; VF = KF + 8
        cvt8(k, KF, ACC+16*t); cvt8(k, KF+4, ACC+16*t+8)
        cvt8(k, VF, ACC+32+16*t); cvt8(k, VF+4, ACC+32+16*t+8)
        k.e(f"buffer_store_dwordx4 {vr(KF,4)}, v1, {WS}, s62 offen offset:{t*1024} sc1")
        k.e(f"buffer_store_dwordx4 {vr(KF+4,4)}, v1, {WS}, s64 offen offset:{t*1024} sc1")
        k.e(f"buffer_store_dwordx4 {vr(VF,4)}, v2, {WS}, s65 offen offset:{t*1024} sc1")
        k.e(f"buffer_store_dwordx4 {vr(VF+4,4)}, v2, {WS}, s65 offen offset:{t*1024+512} sc1")
        k.e(f"ds_write_b128 v4, {vr(KF,4)} offset:{t*1024}")
        k.e(f"ds_write_b128 v4, {vr(KF+4,4)} offset:{t*1024+2048}")
        k.e(f"ds_write_b128 v5, {vr(VF,4)} offset:{t*1024}")
        k.e(f"ds_write_b128 v5, {vr(VF+4,4)} offset:{t*1024+512}")
    k.stamp(3)
    k.e("s_barrier")
    reads(k, 'kv', 0, 0); reads(k, 'kv', 1, 1)
    consumer_tile(k, 'kv', 'A')
    k.e("s_waitcnt lgkmcnt(0)")
    k.e("s_barrier")
    k.stamp(4)
    k.c("A epilogue (kv)")
    if OPT['kvprio']: k.e("s_setprio 2")
    T = 72
    k.e(f"s_mov_b32 s61, {lit(LOG2E)}")
    k.e(f"s_mov_b32 s62, {lit(1e-6)}")
    k.e("s_mov_b32 s63, s62")
    k.e("s_mov_b32 s66, s61")
    k.e("s_mov_b32 s67, s61")
    PK, VV, ONES = 80, 96, 112
    for j in range(4): k.e(f"v_mov_b32 v{ONES+j}, 0x3f803f80")
    k.e("s_nop 3")
    for t in range(2):
        cvt8(k, VV+8*t, ACC+32+16*t); cvt8(k, VV+8*t+4, ACC+32+16*t+8)
    DKV, DZ = ACC+32, ACC+48
    for t in range(2):
        phi(k, ACC+16*t, 16, T)
        cvt8(k, PK+8*t, ACC+16*t); cvt8(k, PK+8*t+4, ACC+16*t+8)
        k.e("s_nop 1")
        for m in range(2):
            first = (t == 0 and m == 0)
            k.e(f"{MF} {vr(DKV,16)}, {vr(PK+8*t+4*m,4)}, {vr(VV+8*t+4*m,4)}, {'0' if first else vr(DKV,16)}")
            k.e(f"{MF} {vr(DZ,16)}, {vr(ONES,4)}, {vr(PK+8*t+4*m,4)}, {'0' if first else vr(DZ,16)}")
    k.e("s_mov_b32 s64, 0xffff0000")
    k.e("s_mov_b32 s65, 0xffff0000")
    k.e(f"s_lshl_b32 s63, s{S_G}, 1")
    k.e("s_add_u32 s63, s63, s27")
    k.e("s_lshl_b32 s63, s63, 12")
    k.e(f"s_add_u32 s63, s63, {KVACC}")
    k.e("v_lshlrev_b32 v3, 2, v0")
    k.e("s_nop 5")
    RS = 120
    for t in range(8): k.e(f"v_cndmask_b32 v{RS+t}, v{DKV+t}, v{DKV+8+t}, s[64:65]")
    for t in range(8): k.e(f"buffer_atomic_add_f32 v{RS+t}, v3, {WS}, s63 offen offset:{t*256}")
    k.e("s_mov_b32 exec_hi, 0")
    k.e(f"buffer_atomic_add_f32 v{DZ}, v3, {WS}, s63 offen offset:2048")
    k.e("s_mov_b64 exec, -1")
    if OPT['kvprio']: k.e("s_setprio 0")
    k.e("s_branch L_e1")

    k.lab("L_qwave")
    k.e("v_mov_b32 v251, 0")
    k.e("s_barrier")
    k.stamp(1)
    reads(k, 'q', 0, 0); reads(k, 'q', 1, 1)
    def pf_extra(k):
        ex = k.u("pfx"); w3 = k.u("pfw3")
        n1 = k.u("nn1"); n2 = k.u("nn2")
        k.e(f"s_cmp_eq_u32 s{S_WAVE}, 2")
        k.e(f"s_cbranch_scc0 {n2}")
        k.e("s_cmp_eq_u32 s48, 0")
        k.e(f"s_cbranch_scc0 {n1}")
        k.e(f"buffer_load_dword v7, v251, {sr(SRD_T,4)}, 0 offen sc1")
        k.lab(n1)
        k.e("s_cmp_eq_u32 s48, 6")
        k.e(f"s_cbranch_scc0 {n2}")
        lp = k.u("np"); npx = k.u("npx"); chk = k.u("npc")
        k.e("s_mov_b32 s60, 0")
        k.e(f"s_branch {chk}")
        k.lab(lp)
        k.e(f"buffer_load_dword v7, v251, {sr(SRD_T,4)}, 0 offen sc1")
        k.lab(chk)
        spin_guard(k, 60, npx)
        k.e("s_waitcnt vmcnt(0)")
        k.e("v_readfirstlane_b32 s58, v7")
        k.e("s_nop 0")
        k.e("s_cmp_eq_u32 s58, 0")
        k.e(f"s_cbranch_scc1 {lp}")
        k.lab(npx)
        k.e("s_waitcnt vmcnt(0)")
        k.e(f"v_mov_b32 v250, {NONCE_L}")
        k.e("ds_write_b32 v250, v7")
        k.lab(n2)
    consumer_tile(k, 'q', 'B', pf_extra)
    k.stamp(2)
    k.c("B epilogue (q)")
    read_nonce(k, 2, 3)
    k.e(f"s_mov_b32 s61, {lit(CS)}")
    k.e("v_lshlrev_b32 v1, 4, v0")
    k.e("s_lshl_b32 s63, s27, 12")
    k.e(f"s_add_u32 s63, s63, {Q_L}")
    k.e("v_add_u32 v4, s63, v1")
    k.e("s_nop 6")
    for t in range(2):
        for i in range(16): k.e(f"v_mul_f32 v{ACC+16*t+i}, s61, v{ACC+16*t+i}")
        QF = EP + 8*t
        cvt8(k, QF, ACC+16*t); cvt8(k, QF+4, ACC+16*t+8)
        k.e(f"ds_write_b128 v4, {vr(QF,4)} offset:{t*1024}")
        k.e(f"ds_write_b128 v4, {vr(QF+4,4)} offset:{t*1024+2048}")
    k.stamp(3)
    k.e("s_barrier")
    reads(k, 'q', 0, 0); reads(k, 'q', 1, 1)
    consumer_tile(k, 'q', 'A')
    k.e("s_waitcnt lgkmcnt(0)")
    k.e("s_barrier")
    k.stamp(4)
    k.c("A epilogue (q)")
    k.e(f"s_mov_b32 s61, {lit(LOG2E)}")
    k.e(f"s_mov_b32 s62, {lit(1e-6)}")
    k.e("s_mov_b32 s63, s62")
    k.e("s_mov_b32 s66, s61")
    k.e("s_mov_b32 s67, s61")
    k.e("v_lshlrev_b32 v1, 4, v0")
    k.e("s_lshl_b32 s65, s27, 12")
    k.e(f"s_add_u32 s65, s65, {PQ_L}")
    k.e("v_add_u32 v4, s65, v1")
    k.e("s_nop 4")
    for t in range(2):
        phi(k, ACC+16*t, 16, 72)
        QF = EP + 8*t
        cvt8(k, QF, ACC+16*t); cvt8(k, QF+4, ACC+16*t+8)
        k.e(f"ds_write_b128 v4, {vr(QF,4)} offset:{t*1024}")
        k.e(f"ds_write_b128 v4, {vr(QF+4,4)} offset:{t*1024+2048}")
    k.e("s_waitcnt lgkmcnt(0)")
    k.lab("L_e1")

    k.lab("L_attn")
    if OPT['prio']:
        sk = k.u("prio")
        k.e(f"s_cmp_ge_u32 s{S_WAVE}, 4")
        k.e(f"s_cbranch_scc{0 if OPT['prio'] == 1 else 1} {sk}")
        k.e("s_setprio 1")
        k.lab(sk)
    k.stamp(7)
    attention(k)
    k.stamp(9)
    apart(k)
    k.stamp(10)
    k.e("s_waitcnt vmcnt(0) lgkmcnt(0)")
    k.e("s_barrier")
    k.stamp(11)
    sk = k.u("nof2")
    k.e(f"s_cmp_eq_u32 s{S_WAVE}, 4")
    k.e(f"s_cbranch_scc0 {sk}")
    k.e(f"s_lshr_b32 s48, s{S_RB}, 1")
    k.e("s_lshl_b32 s48, s48, 11")
    k.e(f"s_and_b32 s49, s{S_RB}, 1")
    k.e("s_lshl_b32 s49, s49, 3")
    k.e(f"s_add_u32 s49, s49, s{S_G}")
    k.e("s_lshl_b32 s49, s49, 7")
    k.e("s_add_u32 s48, s48, s49")
    k.e(f"s_add_u32 s48, s48, {F2}")
    store_flag(k, 48)
    k.lab(sk)
    p3(k)
    k.lab("L_fin")
    if stamps:
        k.stamp(13)
        k.e(f"s_lshl_b32 s48, s2, 3")
        k.e(f"s_add_u32 s48, s48, s{S_WAVE}")
        k.e("s_lshl_b32 s48, s48, 6")
        k.e(f"s_add_u32 s48, s48, {STAMP}")
        k.e("v_mov_b32 v9, 0")
        for j in range(16):
            k.e(f"v_mov_b32 v8, s{72+j}")
            k.e(f"buffer_store_dword v8, v9, {WS}, s48 offen offset:{4*j}")
            k.e("s_nop 0")
    if stamps and OPT['dbgstamps']:
        sk = k.u("nodbg")
        srd(k, SRD_T, P_DBG, 256)
        k.e(f"s_cmp_eq_u32 s2, {OPT['dbgstamps']}")
        k.e(f"s_cbranch_scc0 {sk}")
        k.e(f"s_cmp_eq_u32 s{S_WAVE}, 0")
        k.e(f"s_cbranch_scc0 {sk}")
        k.e("v_mov_b32 v9, 0")
        for j in range(1, 14):
            k.e(f"s_sub_u32 s48, s{72+j}, s72")
            k.e("v_mov_b32 v8, s48")
            k.e(f"buffer_store_dword v8, v9, {sr(SRD_T,4)}, 0 offen offset:{4*j}")
            k.e("s_nop 0")
        k.lab(sk)
    if OPT['stagest']:
        sk = k.u("nost")
        k.e(f"s_cmp_eq_u32 s{S_WAVE}, 4")
        k.e(f"s_cbranch_scc0 {sk}")
        k.e("s_lshl_b32 s48, s2, 8")
        k.e(f"s_add_u32 s48, s48, {STAMP + (1<<19)}")
        k.e("v_lshlrev_b32 v9, 2, v0")
        k.e(f"buffer_store_dword v252, v9, {WS}, s48 offen")
        k.lab(sk)
    k.lab("L_end")
    k.e("s_endpgm")
    return k

def issue_stage(k):
    k.e("s_lshl_b32 s52, s59, 7")
    k.e("s_mul_i32 s53, s59, 196608")
    k.e("s_mov_b32 m0, s51")
    k.e("s_add_u32 s54, s53, 23552")
    k.e(f"buffer_load_dwordx4 v1, {sr(SRD_X,4)}, s52 offen lds")
    k.e(f"buffer_load_dwordx4 v2, {sr(SRD_X,4)}, s52 offen offset:1024 lds")
    for p in range(3):
        k.e(f"s_add_u32 s55, s51, {8192 + p*8192}")
        k.e("s_mov_b32 m0, s55")
        if p: k.e(f"s_add_u32 s56, s53, {p*1024}"); so0 = "s56"
        else: so0 = "s53"; k.e("s_nop 0")
        k.e(f"buffer_load_dwordx4 v3, {sr(SRD_W,4)}, {so0} offen lds")
        if p: k.e(f"s_add_u32 s56, s54, {p*1024}"); so1 = "s56"
        else: so1 = "s54"
        k.e(f"buffer_load_dwordx4 v3, {sr(SRD_W,4)}, {so1} offen offset:1024 lds")
    k.e("s_add_u32 s57, s57, 1")
    k.e("s_add_u32 s59, s59, 1")
    k.e("s_and_b32 s59, s59, 7")
    k.e(f"s_add_u32 s51, s51, {SLOT}")
    k.e("s_and_b32 s58, s57, 3")
    sk = k.u("nowrap")
    k.e("s_cmp_eq_u32 s58, 0")
    k.e(f"s_cbranch_scc0 {sk}")
    k.e(f"s_sub_u32 s51, s51, {4*SLOT}")
    k.lab(sk)
    sk2 = k.u("nosw")
    k.e("s_cmp_eq_u32 s57, 8")
    k.e(f"s_cbranch_scc0 {sk2}")
    srd(k, SRD_X, P_AX, 2 << 20)
    srd(k, SRD_W, P_AW, 512*3072)
    k.lab(sk2)

def pf0(k):
    k.e("s_and_b32 s50, s2, 7")
    k.e("s_lshr_b32 s52, s2, 3")
    wx = k.u("pf0x"); ex = k.u("pf0e")
    k.e("s_cmp_lt_u32 s26, 3")
    k.e(f"s_cbranch_scc0 {wx}")
    srd(k, SRD_T, P_AW, 512*3072)
    k.e("v_lshrrev_b32 v5, 2, v0")
    k.e("s_lshl_b32 s53, s52, 4")
    k.e("v_add_u32 v5, s53, v5")
    k.e("v_mul_u32_u24 v5, 3072, v5")
    k.e("v_and_b32 v6, 3, v0")
    k.e("s_lshr_b32 s53, s50, 2")
    k.e("s_lshl_b32 s53, s53, 2")
    k.e("v_add_u32 v6, s53, v6")
    k.e("v_lshlrev_b32 v6, 7, v6")
    k.e("v_add_u32 v5, v5, v6")
    k.e("s_lshl_b32 s53, s26, 10")
    k.e(f"buffer_load_dword v6, v5, {sr(SRD_T,4)}, s53 offen")
    k.e(f"buffer_load_dword v7, v5, {sr(SRD_T,4)}, s53 offen")
    k.e(f"s_branch {ex}")
    k.lab(wx)
    srd(k, SRD_T, P_AX, 2 << 20)
    k.e("s_and_b32 s53, s50, 3")
    k.e("s_lshl_b32 s53, s53, 9")
    k.e("s_lshl_b32 s54, s52, 4")
    k.e("s_add_u32 s53, s53, s54")
    k.e("s_lshl_b32 s53, s53, 10")
    k.e("v_lshlrev_b32 v5, 7, v0")
    k.e(f"buffer_load_dword v6, v5, {sr(SRD_T,4)}, s53 offen")
    k.e("s_add_u32 s53, s53, 8192")
    k.e(f"buffer_load_dword v7, v5, {sr(SRD_T,4)}, s53 offen")
    k.lab(ex)

def pfsetup(k):
    k.e("s_and_b32 s50, s2, 7")
    k.e("s_lshr_b32 s52, s2, 3")
    k.e("s_mov_b32 s66, 1")
    wx = k.u("pfwx"); wo = k.u("pfwo"); ex = k.u("pfex")
    k.e("s_cmp_lt_u32 s26, 2")
    k.e(f"s_cbranch_scc0 {wx}")
    srd(k, SRD_T, P_BW, 512*3072)
    k.e("v_min_u32 v4, 11, v0")
    k.e("v_lshrrev_b32 v5, 2, v4")
    k.e("v_lshlrev_b32 v5, 10, v5")
    k.e("v_and_b32 v4, 3, v4")
    k.e("s_lshr_b32 s53, s50, 2")
    k.e("s_lshl_b32 s53, s53, 2")
    k.e("v_add_u32 v4, s53, v4")
    k.e("v_lshlrev_b32 v4, 7, v4")
    k.e("s_lshl_b32 s53, s52, 1")
    k.e("s_add_u32 s53, s53, s26")
    k.e("s_mul_i32 s53, s53, 3072")
    k.e("v_add3_u32 v4, v4, v5, s53")
    k.e("s_mov_b32 s65, 196608")
    k.e("s_mov_b32 s64, 196608")
    k.e(f"s_branch {ex}")
    k.lab(wx)
    k.e("s_cmp_eq_u32 s26, 2")
    k.e(f"s_cbranch_scc0 {wo}")
    srd(k, SRD_T, P_BX, 2 << 20)
    k.e("v_min_u32 v4, 15, v0")
    k.e("s_and_b32 s53, s50, 3")
    k.e("s_lshl_b32 s53, s53, 9")
    k.e("s_lshl_b32 s54, s52, 4")
    k.e("s_add_u32 s53, s53, s54")
    k.e("v_add_u32 v4, s53, v4")
    k.e("v_lshlrev_b32 v4, 10, v4")
    k.e("s_mov_b32 s65, 128")
    k.e("s_mov_b32 s64, 128")
    k.e(f"s_branch {ex}")
    k.lab(wo)
    k.e("s_lshr_b32 s53, s50, 2")
    k.e("s_cmp_eq_u32 s53, 0")
    k.e(f"s_cselect_b32 s{SRD_T}, s{P_AWO}, s{P_BWO}")
    k.e(f"s_cselect_b32 s{SRD_T+1}, s{P_AWO+1}, s{P_BWO+1}")
    k.e(f"s_mov_b32 s{SRD_T+2}, 0x{512*1024:x}")
    k.e(f"s_mov_b32 s{SRD_T+3}, 0x20000")
    k.e("v_min_u32 v4, 8, v0")
    k.e("v_lshlrev_b32 v4, 7, v4")
    k.e("s_lshl_b32 s53, s52, 14")
    k.e("v_add_u32 v4, s53, v4")
    k.e("s_mov_b32 s65, 1152")
    k.e("s_mov_b32 s64, 0")
    k.lab(ex)

def pf_issue(k):
    sk = k.u("pfsw")
    k.e("s_cmp_eq_u32 s66, 8")
    k.e(f"s_cbranch_scc0 {sk}")
    k.e("s_cmp_lt_u32 s26, 3")
    k.e(f"s_cbranch_scc0 {sk}")
    k.e("s_mov_b32 s64, 0")
    k.e("s_cmp_lt_u32 s26, 2")
    k.e(f"s_cselect_b32 s{SRD_T}, s{P_AW}, s{P_AX}")
    k.e(f"s_cselect_b32 s{SRD_T+1}, s{P_AW+1}, s{P_AX+1}")
    k.lab(sk)
    k.e(f"buffer_load_dword v5, v4, {sr(SRD_T,4)}, s64 offen")
    k.e("s_add_u32 s64, s64, s65")
    k.e("s_add_u32 s66, s66, 1")

def loader(k):
    k.e(f"s_sub_u32 s26, s{S_WAVE}, 4")
    k.e("v_lshrrev_b32 v4, 3, v0")
    k.e("v_and_b32 v5, 7, v0")
    k.e("v_lshrrev_b32 v6, 1, v4")
    k.e("v_xor_b32 v7, v5, v6")
    k.e("v_lshlrev_b32 v7, 4, v7")
    k.e(f"s_lshl_b32 s48, s{S_RB}, 6")
    k.e("s_lshl_b32 s49, s26, 4")
    k.e("s_add_u32 s48, s48, s49")
    k.e("v_add_u32 v1, s48, v4")
    k.e("v_lshlrev_b32 v1, 10, v1")
    k.e("v_add_u32 v2, 7168, v1")
    k.e("v_add_u32 v1, v1, v7")
    k.e("v_xor_b32 v7, 64, v7")
    k.e("v_add_u32 v2, v2, v7")
    k.e("v_add_u32 v3, s49, v4")
    k.e("v_mul_u32_u24 v3, 3072, v3")
    k.e("v_and_b32 v6, 2, v4")
    k.e("v_lshlrev_b32 v6, 1, v6")
    k.e("v_xor_b32 v6, v5, v6")
    k.e("v_lshlrev_b32 v6, 4, v6")
    k.e(f"s_lshl_b32 s49, s{S_G}, 7")
    k.e("v_add3_u32 v3, v3, v6, s49")
    k.e("s_lshl_b32 s51, s26, 11")
    k.e("s_mov_b32 s57, 0")
    if OPT['rot'] == 9:
        k.e(f"s_and_b32 s59, s{S_G}, 3")
        k.e("s_sub_u32 s59, 3, s59")
        k.e("s_lshl_b32 s59, s59, 1")
        k.e(f"s_add_u32 s59, s59, s{S_RB}")
        k.e("s_and_b32 s59, s59, 7")
    elif OPT['rot'] == 8:
        k.e(f"s_and_b32 s59, s{S_G}, 3")
        k.e("s_lshl_b32 s59, s59, 1")
        k.e(f"s_add_u32 s59, s59, s{S_RB}")
        k.e("s_and_b32 s59, s59, 7")
    elif OPT['rot'] == 2:
        k.e(f"s_add_u32 s59, s{S_G}, s{S_RB}")
        k.e("s_and_b32 s59, s59, 1")
        k.e("s_lshl_b32 s59, s59, 2")
    elif OPT['rot'] == 4:
        k.e(f"s_add_u32 s59, s{S_G}, s{S_RB}")
        k.e("s_and_b32 s59, s59, 3")
        k.e("s_lshl_b32 s59, s59, 1")
    else:
        k.e("s_mov_b32 s59, 0")
    k.e("s_waitcnt lgkmcnt(0)")
    if k.stamps: k.e("s_mov_b32 s72, s70")
    srd(k, SRD_X, P_BX, 2 << 20)
    srd(k, SRD_W, P_BW, 512*3072)
    issue_stage(k)
    if OPT['tpf']:
        pfsetup(k)
        for j in range(4): pf_issue(k)
    else:
        if OPT['pf0']: pf0(k)
        issue_stage(k)
    srd(k, SRD_WS, P_WS, 256 << 20)
    sk = k.u("nopf")
    k.e("s_cmp_eq_u32 s26, 3")
    k.e(f"s_cbranch_scc0 {sk}")
    k.e("s_getpc_b64 s[62:63]")
    k.lab("L_pc")
    k.e("s_and_b32 s62, s62, 0xffffff00")
    k.e("v_lshlrev_b32 v8, 7, v0")
    k.e(f"s_sub_u32 s62, s62, PF_BACK")
    k.e("s_subb_u32 s63, s63, 0")
    k.e("global_load_dword v9, v8, s[62:63]")
    k.e("v_add_u32 v8, 8192, v8")
    k.e("global_load_dword v10, v8, s[62:63]")
    k.e("v_add_u32 v8, 8192, v8")
    k.e("global_load_dword v11, v8, s[62:63]")
    k.lab(sk)
    attn_setup(k)
    ny = 4 if OPT['tpf'] else (10 if OPT['pf0'] else 8)
    k.e(f"s_waitcnt vmcnt({ny+3})")
    sk = k.u("w7")
    k.e("s_cmp_eq_u32 s26, 3")
    k.e(f"s_cbranch_scc1 {sk}")
    k.e(f"s_waitcnt vmcnt({ny})")
    k.lab(sk)
    k.e("s_barrier")
    if OPT['tpf']: issue_stage(k)
    issue_stage(k)
    sk = k.u("nozero")
    k.e(f"s_cmp_eq_u32 s{S_RB}, 0")
    k.e(f"s_cbranch_scc0 {sk}")
    k.e("s_cmp_lt_u32 s26, 2")
    k.e(f"s_cbranch_scc0 {sk}")
    k.e(f"s_lshl_b32 s48, s{S_G}, 1")
    k.e("s_add_u32 s48, s48, s26")
    k.e("s_lshl_b32 s48, s48, 12")
    k.e(f"s_add_u32 s48, s48, {KVACC}")
    for j in range(4): k.e(f"v_mov_b32 v{12+j}, 0")
    k.e("v_lshlrev_b32 v8, 4, v0")
    for j in range(3): k.e(f"buffer_store_dwordx4 v[12:15], v8, {WS}, s48 offen offset:{j*1024} sc1")
    k.e("s_waitcnt vmcnt(3)")
    k.lab(sk)
    k.stamp(1)
    k.e("s_mov_b32 s48, 0")
    lp = k.u("ldloop")
    k.lab(lp)
    w8 = k.u("w8"); w9 = k.u("w9"); wd = k.u("wd")
    k.e("s_cmp_eq_u32 s48, 7")
    k.e(f"s_cbranch_scc1 {wd}")
    if OPT['pf4']:
        w10 = k.u("w10"); nw = k.u("nw10")
        k.e(f"s_sub_u32 s49, s48, {OPT['pf4']+1}")
        k.e("s_cmp_lt_u32 s49, 2")
        k.e(f"s_cbranch_scc0 {nw}")
        k.e("s_waitcnt vmcnt(10)")
        k.e(f"s_branch {wd}")
        k.lab(nw)
    if not OPT['tpf']: k.e(f"s_branch {w8}")
    k.e("s_cmp_eq_u32 s48, 0")
    k.e(f"s_cbranch_scc1 {w8}")
    k.e("s_cmp_eq_u32 s48, 1")
    k.e(f"s_cbranch_scc1 {w9}")
    k.e("s_cmp_eq_u32 s48, 12")
    k.e(f"s_cbranch_scc1 {w9}")
    k.e("s_waitcnt vmcnt(10)")
    k.e(f"s_branch {wd}")
    k.lab(w9)
    k.e("s_waitcnt vmcnt(9)")
    k.e(f"s_branch {wd}")
    k.lab(w8)
    k.e("s_waitcnt vmcnt(8)")
    k.lab(wd)
    k.e("s_barrier")
    if OPT['stagest']:
        k.e("s_memrealtime s[90:91]"); k.e("s_waitcnt lgkmcnt(0)")
        k.e("s_mov_b32 m0, s48")
        k.e("s_nop 0")
        k.e("v_writelane_b32 v252, s90, m0")
    sk = k.u("nonn")
    k.e("s_cmp_eq_u32 s48, 7")
    k.e(f"s_cbranch_scc0 {sk}")
    read_nonce(k, 8, 9)
    k.lab(sk)
    sk = k.u("nosig2")
    k.e(f"s_cmp_eq_u32 s48, {OPT['sigs']}")
    k.e(f"s_cbranch_scc0 {sk}")
    k.e("s_cmp_eq_u32 s26, 0")
    k.e(f"s_cbranch_scc0 {sk}")
    k.e(f"s_lshl_b32 s49, s{S_G}, 12")
    k.e(f"s_lshl_b32 s50, s{S_RB}, 7")
    k.e("s_add_u32 s49, s49, s50")
    k.e(f"s_add_u32 s49, s49, {F1B}")
    store_flag(k, 49)
    k.lab(sk)
    if OPT['late9']:
        sk6 = k.u("skip6")
        k.e("s_cmp_eq_u32 s48, 6")
        k.e(f"s_cbranch_scc1 {sk6}")
    issue_stage(k)
    if OPT['late9']: k.lab(sk6)
    if OPT['pf4']:
        skp = k.u("nopf4")
        k.e(f"s_cmp_eq_u32 s48, {OPT['pf4']}")
        k.e(f"s_cbranch_scc0 {skp}")
        pf0(k)
        k.lab(skp)
    sk = k.u("nosig")
    k.e("s_cmp_eq_u32 s48, 7")
    k.e(f"s_cbranch_scc0 {sk}")
    if OPT['late9']: issue_stage(k)
    k.e("s_waitcnt vmcnt(16)")
    k.e("s_barrier")
    k.lab(sk)

    if OPT['tpf']:
        sk = k.u("nopfi")
        k.e("s_cmp_le_u32 s48, 10")
        k.e(f"s_cbranch_scc0 {sk}")
        pf_issue(k)
        k.lab(sk)
    k.e("s_add_u32 s48, s48, 1")
    k.e("s_cmp_lt_u32 s48, 12")
    k.e(f"s_cbranch_scc1 {lp}")
    k.e(f"s_sub_u32 s48, s{S_RB}, 4")
    k.e("v_add_u32 v8, s48, v0")
    k.e("v_max_i32 v8, 0, v8")
    k.e("v_cmp_gt_u32 vcc, 4, v0")
    k.e(f"s_lshl_b32 s49, s{S_G}, 12")
    k.e(f"s_add_u32 s49, s49, {F1B}")
    k.e("v_cndmask_b32 v8, 0, v8, vcc")
    k.e("v_lshlrev_b32 v8, 7, v8")
    k.e("v_add_u32 v8, s49, v8")
    k.e("s_cmp_eq_u32 s26, 0")
    k.e("s_cselect_b32 s62, 31, 15")
    k.e("s_mov_b32 s63, 0")
    k.e("s_waitcnt vmcnt(8)");  k.e("s_barrier")
    k.e("s_mov_b64 exec, s[62:63]")
    k.e(f"buffer_load_dword v9, v8, {WS}, 0 offen sc1")
    k.e("s_mov_b64 exec, -1")
    issue_stage(k)
    k.e("s_waitcnt vmcnt(9)");  k.e("s_barrier")
    lp = k.u("f1b_lp"); ok = k.u("f1b_ok")
    k.e("s_mov_b64 exec, s[62:63]")
    k.e("s_waitcnt vmcnt(8)")
    k.e(f"v_cmp_ne_u32 vcc, s{S_NONCE}, v9")
    k.e("s_nop 1")
    k.e(f"s_cbranch_vccz {ok}")
    poll_flags(k, 8, 9, "f1b")
    k.lab(ok)
    k.e("s_mov_b64 exec, -1")
    k.stamp(5)
    if OPT['remdma']:
        sk = k.u("norem"); jn = k.u("remj")
        k.e(f"s_cmp_eq_u32 s{S_RB}, 0")
        k.e(f"s_cbranch_scc1 {sk}")
        k.e("v_lshlrev_b32 v8, 4, v0")
        k.e(f"s_lshl_b32 s48, s{S_G}, 2")
        k.e("s_add_u32 s48, s48, s26")
        k.e("s_lshl_b32 s48, s48, 6")
        k.e(f"s_lshl_b32 s49, s{S_RB}, 1")
        k.e("s_sub_u32 s49, s49, 8")
        k.e("s_lshl_b32 s52, s26, 13")
        def rem(base_g, base_l):
            for j in range(8):
                k.e(f"s_add_i32 s50, s49, {j}")
                k.e("s_max_i32 s50, s50, 0")
                k.e("s_add_u32 s50, s50, s48")
                k.e("s_lshl_b32 s50, s50, 10")
                if base_g: k.e(f"s_add_u32 s50, s50, {base_g}")
                k.e(f"s_add_u32 s51, s52, {base_l + j*1024}")
                k.e("s_mov_b32 m0, s51")
                k.e("s_nop 0")
                k.e(f"buffer_load_dwordx4 v8, {WS}, s50 offen sc1 lds")
        rem(KB_G, RK_L)
        k.e("s_waitcnt vmcnt(8)");  k.e("s_barrier")
        rem(VB_G, RV_L)
        k.e("s_barrier")
        k.e("s_waitcnt vmcnt(0)")
        k.e(f"s_branch {jn}")
        k.lab(sk)
        k.e("s_waitcnt vmcnt(0)");  k.e("s_barrier")
        k.e("s_barrier")
        k.lab(jn)
    else:
        sk = k.u("norem"); jn = k.u("remj")
        k.e(f"s_cmp_eq_u32 s{S_RB}, 0")
        k.e(f"s_cbranch_scc1 {sk}")
        k.e("v_lshlrev_b32 v8, 4, v0")
        k.e(f"s_lshl_b32 s48, s{S_G}, 2")
        k.e("s_add_u32 s48, s48, s26")
        k.e("s_lshl_b32 s48, s48, 6")
        k.e(f"s_lshl_b32 s49, s{S_RB}, 1")
        k.e("s_sub_u32 s49, s49, 8")
        for j in range(8):
            k.e(f"s_add_i32 s50, s49, {j}")
            k.e("s_max_i32 s50, s50, 0")
            k.e("s_add_u32 s50, s50, s48")
            k.e("s_lshl_b32 s50, s50, 10")
            k.e(f"s_add_u32 s51, s50, {VB_G}")
            k.e(f"buffer_load_dwordx4 {vr(16+4*j,4)}, v8, {WS}, s50 offen sc1")
            k.e(f"buffer_load_dwordx4 {vr(48+4*j,4)}, v8, {WS}, s51 offen sc1")
        k.e("s_waitcnt vmcnt(16)");  k.e("s_barrier")
        k.e("s_lshl_b32 s48, s26, 13")
        k.e("v_add_u32 v9, s48, v8")
        for j in range(8):
            k.e(f"s_waitcnt vmcnt({14-2*j})")
            k.e(f"ds_write_b128 v9, {vr(16+4*j,4)} offset:{RK_L + j*1024}")
            k.e(f"ds_write_b128 v9, {vr(48+4*j,4)} offset:{RV_L + j*1024}")
            if j == 3: k.e("s_barrier")
        k.e(f"s_branch {jn}")
        k.lab(sk)
        k.e("s_waitcnt vmcnt(0)");  k.e("s_barrier")
        k.e("s_barrier")
        k.lab(jn)
    k.e("s_waitcnt lgkmcnt(0)")
    k.stamp(6)
    k.e("s_barrier")
    k.stamp(4)

AQ_, AKF, AS, AMD, AMF, ACN, AP, AVB, AO = 4, 8, [44, 60, 76], 216, 232, 124, 140, [148, 156], 176
AM, AT = 192, 193
AK0, AK7, AK8, AV0, AV7, AV8 = 196, 197, 198, 199, 200, 201
KVR = 208
VPOLL, VPA = 248, 249

def v_reads(k, buf, vaddr, off):
    k.e("s_mov_b64 exec, s[64:65]")
    k.e(f"ds_read_b128 {vr(AVB[buf],4)}, v{vaddr} offset:{off}")
    k.e(f"ds_read_b128 {vr(AVB[buf]+4,4)}, v{vaddr} offset:{off+512}")
    k.e("s_mov_b64 exec, -1")

def sig_f1a(k):
    sk = k.u("nosigA")
    k.e(f"s_cmp_lt_u32 s{S_WAVE}, 2")
    k.e(f"s_cbranch_scc0 {sk}")
    k.e("s_waitcnt vmcnt(0)")
    k.e(f"s_lshl_b32 s52, s{S_G}, 13")
    k.e(f"s_lshl_b32 s53, s{S_RB}, 1")
    k.e(f"s_add_u32 s53, s53, s{S_WAVE}")
    k.e("s_lshl_b32 s53, s53, 7")
    k.e("s_add_u32 s52, s52, s53")
    k.e(f"s_add_u32 s52, s52, {F1A}")
    store_flag(k, 52)
    k.lab(sk)

def attn_setup(k):
    k.e(f"s_and_b32 s86, s{S_WAVE}, 1")
    k.e(f"s_lshr_b32 s87, s{S_WAVE}, 1")
    k.e(f"v_lshlrev_b32 v{AT}, 4, v0")
    k.e("s_lshl_b32 s88, s86, 10")
    k.e("s_lshl_b32 s89, s87, 13")
    k.e("s_lshl_b32 s92, s87, 11")
    k.e("s_add_u32 s93, s89, s88")
    k.e(f"v_add_u32 v{AK0}, s93, v{AT}")
    k.e(f"s_add_u32 s94, s89, {7*1024}")
    k.e(f"s_add_u32 s100, s92, {OK_L}")
    k.e("s_cmp_eq_u32 s86, 0")
    k.e("s_cselect_b32 s94, s94, s100")
    k.e(f"v_add_u32 v{AK7}, s94, v{AT}")
    k.e("s_add_u32 s100, s100, s88")
    k.e(f"v_add_u32 v{AK8}, s100, v{AT}")
    k.e("v_lshrrev_b32 v202, 5, v0")
    k.e("v_lshlrev_b32 v202, 8, v202")
    k.e("v_and_b32 v203, 15, v0")
    k.e("v_lshlrev_b32 v203, 4, v203")
    k.e("v_add_u32 v202, v202, v203")
    k.e(f"s_add_u32 s94, s93, {RV_L}")
    k.e(f"v_add_u32 v{AV0}, s94, v202")
    k.e(f"s_add_u32 s94, s89, {RV_L + 7*1024}")
    k.e(f"s_add_u32 s100, s92, {OV_L}")
    k.e("s_cmp_eq_u32 s86, 0")
    k.e("s_cselect_b32 s94, s94, s100")
    k.e(f"v_add_u32 v{AV7}, s94, v202")
    k.e("s_add_u32 s100, s100, s88")
    k.e(f"v_add_u32 v{AV8}, s100, v202")
    k.e("v_and_b32 v202, 31, v0")
    k.e("v_lshrrev_b32 v203, 5, v0")
    k.e("v_lshlrev_b32 v203, 2, v203")
    k.e("v_sub_u32 v202, v202, v203")
    k.e("v_cvt_f32_i32 v202, v202")
    k.e(f"v_mov_b32 v203, {lit(BIG)}")
    for i in range(16):
        ci = 8*(i >> 2) + (i & 3)
        k.e(f"v_fmaak_f32 v{AMD+i}, v202, v203, {lit((0.5-ci)*BIG)}")
    for i in range(16): k.e(f"v_min_f32 v{AMF+i}, -v{AMD+i}, 0")
    for i in range(16): k.e(f"v_min_f32 v{AMD+i}, 0, v{AMD+i}")
    k.e(f"v_mov_b32 v{AM}, 0xff7fffff")
    k.e(f"s_lshl_b32 s87, s{S_G}, 13")
    k.e(f"s_add_u32 s87, s87, {F1A}")
    k.e(f"v_lshlrev_b32 v{VPA}, 7, v0")
    k.e(f"v_add_u32 v{VPA}, s87, v{VPA}")

def wo_setup(k):
    k.e("s_and_b32 s50, s2, 7")
    k.e("s_lshr_b32 s51, s2, 3")
    k.e("s_lshr_b32 s52, s50, 2")
    k.e("s_lshr_b32 s53, s51, 2")
    k.e("s_cmp_eq_u32 s52, 0")
    k.e(f"s_cselect_b32 s{SRD_WO}, s{P_AWO}, s{P_BWO}")
    k.e(f"s_cselect_b32 s{SRD_WO+1}, s{P_AWO+1}, s{P_BWO+1}")
    k.e(f"s_mov_b32 s{SRD_WO+2}, 0x{512*1024:x}")
    k.e(f"s_mov_b32 s{SRD_WO+3}, 0x20000")
    k.e("v_lshrrev_b32 v204, 3, v0")
    k.e("v_and_b32 v205, 7, v0")
    k.e("v_and_b32 v206, 2, v204")
    k.e("v_lshlrev_b32 v206, 1, v206")
    k.e("v_xor_b32 v206, v205, v206")
    k.e("v_lshlrev_b32 v206, 4, v206")
    k.e(f"s_sub_u32 s54, s{S_WAVE}, 4")
    k.e("s_lshl_b32 s50, s54, 7")
    k.e("v_add_u32 v204, s50, v204")
    k.e("v_lshlrev_b32 v204, 10, v204")
    k.e("s_lshl_b32 s50, s53, 7")
    k.e("v_add3_u32 v205, v204, v206, s50")
    k.e("s_lshl_b32 s96, s54, 14")
    k.e(f"s_add_u32 s96, s96, {WO_L}")
    k.e("s_mov_b32 s97, 0")

def wo_pair(k):
    k.e("s_mov_b32 m0, s96")
    k.e("s_add_u32 s98, s97, 7168")
    k.e(f"buffer_load_dwordx4 v205, {sr(SRD_WO,4)}, s97 offen lds")
    k.e(f"buffer_load_dwordx4 v205, {sr(SRD_WO,4)}, s98 offen offset:1024 lds")
    k.e("s_add_u32 s96, s96, 2048")
    k.e("s_add_u32 s97, s97, 16384")

KVL = 0
def kv_loads(k):
    k.e(f"s_lshl_b32 s50, s{S_G}, 13")
    k.e(f"s_add_u32 s50, s50, {KVACC}")
    k.e("s_add_u32 s51, s50, 4096")
    k.e(f"buffer_load_dwordx4 {vr(KVR,4)}, v1, {WS}, s50 offen sc1")
    k.e(f"buffer_load_dwordx4 {vr(KVR+4,4)}, v1, {WS}, s50 offen offset:1024 sc1")
    k.e(f"buffer_load_dwordx4 {vr(164,4)}, v1, {WS}, s51 offen sc1")
    k.e(f"buffer_load_dwordx4 {vr(168,4)}, v1, {WS}, s51 offen offset:1024 sc1")
    k.e("v_lshrrev_b32 v202, 5, v0")
    k.e("v_lshlrev_b32 v202, 12, v202")
    k.e("v_and_b32 v203, 31, v0")
    k.e("v_lshl_add_u32 v202, v203, 2, v202")
    k.e(f"buffer_load_dword v172, v202, {WS}, s50 offen offset:2048 sc1")

def attention(k):
    k.c("attention: i = w&1 (s26), hh = w>>1 (s27), qt = s48, s99 = kv loads issued flag")
    k.e(f"s_and_b32 s26, s{S_WAVE}, 1")
    k.e(f"s_lshr_b32 s27, s{S_WAVE}, 1")
    k.e(f"s_lshl_b32 s48, s{S_RB}, 1")
    k.e("s_add_u32 s48, s48, s26")
    k.e("v_lshlrev_b32 v1, 4, v0")
    k.e("s_lshl_b32 s49, s27, 11")
    k.e("s_lshl_b32 s50, s26, 10")
    k.e("s_add_u32 s49, s49, s50")
    k.e(f"s_add_u32 s49, s49, {Q_L}")
    k.e("v_add_u32 v2, s49, v1")
    k.e(f"ds_read_b128 {vr(AQ_,4)}, v2")
    def kaddr(p): return (AK0, RK_L + p*1024) if p <= 6 else ((AK7, 0) if p == 7 else (AK8, 0))
    def vaddr(p): return (AV0, p*1024) if p <= 6 else ((AV7, 0) if p == 7 else (AV8, 0))
    for p in range(9):
        a, o = kaddr(p); k.e(f"ds_read_b128 {vr(AKF+4*p,4)}, v{a} offset:{o}")
    k.e("s_mov_b32 s64, 0xffff")
    k.e("s_mov_b32 s65, 0xffff")
    k.e("s_mov_b32 s99, 0")
    for b in range(2):
        for j in range(8): k.e(f"v_mov_b32 v{AVB[b]+j}, 0x3f803f80")
    sk = k.u("nowo")
    k.e(f"s_cmp_ge_u32 s{S_WAVE}, 4")
    k.e(f"s_cbranch_scc0 {sk}")
    wo_setup(k)
    for j in range(8): wo_pair(k)
    k.lab(sk)
    Q = vr(AQ_, 4)
    def qk(dst, p, c): k.e(f"{MF} {vr(dst,16)}, {vr(AKF+4*p,4)}, {Q}, {c}")
    def c1(p): return vr(AMF,16) if p == 0 else (vr(AMD,16) if p == 8 else "0")
    def c2(p): return vr(AMF,16) if p == 0 else (vr(AMD,16) if p == 8 else vr(ACN,16))
    k.e("s_sub_i32 s95, 8, s48")
    k.e("s_max_i32 s95, s95, 0")
    P1 = [k.u(f"p1_{p}") for p in range(9)]
    P2 = [k.u(f"p2_{p}") for p in range(9)]
    E1 = [k.u(f"e1_{p}") for p in range(9)]
    E2 = [k.u(f"e2_{p}") for p in range(9)]
    k.e("s_waitcnt lgkmcnt(0)")
    for p in range(1, 9):
        k.e(f"s_cmp_eq_u32 s95, {p}")
        k.e(f"s_cbranch_scc1 {E1[p]}")
    qk(AS[0], 0, c1(0)); qk(AS[1], 1, c1(1)); qk(AS[2], 2, c1(2))
    k.e("s_nop 9")
    for p in range(9):
        k.lab(P1[p])
        s_ = AS[p % 3]
        for j in range(8): k.e(f"v_max3_f32 v{AM}, v{s_+2*j}, v{s_+2*j+1}, v{AM}")
        if p + 3 <= 8: qk(s_, p + 3, c1(p + 3))
    k.e(f"v_mov_b32 v{AT}, v{AM}")
    k.e("s_nop 1")
    k.e(f"v_permlane32_swap_b32 v{AM}, v{AT}")
    k.e(f"v_max_f32 v{AM}, v{AM}, v{AT}")
    k.e(f"v_sub_f32 v{AM}, 0, v{AM}")
    for i in range(16): k.e(f"v_mov_b32 v{ACN+i}, v{AM}")
    for i in range(16): k.e(f"v_add_f32 v{AMD+i}, v{AMD+i}, v{AM}")
    k.stamp(8)
    k.e("s_cmp_eq_u32 s95, 0")
    sh = k.u("short2")
    k.e(f"s_cbranch_scc0 {sh}")
    for i in range(16): k.e(f"v_add_f32 v{AMF+i}, v{AMF+i}, v{AM}")
    v_reads(k, 0, *vaddr(0))
    k.e("s_nop 0")
    qk(AS[0], 0, c2(0))
    k.e("s_nop 6")
    for p in range(9):
        k.lab(P2[p])
        cur = AS[p % 2]; nxt = AS[(p + 1) % 2]
        if p < 8:
            qk(nxt, p + 1, c2(p + 1))
            v_reads(k, (p + 1) % 2, *vaddr(p + 1))
        hooks = k.u("nohook")
        if p in (OPT['sigp'], OPT['pollp'], 8):
            k.e("s_cmp_eq_u32 s95, 0")
            k.e(f"s_cbranch_scc0 {hooks}")
            if p == OPT['sigp']: sig_f1a(k)
            if p in (OPT['pollp'], 8):
                k.e(f"s_cmp_eq_u32 s{S_WAVE}, 4")
                k.e(f"s_cbranch_scc0 {hooks}")
            if p == OPT['pollp']: k.e(f"buffer_load_dword v{VPOLL}, v{VPA}, {WS}, 0 offen sc1")
            if p == 8:
                k.stamp(14)
                k.e("s_waitcnt vmcnt(0)")
                k.stamp(15)
                k.e(f"v_cmp_ne_u32 vcc, s{S_NONCE}, v{VPOLL}")
                k.e("s_nop 1")
                k.e(f"s_cbranch_vccnz {hooks}")
                kv_loads(k)
                k.e("s_mov_b32 s99, 1")
            k.lab(hooks)
        for j in range(16): k.e(f"v_exp_f32 v{cur+j}, v{cur+j}")
        for j in range(8): k.e(f"v_cvt_pk_bf16_f32 v{AP+j}, v{cur+2*j}, v{cur+2*j+1}")
        k.e(f"s_waitcnt lgkmcnt({2 if p < 8 else 0})")
        vb = AVB[p % 2]
        k.e(f"{MF} {vr(AO,16)}, {vr(vb,4)}, {vr(AP,4)}, {'0' if p == 0 else vr(AO,16)}")
        k.e("s_nop 0")
        k.e(f"{MF} {vr(AO,16)}, {vr(vb+4,4)}, {vr(AP+4,4)}, {vr(AO,16)}")
    done = k.u("attdone")
    k.e(f"s_branch {done}")
    for p in range(1, 9):
        k.lab(E1[p])
        for q in range(p, min(p + 3, 9)): qk(AS[q % 3], q, c1(q))
        k.e("s_nop 10")
        k.e(f"s_branch {P1[p]}")
    k.lab(sh)
    for i in range(16): k.e(f"v_mov_b32 v{AO+i}, 0")
    sig_f1a(k)
    sk = k.u("shpoll")
    k.e(f"s_cmp_eq_u32 s{S_WAVE}, 4")
    k.e(f"s_cbranch_scc0 {sk}")
    k.e(f"buffer_load_dword v{VPOLL}, v{VPA}, {WS}, 0 offen sc1")
    k.lab(sk)
    for p in range(1, 9):
        k.e(f"s_cmp_eq_u32 s95, {p}")
        k.e(f"s_cbranch_scc1 {E2[p]}")
    k.e(f"s_branch {E2[8]}")
    for p in range(1, 9):
        k.lab(E2[p])
        qk(AS[p % 2], p, c2(p))
        v_reads(k, p % 2, *vaddr(p))
        k.e("s_nop 6")
        k.e(f"s_branch {P2[p]}")
    k.lab(done)

def apart(k):
    sk = k.u("kvdone")
    k.e(f"s_cmp_eq_u32 s{S_WAVE}, 4")
    k.e(f"s_cbranch_scc0 {sk}")
    k.e("s_cmp_eq_u32 s99, 1")
    k.e(f"s_cbranch_scc1 {sk}")
    poll_flags(k, VPA, VPOLL, "f1a", first_issued=True)
    kv_loads(k)
    k.lab(sk)
    k.e("s_nop 8")
    k.e(f"v_rcp_f32 v{AT}, v{AO+8}")
    k.e("s_nop 0")
    for j in range(8): k.e(f"v_mul_f32 v{AO+j}, v{AO+j}, v{AT}")
    cvt8(k, AP, AO)
    k.e(f"s_lshl_b32 s49, s{S_G}, 2")
    k.e("s_add_u32 s49, s49, s27")
    k.e("s_lshl_b32 s50, s48, 5")
    k.e("s_add_u32 s49, s49, s50")
    k.e("s_lshl_b32 s49, s49, 10")
    k.e(f"s_add_u32 s50, s49, {O_G + (2<<20)}")
    k.e(f"buffer_store_dwordx4 {vr(AP,4)}, v1, {WS}, s50 offen sc1")
    k.e("s_barrier")
    sk = k.u("nokvw")
    k.e(f"s_cmp_eq_u32 s{S_WAVE}, 4")
    k.e(f"s_cbranch_scc0 {sk}")
    k.e("s_waitcnt vmcnt(1)")
    k.e(f"ds_write_b128 v1, {vr(KVR,4)} offset:{KVL}")
    k.e(f"ds_write_b128 v1, {vr(KVR+4,4)} offset:{KVL+1024}")
    k.e(f"ds_write_b128 v1, {vr(164,4)} offset:{KVL+4096}")
    k.e(f"ds_write_b128 v1, {vr(168,4)} offset:{KVL+4096+1024}")
    k.e("v_lshrrev_b32 v202, 5, v0")
    k.e("v_lshlrev_b32 v202, 12, v202")
    k.e("v_and_b32 v203, 31, v0")
    k.e("v_lshl_add_u32 v202, v203, 2, v202")
    k.e(f"ds_write_b32 v202, v172 offset:{KVL+2048}")
    k.e("s_waitcnt lgkmcnt(0)")
    k.lab(sk)
    k.e("s_lshr_b32 s51, s27, 1")
    k.e("s_lshl_b32 s51, s51, 12")
    k.e("s_and_b32 s52, s27, 1")
    k.e("s_lshl_b32 s52, s52, 6")
    k.e("s_add_u32 s51, s51, s52")
    k.e("v_lshrrev_b32 v203, 5, v0")
    k.e("v_and_b32 v202, 15, v0")
    k.e("v_lshl_add_u32 v202, v203, 5, v202")
    k.e("v_lshlrev_b32 v202, 2, v202")
    k.e("v_add_u32 v202, s51, v202")
    k.e("v_lshlrev_b32 v203, 4, v203")
    k.e("v_add_u32 v203, s51, v203")
    k.e("s_lshl_b32 s51, s27, 11")
    k.e("s_lshl_b32 s50, s26, 10")
    k.e("s_add_u32 s51, s51, s50")
    k.e(f"s_add_u32 s51, s51, {PQ_L}")
    k.e("v_add_u32 v2, s51, v1")
    k.e(f"ds_read_b128 {vr(AQ_,4)}, v2")
    k.e("s_barrier")
    k.e("s_mov_b64 exec, s[64:65]")
    for t in range(8): k.e(f"ds_read_b32 v{KVR+t}, v202 offset:{KVL + t*256}")
    k.e("s_not_b64 exec, s[64:65]")
    k.e(f"ds_read_b128 {vr(KVR,4)}, v203 offset:{KVL+2048}")
    k.e(f"ds_read_b128 {vr(KVR+4,4)}, v203 offset:{KVL+2048+32}")
    k.e("s_mov_b64 exec, -1")
    k.e("s_waitcnt lgkmcnt(0)")
    cvt8(k, 8, KVR)
    k.e("s_nop 1")
    k.e(f"{MF} {vr(44,16)}, {vr(8,4)}, {vr(AQ_,4)}, 0")
    k.e(f"s_mov_b32 s62, {lit(1e-6)}")
    k.e("s_nop 10")
    k.e("v_add_f32 v12, s62, v52")
    k.e("v_rcp_f32 v12, v12")
    k.e("s_nop 0")
    for j in range(8): k.e(f"v_mul_f32 v{44+j}, v{44+j}, v12")
    cvt8(k, 16, 44)
    k.e(f"s_add_u32 s50, s49, {O_G}")
    k.e(f"buffer_store_dwordx4 {vr(16,4)}, v1, {WS}, s50 offen sc1")

def p3(k):
    k.c("P3: out tile 128x64")
    k.e("s_and_b32 s48, s2, 7")
    k.e("s_lshr_b32 s49, s2, 3")
    k.e("s_lshr_b32 s66, s48, 2")
    k.e("s_and_b32 s67, s48, 3")
    k.e("s_lshl_b32 s67, s67, 2")
    k.e("s_and_b32 s50, s49, 3")
    k.e("s_add_u32 s67, s67, s50")
    k.e("s_lshr_b32 s68, s49, 2")
    k.e("s_lshl_b32 s48, s67, 11")
    k.e(f"s_add_u32 s48, s48, {F2}")
    k.e("v_and_b32 v8, 15, v0")
    k.e("v_lshlrev_b32 v8, 7, v8")
    k.e("v_add_u32 v8, s48, v8")
    OF, ACC3, WF = 8+4, 144, [176, 184]
    VA0, VA1 = 192, 193
    k.e("v_bfe_u32 v2, v0, 2, 2")
    k.e("v_and_b32 v3, 3, v0")
    k.e("v_bfe_u32 v4, v0, 4, 1")
    k.e("v_lshrrev_b32 v5, 5, v0")
    k.e("v_lshlrev_b32 v5, 2, v5")
    k.e("v_add_u32 v5, v5, v2")
    k.e("v_lshlrev_b32 v5, 7, v5")
    k.e("v_and_b32 v6, 1, v3")
    k.e("v_lshlrev_b32 v6, 1, v6")
    k.e("v_add_u32 v6, v6, v4")
    k.e("v_and_b32 v7, 2, v2")
    k.e("v_lshlrev_b32 v7, 1, v7")
    k.e("v_xor_b32 v6, v6, v7")
    k.e("v_lshlrev_b32 v6, 4, v6")
    k.e("v_lshrrev_b32 v3, 1, v3")
    k.e("v_lshlrev_b32 v3, 3, v3")
    k.e("v_add3_u32 v5, v5, v6, v3")
    k.e("s_and_b32 s51, s68, 3")
    k.e("s_lshl_b32 s52, s51, 14")
    k.e(f"s_add_u32 s52, s52, {WO_L}")
    k.e(f"v_add_u32 v{VA0}, s52, v5")
    k.e(f"v_xor_b32 v{VA1}, 64, v{VA0}")
    k.e("s_lshl_b32 s48, s67, 2")
    k.e(f"s_add_u32 s48, s48, s{S_WAVE}")
    k.e("s_lshl_b32 s49, s48, 15")
    k.e("s_lshl_b32 s50, s66, 21")
    k.e("s_add_u32 s49, s49, s50")
    k.e(f"s_add_u32 s49, s49, {O_G}")
    k.e("v_lshlrev_b32 v1, 4, v0")
    sk = k.u("nof2poll")
    k.e(f"s_cmp_eq_u32 s{S_WAVE}, 0")
    k.e(f"s_cbranch_scc0 {sk}")
    k.e("s_mov_b64 exec, 0xffff")
    poll_flags(k, 8, 9, "f2")
    k.e("s_mov_b64 exec, -1")
    k.lab(sk)
    k.e("s_barrier")
    k.e(f"s_cmp_ge_u32 s{S_WAVE}, 4")
    k.e("s_cbranch_scc1 L_fin")
    k.stamp(12)
    NPRE = OPT['npre']
    for hb in range(8):
        blk = hb >> 1
        k.e(f"s_add_u32 s52, s51, {blk}")
        k.e("s_and_b32 s52, s52, 3")
        k.e("s_lshl_b32 s52, s52, 13")
        k.e("s_add_u32 s52, s52, s49")
        if hb & 1: k.e("s_add_u32 s52, s52, 4096")
        k.e(f"s_mov_b32 s{[86,87,88,89,92,93,94,100][hb]}, s52")
    def oload(hd):
        so = [86,87,88,89,92,93,94,100][hd >> 2]
        k.e(f"buffer_load_dwordx4 {vr(OF+4*hd,4)}, v1, {WS}, s{so} offen offset:{(hd%4)*1024} sc1")
    for hd in range(NPRE): oload(hd)
    def wreads(buf, j):
        for b in range(2):
            for s2 in range(2):
                k.e(f"ds_read_b64_tr_b16 {vr(WF[buf]+4*b+2*s2,2)}, v{VA0+b} offset:{j*2048 + s2*1024}")
    def advance(blk):
        k.e(f"s_add_u32 s52, s51, {blk}")
        k.e("s_and_b32 s52, s52, 3")
        k.e("s_cmp_eq_u32 s52, 0")
        k.e(f"s_cselect_b32 s52, 0x{(-3*16384) & 0xffffffff:x}, s69")
        k.e(f"v_add_u32 v{VA0}, s52, v{VA0}")
        k.e(f"v_add_u32 v{VA1}, s52, v{VA1}")
    k.e("s_mov_b32 s69, 16384")
    wreads(0, 0)
    for hd in range(32):
        if hd < 31:
            nj = (hd + 1) % 8
            if nj == 0: advance((hd + 1)//8)
            wreads((hd + 1) % 2, nj)
        issued = min(32, NPRE + hd)
        k.e(f"s_waitcnt vmcnt({issued-1-hd}) lgkmcnt({4 if hd < 31 else 0})")
        if NPRE + hd < 32: oload(NPRE + hd)
        if OPT.get('p3st') and hd in (0, 8, 31):
            k.stamp({0: 5, 8: 6, 31: 8}[hd])
        for b in range(2):
            k.e(f"{MF} {vr(ACC3+16*b,16)}, {vr(WF[hd%2]+4*b,4)}, {vr(OF+4*hd,4)}, {'0' if hd == 0 else vr(ACC3+16*b,16)}")
    srd(k, SRD_T, P_OUT, 4 << 20)
    k.e("v_and_b32 v2, 31, v0")
    k.e("s_lshl_b32 s49, s48, 5")
    k.e("v_add_u32 v2, s49, v2")
    k.e("v_lshlrev_b32 v2, 11, v2")
    k.e("v_lshrrev_b32 v3, 5, v0")
    k.e("v_lshlrev_b32 v3, 5, v3")
    k.e("s_lshl_b32 s49, s66, 10")
    k.e("s_lshl_b32 s50, s68, 7")
    k.e("s_add_u32 s49, s49, s50")
    k.e("v_add3_u32 v2, v2, v3, s49")
    k.e("s_nop 3")
    for b in range(2):
        for j in range(8): k.e(f"v_cvt_pk_bf16_f32 v{12+8*b+j}, v{ACC3+16*b+2*j}, v{ACC3+16*b+2*j+1}")
    for b in range(2):
        fl = {0: "", 1: " sc1", 2: " nt", 3: " sc0 sc1"}[OPT['outf']]
        k.e(f"buffer_store_dwordx4 {vr(12+8*b,4)}, v2, {sr(SRD_T,4)}, 0 offen offset:{64*b}{fl}")
        k.e(f"buffer_store_dwordx4 {vr(16+8*b,4)}, v2, {sr(SRD_T,4)}, 0 offen offset:{64*b+16}{fl}")

HDR = """; Kernarg layout for this problem (72 bytes, ptrs only, base s[0:1]):
;   offset   0: d_in[0] A_x  shape=(1, 2048, 512) dtype=bfloat16
;   offset   8: d_in[1] A_wqkv  shape=(512, 1536) dtype=bfloat16
;   offset  16: d_in[2] A_wo  shape=(512, 512) dtype=bfloat16
;   offset  24: d_in[3] B_x  shape=(1, 2048, 512) dtype=bfloat16
;   offset  32: d_in[4] B_wqkv  shape=(512, 1536) dtype=bfloat16
;   offset  40: d_in[5] B_wo  shape=(512, 512) dtype=bfloat16
;   offset  48: d_out     shape=(1, 2048, 1024) dtype=bfloat16
;   offset  56: d_debug   256 bytes
;   offset  64: d_ws      268435456 bytes workspace
; @launch grid=(256,1,1) block=(512,1,1) lds=163840
.amdgcn_target "amdgcn-amd-amdhsa--gfx950"
.text
.globl KNAME
.p2align 8
.type KNAME,@function
""".replace("KNAME", KNAME)

TAIL = """.section .rodata,"a"
.p2align 6
.amdhsa_kernel KNAME
  .amdhsa_next_free_vgpr 256
  .amdhsa_next_free_sgpr 102
  .amdhsa_accum_offset 256
  .amdhsa_group_segment_fixed_size 0
  .amdhsa_kernarg_size 72
  .amdhsa_user_sgpr_count 2
  .amdhsa_user_sgpr_kernarg_segment_ptr 1
  .amdhsa_system_sgpr_workgroup_id_x 1
.end_amdhsa_kernel
""".replace("KNAME", KNAME)

def build(stamps=False):
    k = gen(stamps)
    body = "\n".join(k.L)
    body = body.replace("PF_BACK", f"((L_pc - {KNAME}) & 0xffffff00)")
    pad = "\n    .fill 2048, 4, 0xbf800000\n"
    hdr, tail = HDR, TAIL
    if OPT['extra']:
        hdr = hdr.replace("; @launch grid=(256,1,1) block=(512,1,1) lds=163840", f"; @launch kernel={KNAME} grid=(256,1,1) block=(512,1,1) lds=163840\n; @launch kernel=nop_kernel grid=(1,1,1) block=(64,1,1) lds=0")
        pad += ".globl nop_kernel\n.p2align 8\n.type nop_kernel,@function\nnop_kernel:\n    s_endpgm\n"
        tail += """.p2align 6
.amdhsa_kernel nop_kernel
  .amdhsa_next_free_vgpr 8
  .amdhsa_next_free_sgpr 16
  .amdhsa_accum_offset 8
  .amdhsa_group_segment_fixed_size 0
  .amdhsa_kernarg_size 72
  .amdhsa_user_sgpr_count 2
  .amdhsa_user_sgpr_kernarg_segment_ptr 1
  .amdhsa_system_sgpr_workgroup_id_x 1
.end_amdhsa_kernel
"""
    return hdr + body + pad + "\n" + tail

if __name__ == "__main__":
    out = sys.argv[1] if len(sys.argv) > 1 else "out.s"
    stamps = "stamps" in sys.argv[2:]
    for a in sys.argv[2:]:
        if "=" in a:
            kk, vv = a.split("="); OPT[kk] = int(vv)
    txt = build(stamps)
    open(out, "w").write(txt)
    import hz
    pr = hz.check(txt)
    import subprocess
    r = subprocess.run(["clang", "-x", "assembler", "-target", "amdgcn-amd-amdhsa", "-mcpu=gfx950", "-c", out, "-o", "_chk.o"], capture_output=True, text=True)
    print("hazards:", len(pr), "lines:", txt.count("\n"), "asm:", "ok" if r.returncode == 0 else r.stderr)
```

```python
import sys, math, struct

KNAME = "concat_heads__linear_attn_block__sliding_block__prompt_kernel"

KB_G   = 0
VB_G   = 2 << 20
O_G    = 4 << 20
KVACC  = 8 << 20
FL     = (8 << 20) + (64 << 10)
F1B    = FL
F1A    = FL + (32 << 10)
F2     = FL + (96 << 10)
STAMP  = 9 << 20
SLOT   = 32768
OK_L, OV_L, Q_L, PQ_L = 131072, 139264, 147456, 155648
NONCE_L = PQ_L
RK_L, RV_L, WO_L = 0, 32768, 65536
CS = 0.25 * math.log2(math.e)
LOG2E = math.log2(math.e)
BIG = 1.0e28
SPIN_MAX = 100000
OPT = dict(rot=8, pfB=0, pfA=1, dbgstamps=0, stagest=0, pfs=1, tpf=0, p3st=0, map=0, outf=0, extra=0, sigs=9, pf0=0, late9=0, remdma=1, m16=0, npre=16, pf4=0, pkphi=1, prio=0, kvprio=1, pollp=6, sigp=3, fixdur=0)

def f2u(x): return struct.unpack('<I', struct.pack('<f', x))[0]
def lit(x): return "0x%08x" % f2u(x)

class K:
    def __init__(self, stamps=False):
        self.L = []; self.stamps = stamps; self.uid = 0; self.inp1 = False
    def e(self, s):
        if self.inp1 and OPT['m16'] and s.startswith("v_mfma_f32_32x32x16_bf16"):
            import re
            m = re.match(r"v_mfma_f32_32x32x16_bf16 v\[(\d+):\d+\], (v\[\d+:\d+\]), (v\[\d+:\d+\]), (.*)", s)
            d = int(m.group(1)); c = m.group(4)
            for h in range(2):
                cc = "0" if c == "0" else f"v[{d+4*h}:{d+4*h+3}]"
                self.L.append(f"    v_mfma_f32_16x16x32_bf16 v[{d+4*h}:{d+4*h+3}], {m.group(2)}, {m.group(3)}, {cc}")
            return
        self.L.append("    " + s)
    def c(self, s): self.L.append("    ; " + s)
    def lab(self, s): self.L.append(s + ":")
    def u(self, p):
        self.uid += 1; return f"L_{p}_{self.uid}"
    def stamp(self, k):
        if not self.stamps: return
        self.e("s_memrealtime s[70:71]")
        self.e("s_waitcnt lgkmcnt(0)")
        self.e(f"s_mov_b32 s{72+k}, s70")

def vr(a, n): return f"v[{a}:{a+n-1}]"
def sr(a, n): return f"s[{a}:{a+n-1}]"
MF = "v_mfma_f32_32x32x16_bf16"

S_WAVE, S_RB, S_G, S_NONCE = 22, 23, 24, 25
SRD_WS, SRD_X, SRD_W, SRD_T, SRD_WO = 28, 32, 36, 40, 44
P_AX, P_AW, P_AWO, P_BX, P_BW, P_BWO, P_OUT, P_DBG, P_WS = 4, 6, 8, 10, 12, 14, 16, 18, 20
WS = sr(SRD_WS, 4)

def srd(k, dst, ptr, size):
    k.e(f"s_mov_b32 s{dst}, s{ptr}")
    k.e(f"s_mov_b32 s{dst+1}, s{ptr+1}")
    k.e(f"s_mov_b32 s{dst+2}, 0x{size:x}")
    k.e(f"s_mov_b32 s{dst+3}, 0x20000")

def spin_guard(k, sreg, exit_label):
    k.e(f"s_add_u32 s{sreg}, s{sreg}, 1")
    k.e(f"s_cmp_gt_u32 s{sreg}, {SPIN_MAX}")
    k.e(f"s_cbranch_scc1 {exit_label}")

def poll_flags(k, vaddr, vtmp, name, first_issued=False, sleep=1):
    lp = k.u(name + "_poll"); ex = k.u(name + "_done"); chk = k.u(name + "_chk")
    k.e("s_mov_b32 s60, 0")
    if first_issued: k.e(f"s_branch {chk}")
    k.lab(lp)
    k.e(f"buffer_load_dword v{vtmp}, v{vaddr}, {WS}, 0 offen sc1")
    k.lab(chk)
    spin_guard(k, 60, ex)
    k.e("s_waitcnt vmcnt(0)")
    k.e(f"v_cmp_ne_u32 vcc, s{S_NONCE}, v{vtmp}")
    k.e("s_nop 1")
    k.e(f"s_cbranch_vccz {ex}")
    if sleep: k.e(f"s_sleep {sleep}")
    k.e(f"s_branch {lp}")
    k.lab(ex)
    k.e("s_waitcnt vmcnt(0)")

def store_flag(k, soff):
    k.e(f"v_mov_b32 v250, s{S_NONCE}")
    k.e("v_mov_b32 v251, 0")
    k.e("s_mov_b64 exec, 1")
    k.e(f"buffer_store_dword v250, v251, {WS}, s{soff} offen sc1")
    k.e("s_mov_b64 exec, -1")

def cvt8(k, dst, src):
    for j in range(4): k.e(f"v_cvt_pk_bf16_f32 v{dst+j}, v{src+2*j}, v{src+2*j+1}")

def phi(k, r, n, t):
    if not OPT['pkphi']:
        for i in range(0, n, 4):
            for j in range(4): k.e(f"v_mul_f32 v{t+j}, s61, v{r+i+j}")
            for j in range(4): k.e(f"v_exp_f32 v{t+j}, v{t+j} clamp")
            for j in range(4): k.e(f"v_max_f32 v{r+i+j}, 0, v{r+i+j}")
            for j in range(4): k.e(f"v_add_f32 v{r+i+j}, s62, v{r+i+j}")
            for j in range(4): k.e(f"v_add_f32 v{r+i+j}, v{t+j}, v{r+i+j}")
        return
    for i in range(0, n, 8):
        for j in range(0, 8, 2): k.e(f"v_pk_mul_f32 {vr(t+j,2)}, {vr(r+i+j,2)}, s[66:67]")
        for j in range(8): k.e(f"v_exp_f32 v{t+j}, v{t+j} clamp")
        for j in range(8): k.e(f"v_max_f32 v{r+i+j}, 0, v{r+i+j}")
        for j in range(0, 8, 2): k.e(f"v_pk_add_f32 {vr(r+i+j,2)}, {vr(r+i+j,2)}, s[62:63]")
        for j in range(0, 8, 2): k.e(f"v_pk_add_f32 {vr(r+i+j,2)}, {vr(r+i+j,2)}, {vr(t+j,2)}")

ACC = 8
BUF = [72, 88, 104, 120]
VXA, VWA = 136, 140
EP = 144
PFD = 208

def rd_x(k, buf, j, t): k.e(f"ds_read_b128 {vr(BUF[buf]+4*t,4)}, v{VXA+j} offset:{t*4096}")
def rd_w(k, buf, j, p, slot):
    for s2 in range(2):
        k.e(f"ds_read_b64_tr_b16 {vr(BUF[buf]+8+4*slot+2*s2,2)}, v{VWA} offset:{p*8192 + j*2048 + s2*512}")
def reads(k, role, buf, j):
    rd_x(k, buf, j, 0); rd_x(k, buf, j, 1)
    if role == 'kv': rd_w(k, buf, j, 1, 0); rd_w(k, buf, j, 2, 1)
    else: rd_w(k, buf, j, 0, 0)

def kstep(k, role, br, j, first=False, noreads=False, wait=None):
    nb = (j + 2) & 3; b = BUF[j]
    if noreads:
        X = [vr(b,4), vr(b+4,4)]; W = [vr(b+8,4), vr(b+12,4)]
        k.e(f"s_waitcnt lgkmcnt({wait})")
        for t in range(2):
            a = ACC + 16*t
            if role == 'kv' and br == 'A': k.e(f"{MF} {vr(a,16)}, {X[t]}, {W[0]}, {vr(a,16)}")
            else: k.e(f"{MF} {vr(a,16)}, {W[0]}, {X[t]}, {vr(a,16)}")
        if role == 'kv':
            for t in range(2):
                a = ACC + 32 + 16*t
                k.e(f"{MF} {vr(a,16)}, {X[t]}, {W[1]}, {vr(a,16)}")
        return
    X = [vr(b,4), vr(b+4,4)]; W = [vr(b+8,4), vr(b+12,4)]
    def C(a): return "0" if first else vr(a,16)
    if role == 'kv':
        k.e("s_waitcnt lgkmcnt(6)")
        for t in range(2):
            a = ACC + 16*t
            if br == 'B': k.e(f"{MF} {vr(a,16)}, {W[0]}, {X[t]}, {C(a)}")
            else:         k.e(f"{MF} {vr(a,16)}, {X[t]}, {W[0]}, {C(a)}")
            if t == 0: rd_x(k, nb, nb, 0); rd_x(k, nb, nb, 1)
            else: rd_w(k, nb, nb, 1, 0)
        for t in range(2):
            a = ACC + 32 + 16*t
            k.e(f"{MF} {vr(a,16)}, {X[t]}, {W[1]}, {C(a)}")
            if t == 0: rd_w(k, nb, nb, 2, 1)
    else:
        k.e("s_waitcnt lgkmcnt(4)")
        for t in range(2):
            a = ACC + 16*t
            k.e(f"{MF} {vr(a,16)}, {W[0]}, {X[t]}, {C(a)}")
            if t == 0: rd_x(k, nb, nb, 0); rd_x(k, nb, nb, 1)
            else: rd_w(k, nb, nb, 0, 0)

def consumer_tile(k, role, br, extra=None):
    lp = k.u("c"+role+br); ex = k.u("cx"+role+br)
    k.inp1 = True
    k.e("s_mov_b32 s48, 0")
    kstep(k, role, br, 0, first=True)
    k.lab(lp)
    k.e("s_add_u32 s49, s49, 1")
    k.e("s_and_b32 s50, s49, 3")
    k.e("s_cmp_eq_u32 s50, 0")
    k.e(f"s_cselect_b32 s50, 0x{(-3*SLOT) & 0xffffffff:x}, s69")
    kstep(k, role, br, 1)
    if extra: extra(k)
    if br == 'A' and role == 'kv':
        sk = k.u("novm")
        k.e(f"s_cmp_eq_u32 s48, {OPT['sigs']-8}")
        k.e(f"s_cbranch_scc0 {sk}")
        k.e("s_waitcnt vmcnt(0)")
        k.lab(sk)
    for j in range(4): k.e(f"v_add_u32 v{VXA+j}, s50, v{VXA+j}")
    k.e(f"v_add_u32 v{VWA}, s50, v{VWA}")
    k.e("s_barrier")
    k.e("s_cmp_lt_u32 s48, 7")
    k.e(f"s_cbranch_scc0 {ex}")
    kstep(k, role, br, 2)
    kstep(k, role, br, 3)
    k.e("s_add_u32 s48, s48, 1")
    kstep(k, role, br, 0)
    k.e(f"s_branch {lp}")
    k.lab(ex)
    n = 6 if role == 'kv' else 4
    kstep(k, role, br, 2, noreads=True, wait=n)
    kstep(k, role, br, 3, noreads=True, wait=0)
    k.inp1 = False

def consumer_setup(k):
    k.e("v_and_b32 v1, 31, v0")
    k.e("v_lshrrev_b32 v2, 5, v0")
    k.e("v_bfe_u32 v3, v0, 1, 3")
    k.e("v_xor_b32 v3, v3, v2")
    k.e("v_lshlrev_b32 v3, 4, v3")
    k.e("v_lshlrev_b32 v1, 7, v1")
    k.e(f"v_add_u32 v{VXA}, v1, v3")
    for j in range(1, 4): k.e(f"v_xor_b32 v{VXA+j}, {j<<5}, v{VXA}")
    k.e("v_bfe_u32 v1, v0, 2, 2")
    k.e("v_and_b32 v2, 3, v0")
    k.e("v_bfe_u32 v3, v0, 4, 1")
    k.e("v_lshrrev_b32 v4, 5, v0")
    k.e("v_lshlrev_b32 v4, 3, v4")
    k.e("v_add_u32 v4, v4, v1")
    k.e("v_lshlrev_b32 v4, 7, v4")
    k.e("v_lshlrev_b32 v3, 1, v3")
    k.e("v_lshrrev_b32 v5, 1, v2")
    k.e("v_add_u32 v3, v3, v5")
    k.e("s_lshl_b32 s48, s27, 2")
    k.e("v_add_u32 v3, s48, v3")
    k.e("v_and_b32 v5, 2, v1")
    k.e("v_lshlrev_b32 v5, 1, v5")
    k.e("v_xor_b32 v3, v3, v5")
    k.e("v_lshlrev_b32 v3, 4, v3")
    k.e("v_and_b32 v2, 1, v2")
    k.e("v_lshlrev_b32 v2, 3, v2")
    k.e("v_add3_u32 v4, v4, v3, v2")
    k.e(f"v_add_u32 v{VWA}, 8192, v4")

def read_nonce(k, va, vb):
    k.e(f"v_mov_b32 v{va}, {NONCE_L}")
    k.e(f"ds_read_b32 v{vb}, v{va}")
    k.e("s_waitcnt lgkmcnt(0)")
    k.e(f"v_readfirstlane_b32 s{S_NONCE}, v{vb}")

def pf_setup(k, pw, px):
    k.e("s_and_b32 s50, s2, 7")
    k.e("s_lshr_b32 s51, s2, 3")
    k.e("v_lshrrev_b32 v5, 2, v0")
    k.e("s_lshl_b32 s52, s51, 4")
    k.e("v_add_u32 v5, s52, v5")
    k.e("v_mul_u32_u24 v5, 3072, v5")
    k.e("v_and_b32 v6, 3, v0")
    k.e("s_lshr_b32 s52, s50, 2")
    k.e("s_lshl_b32 s52, s52, 2")
    k.e("v_add_u32 v6, s52, v6")
    k.e("v_lshlrev_b32 v6, 7, v6")
    k.e("v_add_u32 v5, v5, v6")
    k.e("v_lshlrev_b32 v6, 7, v0")
    k.e("s_and_b32 s52, s50, 3")
    k.e("s_lshl_b32 s52, s52, 9")
    k.e("s_lshl_b32 s53, s51, 4")
    k.e("s_add_u32 s52, s52, s53")
    k.e("s_lshl_b32 s66, s52, 10")
    k.e("s_lshl_b32 s67, s51, 14")
    k.e("s_lshr_b32 s68, s50, 2")

def gen(stamps=False):
    k = K(stamps)
    k.lab(KNAME)
    k.e("s_cmp_ge_u32 s2, 256")
    k.e("s_cbranch_scc1 L_end")
    if stamps: k.e("s_memrealtime s[70:71]")
    if OPT['fixdur']: k.e("s_memrealtime s[100:101]")
    k.e("s_load_dwordx16 s[4:19], s[0:1], 0")
    k.e("s_load_dwordx2 s[20:21], s[0:1], 64")
    k.e("v_lshrrev_b32 v1, 6, v0")
    k.e("v_and_b32 v0, 63, v0")
    k.e(f"v_readfirstlane_b32 s{S_WAVE}, v1")
    k.e("s_and_b32 s26, s2, 7")
    k.e("s_lshr_b32 s27, s2, 3")
    k.e("s_and_b32 s48, s26, 3")
    k.e("s_lshl_b32 s48, s48, 3")
    if OPT['map'] == 0:
        k.e("s_and_b32 s49, s27, 7")
    else:
        k.e("s_lshr_b32 s49, s27, 2")
    k.e(f"s_add_u32 s{S_RB}, s48, s49")
    k.e("s_lshr_b32 s48, s26, 2")
    k.e("s_lshl_b32 s48, s48, 2")
    if OPT['map'] == 0:
        k.e("s_lshr_b32 s49, s27, 3")
    else:
        k.e("s_and_b32 s49, s27, 3")
    k.e(f"s_add_u32 s{S_G}, s48, s49")
    k.e(f"s_cmp_lt_u32 s{S_WAVE}, 4")
    k.e("s_cbranch_scc1 L_consumer")

    loader(k)
    k.e("s_branch L_attn")

    k.lab("L_consumer")
    k.e("s_waitcnt lgkmcnt(0)")
    if OPT['fixdur']: k.e("s_mov_b32 s3, s100")
    if stamps: k.e("s_mov_b32 s72, s70")
    srd(k, SRD_WS, P_WS, 256 << 20)
    srd(k, SRD_T, P_DBG, 256)
    srd(k, SRD_X, P_AW, 512*3072)
    k.e(f"s_and_b32 s27, s{S_WAVE}, 1")
    consumer_setup(k)
    attn_setup(k)
    nn = k.u("nononce")
    k.e(f"s_cmp_eq_u32 s{S_WAVE}, 0")
    k.e(f"s_cbranch_scc0 {nn}")
    k.e("v_mov_b32 v2, 0")
    nl = k.u("nolead")
    k.e("s_cmp_eq_u32 s2, 0")
    k.e(f"s_cbranch_scc0 {nl}")
    k.e("s_memrealtime s[58:59]")
    k.e("s_waitcnt lgkmcnt(0)")
    k.e("s_or_b32 s58, s58, 1")
    k.e("v_mov_b32 v3, s58")
    k.e(f"buffer_store_dword v3, v2, {sr(SRD_T,4)}, 0 offen sc1")
    k.lab(nl)
    k.lab(nn)
    k.e("s_mov_b32 s49, 0")
    k.e(f"s_mov_b32 s69, {SLOT}")
    k.e(f"s_cmp_ge_u32 s{S_WAVE}, 2")
    k.e("s_cbranch_scc1 L_qwave")

    k.e("s_barrier")
    k.stamp(1)
    reads(k, 'kv', 0, 0); reads(k, 'kv', 1, 1)
    consumer_tile(k, 'kv', 'B')
    k.stamp(2)
    k.c("B epilogue (kv)")
    read_nonce(k, 2, 3)
    k.e(f"s_lshl_b32 s62, s{S_G}, 2")
    k.e("s_lshl_b32 s63, s27, 1")
    k.e("s_add_u32 s62, s62, s63")
    k.e("s_lshl_b32 s62, s62, 6")
    k.e(f"s_lshl_b32 s63, s{S_RB}, 1")
    k.e("s_add_u32 s62, s62, s63")
    k.e("s_lshl_b32 s62, s62, 10")
    k.e("v_lshlrev_b32 v1, 4, v0")
    k.e("s_lshl_b32 s63, s27, 12")
    k.e(f"s_add_u32 s63, s63, {OK_L}")
    k.e("v_add_u32 v4, s63, v1")
    k.e("v_bfe_u32 v2, v0, 4, 1")
    k.e("v_lshrrev_b32 v3, 5, v0")
    k.e("v_lshlrev_b32 v3, 8, v3")
    k.e("v_and_b32 v5, 15, v0")
    k.e("v_lshlrev_b32 v5, 4, v5")
    k.e("v_add_u32 v3, v3, v5")
    k.e("v_lshlrev_b32 v5, 11, v2")
    k.e("v_add_u32 v5, v5, v3")
    k.e(f"s_add_u32 s63, s63, {OV_L - OK_L}")
    k.e("v_add_u32 v5, s63, v5")
    k.e("v_lshlrev_b32 v2, 16, v2")
    k.e("v_add_u32 v2, v2, v3")
    k.e(f"s_add_u32 s64, s62, {KB_G + 65536}")
    k.e(f"s_add_u32 s65, s62, {VB_G}")
    k.e("s_nop 3")
    for t in range(2):
        KF = EP + 16*t; VF = KF + 8
        cvt8(k, KF, ACC+16*t); cvt8(k, KF+4, ACC+16*t+8)
        cvt8(k, VF, ACC+32+16*t); cvt8(k, VF+4, ACC+32+16*t+8)
        k.e(f"buffer_store_dwordx4 {vr(KF,4)}, v1, {WS}, s62 offen offset:{t*1024} sc1")
        k.e(f"buffer_store_dwordx4 {vr(KF+4,4)}, v1, {WS}, s64 offen offset:{t*1024} sc1")
        k.e(f"buffer_store_dwordx4 {vr(VF,4)}, v2, {WS}, s65 offen offset:{t*1024} sc1")
        k.e(f"buffer_store_dwordx4 {vr(VF+4,4)}, v2, {WS}, s65 offen offset:{t*1024+512} sc1")
        k.e(f"ds_write_b128 v4, {vr(KF,4)} offset:{t*1024}")
        k.e(f"ds_write_b128 v4, {vr(KF+4,4)} offset:{t*1024+2048}")
        k.e(f"ds_write_b128 v5, {vr(VF,4)} offset:{t*1024}")
        k.e(f"ds_write_b128 v5, {vr(VF+4,4)} offset:{t*1024+512}")
    k.stamp(3)
    k.e("s_barrier")
    reads(k, 'kv', 0, 0); reads(k, 'kv', 1, 1)
    consumer_tile(k, 'kv', 'A')
    k.e("s_waitcnt lgkmcnt(0)")
    k.e("s_barrier")
    k.stamp(4)
    k.c("A epilogue (kv)")
    if OPT['kvprio']: k.e("s_setprio 2")
    T = 72
    k.e(f"s_mov_b32 s61, {lit(LOG2E)}")
    k.e(f"s_mov_b32 s62, {lit(1e-6)}")
    k.e("s_mov_b32 s63, s62")
    k.e("s_mov_b32 s66, s61")
    k.e("s_mov_b32 s67, s61")
    PK, VV, ONES = 80, 96, 112
    for j in range(4): k.e(f"v_mov_b32 v{ONES+j}, 0x3f803f80")
    k.e("s_nop 3")
    for t in range(2):
        cvt8(k, VV+8*t, ACC+32+16*t); cvt8(k, VV+8*t+4, ACC+32+16*t+8)
    DKV, DZ = ACC+32, ACC+48
    for t in range(2):
        phi(k, ACC+16*t, 16, T)
        cvt8(k, PK+8*t, ACC+16*t); cvt8(k, PK+8*t+4, ACC+16*t+8)
        k.e("s_nop 1")
        for m in range(2):
            first = (t == 0 and m == 0)
            k.e(f"{MF} {vr(DKV,16)}, {vr(PK+8*t+4*m,4)}, {vr(VV+8*t+4*m,4)}, {'0' if first else vr(DKV,16)}")
            k.e(f"{MF} {vr(DZ,16)}, {vr(ONES,4)}, {vr(PK+8*t+4*m,4)}, {'0' if first else vr(DZ,16)}")
    k.e("s_mov_b32 s64, 0xffff0000")
    k.e("s_mov_b32 s65, 0xffff0000")
    k.e(f"s_lshl_b32 s63, s{S_G}, 1")
    k.e("s_add_u32 s63, s63, s27")
    k.e("s_lshl_b32 s63, s63, 12")
    k.e(f"s_add_u32 s63, s63, {KVACC}")
    k.e("v_lshlrev_b32 v3, 2, v0")
    k.e("s_nop 5")
    RS = 120
    for t in range(8): k.e(f"v_cndmask_b32 v{RS+t}, v{DKV+t}, v{DKV+8+t}, s[64:65]")
    for t in range(8): k.e(f"buffer_atomic_add_f32 v{RS+t}, v3, {WS}, s63 offen offset:{t*256}")
    k.e("s_mov_b32 exec_hi, 0")
    k.e(f"buffer_atomic_add_f32 v{DZ}, v3, {WS}, s63 offen offset:2048")
    k.e("s_mov_b64 exec, -1")
    if OPT['kvprio']: k.e("s_setprio 0")
    k.e("s_branch L_e1")

    k.lab("L_qwave")
    k.e("v_mov_b32 v251, 0")
    k.e("s_barrier")
    k.stamp(1)
    reads(k, 'q', 0, 0); reads(k, 'q', 1, 1)
    def pf_extra(k):
        ex = k.u("pfx"); w3 = k.u("pfw3")
        n1 = k.u("nn1"); n2 = k.u("nn2")
        k.e(f"s_cmp_eq_u32 s{S_WAVE}, 2")
        k.e(f"s_cbranch_scc0 {n2}")
        k.e("s_cmp_eq_u32 s48, 0")
        k.e(f"s_cbranch_scc0 {n1}")
        k.e(f"buffer_load_dword v7, v251, {sr(SRD_T,4)}, 0 offen sc1")
        k.lab(n1)
        k.e("s_cmp_eq_u32 s48, 6")
        k.e(f"s_cbranch_scc0 {n2}")
        lp = k.u("np"); npx = k.u("npx"); chk = k.u("npc")
        k.e("s_mov_b32 s60, 0")
        k.e(f"s_branch {chk}")
        k.lab(lp)
        k.e(f"buffer_load_dword v7, v251, {sr(SRD_T,4)}, 0 offen sc1")
        k.lab(chk)
        spin_guard(k, 60, npx)
        k.e("s_waitcnt vmcnt(0)")
        k.e("v_readfirstlane_b32 s58, v7")
        k.e("s_nop 0")
        k.e("s_cmp_eq_u32 s58, 0")
        k.e(f"s_cbranch_scc1 {lp}")
        k.lab(npx)
        k.e("s_waitcnt vmcnt(0)")
        k.e(f"v_mov_b32 v250, {NONCE_L}")
        k.e("ds_write_b32 v250, v7")
        k.lab(n2)
    consumer_tile(k, 'q', 'B', pf_extra)
    k.stamp(2)
    k.c("B epilogue (q)")
    read_nonce(k, 2, 3)
    k.e(f"s_mov_b32 s61, {lit(CS)}")
    k.e("v_lshlrev_b32 v1, 4, v0")
    k.e("s_lshl_b32 s63, s27, 12")
    k.e(f"s_add_u32 s63, s63, {Q_L}")
    k.e("v_add_u32 v4, s63, v1")
    k.e("s_nop 6")
    for t in range(2):
        for i in range(16): k.e(f"v_mul_f32 v{ACC+16*t+i}, s61, v{ACC+16*t+i}")
        QF = EP + 8*t
        cvt8(k, QF, ACC+16*t); cvt8(k, QF+4, ACC+16*t+8)
        k.e(f"ds_write_b128 v4, {vr(QF,4)} offset:{t*1024}")
        k.e(f"ds_write_b128 v4, {vr(QF+4,4)} offset:{t*1024+2048}")
    k.stamp(3)
    k.e("s_barrier")
    reads(k, 'q', 0, 0); reads(k, 'q', 1, 1)
    consumer_tile(k, 'q', 'A')
    k.e("s_waitcnt lgkmcnt(0)")
    k.e("s_barrier")
    k.stamp(4)
    k.c("A epilogue (q)")
    k.e(f"s_mov_b32 s61, {lit(LOG2E)}")
    k.e(f"s_mov_b32 s62, {lit(1e-6)}")
    k.e("s_mov_b32 s63, s62")
    k.e("s_mov_b32 s66, s61")
    k.e("s_mov_b32 s67, s61")
    k.e("v_lshlrev_b32 v1, 4, v0")
    k.e("s_lshl_b32 s65, s27, 12")
    k.e(f"s_add_u32 s65, s65, {PQ_L}")
    k.e("v_add_u32 v4, s65, v1")
    k.e("s_nop 4")
    for t in range(2):
        phi(k, ACC+16*t, 16, 72)
        QF = EP + 8*t
        cvt8(k, QF, ACC+16*t); cvt8(k, QF+4, ACC+16*t+8)
        k.e(f"ds_write_b128 v4, {vr(QF,4)} offset:{t*1024}")
        k.e(f"ds_write_b128 v4, {vr(QF+4,4)} offset:{t*1024+2048}")
    k.e("s_waitcnt lgkmcnt(0)")
    k.lab("L_e1")

    k.lab("L_attn")
    if OPT['prio']:
        sk = k.u("prio")
        k.e(f"s_cmp_ge_u32 s{S_WAVE}, 4")
        k.e(f"s_cbranch_scc{0 if OPT['prio'] == 1 else 1} {sk}")
        k.e("s_setprio 1")
        k.lab(sk)
    k.stamp(7)
    attention(k)
    k.stamp(9)
    apart(k)
    k.stamp(10)
    k.e("s_waitcnt vmcnt(0) lgkmcnt(0)")
    k.e("s_barrier")
    k.stamp(11)
    sk = k.u("nof2")
    k.e(f"s_cmp_eq_u32 s{S_WAVE}, 4")
    k.e(f"s_cbranch_scc0 {sk}")
    k.e(f"s_lshr_b32 s48, s{S_RB}, 1")
    k.e("s_lshl_b32 s48, s48, 11")
    k.e(f"s_and_b32 s49, s{S_RB}, 1")
    k.e("s_lshl_b32 s49, s49, 3")
    k.e(f"s_add_u32 s49, s49, s{S_G}")
    k.e("s_lshl_b32 s49, s49, 7")
    k.e("s_add_u32 s48, s48, s49")
    k.e(f"s_add_u32 s48, s48, {F2}")
    store_flag(k, 48)
    k.lab(sk)
    p3(k)
    k.lab("L_fin")
    if OPT['fixdur']:
        lp = k.u("fix")
        k.lab(lp)
        k.e("s_memrealtime s[90:91]")
        k.e("s_waitcnt lgkmcnt(0)")
        k.e("s_sub_u32 s90, s90, s3")
        k.e(f"s_cmp_lt_u32 s90, {OPT['fixdur']}")
        k.e(f"s_cbranch_scc1 {lp}")
    if stamps:
        k.stamp(13)
        k.e(f"s_lshl_b32 s48, s2, 3")
        k.e(f"s_add_u32 s48, s48, s{S_WAVE}")
        k.e("s_lshl_b32 s48, s48, 6")
        k.e(f"s_add_u32 s48, s48, {STAMP}")
        k.e("v_mov_b32 v9, 0")
        for j in range(16):
            k.e(f"v_mov_b32 v8, s{72+j}")
            k.e(f"buffer_store_dword v8, v9, {WS}, s48 offen offset:{4*j}")
            k.e("s_nop 0")
    if stamps and OPT['dbgstamps']:
        sk = k.u("nodbg")
        srd(k, SRD_T, P_DBG, 256)
        k.e(f"s_cmp_eq_u32 s2, {OPT['dbgstamps']}")
        k.e(f"s_cbranch_scc0 {sk}")
        k.e(f"s_cmp_eq_u32 s{S_WAVE}, 0")
        k.e(f"s_cbranch_scc0 {sk}")
        k.e("v_mov_b32 v9, 0")
        for j in range(1, 14):
            k.e(f"s_sub_u32 s48, s{72+j}, s72")
            k.e("v_mov_b32 v8, s48")
            k.e(f"buffer_store_dword v8, v9, {sr(SRD_T,4)}, 0 offen offset:{4*j}")
            k.e("s_nop 0")
        k.lab(sk)
    if OPT['stagest']:
        sk = k.u("nost")
        k.e(f"s_cmp_eq_u32 s{S_WAVE}, 4")
        k.e(f"s_cbranch_scc0 {sk}")
        k.e("s_lshl_b32 s48, s2, 8")
        k.e(f"s_add_u32 s48, s48, {STAMP + (1<<19)}")
        k.e("v_lshlrev_b32 v9, 2, v0")
        k.e(f"buffer_store_dword v252, v9, {WS}, s48 offen")
        k.lab(sk)
    k.lab("L_end")
    k.e("s_endpgm")
    return k

def issue_stage(k):
    k.e("s_lshl_b32 s52, s59, 7")
    k.e("s_mul_i32 s53, s59, 196608")
    k.e("s_mov_b32 m0, s51")
    k.e("s_add_u32 s54, s53, 23552")
    k.e(f"buffer_load_dwordx4 v1, {sr(SRD_X,4)}, s52 offen lds")
    k.e(f"buffer_load_dwordx4 v2, {sr(SRD_X,4)}, s52 offen offset:1024 lds")
    for p in range(3):
        k.e(f"s_add_u32 s55, s51, {8192 + p*8192}")
        k.e("s_mov_b32 m0, s55")
        if p: k.e(f"s_add_u32 s56, s53, {p*1024}"); so0 = "s56"
        else: so0 = "s53"; k.e("s_nop 0")
        k.e(f"buffer_load_dwordx4 v3, {sr(SRD_W,4)}, {so0} offen lds")
        if p: k.e(f"s_add_u32 s56, s54, {p*1024}"); so1 = "s56"
        else: so1 = "s54"
        k.e(f"buffer_load_dwordx4 v3, {sr(SRD_W,4)}, {so1} offen offset:1024 lds")
    k.e("s_add_u32 s57, s57, 1")
    k.e("s_add_u32 s59, s59, 1")
    k.e("s_and_b32 s59, s59, 7")
    k.e(f"s_add_u32 s51, s51, {SLOT}")
    k.e("s_and_b32 s58, s57, 3")
    sk = k.u("nowrap")
    k.e("s_cmp_eq_u32 s58, 0")
    k.e(f"s_cbranch_scc0 {sk}")
    k.e(f"s_sub_u32 s51, s51, {4*SLOT}")
    k.lab(sk)
    sk2 = k.u("nosw")
    k.e("s_cmp_eq_u32 s57, 8")
    k.e(f"s_cbranch_scc0 {sk2}")
    srd(k, SRD_X, P_AX, 2 << 20)
    srd(k, SRD_W, P_AW, 512*3072)
    k.lab(sk2)

def pf0(k):
    k.e("s_and_b32 s50, s2, 7")
    k.e("s_lshr_b32 s52, s2, 3")
    wx = k.u("pf0x"); ex = k.u("pf0e")
    k.e("s_cmp_lt_u32 s26, 3")
    k.e(f"s_cbranch_scc0 {wx}")
    srd(k, SRD_T, P_AW, 512*3072)
    k.e("v_lshrrev_b32 v5, 2, v0")
    k.e("s_lshl_b32 s53, s52, 4")
    k.e("v_add_u32 v5, s53, v5")
    k.e("v_mul_u32_u24 v5, 3072, v5")
    k.e("v_and_b32 v6, 3, v0")
    k.e("s_lshr_b32 s53, s50, 2")
    k.e("s_lshl_b32 s53, s53, 2")
    k.e("v_add_u32 v6, s53, v6")
    k.e("v_lshlrev_b32 v6, 7, v6")
    k.e("v_add_u32 v5, v5, v6")
    k.e("s_lshl_b32 s53, s26, 10")
    k.e(f"buffer_load_dword v6, v5, {sr(SRD_T,4)}, s53 offen")
    k.e(f"buffer_load_dword v7, v5, {sr(SRD_T,4)}, s53 offen")
    k.e(f"s_branch {ex}")
    k.lab(wx)
    srd(k, SRD_T, P_AX, 2 << 20)
    k.e("s_and_b32 s53, s50, 3")
    k.e("s_lshl_b32 s53, s53, 9")
    k.e("s_lshl_b32 s54, s52, 4")
    k.e("s_add_u32 s53, s53, s54")
    k.e("s_lshl_b32 s53, s53, 10")
    k.e("v_lshlrev_b32 v5, 7, v0")
    k.e(f"buffer_load_dword v6, v5, {sr(SRD_T,4)}, s53 offen")
    k.e("s_add_u32 s53, s53, 8192")
    k.e(f"buffer_load_dword v7, v5, {sr(SRD_T,4)}, s53 offen")
    k.lab(ex)

def pfsetup(k):
    k.e("s_and_b32 s50, s2, 7")
    k.e("s_lshr_b32 s52, s2, 3")
    k.e("s_mov_b32 s66, 1")
    wx = k.u("pfwx"); wo = k.u("pfwo"); ex = k.u("pfex")
    k.e("s_cmp_lt_u32 s26, 2")
    k.e(f"s_cbranch_scc0 {wx}")
    srd(k, SRD_T, P_BW, 512*3072)
    k.e("v_min_u32 v4, 11, v0")
    k.e("v_lshrrev_b32 v5, 2, v4")
    k.e("v_lshlrev_b32 v5, 10, v5")
    k.e("v_and_b32 v4, 3, v4")
    k.e("s_lshr_b32 s53, s50, 2")
    k.e("s_lshl_b32 s53, s53, 2")
    k.e("v_add_u32 v4, s53, v4")
    k.e("v_lshlrev_b32 v4, 7, v4")
    k.e("s_lshl_b32 s53, s52, 1")
    k.e("s_add_u32 s53, s53, s26")
    k.e("s_mul_i32 s53, s53, 3072")
    k.e("v_add3_u32 v4, v4, v5, s53")
    k.e("s_mov_b32 s65, 196608")
    k.e("s_mov_b32 s64, 196608")
    k.e(f"s_branch {ex}")
    k.lab(wx)
    k.e("s_cmp_eq_u32 s26, 2")
    k.e(f"s_cbranch_scc0 {wo}")
    srd(k, SRD_T, P_BX, 2 << 20)
    k.e("v_min_u32 v4, 15, v0")
    k.e("s_and_b32 s53, s50, 3")
    k.e("s_lshl_b32 s53, s53, 9")
    k.e("s_lshl_b32 s54, s52, 4")
    k.e("s_add_u32 s53, s53, s54")
    k.e("v_add_u32 v4, s53, v4")
    k.e("v_lshlrev_b32 v4, 10, v4")
    k.e("s_mov_b32 s65, 128")
    k.e("s_mov_b32 s64, 128")
    k.e(f"s_branch {ex}")
    k.lab(wo)
    k.e("s_lshr_b32 s53, s50, 2")
    k.e("s_cmp_eq_u32 s53, 0")
    k.e(f"s_cselect_b32 s{SRD_T}, s{P_AWO}, s{P_BWO}")
    k.e(f"s_cselect_b32 s{SRD_T+1}, s{P_AWO+1}, s{P_BWO+1}")
    k.e(f"s_mov_b32 s{SRD_T+2}, 0x{512*1024:x}")
    k.e(f"s_mov_b32 s{SRD_T+3}, 0x20000")
    k.e("v_min_u32 v4, 8, v0")
    k.e("v_lshlrev_b32 v4, 7, v4")
    k.e("s_lshl_b32 s53, s52, 14")
    k.e("v_add_u32 v4, s53, v4")
    k.e("s_mov_b32 s65, 1152")
    k.e("s_mov_b32 s64, 0")
    k.lab(ex)

def pf_issue(k):
    sk = k.u("pfsw")
    k.e("s_cmp_eq_u32 s66, 8")
    k.e(f"s_cbranch_scc0 {sk}")
    k.e("s_cmp_lt_u32 s26, 3")
    k.e(f"s_cbranch_scc0 {sk}")
    k.e("s_mov_b32 s64, 0")
    k.e("s_cmp_lt_u32 s26, 2")
    k.e(f"s_cselect_b32 s{SRD_T}, s{P_AW}, s{P_AX}")
    k.e(f"s_cselect_b32 s{SRD_T+1}, s{P_AW+1}, s{P_AX+1}")
    k.lab(sk)
    k.e(f"buffer_load_dword v5, v4, {sr(SRD_T,4)}, s64 offen")
    k.e("s_add_u32 s64, s64, s65")
    k.e("s_add_u32 s66, s66, 1")

def loader(k):
    k.e(f"s_sub_u32 s26, s{S_WAVE}, 4")
    k.e("v_lshrrev_b32 v4, 3, v0")
    k.e("v_and_b32 v5, 7, v0")
    k.e("v_lshrrev_b32 v6, 1, v4")
    k.e("v_xor_b32 v7, v5, v6")
    k.e("v_lshlrev_b32 v7, 4, v7")
    k.e(f"s_lshl_b32 s48, s{S_RB}, 6")
    k.e("s_lshl_b32 s49, s26, 4")
    k.e("s_add_u32 s48, s48, s49")
    k.e("v_add_u32 v1, s48, v4")
    k.e("v_lshlrev_b32 v1, 10, v1")
    k.e("v_add_u32 v2, 7168, v1")
    k.e("v_add_u32 v1, v1, v7")
    k.e("v_xor_b32 v7, 64, v7")
    k.e("v_add_u32 v2, v2, v7")
    k.e("v_add_u32 v3, s49, v4")
    k.e("v_mul_u32_u24 v3, 3072, v3")
    k.e("v_and_b32 v6, 2, v4")
    k.e("v_lshlrev_b32 v6, 1, v6")
    k.e("v_xor_b32 v6, v5, v6")
    k.e("v_lshlrev_b32 v6, 4, v6")
    k.e(f"s_lshl_b32 s49, s{S_G}, 7")
    k.e("v_add3_u32 v3, v3, v6, s49")
    k.e("s_lshl_b32 s51, s26, 11")
    k.e("s_mov_b32 s57, 0")
    if OPT['rot'] == 9:
        k.e(f"s_and_b32 s59, s{S_G}, 3")
        k.e("s_sub_u32 s59, 3, s59")
        k.e("s_lshl_b32 s59, s59, 1")
        k.e(f"s_add_u32 s59, s59, s{S_RB}")
        k.e("s_and_b32 s59, s59, 7")
    elif OPT['rot'] == 8:
        k.e(f"s_and_b32 s59, s{S_G}, 3")
        k.e("s_lshl_b32 s59, s59, 1")
        k.e(f"s_add_u32 s59, s59, s{S_RB}")
        k.e("s_and_b32 s59, s59, 7")
    elif OPT['rot'] == 2:
        k.e(f"s_add_u32 s59, s{S_G}, s{S_RB}")
        k.e("s_and_b32 s59, s59, 1")
        k.e("s_lshl_b32 s59, s59, 2")
    elif OPT['rot'] == 4:
        k.e(f"s_add_u32 s59, s{S_G}, s{S_RB}")
        k.e("s_and_b32 s59, s59, 3")
        k.e("s_lshl_b32 s59, s59, 1")
    else:
        k.e("s_mov_b32 s59, 0")
    k.e("s_waitcnt lgkmcnt(0)")
    if OPT['fixdur']: k.e("s_mov_b32 s3, s100")
    if k.stamps: k.e("s_mov_b32 s72, s70")
    srd(k, SRD_X, P_BX, 2 << 20)
    srd(k, SRD_W, P_BW, 512*3072)
    issue_stage(k)
    if OPT['tpf']:
        pfsetup(k)
        for j in range(4): pf_issue(k)
    else:
        if OPT['pf0']: pf0(k)
        issue_stage(k)
    srd(k, SRD_WS, P_WS, 256 << 20)
    sk = k.u("nopf")
    k.e("s_cmp_eq_u32 s26, 3")
    k.e(f"s_cbranch_scc0 {sk}")
    k.e("s_getpc_b64 s[62:63]")
    k.lab("L_pc")
    k.e("s_and_b32 s62, s62, 0xffffff00")
    k.e("v_lshlrev_b32 v8, 7, v0")
    k.e(f"s_sub_u32 s62, s62, PF_BACK")
    k.e("s_subb_u32 s63, s63, 0")
    k.e("global_load_dword v9, v8, s[62:63]")
    k.e("v_add_u32 v8, 8192, v8")
    k.e("global_load_dword v10, v8, s[62:63]")
    k.e("v_add_u32 v8, 8192, v8")
    k.e("global_load_dword v11, v8, s[62:63]")
    k.lab(sk)
    attn_setup(k)
    ny = 4 if OPT['tpf'] else (10 if OPT['pf0'] else 8)
    k.e(f"s_waitcnt vmcnt({ny+3})")
    sk = k.u("w7")
    k.e("s_cmp_eq_u32 s26, 3")
    k.e(f"s_cbranch_scc1 {sk}")
    k.e(f"s_waitcnt vmcnt({ny})")
    k.lab(sk)
    k.e("s_barrier")
    if OPT['tpf']: issue_stage(k)
    issue_stage(k)
    sk = k.u("nozero")
    k.e(f"s_cmp_eq_u32 s{S_RB}, 0")
    k.e(f"s_cbranch_scc0 {sk}")
    k.e("s_cmp_lt_u32 s26, 2")
    k.e(f"s_cbranch_scc0 {sk}")
    k.e(f"s_lshl_b32 s48, s{S_G}, 1")
    k.e("s_add_u32 s48, s48, s26")
    k.e("s_lshl_b32 s48, s48, 12")
    k.e(f"s_add_u32 s48, s48, {KVACC}")
    for j in range(4): k.e(f"v_mov_b32 v{12+j}, 0")
    k.e("v_lshlrev_b32 v8, 4, v0")
    for j in range(3): k.e(f"buffer_store_dwordx4 v[12:15], v8, {WS}, s48 offen offset:{j*1024} sc1")
    k.e("s_waitcnt vmcnt(3)")
    k.lab(sk)
    k.stamp(1)
    k.e("s_mov_b32 s48, 0")
    lp = k.u("ldloop")
    k.lab(lp)
    w8 = k.u("w8"); w9 = k.u("w9"); wd = k.u("wd")
    k.e("s_cmp_eq_u32 s48, 7")
    k.e(f"s_cbranch_scc1 {wd}")
    if OPT['pf4']:
        w10 = k.u("w10"); nw = k.u("nw10")
        k.e(f"s_sub_u32 s49, s48, {OPT['pf4']+1}")
        k.e("s_cmp_lt_u32 s49, 2")
        k.e(f"s_cbranch_scc0 {nw}")
        k.e("s_waitcnt vmcnt(10)")
        k.e(f"s_branch {wd}")
        k.lab(nw)
    if not OPT['tpf']: k.e(f"s_branch {w8}")
    k.e("s_cmp_eq_u32 s48, 0")
    k.e(f"s_cbranch_scc1 {w8}")
    k.e("s_cmp_eq_u32 s48, 1")
    k.e(f"s_cbranch_scc1 {w9}")
    k.e("s_cmp_eq_u32 s48, 12")
    k.e(f"s_cbranch_scc1 {w9}")
    k.e("s_waitcnt vmcnt(10)")
    k.e(f"s_branch {wd}")
    k.lab(w9)
    k.e("s_waitcnt vmcnt(9)")
    k.e(f"s_branch {wd}")
    k.lab(w8)
    k.e("s_waitcnt vmcnt(8)")
    k.lab(wd)
    k.e("s_barrier")
    if OPT['stagest']:
        k.e("s_memrealtime s[90:91]"); k.e("s_waitcnt lgkmcnt(0)")
        k.e("s_mov_b32 m0, s48")
        k.e("s_nop 0")
        k.e("v_writelane_b32 v252, s90, m0")
    sk = k.u("nonn")
    k.e("s_cmp_eq_u32 s48, 7")
    k.e(f"s_cbranch_scc0 {sk}")
    read_nonce(k, 8, 9)
    k.lab(sk)
    sk = k.u("nosig2")
    k.e(f"s_cmp_eq_u32 s48, {OPT['sigs']}")
    k.e(f"s_cbranch_scc0 {sk}")
    k.e("s_cmp_eq_u32 s26, 0")
    k.e(f"s_cbranch_scc0 {sk}")
    k.e(f"s_lshl_b32 s49, s{S_G}, 12")
    k.e(f"s_lshl_b32 s50, s{S_RB}, 7")
    k.e("s_add_u32 s49, s49, s50")
    k.e(f"s_add_u32 s49, s49, {F1B}")
    store_flag(k, 49)
    k.lab(sk)
    if OPT['late9']:
        sk6 = k.u("skip6")
        k.e("s_cmp_eq_u32 s48, 6")
        k.e(f"s_cbranch_scc1 {sk6}")
    issue_stage(k)
    if OPT['late9']: k.lab(sk6)
    if OPT['pf4']:
        skp = k.u("nopf4")
        k.e(f"s_cmp_eq_u32 s48, {OPT['pf4']}")
        k.e(f"s_cbranch_scc0 {skp}")
        pf0(k)
        k.lab(skp)
    sk = k.u("nosig")
    k.e("s_cmp_eq_u32 s48, 7")
    k.e(f"s_cbranch_scc0 {sk}")
    if OPT['late9']: issue_stage(k)
    k.e("s_waitcnt vmcnt(16)")
    k.e("s_barrier")
    k.lab(sk)

    if OPT['tpf']:
        sk = k.u("nopfi")
        k.e("s_cmp_le_u32 s48, 10")
        k.e(f"s_cbranch_scc0 {sk}")
        pf_issue(k)
        k.lab(sk)
    k.e("s_add_u32 s48, s48, 1")
    k.e("s_cmp_lt_u32 s48, 12")
    k.e(f"s_cbranch_scc1 {lp}")
    k.e(f"s_sub_u32 s48, s{S_RB}, 4")
    k.e("v_add_u32 v8, s48, v0")
    k.e("v_max_i32 v8, 0, v8")
    k.e("v_cmp_gt_u32 vcc, 4, v0")
    k.e(f"s_lshl_b32 s49, s{S_G}, 12")
    k.e(f"s_add_u32 s49, s49, {F1B}")
    k.e("v_cndmask_b32 v8, 0, v8, vcc")
    k.e("v_lshlrev_b32 v8, 7, v8")
    k.e("v_add_u32 v8, s49, v8")
    k.e("s_cmp_eq_u32 s26, 0")
    k.e("s_cselect_b32 s62, 31, 15")
    k.e("s_mov_b32 s63, 0")
    k.e("s_waitcnt vmcnt(8)");  k.e("s_barrier")
    k.e("s_mov_b64 exec, s[62:63]")
    k.e(f"buffer_load_dword v9, v8, {WS}, 0 offen sc1")
    k.e("s_mov_b64 exec, -1")
    issue_stage(k)
    k.e("s_waitcnt vmcnt(9)");  k.e("s_barrier")
    lp = k.u("f1b_lp"); ok = k.u("f1b_ok")
    k.e("s_mov_b64 exec, s[62:63]")
    k.e("s_waitcnt vmcnt(8)")
    k.e(f"v_cmp_ne_u32 vcc, s{S_NONCE}, v9")
    k.e("s_nop 1")
    k.e(f"s_cbranch_vccz {ok}")
    poll_flags(k, 8, 9, "f1b")
    k.lab(ok)
    k.e("s_mov_b64 exec, -1")
    k.stamp(5)
    if OPT['remdma']:
        sk = k.u("norem"); jn = k.u("remj")
        k.e(f"s_cmp_eq_u32 s{S_RB}, 0")
        k.e(f"s_cbranch_scc1 {sk}")
        k.e("v_lshlrev_b32 v8, 4, v0")
        k.e(f"s_lshl_b32 s48, s{S_G}, 2")
        k.e("s_add_u32 s48, s48, s26")
        k.e("s_lshl_b32 s48, s48, 6")
        k.e(f"s_lshl_b32 s49, s{S_RB}, 1")
        k.e("s_sub_u32 s49, s49, 8")
        k.e("s_lshl_b32 s52, s26, 13")
        def rem(base_g, base_l):
            for j in range(8):
                k.e(f"s_add_i32 s50, s49, {j}")
                k.e("s_max_i32 s50, s50, 0")
                k.e("s_add_u32 s50, s50, s48")
                k.e("s_lshl_b32 s50, s50, 10")
                if base_g: k.e(f"s_add_u32 s50, s50, {base_g}")
                k.e(f"s_add_u32 s51, s52, {base_l + j*1024}")
                k.e("s_mov_b32 m0, s51")
                k.e("s_nop 0")
                k.e(f"buffer_load_dwordx4 v8, {WS}, s50 offen sc1 lds")
        rem(KB_G, RK_L)
        k.e("s_waitcnt vmcnt(8)");  k.e("s_barrier")
        rem(VB_G, RV_L)
        k.e("s_barrier")
        k.e("s_waitcnt vmcnt(0)")
        k.e(f"s_branch {jn}")
        k.lab(sk)
        k.e("s_waitcnt vmcnt(0)");  k.e("s_barrier")
        k.e("s_barrier")
        k.lab(jn)
    else:
        sk = k.u("norem"); jn = k.u("remj")
        k.e(f"s_cmp_eq_u32 s{S_RB}, 0")
        k.e(f"s_cbranch_scc1 {sk}")
        k.e("v_lshlrev_b32 v8, 4, v0")
        k.e(f"s_lshl_b32 s48, s{S_G}, 2")
        k.e("s_add_u32 s48, s48, s26")
        k.e("s_lshl_b32 s48, s48, 6")
        k.e(f"s_lshl_b32 s49, s{S_RB}, 1")
        k.e("s_sub_u32 s49, s49, 8")
        for j in range(8):
            k.e(f"s_add_i32 s50, s49, {j}")
            k.e("s_max_i32 s50, s50, 0")
            k.e("s_add_u32 s50, s50, s48")
            k.e("s_lshl_b32 s50, s50, 10")
            k.e(f"s_add_u32 s51, s50, {VB_G}")
            k.e(f"buffer_load_dwordx4 {vr(16+4*j,4)}, v8, {WS}, s50 offen sc1")
            k.e(f"buffer_load_dwordx4 {vr(48+4*j,4)}, v8, {WS}, s51 offen sc1")
        k.e("s_waitcnt vmcnt(16)");  k.e("s_barrier")
        k.e("s_lshl_b32 s48, s26, 13")
        k.e("v_add_u32 v9, s48, v8")
        for j in range(8):
            k.e(f"s_waitcnt vmcnt({14-2*j})")
            k.e(f"ds_write_b128 v9, {vr(16+4*j,4)} offset:{RK_L + j*1024}")
            k.e(f"ds_write_b128 v9, {vr(48+4*j,4)} offset:{RV_L + j*1024}")
            if j == 3: k.e("s_barrier")
        k.e(f"s_branch {jn}")
        k.lab(sk)
        k.e("s_waitcnt vmcnt(0)");  k.e("s_barrier")
        k.e("s_barrier")
        k.lab(jn)
    k.e("s_waitcnt lgkmcnt(0)")
    k.stamp(6)
    k.e("s_barrier")
    k.stamp(4)

AQ_, AKF, AS, AMD, AMF, ACN, AP, AVB, AO = 4, 8, [44, 60, 76], 216, 232, 124, 140, [148, 156], 176
AM, AT = 192, 193
AK0, AK7, AK8, AV0, AV7, AV8 = 196, 197, 198, 199, 200, 201
KVR = 208
VPOLL, VPA = 248, 249

def v_reads(k, buf, vaddr, off):
    k.e("s_mov_b64 exec, s[64:65]")
    k.e(f"ds_read_b128 {vr(AVB[buf],4)}, v{vaddr} offset:{off}")
    k.e(f"ds_read_b128 {vr(AVB[buf]+4,4)}, v{vaddr} offset:{off+512}")
    k.e("s_mov_b64 exec, -1")

def sig_f1a(k):
    sk = k.u("nosigA")
    k.e(f"s_cmp_lt_u32 s{S_WAVE}, 2")
    k.e(f"s_cbranch_scc0 {sk}")
    k.e("s_waitcnt vmcnt(0)")
    k.e(f"s_lshl_b32 s52, s{S_G}, 13")
    k.e(f"s_lshl_b32 s53, s{S_RB}, 1")
    k.e(f"s_add_u32 s53, s53, s{S_WAVE}")
    k.e("s_lshl_b32 s53, s53, 7")
    k.e("s_add_u32 s52, s52, s53")
    k.e(f"s_add_u32 s52, s52, {F1A}")
    store_flag(k, 52)
    k.lab(sk)

def attn_setup(k):
    k.e(f"s_and_b32 s86, s{S_WAVE}, 1")
    k.e(f"s_lshr_b32 s87, s{S_WAVE}, 1")
    k.e(f"v_lshlrev_b32 v{AT}, 4, v0")
    k.e("s_lshl_b32 s88, s86, 10")
    k.e("s_lshl_b32 s89, s87, 13")
    k.e("s_lshl_b32 s92, s87, 11")
    k.e("s_add_u32 s93, s89, s88")
    k.e(f"v_add_u32 v{AK0}, s93, v{AT}")
    k.e(f"s_add_u32 s94, s89, {7*1024}")
    k.e(f"s_add_u32 s100, s92, {OK_L}")
    k.e("s_cmp_eq_u32 s86, 0")
    k.e("s_cselect_b32 s94, s94, s100")
    k.e(f"v_add_u32 v{AK7}, s94, v{AT}")
    k.e("s_add_u32 s100, s100, s88")
    k.e(f"v_add_u32 v{AK8}, s100, v{AT}")
    k.e("v_lshrrev_b32 v202, 5, v0")
    k.e("v_lshlrev_b32 v202, 8, v202")
    k.e("v_and_b32 v203, 15, v0")
    k.e("v_lshlrev_b32 v203, 4, v203")
    k.e("v_add_u32 v202, v202, v203")
    k.e(f"s_add_u32 s94, s93, {RV_L}")
    k.e(f"v_add_u32 v{AV0}, s94, v202")
    k.e(f"s_add_u32 s94, s89, {RV_L + 7*1024}")
    k.e(f"s_add_u32 s100, s92, {OV_L}")
    k.e("s_cmp_eq_u32 s86, 0")
    k.e("s_cselect_b32 s94, s94, s100")
    k.e(f"v_add_u32 v{AV7}, s94, v202")
    k.e("s_add_u32 s100, s100, s88")
    k.e(f"v_add_u32 v{AV8}, s100, v202")
    k.e("v_and_b32 v202, 31, v0")
    k.e("v_lshrrev_b32 v203, 5, v0")
    k.e("v_lshlrev_b32 v203, 2, v203")
    k.e("v_sub_u32 v202, v202, v203")
    k.e("v_cvt_f32_i32 v202, v202")
    k.e(f"v_mov_b32 v203, {lit(BIG)}")
    for i in range(16):
        ci = 8*(i >> 2) + (i & 3)
        k.e(f"v_fmaak_f32 v{AMD+i}, v202, v203, {lit((0.5-ci)*BIG)}")
    for i in range(16): k.e(f"v_min_f32 v{AMF+i}, -v{AMD+i}, 0")
    for i in range(16): k.e(f"v_min_f32 v{AMD+i}, 0, v{AMD+i}")
    k.e(f"v_mov_b32 v{AM}, 0xff7fffff")
    k.e(f"s_lshl_b32 s87, s{S_G}, 13")
    k.e(f"s_add_u32 s87, s87, {F1A}")
    k.e(f"v_lshlrev_b32 v{VPA}, 7, v0")
    k.e(f"v_add_u32 v{VPA}, s87, v{VPA}")

def wo_setup(k):
    k.e("s_and_b32 s50, s2, 7")
    k.e("s_lshr_b32 s51, s2, 3")
    k.e("s_lshr_b32 s52, s50, 2")
    k.e("s_lshr_b32 s53, s51, 2")
    k.e("s_cmp_eq_u32 s52, 0")
    k.e(f"s_cselect_b32 s{SRD_WO}, s{P_AWO}, s{P_BWO}")
    k.e(f"s_cselect_b32 s{SRD_WO+1}, s{P_AWO+1}, s{P_BWO+1}")
    k.e(f"s_mov_b32 s{SRD_WO+2}, 0x{512*1024:x}")
    k.e(f"s_mov_b32 s{SRD_WO+3}, 0x20000")
    k.e("v_lshrrev_b32 v204, 3, v0")
    k.e("v_and_b32 v205, 7, v0")
    k.e("v_and_b32 v206, 2, v204")
    k.e("v_lshlrev_b32 v206, 1, v206")
    k.e("v_xor_b32 v206, v205, v206")
    k.e("v_lshlrev_b32 v206, 4, v206")
    k.e(f"s_sub_u32 s54, s{S_WAVE}, 4")
    k.e("s_lshl_b32 s50, s54, 7")
    k.e("v_add_u32 v204, s50, v204")
    k.e("v_lshlrev_b32 v204, 10, v204")
    k.e("s_lshl_b32 s50, s53, 7")
    k.e("v_add3_u32 v205, v204, v206, s50")
    k.e("s_lshl_b32 s96, s54, 14")
    k.e(f"s_add_u32 s96, s96, {WO_L}")
    k.e("s_mov_b32 s97, 0")

def wo_pair(k):
    k.e("s_mov_b32 m0, s96")
    k.e("s_add_u32 s98, s97, 7168")
    k.e(f"buffer_load_dwordx4 v205, {sr(SRD_WO,4)}, s97 offen lds")
    k.e(f"buffer_load_dwordx4 v205, {sr(SRD_WO,4)}, s98 offen offset:1024 lds")
    k.e("s_add_u32 s96, s96, 2048")
    k.e("s_add_u32 s97, s97, 16384")

KVL = 0
def kv_loads(k):
    k.e(f"s_lshl_b32 s50, s{S_G}, 13")
    k.e(f"s_add_u32 s50, s50, {KVACC}")
    k.e("s_add_u32 s51, s50, 4096")
    k.e(f"buffer_load_dwordx4 {vr(KVR,4)}, v1, {WS}, s50 offen sc1")
    k.e(f"buffer_load_dwordx4 {vr(KVR+4,4)}, v1, {WS}, s50 offen offset:1024 sc1")
    k.e(f"buffer_load_dwordx4 {vr(164,4)}, v1, {WS}, s51 offen sc1")
    k.e(f"buffer_load_dwordx4 {vr(168,4)}, v1, {WS}, s51 offen offset:1024 sc1")
    k.e("v_lshrrev_b32 v202, 5, v0")
    k.e("v_lshlrev_b32 v202, 12, v202")
    k.e("v_and_b32 v203, 31, v0")
    k.e("v_lshl_add_u32 v202, v203, 2, v202")
    k.e(f"buffer_load_dword v172, v202, {WS}, s50 offen offset:2048 sc1")

def attention(k):
    k.c("attention: i = w&1 (s26), hh = w>>1 (s27), qt = s48, s99 = kv loads issued flag")
    k.e(f"s_and_b32 s26, s{S_WAVE}, 1")
    k.e(f"s_lshr_b32 s27, s{S_WAVE}, 1")
    k.e(f"s_lshl_b32 s48, s{S_RB}, 1")
    k.e("s_add_u32 s48, s48, s26")
    k.e("v_lshlrev_b32 v1, 4, v0")
    k.e("s_lshl_b32 s49, s27, 11")
    k.e("s_lshl_b32 s50, s26, 10")
    k.e("s_add_u32 s49, s49, s50")
    k.e(f"s_add_u32 s49, s49, {Q_L}")
    k.e("v_add_u32 v2, s49, v1")
    k.e(f"ds_read_b128 {vr(AQ_,4)}, v2")
    def kaddr(p): return (AK0, RK_L + p*1024) if p <= 6 else ((AK7, 0) if p == 7 else (AK8, 0))
    def vaddr(p): return (AV0, p*1024) if p <= 6 else ((AV7, 0) if p == 7 else (AV8, 0))
    for p in range(9):
        a, o = kaddr(p); k.e(f"ds_read_b128 {vr(AKF+4*p,4)}, v{a} offset:{o}")
    k.e("s_mov_b32 s64, 0xffff")
    k.e("s_mov_b32 s65, 0xffff")
    k.e("s_mov_b32 s99, 0")
    for b in range(2):
        for j in range(8): k.e(f"v_mov_b32 v{AVB[b]+j}, 0x3f803f80")
    sk = k.u("nowo")
    k.e(f"s_cmp_ge_u32 s{S_WAVE}, 4")
    k.e(f"s_cbranch_scc0 {sk}")
    wo_setup(k)
    for j in range(8): wo_pair(k)
    k.lab(sk)
    Q = vr(AQ_, 4)
    def qk(dst, p, c): k.e(f"{MF} {vr(dst,16)}, {vr(AKF+4*p,4)}, {Q}, {c}")
    def c1(p): return vr(AMF,16) if p == 0 else (vr(AMD,16) if p == 8 else "0")
    def c2(p): return vr(AMF,16) if p == 0 else (vr(AMD,16) if p == 8 else vr(ACN,16))
    k.e("s_sub_i32 s95, 8, s48")
    k.e("s_max_i32 s95, s95, 0")
    P1 = [k.u(f"p1_{p}") for p in range(9)]
    P2 = [k.u(f"p2_{p}") for p in range(9)]
    E1 = [k.u(f"e1_{p}") for p in range(9)]
    E2 = [k.u(f"e2_{p}") for p in range(9)]
    k.e("s_waitcnt lgkmcnt(0)")
    for p in range(1, 9):
        k.e(f"s_cmp_eq_u32 s95, {p}")
        k.e(f"s_cbranch_scc1 {E1[p]}")
    qk(AS[0], 0, c1(0)); qk(AS[1], 1, c1(1)); qk(AS[2], 2, c1(2))
    k.e("s_nop 9")
    for p in range(9):
        k.lab(P1[p])
        s_ = AS[p % 3]
        for j in range(8): k.e(f"v_max3_f32 v{AM}, v{s_+2*j}, v{s_+2*j+1}, v{AM}")
        if p + 3 <= 8: qk(s_, p + 3, c1(p + 3))
    k.e(f"v_mov_b32 v{AT}, v{AM}")
    k.e("s_nop 1")
    k.e(f"v_permlane32_swap_b32 v{AM}, v{AT}")
    k.e(f"v_max_f32 v{AM}, v{AM}, v{AT}")
    k.e(f"v_sub_f32 v{AM}, 0, v{AM}")
    for i in range(16): k.e(f"v_mov_b32 v{ACN+i}, v{AM}")
    for i in range(16): k.e(f"v_add_f32 v{AMD+i}, v{AMD+i}, v{AM}")
    k.stamp(8)
    k.e("s_cmp_eq_u32 s95, 0")
    sh = k.u("short2")
    k.e(f"s_cbranch_scc0 {sh}")
    for i in range(16): k.e(f"v_add_f32 v{AMF+i}, v{AMF+i}, v{AM}")
    v_reads(k, 0, *vaddr(0))
    k.e("s_nop 0")
    qk(AS[0], 0, c2(0))
    k.e("s_nop 6")
    for p in range(9):
        k.lab(P2[p])
        cur = AS[p % 2]; nxt = AS[(p + 1) % 2]
        if p < 8:
            qk(nxt, p + 1, c2(p + 1))
            v_reads(k, (p + 1) % 2, *vaddr(p + 1))
        hooks = k.u("nohook")
        if p in (OPT['sigp'], OPT['pollp'], 8):
            k.e("s_cmp_eq_u32 s95, 0")
            k.e(f"s_cbranch_scc0 {hooks}")
            if p == OPT['sigp']: sig_f1a(k)
            if p in (OPT['pollp'], 8):
                k.e(f"s_cmp_eq_u32 s{S_WAVE}, 4")
                k.e(f"s_cbranch_scc0 {hooks}")
            if p == OPT['pollp']: k.e(f"buffer_load_dword v{VPOLL}, v{VPA}, {WS}, 0 offen sc1")
            if p == 8:
                k.stamp(14)
                k.e("s_waitcnt vmcnt(0)")
                k.stamp(15)
                k.e(f"v_cmp_ne_u32 vcc, s{S_NONCE}, v{VPOLL}")
                k.e("s_nop 1")
                k.e(f"s_cbranch_vccnz {hooks}")
                kv_loads(k)
                k.e("s_mov_b32 s99, 1")
            k.lab(hooks)
        for j in range(16): k.e(f"v_exp_f32 v{cur+j}, v{cur+j}")
        for j in range(8): k.e(f"v_cvt_pk_bf16_f32 v{AP+j}, v{cur+2*j}, v{cur+2*j+1}")
        k.e(f"s_waitcnt lgkmcnt({2 if p < 8 else 0})")
        vb = AVB[p % 2]
        k.e(f"{MF} {vr(AO,16)}, {vr(vb,4)}, {vr(AP,4)}, {'0' if p == 0 else vr(AO,16)}")
        k.e("s_nop 0")
        k.e(f"{MF} {vr(AO,16)}, {vr(vb+4,4)}, {vr(AP+4,4)}, {vr(AO,16)}")
    done = k.u("attdone")
    k.e(f"s_branch {done}")
    for p in range(1, 9):
        k.lab(E1[p])
        for q in range(p, min(p + 3, 9)): qk(AS[q % 3], q, c1(q))
        k.e("s_nop 10")
        k.e(f"s_branch {P1[p]}")
    k.lab(sh)
    for i in range(16): k.e(f"v_mov_b32 v{AO+i}, 0")
    sig_f1a(k)
    sk = k.u("shpoll")
    k.e(f"s_cmp_eq_u32 s{S_WAVE}, 4")
    k.e(f"s_cbranch_scc0 {sk}")
    k.e(f"buffer_load_dword v{VPOLL}, v{VPA}, {WS}, 0 offen sc1")
    k.lab(sk)
    for p in range(1, 9):
        k.e(f"s_cmp_eq_u32 s95, {p}")
        k.e(f"s_cbranch_scc1 {E2[p]}")
    k.e(f"s_branch {E2[8]}")
    for p in range(1, 9):
        k.lab(E2[p])
        qk(AS[p % 2], p, c2(p))
        v_reads(k, p % 2, *vaddr(p))
        k.e("s_nop 6")
        k.e(f"s_branch {P2[p]}")
    k.lab(done)

def apart(k):
    sk = k.u("kvdone")
    k.e(f"s_cmp_eq_u32 s{S_WAVE}, 4")
    k.e(f"s_cbranch_scc0 {sk}")
    k.e("s_cmp_eq_u32 s99, 1")
    k.e(f"s_cbranch_scc1 {sk}")
    poll_flags(k, VPA, VPOLL, "f1a", first_issued=True)
    kv_loads(k)
    k.lab(sk)
    k.e("s_nop 8")
    k.e(f"v_rcp_f32 v{AT}, v{AO+8}")
    k.e("s_nop 0")
    for j in range(8): k.e(f"v_mul_f32 v{AO+j}, v{AO+j}, v{AT}")
    cvt8(k, AP, AO)
    k.e(f"s_lshl_b32 s49, s{S_G}, 2")
    k.e("s_add_u32 s49, s49, s27")
    k.e("s_lshl_b32 s50, s48, 5")
    k.e("s_add_u32 s49, s49, s50")
    k.e("s_lshl_b32 s49, s49, 10")
    k.e(f"s_add_u32 s50, s49, {O_G + (2<<20)}")
    k.e(f"buffer_store_dwordx4 {vr(AP,4)}, v1, {WS}, s50 offen sc1")
    k.e("s_barrier")
    sk = k.u("nokvw")
    k.e(f"s_cmp_eq_u32 s{S_WAVE}, 4")
    k.e(f"s_cbranch_scc0 {sk}")
    k.e("s_waitcnt vmcnt(1)")
    k.e(f"ds_write_b128 v1, {vr(KVR,4)} offset:{KVL}")
    k.e(f"ds_write_b128 v1, {vr(KVR+4,4)} offset:{KVL+1024}")
    k.e(f"ds_write_b128 v1, {vr(164,4)} offset:{KVL+4096}")
    k.e(f"ds_write_b128 v1, {vr(168,4)} offset:{KVL+4096+1024}")
    k.e("v_lshrrev_b32 v202, 5, v0")
    k.e("v_lshlrev_b32 v202, 12, v202")
    k.e("v_and_b32 v203, 31, v0")
    k.e("v_lshl_add_u32 v202, v203, 2, v202")
    k.e(f"ds_write_b32 v202, v172 offset:{KVL+2048}")
    k.e("s_waitcnt lgkmcnt(0)")
    k.lab(sk)
    k.e("s_lshr_b32 s51, s27, 1")
    k.e("s_lshl_b32 s51, s51, 12")
    k.e("s_and_b32 s52, s27, 1")
    k.e("s_lshl_b32 s52, s52, 6")
    k.e("s_add_u32 s51, s51, s52")
    k.e("v_lshrrev_b32 v203, 5, v0")
    k.e("v_and_b32 v202, 15, v0")
    k.e("v_lshl_add_u32 v202, v203, 5, v202")
    k.e("v_lshlrev_b32 v202, 2, v202")
    k.e("v_add_u32 v202, s51, v202")
    k.e("v_lshlrev_b32 v203, 4, v203")
    k.e("v_add_u32 v203, s51, v203")
    k.e("s_lshl_b32 s51, s27, 11")
    k.e("s_lshl_b32 s50, s26, 10")
    k.e("s_add_u32 s51, s51, s50")
    k.e(f"s_add_u32 s51, s51, {PQ_L}")
    k.e("v_add_u32 v2, s51, v1")
    k.e(f"ds_read_b128 {vr(AQ_,4)}, v2")
    k.e("s_barrier")
    k.e("s_mov_b64 exec, s[64:65]")
    for t in range(8): k.e(f"ds_read_b32 v{KVR+t}, v202 offset:{KVL + t*256}")
    k.e("s_not_b64 exec, s[64:65]")
    k.e(f"ds_read_b128 {vr(KVR,4)}, v203 offset:{KVL+2048}")
    k.e(f"ds_read_b128 {vr(KVR+4,4)}, v203 offset:{KVL+2048+32}")
    k.e("s_mov_b64 exec, -1")
    k.e("s_waitcnt lgkmcnt(0)")
    cvt8(k, 8, KVR)
    k.e("s_nop 1")
    k.e(f"{MF} {vr(44,16)}, {vr(8,4)}, {vr(AQ_,4)}, 0")
    k.e(f"s_mov_b32 s62, {lit(1e-6)}")
    k.e("s_nop 10")
    k.e("v_add_f32 v12, s62, v52")
    k.e("v_rcp_f32 v12, v12")
    k.e("s_nop 0")
    for j in range(8): k.e(f"v_mul_f32 v{44+j}, v{44+j}, v12")
    cvt8(k, 16, 44)
    k.e(f"s_add_u32 s50, s49, {O_G}")
    k.e(f"buffer_store_dwordx4 {vr(16,4)}, v1, {WS}, s50 offen sc1")

def p3(k):
    k.c("P3: out tile 128x64")
    k.e("s_and_b32 s48, s2, 7")
    k.e("s_lshr_b32 s49, s2, 3")
    k.e("s_lshr_b32 s66, s48, 2")
    k.e("s_and_b32 s67, s48, 3")
    k.e("s_lshl_b32 s67, s67, 2")
    k.e("s_and_b32 s50, s49, 3")
    k.e("s_add_u32 s67, s67, s50")
    k.e("s_lshr_b32 s68, s49, 2")
    k.e("s_lshl_b32 s48, s67, 11")
    k.e(f"s_add_u32 s48, s48, {F2}")
    k.e("v_and_b32 v8, 15, v0")
    k.e("v_lshlrev_b32 v8, 7, v8")
    k.e("v_add_u32 v8, s48, v8")
    OF, ACC3, WF = 8+4, 144, [176, 184]
    VA0, VA1 = 192, 193
    k.e("v_bfe_u32 v2, v0, 2, 2")
    k.e("v_and_b32 v3, 3, v0")
    k.e("v_bfe_u32 v4, v0, 4, 1")
    k.e("v_lshrrev_b32 v5, 5, v0")
    k.e("v_lshlrev_b32 v5, 2, v5")
    k.e("v_add_u32 v5, v5, v2")
    k.e("v_lshlrev_b32 v5, 7, v5")
    k.e("v_and_b32 v6, 1, v3")
    k.e("v_lshlrev_b32 v6, 1, v6")
    k.e("v_add_u32 v6, v6, v4")
    k.e("v_and_b32 v7, 2, v2")
    k.e("v_lshlrev_b32 v7, 1, v7")
    k.e("v_xor_b32 v6, v6, v7")
    k.e("v_lshlrev_b32 v6, 4, v6")
    k.e("v_lshrrev_b32 v3, 1, v3")
    k.e("v_lshlrev_b32 v3, 3, v3")
    k.e("v_add3_u32 v5, v5, v6, v3")
    k.e("s_and_b32 s51, s68, 3")
    k.e("s_lshl_b32 s52, s51, 14")
    k.e(f"s_add_u32 s52, s52, {WO_L}")
    k.e(f"v_add_u32 v{VA0}, s52, v5")
    k.e(f"v_xor_b32 v{VA1}, 64, v{VA0}")
    k.e("s_lshl_b32 s48, s67, 2")
    k.e(f"s_add_u32 s48, s48, s{S_WAVE}")
    k.e("s_lshl_b32 s49, s48, 15")
    k.e("s_lshl_b32 s50, s66, 21")
    k.e("s_add_u32 s49, s49, s50")
    k.e(f"s_add_u32 s49, s49, {O_G}")
    k.e("v_lshlrev_b32 v1, 4, v0")
    sk = k.u("nof2poll")
    k.e(f"s_cmp_eq_u32 s{S_WAVE}, 0")
    k.e(f"s_cbranch_scc0 {sk}")
    k.e("s_mov_b64 exec, 0xffff")
    poll_flags(k, 8, 9, "f2")
    k.e("s_mov_b64 exec, -1")
    k.lab(sk)
    k.e("s_barrier")
    k.e(f"s_cmp_ge_u32 s{S_WAVE}, 4")
    k.e("s_cbranch_scc1 L_fin")
    k.stamp(12)
    NPRE = OPT['npre']
    for hb in range(8):
        blk = hb >> 1
        k.e(f"s_add_u32 s52, s51, {blk}")
        k.e("s_and_b32 s52, s52, 3")
        k.e("s_lshl_b32 s52, s52, 13")
        k.e("s_add_u32 s52, s52, s49")
        if hb & 1: k.e("s_add_u32 s52, s52, 4096")
        k.e(f"s_mov_b32 s{[86,87,88,89,92,93,94,100][hb]}, s52")
    def oload(hd):
        so = [86,87,88,89,92,93,94,100][hd >> 2]
        k.e(f"buffer_load_dwordx4 {vr(OF+4*hd,4)}, v1, {WS}, s{so} offen offset:{(hd%4)*1024} sc1")
    for hd in range(NPRE): oload(hd)
    def wreads(buf, j):
        for b in range(2):
            for s2 in range(2):
                k.e(f"ds_read_b64_tr_b16 {vr(WF[buf]+4*b+2*s2,2)}, v{VA0+b} offset:{j*2048 + s2*1024}")
    def advance(blk):
        k.e(f"s_add_u32 s52, s51, {blk}")
        k.e("s_and_b32 s52, s52, 3")
        k.e("s_cmp_eq_u32 s52, 0")
        k.e(f"s_cselect_b32 s52, 0x{(-3*16384) & 0xffffffff:x}, s69")
        k.e(f"v_add_u32 v{VA0}, s52, v{VA0}")
        k.e(f"v_add_u32 v{VA1}, s52, v{VA1}")
    k.e("s_mov_b32 s69, 16384")
    wreads(0, 0)
    for hd in range(32):
        if hd < 31:
            nj = (hd + 1) % 8
            if nj == 0: advance((hd + 1)//8)
            wreads((hd + 1) % 2, nj)
        issued = min(32, NPRE + hd)
        k.e(f"s_waitcnt vmcnt({issued-1-hd}) lgkmcnt({4 if hd < 31 else 0})")
        if NPRE + hd < 32: oload(NPRE + hd)
        if OPT.get('p3st') and hd in (0, 8, 31):
            k.stamp({0: 5, 8: 6, 31: 8}[hd])
        for b in range(2):
            k.e(f"{MF} {vr(ACC3+16*b,16)}, {vr(WF[hd%2]+4*b,4)}, {vr(OF+4*hd,4)}, {'0' if hd == 0 else vr(ACC3+16*b,16)}")
    srd(k, SRD_T, P_OUT, 4 << 20)
    k.e("v_and_b32 v2, 31, v0")
    k.e("s_lshl_b32 s49, s48, 5")
    k.e("v_add_u32 v2, s49, v2")
    k.e("v_lshlrev_b32 v2, 11, v2")
    k.e("v_lshrrev_b32 v3, 5, v0")
    k.e("v_lshlrev_b32 v3, 5, v3")
    k.e("s_lshl_b32 s49, s66, 10")
    k.e("s_lshl_b32 s50, s68, 7")
    k.e("s_add_u32 s49, s49, s50")
    k.e("v_add3_u32 v2, v2, v3, s49")
    k.e("s_nop 3")
    for b in range(2):
        for j in range(8): k.e(f"v_cvt_pk_bf16_f32 v{12+8*b+j}, v{ACC3+16*b+2*j}, v{ACC3+16*b+2*j+1}")
    for b in range(2):
        fl = {0: "", 1: " sc1", 2: " nt", 3: " sc0 sc1"}[OPT['outf']]
        k.e(f"buffer_store_dwordx4 {vr(12+8*b,4)}, v2, {sr(SRD_T,4)}, 0 offen offset:{64*b}{fl}")
        k.e(f"buffer_store_dwordx4 {vr(16+8*b,4)}, v2, {sr(SRD_T,4)}, 0 offen offset:{64*b+16}{fl}")

HDR = """; Kernarg layout for this problem (72 bytes, ptrs only, base s[0:1]):
;   offset   0: d_in[0] A_x  shape=(1, 2048, 512) dtype=bfloat16
;   offset   8: d_in[1] A_wqkv  shape=(512, 1536) dtype=bfloat16
;   offset  16: d_in[2] A_wo  shape=(512, 512) dtype=bfloat16
;   offset  24: d_in[3] B_x  shape=(1, 2048, 512) dtype=bfloat16
;   offset  32: d_in[4] B_wqkv  shape=(512, 1536) dtype=bfloat16
;   offset  40: d_in[5] B_wo  shape=(512, 512) dtype=bfloat16
;   offset  48: d_out     shape=(1, 2048, 1024) dtype=bfloat16
;   offset  56: d_debug   256 bytes
;   offset  64: d_ws      268435456 bytes workspace
; @launch grid=(256,1,1) block=(512,1,1) lds=163840
.amdgcn_target "amdgcn-amd-amdhsa--gfx950"
.text
.globl KNAME
.p2align 8
.type KNAME,@function
""".replace("KNAME", KNAME)

TAIL = """.section .rodata,"a"
.p2align 6
.amdhsa_kernel KNAME
  .amdhsa_next_free_vgpr 256
  .amdhsa_next_free_sgpr 102
  .amdhsa_accum_offset 256
  .amdhsa_group_segment_fixed_size 0
  .amdhsa_kernarg_size 72
  .amdhsa_user_sgpr_count 2
  .amdhsa_user_sgpr_kernarg_segment_ptr 1
  .amdhsa_system_sgpr_workgroup_id_x 1
.end_amdhsa_kernel
""".replace("KNAME", KNAME)

def build(stamps=False):
    k = gen(stamps)
    body = "\n".join(k.L)
    body = body.replace("PF_BACK", f"((L_pc - {KNAME}) & 0xffffff00)")
    pad = "\n    .fill 2048, 4, 0xbf800000\n"
    hdr, tail = HDR, TAIL
    if OPT['extra']:
        hdr = hdr.replace("; @launch grid=(256,1,1) block=(512,1,1) lds=163840", f"; @launch kernel={KNAME} grid=(256,1,1) block=(512,1,1) lds=163840\n; @launch kernel=nop_kernel grid=(1,1,1) block=(64,1,1) lds=0")
        pad += ".globl nop_kernel\n.p2align 8\n.type nop_kernel,@function\nnop_kernel:\n    s_endpgm\n"
        tail += """.p2align 6
.amdhsa_kernel nop_kernel
  .amdhsa_next_free_vgpr 8
  .amdhsa_next_free_sgpr 16
  .amdhsa_accum_offset 8
  .amdhsa_group_segment_fixed_size 0
  .amdhsa_kernarg_size 72
  .amdhsa_user_sgpr_count 2
  .amdhsa_user_sgpr_kernarg_segment_ptr 1
  .amdhsa_system_sgpr_workgroup_id_x 1
.end_amdhsa_kernel
"""
    return hdr + body + pad + "\n" + tail

if __name__ == "__main__":
    out = sys.argv[1] if len(sys.argv) > 1 else "out.s"
    stamps = "stamps" in sys.argv[2:]
    for a in sys.argv[2:]:
        if "=" in a:
            kk, vv = a.split("="); OPT[kk] = int(vv)
    txt = build(stamps)
    open(out, "w").write(txt)
    import hz
    pr = hz.check(txt)
    import subprocess
    r = subprocess.run(["clang", "-x", "assembler", "-target", "amdgcn-amd-amdhsa", "-mcpu=gfx950", "-c", out, "-o", "_chk.o"], capture_output=True, text=True)
    print("hazards:", len(pr), "lines:", txt.count("\n"), "asm:", "ok" if r.returncode == 0 else r.stderr)
```

```python
import sys, math, struct

KNAME = "concat_heads__linear_attn_block__sliding_block__prompt_kernel"

KB_G   = 0
VB_G   = 2 << 20
O_G    = 4 << 20
KVACC  = 8 << 20
FL     = (8 << 20) + (64 << 10)
F1B    = FL
F1A    = FL + (32 << 10)
F2     = FL + (96 << 10)
STAMP  = 9 << 20
SLOT   = 32768
OK_L, OV_L, Q_L, PQ_L = 131072, 139264, 147456, 155648
NONCE_L = PQ_L
RK_L, RV_L, WO_L = 0, 32768, 65536
CS = 0.25 * math.log2(math.e)
LOG2E = math.log2(math.e)
BIG = 1.0e28
SPIN_MAX = 2000000
OPT = dict(rot=8, pfB=0, pfA=1, dbgstamps=0, stagest=0, pfs=1, tpf=0, p3st=0, map=0, outf=0, extra=0, sigs=9, pf0=0, late9=0, remdma=1, m16=0, npre=16, pf4=0, pkphi=1, prio=0, kvprio=1, pollp=4, sigp=3, fixdur=0)

def f2u(x): return struct.unpack('<I', struct.pack('<f', x))[0]
def lit(x): return "0x%08x" % f2u(x)

class K:
    def __init__(self, stamps=False):
        self.L = []; self.stamps = stamps; self.uid = 0; self.inp1 = False
    def e(self, s):
        if self.inp1 and OPT['m16'] and s.startswith("v_mfma_f32_32x32x16_bf16"):
            import re
            m = re.match(r"v_mfma_f32_32x32x16_bf16 v\[(\d+):\d+\], (v\[\d+:\d+\]), (v\[\d+:\d+\]), (.*)", s)
            d = int(m.group(1)); c = m.group(4)
            for h in range(2):
                cc = "0" if c == "0" else f"v[{d+4*h}:{d+4*h+3}]"
                self.L.append(f"    v_mfma_f32_16x16x32_bf16 v[{d+4*h}:{d+4*h+3}], {m.group(2)}, {m.group(3)}, {cc}")
            return
        self.L.append("    " + s)
    def c(self, s): self.L.append("    ; " + s)
    def lab(self, s): self.L.append(s + ":")
    def u(self, p):
        self.uid += 1; return f"L_{p}_{self.uid}"
    def stamp(self, k):
        if not self.stamps: return
        self.e("s_memrealtime s[70:71]")
        self.e("s_waitcnt lgkmcnt(0)")
        self.e(f"s_mov_b32 s{72+k}, s70")

def vr(a, n): return f"v[{a}:{a+n-1}]"
def sr(a, n): return f"s[{a}:{a+n-1}]"
MF = "v_mfma_f32_32x32x16_bf16"

S_WAVE, S_RB, S_G, S_NONCE = 22, 23, 24, 25
SRD_WS, SRD_X, SRD_W, SRD_T, SRD_WO = 28, 32, 36, 40, 44
P_AX, P_AW, P_AWO, P_BX, P_BW, P_BWO, P_OUT, P_DBG, P_WS = 4, 6, 8, 10, 12, 14, 16, 18, 20
WS = sr(SRD_WS, 4)

def srd(k, dst, ptr, size):
    k.e(f"s_mov_b32 s{dst}, s{ptr}")
    k.e(f"s_mov_b32 s{dst+1}, s{ptr+1}")
    k.e(f"s_mov_b32 s{dst+2}, 0x{size:x}")
    k.e(f"s_mov_b32 s{dst+3}, 0x20000")

def spin_guard(k, sreg, exit_label):
    k.e(f"s_add_u32 s{sreg}, s{sreg}, 1")
    k.e(f"s_cmp_gt_u32 s{sreg}, {SPIN_MAX}")
    k.e(f"s_cbranch_scc1 {exit_label}")

def poll_flags(k, vaddr, vtmp, name, first_issued=False, sleep=1):
    lp = k.u(name + "_poll"); ex = k.u(name + "_done"); chk = k.u(name + "_chk")
    k.e("s_mov_b32 s60, 0")
    if first_issued: k.e(f"s_branch {chk}")
    k.lab(lp)
    k.e(f"buffer_load_dword v{vtmp}, v{vaddr}, {WS}, 0 offen sc1")
    k.lab(chk)
    spin_guard(k, 60, ex)
    k.e("s_waitcnt vmcnt(0)")
    k.e(f"v_cmp_ne_u32 vcc, s{S_NONCE}, v{vtmp}")
    k.e("s_nop 1")
    k.e(f"s_cbranch_vccz {ex}")
    if sleep: k.e(f"s_sleep {sleep}")
    k.e(f"s_branch {lp}")
    k.lab(ex)
    k.e("s_waitcnt vmcnt(0)")

def store_flag(k, soff):
    k.e(f"v_mov_b32 v250, s{S_NONCE}")
    k.e("v_mov_b32 v251, 0")
    k.e("s_mov_b64 exec, 1")
    k.e(f"buffer_store_dword v250, v251, {WS}, s{soff} offen sc1")
    k.e("s_mov_b64 exec, -1")

def cvt8(k, dst, src):
    for j in range(4): k.e(f"v_cvt_pk_bf16_f32 v{dst+j}, v{src+2*j}, v{src+2*j+1}")

def phi(k, r, n, t):
    if not OPT['pkphi']:
        for i in range(0, n, 4):
            for j in range(4): k.e(f"v_mul_f32 v{t+j}, s61, v{r+i+j}")
            for j in range(4): k.e(f"v_exp_f32 v{t+j}, v{t+j} clamp")
            for j in range(4): k.e(f"v_max_f32 v{r+i+j}, 0, v{r+i+j}")
            for j in range(4): k.e(f"v_add_f32 v{r+i+j}, s62, v{r+i+j}")
            for j in range(4): k.e(f"v_add_f32 v{r+i+j}, v{t+j}, v{r+i+j}")
        return
    for i in range(0, n, 8):
        for j in range(0, 8, 2): k.e(f"v_pk_mul_f32 {vr(t+j,2)}, {vr(r+i+j,2)}, s[66:67]")
        for j in range(8): k.e(f"v_exp_f32 v{t+j}, v{t+j} clamp")
        for j in range(8): k.e(f"v_max_f32 v{r+i+j}, 0, v{r+i+j}")
        for j in range(0, 8, 2): k.e(f"v_pk_add_f32 {vr(r+i+j,2)}, {vr(r+i+j,2)}, s[62:63]")
        for j in range(0, 8, 2): k.e(f"v_pk_add_f32 {vr(r+i+j,2)}, {vr(r+i+j,2)}, {vr(t+j,2)}")

ACC = 8
BUF = [72, 88, 104, 120]
VXA, VWA = 136, 140
EP = 144
PFD = 208

def rd_x(k, buf, j, t): k.e(f"ds_read_b128 {vr(BUF[buf]+4*t,4)}, v{VXA+j} offset:{t*4096}")
def rd_w(k, buf, j, p, slot):
    for s2 in range(2):
        k.e(f"ds_read_b64_tr_b16 {vr(BUF[buf]+8+4*slot+2*s2,2)}, v{VWA} offset:{p*8192 + j*2048 + s2*512}")
def reads(k, role, buf, j):
    rd_x(k, buf, j, 0); rd_x(k, buf, j, 1)
    if role == 'kv': rd_w(k, buf, j, 1, 0); rd_w(k, buf, j, 2, 1)
    else: rd_w(k, buf, j, 0, 0)

def kstep(k, role, br, j, first=False, noreads=False, wait=None):
    nb = (j + 2) & 3; b = BUF[j]
    if noreads:
        X = [vr(b,4), vr(b+4,4)]; W = [vr(b+8,4), vr(b+12,4)]
        k.e(f"s_waitcnt lgkmcnt({wait})")
        for t in range(2):
            a = ACC + 16*t
            if role == 'kv' and br == 'A': k.e(f"{MF} {vr(a,16)}, {X[t]}, {W[0]}, {vr(a,16)}")
            else: k.e(f"{MF} {vr(a,16)}, {W[0]}, {X[t]}, {vr(a,16)}")
        if role == 'kv':
            for t in range(2):
                a = ACC + 32 + 16*t
                k.e(f"{MF} {vr(a,16)}, {X[t]}, {W[1]}, {vr(a,16)}")
        return
    X = [vr(b,4), vr(b+4,4)]; W = [vr(b+8,4), vr(b+12,4)]
    def C(a): return "0" if first else vr(a,16)
    if role == 'kv':
        k.e("s_waitcnt lgkmcnt(6)")
        for t in range(2):
            a = ACC + 16*t
            if br == 'B': k.e(f"{MF} {vr(a,16)}, {W[0]}, {X[t]}, {C(a)}")
            else:         k.e(f"{MF} {vr(a,16)}, {X[t]}, {W[0]}, {C(a)}")
            if t == 0: rd_x(k, nb, nb, 0); rd_x(k, nb, nb, 1)
            else: rd_w(k, nb, nb, 1, 0)
        for t in range(2):
            a = ACC + 32 + 16*t
            k.e(f"{MF} {vr(a,16)}, {X[t]}, {W[1]}, {C(a)}")
            if t == 0: rd_w(k, nb, nb, 2, 1)
    else:
        k.e("s_waitcnt lgkmcnt(4)")
        for t in range(2):
            a = ACC + 16*t
            k.e(f"{MF} {vr(a,16)}, {W[0]}, {X[t]}, {C(a)}")
            if t == 0: rd_x(k, nb, nb, 0); rd_x(k, nb, nb, 1)
            else: rd_w(k, nb, nb, 0, 0)

def consumer_tile(k, role, br, extra=None):
    lp = k.u("c"+role+br); ex = k.u("cx"+role+br)
    k.inp1 = True
    k.e("s_mov_b32 s48, 0")
    kstep(k, role, br, 0, first=True)
    k.lab(lp)
    k.e("s_add_u32 s49, s49, 1")
    k.e("s_and_b32 s50, s49, 3")
    k.e("s_cmp_eq_u32 s50, 0")
    k.e(f"s_cselect_b32 s50, 0x{(-3*SLOT) & 0xffffffff:x}, s69")
    kstep(k, role, br, 1)
    if extra: extra(k)
    if br == 'A' and role == 'kv':
        sk = k.u("novm")
        k.e(f"s_cmp_eq_u32 s48, {OPT['sigs']-8}")
        k.e(f"s_cbranch_scc0 {sk}")
        k.e("s_waitcnt vmcnt(0)")
        k.lab(sk)
    for j in range(4): k.e(f"v_add_u32 v{VXA+j}, s50, v{VXA+j}")
    k.e(f"v_add_u32 v{VWA}, s50, v{VWA}")
    k.e("s_barrier")
    k.e("s_cmp_lt_u32 s48, 7")
    k.e(f"s_cbranch_scc0 {ex}")
    kstep(k, role, br, 2)
    kstep(k, role, br, 3)
    k.e("s_add_u32 s48, s48, 1")
    kstep(k, role, br, 0)
    k.e(f"s_branch {lp}")
    k.lab(ex)
    n = 6 if role == 'kv' else 4
    kstep(k, role, br, 2, noreads=True, wait=n)
    kstep(k, role, br, 3, noreads=True, wait=0)
    k.inp1 = False

def consumer_setup(k):
    k.e("v_and_b32 v1, 31, v0")
    k.e("v_lshrrev_b32 v2, 5, v0")
    k.e("v_bfe_u32 v3, v0, 1, 3")
    k.e("v_xor_b32 v3, v3, v2")
    k.e("v_lshlrev_b32 v3, 4, v3")
    k.e("v_lshlrev_b32 v1, 7, v1")
    k.e(f"v_add_u32 v{VXA}, v1, v3")
    for j in range(1, 4): k.e(f"v_xor_b32 v{VXA+j}, {j<<5}, v{VXA}")
    k.e("v_bfe_u32 v1, v0, 2, 2")
    k.e("v_and_b32 v2, 3, v0")
    k.e("v_bfe_u32 v3, v0, 4, 1")
    k.e("v_lshrrev_b32 v4, 5, v0")
    k.e("v_lshlrev_b32 v4, 3, v4")
    k.e("v_add_u32 v4, v4, v1")
    k.e("v_lshlrev_b32 v4, 7, v4")
    k.e("v_lshlrev_b32 v3, 1, v3")
    k.e("v_lshrrev_b32 v5, 1, v2")
    k.e("v_add_u32 v3, v3, v5")
    k.e("s_lshl_b32 s48, s27, 2")
    k.e("v_add_u32 v3, s48, v3")
    k.e("v_and_b32 v5, 2, v1")
    k.e("v_lshlrev_b32 v5, 1, v5")
    k.e("v_xor_b32 v3, v3, v5")
    k.e("v_lshlrev_b32 v3, 4, v3")
    k.e("v_and_b32 v2, 1, v2")
    k.e("v_lshlrev_b32 v2, 3, v2")
    k.e("v_add3_u32 v4, v4, v3, v2")
    k.e(f"v_add_u32 v{VWA}, 8192, v4")

def read_nonce(k, va, vb):
    k.e(f"v_mov_b32 v{va}, {NONCE_L}")
    k.e(f"ds_read_b32 v{vb}, v{va}")
    k.e("s_waitcnt lgkmcnt(0)")
    k.e(f"v_readfirstlane_b32 s{S_NONCE}, v{vb}")

def pf_setup(k, pw, px):
    k.e("s_and_b32 s50, s2, 7")
    k.e("s_lshr_b32 s51, s2, 3")
    k.e("v_lshrrev_b32 v5, 2, v0")
    k.e("s_lshl_b32 s52, s51, 4")
    k.e("v_add_u32 v5, s52, v5")
    k.e("v_mul_u32_u24 v5, 3072, v5")
    k.e("v_and_b32 v6, 3, v0")
    k.e("s_lshr_b32 s52, s50, 2")
    k.e("s_lshl_b32 s52, s52, 2")
    k.e("v_add_u32 v6, s52, v6")
    k.e("v_lshlrev_b32 v6, 7, v6")
    k.e("v_add_u32 v5, v5, v6")
    k.e("v_lshlrev_b32 v6, 7, v0")
    k.e("s_and_b32 s52, s50, 3")
    k.e("s_lshl_b32 s52, s52, 9")
    k.e("s_lshl_b32 s53, s51, 4")
    k.e("s_add_u32 s52, s52, s53")
    k.e("s_lshl_b32 s66, s52, 10")
    k.e("s_lshl_b32 s67, s51, 14")
    k.e("s_lshr_b32 s68, s50, 2")

def gen(stamps=False):
    k = K(stamps)
    k.lab(KNAME)
    k.e("s_cmp_ge_u32 s2, 256")
    k.e("s_cbranch_scc1 L_end")
    if stamps: k.e("s_memrealtime s[70:71]")
    if OPT['fixdur']: k.e("s_memrealtime s[100:101]")
    k.e("s_load_dwordx16 s[4:19], s[0:1], 0")
    k.e("s_load_dwordx2 s[20:21], s[0:1], 64")
    k.e("v_lshrrev_b32 v1, 6, v0")
    k.e("v_and_b32 v0, 63, v0")
    k.e(f"v_readfirstlane_b32 s{S_WAVE}, v1")
    k.e("s_and_b32 s26, s2, 7")
    k.e("s_lshr_b32 s27, s2, 3")
    k.e("s_and_b32 s48, s26, 3")
    k.e("s_lshl_b32 s48, s48, 3")
    if OPT['map'] == 0:
        k.e("s_and_b32 s49, s27, 7")
    else:
        k.e("s_lshr_b32 s49, s27, 2")
    k.e(f"s_add_u32 s{S_RB}, s48, s49")
    k.e("s_lshr_b32 s48, s26, 2")
    k.e("s_lshl_b32 s48, s48, 2")
    if OPT['map'] == 0:
        k.e("s_lshr_b32 s49, s27, 3")
    else:
        k.e("s_and_b32 s49, s27, 3")
    k.e(f"s_add_u32 s{S_G}, s48, s49")
    k.e(f"s_cmp_lt_u32 s{S_WAVE}, 4")
    k.e("s_cbranch_scc1 L_consumer")

    loader(k)
    k.e("s_branch L_attn")

    k.lab("L_consumer")
    k.e("s_waitcnt lgkmcnt(0)")
    if OPT['fixdur']: k.e("s_mov_b32 s3, s100")
    if stamps: k.e("s_mov_b32 s72, s70")
    srd(k, SRD_WS, P_WS, 256 << 20)
    srd(k, SRD_T, P_DBG, 256)
    srd(k, SRD_X, P_AW, 512*3072)
    k.e(f"s_and_b32 s27, s{S_WAVE}, 1")
    consumer_setup(k)
    attn_setup(k)
    nn = k.u("nononce")
    k.e(f"s_cmp_eq_u32 s{S_WAVE}, 0")
    k.e(f"s_cbranch_scc0 {nn}")
    k.e("v_mov_b32 v2, 0")
    nl = k.u("nolead")
    k.e("s_cmp_eq_u32 s2, 0")
    k.e(f"s_cbranch_scc0 {nl}")
    k.e("s_memrealtime s[58:59]")
    k.e("s_waitcnt lgkmcnt(0)")
    k.e("s_or_b32 s58, s58, 1")
    k.e("v_mov_b32 v3, s58")
    k.e(f"buffer_store_dword v3, v2, {sr(SRD_T,4)}, 0 offen sc1")
    k.lab(nl)
    k.lab(nn)
    k.e("s_mov_b32 s49, 0")
    k.e(f"s_mov_b32 s69, {SLOT}")
    k.e(f"s_cmp_ge_u32 s{S_WAVE}, 2")
    k.e("s_cbranch_scc1 L_qwave")

    k.e("s_barrier")
    k.stamp(1)
    reads(k, 'kv', 0, 0); reads(k, 'kv', 1, 1)
    consumer_tile(k, 'kv', 'B')
    k.stamp(2)
    k.c("B epilogue (kv)")
    read_nonce(k, 2, 3)
    k.e(f"s_lshl_b32 s62, s{S_G}, 2")
    k.e("s_lshl_b32 s63, s27, 1")
    k.e("s_add_u32 s62, s62, s63")
    k.e("s_lshl_b32 s62, s62, 6")
    k.e(f"s_lshl_b32 s63, s{S_RB}, 1")
    k.e("s_add_u32 s62, s62, s63")
    k.e("s_lshl_b32 s62, s62, 10")
    k.e("v_lshlrev_b32 v1, 4, v0")
    k.e("s_lshl_b32 s63, s27, 12")
    k.e(f"s_add_u32 s63, s63, {OK_L}")
    k.e("v_add_u32 v4, s63, v1")
    k.e("v_bfe_u32 v2, v0, 4, 1")
    k.e("v_lshrrev_b32 v3, 5, v0")
    k.e("v_lshlrev_b32 v3, 8, v3")
    k.e("v_and_b32 v5, 15, v0")
    k.e("v_lshlrev_b32 v5, 4, v5")
    k.e("v_add_u32 v3, v3, v5")
    k.e("v_lshlrev_b32 v5, 11, v2")
    k.e("v_add_u32 v5, v5, v3")
    k.e(f"s_add_u32 s63, s63, {OV_L - OK_L}")
    k.e("v_add_u32 v5, s63, v5")
    k.e("v_lshlrev_b32 v2, 16, v2")
    k.e("v_add_u32 v2, v2, v3")
    k.e(f"s_add_u32 s64, s62, {KB_G + 65536}")
    k.e(f"s_add_u32 s65, s62, {VB_G}")
    k.e("s_nop 3")
    for t in range(2):
        KF = EP + 16*t; VF = KF + 8
        cvt8(k, KF, ACC+16*t); cvt8(k, KF+4, ACC+16*t+8)
        cvt8(k, VF, ACC+32+16*t); cvt8(k, VF+4, ACC+32+16*t+8)
        k.e(f"buffer_store_dwordx4 {vr(KF,4)}, v1, {WS}, s62 offen offset:{t*1024} sc1")
        k.e(f"buffer_store_dwordx4 {vr(KF+4,4)}, v1, {WS}, s64 offen offset:{t*1024} sc1")
        k.e(f"buffer_store_dwordx4 {vr(VF,4)}, v2, {WS}, s65 offen offset:{t*1024} sc1")
        k.e(f"buffer_store_dwordx4 {vr(VF+4,4)}, v2, {WS}, s65 offen offset:{t*1024+512} sc1")
        k.e(f"ds_write_b128 v4, {vr(KF,4)} offset:{t*1024}")
        k.e(f"ds_write_b128 v4, {vr(KF+4,4)} offset:{t*1024+2048}")
        k.e(f"ds_write_b128 v5, {vr(VF,4)} offset:{t*1024}")
        k.e(f"ds_write_b128 v5, {vr(VF+4,4)} offset:{t*1024+512}")
    k.stamp(3)
    k.e("s_barrier")
    reads(k, 'kv', 0, 0); reads(k, 'kv', 1, 1)
    consumer_tile(k, 'kv', 'A')
    k.e("s_waitcnt lgkmcnt(0)")
    k.e("s_barrier")
    k.stamp(4)
    k.c("A epilogue (kv)")
    if OPT['kvprio']: k.e("s_setprio 2")
    T = 72
    k.e(f"s_mov_b32 s61, {lit(LOG2E)}")
    k.e(f"s_mov_b32 s62, {lit(1e-6)}")
    k.e("s_mov_b32 s63, s62")
    k.e("s_mov_b32 s66, s61")
    k.e("s_mov_b32 s67, s61")
    PK, VV, ONES = 80, 96, 112
    for j in range(4): k.e(f"v_mov_b32 v{ONES+j}, 0x3f803f80")
    k.e("s_nop 3")
    for t in range(2):
        cvt8(k, VV+8*t, ACC+32+16*t); cvt8(k, VV+8*t+4, ACC+32+16*t+8)
    DKV, DZ = ACC+32, ACC+48
    for t in range(2):
        phi(k, ACC+16*t, 16, T)
        cvt8(k, PK+8*t, ACC+16*t); cvt8(k, PK+8*t+4, ACC+16*t+8)
        k.e("s_nop 1")
        for m in range(2):
            first = (t == 0 and m == 0)
            k.e(f"{MF} {vr(DKV,16)}, {vr(PK+8*t+4*m,4)}, {vr(VV+8*t+4*m,4)}, {'0' if first else vr(DKV,16)}")
            k.e(f"{MF} {vr(DZ,16)}, {vr(ONES,4)}, {vr(PK+8*t+4*m,4)}, {'0' if first else vr(DZ,16)}")
    k.e("s_mov_b32 s64, 0xffff0000")
    k.e("s_mov_b32 s65, 0xffff0000")
    k.e(f"s_lshl_b32 s63, s{S_G}, 1")
    k.e("s_add_u32 s63, s63, s27")
    k.e("s_lshl_b32 s63, s63, 12")
    k.e(f"s_add_u32 s63, s63, {KVACC}")
    k.e("v_lshlrev_b32 v3, 2, v0")
    k.e("s_nop 5")
    RS = 120
    for t in range(8): k.e(f"v_cndmask_b32 v{RS+t}, v{DKV+t}, v{DKV+8+t}, s[64:65]")
    for t in range(8): k.e(f"buffer_atomic_add_f32 v{RS+t}, v3, {WS}, s63 offen offset:{t*256}")
    k.e("s_mov_b32 exec_hi, 0")
    k.e(f"buffer_atomic_add_f32 v{DZ}, v3, {WS}, s63 offen offset:2048")
    k.e("s_mov_b64 exec, -1")
    if OPT['kvprio']: k.e("s_setprio 0")
    k.e("s_branch L_e1")

    k.lab("L_qwave")
    k.e("v_mov_b32 v251, 0")
    k.e("s_barrier")
    k.stamp(1)
    reads(k, 'q', 0, 0); reads(k, 'q', 1, 1)
    def pf_extra(k):
        ex = k.u("pfx"); w3 = k.u("pfw3")
        n1 = k.u("nn1"); n2 = k.u("nn2")
        k.e(f"s_cmp_eq_u32 s{S_WAVE}, 2")
        k.e(f"s_cbranch_scc0 {n2}")
        k.e("s_cmp_eq_u32 s48, 0")
        k.e(f"s_cbranch_scc0 {n1}")
        k.e(f"buffer_load_dword v7, v251, {sr(SRD_T,4)}, 0 offen sc1")
        k.lab(n1)
        k.e("s_cmp_eq_u32 s48, 6")
        k.e(f"s_cbranch_scc0 {n2}")
        lp = k.u("np"); npx = k.u("npx"); chk = k.u("npc")
        k.e("s_mov_b32 s60, 0")
        k.e(f"s_branch {chk}")
        k.lab(lp)
        k.e(f"buffer_load_dword v7, v251, {sr(SRD_T,4)}, 0 offen sc1")
        k.lab(chk)
        spin_guard(k, 60, npx)
        k.e("s_waitcnt vmcnt(0)")
        k.e("v_readfirstlane_b32 s58, v7")
        k.e("s_nop 0")
        k.e("s_cmp_eq_u32 s58, 0")
        k.e(f"s_cbranch_scc1 {lp}")
        k.lab(npx)
        k.e("s_waitcnt vmcnt(0)")
        k.e(f"v_mov_b32 v250, {NONCE_L}")
        k.e("ds_write_b32 v250, v7")
        k.lab(n2)
    consumer_tile(k, 'q', 'B', pf_extra)
    k.stamp(2)
    k.c("B epilogue (q)")
    read_nonce(k, 2, 3)
    k.e(f"s_mov_b32 s61, {lit(CS)}")
    k.e("v_lshlrev_b32 v1, 4, v0")
    k.e("s_lshl_b32 s63, s27, 12")
    k.e(f"s_add_u32 s63, s63, {Q_L}")
    k.e("v_add_u32 v4, s63, v1")
    k.e("s_nop 6")
    for t in range(2):
        for i in range(16): k.e(f"v_mul_f32 v{ACC+16*t+i}, s61, v{ACC+16*t+i}")
        QF = EP + 8*t
        cvt8(k, QF, ACC+16*t); cvt8(k, QF+4, ACC+16*t+8)
        k.e(f"ds_write_b128 v4, {vr(QF,4)} offset:{t*1024}")
        k.e(f"ds_write_b128 v4, {vr(QF+4,4)} offset:{t*1024+2048}")
    k.stamp(3)
    k.e("s_barrier")
    reads(k, 'q', 0, 0); reads(k, 'q', 1, 1)
    consumer_tile(k, 'q', 'A')
    k.e("s_waitcnt lgkmcnt(0)")
    k.e("s_barrier")
    k.stamp(4)
    k.c("A epilogue (q)")
    k.e(f"s_mov_b32 s61, {lit(LOG2E)}")
    k.e(f"s_mov_b32 s62, {lit(1e-6)}")
    k.e("s_mov_b32 s63, s62")
    k.e("s_mov_b32 s66, s61")
    k.e("s_mov_b32 s67, s61")
    k.e("v_lshlrev_b32 v1, 4, v0")
    k.e("s_lshl_b32 s65, s27, 12")
    k.e(f"s_add_u32 s65, s65, {PQ_L}")
    k.e("v_add_u32 v4, s65, v1")
    k.e("s_nop 4")
    for t in range(2):
        phi(k, ACC+16*t, 16, 72)
        QF = EP + 8*t
        cvt8(k, QF, ACC+16*t); cvt8(k, QF+4, ACC+16*t+8)
        k.e(f"ds_write_b128 v4, {vr(QF,4)} offset:{t*1024}")
        k.e(f"ds_write_b128 v4, {vr(QF+4,4)} offset:{t*1024+2048}")
    k.e("s_waitcnt lgkmcnt(0)")
    k.lab("L_e1")

    k.lab("L_attn")
    if OPT['prio']:
        sk = k.u("prio")
        k.e(f"s_cmp_ge_u32 s{S_WAVE}, 4")
        k.e(f"s_cbranch_scc{0 if OPT['prio'] == 1 else 1} {sk}")
        k.e("s_setprio 1")
        k.lab(sk)
    k.stamp(7)
    attention(k)
    k.stamp(9)
    apart(k)
    k.stamp(10)
    k.e("s_waitcnt vmcnt(0) lgkmcnt(0)")
    k.e("s_barrier")
    k.stamp(11)
    sk = k.u("nof2")
    k.e(f"s_cmp_eq_u32 s{S_WAVE}, 4")
    k.e(f"s_cbranch_scc0 {sk}")
    k.e(f"s_lshr_b32 s48, s{S_RB}, 1")
    k.e("s_lshl_b32 s48, s48, 11")
    k.e(f"s_and_b32 s49, s{S_RB}, 1")
    k.e("s_lshl_b32 s49, s49, 3")
    k.e(f"s_add_u32 s49, s49, s{S_G}")
    k.e("s_lshl_b32 s49, s49, 7")
    k.e("s_add_u32 s48, s48, s49")
    k.e(f"s_add_u32 s48, s48, {F2}")
    store_flag(k, 48)
    k.lab(sk)
    p3(k)
    k.lab("L_fin")
    if OPT['fixdur']:
        lp = k.u("fix")
        k.lab(lp)
        k.e("s_memrealtime s[90:91]")
        k.e("s_waitcnt lgkmcnt(0)")
        k.e("s_sub_u32 s90, s90, s3")
        k.e(f"s_cmp_lt_u32 s90, {OPT['fixdur']}")
        k.e(f"s_cbranch_scc1 {lp}")
    if stamps:
        k.stamp(13)
        k.e(f"s_lshl_b32 s48, s2, 3")
        k.e(f"s_add_u32 s48, s48, s{S_WAVE}")
        k.e("s_lshl_b32 s48, s48, 6")
        k.e(f"s_add_u32 s48, s48, {STAMP}")
        k.e("v_mov_b32 v9, 0")
        for j in range(16):
            k.e(f"v_mov_b32 v8, s{72+j}")
            k.e(f"buffer_store_dword v8, v9, {WS}, s48 offen offset:{4*j}")
            k.e("s_nop 0")
    if stamps and OPT['dbgstamps']:
        srd(k, SRD_T, P_DBG, 256)
        for wg, base in ((8, 1), (200, 8)):
            sk = k.u("nodbg")
            k.e(f"s_cmp_eq_u32 s2, {wg}")
            k.e(f"s_cbranch_scc0 {sk}")
            k.e(f"s_cmp_eq_u32 s{S_WAVE}, 0")
            k.e(f"s_cbranch_scc0 {sk}")
            k.e("v_mov_b32 v9, 0")
            for n, j in enumerate((1, 2, 4, 9, 10, 11, 13)):
                k.e(f"s_sub_u32 s48, s{72+j}, s72")
                k.e("v_mov_b32 v8, s48")
                k.e(f"buffer_store_dword v8, v9, {sr(SRD_T,4)}, 0 offen offset:{4*(base+n)}")
                k.e("s_nop 0")
            k.lab(sk)
    if OPT['stagest']:
        sk = k.u("nost")
        k.e(f"s_cmp_eq_u32 s{S_WAVE}, 4")
        k.e(f"s_cbranch_scc0 {sk}")
        k.e("s_lshl_b32 s48, s2, 8")
        k.e(f"s_add_u32 s48, s48, {STAMP + (1<<19)}")
        k.e("v_lshlrev_b32 v9, 2, v0")
        k.e(f"buffer_store_dword v252, v9, {WS}, s48 offen")
        k.lab(sk)
    k.lab("L_end")
    k.e("s_endpgm")
    return k

def issue_stage(k):
    k.e("s_lshl_b32 s52, s59, 7")
    k.e("s_mul_i32 s53, s59, 196608")
    k.e("s_mov_b32 m0, s51")
    k.e("s_add_u32 s54, s53, 23552")
    k.e(f"buffer_load_dwordx4 v1, {sr(SRD_X,4)}, s52 offen lds")
    k.e(f"buffer_load_dwordx4 v2, {sr(SRD_X,4)}, s52 offen offset:1024 lds")
    for p in range(3):
        k.e(f"s_add_u32 s55, s51, {8192 + p*8192}")
        k.e("s_mov_b32 m0, s55")
        if p: k.e(f"s_add_u32 s56, s53, {p*1024}"); so0 = "s56"
        else: so0 = "s53"; k.e("s_nop 0")
        k.e(f"buffer_load_dwordx4 v3, {sr(SRD_W,4)}, {so0} offen lds")
        if p: k.e(f"s_add_u32 s56, s54, {p*1024}"); so1 = "s56"
        else: so1 = "s54"
        k.e(f"buffer_load_dwordx4 v3, {sr(SRD_W,4)}, {so1} offen offset:1024 lds")
    k.e("s_add_u32 s57, s57, 1")
    k.e("s_add_u32 s59, s59, 1")
    k.e("s_and_b32 s59, s59, 7")
    k.e(f"s_add_u32 s51, s51, {SLOT}")
    k.e("s_and_b32 s58, s57, 3")
    sk = k.u("nowrap")
    k.e("s_cmp_eq_u32 s58, 0")
    k.e(f"s_cbranch_scc0 {sk}")
    k.e(f"s_sub_u32 s51, s51, {4*SLOT}")
    k.lab(sk)
    sk2 = k.u("nosw")
    k.e("s_cmp_eq_u32 s57, 8")
    k.e(f"s_cbranch_scc0 {sk2}")
    srd(k, SRD_X, P_AX, 2 << 20)
    srd(k, SRD_W, P_AW, 512*3072)
    k.lab(sk2)

def pf0(k):
    k.e("s_and_b32 s50, s2, 7")
    k.e("s_lshr_b32 s52, s2, 3")
    wx = k.u("pf0x"); ex = k.u("pf0e")
    k.e("s_cmp_lt_u32 s26, 3")
    k.e(f"s_cbranch_scc0 {wx}")
    srd(k, SRD_T, P_AW, 512*3072)
    k.e("v_lshrrev_b32 v5, 2, v0")
    k.e("s_lshl_b32 s53, s52, 4")
    k.e("v_add_u32 v5, s53, v5")
    k.e("v_mul_u32_u24 v5, 3072, v5")
    k.e("v_and_b32 v6, 3, v0")
    k.e("s_lshr_b32 s53, s50, 2")
    k.e("s_lshl_b32 s53, s53, 2")
    k.e("v_add_u32 v6, s53, v6")
    k.e("v_lshlrev_b32 v6, 7, v6")
    k.e("v_add_u32 v5, v5, v6")
    k.e("s_lshl_b32 s53, s26, 10")
    k.e(f"buffer_load_dword v6, v5, {sr(SRD_T,4)}, s53 offen")
    k.e(f"buffer_load_dword v7, v5, {sr(SRD_T,4)}, s53 offen")
    k.e(f"s_branch {ex}")
    k.lab(wx)
    srd(k, SRD_T, P_AX, 2 << 20)
    k.e("s_and_b32 s53, s50, 3")
    k.e("s_lshl_b32 s53, s53, 9")
    k.e("s_lshl_b32 s54, s52, 4")
    k.e("s_add_u32 s53, s53, s54")
    k.e("s_lshl_b32 s53, s53, 10")
    k.e("v_lshlrev_b32 v5, 7, v0")
    k.e(f"buffer_load_dword v6, v5, {sr(SRD_T,4)}, s53 offen")
    k.e("s_add_u32 s53, s53, 8192")
    k.e(f"buffer_load_dword v7, v5, {sr(SRD_T,4)}, s53 offen")
    k.lab(ex)

def pfsetup(k):
    k.e("s_and_b32 s50, s2, 7")
    k.e("s_lshr_b32 s52, s2, 3")
    k.e("s_mov_b32 s66, 1")
    wx = k.u("pfwx"); wo = k.u("pfwo"); ex = k.u("pfex")
    k.e("s_cmp_lt_u32 s26, 2")
    k.e(f"s_cbranch_scc0 {wx}")
    srd(k, SRD_T, P_BW, 512*3072)
    k.e("v_min_u32 v4, 11, v0")
    k.e("v_lshrrev_b32 v5, 2, v4")
    k.e("v_lshlrev_b32 v5, 10, v5")
    k.e("v_and_b32 v4, 3, v4")
    k.e("s_lshr_b32 s53, s50, 2")
    k.e("s_lshl_b32 s53, s53, 2")
    k.e("v_add_u32 v4, s53, v4")
    k.e("v_lshlrev_b32 v4, 7, v4")
    k.e("s_lshl_b32 s53, s52, 1")
    k.e("s_add_u32 s53, s53, s26")
    k.e("s_mul_i32 s53, s53, 3072")
    k.e("v_add3_u32 v4, v4, v5, s53")
    k.e("s_mov_b32 s65, 196608")
    k.e("s_mov_b32 s64, 196608")
    k.e(f"s_branch {ex}")
    k.lab(wx)
    k.e("s_cmp_eq_u32 s26, 2")
    k.e(f"s_cbranch_scc0 {wo}")
    srd(k, SRD_T, P_BX, 2 << 20)
    k.e("v_min_u32 v4, 15, v0")
    k.e("s_and_b32 s53, s50, 3")
    k.e("s_lshl_b32 s53, s53, 9")
    k.e("s_lshl_b32 s54, s52, 4")
    k.e("s_add_u32 s53, s53, s54")
    k.e("v_add_u32 v4, s53, v4")
    k.e("v_lshlrev_b32 v4, 10, v4")
    k.e("s_mov_b32 s65, 128")
    k.e("s_mov_b32 s64, 128")
    k.e(f"s_branch {ex}")
    k.lab(wo)
    k.e("s_lshr_b32 s53, s50, 2")
    k.e("s_cmp_eq_u32 s53, 0")
    k.e(f"s_cselect_b32 s{SRD_T}, s{P_AWO}, s{P_BWO}")
    k.e(f"s_cselect_b32 s{SRD_T+1}, s{P_AWO+1}, s{P_BWO+1}")
    k.e(f"s_mov_b32 s{SRD_T+2}, 0x{512*1024:x}")
    k.e(f"s_mov_b32 s{SRD_T+3}, 0x20000")
    k.e("v_min_u32 v4, 8, v0")
    k.e("v_lshlrev_b32 v4, 7, v4")
    k.e("s_lshl_b32 s53, s52, 14")
    k.e("v_add_u32 v4, s53, v4")
    k.e("s_mov_b32 s65, 1152")
    k.e("s_mov_b32 s64, 0")
    k.lab(ex)

def pf_issue(k):
    sk = k.u("pfsw")
    k.e("s_cmp_eq_u32 s66, 8")
    k.e(f"s_cbranch_scc0 {sk}")
    k.e("s_cmp_lt_u32 s26, 3")
    k.e(f"s_cbranch_scc0 {sk}")
    k.e("s_mov_b32 s64, 0")
    k.e("s_cmp_lt_u32 s26, 2")
    k.e(f"s_cselect_b32 s{SRD_T}, s{P_AW}, s{P_AX}")
    k.e(f"s_cselect_b32 s{SRD_T+1}, s{P_AW+1}, s{P_AX+1}")
    k.lab(sk)
    k.e(f"buffer_load_dword v5, v4, {sr(SRD_T,4)}, s64 offen")
    k.e("s_add_u32 s64, s64, s65")
    k.e("s_add_u32 s66, s66, 1")

def loader(k):
    k.e(f"s_sub_u32 s26, s{S_WAVE}, 4")
    k.e("v_lshrrev_b32 v4, 3, v0")
    k.e("v_and_b32 v5, 7, v0")
    k.e("v_lshrrev_b32 v6, 1, v4")
    k.e("v_xor_b32 v7, v5, v6")
    k.e("v_lshlrev_b32 v7, 4, v7")
    k.e(f"s_lshl_b32 s48, s{S_RB}, 6")
    k.e("s_lshl_b32 s49, s26, 4")
    k.e("s_add_u32 s48, s48, s49")
    k.e("v_add_u32 v1, s48, v4")
    k.e("v_lshlrev_b32 v1, 10, v1")
    k.e("v_add_u32 v2, 7168, v1")
    k.e("v_add_u32 v1, v1, v7")
    k.e("v_xor_b32 v7, 64, v7")
    k.e("v_add_u32 v2, v2, v7")
    k.e("v_add_u32 v3, s49, v4")
    k.e("v_mul_u32_u24 v3, 3072, v3")
    k.e("v_and_b32 v6, 2, v4")
    k.e("v_lshlrev_b32 v6, 1, v6")
    k.e("v_xor_b32 v6, v5, v6")
    k.e("v_lshlrev_b32 v6, 4, v6")
    k.e(f"s_lshl_b32 s49, s{S_G}, 7")
    k.e("v_add3_u32 v3, v3, v6, s49")
    k.e("s_lshl_b32 s51, s26, 11")
    k.e("s_mov_b32 s57, 0")
    if OPT['rot'] == 9:
        k.e(f"s_and_b32 s59, s{S_G}, 3")
        k.e("s_sub_u32 s59, 3, s59")
        k.e("s_lshl_b32 s59, s59, 1")
        k.e(f"s_add_u32 s59, s59, s{S_RB}")
        k.e("s_and_b32 s59, s59, 7")
    elif OPT['rot'] == 8:
        k.e(f"s_and_b32 s59, s{S_G}, 3")
        k.e("s_lshl_b32 s59, s59, 1")
        k.e(f"s_add_u32 s59, s59, s{S_RB}")
        k.e("s_and_b32 s59, s59, 7")
    elif OPT['rot'] == 2:
        k.e(f"s_add_u32 s59, s{S_G}, s{S_RB}")
        k.e("s_and_b32 s59, s59, 1")
        k.e("s_lshl_b32 s59, s59, 2")
    elif OPT['rot'] == 4:
        k.e(f"s_add_u32 s59, s{S_G}, s{S_RB}")
        k.e("s_and_b32 s59, s59, 3")
        k.e("s_lshl_b32 s59, s59, 1")
    else:
        k.e("s_mov_b32 s59, 0")
    k.e("s_waitcnt lgkmcnt(0)")
    if OPT['fixdur']: k.e("s_mov_b32 s3, s100")
    if k.stamps: k.e("s_mov_b32 s72, s70")
    srd(k, SRD_X, P_BX, 2 << 20)
    srd(k, SRD_W, P_BW, 512*3072)
    issue_stage(k)
    if OPT['tpf']:
        pfsetup(k)
        for j in range(4): pf_issue(k)
    else:
        if OPT['pf0']: pf0(k)
        issue_stage(k)
    srd(k, SRD_WS, P_WS, 256 << 20)
    sk = k.u("nopf")
    k.e("s_cmp_eq_u32 s26, 3")
    k.e(f"s_cbranch_scc0 {sk}")
    k.e("s_getpc_b64 s[62:63]")
    k.lab("L_pc")
    k.e("s_and_b32 s62, s62, 0xffffff00")
    k.e("v_lshlrev_b32 v8, 7, v0")
    k.e(f"s_sub_u32 s62, s62, PF_BACK")
    k.e("s_subb_u32 s63, s63, 0")
    k.e("global_load_dword v9, v8, s[62:63]")
    k.e("v_add_u32 v8, 8192, v8")
    k.e("global_load_dword v10, v8, s[62:63]")
    k.e("v_add_u32 v8, 8192, v8")
    k.e("global_load_dword v11, v8, s[62:63]")
    k.lab(sk)
    attn_setup(k)
    ny = 4 if OPT['tpf'] else (10 if OPT['pf0'] else 8)
    k.e(f"s_waitcnt vmcnt({ny+3})")
    sk = k.u("w7")
    k.e("s_cmp_eq_u32 s26, 3")
    k.e(f"s_cbranch_scc1 {sk}")
    k.e(f"s_waitcnt vmcnt({ny})")
    k.lab(sk)
    k.e("s_barrier")
    if OPT['tpf']: issue_stage(k)
    issue_stage(k)
    sk = k.u("nozero")
    k.e(f"s_cmp_eq_u32 s{S_RB}, 0")
    k.e(f"s_cbranch_scc0 {sk}")
    k.e("s_cmp_lt_u32 s26, 2")
    k.e(f"s_cbranch_scc0 {sk}")
    k.e(f"s_lshl_b32 s48, s{S_G}, 1")
    k.e("s_add_u32 s48, s48, s26")
    k.e("s_lshl_b32 s48, s48, 12")
    k.e(f"s_add_u32 s48, s48, {KVACC}")
    for j in range(4): k.e(f"v_mov_b32 v{12+j}, 0")
    k.e("v_lshlrev_b32 v8, 4, v0")
    for j in range(3): k.e(f"buffer_store_dwordx4 v[12:15], v8, {WS}, s48 offen offset:{j*1024} sc1")
    k.e("s_waitcnt vmcnt(3)")
    k.lab(sk)
    k.stamp(1)
    k.e("s_mov_b32 s48, 0")
    lp = k.u("ldloop")
    k.lab(lp)
    w8 = k.u("w8"); w9 = k.u("w9"); wd = k.u("wd")
    k.e("s_cmp_eq_u32 s48, 7")
    k.e(f"s_cbranch_scc1 {wd}")
    if OPT['pf4']:
        w10 = k.u("w10"); nw = k.u("nw10")
        k.e(f"s_sub_u32 s49, s48, {OPT['pf4']+1}")
        k.e("s_cmp_lt_u32 s49, 2")
        k.e(f"s_cbranch_scc0 {nw}")
        k.e("s_waitcnt vmcnt(10)")
        k.e(f"s_branch {wd}")
        k.lab(nw)
    if not OPT['tpf']: k.e(f"s_branch {w8}")
    k.e("s_cmp_eq_u32 s48, 0")
    k.e(f"s_cbranch_scc1 {w8}")
    k.e("s_cmp_eq_u32 s48, 1")
    k.e(f"s_cbranch_scc1 {w9}")
    k.e("s_cmp_eq_u32 s48, 12")
    k.e(f"s_cbranch_scc1 {w9}")
    k.e("s_waitcnt vmcnt(10)")
    k.e(f"s_branch {wd}")
    k.lab(w9)
    k.e("s_waitcnt vmcnt(9)")
    k.e(f"s_branch {wd}")
    k.lab(w8)
    k.e("s_waitcnt vmcnt(8)")
    k.lab(wd)
    k.e("s_barrier")
    if OPT['stagest']:
        k.e("s_memrealtime s[90:91]"); k.e("s_waitcnt lgkmcnt(0)")
        k.e("s_mov_b32 m0, s48")
        k.e("s_nop 0")
        k.e("v_writelane_b32 v252, s90, m0")
    sk = k.u("nonn")
    k.e("s_cmp_eq_u32 s48, 7")
    k.e(f"s_cbranch_scc0 {sk}")
    read_nonce(k, 8, 9)
    k.lab(sk)
    sk = k.u("nosig2")
    k.e(f"s_cmp_eq_u32 s48, {OPT['sigs']}")
    k.e(f"s_cbranch_scc0 {sk}")
    k.e("s_cmp_eq_u32 s26, 0")
    k.e(f"s_cbranch_scc0 {sk}")
    k.e(f"s_lshl_b32 s49, s{S_G}, 12")
    k.e(f"s_lshl_b32 s50, s{S_RB}, 7")
    k.e("s_add_u32 s49, s49, s50")
    k.e(f"s_add_u32 s49, s49, {F1B}")
    store_flag(k, 49)
    k.lab(sk)
    if OPT['late9']:
        sk6 = k.u("skip6")
        k.e("s_cmp_eq_u32 s48, 6")
        k.e(f"s_cbranch_scc1 {sk6}")
    issue_stage(k)
    if OPT['late9']: k.lab(sk6)
    if OPT['pf4']:
        skp = k.u("nopf4")
        k.e(f"s_cmp_eq_u32 s48, {OPT['pf4']}")
        k.e(f"s_cbranch_scc0 {skp}")
        pf0(k)
        k.lab(skp)
    sk = k.u("nosig")
    k.e("s_cmp_eq_u32 s48, 7")
    k.e(f"s_cbranch_scc0 {sk}")
    if OPT['late9']: issue_stage(k)
    k.e("s_waitcnt vmcnt(16)")
    k.e("s_barrier")
    k.lab(sk)

    if OPT['tpf']:
        sk = k.u("nopfi")
        k.e("s_cmp_le_u32 s48, 10")
        k.e(f"s_cbranch_scc0 {sk}")
        pf_issue(k)
        k.lab(sk)
    k.e("s_add_u32 s48, s48, 1")
    k.e("s_cmp_lt_u32 s48, 12")
    k.e(f"s_cbranch_scc1 {lp}")
    k.e(f"s_sub_u32 s48, s{S_RB}, 4")
    k.e("v_add_u32 v8, s48, v0")
    k.e("v_max_i32 v8, 0, v8")
    k.e("v_cmp_gt_u32 vcc, 4, v0")
    k.e(f"s_lshl_b32 s49, s{S_G}, 12")
    k.e(f"s_add_u32 s49, s49, {F1B}")
    k.e("v_cndmask_b32 v8, 0, v8, vcc")
    k.e("v_lshlrev_b32 v8, 7, v8")
    k.e("v_add_u32 v8, s49, v8")
    k.e("s_cmp_eq_u32 s26, 0")
    k.e("s_cselect_b32 s62, 31, 15")
    k.e("s_mov_b32 s63, 0")
    k.e("s_waitcnt vmcnt(8)");  k.e("s_barrier")
    k.e("s_mov_b64 exec, s[62:63]")
    k.e(f"buffer_load_dword v9, v8, {WS}, 0 offen sc1")
    k.e("s_mov_b64 exec, -1")
    issue_stage(k)
    k.e("s_waitcnt vmcnt(9)");  k.e("s_barrier")
    lp = k.u("f1b_lp"); ok = k.u("f1b_ok")
    k.e("s_mov_b64 exec, s[62:63]")
    k.e("s_waitcnt vmcnt(8)")
    k.e(f"v_cmp_ne_u32 vcc, s{S_NONCE}, v9")
    k.e("s_nop 1")
    k.e(f"s_cbranch_vccz {ok}")
    poll_flags(k, 8, 9, "f1b")
    k.lab(ok)
    k.e("s_mov_b64 exec, -1")
    k.stamp(5)
    if OPT['remdma']:
        sk = k.u("norem"); jn = k.u("remj")
        k.e(f"s_cmp_eq_u32 s{S_RB}, 0")
        k.e(f"s_cbranch_scc1 {sk}")
        k.e("v_lshlrev_b32 v8, 4, v0")
        k.e(f"s_lshl_b32 s48, s{S_G}, 2")
        k.e("s_add_u32 s48, s48, s26")
        k.e("s_lshl_b32 s48, s48, 6")
        k.e(f"s_lshl_b32 s49, s{S_RB}, 1")
        k.e("s_sub_u32 s49, s49, 8")
        k.e("s_lshl_b32 s52, s26, 13")
        def rem(base_g, base_l):
            for j in range(8):
                k.e(f"s_add_i32 s50, s49, {j}")
                k.e("s_max_i32 s50, s50, 0")
                k.e("s_add_u32 s50, s50, s48")
                k.e("s_lshl_b32 s50, s50, 10")
                if base_g: k.e(f"s_add_u32 s50, s50, {base_g}")
                k.e(f"s_add_u32 s51, s52, {base_l + j*1024}")
                k.e("s_mov_b32 m0, s51")
                k.e("s_nop 0")
                k.e(f"buffer_load_dwordx4 v8, {WS}, s50 offen sc1 lds")
        rem(KB_G, RK_L)
        k.e("s_waitcnt vmcnt(8)");  k.e("s_barrier")
        rem(VB_G, RV_L)
        k.e("s_barrier")
        k.e("s_waitcnt vmcnt(0)")
        k.e(f"s_branch {jn}")
        k.lab(sk)
        k.e("s_waitcnt vmcnt(0)");  k.e("s_barrier")
        k.e("s_barrier")
        k.lab(jn)
    else:
        sk = k.u("norem"); jn = k.u("remj")
        k.e(f"s_cmp_eq_u32 s{S_RB}, 0")
        k.e(f"s_cbranch_scc1 {sk}")
        k.e("v_lshlrev_b32 v8, 4, v0")
        k.e(f"s_lshl_b32 s48, s{S_G}, 2")
        k.e("s_add_u32 s48, s48, s26")
        k.e("s_lshl_b32 s48, s48, 6")
        k.e(f"s_lshl_b32 s49, s{S_RB}, 1")
        k.e("s_sub_u32 s49, s49, 8")
        for j in range(8):
            k.e(f"s_add_i32 s50, s49, {j}")
            k.e("s_max_i32 s50, s50, 0")
            k.e("s_add_u32 s50, s50, s48")
            k.e("s_lshl_b32 s50, s50, 10")
            k.e(f"s_add_u32 s51, s50, {VB_G}")
            k.e(f"buffer_load_dwordx4 {vr(16+4*j,4)}, v8, {WS}, s50 offen sc1")
            k.e(f"buffer_load_dwordx4 {vr(48+4*j,4)}, v8, {WS}, s51 offen sc1")
        k.e("s_waitcnt vmcnt(16)");  k.e("s_barrier")
        k.e("s_lshl_b32 s48, s26, 13")
        k.e("v_add_u32 v9, s48, v8")
        for j in range(8):
            k.e(f"s_waitcnt vmcnt({14-2*j})")
            k.e(f"ds_write_b128 v9, {vr(16+4*j,4)} offset:{RK_L + j*1024}")
            k.e(f"ds_write_b128 v9, {vr(48+4*j,4)} offset:{RV_L + j*1024}")
            if j == 3: k.e("s_barrier")
        k.e(f"s_branch {jn}")
        k.lab(sk)
        k.e("s_waitcnt vmcnt(0)");  k.e("s_barrier")
        k.e("s_barrier")
        k.lab(jn)
    k.e("s_waitcnt lgkmcnt(0)")
    k.stamp(6)
    k.e("s_barrier")
    k.stamp(4)

AQ_, AKF, AS, AMD, AMF, ACN, AP, AVB, AO = 4, 8, [44, 60, 76], 216, 232, 124, 140, [148, 156], 176
AM, AT = 192, 193
AK0, AK7, AK8, AV0, AV7, AV8 = 196, 197, 198, 199, 200, 201
KVR = 208
VPOLL, VPA = 248, 249

def v_reads(k, buf, vaddr, off):
    k.e("s_mov_b64 exec, s[64:65]")
    k.e(f"ds_read_b128 {vr(AVB[buf],4)}, v{vaddr} offset:{off}")
    k.e(f"ds_read_b128 {vr(AVB[buf]+4,4)}, v{vaddr} offset:{off+512}")
    k.e("s_mov_b64 exec, -1")

def sig_f1a(k):
    sk = k.u("nosigA")
    k.e(f"s_cmp_lt_u32 s{S_WAVE}, 2")
    k.e(f"s_cbranch_scc0 {sk}")
    k.e("s_waitcnt vmcnt(0)")
    k.e(f"s_lshl_b32 s52, s{S_G}, 13")
    k.e(f"s_lshl_b32 s53, s{S_RB}, 1")
    k.e(f"s_add_u32 s53, s53, s{S_WAVE}")
    k.e("s_lshl_b32 s53, s53, 7")
    k.e("s_add_u32 s52, s52, s53")
    k.e(f"s_add_u32 s52, s52, {F1A}")
    store_flag(k, 52)
    k.lab(sk)

def attn_setup(k):
    k.e(f"s_and_b32 s86, s{S_WAVE}, 1")
    k.e(f"s_lshr_b32 s87, s{S_WAVE}, 1")
    k.e(f"v_lshlrev_b32 v{AT}, 4, v0")
    k.e("s_lshl_b32 s88, s86, 10")
    k.e("s_lshl_b32 s89, s87, 13")
    k.e("s_lshl_b32 s92, s87, 11")
    k.e("s_add_u32 s93, s89, s88")
    k.e(f"v_add_u32 v{AK0}, s93, v{AT}")
    k.e(f"s_add_u32 s94, s89, {7*1024}")
    k.e(f"s_add_u32 s100, s92, {OK_L}")
    k.e("s_cmp_eq_u32 s86, 0")
    k.e("s_cselect_b32 s94, s94, s100")
    k.e(f"v_add_u32 v{AK7}, s94, v{AT}")
    k.e("s_add_u32 s100, s100, s88")
    k.e(f"v_add_u32 v{AK8}, s100, v{AT}")
    k.e("v_lshrrev_b32 v202, 5, v0")
    k.e("v_lshlrev_b32 v202, 8, v202")
    k.e("v_and_b32 v203, 15, v0")
    k.e("v_lshlrev_b32 v203, 4, v203")
    k.e("v_add_u32 v202, v202, v203")
    k.e(f"s_add_u32 s94, s93, {RV_L}")
    k.e(f"v_add_u32 v{AV0}, s94, v202")
    k.e(f"s_add_u32 s94, s89, {RV_L + 7*1024}")
    k.e(f"s_add_u32 s100, s92, {OV_L}")
    k.e("s_cmp_eq_u32 s86, 0")
    k.e("s_cselect_b32 s94, s94, s100")
    k.e(f"v_add_u32 v{AV7}, s94, v202")
    k.e("s_add_u32 s100, s100, s88")
    k.e(f"v_add_u32 v{AV8}, s100, v202")
    k.e("v_and_b32 v202, 31, v0")
    k.e("v_lshrrev_b32 v203, 5, v0")
    k.e("v_lshlrev_b32 v203, 2, v203")
    k.e("v_sub_u32 v202, v202, v203")
    k.e("v_cvt_f32_i32 v202, v202")
    k.e(f"v_mov_b32 v203, {lit(BIG)}")
    for i in range(16):
        ci = 8*(i >> 2) + (i & 3)
        k.e(f"v_fmaak_f32 v{AMD+i}, v202, v203, {lit((0.5-ci)*BIG)}")
    for i in range(16): k.e(f"v_min_f32 v{AMF+i}, -v{AMD+i}, 0")
    for i in range(16): k.e(f"v_min_f32 v{AMD+i}, 0, v{AMD+i}")
    k.e(f"v_mov_b32 v{AM}, 0xff7fffff")
    k.e(f"s_lshl_b32 s87, s{S_G}, 13")
    k.e(f"s_add_u32 s87, s87, {F1A}")
    k.e(f"v_lshlrev_b32 v{VPA}, 7, v0")
    k.e(f"v_add_u32 v{VPA}, s87, v{VPA}")

def wo_setup(k):
    k.e("s_and_b32 s50, s2, 7")
    k.e("s_lshr_b32 s51, s2, 3")
    k.e("s_lshr_b32 s52, s50, 2")
    k.e("s_lshr_b32 s53, s51, 2")
    k.e("s_cmp_eq_u32 s52, 0")
    k.e(f"s_cselect_b32 s{SRD_WO}, s{P_AWO}, s{P_BWO}")
    k.e(f"s_cselect_b32 s{SRD_WO+1}, s{P_AWO+1}, s{P_BWO+1}")
    k.e(f"s_mov_b32 s{SRD_WO+2}, 0x{512*1024:x}")
    k.e(f"s_mov_b32 s{SRD_WO+3}, 0x20000")
    k.e("v_lshrrev_b32 v204, 3, v0")
    k.e("v_and_b32 v205, 7, v0")
    k.e("v_and_b32 v206, 2, v204")
    k.e("v_lshlrev_b32 v206, 1, v206")
    k.e("v_xor_b32 v206, v205, v206")
    k.e("v_lshlrev_b32 v206, 4, v206")
    k.e(f"s_sub_u32 s54, s{S_WAVE}, 4")
    k.e("s_lshl_b32 s50, s54, 7")
    k.e("v_add_u32 v204, s50, v204")
    k.e("v_lshlrev_b32 v204, 10, v204")
    k.e("s_lshl_b32 s50, s53, 7")
    k.e("v_add3_u32 v205, v204, v206, s50")
    k.e("s_lshl_b32 s96, s54, 14")
    k.e(f"s_add_u32 s96, s96, {WO_L}")
    k.e("s_mov_b32 s97, 0")

def wo_pair(k):
    k.e("s_mov_b32 m0, s96")
    k.e("s_add_u32 s98, s97, 7168")
    k.e(f"buffer_load_dwordx4 v205, {sr(SRD_WO,4)}, s97 offen lds")
    k.e(f"buffer_load_dwordx4 v205, {sr(SRD_WO,4)}, s98 offen offset:1024 lds")
    k.e("s_add_u32 s96, s96, 2048")
    k.e("s_add_u32 s97, s97, 16384")

KVL = 0
def kv_loads(k):
    k.stamp(14)
    k.e(f"s_lshl_b32 s50, s{S_G}, 13")
    k.e(f"s_add_u32 s50, s50, {KVACC}")
    k.e("s_add_u32 s51, s50, 4096")
    k.e(f"buffer_load_dwordx4 {vr(KVR,4)}, v1, {WS}, s50 offen sc1")
    k.e(f"buffer_load_dwordx4 {vr(KVR+4,4)}, v1, {WS}, s50 offen offset:1024 sc1")
    k.e(f"buffer_load_dwordx4 {vr(164,4)}, v1, {WS}, s51 offen sc1")
    k.e(f"buffer_load_dwordx4 {vr(168,4)}, v1, {WS}, s51 offen offset:1024 sc1")
    k.e("v_lshrrev_b32 v202, 5, v0")
    k.e("v_lshlrev_b32 v202, 12, v202")
    k.e("v_and_b32 v203, 31, v0")
    k.e("v_lshl_add_u32 v202, v203, 2, v202")
    k.e(f"buffer_load_dword v172, v202, {WS}, s50 offen offset:2048 sc1")

def attention(k):
    k.c("attention: i = w&1 (s26), hh = w>>1 (s27), qt = s48, s99 = kv loads issued flag")
    k.e(f"s_and_b32 s26, s{S_WAVE}, 1")
    k.e(f"s_lshr_b32 s27, s{S_WAVE}, 1")
    k.e(f"s_lshl_b32 s48, s{S_RB}, 1")
    k.e("s_add_u32 s48, s48, s26")
    k.e("v_lshlrev_b32 v1, 4, v0")
    k.e("s_lshl_b32 s49, s27, 11")
    k.e("s_lshl_b32 s50, s26, 10")
    k.e("s_add_u32 s49, s49, s50")
    k.e(f"s_add_u32 s49, s49, {Q_L}")
    k.e("v_add_u32 v2, s49, v1")
    k.e(f"ds_read_b128 {vr(AQ_,4)}, v2")
    def kaddr(p): return (AK0, RK_L + p*1024) if p <= 6 else ((AK7, 0) if p == 7 else (AK8, 0))
    def vaddr(p): return (AV0, p*1024) if p <= 6 else ((AV7, 0) if p == 7 else (AV8, 0))
    for p in range(9):
        a, o = kaddr(p); k.e(f"ds_read_b128 {vr(AKF+4*p,4)}, v{a} offset:{o}")
    k.e("s_mov_b32 s64, 0xffff")
    k.e("s_mov_b32 s65, 0xffff")
    k.e("s_mov_b32 s99, 0")
    for b in range(2):
        for j in range(8): k.e(f"v_mov_b32 v{AVB[b]+j}, 0x3f803f80")
    sk = k.u("nowo")
    k.e(f"s_cmp_ge_u32 s{S_WAVE}, 4")
    k.e(f"s_cbranch_scc0 {sk}")
    wo_setup(k)
    for j in range(8): wo_pair(k)
    k.lab(sk)
    Q = vr(AQ_, 4)
    def qk(dst, p, c): k.e(f"{MF} {vr(dst,16)}, {vr(AKF+4*p,4)}, {Q}, {c}")
    def c1(p): return vr(AMF,16) if p == 0 else (vr(AMD,16) if p == 8 else "0")
    def c2(p): return vr(AMF,16) if p == 0 else (vr(AMD,16) if p == 8 else vr(ACN,16))
    k.e("s_sub_i32 s95, 8, s48")
    k.e("s_max_i32 s95, s95, 0")
    P1 = [k.u(f"p1_{p}") for p in range(9)]
    P2 = [k.u(f"p2_{p}") for p in range(9)]
    E1 = [k.u(f"e1_{p}") for p in range(9)]
    E2 = [k.u(f"e2_{p}") for p in range(9)]
    k.e("s_waitcnt lgkmcnt(0)")
    for p in range(1, 9):
        k.e(f"s_cmp_eq_u32 s95, {p}")
        k.e(f"s_cbranch_scc1 {E1[p]}")
    qk(AS[0], 0, c1(0)); qk(AS[1], 1, c1(1)); qk(AS[2], 2, c1(2))
    k.e("s_nop 9")
    for p in range(9):
        k.lab(P1[p])
        s_ = AS[p % 3]
        for j in range(8): k.e(f"v_max3_f32 v{AM}, v{s_+2*j}, v{s_+2*j+1}, v{AM}")
        if p + 3 <= 8: qk(s_, p + 3, c1(p + 3))
    k.e(f"v_mov_b32 v{AT}, v{AM}")
    k.e("s_nop 1")
    k.e(f"v_permlane32_swap_b32 v{AM}, v{AT}")
    k.e(f"v_max_f32 v{AM}, v{AM}, v{AT}")
    k.e(f"v_sub_f32 v{AM}, 0, v{AM}")
    for i in range(16): k.e(f"v_mov_b32 v{ACN+i}, v{AM}")
    for i in range(16): k.e(f"v_add_f32 v{AMD+i}, v{AMD+i}, v{AM}")
    k.stamp(8)
    k.e("s_cmp_eq_u32 s95, 0")
    sh = k.u("short2")
    k.e(f"s_cbranch_scc0 {sh}")
    for i in range(16): k.e(f"v_add_f32 v{AMF+i}, v{AMF+i}, v{AM}")
    v_reads(k, 0, *vaddr(0))
    k.e("s_nop 0")
    qk(AS[0], 0, c2(0))
    k.e("s_nop 6")
    for p in range(9):
        k.lab(P2[p])
        cur = AS[p % 2]; nxt = AS[(p + 1) % 2]
        if p < 8:
            qk(nxt, p + 1, c2(p + 1))
            v_reads(k, (p + 1) % 2, *vaddr(p + 1))
        hooks = k.u("nohook")
        if p == OPT['sigp']:
            k.e("s_cmp_eq_u32 s95, 0")
            k.e(f"s_cbranch_scc0 {hooks}")
            sig_f1a(k)
            k.lab(hooks)
        if p >= OPT['pollp'] and (p - OPT['pollp']) % 2 == 0:
            hk = k.u("hk")
            k.e(f"s_cmp_eq_u32 s{S_WAVE}, 4")
            k.e(f"s_cbranch_scc0 {hk}")
            k.e("s_cmp_eq_u32 s95, 0")
            k.e(f"s_cbranch_scc0 {hk}")
            k.e("s_cmp_eq_u32 s99, 0")
            k.e(f"s_cbranch_scc0 {hk}")
            if p > OPT['pollp']:
                got = k.u("got")
                k.e("s_waitcnt vmcnt(0)")
                k.e(f"v_cmp_ne_u32 vcc, s{S_NONCE}, v{VPOLL}")
                k.e("s_nop 1")
                k.e(f"s_cbranch_vccz {got}")
                k.e(f"buffer_load_dword v{VPOLL}, v{VPA}, {WS}, 0 offen sc1")
                k.e(f"s_branch {hk}")
                k.lab(got)
                kv_loads(k)
                k.e("s_mov_b32 s99, 1")
            else:
                k.e(f"buffer_load_dword v{VPOLL}, v{VPA}, {WS}, 0 offen sc1")
            k.lab(hk)
        for j in range(16): k.e(f"v_exp_f32 v{cur+j}, v{cur+j}")
        for j in range(8): k.e(f"v_cvt_pk_bf16_f32 v{AP+j}, v{cur+2*j}, v{cur+2*j+1}")
        k.e(f"s_waitcnt lgkmcnt({2 if p < 8 else 0})")
        vb = AVB[p % 2]
        k.e(f"{MF} {vr(AO,16)}, {vr(vb,4)}, {vr(AP,4)}, {'0' if p == 0 else vr(AO,16)}")
        k.e("s_nop 0")
        k.e(f"{MF} {vr(AO,16)}, {vr(vb+4,4)}, {vr(AP+4,4)}, {vr(AO,16)}")
    done = k.u("attdone")
    k.e(f"s_branch {done}")
    for p in range(1, 9):
        k.lab(E1[p])
        for q in range(p, min(p + 3, 9)): qk(AS[q % 3], q, c1(q))
        k.e("s_nop 10")
        k.e(f"s_branch {P1[p]}")
    k.lab(sh)
    for i in range(16): k.e(f"v_mov_b32 v{AO+i}, 0")
    sig_f1a(k)
    sk = k.u("shpoll")
    k.e(f"s_cmp_eq_u32 s{S_WAVE}, 4")
    k.e(f"s_cbranch_scc0 {sk}")
    k.e(f"buffer_load_dword v{VPOLL}, v{VPA}, {WS}, 0 offen sc1")
    k.lab(sk)
    for p in range(1, 9):
        k.e(f"s_cmp_eq_u32 s95, {p}")
        k.e(f"s_cbranch_scc1 {E2[p]}")
    k.e(f"s_branch {E2[8]}")
    for p in range(1, 9):
        k.lab(E2[p])
        qk(AS[p % 2], p, c2(p))
        v_reads(k, p % 2, *vaddr(p))
        k.e("s_nop 6")
        k.e(f"s_branch {P2[p]}")
    k.lab(done)

def apart(k):
    sk = k.u("kvdone")
    k.e(f"s_cmp_eq_u32 s{S_WAVE}, 4")
    k.e(f"s_cbranch_scc0 {sk}")
    k.e("s_cmp_eq_u32 s99, 1")
    k.e(f"s_cbranch_scc1 {sk}")
    poll_flags(k, VPA, VPOLL, "f1a", first_issued=True)
    kv_loads(k)
    k.lab(sk)
    k.e("s_nop 8")
    k.e(f"v_rcp_f32 v{AT}, v{AO+8}")
    k.e("s_nop 0")
    for j in range(8): k.e(f"v_mul_f32 v{AO+j}, v{AO+j}, v{AT}")
    cvt8(k, AP, AO)
    k.e(f"s_lshl_b32 s49, s{S_G}, 2")
    k.e("s_add_u32 s49, s49, s27")
    k.e("s_lshl_b32 s50, s48, 5")
    k.e("s_add_u32 s49, s49, s50")
    k.e("s_lshl_b32 s49, s49, 10")
    k.e(f"s_add_u32 s50, s49, {O_G + (2<<20)}")
    k.e(f"buffer_store_dwordx4 {vr(AP,4)}, v1, {WS}, s50 offen sc1")
    k.e("s_barrier")
    sk = k.u("nokvw")
    k.e(f"s_cmp_eq_u32 s{S_WAVE}, 4")
    k.e(f"s_cbranch_scc0 {sk}")
    k.e("s_waitcnt vmcnt(1)")
    k.e(f"ds_write_b128 v1, {vr(KVR,4)} offset:{KVL}")
    k.e(f"ds_write_b128 v1, {vr(KVR+4,4)} offset:{KVL+1024}")
    k.e(f"ds_write_b128 v1, {vr(164,4)} offset:{KVL+4096}")
    k.e(f"ds_write_b128 v1, {vr(168,4)} offset:{KVL+4096+1024}")
    k.e("v_lshrrev_b32 v202, 5, v0")
    k.e("v_lshlrev_b32 v202, 12, v202")
    k.e("v_and_b32 v203, 31, v0")
    k.e("v_lshl_add_u32 v202, v203, 2, v202")
    k.e(f"ds_write_b32 v202, v172 offset:{KVL+2048}")
    k.e("s_waitcnt lgkmcnt(0)")
    k.lab(sk)
    k.e("s_lshr_b32 s51, s27, 1")
    k.e("s_lshl_b32 s51, s51, 12")
    k.e("s_and_b32 s52, s27, 1")
    k.e("s_lshl_b32 s52, s52, 6")
    k.e("s_add_u32 s51, s51, s52")
    k.e("v_lshrrev_b32 v203, 5, v0")
    k.e("v_and_b32 v202, 15, v0")
    k.e("v_lshl_add_u32 v202, v203, 5, v202")
    k.e("v_lshlrev_b32 v202, 2, v202")
    k.e("v_add_u32 v202, s51, v202")
    k.e("v_lshlrev_b32 v203, 4, v203")
    k.e("v_add_u32 v203, s51, v203")
    k.e("s_lshl_b32 s51, s27, 11")
    k.e("s_lshl_b32 s50, s26, 10")
    k.e("s_add_u32 s51, s51, s50")
    k.e(f"s_add_u32 s51, s51, {PQ_L}")
    k.e("v_add_u32 v2, s51, v1")
    k.e(f"ds_read_b128 {vr(AQ_,4)}, v2")
    k.e("s_barrier")
    k.stamp(15)
    k.e("s_mov_b64 exec, s[64:65]")
    for t in range(8): k.e(f"ds_read_b32 v{KVR+t}, v202 offset:{KVL + t*256}")
    k.e("s_not_b64 exec, s[64:65]")
    k.e(f"ds_read_b128 {vr(KVR,4)}, v203 offset:{KVL+2048}")
    k.e(f"ds_read_b128 {vr(KVR+4,4)}, v203 offset:{KVL+2048+32}")
    k.e("s_mov_b64 exec, -1")
    k.e("s_waitcnt lgkmcnt(0)")
    cvt8(k, 8, KVR)
    k.e("s_nop 1")
    k.e(f"{MF} {vr(44,16)}, {vr(8,4)}, {vr(AQ_,4)}, 0")
    k.e(f"s_mov_b32 s62, {lit(1e-6)}")
    k.e("s_nop 10")
    k.e("v_add_f32 v12, s62, v52")
    k.e("v_rcp_f32 v12, v12")
    k.e("s_nop 0")
    for j in range(8): k.e(f"v_mul_f32 v{44+j}, v{44+j}, v12")
    cvt8(k, 16, 44)
    k.e(f"s_add_u32 s50, s49, {O_G}")
    k.e(f"buffer_store_dwordx4 {vr(16,4)}, v1, {WS}, s50 offen sc1")

def p3(k):
    k.c("P3: out tile 128x64")
    k.e("s_and_b32 s48, s2, 7")
    k.e("s_lshr_b32 s49, s2, 3")
    k.e("s_lshr_b32 s66, s48, 2")
    k.e("s_and_b32 s67, s48, 3")
    k.e("s_lshl_b32 s67, s67, 2")
    k.e("s_and_b32 s50, s49, 3")
    k.e("s_add_u32 s67, s67, s50")
    k.e("s_lshr_b32 s68, s49, 2")
    k.e("s_lshl_b32 s48, s67, 11")
    k.e(f"s_add_u32 s48, s48, {F2}")
    k.e("v_and_b32 v8, 15, v0")
    k.e("v_lshlrev_b32 v8, 7, v8")
    k.e("v_add_u32 v8, s48, v8")
    OF, ACC3, WF = 8+4, 144, [176, 184]
    VA0, VA1 = 192, 193
    k.e("v_bfe_u32 v2, v0, 2, 2")
    k.e("v_and_b32 v3, 3, v0")
    k.e("v_bfe_u32 v4, v0, 4, 1")
    k.e("v_lshrrev_b32 v5, 5, v0")
    k.e("v_lshlrev_b32 v5, 2, v5")
    k.e("v_add_u32 v5, v5, v2")
    k.e("v_lshlrev_b32 v5, 7, v5")
    k.e("v_and_b32 v6, 1, v3")
    k.e("v_lshlrev_b32 v6, 1, v6")
    k.e("v_add_u32 v6, v6, v4")
    k.e("v_and_b32 v7, 2, v2")
    k.e("v_lshlrev_b32 v7, 1, v7")
    k.e("v_xor_b32 v6, v6, v7")
    k.e("v_lshlrev_b32 v6, 4, v6")
    k.e("v_lshrrev_b32 v3, 1, v3")
    k.e("v_lshlrev_b32 v3, 3, v3")
    k.e("v_add3_u32 v5, v5, v6, v3")
    k.e("s_and_b32 s51, s68, 3")
    k.e("s_lshl_b32 s52, s51, 14")
    k.e(f"s_add_u32 s52, s52, {WO_L}")
    k.e(f"v_add_u32 v{VA0}, s52, v5")
    k.e(f"v_xor_b32 v{VA1}, 64, v{VA0}")
    k.e("s_lshl_b32 s48, s67, 2")
    k.e(f"s_add_u32 s48, s48, s{S_WAVE}")
    k.e("s_lshl_b32 s49, s48, 15")
    k.e("s_lshl_b32 s50, s66, 21")
    k.e("s_add_u32 s49, s49, s50")
    k.e(f"s_add_u32 s49, s49, {O_G}")
    k.e("v_lshlrev_b32 v1, 4, v0")
    sk = k.u("nof2poll")
    k.e(f"s_cmp_eq_u32 s{S_WAVE}, 0")
    k.e(f"s_cbranch_scc0 {sk}")
    k.e("s_mov_b64 exec, 0xffff")
    poll_flags(k, 8, 9, "f2")
    k.e("s_mov_b64 exec, -1")
    k.lab(sk)
    k.e("s_barrier")
    k.e(f"s_cmp_ge_u32 s{S_WAVE}, 4")
    k.e("s_cbranch_scc1 L_fin")
    k.stamp(12)
    NPRE = OPT['npre']
    for hb in range(8):
        blk = hb >> 1
        k.e(f"s_add_u32 s52, s51, {blk}")
        k.e("s_and_b32 s52, s52, 3")
        k.e("s_lshl_b32 s52, s52, 13")
        k.e("s_add_u32 s52, s52, s49")
        if hb & 1: k.e("s_add_u32 s52, s52, 4096")
        k.e(f"s_mov_b32 s{[86,87,88,89,92,93,94,100][hb]}, s52")
    def oload(hd):
        so = [86,87,88,89,92,93,94,100][hd >> 2]
        k.e(f"buffer_load_dwordx4 {vr(OF+4*hd,4)}, v1, {WS}, s{so} offen offset:{(hd%4)*1024} sc1")
    for hd in range(NPRE): oload(hd)
    def wreads(buf, j):
        for b in range(2):
            for s2 in range(2):
                k.e(f"ds_read_b64_tr_b16 {vr(WF[buf]+4*b+2*s2,2)}, v{VA0+b} offset:{j*2048 + s2*1024}")
    def advance(blk):
        k.e(f"s_add_u32 s52, s51, {blk}")
        k.e("s_and_b32 s52, s52, 3")
        k.e("s_cmp_eq_u32 s52, 0")
        k.e(f"s_cselect_b32 s52, 0x{(-3*16384) & 0xffffffff:x}, s69")
        k.e(f"v_add_u32 v{VA0}, s52, v{VA0}")
        k.e(f"v_add_u32 v{VA1}, s52, v{VA1}")
    k.e("s_mov_b32 s69, 16384")
    wreads(0, 0)
    for hd in range(32):
        if hd < 31:
            nj = (hd + 1) % 8
            if nj == 0: advance((hd + 1)//8)
            wreads((hd + 1) % 2, nj)
        issued = min(32, NPRE + hd)
        k.e(f"s_waitcnt vmcnt({issued-1-hd}) lgkmcnt({4 if hd < 31 else 0})")
        if NPRE + hd < 32: oload(NPRE + hd)
        if OPT.get('p3st') and hd in (0, 8, 31):
            k.stamp({0: 5, 8: 6, 31: 8}[hd])
        for b in range(2):
            k.e(f"{MF} {vr(ACC3+16*b,16)}, {vr(WF[hd%2]+4*b,4)}, {vr(OF+4*hd,4)}, {'0' if hd == 0 else vr(ACC3+16*b,16)}")
    srd(k, SRD_T, P_OUT, 4 << 20)
    k.e("v_and_b32 v2, 31, v0")
    k.e("s_lshl_b32 s49, s48, 5")
    k.e("v_add_u32 v2, s49, v2")
    k.e("v_lshlrev_b32 v2, 11, v2")
    k.e("v_lshrrev_b32 v3, 5, v0")
    k.e("v_lshlrev_b32 v3, 5, v3")
    k.e("s_lshl_b32 s49, s66, 10")
    k.e("s_lshl_b32 s50, s68, 7")
    k.e("s_add_u32 s49, s49, s50")
    k.e("v_add3_u32 v2, v2, v3, s49")
    k.e("s_nop 3")
    for b in range(2):
        for j in range(8): k.e(f"v_cvt_pk_bf16_f32 v{12+8*b+j}, v{ACC3+16*b+2*j}, v{ACC3+16*b+2*j+1}")
    for b in range(2):
        fl = {0: "", 1: " sc1", 2: " nt", 3: " sc0 sc1"}[OPT['outf']]
        k.e(f"buffer_store_dwordx4 {vr(12+8*b,4)}, v2, {sr(SRD_T,4)}, 0 offen offset:{64*b}{fl}")
        k.e(f"buffer_store_dwordx4 {vr(16+8*b,4)}, v2, {sr(SRD_T,4)}, 0 offen offset:{64*b+16}{fl}")

HDR = """; Kernarg layout for this problem (72 bytes, ptrs only, base s[0:1]):
;   offset   0: d_in[0] A_x  shape=(1, 2048, 512) dtype=bfloat16
;   offset   8: d_in[1] A_wqkv  shape=(512, 1536) dtype=bfloat16
;   offset  16: d_in[2] A_wo  shape=(512, 512) dtype=bfloat16
;   offset  24: d_in[3] B_x  shape=(1, 2048, 512) dtype=bfloat16
;   offset  32: d_in[4] B_wqkv  shape=(512, 1536) dtype=bfloat16
;   offset  40: d_in[5] B_wo  shape=(512, 512) dtype=bfloat16
;   offset  48: d_out     shape=(1, 2048, 1024) dtype=bfloat16
;   offset  56: d_debug   256 bytes
;   offset  64: d_ws      268435456 bytes workspace
; @launch grid=(256,1,1) block=(512,1,1) lds=163840
.amdgcn_target "amdgcn-amd-amdhsa--gfx950"
.text
.globl KNAME
.p2align 8
.type KNAME,@function
""".replace("KNAME", KNAME)

TAIL = """.section .rodata,"a"
.p2align 6
.amdhsa_kernel KNAME
  .amdhsa_next_free_vgpr 256
  .amdhsa_next_free_sgpr 102
  .amdhsa_accum_offset 256
  .amdhsa_group_segment_fixed_size 0
  .amdhsa_kernarg_size 72
  .amdhsa_user_sgpr_count 2
  .amdhsa_user_sgpr_kernarg_segment_ptr 1
  .amdhsa_system_sgpr_workgroup_id_x 1
.end_amdhsa_kernel
""".replace("KNAME", KNAME)

def build(stamps=False):
    k = gen(stamps)
    body = "\n".join(k.L)
    body = body.replace("PF_BACK", f"((L_pc - {KNAME}) & 0xffffff00)")
    pad = "\n    .fill 2048, 4, 0xbf800000\n"
    hdr, tail = HDR, TAIL
    if OPT['extra']:
        hdr = hdr.replace("; @launch grid=(256,1,1) block=(512,1,1) lds=163840", f"; @launch kernel={KNAME} grid=(256,1,1) block=(512,1,1) lds=163840\n; @launch kernel=nop_kernel grid=(1,1,1) block=(64,1,1) lds=0")
        pad += ".globl nop_kernel\n.p2align 8\n.type nop_kernel,@function\nnop_kernel:\n    s_endpgm\n"
        tail += """.p2align 6
.amdhsa_kernel nop_kernel
  .amdhsa_next_free_vgpr 8
  .amdhsa_next_free_sgpr 16
  .amdhsa_accum_offset 8
  .amdhsa_group_segment_fixed_size 0
  .amdhsa_kernarg_size 72
  .amdhsa_user_sgpr_count 2
  .amdhsa_user_sgpr_kernarg_segment_ptr 1
  .amdhsa_system_sgpr_workgroup_id_x 1
.end_amdhsa_kernel
"""
    return hdr + body + pad + "\n" + tail

if __name__ == "__main__":
    out = sys.argv[1] if len(sys.argv) > 1 else "out.s"
    stamps = "stamps" in sys.argv[2:]
    for a in sys.argv[2:]:
        if "=" in a:
            kk, vv = a.split("="); OPT[kk] = int(vv)
    txt = build(stamps)
    open(out, "w").write(txt)
    import hz
    pr = hz.check(txt)
    import subprocess
    r = subprocess.run(["clang", "-x", "assembler", "-target", "amdgcn-amd-amdhsa", "-mcpu=gfx950", "-c", out, "-o", "_chk.o"], capture_output=True, text=True)
    print("hazards:", len(pr), "lines:", txt.count("\n"), "asm:", "ok" if r.returncode == 0 else r.stderr)
```

```python
import sys, math, struct

KNAME = "concat_heads__linear_attn_block__sliding_block__prompt_kernel"

KB_G   = 0
VB_G   = 2 << 20
O_G    = 4 << 20
KVACC  = 8 << 20
FL     = (8 << 20) + (64 << 10)
F1B    = FL
F1A    = FL + (32 << 10)
F2     = FL + (96 << 10)
STAMP  = 9 << 20
SLOT   = 32768
OK_L, OV_L, Q_L, PQ_L = 131072, 139264, 147456, 155648
NONCE_L = PQ_L
RK_L, RV_L, WO_L = 0, 32768, 65536
CS = 0.25 * math.log2(math.e)
LOG2E = math.log2(math.e)
BIG = 1.0e28
SPIN_MAX = 2000000
OPT = dict(rot=8, pfB=0, pfA=1, dbgstamps=0, stagest=0, pfs=1, tpf=0, p3st=0, map=2, outf=0, extra=0, sigs=9, pf0=0, late9=0, remdma=1, m16=0, npre=16, pf4=0, pkphi=1, prio=0, kvprio=1, pollp=4, sigp=3, fixdur=0, ldprio=0)

def f2u(x): return struct.unpack('<I', struct.pack('<f', x))[0]
def lit(x): return "0x%08x" % f2u(x)

class K:
    def __init__(self, stamps=False):
        self.L = []; self.stamps = stamps; self.uid = 0; self.inp1 = False
    def e(self, s):
        if self.inp1 and OPT['m16'] and s.startswith("v_mfma_f32_32x32x16_bf16"):
            import re
            m = re.match(r"v_mfma_f32_32x32x16_bf16 v\[(\d+):\d+\], (v\[\d+:\d+\]), (v\[\d+:\d+\]), (.*)", s)
            d = int(m.group(1)); c = m.group(4)
            for h in range(2):
                cc = "0" if c == "0" else f"v[{d+4*h}:{d+4*h+3}]"
                self.L.append(f"    v_mfma_f32_16x16x32_bf16 v[{d+4*h}:{d+4*h+3}], {m.group(2)}, {m.group(3)}, {cc}")
            return
        self.L.append("    " + s)
    def c(self, s): self.L.append("    ; " + s)
    def lab(self, s): self.L.append(s + ":")
    def u(self, p):
        self.uid += 1; return f"L_{p}_{self.uid}"
    def stamp(self, k):
        if not self.stamps: return
        self.e("s_memrealtime s[70:71]")
        self.e("s_waitcnt lgkmcnt(0)")
        self.e(f"s_mov_b32 s{72+k}, s70")

def vr(a, n): return f"v[{a}:{a+n-1}]"
def sr(a, n): return f"s[{a}:{a+n-1}]"
MF = "v_mfma_f32_32x32x16_bf16"

S_WAVE, S_RB, S_G, S_NONCE = 22, 23, 24, 25
SRD_WS, SRD_X, SRD_W, SRD_T, SRD_WO = 28, 32, 36, 40, 44
P_AX, P_AW, P_AWO, P_BX, P_BW, P_BWO, P_OUT, P_DBG, P_WS = 4, 6, 8, 10, 12, 14, 16, 18, 20
WS = sr(SRD_WS, 4)

def srd(k, dst, ptr, size):
    k.e(f"s_mov_b32 s{dst}, s{ptr}")
    k.e(f"s_mov_b32 s{dst+1}, s{ptr+1}")
    k.e(f"s_mov_b32 s{dst+2}, 0x{size:x}")
    k.e(f"s_mov_b32 s{dst+3}, 0x20000")

def spin_guard(k, sreg, exit_label):
    k.e(f"s_add_u32 s{sreg}, s{sreg}, 1")
    k.e(f"s_cmp_gt_u32 s{sreg}, {SPIN_MAX}")
    k.e(f"s_cbranch_scc1 {exit_label}")

def poll_flags(k, vaddr, vtmp, name, first_issued=False, sleep=1):
    lp = k.u(name + "_poll"); ex = k.u(name + "_done"); chk = k.u(name + "_chk")
    k.e("s_mov_b32 s60, 0")
    if first_issued: k.e(f"s_branch {chk}")
    k.lab(lp)
    k.e(f"buffer_load_dword v{vtmp}, v{vaddr}, {WS}, 0 offen sc1")
    k.lab(chk)
    spin_guard(k, 60, ex)
    k.e("s_waitcnt vmcnt(0)")
    k.e(f"v_cmp_ne_u32 vcc, s{S_NONCE}, v{vtmp}")
    k.e("s_nop 1")
    k.e(f"s_cbranch_vccz {ex}")
    if sleep: k.e(f"s_sleep {sleep}")
    k.e(f"s_branch {lp}")
    k.lab(ex)
    k.e("s_waitcnt vmcnt(0)")

def store_flag(k, soff):
    k.e(f"v_mov_b32 v250, s{S_NONCE}")
    k.e("v_mov_b32 v251, 0")
    k.e("s_mov_b64 exec, 1")
    k.e(f"buffer_store_dword v250, v251, {WS}, s{soff} offen sc1")
    k.e("s_mov_b64 exec, -1")

def cvt8(k, dst, src):
    for j in range(4): k.e(f"v_cvt_pk_bf16_f32 v{dst+j}, v{src+2*j}, v{src+2*j+1}")

def phi(k, r, n, t):
    if not OPT['pkphi']:
        for i in range(0, n, 4):
            for j in range(4): k.e(f"v_mul_f32 v{t+j}, s61, v{r+i+j}")
            for j in range(4): k.e(f"v_exp_f32 v{t+j}, v{t+j} clamp")
            for j in range(4): k.e(f"v_max_f32 v{r+i+j}, 0, v{r+i+j}")
            for j in range(4): k.e(f"v_add_f32 v{r+i+j}, s62, v{r+i+j}")
            for j in range(4): k.e(f"v_add_f32 v{r+i+j}, v{t+j}, v{r+i+j}")
        return
    for i in range(0, n, 8):
        for j in range(0, 8, 2): k.e(f"v_pk_mul_f32 {vr(t+j,2)}, {vr(r+i+j,2)}, s[66:67]")
        for j in range(8): k.e(f"v_exp_f32 v{t+j}, v{t+j} clamp")
        for j in range(8): k.e(f"v_max_f32 v{r+i+j}, 0, v{r+i+j}")
        for j in range(0, 8, 2): k.e(f"v_pk_add_f32 {vr(r+i+j,2)}, {vr(r+i+j,2)}, s[62:63]")
        for j in range(0, 8, 2): k.e(f"v_pk_add_f32 {vr(r+i+j,2)}, {vr(r+i+j,2)}, {vr(t+j,2)}")

ACC = 8
BUF = [72, 88, 104, 120]
VXA, VWA = 136, 140
EP = 144
PFD = 208

def rd_x(k, buf, j, t): k.e(f"ds_read_b128 {vr(BUF[buf]+4*t,4)}, v{VXA+j} offset:{t*4096}")
def rd_w(k, buf, j, p, slot):
    for s2 in range(2):
        k.e(f"ds_read_b64_tr_b16 {vr(BUF[buf]+8+4*slot+2*s2,2)}, v{VWA} offset:{p*8192 + j*2048 + s2*512}")
def reads(k, role, buf, j):
    rd_x(k, buf, j, 0); rd_x(k, buf, j, 1)
    if role == 'kv': rd_w(k, buf, j, 1, 0); rd_w(k, buf, j, 2, 1)
    else: rd_w(k, buf, j, 0, 0)

def kstep(k, role, br, j, first=False, noreads=False, wait=None):
    nb = (j + 2) & 3; b = BUF[j]
    if noreads:
        X = [vr(b,4), vr(b+4,4)]; W = [vr(b+8,4), vr(b+12,4)]
        k.e(f"s_waitcnt lgkmcnt({wait})")
        for t in range(2):
            a = ACC + 16*t
            if role == 'kv' and br == 'A': k.e(f"{MF} {vr(a,16)}, {X[t]}, {W[0]}, {vr(a,16)}")
            else: k.e(f"{MF} {vr(a,16)}, {W[0]}, {X[t]}, {vr(a,16)}")
        if role == 'kv':
            for t in range(2):
                a = ACC + 32 + 16*t
                k.e(f"{MF} {vr(a,16)}, {X[t]}, {W[1]}, {vr(a,16)}")
        return
    X = [vr(b,4), vr(b+4,4)]; W = [vr(b+8,4), vr(b+12,4)]
    def C(a): return "0" if first else vr(a,16)
    if role == 'kv':
        k.e("s_waitcnt lgkmcnt(6)")
        for t in range(2):
            a = ACC + 16*t
            if br == 'B': k.e(f"{MF} {vr(a,16)}, {W[0]}, {X[t]}, {C(a)}")
            else:         k.e(f"{MF} {vr(a,16)}, {X[t]}, {W[0]}, {C(a)}")
            if t == 0: rd_x(k, nb, nb, 0); rd_x(k, nb, nb, 1)
            else: rd_w(k, nb, nb, 1, 0)
        for t in range(2):
            a = ACC + 32 + 16*t
            k.e(f"{MF} {vr(a,16)}, {X[t]}, {W[1]}, {C(a)}")
            if t == 0: rd_w(k, nb, nb, 2, 1)
    else:
        k.e("s_waitcnt lgkmcnt(4)")
        for t in range(2):
            a = ACC + 16*t
            k.e(f"{MF} {vr(a,16)}, {W[0]}, {X[t]}, {C(a)}")
            if t == 0: rd_x(k, nb, nb, 0); rd_x(k, nb, nb, 1)
            else: rd_w(k, nb, nb, 0, 0)

def consumer_tile(k, role, br, extra=None):
    lp = k.u("c"+role+br); ex = k.u("cx"+role+br)
    k.inp1 = True
    k.e("s_mov_b32 s48, 0")
    kstep(k, role, br, 0, first=True)
    k.lab(lp)
    k.e("s_add_u32 s49, s49, 1")
    k.e("s_and_b32 s50, s49, 3")
    k.e("s_cmp_eq_u32 s50, 0")
    k.e(f"s_cselect_b32 s50, 0x{(-3*SLOT) & 0xffffffff:x}, s69")
    kstep(k, role, br, 1)
    if extra: extra(k)
    if br == 'A' and role == 'kv':
        sk = k.u("novm")
        k.e(f"s_cmp_eq_u32 s48, {OPT['sigs']-8}")
        k.e(f"s_cbranch_scc0 {sk}")
        k.e("s_waitcnt vmcnt(0)")
        k.lab(sk)
    for j in range(4): k.e(f"v_add_u32 v{VXA+j}, s50, v{VXA+j}")
    k.e(f"v_add_u32 v{VWA}, s50, v{VWA}")
    k.e("s_barrier")
    k.e("s_cmp_lt_u32 s48, 7")
    k.e(f"s_cbranch_scc0 {ex}")
    kstep(k, role, br, 2)
    kstep(k, role, br, 3)
    k.e("s_add_u32 s48, s48, 1")
    kstep(k, role, br, 0)
    k.e(f"s_branch {lp}")
    k.lab(ex)
    n = 6 if role == 'kv' else 4
    kstep(k, role, br, 2, noreads=True, wait=n)
    kstep(k, role, br, 3, noreads=True, wait=0)
    k.inp1 = False

def consumer_setup(k):
    k.e("v_and_b32 v1, 31, v0")
    k.e("v_lshrrev_b32 v2, 5, v0")
    k.e("v_bfe_u32 v3, v0, 1, 3")
    k.e("v_xor_b32 v3, v3, v2")
    k.e("v_lshlrev_b32 v3, 4, v3")
    k.e("v_lshlrev_b32 v1, 7, v1")
    k.e(f"v_add_u32 v{VXA}, v1, v3")
    for j in range(1, 4): k.e(f"v_xor_b32 v{VXA+j}, {j<<5}, v{VXA}")
    k.e("v_bfe_u32 v1, v0, 2, 2")
    k.e("v_and_b32 v2, 3, v0")
    k.e("v_bfe_u32 v3, v0, 4, 1")
    k.e("v_lshrrev_b32 v4, 5, v0")
    k.e("v_lshlrev_b32 v4, 3, v4")
    k.e("v_add_u32 v4, v4, v1")
    k.e("v_lshlrev_b32 v4, 7, v4")
    k.e("v_lshlrev_b32 v3, 1, v3")
    k.e("v_lshrrev_b32 v5, 1, v2")
    k.e("v_add_u32 v3, v3, v5")
    k.e("s_lshl_b32 s48, s27, 2")
    k.e("v_add_u32 v3, s48, v3")
    k.e("v_and_b32 v5, 2, v1")
    k.e("v_lshlrev_b32 v5, 1, v5")
    k.e("v_xor_b32 v3, v3, v5")
    k.e("v_lshlrev_b32 v3, 4, v3")
    k.e("v_and_b32 v2, 1, v2")
    k.e("v_lshlrev_b32 v2, 3, v2")
    k.e("v_add3_u32 v4, v4, v3, v2")
    k.e(f"v_add_u32 v{VWA}, 8192, v4")

def read_nonce(k, va, vb):
    k.e(f"v_mov_b32 v{va}, {NONCE_L}")
    k.e(f"ds_read_b32 v{vb}, v{va}")
    k.e("s_waitcnt lgkmcnt(0)")
    k.e(f"v_readfirstlane_b32 s{S_NONCE}, v{vb}")

def pf_setup(k, pw, px):
    k.e("s_and_b32 s50, s2, 7")
    k.e("s_lshr_b32 s51, s2, 3")
    k.e("v_lshrrev_b32 v5, 2, v0")
    k.e("s_lshl_b32 s52, s51, 4")
    k.e("v_add_u32 v5, s52, v5")
    k.e("v_mul_u32_u24 v5, 3072, v5")
    k.e("v_and_b32 v6, 3, v0")
    k.e("s_lshr_b32 s52, s50, 2")
    k.e("s_lshl_b32 s52, s52, 2")
    k.e("v_add_u32 v6, s52, v6")
    k.e("v_lshlrev_b32 v6, 7, v6")
    k.e("v_add_u32 v5, v5, v6")
    k.e("v_lshlrev_b32 v6, 7, v0")
    k.e("s_and_b32 s52, s50, 3")
    k.e("s_lshl_b32 s52, s52, 9")
    k.e("s_lshl_b32 s53, s51, 4")
    k.e("s_add_u32 s52, s52, s53")
    k.e("s_lshl_b32 s66, s52, 10")
    k.e("s_lshl_b32 s67, s51, 14")
    k.e("s_lshr_b32 s68, s50, 2")

def gen(stamps=False):
    k = K(stamps)
    k.lab(KNAME)
    k.e("s_cmp_ge_u32 s2, 256")
    k.e("s_cbranch_scc1 L_end")
    if stamps: k.e("s_memrealtime s[70:71]")
    if OPT['fixdur']: k.e("s_memrealtime s[100:101]")
    k.e("s_load_dwordx16 s[4:19], s[0:1], 0")
    k.e("s_load_dwordx2 s[20:21], s[0:1], 64")
    k.e("v_lshrrev_b32 v1, 6, v0")
    k.e("v_and_b32 v0, 63, v0")
    k.e(f"v_readfirstlane_b32 s{S_WAVE}, v1")
    k.e("s_and_b32 s26, s2, 7")
    k.e("s_lshr_b32 s27, s2, 3")
    k.e("s_and_b32 s48, s26, 3")
    k.e("s_lshl_b32 s48, s48, 3")
    if OPT['map'] != 1:
        k.e("s_and_b32 s49, s27, 7")
    else:
        k.e("s_lshr_b32 s49, s27, 2")
    k.e(f"s_add_u32 s{S_RB}, s48, s49")
    k.e("s_lshr_b32 s48, s26, 2")
    k.e("s_lshl_b32 s48, s48, 2")
    if OPT['map'] == 0:
        k.e("s_lshr_b32 s49, s27, 3")
    elif OPT['map'] == 2:
        k.e("s_lshr_b32 s49, s27, 3")
        k.e("s_sub_u32 s49, 3, s49")
    elif OPT['map'] >= 3:
        perm = {3: (3, 1, 2, 0), 4: (3, 1, 0, 2), 5: (1, 3, 2, 0)}[OPT['map']]
        tab = sum(v << (4*i) for i, v in enumerate(perm))
        k.e("s_lshr_b32 s49, s27, 3")
        k.e("s_lshl_b32 s49, s49, 2")
        k.e(f"s_lshr_b32 s49, 0x{tab:x}, s49")
        k.e("s_and_b32 s49, s49, 3")
    else:
        k.e("s_and_b32 s49, s27, 3")
    k.e(f"s_add_u32 s{S_G}, s48, s49")
    k.e(f"s_cmp_lt_u32 s{S_WAVE}, 4")
    k.e("s_cbranch_scc1 L_consumer")

    loader(k)
    k.e("s_branch L_attn")

    k.lab("L_consumer")
    k.e("s_waitcnt lgkmcnt(0)")
    if OPT['fixdur']: k.e("s_mov_b32 s3, s100")
    if stamps: k.e("s_mov_b32 s72, s70")
    srd(k, SRD_WS, P_WS, 256 << 20)
    srd(k, SRD_T, P_DBG, 256)
    srd(k, SRD_X, P_AW, 512*3072)
    k.e(f"s_and_b32 s27, s{S_WAVE}, 1")
    consumer_setup(k)
    attn_setup(k)
    nn = k.u("nononce")
    k.e(f"s_cmp_eq_u32 s{S_WAVE}, 0")
    k.e(f"s_cbranch_scc0 {nn}")
    k.e("v_mov_b32 v2, 0")
    nl = k.u("nolead")
    k.e("s_cmp_eq_u32 s2, 0")
    k.e(f"s_cbranch_scc0 {nl}")
    k.e("s_memrealtime s[58:59]")
    k.e("s_waitcnt lgkmcnt(0)")
    k.e("s_or_b32 s58, s58, 1")
    k.e("v_mov_b32 v3, s58")
    k.e(f"buffer_store_dword v3, v2, {sr(SRD_T,4)}, 0 offen sc1")
    k.lab(nl)
    k.lab(nn)
    k.e("s_mov_b32 s49, 0")
    k.e(f"s_mov_b32 s69, {SLOT}")
    k.e(f"s_cmp_ge_u32 s{S_WAVE}, 2")
    k.e("s_cbranch_scc1 L_qwave")

    k.e("s_barrier")
    k.stamp(1)
    reads(k, 'kv', 0, 0); reads(k, 'kv', 1, 1)
    consumer_tile(k, 'kv', 'B')
    k.stamp(2)
    k.c("B epilogue (kv)")
    read_nonce(k, 2, 3)
    k.e(f"s_lshl_b32 s62, s{S_G}, 2")
    k.e("s_lshl_b32 s63, s27, 1")
    k.e("s_add_u32 s62, s62, s63")
    k.e("s_lshl_b32 s62, s62, 6")
    k.e(f"s_lshl_b32 s63, s{S_RB}, 1")
    k.e("s_add_u32 s62, s62, s63")
    k.e("s_lshl_b32 s62, s62, 10")
    k.e("v_lshlrev_b32 v1, 4, v0")
    k.e("s_lshl_b32 s63, s27, 12")
    k.e(f"s_add_u32 s63, s63, {OK_L}")
    k.e("v_add_u32 v4, s63, v1")
    k.e("v_bfe_u32 v2, v0, 4, 1")
    k.e("v_lshrrev_b32 v3, 5, v0")
    k.e("v_lshlrev_b32 v3, 8, v3")
    k.e("v_and_b32 v5, 15, v0")
    k.e("v_lshlrev_b32 v5, 4, v5")
    k.e("v_add_u32 v3, v3, v5")
    k.e("v_lshlrev_b32 v5, 11, v2")
    k.e("v_add_u32 v5, v5, v3")
    k.e(f"s_add_u32 s63, s63, {OV_L - OK_L}")
    k.e("v_add_u32 v5, s63, v5")
    k.e("v_lshlrev_b32 v2, 16, v2")
    k.e("v_add_u32 v2, v2, v3")
    k.e(f"s_add_u32 s64, s62, {KB_G + 65536}")
    k.e(f"s_add_u32 s65, s62, {VB_G}")
    k.e("s_nop 3")
    for t in range(2):
        KF = EP + 16*t; VF = KF + 8
        cvt8(k, KF, ACC+16*t); cvt8(k, KF+4, ACC+16*t+8)
        cvt8(k, VF, ACC+32+16*t); cvt8(k, VF+4, ACC+32+16*t+8)
        k.e(f"buffer_store_dwordx4 {vr(KF,4)}, v1, {WS}, s62 offen offset:{t*1024} sc1")
        k.e(f"buffer_store_dwordx4 {vr(KF+4,4)}, v1, {WS}, s64 offen offset:{t*1024} sc1")
        k.e(f"buffer_store_dwordx4 {vr(VF,4)}, v2, {WS}, s65 offen offset:{t*1024} sc1")
        k.e(f"buffer_store_dwordx4 {vr(VF+4,4)}, v2, {WS}, s65 offen offset:{t*1024+512} sc1")
        k.e(f"ds_write_b128 v4, {vr(KF,4)} offset:{t*1024}")
        k.e(f"ds_write_b128 v4, {vr(KF+4,4)} offset:{t*1024+2048}")
        k.e(f"ds_write_b128 v5, {vr(VF,4)} offset:{t*1024}")
        k.e(f"ds_write_b128 v5, {vr(VF+4,4)} offset:{t*1024+512}")
    k.stamp(3)
    k.e("s_barrier")
    reads(k, 'kv', 0, 0); reads(k, 'kv', 1, 1)
    consumer_tile(k, 'kv', 'A')
    k.e("s_waitcnt lgkmcnt(0)")
    k.e("s_barrier")
    k.stamp(4)
    k.c("A epilogue (kv)")
    if OPT['kvprio']: k.e("s_setprio 2")
    T = 72
    k.e(f"s_mov_b32 s61, {lit(LOG2E)}")
    k.e(f"s_mov_b32 s62, {lit(1e-6)}")
    k.e("s_mov_b32 s63, s62")
    k.e("s_mov_b32 s66, s61")
    k.e("s_mov_b32 s67, s61")
    PK, VV, ONES = 80, 96, 112
    for j in range(4): k.e(f"v_mov_b32 v{ONES+j}, 0x3f803f80")
    k.e("s_nop 3")
    for t in range(2):
        cvt8(k, VV+8*t, ACC+32+16*t); cvt8(k, VV+8*t+4, ACC+32+16*t+8)
    DKV, DZ = ACC+32, ACC+48
    for t in range(2):
        phi(k, ACC+16*t, 16, T)
        cvt8(k, PK+8*t, ACC+16*t); cvt8(k, PK+8*t+4, ACC+16*t+8)
        k.e("s_nop 1")
        for m in range(2):
            first = (t == 0 and m == 0)
            k.e(f"{MF} {vr(DKV,16)}, {vr(PK+8*t+4*m,4)}, {vr(VV+8*t+4*m,4)}, {'0' if first else vr(DKV,16)}")
            k.e(f"{MF} {vr(DZ,16)}, {vr(ONES,4)}, {vr(PK+8*t+4*m,4)}, {'0' if first else vr(DZ,16)}")
    k.e("s_mov_b32 s64, 0xffff0000")
    k.e("s_mov_b32 s65, 0xffff0000")
    k.e(f"s_lshl_b32 s63, s{S_G}, 1")
    k.e("s_add_u32 s63, s63, s27")
    k.e("s_lshl_b32 s63, s63, 12")
    k.e(f"s_add_u32 s63, s63, {KVACC}")
    k.e("v_lshlrev_b32 v3, 2, v0")
    k.e("s_nop 5")
    RS = 120
    for t in range(8): k.e(f"v_cndmask_b32 v{RS+t}, v{DKV+t}, v{DKV+8+t}, s[64:65]")
    for t in range(8): k.e(f"buffer_atomic_add_f32 v{RS+t}, v3, {WS}, s63 offen offset:{t*256}")
    k.e("s_mov_b32 exec_hi, 0")
    k.e(f"buffer_atomic_add_f32 v{DZ}, v3, {WS}, s63 offen offset:2048")
    k.e("s_mov_b64 exec, -1")
    if OPT['kvprio']: k.e("s_setprio 0")
    k.e("s_branch L_e1")

    k.lab("L_qwave")
    k.e("v_mov_b32 v251, 0")
    k.e("s_barrier")
    k.stamp(1)
    reads(k, 'q', 0, 0); reads(k, 'q', 1, 1)
    def pf_extra(k):
        ex = k.u("pfx"); w3 = k.u("pfw3")
        n1 = k.u("nn1"); n2 = k.u("nn2")
        k.e(f"s_cmp_eq_u32 s{S_WAVE}, 2")
        k.e(f"s_cbranch_scc0 {n2}")
        k.e("s_cmp_eq_u32 s48, 0")
        k.e(f"s_cbranch_scc0 {n1}")
        k.e(f"buffer_load_dword v7, v251, {sr(SRD_T,4)}, 0 offen sc1")
        k.lab(n1)
        k.e("s_cmp_eq_u32 s48, 6")
        k.e(f"s_cbranch_scc0 {n2}")
        lp = k.u("np"); npx = k.u("npx"); chk = k.u("npc")
        k.e("s_mov_b32 s60, 0")
        k.e(f"s_branch {chk}")
        k.lab(lp)
        k.e(f"buffer_load_dword v7, v251, {sr(SRD_T,4)}, 0 offen sc1")
        k.lab(chk)
        spin_guard(k, 60, npx)
        k.e("s_waitcnt vmcnt(0)")
        k.e("v_readfirstlane_b32 s58, v7")
        k.e("s_nop 0")
        k.e("s_cmp_eq_u32 s58, 0")
        k.e(f"s_cbranch_scc1 {lp}")
        k.lab(npx)
        k.e("s_waitcnt vmcnt(0)")
        k.e(f"v_mov_b32 v250, {NONCE_L}")
        k.e("ds_write_b32 v250, v7")
        k.lab(n2)
    consumer_tile(k, 'q', 'B', pf_extra)
    k.stamp(2)
    k.c("B epilogue (q)")
    read_nonce(k, 2, 3)
    k.e(f"s_mov_b32 s61, {lit(CS)}")
    k.e("v_lshlrev_b32 v1, 4, v0")
    k.e("s_lshl_b32 s63, s27, 12")
    k.e(f"s_add_u32 s63, s63, {Q_L}")
    k.e("v_add_u32 v4, s63, v1")
    k.e("s_nop 6")
    for t in range(2):
        for i in range(16): k.e(f"v_mul_f32 v{ACC+16*t+i}, s61, v{ACC+16*t+i}")
        QF = EP + 8*t
        cvt8(k, QF, ACC+16*t); cvt8(k, QF+4, ACC+16*t+8)
        k.e(f"ds_write_b128 v4, {vr(QF,4)} offset:{t*1024}")
        k.e(f"ds_write_b128 v4, {vr(QF+4,4)} offset:{t*1024+2048}")
    k.stamp(3)
    k.e("s_barrier")
    reads(k, 'q', 0, 0); reads(k, 'q', 1, 1)
    consumer_tile(k, 'q', 'A')
    k.e("s_waitcnt lgkmcnt(0)")
    k.e("s_barrier")
    k.stamp(4)
    k.c("A epilogue (q)")
    k.e(f"s_mov_b32 s61, {lit(LOG2E)}")
    k.e(f"s_mov_b32 s62, {lit(1e-6)}")
    k.e("s_mov_b32 s63, s62")
    k.e("s_mov_b32 s66, s61")
    k.e("s_mov_b32 s67, s61")
    k.e("v_lshlrev_b32 v1, 4, v0")
    k.e("s_lshl_b32 s65, s27, 12")
    k.e(f"s_add_u32 s65, s65, {PQ_L}")
    k.e("v_add_u32 v4, s65, v1")
    k.e("s_nop 4")
    for t in range(2):
        phi(k, ACC+16*t, 16, 72)
        QF = EP + 8*t
        cvt8(k, QF, ACC+16*t); cvt8(k, QF+4, ACC+16*t+8)
        k.e(f"ds_write_b128 v4, {vr(QF,4)} offset:{t*1024}")
        k.e(f"ds_write_b128 v4, {vr(QF+4,4)} offset:{t*1024+2048}")
    k.e("s_waitcnt lgkmcnt(0)")
    k.lab("L_e1")

    k.lab("L_attn")
    if OPT['prio']:
        sk = k.u("prio")
        k.e(f"s_cmp_ge_u32 s{S_WAVE}, 4")
        k.e(f"s_cbranch_scc{0 if OPT['prio'] == 1 else 1} {sk}")
        k.e("s_setprio 1")
        k.lab(sk)
    k.stamp(7)
    attention(k)
    k.stamp(9)
    apart(k)
    k.stamp(10)
    k.e("s_waitcnt vmcnt(0) lgkmcnt(0)")
    k.e("s_barrier")
    k.stamp(11)
    sk = k.u("nof2")
    k.e(f"s_cmp_eq_u32 s{S_WAVE}, 4")
    k.e(f"s_cbranch_scc0 {sk}")
    k.e(f"s_lshr_b32 s48, s{S_RB}, 1")
    k.e("s_lshl_b32 s48, s48, 11")
    k.e(f"s_and_b32 s49, s{S_RB}, 1")
    k.e("s_lshl_b32 s49, s49, 3")
    k.e(f"s_add_u32 s49, s49, s{S_G}")
    k.e("s_lshl_b32 s49, s49, 7")
    k.e("s_add_u32 s48, s48, s49")
    k.e(f"s_add_u32 s48, s48, {F2}")
    store_flag(k, 48)
    k.lab(sk)
    p3(k)
    k.lab("L_fin")
    if OPT['fixdur']:
        lp = k.u("fix")
        k.lab(lp)
        k.e("s_memrealtime s[90:91]")
        k.e("s_waitcnt lgkmcnt(0)")
        k.e("s_sub_u32 s90, s90, s3")
        k.e(f"s_cmp_lt_u32 s90, {OPT['fixdur']}")
        k.e(f"s_cbranch_scc1 {lp}")
    if stamps:
        k.stamp(13)
        k.e(f"s_lshl_b32 s48, s2, 3")
        k.e(f"s_add_u32 s48, s48, s{S_WAVE}")
        k.e("s_lshl_b32 s48, s48, 6")
        k.e(f"s_add_u32 s48, s48, {STAMP}")
        k.e("v_mov_b32 v9, 0")
        for j in range(16):
            k.e(f"v_mov_b32 v8, s{72+j}")
            k.e(f"buffer_store_dword v8, v9, {WS}, s48 offen offset:{4*j}")
            k.e("s_nop 0")
    if stamps and OPT['dbgstamps']:
        srd(k, SRD_T, P_DBG, 256)
        for wg, base in ((8, 1), (200, 8)):
            sk = k.u("nodbg")
            k.e(f"s_cmp_eq_u32 s2, {wg}")
            k.e(f"s_cbranch_scc0 {sk}")
            k.e(f"s_cmp_eq_u32 s{S_WAVE}, 0")
            k.e(f"s_cbranch_scc0 {sk}")
            k.e("v_mov_b32 v9, 0")
            for n, j in enumerate((1, 2, 4, 9, 10, 11, 13)):
                k.e(f"s_sub_u32 s48, s{72+j}, s72")
                k.e("v_mov_b32 v8, s48")
                k.e(f"buffer_store_dword v8, v9, {sr(SRD_T,4)}, 0 offen offset:{4*(base+n)}")
                k.e("s_nop 0")
            k.lab(sk)
    if OPT['stagest']:
        sk = k.u("nost")
        k.e(f"s_cmp_eq_u32 s{S_WAVE}, 4")
        k.e(f"s_cbranch_scc0 {sk}")
        k.e("s_lshl_b32 s48, s2, 8")
        k.e(f"s_add_u32 s48, s48, {STAMP + (1<<19)}")
        k.e("v_lshlrev_b32 v9, 2, v0")
        k.e(f"buffer_store_dword v252, v9, {WS}, s48 offen")
        k.lab(sk)
    k.lab("L_end")
    k.e("s_endpgm")
    return k

def issue_stage(k):
    k.e("s_lshl_b32 s52, s59, 7")
    k.e("s_mul_i32 s53, s59, 196608")
    k.e("s_mov_b32 m0, s51")
    k.e("s_add_u32 s54, s53, 23552")
    k.e(f"buffer_load_dwordx4 v1, {sr(SRD_X,4)}, s52 offen lds")
    k.e(f"buffer_load_dwordx4 v2, {sr(SRD_X,4)}, s52 offen offset:1024 lds")
    for p in range(3):
        k.e(f"s_add_u32 s55, s51, {8192 + p*8192}")
        k.e("s_mov_b32 m0, s55")
        if p: k.e(f"s_add_u32 s56, s53, {p*1024}"); so0 = "s56"
        else: so0 = "s53"; k.e("s_nop 0")
        k.e(f"buffer_load_dwordx4 v3, {sr(SRD_W,4)}, {so0} offen lds")
        if p: k.e(f"s_add_u32 s56, s54, {p*1024}"); so1 = "s56"
        else: so1 = "s54"
        k.e(f"buffer_load_dwordx4 v3, {sr(SRD_W,4)}, {so1} offen offset:1024 lds")
    k.e("s_add_u32 s57, s57, 1")
    k.e("s_add_u32 s59, s59, 1")
    k.e("s_and_b32 s59, s59, 7")
    k.e(f"s_add_u32 s51, s51, {SLOT}")
    k.e("s_and_b32 s58, s57, 3")
    sk = k.u("nowrap")
    k.e("s_cmp_eq_u32 s58, 0")
    k.e(f"s_cbranch_scc0 {sk}")
    k.e(f"s_sub_u32 s51, s51, {4*SLOT}")
    k.lab(sk)
    sk2 = k.u("nosw")
    k.e("s_cmp_eq_u32 s57, 8")
    k.e(f"s_cbranch_scc0 {sk2}")
    srd(k, SRD_X, P_AX, 2 << 20)
    srd(k, SRD_W, P_AW, 512*3072)
    k.lab(sk2)

def pf0(k):
    k.e("s_and_b32 s50, s2, 7")
    k.e("s_lshr_b32 s52, s2, 3")
    wx = k.u("pf0x"); ex = k.u("pf0e")
    k.e("s_cmp_lt_u32 s26, 3")
    k.e(f"s_cbranch_scc0 {wx}")
    srd(k, SRD_T, P_AW, 512*3072)
    k.e("v_lshrrev_b32 v5, 2, v0")
    k.e("s_lshl_b32 s53, s52, 4")
    k.e("v_add_u32 v5, s53, v5")
    k.e("v_mul_u32_u24 v5, 3072, v5")
    k.e("v_and_b32 v6, 3, v0")
    k.e("s_lshr_b32 s53, s50, 2")
    k.e("s_lshl_b32 s53, s53, 2")
    k.e("v_add_u32 v6, s53, v6")
    k.e("v_lshlrev_b32 v6, 7, v6")
    k.e("v_add_u32 v5, v5, v6")
    k.e("s_lshl_b32 s53, s26, 10")
    k.e(f"buffer_load_dword v6, v5, {sr(SRD_T,4)}, s53 offen")
    k.e(f"buffer_load_dword v7, v5, {sr(SRD_T,4)}, s53 offen")
    k.e(f"s_branch {ex}")
    k.lab(wx)
    srd(k, SRD_T, P_AX, 2 << 20)
    k.e("s_and_b32 s53, s50, 3")
    k.e("s_lshl_b32 s53, s53, 9")
    k.e("s_lshl_b32 s54, s52, 4")
    k.e("s_add_u32 s53, s53, s54")
    k.e("s_lshl_b32 s53, s53, 10")
    k.e("v_lshlrev_b32 v5, 7, v0")
    k.e(f"buffer_load_dword v6, v5, {sr(SRD_T,4)}, s53 offen")
    k.e("s_add_u32 s53, s53, 8192")
    k.e(f"buffer_load_dword v7, v5, {sr(SRD_T,4)}, s53 offen")
    k.lab(ex)

def pfsetup(k):
    k.e("s_and_b32 s50, s2, 7")
    k.e("s_lshr_b32 s52, s2, 3")
    k.e("s_mov_b32 s66, 1")
    wx = k.u("pfwx"); wo = k.u("pfwo"); ex = k.u("pfex")
    k.e("s_cmp_lt_u32 s26, 2")
    k.e(f"s_cbranch_scc0 {wx}")
    srd(k, SRD_T, P_BW, 512*3072)
    k.e("v_min_u32 v4, 11, v0")
    k.e("v_lshrrev_b32 v5, 2, v4")
    k.e("v_lshlrev_b32 v5, 10, v5")
    k.e("v_and_b32 v4, 3, v4")
    k.e("s_lshr_b32 s53, s50, 2")
    k.e("s_lshl_b32 s53, s53, 2")
    k.e("v_add_u32 v4, s53, v4")
    k.e("v_lshlrev_b32 v4, 7, v4")
    k.e("s_lshl_b32 s53, s52, 1")
    k.e("s_add_u32 s53, s53, s26")
    k.e("s_mul_i32 s53, s53, 3072")
    k.e("v_add3_u32 v4, v4, v5, s53")
    k.e("s_mov_b32 s65, 196608")
    k.e("s_mov_b32 s64, 196608")
    k.e(f"s_branch {ex}")
    k.lab(wx)
    k.e("s_cmp_eq_u32 s26, 2")
    k.e(f"s_cbranch_scc0 {wo}")
    srd(k, SRD_T, P_BX, 2 << 20)
    k.e("v_min_u32 v4, 15, v0")
    k.e("s_and_b32 s53, s50, 3")
    k.e("s_lshl_b32 s53, s53, 9")
    k.e("s_lshl_b32 s54, s52, 4")
    k.e("s_add_u32 s53, s53, s54")
    k.e("v_add_u32 v4, s53, v4")
    k.e("v_lshlrev_b32 v4, 10, v4")
    k.e("s_mov_b32 s65, 128")
    k.e("s_mov_b32 s64, 128")
    k.e(f"s_branch {ex}")
    k.lab(wo)
    k.e("s_lshr_b32 s53, s50, 2")
    k.e("s_cmp_eq_u32 s53, 0")
    k.e(f"s_cselect_b32 s{SRD_T}, s{P_AWO}, s{P_BWO}")
    k.e(f"s_cselect_b32 s{SRD_T+1}, s{P_AWO+1}, s{P_BWO+1}")
    k.e(f"s_mov_b32 s{SRD_T+2}, 0x{512*1024:x}")
    k.e(f"s_mov_b32 s{SRD_T+3}, 0x20000")
    k.e("v_min_u32 v4, 8, v0")
    k.e("v_lshlrev_b32 v4, 7, v4")
    k.e("s_lshl_b32 s53, s52, 14")
    k.e("v_add_u32 v4, s53, v4")
    k.e("s_mov_b32 s65, 1152")
    k.e("s_mov_b32 s64, 0")
    k.lab(ex)

def pf_issue(k):
    sk = k.u("pfsw")
    k.e("s_cmp_eq_u32 s66, 8")
    k.e(f"s_cbranch_scc0 {sk}")
    k.e("s_cmp_lt_u32 s26, 3")
    k.e(f"s_cbranch_scc0 {sk}")
    k.e("s_mov_b32 s64, 0")
    k.e("s_cmp_lt_u32 s26, 2")
    k.e(f"s_cselect_b32 s{SRD_T}, s{P_AW}, s{P_AX}")
    k.e(f"s_cselect_b32 s{SRD_T+1}, s{P_AW+1}, s{P_AX+1}")
    k.lab(sk)
    k.e(f"buffer_load_dword v5, v4, {sr(SRD_T,4)}, s64 offen")
    k.e("s_add_u32 s64, s64, s65")
    k.e("s_add_u32 s66, s66, 1")

def loader(k):
    if OPT['ldprio']: k.e(f"s_setprio {OPT['ldprio']}")
    k.e(f"s_sub_u32 s26, s{S_WAVE}, 4")
    k.e("v_lshrrev_b32 v4, 3, v0")
    k.e("v_and_b32 v5, 7, v0")
    k.e("v_lshrrev_b32 v6, 1, v4")
    k.e("v_xor_b32 v7, v5, v6")
    k.e("v_lshlrev_b32 v7, 4, v7")
    k.e(f"s_lshl_b32 s48, s{S_RB}, 6")
    k.e("s_lshl_b32 s49, s26, 4")
    k.e("s_add_u32 s48, s48, s49")
    k.e("v_add_u32 v1, s48, v4")
    k.e("v_lshlrev_b32 v1, 10, v1")
    k.e("v_add_u32 v2, 7168, v1")
    k.e("v_add_u32 v1, v1, v7")
    k.e("v_xor_b32 v7, 64, v7")
    k.e("v_add_u32 v2, v2, v7")
    k.e("v_add_u32 v3, s49, v4")
    k.e("v_mul_u32_u24 v3, 3072, v3")
    k.e("v_and_b32 v6, 2, v4")
    k.e("v_lshlrev_b32 v6, 1, v6")
    k.e("v_xor_b32 v6, v5, v6")
    k.e("v_lshlrev_b32 v6, 4, v6")
    k.e(f"s_lshl_b32 s49, s{S_G}, 7")
    k.e("v_add3_u32 v3, v3, v6, s49")
    k.e("s_lshl_b32 s51, s26, 11")
    k.e("s_mov_b32 s57, 0")
    if OPT['rot'] == 9:
        k.e(f"s_and_b32 s59, s{S_G}, 3")
        k.e("s_sub_u32 s59, 3, s59")
        k.e("s_lshl_b32 s59, s59, 1")
        k.e(f"s_add_u32 s59, s59, s{S_RB}")
        k.e("s_and_b32 s59, s59, 7")
    elif OPT['rot'] == 8:
        k.e(f"s_and_b32 s59, s{S_G}, 3")
        k.e("s_lshl_b32 s59, s59, 1")
        k.e(f"s_add_u32 s59, s59, s{S_RB}")
        k.e("s_and_b32 s59, s59, 7")
    elif OPT['rot'] == 2:
        k.e(f"s_add_u32 s59, s{S_G}, s{S_RB}")
        k.e("s_and_b32 s59, s59, 1")
        k.e("s_lshl_b32 s59, s59, 2")
    elif OPT['rot'] == 4:
        k.e(f"s_add_u32 s59, s{S_G}, s{S_RB}")
        k.e("s_and_b32 s59, s59, 3")
        k.e("s_lshl_b32 s59, s59, 1")
    else:
        k.e("s_mov_b32 s59, 0")
    k.e("s_waitcnt lgkmcnt(0)")
    if OPT['fixdur']: k.e("s_mov_b32 s3, s100")
    if k.stamps: k.e("s_mov_b32 s72, s70")
    srd(k, SRD_X, P_BX, 2 << 20)
    srd(k, SRD_W, P_BW, 512*3072)
    issue_stage(k)
    if OPT['tpf']:
        pfsetup(k)
        for j in range(4): pf_issue(k)
    else:
        if OPT['pf0']: pf0(k)
        issue_stage(k)
    srd(k, SRD_WS, P_WS, 256 << 20)
    sk = k.u("nopf")
    k.e("s_cmp_eq_u32 s26, 3")
    k.e(f"s_cbranch_scc0 {sk}")
    k.e("s_getpc_b64 s[62:63]")
    k.lab("L_pc")
    k.e("s_and_b32 s62, s62, 0xffffff00")
    k.e("v_lshlrev_b32 v8, 7, v0")
    k.e(f"s_sub_u32 s62, s62, PF_BACK")
    k.e("s_subb_u32 s63, s63, 0")
    k.e("global_load_dword v9, v8, s[62:63]")
    k.e("v_add_u32 v8, 8192, v8")
    k.e("global_load_dword v10, v8, s[62:63]")
    k.e("v_add_u32 v8, 8192, v8")
    k.e("global_load_dword v11, v8, s[62:63]")
    k.lab(sk)
    attn_setup(k)
    ny = 4 if OPT['tpf'] else (10 if OPT['pf0'] else 8)
    k.e(f"s_waitcnt vmcnt({ny+3})")
    sk = k.u("w7")
    k.e("s_cmp_eq_u32 s26, 3")
    k.e(f"s_cbranch_scc1 {sk}")
    k.e(f"s_waitcnt vmcnt({ny})")
    k.lab(sk)
    k.e("s_barrier")
    if OPT['tpf']: issue_stage(k)
    issue_stage(k)
    sk = k.u("nozero")
    k.e(f"s_cmp_eq_u32 s{S_RB}, 0")
    k.e(f"s_cbranch_scc0 {sk}")
    k.e("s_cmp_lt_u32 s26, 2")
    k.e(f"s_cbranch_scc0 {sk}")
    k.e(f"s_lshl_b32 s48, s{S_G}, 1")
    k.e("s_add_u32 s48, s48, s26")
    k.e("s_lshl_b32 s48, s48, 12")
    k.e(f"s_add_u32 s48, s48, {KVACC}")
    for j in range(4): k.e(f"v_mov_b32 v{12+j}, 0")
    k.e("v_lshlrev_b32 v8, 4, v0")
    for j in range(3): k.e(f"buffer_store_dwordx4 v[12:15], v8, {WS}, s48 offen offset:{j*1024} sc1")
    k.e("s_waitcnt vmcnt(3)")
    k.lab(sk)
    k.stamp(1)
    k.e("s_mov_b32 s48, 0")
    lp = k.u("ldloop")
    k.lab(lp)
    w8 = k.u("w8"); w9 = k.u("w9"); wd = k.u("wd")
    k.e("s_cmp_eq_u32 s48, 7")
    k.e(f"s_cbranch_scc1 {wd}")
    if OPT['pf4']:
        w10 = k.u("w10"); nw = k.u("nw10")
        k.e(f"s_sub_u32 s49, s48, {OPT['pf4']+1}")
        k.e("s_cmp_lt_u32 s49, 2")
        k.e(f"s_cbranch_scc0 {nw}")
        k.e("s_waitcnt vmcnt(10)")
        k.e(f"s_branch {wd}")
        k.lab(nw)
    if not OPT['tpf']: k.e(f"s_branch {w8}")
    k.e("s_cmp_eq_u32 s48, 0")
    k.e(f"s_cbranch_scc1 {w8}")
    k.e("s_cmp_eq_u32 s48, 1")
    k.e(f"s_cbranch_scc1 {w9}")
    k.e("s_cmp_eq_u32 s48, 12")
    k.e(f"s_cbranch_scc1 {w9}")
    k.e("s_waitcnt vmcnt(10)")
    k.e(f"s_branch {wd}")
    k.lab(w9)
    k.e("s_waitcnt vmcnt(9)")
    k.e(f"s_branch {wd}")
    k.lab(w8)
    k.e("s_waitcnt vmcnt(8)")
    k.lab(wd)
    k.e("s_barrier")
    if OPT['stagest']:
        k.e("s_memrealtime s[90:91]"); k.e("s_waitcnt lgkmcnt(0)")
        k.e("s_mov_b32 m0, s48")
        k.e("s_nop 0")
        k.e("v_writelane_b32 v252, s90, m0")
    sk = k.u("nonn")
    k.e("s_cmp_eq_u32 s48, 7")
    k.e(f"s_cbranch_scc0 {sk}")
    read_nonce(k, 8, 9)
    k.lab(sk)
    sk = k.u("nosig2")
    k.e(f"s_cmp_eq_u32 s48, {OPT['sigs']}")
    k.e(f"s_cbranch_scc0 {sk}")
    k.e("s_cmp_eq_u32 s26, 0")
    k.e(f"s_cbranch_scc0 {sk}")
    k.e(f"s_lshl_b32 s49, s{S_G}, 12")
    k.e(f"s_lshl_b32 s50, s{S_RB}, 7")
    k.e("s_add_u32 s49, s49, s50")
    k.e(f"s_add_u32 s49, s49, {F1B}")
    store_flag(k, 49)
    k.lab(sk)
    if OPT['late9']:
        sk6 = k.u("skip6")
        k.e("s_cmp_eq_u32 s48, 6")
        k.e(f"s_cbranch_scc1 {sk6}")
    issue_stage(k)
    if OPT['late9']: k.lab(sk6)
    if OPT['pf4']:
        skp = k.u("nopf4")
        k.e(f"s_cmp_eq_u32 s48, {OPT['pf4']}")
        k.e(f"s_cbranch_scc0 {skp}")
        pf0(k)
        k.lab(skp)
    sk = k.u("nosig")
    k.e("s_cmp_eq_u32 s48, 7")
    k.e(f"s_cbranch_scc0 {sk}")
    if OPT['late9']: issue_stage(k)
    k.e("s_waitcnt vmcnt(16)")
    k.e("s_barrier")
    k.lab(sk)

    if OPT['tpf']:
        sk = k.u("nopfi")
        k.e("s_cmp_le_u32 s48, 10")
        k.e(f"s_cbranch_scc0 {sk}")
        pf_issue(k)
        k.lab(sk)
    k.e("s_add_u32 s48, s48, 1")
    k.e("s_cmp_lt_u32 s48, 12")
    k.e(f"s_cbranch_scc1 {lp}")
    k.e(f"s_sub_u32 s48, s{S_RB}, 4")
    k.e("v_add_u32 v8, s48, v0")
    k.e("v_max_i32 v8, 0, v8")
    k.e("v_cmp_gt_u32 vcc, 4, v0")
    k.e(f"s_lshl_b32 s49, s{S_G}, 12")
    k.e(f"s_add_u32 s49, s49, {F1B}")
    k.e("v_cndmask_b32 v8, 0, v8, vcc")
    k.e("v_lshlrev_b32 v8, 7, v8")
    k.e("v_add_u32 v8, s49, v8")
    k.e("s_cmp_eq_u32 s26, 0")
    k.e("s_cselect_b32 s62, 31, 15")
    k.e("s_mov_b32 s63, 0")
    k.e("s_waitcnt vmcnt(8)");  k.e("s_barrier")
    k.e("s_mov_b64 exec, s[62:63]")
    k.e(f"buffer_load_dword v9, v8, {WS}, 0 offen sc1")
    k.e("s_mov_b64 exec, -1")
    issue_stage(k)
    k.e("s_waitcnt vmcnt(9)");  k.e("s_barrier")
    lp = k.u("f1b_lp"); ok = k.u("f1b_ok")
    k.e("s_mov_b64 exec, s[62:63]")
    k.e("s_waitcnt vmcnt(8)")
    k.e(f"v_cmp_ne_u32 vcc, s{S_NONCE}, v9")
    k.e("s_nop 1")
    k.e(f"s_cbranch_vccz {ok}")
    poll_flags(k, 8, 9, "f1b")
    k.lab(ok)
    k.e("s_mov_b64 exec, -1")
    k.stamp(5)
    if OPT['remdma']:
        sk = k.u("norem"); jn = k.u("remj")
        k.e(f"s_cmp_eq_u32 s{S_RB}, 0")
        k.e(f"s_cbranch_scc1 {sk}")
        k.e("v_lshlrev_b32 v8, 4, v0")
        k.e(f"s_lshl_b32 s48, s{S_G}, 2")
        k.e("s_add_u32 s48, s48, s26")
        k.e("s_lshl_b32 s48, s48, 6")
        k.e(f"s_lshl_b32 s49, s{S_RB}, 1")
        k.e("s_sub_u32 s49, s49, 8")
        k.e("s_lshl_b32 s52, s26, 13")
        def rem(base_g, base_l):
            for j in range(8):
                k.e(f"s_add_i32 s50, s49, {j}")
                k.e("s_max_i32 s50, s50, 0")
                k.e("s_add_u32 s50, s50, s48")
                k.e("s_lshl_b32 s50, s50, 10")
                if base_g: k.e(f"s_add_u32 s50, s50, {base_g}")
                k.e(f"s_add_u32 s51, s52, {base_l + j*1024}")
                k.e("s_mov_b32 m0, s51")
                k.e("s_nop 0")
                k.e(f"buffer_load_dwordx4 v8, {WS}, s50 offen sc1 lds")
        rem(KB_G, RK_L)
        k.e("s_waitcnt vmcnt(8)");  k.e("s_barrier")
        rem(VB_G, RV_L)
        k.e("s_barrier")
        k.e("s_waitcnt vmcnt(0)")
        k.e(f"s_branch {jn}")
        k.lab(sk)
        k.e("s_waitcnt vmcnt(0)");  k.e("s_barrier")
        k.e("s_barrier")
        k.lab(jn)
    else:
        sk = k.u("norem"); jn = k.u("remj")
        k.e(f"s_cmp_eq_u32 s{S_RB}, 0")
        k.e(f"s_cbranch_scc1 {sk}")
        k.e("v_lshlrev_b32 v8, 4, v0")
        k.e(f"s_lshl_b32 s48, s{S_G}, 2")
        k.e("s_add_u32 s48, s48, s26")
        k.e("s_lshl_b32 s48, s48, 6")
        k.e(f"s_lshl_b32 s49, s{S_RB}, 1")
        k.e("s_sub_u32 s49, s49, 8")
        for j in range(8):
            k.e(f"s_add_i32 s50, s49, {j}")
            k.e("s_max_i32 s50, s50, 0")
            k.e("s_add_u32 s50, s50, s48")
            k.e("s_lshl_b32 s50, s50, 10")
            k.e(f"s_add_u32 s51, s50, {VB_G}")
            k.e(f"buffer_load_dwordx4 {vr(16+4*j,4)}, v8, {WS}, s50 offen sc1")
            k.e(f"buffer_load_dwordx4 {vr(48+4*j,4)}, v8, {WS}, s51 offen sc1")
        k.e("s_waitcnt vmcnt(16)");  k.e("s_barrier")
        k.e("s_lshl_b32 s48, s26, 13")
        k.e("v_add_u32 v9, s48, v8")
        for j in range(8):
            k.e(f"s_waitcnt vmcnt({14-2*j})")
            k.e(f"ds_write_b128 v9, {vr(16+4*j,4)} offset:{RK_L + j*1024}")
            k.e(f"ds_write_b128 v9, {vr(48+4*j,4)} offset:{RV_L + j*1024}")
            if j == 3: k.e("s_barrier")
        k.e(f"s_branch {jn}")
        k.lab(sk)
        k.e("s_waitcnt vmcnt(0)");  k.e("s_barrier")
        k.e("s_barrier")
        k.lab(jn)
    k.e("s_waitcnt lgkmcnt(0)")
    k.stamp(6)
    if OPT['ldprio']: k.e("s_setprio 0")
    k.e("s_barrier")
    k.stamp(4)

AQ_, AKF, AS, AMD, AMF, ACN, AP, AVB, AO = 4, 8, [44, 60, 76], 216, 232, 124, 140, [148, 156], 176
AM, AT = 192, 193
AK0, AK7, AK8, AV0, AV7, AV8 = 196, 197, 198, 199, 200, 201
KVR = 208
VPOLL, VPA = 248, 249

def v_reads(k, buf, vaddr, off):
    k.e("s_mov_b64 exec, s[64:65]")
    k.e(f"ds_read_b128 {vr(AVB[buf],4)}, v{vaddr} offset:{off}")
    k.e(f"ds_read_b128 {vr(AVB[buf]+4,4)}, v{vaddr} offset:{off+512}")
    k.e("s_mov_b64 exec, -1")

def sig_f1a(k):
    sk = k.u("nosigA")
    k.e(f"s_cmp_lt_u32 s{S_WAVE}, 2")
    k.e(f"s_cbranch_scc0 {sk}")
    k.e("s_waitcnt vmcnt(0)")
    k.e(f"s_lshl_b32 s52, s{S_G}, 13")
    k.e(f"s_lshl_b32 s53, s{S_RB}, 1")
    k.e(f"s_add_u32 s53, s53, s{S_WAVE}")
    k.e("s_lshl_b32 s53, s53, 7")
    k.e("s_add_u32 s52, s52, s53")
    k.e(f"s_add_u32 s52, s52, {F1A}")
    store_flag(k, 52)
    k.lab(sk)

def attn_setup(k):
    k.e(f"s_and_b32 s86, s{S_WAVE}, 1")
    k.e(f"s_lshr_b32 s87, s{S_WAVE}, 1")
    k.e(f"v_lshlrev_b32 v{AT}, 4, v0")
    k.e("s_lshl_b32 s88, s86, 10")
    k.e("s_lshl_b32 s89, s87, 13")
    k.e("s_lshl_b32 s92, s87, 11")
    k.e("s_add_u32 s93, s89, s88")
    k.e(f"v_add_u32 v{AK0}, s93, v{AT}")
    k.e(f"s_add_u32 s94, s89, {7*1024}")
    k.e(f"s_add_u32 s100, s92, {OK_L}")
    k.e("s_cmp_eq_u32 s86, 0")
    k.e("s_cselect_b32 s94, s94, s100")
    k.e(f"v_add_u32 v{AK7}, s94, v{AT}")
    k.e("s_add_u32 s100, s100, s88")
    k.e(f"v_add_u32 v{AK8}, s100, v{AT}")
    k.e("v_lshrrev_b32 v202, 5, v0")
    k.e("v_lshlrev_b32 v202, 8, v202")
    k.e("v_and_b32 v203, 15, v0")
    k.e("v_lshlrev_b32 v203, 4, v203")
    k.e("v_add_u32 v202, v202, v203")
    k.e(f"s_add_u32 s94, s93, {RV_L}")
    k.e(f"v_add_u32 v{AV0}, s94, v202")
    k.e(f"s_add_u32 s94, s89, {RV_L + 7*1024}")
    k.e(f"s_add_u32 s100, s92, {OV_L}")
    k.e("s_cmp_eq_u32 s86, 0")
    k.e("s_cselect_b32 s94, s94, s100")
    k.e(f"v_add_u32 v{AV7}, s94, v202")
    k.e("s_add_u32 s100, s100, s88")
    k.e(f"v_add_u32 v{AV8}, s100, v202")
    k.e("v_and_b32 v202, 31, v0")
    k.e("v_lshrrev_b32 v203, 5, v0")
    k.e("v_lshlrev_b32 v203, 2, v203")
    k.e("v_sub_u32 v202, v202, v203")
    k.e("v_cvt_f32_i32 v202, v202")
    k.e(f"v_mov_b32 v203, {lit(BIG)}")
    for i in range(16):
        ci = 8*(i >> 2) + (i & 3)
        k.e(f"v_fmaak_f32 v{AMD+i}, v202, v203, {lit((0.5-ci)*BIG)}")
    for i in range(16): k.e(f"v_min_f32 v{AMF+i}, -v{AMD+i}, 0")
    for i in range(16): k.e(f"v_min_f32 v{AMD+i}, 0, v{AMD+i}")
    k.e(f"v_mov_b32 v{AM}, 0xff7fffff")
    k.e(f"s_lshl_b32 s87, s{S_G}, 13")
    k.e(f"s_add_u32 s87, s87, {F1A}")
    k.e(f"v_lshlrev_b32 v{VPA}, 7, v0")
    k.e(f"v_add_u32 v{VPA}, s87, v{VPA}")

def wo_setup(k):
    k.e("s_and_b32 s50, s2, 7")
    k.e("s_lshr_b32 s51, s2, 3")
    k.e("s_lshr_b32 s52, s50, 2")
    k.e("s_lshr_b32 s53, s51, 2")
    k.e("s_cmp_eq_u32 s52, 0")
    k.e(f"s_cselect_b32 s{SRD_WO}, s{P_AWO}, s{P_BWO}")
    k.e(f"s_cselect_b32 s{SRD_WO+1}, s{P_AWO+1}, s{P_BWO+1}")
    k.e(f"s_mov_b32 s{SRD_WO+2}, 0x{512*1024:x}")
    k.e(f"s_mov_b32 s{SRD_WO+3}, 0x20000")
    k.e("v_lshrrev_b32 v204, 3, v0")
    k.e("v_and_b32 v205, 7, v0")
    k.e("v_and_b32 v206, 2, v204")
    k.e("v_lshlrev_b32 v206, 1, v206")
    k.e("v_xor_b32 v206, v205, v206")
    k.e("v_lshlrev_b32 v206, 4, v206")
    k.e(f"s_sub_u32 s54, s{S_WAVE}, 4")
    k.e("s_lshl_b32 s50, s54, 7")
    k.e("v_add_u32 v204, s50, v204")
    k.e("v_lshlrev_b32 v204, 10, v204")
    k.e("s_lshl_b32 s50, s53, 7")
    k.e("v_add3_u32 v205, v204, v206, s50")
    k.e("s_lshl_b32 s96, s54, 14")
    k.e(f"s_add_u32 s96, s96, {WO_L}")
    k.e("s_mov_b32 s97, 0")

def wo_pair(k):
    k.e("s_mov_b32 m0, s96")
    k.e("s_add_u32 s98, s97, 7168")
    k.e(f"buffer_load_dwordx4 v205, {sr(SRD_WO,4)}, s97 offen lds")
    k.e(f"buffer_load_dwordx4 v205, {sr(SRD_WO,4)}, s98 offen offset:1024 lds")
    k.e("s_add_u32 s96, s96, 2048")
    k.e("s_add_u32 s97, s97, 16384")

KVL = 0
def kv_loads(k):
    k.stamp(14)
    k.e(f"s_lshl_b32 s50, s{S_G}, 13")
    k.e(f"s_add_u32 s50, s50, {KVACC}")
    k.e("s_add_u32 s51, s50, 4096")
    k.e(f"buffer_load_dwordx4 {vr(KVR,4)}, v1, {WS}, s50 offen sc1")
    k.e(f"buffer_load_dwordx4 {vr(KVR+4,4)}, v1, {WS}, s50 offen offset:1024 sc1")
    k.e(f"buffer_load_dwordx4 {vr(164,4)}, v1, {WS}, s51 offen sc1")
    k.e(f"buffer_load_dwordx4 {vr(168,4)}, v1, {WS}, s51 offen offset:1024 sc1")
    k.e("v_lshrrev_b32 v202, 5, v0")
    k.e("v_lshlrev_b32 v202, 12, v202")
    k.e("v_and_b32 v203, 31, v0")
    k.e("v_lshl_add_u32 v202, v203, 2, v202")
    k.e(f"buffer_load_dword v172, v202, {WS}, s50 offen offset:2048 sc1")

def attention(k):
    k.c("attention: i = w&1 (s26), hh = w>>1 (s27), qt = s48, s99 = kv loads issued flag")
    k.e(f"s_and_b32 s26, s{S_WAVE}, 1")
    k.e(f"s_lshr_b32 s27, s{S_WAVE}, 1")
    k.e(f"s_lshl_b32 s48, s{S_RB}, 1")
    k.e("s_add_u32 s48, s48, s26")
    k.e("v_lshlrev_b32 v1, 4, v0")
    k.e("s_lshl_b32 s49, s27, 11")
    k.e("s_lshl_b32 s50, s26, 10")
    k.e("s_add_u32 s49, s49, s50")
    k.e(f"s_add_u32 s49, s49, {Q_L}")
    k.e("v_add_u32 v2, s49, v1")
    k.e(f"ds_read_b128 {vr(AQ_,4)}, v2")
    def kaddr(p): return (AK0, RK_L + p*1024) if p <= 6 else ((AK7, 0) if p == 7 else (AK8, 0))
    def vaddr(p): return (AV0, p*1024) if p <= 6 else ((AV7, 0) if p == 7 else (AV8, 0))
    for p in range(9):
        a, o = kaddr(p); k.e(f"ds_read_b128 {vr(AKF+4*p,4)}, v{a} offset:{o}")
    k.e("s_mov_b32 s64, 0xffff")
    k.e("s_mov_b32 s65, 0xffff")
    k.e("s_mov_b32 s99, 0")
    for b in range(2):
        for j in range(8): k.e(f"v_mov_b32 v{AVB[b]+j}, 0x3f803f80")
    sk = k.u("nowo")
    k.e(f"s_cmp_ge_u32 s{S_WAVE}, 4")
    k.e(f"s_cbranch_scc0 {sk}")
    wo_setup(k)
    for j in range(8): wo_pair(k)
    k.lab(sk)
    Q = vr(AQ_, 4)
    def qk(dst, p, c): k.e(f"{MF} {vr(dst,16)}, {vr(AKF+4*p,4)}, {Q}, {c}")
    def c1(p): return vr(AMF,16) if p == 0 else (vr(AMD,16) if p == 8 else "0")
    def c2(p): return vr(AMF,16) if p == 0 else (vr(AMD,16) if p == 8 else vr(ACN,16))
    k.e("s_sub_i32 s95, 8, s48")
    k.e("s_max_i32 s95, s95, 0")
    P1 = [k.u(f"p1_{p}") for p in range(9)]
    P2 = [k.u(f"p2_{p}") for p in range(9)]
    E1 = [k.u(f"e1_{p}") for p in range(9)]
    E2 = [k.u(f"e2_{p}") for p in range(9)]
    k.e("s_waitcnt lgkmcnt(0)")
    for p in range(1, 9):
        k.e(f"s_cmp_eq_u32 s95, {p}")
        k.e(f"s_cbranch_scc1 {E1[p]}")
    qk(AS[0], 0, c1(0)); qk(AS[1], 1, c1(1)); qk(AS[2], 2, c1(2))
    k.e("s_nop 9")
    for p in range(9):
        k.lab(P1[p])
        s_ = AS[p % 3]
        for j in range(8): k.e(f"v_max3_f32 v{AM}, v{s_+2*j}, v{s_+2*j+1}, v{AM}")
        if p + 3 <= 8: qk(s_, p + 3, c1(p + 3))
    k.e(f"v_mov_b32 v{AT}, v{AM}")
    k.e("s_nop 1")
    k.e(f"v_permlane32_swap_b32 v{AM}, v{AT}")
    k.e(f"v_max_f32 v{AM}, v{AM}, v{AT}")
    k.e(f"v_sub_f32 v{AM}, 0, v{AM}")
    for i in range(16): k.e(f"v_mov_b32 v{ACN+i}, v{AM}")
    for i in range(16): k.e(f"v_add_f32 v{AMD+i}, v{AMD+i}, v{AM}")
    k.stamp(8)
    k.e("s_cmp_eq_u32 s95, 0")
    sh = k.u("short2")
    k.e(f"s_cbranch_scc0 {sh}")
    for i in range(16): k.e(f"v_add_f32 v{AMF+i}, v{AMF+i}, v{AM}")
    v_reads(k, 0, *vaddr(0))
    k.e("s_nop 0")
    qk(AS[0], 0, c2(0))
    k.e("s_nop 6")
    for p in range(9):
        k.lab(P2[p])
        cur = AS[p % 2]; nxt = AS[(p + 1) % 2]
        if p < 8:
            qk(nxt, p + 1, c2(p + 1))
            v_reads(k, (p + 1) % 2, *vaddr(p + 1))
        hooks = k.u("nohook")
        if p == OPT['sigp']:
            k.e("s_cmp_eq_u32 s95, 0")
            k.e(f"s_cbranch_scc0 {hooks}")
            sig_f1a(k)
            k.lab(hooks)
        if p >= OPT['pollp'] and (p - OPT['pollp']) % 2 == 0:
            hk = k.u("hk")
            k.e(f"s_cmp_eq_u32 s{S_WAVE}, 4")
            k.e(f"s_cbranch_scc0 {hk}")
            k.e("s_cmp_eq_u32 s95, 0")
            k.e(f"s_cbranch_scc0 {hk}")
            k.e("s_cmp_eq_u32 s99, 0")
            k.e(f"s_cbranch_scc0 {hk}")
            if p > OPT['pollp']:
                got = k.u("got")
                k.e("s_waitcnt vmcnt(0)")
                k.e(f"v_cmp_ne_u32 vcc, s{S_NONCE}, v{VPOLL}")
                k.e("s_nop 1")
                k.e(f"s_cbranch_vccz {got}")
                k.e(f"buffer_load_dword v{VPOLL}, v{VPA}, {WS}, 0 offen sc1")
                k.e(f"s_branch {hk}")
                k.lab(got)
                kv_loads(k)
                k.e("s_mov_b32 s99, 1")
            else:
                k.e(f"buffer_load_dword v{VPOLL}, v{VPA}, {WS}, 0 offen sc1")
            k.lab(hk)
        for j in range(16): k.e(f"v_exp_f32 v{cur+j}, v{cur+j}")
        for j in range(8): k.e(f"v_cvt_pk_bf16_f32 v{AP+j}, v{cur+2*j}, v{cur+2*j+1}")
        k.e(f"s_waitcnt lgkmcnt({2 if p < 8 else 0})")
        vb = AVB[p % 2]
        k.e(f"{MF} {vr(AO,16)}, {vr(vb,4)}, {vr(AP,4)}, {'0' if p == 0 else vr(AO,16)}")
        k.e("s_nop 0")
        k.e(f"{MF} {vr(AO,16)}, {vr(vb+4,4)}, {vr(AP+4,4)}, {vr(AO,16)}")
    done = k.u("attdone")
    k.e(f"s_branch {done}")
    for p in range(1, 9):
        k.lab(E1[p])
        for q in range(p, min(p + 3, 9)): qk(AS[q % 3], q, c1(q))
        k.e("s_nop 10")
        k.e(f"s_branch {P1[p]}")
    k.lab(sh)
    for i in range(16): k.e(f"v_mov_b32 v{AO+i}, 0")
    sig_f1a(k)
    sk = k.u("shpoll")
    k.e(f"s_cmp_eq_u32 s{S_WAVE}, 4")
    k.e(f"s_cbranch_scc0 {sk}")
    k.e(f"buffer_load_dword v{VPOLL}, v{VPA}, {WS}, 0 offen sc1")
    k.lab(sk)
    for p in range(1, 9):
        k.e(f"s_cmp_eq_u32 s95, {p}")
        k.e(f"s_cbranch_scc1 {E2[p]}")
    k.e(f"s_branch {E2[8]}")
    for p in range(1, 9):
        k.lab(E2[p])
        qk(AS[p % 2], p, c2(p))
        v_reads(k, p % 2, *vaddr(p))
        k.e("s_nop 6")
        k.e(f"s_branch {P2[p]}")
    k.lab(done)

def apart(k):
    sk = k.u("kvdone")
    k.e(f"s_cmp_eq_u32 s{S_WAVE}, 4")
    k.e(f"s_cbranch_scc0 {sk}")
    k.e("s_cmp_eq_u32 s99, 1")
    k.e(f"s_cbranch_scc1 {sk}")
    poll_flags(k, VPA, VPOLL, "f1a", first_issued=True)
    kv_loads(k)
    k.lab(sk)
    k.e("s_nop 8")
    k.e(f"v_rcp_f32 v{AT}, v{AO+8}")
    k.e("s_nop 0")
    for j in range(8): k.e(f"v_mul_f32 v{AO+j}, v{AO+j}, v{AT}")
    cvt8(k, AP, AO)
    k.e(f"s_lshl_b32 s49, s{S_G}, 2")
    k.e("s_add_u32 s49, s49, s27")
    k.e("s_lshl_b32 s50, s48, 5")
    k.e("s_add_u32 s49, s49, s50")
    k.e("s_lshl_b32 s49, s49, 10")
    k.e(f"s_add_u32 s50, s49, {O_G + (2<<20)}")
    k.e(f"buffer_store_dwordx4 {vr(AP,4)}, v1, {WS}, s50 offen sc1")
    k.e("s_barrier")
    sk = k.u("nokvw")
    k.e(f"s_cmp_eq_u32 s{S_WAVE}, 4")
    k.e(f"s_cbranch_scc0 {sk}")
    k.e("s_waitcnt vmcnt(1)")
    k.e(f"ds_write_b128 v1, {vr(KVR,4)} offset:{KVL}")
    k.e(f"ds_write_b128 v1, {vr(KVR+4,4)} offset:{KVL+1024}")
    k.e(f"ds_write_b128 v1, {vr(164,4)} offset:{KVL+4096}")
    k.e(f"ds_write_b128 v1, {vr(168,4)} offset:{KVL+4096+1024}")
    k.e("v_lshrrev_b32 v202, 5, v0")
    k.e("v_lshlrev_b32 v202, 12, v202")
    k.e("v_and_b32 v203, 31, v0")
    k.e("v_lshl_add_u32 v202, v203, 2, v202")
    k.e(f"ds_write_b32 v202, v172 offset:{KVL+2048}")
    k.e("s_waitcnt lgkmcnt(0)")
    k.lab(sk)
    k.e("s_lshr_b32 s51, s27, 1")
    k.e("s_lshl_b32 s51, s51, 12")
    k.e("s_and_b32 s52, s27, 1")
    k.e("s_lshl_b32 s52, s52, 6")
    k.e("s_add_u32 s51, s51, s52")
    k.e("v_lshrrev_b32 v203, 5, v0")
    k.e("v_and_b32 v202, 15, v0")
    k.e("v_lshl_add_u32 v202, v203, 5, v202")
    k.e("v_lshlrev_b32 v202, 2, v202")
    k.e("v_add_u32 v202, s51, v202")
    k.e("v_lshlrev_b32 v203, 4, v203")
    k.e("v_add_u32 v203, s51, v203")
    k.e("s_lshl_b32 s51, s27, 11")
    k.e("s_lshl_b32 s50, s26, 10")
    k.e("s_add_u32 s51, s51, s50")
    k.e(f"s_add_u32 s51, s51, {PQ_L}")
    k.e("v_add_u32 v2, s51, v1")
    k.e(f"ds_read_b128 {vr(AQ_,4)}, v2")
    k.e("s_barrier")
    k.stamp(15)
    k.e("s_mov_b64 exec, s[64:65]")
    for t in range(8): k.e(f"ds_read_b32 v{KVR+t}, v202 offset:{KVL + t*256}")
    k.e("s_not_b64 exec, s[64:65]")
    k.e(f"ds_read_b128 {vr(KVR,4)}, v203 offset:{KVL+2048}")
    k.e(f"ds_read_b128 {vr(KVR+4,4)}, v203 offset:{KVL+2048+32}")
    k.e("s_mov_b64 exec, -1")
    k.e("s_waitcnt lgkmcnt(0)")
    cvt8(k, 8, KVR)
    k.e("s_nop 1")
    k.e(f"{MF} {vr(44,16)}, {vr(8,4)}, {vr(AQ_,4)}, 0")
    k.e(f"s_mov_b32 s62, {lit(1e-6)}")
    k.e("s_nop 10")
    k.e("v_add_f32 v12, s62, v52")
    k.e("v_rcp_f32 v12, v12")
    k.e("s_nop 0")
    for j in range(8): k.e(f"v_mul_f32 v{44+j}, v{44+j}, v12")
    cvt8(k, 16, 44)
    k.e(f"s_add_u32 s50, s49, {O_G}")
    k.e(f"buffer_store_dwordx4 {vr(16,4)}, v1, {WS}, s50 offen sc1")

def p3(k):
    k.c("P3: out tile 128x64")
    k.e("s_and_b32 s48, s2, 7")
    k.e("s_lshr_b32 s49, s2, 3")
    k.e("s_lshr_b32 s66, s48, 2")
    k.e("s_and_b32 s67, s48, 3")
    k.e("s_lshl_b32 s67, s67, 2")
    k.e("s_and_b32 s50, s49, 3")
    k.e("s_add_u32 s67, s67, s50")
    k.e("s_lshr_b32 s68, s49, 2")
    k.e("s_lshl_b32 s48, s67, 11")
    k.e(f"s_add_u32 s48, s48, {F2}")
    k.e("v_and_b32 v8, 15, v0")
    k.e("v_lshlrev_b32 v8, 7, v8")
    k.e("v_add_u32 v8, s48, v8")
    OF, ACC3, WF = 8+4, 144, [176, 184]
    VA0, VA1 = 192, 193
    k.e("v_bfe_u32 v2, v0, 2, 2")
    k.e("v_and_b32 v3, 3, v0")
    k.e("v_bfe_u32 v4, v0, 4, 1")
    k.e("v_lshrrev_b32 v5, 5, v0")
    k.e("v_lshlrev_b32 v5, 2, v5")
    k.e("v_add_u32 v5, v5, v2")
    k.e("v_lshlrev_b32 v5, 7, v5")
    k.e("v_and_b32 v6, 1, v3")
    k.e("v_lshlrev_b32 v6, 1, v6")
    k.e("v_add_u32 v6, v6, v4")
    k.e("v_and_b32 v7, 2, v2")
    k.e("v_lshlrev_b32 v7, 1, v7")
    k.e("v_xor_b32 v6, v6, v7")
    k.e("v_lshlrev_b32 v6, 4, v6")
    k.e("v_lshrrev_b32 v3, 1, v3")
    k.e("v_lshlrev_b32 v3, 3, v3")
    k.e("v_add3_u32 v5, v5, v6, v3")
    k.e("s_and_b32 s51, s68, 3")
    k.e("s_lshl_b32 s52, s51, 14")
    k.e(f"s_add_u32 s52, s52, {WO_L}")
    k.e(f"v_add_u32 v{VA0}, s52, v5")
    k.e(f"v_xor_b32 v{VA1}, 64, v{VA0}")
    k.e("s_lshl_b32 s48, s67, 2")
    k.e(f"s_add_u32 s48, s48, s{S_WAVE}")
    k.e("s_lshl_b32 s49, s48, 15")
    k.e("s_lshl_b32 s50, s66, 21")
    k.e("s_add_u32 s49, s49, s50")
    k.e(f"s_add_u32 s49, s49, {O_G}")
    k.e("v_lshlrev_b32 v1, 4, v0")
    sk = k.u("nof2poll")
    k.e(f"s_cmp_eq_u32 s{S_WAVE}, 0")
    k.e(f"s_cbranch_scc0 {sk}")
    k.e("s_mov_b64 exec, 0xffff")
    poll_flags(k, 8, 9, "f2")
    k.e("s_mov_b64 exec, -1")
    k.lab(sk)
    k.e("s_barrier")
    k.e(f"s_cmp_ge_u32 s{S_WAVE}, 4")
    k.e("s_cbranch_scc1 L_fin")
    k.stamp(12)
    NPRE = OPT['npre']
    for hb in range(8):
        blk = hb >> 1
        k.e(f"s_add_u32 s52, s51, {blk}")
        k.e("s_and_b32 s52, s52, 3")
        k.e("s_lshl_b32 s52, s52, 13")
        k.e("s_add_u32 s52, s52, s49")
        if hb & 1: k.e("s_add_u32 s52, s52, 4096")
        k.e(f"s_mov_b32 s{[86,87,88,89,92,93,94,100][hb]}, s52")
    def oload(hd):
        so = [86,87,88,89,92,93,94,100][hd >> 2]
        k.e(f"buffer_load_dwordx4 {vr(OF+4*hd,4)}, v1, {WS}, s{so} offen offset:{(hd%4)*1024} sc1")
    for hd in range(NPRE): oload(hd)
    def wreads(buf, j):
        for b in range(2):
            for s2 in range(2):
                k.e(f"ds_read_b64_tr_b16 {vr(WF[buf]+4*b+2*s2,2)}, v{VA0+b} offset:{j*2048 + s2*1024}")
    def advance(blk):
        k.e(f"s_add_u32 s52, s51, {blk}")
        k.e("s_and_b32 s52, s52, 3")
        k.e("s_cmp_eq_u32 s52, 0")
        k.e(f"s_cselect_b32 s52, 0x{(-3*16384) & 0xffffffff:x}, s69")
        k.e(f"v_add_u32 v{VA0}, s52, v{VA0}")
        k.e(f"v_add_u32 v{VA1}, s52, v{VA1}")
    k.e("s_mov_b32 s69, 16384")
    wreads(0, 0)
    for hd in range(32):
        if hd < 31:
            nj = (hd + 1) % 8
            if nj == 0: advance((hd + 1)//8)
            wreads((hd + 1) % 2, nj)
        issued = min(32, NPRE + hd)
        k.e(f"s_waitcnt vmcnt({issued-1-hd}) lgkmcnt({4 if hd < 31 else 0})")
        if NPRE + hd < 32: oload(NPRE + hd)
        if OPT.get('p3st') and hd in (0, 8, 31):
            k.stamp({0: 5, 8: 6, 31: 8}[hd])
        for b in range(2):
            k.e(f"{MF} {vr(ACC3+16*b,16)}, {vr(WF[hd%2]+4*b,4)}, {vr(OF+4*hd,4)}, {'0' if hd == 0 else vr(ACC3+16*b,16)}")
    srd(k, SRD_T, P_OUT, 4 << 20)
    k.e("v_and_b32 v2, 31, v0")
    k.e("s_lshl_b32 s49, s48, 5")
    k.e("v_add_u32 v2, s49, v2")
    k.e("v_lshlrev_b32 v2, 11, v2")
    k.e("v_lshrrev_b32 v3, 5, v0")
    k.e("v_lshlrev_b32 v3, 5, v3")
    k.e("s_lshl_b32 s49, s66, 10")
    k.e("s_lshl_b32 s50, s68, 7")
    k.e("s_add_u32 s49, s49, s50")
    k.e("v_add3_u32 v2, v2, v3, s49")
    k.e("s_nop 3")
    for b in range(2):
        for j in range(8): k.e(f"v_cvt_pk_bf16_f32 v{12+8*b+j}, v{ACC3+16*b+2*j}, v{ACC3+16*b+2*j+1}")
    for b in range(2):
        fl = {0: "", 1: " sc1", 2: " nt", 3: " sc0 sc1"}[OPT['outf']]
        k.e(f"buffer_store_dwordx4 {vr(12+8*b,4)}, v2, {sr(SRD_T,4)}, 0 offen offset:{64*b}{fl}")
        k.e(f"buffer_store_dwordx4 {vr(16+8*b,4)}, v2, {sr(SRD_T,4)}, 0 offen offset:{64*b+16}{fl}")

HDR = """; Kernarg layout for this problem (72 bytes, ptrs only, base s[0:1]):
;   offset   0: d_in[0] A_x  shape=(1, 2048, 512) dtype=bfloat16
;   offset   8: d_in[1] A_wqkv  shape=(512, 1536) dtype=bfloat16
;   offset  16: d_in[2] A_wo  shape=(512, 512) dtype=bfloat16
;   offset  24: d_in[3] B_x  shape=(1, 2048, 512) dtype=bfloat16
;   offset  32: d_in[4] B_wqkv  shape=(512, 1536) dtype=bfloat16
;   offset  40: d_in[5] B_wo  shape=(512, 512) dtype=bfloat16
;   offset  48: d_out     shape=(1, 2048, 1024) dtype=bfloat16
;   offset  56: d_debug   256 bytes
;   offset  64: d_ws      268435456 bytes workspace
; @launch grid=(256,1,1) block=(512,1,1) lds=163840
.amdgcn_target "amdgcn-amd-amdhsa--gfx950"
.text
.globl KNAME
.p2align 8
.type KNAME,@function
""".replace("KNAME", KNAME)

TAIL = """.section .rodata,"a"
.p2align 6
.amdhsa_kernel KNAME
  .amdhsa_next_free_vgpr 256
  .amdhsa_next_free_sgpr 102
  .amdhsa_accum_offset 256
  .amdhsa_group_segment_fixed_size 0
  .amdhsa_kernarg_size 72
  .amdhsa_user_sgpr_count 2
  .amdhsa_user_sgpr_kernarg_segment_ptr 1
  .amdhsa_system_sgpr_workgroup_id_x 1
.end_amdhsa_kernel
""".replace("KNAME", KNAME)

def build(stamps=False):
    k = gen(stamps)
    body = "\n".join(k.L)
    body = body.replace("PF_BACK", f"((L_pc - {KNAME}) & 0xffffff00)")
    pad = "\n    .fill 2048, 4, 0xbf800000\n"
    hdr, tail = HDR, TAIL
    if OPT['extra']:
        hdr = hdr.replace("; @launch grid=(256,1,1) block=(512,1,1) lds=163840", f"; @launch kernel={KNAME} grid=(256,1,1) block=(512,1,1) lds=163840\n; @launch kernel=nop_kernel grid=(1,1,1) block=(64,1,1) lds=0")
        pad += ".globl nop_kernel\n.p2align 8\n.type nop_kernel,@function\nnop_kernel:\n    s_endpgm\n"
        tail += """.p2align 6
.amdhsa_kernel nop_kernel
  .amdhsa_next_free_vgpr 8
  .amdhsa_next_free_sgpr 16
  .amdhsa_accum_offset 8
  .amdhsa_group_segment_fixed_size 0
  .amdhsa_kernarg_size 72
  .amdhsa_user_sgpr_count 2
  .amdhsa_user_sgpr_kernarg_segment_ptr 1
  .amdhsa_system_sgpr_workgroup_id_x 1
.end_amdhsa_kernel
"""
    return hdr + body + pad + "\n" + tail

if __name__ == "__main__":
    out = sys.argv[1] if len(sys.argv) > 1 else "out.s"
    stamps = "stamps" in sys.argv[2:]
    for a in sys.argv[2:]:
        if "=" in a:
            kk, vv = a.split("="); OPT[kk] = int(vv)
    txt = build(stamps)
    open(out, "w").write(txt)
    import hz
    pr = hz.check(txt)
    import subprocess
    r = subprocess.run(["clang", "-x", "assembler", "-target", "amdgcn-amd-amdhsa", "-mcpu=gfx950", "-c", out, "-o", "_chk.o"], capture_output=True, text=True)
    print("hazards:", len(pr), "lines:", txt.count("\n"), "asm:", "ok" if r.returncode == 0 else r.stderr)
```

```python
import sys, math, struct

KNAME = "concat_heads__linear_attn_block__sliding_block__prompt_kernel"

KB_G   = 0
VB_G   = 2 << 20
O_G    = 4 << 20
KVACC  = 8 << 20
FL     = (8 << 20) + (64 << 10)
F1B    = FL
F1A    = FL + (32 << 10)
F2     = FL + (96 << 10)
STAMP  = 9 << 20
SLOT   = 32768
OK_L, OV_L, Q_L, PQ_L = 131072, 139264, 147456, 155648
NONCE_L = PQ_L
RK_L, RV_L, WO_L = 0, 32768, 65536
CS = 0.25 * math.log2(math.e)
LOG2E = math.log2(math.e)
BIG = 1.0e28
SPIN_MAX = 2000000
OPT = dict(rot=8, pfB=0, pfA=1, dbgstamps=0, stagest=0, pfs=1, tpf=0, p3st=0, map=2, outf=2, extra=0, sigs=9, pf0=0, late9=0, remdma=1, m16=0, npre=16, pf4=0, pkphi=1, prio=0, kvprio=1, pollp=4, sigp=3, fixdur=0, ldprio=0, wopos=1, sigst=0, wosplit=0, lprio=-1, slowg=3, p3poll=14, pf3=0, x16st=0)

def f2u(x): return struct.unpack('<I', struct.pack('<f', x))[0]
def lit(x): return "0x%08x" % f2u(x)

class K:
    def __init__(self, stamps=False):
        self.L = []; self.stamps = stamps; self.uid = 0; self.inp1 = False
    def e(self, s):
        if self.inp1 and OPT['m16'] and s.startswith("v_mfma_f32_32x32x16_bf16"):
            import re
            m = re.match(r"v_mfma_f32_32x32x16_bf16 v\[(\d+):\d+\], (v\[\d+:\d+\]), (v\[\d+:\d+\]), (.*)", s)
            d = int(m.group(1)); c = m.group(4)
            for h in range(2):
                cc = "0" if c == "0" else f"v[{d+4*h}:{d+4*h+3}]"
                self.L.append(f"    v_mfma_f32_16x16x32_bf16 v[{d+4*h}:{d+4*h+3}], {m.group(2)}, {m.group(3)}, {cc}")
            return
        self.L.append("    " + s)
    def c(self, s): self.L.append("    ; " + s)
    def lab(self, s): self.L.append(s + ":")
    def u(self, p):
        self.uid += 1; return f"L_{p}_{self.uid}"
    def stamp(self, k):
        if not self.stamps: return
        self.e("s_memrealtime s[70:71]")
        self.e("s_waitcnt lgkmcnt(0)")
        self.e(f"s_mov_b32 s{72+k}, s70")

def vr(a, n): return f"v[{a}:{a+n-1}]"
def sr(a, n): return f"s[{a}:{a+n-1}]"
MF = "v_mfma_f32_32x32x16_bf16"

S_WAVE, S_RB, S_G, S_NONCE = 22, 23, 24, 25
SRD_WS, SRD_X, SRD_W, SRD_T, SRD_WO = 28, 32, 36, 40, 44
P_AX, P_AW, P_AWO, P_BX, P_BW, P_BWO, P_OUT, P_DBG, P_WS = 4, 6, 8, 10, 12, 14, 16, 18, 20
WS = sr(SRD_WS, 4)

def srd(k, dst, ptr, size):
    k.e(f"s_mov_b32 s{dst}, s{ptr}")
    k.e(f"s_mov_b32 s{dst+1}, s{ptr+1}")
    k.e(f"s_mov_b32 s{dst+2}, 0x{size:x}")
    k.e(f"s_mov_b32 s{dst+3}, 0x20000")

def spin_guard(k, sreg, exit_label):
    k.e(f"s_add_u32 s{sreg}, s{sreg}, 1")
    k.e(f"s_cmp_gt_u32 s{sreg}, {SPIN_MAX}")
    k.e(f"s_cbranch_scc1 {exit_label}")

def poll_flags(k, vaddr, vtmp, name, first_issued=False, sleep=1):
    lp = k.u(name + "_poll"); ex = k.u(name + "_done"); chk = k.u(name + "_chk")
    k.e("s_mov_b32 s60, 0")
    if first_issued: k.e(f"s_branch {chk}")
    k.lab(lp)
    k.e(f"buffer_load_dword v{vtmp}, v{vaddr}, {WS}, 0 offen sc1")
    k.lab(chk)
    spin_guard(k, 60, ex)
    k.e("s_waitcnt vmcnt(0)")
    k.e(f"v_cmp_ne_u32 vcc, s{S_NONCE}, v{vtmp}")
    k.e("s_nop 1")
    k.e(f"s_cbranch_vccz {ex}")
    if sleep: k.e(f"s_sleep {sleep}")
    k.e(f"s_branch {lp}")
    k.lab(ex)
    k.e("s_waitcnt vmcnt(0)")

def store_flag(k, soff):
    k.e(f"v_mov_b32 v250, s{S_NONCE}")
    k.e("v_mov_b32 v251, 0")
    k.e("s_mov_b64 exec, 1")
    k.e(f"buffer_store_dword v250, v251, {WS}, s{soff} offen sc1")
    k.e("s_mov_b64 exec, -1")

def cvt8(k, dst, src):
    for j in range(4): k.e(f"v_cvt_pk_bf16_f32 v{dst+j}, v{src+2*j}, v{src+2*j+1}")

def phi(k, r, n, t):
    if not OPT['pkphi']:
        for i in range(0, n, 4):
            for j in range(4): k.e(f"v_mul_f32 v{t+j}, s61, v{r+i+j}")
            for j in range(4): k.e(f"v_exp_f32 v{t+j}, v{t+j} clamp")
            for j in range(4): k.e(f"v_max_f32 v{r+i+j}, 0, v{r+i+j}")
            for j in range(4): k.e(f"v_add_f32 v{r+i+j}, s62, v{r+i+j}")
            for j in range(4): k.e(f"v_add_f32 v{r+i+j}, v{t+j}, v{r+i+j}")
        return
    for i in range(0, n, 8):
        for j in range(0, 8, 2): k.e(f"v_pk_mul_f32 {vr(t+j,2)}, {vr(r+i+j,2)}, s[66:67]")
        for j in range(8): k.e(f"v_exp_f32 v{t+j}, v{t+j} clamp")
        for j in range(8): k.e(f"v_max_f32 v{r+i+j}, 0, v{r+i+j}")
        for j in range(0, 8, 2): k.e(f"v_pk_add_f32 {vr(r+i+j,2)}, {vr(r+i+j,2)}, s[62:63]")
        for j in range(0, 8, 2): k.e(f"v_pk_add_f32 {vr(r+i+j,2)}, {vr(r+i+j,2)}, {vr(t+j,2)}")

ACC = 8
BUF = [72, 88, 104, 120]
VXA, VWA = 136, 140
EP = 144
PFD = 208

def rd_x(k, buf, j, t): k.e(f"ds_read_b128 {vr(BUF[buf]+4*t,4)}, v{VXA+j} offset:{t*4096}")
def rd_w(k, buf, j, p, slot):
    for s2 in range(2):
        k.e(f"ds_read_b64_tr_b16 {vr(BUF[buf]+8+4*slot+2*s2,2)}, v{VWA} offset:{p*8192 + j*2048 + s2*512}")
def reads(k, role, buf, j):
    rd_x(k, buf, j, 0); rd_x(k, buf, j, 1)
    if role == 'kv': rd_w(k, buf, j, 1, 0); rd_w(k, buf, j, 2, 1)
    else: rd_w(k, buf, j, 0, 0)

def kstep(k, role, br, j, first=False, noreads=False, wait=None):
    nb = (j + 2) & 3; b = BUF[j]
    if noreads:
        X = [vr(b,4), vr(b+4,4)]; W = [vr(b+8,4), vr(b+12,4)]
        k.e(f"s_waitcnt lgkmcnt({wait})")
        for t in range(2):
            a = ACC + 16*t
            if role == 'kv' and br == 'A': k.e(f"{MF} {vr(a,16)}, {X[t]}, {W[0]}, {vr(a,16)}")
            else: k.e(f"{MF} {vr(a,16)}, {W[0]}, {X[t]}, {vr(a,16)}")
        if role == 'kv':
            for t in range(2):
                a = ACC + 32 + 16*t
                k.e(f"{MF} {vr(a,16)}, {X[t]}, {W[1]}, {vr(a,16)}")
        return
    X = [vr(b,4), vr(b+4,4)]; W = [vr(b+8,4), vr(b+12,4)]
    def C(a): return "0" if first else vr(a,16)
    if role == 'kv':
        k.e("s_waitcnt lgkmcnt(6)")
        for t in range(2):
            a = ACC + 16*t
            if br == 'B': k.e(f"{MF} {vr(a,16)}, {W[0]}, {X[t]}, {C(a)}")
            else:         k.e(f"{MF} {vr(a,16)}, {X[t]}, {W[0]}, {C(a)}")
            if t == 0: rd_x(k, nb, nb, 0); rd_x(k, nb, nb, 1)
            else: rd_w(k, nb, nb, 1, 0)
        for t in range(2):
            a = ACC + 32 + 16*t
            k.e(f"{MF} {vr(a,16)}, {X[t]}, {W[1]}, {C(a)}")
            if t == 0: rd_w(k, nb, nb, 2, 1)
    else:
        k.e("s_waitcnt lgkmcnt(4)")
        for t in range(2):
            a = ACC + 16*t
            k.e(f"{MF} {vr(a,16)}, {W[0]}, {X[t]}, {C(a)}")
            if t == 0: rd_x(k, nb, nb, 0); rd_x(k, nb, nb, 1)
            else: rd_w(k, nb, nb, 0, 0)

def consumer_tile(k, role, br, extra=None):
    lp = k.u("c"+role+br); ex = k.u("cx"+role+br)
    k.inp1 = True
    k.e("s_mov_b32 s48, 0")
    kstep(k, role, br, 0, first=True)
    k.lab(lp)
    k.e("s_add_u32 s49, s49, 1")
    k.e("s_and_b32 s50, s49, 3")
    k.e("s_cmp_eq_u32 s50, 0")
    k.e(f"s_cselect_b32 s50, 0x{(-3*SLOT) & 0xffffffff:x}, s69")
    kstep(k, role, br, 1)
    if extra: extra(k)
    if br == 'A' and role == 'kv':
        sk = k.u("novm")
        k.e(f"s_cmp_eq_u32 s48, {OPT['sigs']-8}")
        k.e(f"s_cbranch_scc0 {sk}")
        k.e("s_waitcnt vmcnt(0)")
        k.lab(sk)
    for j in range(4): k.e(f"v_add_u32 v{VXA+j}, s50, v{VXA+j}")
    k.e(f"v_add_u32 v{VWA}, s50, v{VWA}")
    k.e("s_barrier")
    k.e("s_cmp_lt_u32 s48, 7")
    k.e(f"s_cbranch_scc0 {ex}")
    kstep(k, role, br, 2)
    kstep(k, role, br, 3)
    k.e("s_add_u32 s48, s48, 1")
    kstep(k, role, br, 0)
    k.e(f"s_branch {lp}")
    k.lab(ex)
    n = 6 if role == 'kv' else 4
    kstep(k, role, br, 2, noreads=True, wait=n)
    kstep(k, role, br, 3, noreads=True, wait=0)
    k.inp1 = False

def consumer_setup(k):
    k.e("v_and_b32 v1, 31, v0")
    k.e("v_lshrrev_b32 v2, 5, v0")
    k.e("v_bfe_u32 v3, v0, 1, 3")
    k.e("v_xor_b32 v3, v3, v2")
    k.e("v_lshlrev_b32 v3, 4, v3")
    k.e("v_lshlrev_b32 v1, 7, v1")
    k.e(f"v_add_u32 v{VXA}, v1, v3")
    for j in range(1, 4): k.e(f"v_xor_b32 v{VXA+j}, {j<<5}, v{VXA}")
    k.e("v_bfe_u32 v1, v0, 2, 2")
    k.e("v_and_b32 v2, 3, v0")
    k.e("v_bfe_u32 v3, v0, 4, 1")
    k.e("v_lshrrev_b32 v4, 5, v0")
    k.e("v_lshlrev_b32 v4, 3, v4")
    k.e("v_add_u32 v4, v4, v1")
    k.e("v_lshlrev_b32 v4, 7, v4")
    k.e("v_lshlrev_b32 v3, 1, v3")
    k.e("v_lshrrev_b32 v5, 1, v2")
    k.e("v_add_u32 v3, v3, v5")
    k.e("s_lshl_b32 s48, s27, 2")
    k.e("v_add_u32 v3, s48, v3")
    k.e("v_and_b32 v5, 2, v1")
    k.e("v_lshlrev_b32 v5, 1, v5")
    k.e("v_xor_b32 v3, v3, v5")
    k.e("v_lshlrev_b32 v3, 4, v3")
    k.e("v_and_b32 v2, 1, v2")
    k.e("v_lshlrev_b32 v2, 3, v2")
    k.e("v_add3_u32 v4, v4, v3, v2")
    k.e(f"v_add_u32 v{VWA}, 8192, v4")

def read_nonce(k, va, vb):
    k.e(f"v_mov_b32 v{va}, {NONCE_L}")
    k.e(f"ds_read_b32 v{vb}, v{va}")
    k.e("s_waitcnt lgkmcnt(0)")
    k.e(f"v_readfirstlane_b32 s{S_NONCE}, v{vb}")

def pf_setup(k, pw, px):
    k.e("s_and_b32 s50, s2, 7")
    k.e("s_lshr_b32 s51, s2, 3")
    k.e("v_lshrrev_b32 v5, 2, v0")
    k.e("s_lshl_b32 s52, s51, 4")
    k.e("v_add_u32 v5, s52, v5")
    k.e("v_mul_u32_u24 v5, 3072, v5")
    k.e("v_and_b32 v6, 3, v0")
    k.e("s_lshr_b32 s52, s50, 2")
    k.e("s_lshl_b32 s52, s52, 2")
    k.e("v_add_u32 v6, s52, v6")
    k.e("v_lshlrev_b32 v6, 7, v6")
    k.e("v_add_u32 v5, v5, v6")
    k.e("v_lshlrev_b32 v6, 7, v0")
    k.e("s_and_b32 s52, s50, 3")
    k.e("s_lshl_b32 s52, s52, 9")
    k.e("s_lshl_b32 s53, s51, 4")
    k.e("s_add_u32 s52, s52, s53")
    k.e("s_lshl_b32 s66, s52, 10")
    k.e("s_lshl_b32 s67, s51, 14")
    k.e("s_lshr_b32 s68, s50, 2")

def gen(stamps=False):
    k = K(stamps)
    k.lab(KNAME)
    k.e("s_cmp_ge_u32 s2, 256")
    k.e("s_cbranch_scc1 L_end")
    if stamps: k.e("s_memrealtime s[70:71]")
    if OPT['fixdur']: k.e("s_memrealtime s[100:101]")
    k.e("s_load_dwordx16 s[4:19], s[0:1], 0")
    k.e("s_load_dwordx2 s[20:21], s[0:1], 64")
    k.e("v_lshrrev_b32 v1, 6, v0")
    k.e("v_and_b32 v0, 63, v0")
    k.e(f"v_readfirstlane_b32 s{S_WAVE}, v1")
    k.e("s_and_b32 s26, s2, 7")
    k.e("s_lshr_b32 s27, s2, 3")
    k.e("s_and_b32 s48, s26, 3")
    k.e("s_lshl_b32 s48, s48, 3")
    if OPT['map'] != 1:
        k.e("s_and_b32 s49, s27, 7")
    else:
        k.e("s_lshr_b32 s49, s27, 2")
    k.e(f"s_add_u32 s{S_RB}, s48, s49")
    k.e("s_lshr_b32 s48, s26, 2")
    k.e("s_lshl_b32 s48, s48, 2")
    if OPT['map'] == 0:
        k.e("s_lshr_b32 s49, s27, 3")
    elif OPT['map'] == 2:
        k.e("s_lshr_b32 s49, s27, 3")
        k.e("s_sub_u32 s49, 3, s49")
    elif OPT['map'] >= 3:
        perm = {3: (3, 1, 2, 0), 4: (3, 1, 0, 2), 5: (1, 3, 2, 0)}[OPT['map']]
        tab = sum(v << (4*i) for i, v in enumerate(perm))
        k.e("s_lshr_b32 s49, s27, 3")
        k.e("s_lshl_b32 s49, s49, 2")
        k.e(f"s_lshr_b32 s49, 0x{tab:x}, s49")
        k.e("s_and_b32 s49, s49, 3")
    else:
        k.e("s_and_b32 s49, s27, 3")
    k.e(f"s_add_u32 s{S_G}, s48, s49")
    k.e(f"s_cmp_lt_u32 s{S_WAVE}, 4")
    k.e("s_cbranch_scc1 L_consumer")

    loader(k)
    k.e("s_branch L_attn")

    k.lab("L_consumer")
    k.e("s_waitcnt lgkmcnt(0)")
    if OPT['fixdur']: k.e("s_mov_b32 s3, s100")
    if stamps: k.e("s_mov_b32 s72, s70")
    srd(k, SRD_WS, P_WS, 256 << 20)
    srd(k, SRD_T, P_DBG, 256)
    srd(k, SRD_X, P_AW, 512*3072)
    k.e(f"s_and_b32 s27, s{S_WAVE}, 1")
    consumer_setup(k)
    attn_setup(k)
    nn = k.u("nononce")
    k.e(f"s_cmp_eq_u32 s{S_WAVE}, 0")
    k.e(f"s_cbranch_scc0 {nn}")
    k.e("v_mov_b32 v2, 0")
    nl = k.u("nolead")
    k.e("s_cmp_eq_u32 s2, 0")
    k.e(f"s_cbranch_scc0 {nl}")
    k.e("s_memrealtime s[58:59]")
    k.e("s_waitcnt lgkmcnt(0)")
    k.e("s_or_b32 s58, s58, 1")
    k.e("v_mov_b32 v3, s58")
    k.e(f"buffer_store_dword v3, v2, {sr(SRD_T,4)}, 0 offen sc1")
    k.lab(nl)
    k.lab(nn)
    k.e("s_mov_b32 s49, 0")
    k.e(f"s_mov_b32 s69, {SLOT}")
    k.e(f"s_cmp_ge_u32 s{S_WAVE}, 2")
    k.e("s_cbranch_scc1 L_qwave")

    k.e("s_barrier")
    k.stamp(1)
    reads(k, 'kv', 0, 0); reads(k, 'kv', 1, 1)
    consumer_tile(k, 'kv', 'B')
    k.stamp(2)
    k.c("B epilogue (kv)")
    read_nonce(k, 2, 3)
    k.e(f"s_lshl_b32 s62, s{S_G}, 2")
    k.e("s_lshl_b32 s63, s27, 1")
    k.e("s_add_u32 s62, s62, s63")
    k.e("s_lshl_b32 s62, s62, 6")
    k.e(f"s_lshl_b32 s63, s{S_RB}, 1")
    k.e("s_add_u32 s62, s62, s63")
    k.e("s_lshl_b32 s62, s62, 10")
    k.e("v_lshlrev_b32 v1, 4, v0")
    k.e("s_lshl_b32 s63, s27, 12")
    k.e(f"s_add_u32 s63, s63, {OK_L}")
    k.e("v_add_u32 v4, s63, v1")
    k.e("v_bfe_u32 v2, v0, 4, 1")
    k.e("v_lshrrev_b32 v3, 5, v0")
    k.e("v_lshlrev_b32 v3, 8, v3")
    k.e("v_and_b32 v5, 15, v0")
    k.e("v_lshlrev_b32 v5, 4, v5")
    k.e("v_add_u32 v3, v3, v5")
    k.e("v_lshlrev_b32 v5, 11, v2")
    k.e("v_add_u32 v5, v5, v3")
    k.e(f"s_add_u32 s63, s63, {OV_L - OK_L}")
    k.e("v_add_u32 v5, s63, v5")
    k.e("v_lshlrev_b32 v2, 16, v2")
    k.e("v_add_u32 v2, v2, v3")
    k.e(f"s_add_u32 s64, s62, {KB_G + 65536}")
    k.e(f"s_add_u32 s65, s62, {VB_G}")
    k.e("s_nop 3")
    for t in range(2):
        KF = EP + 16*t; VF = KF + 8
        cvt8(k, KF, ACC+16*t); cvt8(k, KF+4, ACC+16*t+8)
        cvt8(k, VF, ACC+32+16*t); cvt8(k, VF+4, ACC+32+16*t+8)
        k.e(f"buffer_store_dwordx4 {vr(KF,4)}, v1, {WS}, s62 offen offset:{t*1024} sc1")
        k.e(f"buffer_store_dwordx4 {vr(KF+4,4)}, v1, {WS}, s64 offen offset:{t*1024} sc1")
        k.e(f"buffer_store_dwordx4 {vr(VF,4)}, v2, {WS}, s65 offen offset:{t*1024} sc1")
        k.e(f"buffer_store_dwordx4 {vr(VF+4,4)}, v2, {WS}, s65 offen offset:{t*1024+512} sc1")
        k.e(f"ds_write_b128 v4, {vr(KF,4)} offset:{t*1024}")
        k.e(f"ds_write_b128 v4, {vr(KF+4,4)} offset:{t*1024+2048}")
        k.e(f"ds_write_b128 v5, {vr(VF,4)} offset:{t*1024}")
        k.e(f"ds_write_b128 v5, {vr(VF+4,4)} offset:{t*1024+512}")
    k.stamp(3)
    k.e("s_barrier")
    reads(k, 'kv', 0, 0); reads(k, 'kv', 1, 1)
    consumer_tile(k, 'kv', 'A')
    k.e("s_waitcnt lgkmcnt(0)")
    if OPT.get('x16st'): k.stamp(5)
    k.e("s_barrier")
    k.stamp(4)
    k.c("A epilogue (kv)")
    if OPT['kvprio']: k.e("s_setprio 2")
    T = 72
    k.e(f"s_mov_b32 s61, {lit(LOG2E)}")
    k.e(f"s_mov_b32 s62, {lit(1e-6)}")
    k.e("s_mov_b32 s63, s62")
    k.e("s_mov_b32 s66, s61")
    k.e("s_mov_b32 s67, s61")
    PK, VV, ONES = 80, 96, 112
    for j in range(4): k.e(f"v_mov_b32 v{ONES+j}, 0x3f803f80")
    k.e("s_nop 3")
    for t in range(2):
        cvt8(k, VV+8*t, ACC+32+16*t); cvt8(k, VV+8*t+4, ACC+32+16*t+8)
    DKV, DZ = ACC+32, ACC+48
    for t in range(2):
        phi(k, ACC+16*t, 16, T)
        cvt8(k, PK+8*t, ACC+16*t); cvt8(k, PK+8*t+4, ACC+16*t+8)
        k.e("s_nop 1")
        for m in range(2):
            first = (t == 0 and m == 0)
            k.e(f"{MF} {vr(DKV,16)}, {vr(PK+8*t+4*m,4)}, {vr(VV+8*t+4*m,4)}, {'0' if first else vr(DKV,16)}")
            k.e(f"{MF} {vr(DZ,16)}, {vr(ONES,4)}, {vr(PK+8*t+4*m,4)}, {'0' if first else vr(DZ,16)}")
    k.e("s_mov_b32 s64, 0xffff0000")
    k.e("s_mov_b32 s65, 0xffff0000")
    k.e(f"s_lshl_b32 s63, s{S_G}, 1")
    k.e("s_add_u32 s63, s63, s27")
    k.e("s_lshl_b32 s63, s63, 12")
    k.e(f"s_add_u32 s63, s63, {KVACC}")
    k.e("v_lshlrev_b32 v3, 2, v0")
    k.e("s_nop 5")
    RS = 120
    for t in range(8): k.e(f"v_cndmask_b32 v{RS+t}, v{DKV+t}, v{DKV+8+t}, s[64:65]")
    for t in range(8): k.e(f"buffer_atomic_add_f32 v{RS+t}, v3, {WS}, s63 offen offset:{t*256}")
    k.e("s_mov_b32 exec_hi, 0")
    k.e(f"buffer_atomic_add_f32 v{DZ}, v3, {WS}, s63 offen offset:2048")
    k.e("s_mov_b64 exec, -1")
    if OPT['kvprio']: k.e("s_setprio 0")
    k.e("s_branch L_e1")

    k.lab("L_qwave")
    k.e("v_mov_b32 v251, 0")
    k.e("s_barrier")
    k.stamp(1)
    reads(k, 'q', 0, 0); reads(k, 'q', 1, 1)
    def pf_extra(k):
        ex = k.u("pfx"); w3 = k.u("pfw3")
        n1 = k.u("nn1"); n2 = k.u("nn2")
        k.e(f"s_cmp_eq_u32 s{S_WAVE}, 2")
        k.e(f"s_cbranch_scc0 {n2}")
        k.e("s_cmp_eq_u32 s48, 0")
        k.e(f"s_cbranch_scc0 {n1}")
        k.e(f"buffer_load_dword v7, v251, {sr(SRD_T,4)}, 0 offen sc1")
        k.lab(n1)
        k.e("s_cmp_eq_u32 s48, 6")
        k.e(f"s_cbranch_scc0 {n2}")
        lp = k.u("np"); npx = k.u("npx"); chk = k.u("npc")
        k.e("s_mov_b32 s60, 0")
        k.e(f"s_branch {chk}")
        k.lab(lp)
        k.e(f"buffer_load_dword v7, v251, {sr(SRD_T,4)}, 0 offen sc1")
        k.lab(chk)
        spin_guard(k, 60, npx)
        k.e("s_waitcnt vmcnt(0)")
        k.e("v_readfirstlane_b32 s58, v7")
        k.e("s_nop 0")
        k.e("s_cmp_eq_u32 s58, 0")
        k.e(f"s_cbranch_scc1 {lp}")
        k.lab(npx)
        k.e("s_waitcnt vmcnt(0)")
        k.e(f"v_mov_b32 v250, {NONCE_L}")
        k.e("ds_write_b32 v250, v7")
        k.lab(n2)
    consumer_tile(k, 'q', 'B', pf_extra)
    k.stamp(2)
    k.c("B epilogue (q)")
    read_nonce(k, 2, 3)
    k.e(f"s_mov_b32 s61, {lit(CS)}")
    k.e("v_lshlrev_b32 v1, 4, v0")
    k.e("s_lshl_b32 s63, s27, 12")
    k.e(f"s_add_u32 s63, s63, {Q_L}")
    k.e("v_add_u32 v4, s63, v1")
    k.e("s_nop 6")
    for t in range(2):
        for i in range(16): k.e(f"v_mul_f32 v{ACC+16*t+i}, s61, v{ACC+16*t+i}")
        QF = EP + 8*t
        cvt8(k, QF, ACC+16*t); cvt8(k, QF+4, ACC+16*t+8)
        k.e(f"ds_write_b128 v4, {vr(QF,4)} offset:{t*1024}")
        k.e(f"ds_write_b128 v4, {vr(QF+4,4)} offset:{t*1024+2048}")
    k.stamp(3)
    k.e("s_barrier")
    reads(k, 'q', 0, 0); reads(k, 'q', 1, 1)
    consumer_tile(k, 'q', 'A')
    k.e("s_waitcnt lgkmcnt(0)")
    k.e("s_barrier")
    k.stamp(4)
    k.c("A epilogue (q)")
    k.e(f"s_mov_b32 s61, {lit(LOG2E)}")
    k.e(f"s_mov_b32 s62, {lit(1e-6)}")
    k.e("s_mov_b32 s63, s62")
    k.e("s_mov_b32 s66, s61")
    k.e("s_mov_b32 s67, s61")
    k.e("v_lshlrev_b32 v1, 4, v0")
    k.e("s_lshl_b32 s65, s27, 12")
    k.e(f"s_add_u32 s65, s65, {PQ_L}")
    k.e("v_add_u32 v4, s65, v1")
    k.e("s_nop 4")
    for t in range(2):
        phi(k, ACC+16*t, 16, 72)
        QF = EP + 8*t
        cvt8(k, QF, ACC+16*t); cvt8(k, QF+4, ACC+16*t+8)
        k.e(f"ds_write_b128 v4, {vr(QF,4)} offset:{t*1024}")
        k.e(f"ds_write_b128 v4, {vr(QF+4,4)} offset:{t*1024+2048}")
    k.e("s_waitcnt lgkmcnt(0)")
    k.lab("L_e1")

    k.lab("L_attn")
    if OPT['prio']:
        sk = k.u("prio")
        k.e(f"s_cmp_ge_u32 s{S_WAVE}, 4")
        k.e(f"s_cbranch_scc{0 if OPT['prio'] == 1 else 1} {sk}")
        k.e("s_setprio 1")
        k.lab(sk)
    k.stamp(7)
    attention(k)
    k.stamp(9)
    apart(k)
    k.stamp(10)
    k.e("s_waitcnt vmcnt(0) lgkmcnt(0)")
    k.e("s_barrier")
    k.stamp(11)
    sk = k.u("nof2")
    k.e(f"s_cmp_eq_u32 s{S_WAVE}, 4")
    k.e(f"s_cbranch_scc0 {sk}")
    k.e(f"s_lshr_b32 s48, s{S_RB}, 1")
    k.e("s_lshl_b32 s48, s48, 11")
    k.e(f"s_and_b32 s49, s{S_RB}, 1")
    k.e("s_lshl_b32 s49, s49, 3")
    k.e(f"s_add_u32 s49, s49, s{S_G}")
    k.e("s_lshl_b32 s49, s49, 7")
    k.e("s_add_u32 s48, s48, s49")
    k.e(f"s_add_u32 s48, s48, {F2}")
    store_flag(k, 48)
    k.lab(sk)
    p3(k)
    k.lab("L_fin")
    if OPT['fixdur']:
        lp = k.u("fix")
        k.lab(lp)
        k.e("s_memrealtime s[90:91]")
        k.e("s_waitcnt lgkmcnt(0)")
        k.e("s_sub_u32 s90, s90, s3")
        k.e(f"s_cmp_lt_u32 s90, {OPT['fixdur']}")
        k.e(f"s_cbranch_scc1 {lp}")
    if stamps:
        k.stamp(13)
        k.e(f"s_lshl_b32 s48, s2, 3")
        k.e(f"s_add_u32 s48, s48, s{S_WAVE}")
        k.e("s_lshl_b32 s48, s48, 6")
        k.e(f"s_add_u32 s48, s48, {STAMP}")
        k.e("v_mov_b32 v9, 0")
        for j in range(16):
            k.e(f"v_mov_b32 v8, s{72+j}")
            k.e(f"buffer_store_dword v8, v9, {WS}, s48 offen offset:{4*j}")
            k.e("s_nop 0")
    if stamps and OPT['dbgstamps']:
        srd(k, SRD_T, P_DBG, 256)
        for wg, base in ((8, 1), (200, 8)):
            sk = k.u("nodbg")
            k.e(f"s_cmp_eq_u32 s2, {wg}")
            k.e(f"s_cbranch_scc0 {sk}")
            k.e(f"s_cmp_eq_u32 s{S_WAVE}, 0")
            k.e(f"s_cbranch_scc0 {sk}")
            k.e("v_mov_b32 v9, 0")
            for n, j in enumerate((1, 2, 4, 9, 10, 11, 13)):
                k.e(f"s_sub_u32 s48, s{72+j}, s72")
                k.e("v_mov_b32 v8, s48")
                k.e(f"buffer_store_dword v8, v9, {sr(SRD_T,4)}, 0 offen offset:{4*(base+n)}")
                k.e("s_nop 0")
            k.lab(sk)
    if OPT['stagest']:
        sk = k.u("nost")
        k.e(f"s_cmp_eq_u32 s{S_WAVE}, 4")
        k.e(f"s_cbranch_scc0 {sk}")
        k.e("s_lshl_b32 s48, s2, 8")
        k.e(f"s_add_u32 s48, s48, {STAMP + (1<<19)}")
        k.e("v_lshlrev_b32 v9, 2, v0")
        k.e(f"buffer_store_dword v252, v9, {WS}, s48 offen")
        k.lab(sk)
    k.lab("L_end")
    k.e("s_endpgm")
    return k

def issue_stage(k):
    k.e("s_lshl_b32 s52, s59, 7")
    k.e("s_mul_i32 s53, s59, 196608")
    k.e("s_mov_b32 m0, s51")
    k.e("s_add_u32 s54, s53, 23552")
    k.e(f"buffer_load_dwordx4 v1, {sr(SRD_X,4)}, s52 offen lds")
    k.e(f"buffer_load_dwordx4 v2, {sr(SRD_X,4)}, s52 offen offset:1024 lds")
    for p in range(3):
        k.e(f"s_add_u32 s55, s51, {8192 + p*8192}")
        k.e("s_mov_b32 m0, s55")
        if p: k.e(f"s_add_u32 s56, s53, {p*1024}"); so0 = "s56"
        else: so0 = "s53"; k.e("s_nop 0")
        k.e(f"buffer_load_dwordx4 v3, {sr(SRD_W,4)}, {so0} offen lds")
        if p: k.e(f"s_add_u32 s56, s54, {p*1024}"); so1 = "s56"
        else: so1 = "s54"
        k.e(f"buffer_load_dwordx4 v3, {sr(SRD_W,4)}, {so1} offen offset:1024 lds")
    k.e("s_add_u32 s57, s57, 1")
    k.e("s_add_u32 s59, s59, 1")
    k.e("s_and_b32 s59, s59, 7")
    k.e(f"s_add_u32 s51, s51, {SLOT}")
    k.e("s_and_b32 s58, s57, 3")
    sk = k.u("nowrap")
    k.e("s_cmp_eq_u32 s58, 0")
    k.e(f"s_cbranch_scc0 {sk}")
    k.e(f"s_sub_u32 s51, s51, {4*SLOT}")
    k.lab(sk)
    sk2 = k.u("nosw")
    k.e("s_cmp_eq_u32 s57, 8")
    k.e(f"s_cbranch_scc0 {sk2}")
    srd(k, SRD_X, P_AX, 2 << 20)
    srd(k, SRD_W, P_AW, 512*3072)
    k.lab(sk2)

def pf0(k):
    k.e("s_and_b32 s50, s2, 7")
    k.e("s_lshr_b32 s52, s2, 3")
    wx = k.u("pf0x"); ex = k.u("pf0e")
    k.e("s_cmp_lt_u32 s26, 3")
    k.e(f"s_cbranch_scc0 {wx}")
    srd(k, SRD_T, P_AW, 512*3072)
    k.e("v_lshrrev_b32 v5, 2, v0")
    k.e("s_lshl_b32 s53, s52, 4")
    k.e("v_add_u32 v5, s53, v5")
    k.e("v_mul_u32_u24 v5, 3072, v5")
    k.e("v_and_b32 v6, 3, v0")
    k.e("s_lshr_b32 s53, s50, 2")
    k.e("s_lshl_b32 s53, s53, 2")
    k.e("v_add_u32 v6, s53, v6")
    k.e("v_lshlrev_b32 v6, 7, v6")
    k.e("v_add_u32 v5, v5, v6")
    k.e("s_lshl_b32 s53, s26, 10")
    k.e(f"buffer_load_dword v6, v5, {sr(SRD_T,4)}, s53 offen")
    k.e(f"buffer_load_dword v7, v5, {sr(SRD_T,4)}, s53 offen")
    k.e(f"s_branch {ex}")
    k.lab(wx)
    srd(k, SRD_T, P_AX, 2 << 20)
    k.e("s_and_b32 s53, s50, 3")
    k.e("s_lshl_b32 s53, s53, 9")
    k.e("s_lshl_b32 s54, s52, 4")
    k.e("s_add_u32 s53, s53, s54")
    k.e("s_lshl_b32 s53, s53, 10")
    k.e("v_lshlrev_b32 v5, 7, v0")
    k.e(f"buffer_load_dword v6, v5, {sr(SRD_T,4)}, s53 offen")
    k.e("s_add_u32 s53, s53, 8192")
    k.e(f"buffer_load_dword v7, v5, {sr(SRD_T,4)}, s53 offen")
    k.lab(ex)

def pfsetup(k):
    k.e("s_and_b32 s50, s2, 7")
    k.e("s_lshr_b32 s52, s2, 3")
    k.e("s_mov_b32 s66, 1")
    wx = k.u("pfwx"); wo = k.u("pfwo"); ex = k.u("pfex")
    k.e("s_cmp_lt_u32 s26, 2")
    k.e(f"s_cbranch_scc0 {wx}")
    srd(k, SRD_T, P_BW, 512*3072)
    k.e("v_min_u32 v4, 11, v0")
    k.e("v_lshrrev_b32 v5, 2, v4")
    k.e("v_lshlrev_b32 v5, 10, v5")
    k.e("v_and_b32 v4, 3, v4")
    k.e("s_lshr_b32 s53, s50, 2")
    k.e("s_lshl_b32 s53, s53, 2")
    k.e("v_add_u32 v4, s53, v4")
    k.e("v_lshlrev_b32 v4, 7, v4")
    k.e("s_lshl_b32 s53, s52, 1")
    k.e("s_add_u32 s53, s53, s26")
    k.e("s_mul_i32 s53, s53, 3072")
    k.e("v_add3_u32 v4, v4, v5, s53")
    k.e("s_mov_b32 s65, 196608")
    k.e("s_mov_b32 s64, 196608")
    k.e(f"s_branch {ex}")
    k.lab(wx)
    k.e("s_cmp_eq_u32 s26, 2")
    k.e(f"s_cbranch_scc0 {wo}")
    srd(k, SRD_T, P_BX, 2 << 20)
    k.e("v_min_u32 v4, 15, v0")
    k.e("s_and_b32 s53, s50, 3")
    k.e("s_lshl_b32 s53, s53, 9")
    k.e("s_lshl_b32 s54, s52, 4")
    k.e("s_add_u32 s53, s53, s54")
    k.e("v_add_u32 v4, s53, v4")
    k.e("v_lshlrev_b32 v4, 10, v4")
    k.e("s_mov_b32 s65, 128")
    k.e("s_mov_b32 s64, 128")
    k.e(f"s_branch {ex}")
    k.lab(wo)
    k.e("s_lshr_b32 s53, s50, 2")
    k.e("s_cmp_eq_u32 s53, 0")
    k.e(f"s_cselect_b32 s{SRD_T}, s{P_AWO}, s{P_BWO}")
    k.e(f"s_cselect_b32 s{SRD_T+1}, s{P_AWO+1}, s{P_BWO+1}")
    k.e(f"s_mov_b32 s{SRD_T+2}, 0x{512*1024:x}")
    k.e(f"s_mov_b32 s{SRD_T+3}, 0x20000")
    k.e("v_min_u32 v4, 8, v0")
    k.e("v_lshlrev_b32 v4, 7, v4")
    k.e("s_lshl_b32 s53, s52, 14")
    k.e("v_add_u32 v4, s53, v4")
    k.e("s_mov_b32 s65, 1152")
    k.e("s_mov_b32 s64, 0")
    k.lab(ex)

def pf_issue(k):
    sk = k.u("pfsw")
    k.e("s_cmp_eq_u32 s66, 8")
    k.e(f"s_cbranch_scc0 {sk}")
    k.e("s_cmp_lt_u32 s26, 3")
    k.e(f"s_cbranch_scc0 {sk}")
    k.e("s_mov_b32 s64, 0")
    k.e("s_cmp_lt_u32 s26, 2")
    k.e(f"s_cselect_b32 s{SRD_T}, s{P_AW}, s{P_AX}")
    k.e(f"s_cselect_b32 s{SRD_T+1}, s{P_AW+1}, s{P_AX+1}")
    k.lab(sk)
    k.e(f"buffer_load_dword v5, v4, {sr(SRD_T,4)}, s64 offen")
    k.e("s_add_u32 s64, s64, s65")
    k.e("s_add_u32 s66, s66, 1")

def loader(k):
    if OPT['ldprio']: k.e(f"s_setprio {OPT['ldprio']}")
    k.e(f"s_sub_u32 s26, s{S_WAVE}, 4")
    k.e("v_lshrrev_b32 v4, 3, v0")
    k.e("v_and_b32 v5, 7, v0")
    k.e("v_lshrrev_b32 v6, 1, v4")
    k.e("v_xor_b32 v7, v5, v6")
    k.e("v_lshlrev_b32 v7, 4, v7")
    k.e(f"s_lshl_b32 s48, s{S_RB}, 6")
    k.e("s_lshl_b32 s49, s26, 4")
    k.e("s_add_u32 s48, s48, s49")
    k.e("v_add_u32 v1, s48, v4")
    k.e("v_lshlrev_b32 v1, 10, v1")
    k.e("v_add_u32 v2, 7168, v1")
    k.e("v_add_u32 v1, v1, v7")
    k.e("v_xor_b32 v7, 64, v7")
    k.e("v_add_u32 v2, v2, v7")
    k.e("v_add_u32 v3, s49, v4")
    k.e("v_mul_u32_u24 v3, 3072, v3")
    k.e("v_and_b32 v6, 2, v4")
    k.e("v_lshlrev_b32 v6, 1, v6")
    k.e("v_xor_b32 v6, v5, v6")
    k.e("v_lshlrev_b32 v6, 4, v6")
    k.e(f"s_lshl_b32 s49, s{S_G}, 7")
    k.e("v_add3_u32 v3, v3, v6, s49")
    k.e("s_lshl_b32 s51, s26, 11")
    k.e("s_mov_b32 s57, 0")
    if OPT['rot'] == 9:
        k.e(f"s_and_b32 s59, s{S_G}, 3")
        k.e("s_sub_u32 s59, 3, s59")
        k.e("s_lshl_b32 s59, s59, 1")
        k.e(f"s_add_u32 s59, s59, s{S_RB}")
        k.e("s_and_b32 s59, s59, 7")
    elif OPT['rot'] == 8:
        k.e(f"s_and_b32 s59, s{S_G}, 3")
        k.e("s_lshl_b32 s59, s59, 1")
        k.e(f"s_add_u32 s59, s59, s{S_RB}")
        k.e("s_and_b32 s59, s59, 7")
    elif OPT['rot'] == 2:
        k.e(f"s_add_u32 s59, s{S_G}, s{S_RB}")
        k.e("s_and_b32 s59, s59, 1")
        k.e("s_lshl_b32 s59, s59, 2")
    elif OPT['rot'] == 4:
        k.e(f"s_add_u32 s59, s{S_G}, s{S_RB}")
        k.e("s_and_b32 s59, s59, 3")
        k.e("s_lshl_b32 s59, s59, 1")
    else:
        k.e("s_mov_b32 s59, 0")
    k.e("s_waitcnt lgkmcnt(0)")
    if OPT['fixdur']: k.e("s_mov_b32 s3, s100")
    if k.stamps: k.e("s_mov_b32 s72, s70")
    srd(k, SRD_X, P_BX, 2 << 20)
    srd(k, SRD_W, P_BW, 512*3072)
    issue_stage(k)
    if OPT['tpf']:
        pfsetup(k)
        for j in range(4): pf_issue(k)
    else:
        if OPT['pf0']: pf0(k)
        issue_stage(k)
    srd(k, SRD_WS, P_WS, 256 << 20)
    sk = k.u("nopf")
    k.e("s_cmp_eq_u32 s26, 3")
    k.e(f"s_cbranch_scc0 {sk}")
    k.e("s_getpc_b64 s[62:63]")
    k.lab("L_pc")
    k.e("s_and_b32 s62, s62, 0xffffff00")
    k.e("v_lshlrev_b32 v8, 7, v0")
    k.e(f"s_sub_u32 s62, s62, PF_BACK")
    k.e("s_subb_u32 s63, s63, 0")
    k.e("global_load_dword v9, v8, s[62:63]")
    k.e("v_add_u32 v8, 8192, v8")
    k.e("global_load_dword v10, v8, s[62:63]")
    k.e("v_add_u32 v8, 8192, v8")
    k.e("global_load_dword v11, v8, s[62:63]")
    k.lab(sk)
    attn_setup(k)
    ny = 4 if OPT['tpf'] else (10 if OPT['pf0'] else 8)
    k.e(f"s_waitcnt vmcnt({ny+3})")
    sk = k.u("w7")
    k.e("s_cmp_eq_u32 s26, 3")
    k.e(f"s_cbranch_scc1 {sk}")
    k.e(f"s_waitcnt vmcnt({ny})")
    k.lab(sk)
    k.e("s_barrier")
    if OPT['tpf']: issue_stage(k)
    issue_stage(k)
    sk = k.u("nozero")
    k.e(f"s_cmp_eq_u32 s{S_RB}, 0")
    k.e(f"s_cbranch_scc0 {sk}")
    k.e("s_cmp_lt_u32 s26, 2")
    k.e(f"s_cbranch_scc0 {sk}")
    k.e(f"s_lshl_b32 s48, s{S_G}, 1")
    k.e("s_add_u32 s48, s48, s26")
    k.e("s_lshl_b32 s48, s48, 12")
    k.e(f"s_add_u32 s48, s48, {KVACC}")
    for j in range(4): k.e(f"v_mov_b32 v{12+j}, 0")
    k.e("v_lshlrev_b32 v8, 4, v0")
    for j in range(3): k.e(f"buffer_store_dwordx4 v[12:15], v8, {WS}, s48 offen offset:{j*1024} sc1")
    k.e("s_waitcnt vmcnt(3)")
    k.lab(sk)
    k.stamp(1)
    k.e("s_mov_b32 s98, 0")
    k.e("s_mov_b32 s48, 0")
    lp = k.u("ldloop")
    k.lab(lp)
    w8 = k.u("w8"); w9 = k.u("w9"); wd = k.u("wd")
    k.e("s_cmp_eq_u32 s48, 7")
    k.e(f"s_cbranch_scc1 {wd}")
    if OPT['pf3']:
        nw3 = k.u("nw3")
        k.e(f"s_sub_u32 s49, s48, {OPT['pf3']+1}")
        k.e("s_cmp_lt_u32 s49, 2")
        k.e(f"s_cbranch_scc0 {nw3}")
        k.e("s_cmp_eq_u32 s98, 1")
        k.e(f"s_cbranch_scc0 {nw3}")
        k.e("s_waitcnt vmcnt(9)")
        k.e(f"s_branch {wd}")
        k.lab(nw3)
    if OPT['pf4']:
        w10 = k.u("w10"); nw = k.u("nw10")
        k.e(f"s_sub_u32 s49, s48, {OPT['pf4']+1}")
        k.e("s_cmp_lt_u32 s49, 2")
        k.e(f"s_cbranch_scc0 {nw}")
        k.e("s_waitcnt vmcnt(10)")
        k.e(f"s_branch {wd}")
        k.lab(nw)
    if not OPT['tpf']: k.e(f"s_branch {w8}")
    k.e("s_cmp_eq_u32 s48, 0")
    k.e(f"s_cbranch_scc1 {w8}")
    k.e("s_cmp_eq_u32 s48, 1")
    k.e(f"s_cbranch_scc1 {w9}")
    k.e("s_cmp_eq_u32 s48, 12")
    k.e(f"s_cbranch_scc1 {w9}")
    k.e("s_waitcnt vmcnt(10)")
    k.e(f"s_branch {wd}")
    k.lab(w9)
    k.e("s_waitcnt vmcnt(9)")
    k.e(f"s_branch {wd}")
    k.lab(w8)
    k.e("s_waitcnt vmcnt(8)")
    k.lab(wd)
    k.e("s_barrier")
    if OPT['stagest']:
        k.e("s_memrealtime s[90:91]"); k.e("s_waitcnt lgkmcnt(0)")
        k.e("s_mov_b32 m0, s48")
        k.e("s_nop 0")
        k.e("v_writelane_b32 v252, s90, m0")
    sk = k.u("nonn")
    k.e("s_cmp_eq_u32 s48, 7")
    k.e(f"s_cbranch_scc0 {sk}")
    read_nonce(k, 8, 9)
    k.lab(sk)
    sk = k.u("nosig2")
    k.e(f"s_cmp_eq_u32 s48, {OPT['sigs']}")
    k.e(f"s_cbranch_scc0 {sk}")
    k.e("s_cmp_eq_u32 s26, 0")
    k.e(f"s_cbranch_scc0 {sk}")
    k.e(f"s_lshl_b32 s49, s{S_G}, 12")
    k.e(f"s_lshl_b32 s50, s{S_RB}, 7")
    k.e("s_add_u32 s49, s49, s50")
    k.e(f"s_add_u32 s49, s49, {F1B}")
    store_flag(k, 49)
    k.lab(sk)
    if OPT['late9']:
        sk6 = k.u("skip6")
        k.e("s_cmp_eq_u32 s48, 6")
        k.e(f"s_cbranch_scc1 {sk6}")
    issue_stage(k)
    if OPT['late9']: k.lab(sk6)
    if OPT['pf3']:
        skp = k.u("nopf3")
        k.e(f"s_cmp_eq_u32 s48, {OPT['pf3']}")
        k.e(f"s_cbranch_scc0 {skp}")
        k.e("s_cmp_eq_u32 s26, 3")
        k.e(f"s_cbranch_scc0 {skp}")
        k.e(f"s_cmp_lt_u32 s{S_G}, 3")
        k.e(f"s_cbranch_scc0 {skp}")
        srd(k, SRD_T, P_AW, 512*3072)
        k.e(f"s_and_b32 s49, s{S_RB}, 7")
        k.e("s_mul_i32 s49, s49, 3")
        k.e(f"s_add_u32 s49, s49, s{S_G}")
        k.e("s_lshl_b32 s49, s49, 6")
        k.e("v_add_u32 v5, s49, v0")
        k.e("v_mul_u32_u24 v6, 21846, v5")
        k.e("v_lshrrev_b32 v6, 16, v6")
        k.e("v_mul_u32_u24 v7, 3, v6")
        k.e("v_sub_u32 v7, v5, v7")
        k.e("v_mul_u32_u24 v6, 3072, v6")
        k.e("v_lshlrev_b32 v7, 10, v7")
        k.e("v_add3_u32 v5, v6, v7, 384") if False else None
        k.e("v_add_u32 v5, v6, v7")
        k.e("v_add_u32 v5, 384, v5")
        k.e(f"buffer_load_dword v6, v5, {sr(SRD_T,4)}, 0 offen")
        k.e("s_mov_b32 s98, 1")
        k.lab(skp)
    if OPT['pf4']:
        skp = k.u("nopf4")
        k.e(f"s_cmp_eq_u32 s48, {OPT['pf4']}")
        k.e(f"s_cbranch_scc0 {skp}")
        pf0(k)
        k.lab(skp)
    sk = k.u("nosig")
    k.e("s_cmp_eq_u32 s48, 7")
    k.e(f"s_cbranch_scc0 {sk}")
    if OPT['late9']: issue_stage(k)
    k.e("s_waitcnt vmcnt(16)")
    k.e("s_barrier")
    k.lab(sk)

    if OPT['tpf']:
        sk = k.u("nopfi")
        k.e("s_cmp_le_u32 s48, 10")
        k.e(f"s_cbranch_scc0 {sk}")
        pf_issue(k)
        k.lab(sk)
    k.e("s_add_u32 s48, s48, 1")
    k.e("s_cmp_lt_u32 s48, 12")
    k.e(f"s_cbranch_scc1 {lp}")
    k.e(f"s_sub_u32 s48, s{S_RB}, 4")
    k.e("v_add_u32 v8, s48, v0")
    k.e("v_max_i32 v8, 0, v8")
    k.e("v_cmp_gt_u32 vcc, 4, v0")
    k.e(f"s_lshl_b32 s49, s{S_G}, 12")
    k.e(f"s_add_u32 s49, s49, {F1B}")
    k.e("v_cndmask_b32 v8, 0, v8, vcc")
    k.e("v_lshlrev_b32 v8, 7, v8")
    k.e("v_add_u32 v8, s49, v8")
    k.e("s_cmp_eq_u32 s26, 0")
    k.e("s_cselect_b32 s62, 31, 15")
    k.e("s_mov_b32 s63, 0")
    k.e("s_waitcnt vmcnt(8)");  k.e("s_barrier")
    k.e("s_mov_b64 exec, s[62:63]")
    k.e(f"buffer_load_dword v9, v8, {WS}, 0 offen sc1")
    k.e("s_mov_b64 exec, -1")
    issue_stage(k)
    k.e("s_waitcnt vmcnt(9)");  k.e("s_barrier")
    lp = k.u("f1b_lp"); ok = k.u("f1b_ok")
    k.e("s_mov_b64 exec, s[62:63]")
    k.e("s_waitcnt vmcnt(8)")
    k.e(f"v_cmp_ne_u32 vcc, s{S_NONCE}, v9")
    k.e("s_nop 1")
    k.e(f"s_cbranch_vccz {ok}")
    poll_flags(k, 8, 9, "f1b")
    k.lab(ok)
    k.e("s_mov_b64 exec, -1")
    k.stamp(5)
    if OPT['remdma']:
        sk = k.u("norem"); jn = k.u("remj")
        k.e(f"s_cmp_eq_u32 s{S_RB}, 0")
        k.e(f"s_cbranch_scc1 {sk}")
        k.e("v_lshlrev_b32 v8, 4, v0")
        k.e(f"s_lshl_b32 s48, s{S_G}, 2")
        k.e("s_add_u32 s48, s48, s26")
        k.e("s_lshl_b32 s48, s48, 6")
        k.e(f"s_lshl_b32 s49, s{S_RB}, 1")
        k.e("s_sub_u32 s49, s49, 8")
        k.e("s_lshl_b32 s52, s26, 13")
        def rem(base_g, base_l):
            for j in range(8):
                k.e(f"s_add_i32 s50, s49, {j}")
                k.e("s_max_i32 s50, s50, 0")
                k.e("s_add_u32 s50, s50, s48")
                k.e("s_lshl_b32 s50, s50, 10")
                if base_g: k.e(f"s_add_u32 s50, s50, {base_g}")
                k.e(f"s_add_u32 s51, s52, {base_l + j*1024}")
                k.e("s_mov_b32 m0, s51")
                k.e("s_nop 0")
                k.e(f"buffer_load_dwordx4 v8, {WS}, s50 offen sc1 lds")
        rem(KB_G, RK_L)
        k.e("s_waitcnt vmcnt(8)");  k.e("s_barrier")
        rem(VB_G, RV_L)
        k.e("s_barrier")
        k.e("s_waitcnt vmcnt(0)")
        k.e(f"s_branch {jn}")
        k.lab(sk)
        k.e("s_waitcnt vmcnt(0)");  k.e("s_barrier")
        k.e("s_barrier")
        k.lab(jn)
    else:
        sk = k.u("norem"); jn = k.u("remj")
        k.e(f"s_cmp_eq_u32 s{S_RB}, 0")
        k.e(f"s_cbranch_scc1 {sk}")
        k.e("v_lshlrev_b32 v8, 4, v0")
        k.e(f"s_lshl_b32 s48, s{S_G}, 2")
        k.e("s_add_u32 s48, s48, s26")
        k.e("s_lshl_b32 s48, s48, 6")
        k.e(f"s_lshl_b32 s49, s{S_RB}, 1")
        k.e("s_sub_u32 s49, s49, 8")
        for j in range(8):
            k.e(f"s_add_i32 s50, s49, {j}")
            k.e("s_max_i32 s50, s50, 0")
            k.e("s_add_u32 s50, s50, s48")
            k.e("s_lshl_b32 s50, s50, 10")
            k.e(f"s_add_u32 s51, s50, {VB_G}")
            k.e(f"buffer_load_dwordx4 {vr(16+4*j,4)}, v8, {WS}, s50 offen sc1")
            k.e(f"buffer_load_dwordx4 {vr(48+4*j,4)}, v8, {WS}, s51 offen sc1")
        k.e("s_waitcnt vmcnt(16)");  k.e("s_barrier")
        k.e("s_lshl_b32 s48, s26, 13")
        k.e("v_add_u32 v9, s48, v8")
        for j in range(8):
            k.e(f"s_waitcnt vmcnt({14-2*j})")
            k.e(f"ds_write_b128 v9, {vr(16+4*j,4)} offset:{RK_L + j*1024}")
            k.e(f"ds_write_b128 v9, {vr(48+4*j,4)} offset:{RV_L + j*1024}")
            if j == 3: k.e("s_barrier")
        k.e(f"s_branch {jn}")
        k.lab(sk)
        k.e("s_waitcnt vmcnt(0)");  k.e("s_barrier")
        k.e("s_barrier")
        k.lab(jn)
    k.e("s_waitcnt lgkmcnt(0)")
    k.stamp(6)
    if OPT['ldprio']: k.e("s_setprio 0")
    k.e("s_barrier")
    k.stamp(4)

AQ_, AKF, AS, AMD, AMF, ACN, AP, AVB, AO = 4, 8, [44, 60, 76], 216, 232, 124, 140, [148, 156], 176
AM, AT = 192, 193
AK0, AK7, AK8, AV0, AV7, AV8 = 196, 197, 198, 199, 200, 201
KVR = 208
VPOLL, VPA, VPOLL2 = 248, 249, 253

def v_reads(k, buf, vaddr, off):
    k.e("s_mov_b64 exec, s[64:65]")
    k.e(f"ds_read_b128 {vr(AVB[buf],4)}, v{vaddr} offset:{off}")
    k.e(f"ds_read_b128 {vr(AVB[buf]+4,4)}, v{vaddr} offset:{off+512}")
    k.e("s_mov_b64 exec, -1")

def sig_f1a(k):
    sk = k.u("nosigA")
    k.e(f"s_cmp_lt_u32 s{S_WAVE}, 2")
    k.e(f"s_cbranch_scc0 {sk}")
    if OPT.get('sigst'): k.stamp(5)
    k.e("s_waitcnt vmcnt(0)")
    if OPT.get('sigst'): k.stamp(6)
    k.e(f"s_lshl_b32 s52, s{S_G}, 13")
    k.e(f"s_lshl_b32 s53, s{S_RB}, 1")
    k.e(f"s_add_u32 s53, s53, s{S_WAVE}")
    k.e("s_lshl_b32 s53, s53, 7")
    k.e("s_add_u32 s52, s52, s53")
    k.e(f"s_add_u32 s52, s52, {F1A}")
    store_flag(k, 52)
    k.lab(sk)

def attn_setup(k):
    k.e(f"s_and_b32 s86, s{S_WAVE}, 1")
    k.e(f"s_lshr_b32 s87, s{S_WAVE}, 1")
    k.e(f"v_lshlrev_b32 v{AT}, 4, v0")
    k.e("s_lshl_b32 s88, s86, 10")
    k.e("s_lshl_b32 s89, s87, 13")
    k.e("s_lshl_b32 s92, s87, 11")
    k.e("s_add_u32 s93, s89, s88")
    k.e(f"v_add_u32 v{AK0}, s93, v{AT}")
    k.e(f"s_add_u32 s94, s89, {7*1024}")
    k.e(f"s_add_u32 s100, s92, {OK_L}")
    k.e("s_cmp_eq_u32 s86, 0")
    k.e("s_cselect_b32 s94, s94, s100")
    k.e(f"v_add_u32 v{AK7}, s94, v{AT}")
    k.e("s_add_u32 s100, s100, s88")
    k.e(f"v_add_u32 v{AK8}, s100, v{AT}")
    k.e("v_lshrrev_b32 v202, 5, v0")
    k.e("v_lshlrev_b32 v202, 8, v202")
    k.e("v_and_b32 v203, 15, v0")
    k.e("v_lshlrev_b32 v203, 4, v203")
    k.e("v_add_u32 v202, v202, v203")
    k.e(f"s_add_u32 s94, s93, {RV_L}")
    k.e(f"v_add_u32 v{AV0}, s94, v202")
    k.e(f"s_add_u32 s94, s89, {RV_L + 7*1024}")
    k.e(f"s_add_u32 s100, s92, {OV_L}")
    k.e("s_cmp_eq_u32 s86, 0")
    k.e("s_cselect_b32 s94, s94, s100")
    k.e(f"v_add_u32 v{AV7}, s94, v202")
    k.e("s_add_u32 s100, s100, s88")
    k.e(f"v_add_u32 v{AV8}, s100, v202")
    k.e("v_and_b32 v202, 31, v0")
    k.e("v_lshrrev_b32 v203, 5, v0")
    k.e("v_lshlrev_b32 v203, 2, v203")
    k.e("v_sub_u32 v202, v202, v203")
    k.e("v_cvt_f32_i32 v202, v202")
    k.e(f"v_mov_b32 v203, {lit(BIG)}")
    for i in range(16):
        ci = 8*(i >> 2) + (i & 3)
        k.e(f"v_fmaak_f32 v{AMD+i}, v202, v203, {lit((0.5-ci)*BIG)}")
    for i in range(16): k.e(f"v_min_f32 v{AMF+i}, -v{AMD+i}, 0")
    for i in range(16): k.e(f"v_min_f32 v{AMD+i}, 0, v{AMD+i}")
    k.e(f"v_mov_b32 v{AM}, 0xff7fffff")
    k.e(f"s_lshl_b32 s87, s{S_G}, 13")
    k.e(f"s_add_u32 s87, s87, {F1A}")
    k.e(f"v_lshlrev_b32 v{VPA}, 7, v0")
    k.e(f"v_add_u32 v{VPA}, s87, v{VPA}")

def wo_setup(k):
    k.e("s_and_b32 s50, s2, 7")
    k.e("s_lshr_b32 s51, s2, 3")
    k.e("s_lshr_b32 s52, s50, 2")
    k.e("s_lshr_b32 s53, s51, 2")
    k.e("s_cmp_eq_u32 s52, 0")
    k.e(f"s_cselect_b32 s{SRD_WO}, s{P_AWO}, s{P_BWO}")
    k.e(f"s_cselect_b32 s{SRD_WO+1}, s{P_AWO+1}, s{P_BWO+1}")
    k.e(f"s_mov_b32 s{SRD_WO+2}, 0x{512*1024:x}")
    k.e(f"s_mov_b32 s{SRD_WO+3}, 0x20000")
    k.e("v_lshrrev_b32 v204, 3, v0")
    k.e("v_and_b32 v205, 7, v0")
    k.e("v_and_b32 v206, 2, v204")
    k.e("v_lshlrev_b32 v206, 1, v206")
    k.e("v_xor_b32 v206, v205, v206")
    k.e("v_lshlrev_b32 v206, 4, v206")
    k.e(f"s_sub_u32 s54, s{S_WAVE}, 4")
    if OPT['wosplit']:
        a = OPT['wosplit']
        starts = [0, a, 2*a, 2*a + (16 - a)]
        tab = sum(v << (8*i) for i, v in enumerate(starts))
        k.e("s_lshl_b32 s55, s54, 3")
        k.e(f"s_lshr_b32 s55, 0x{tab:x}, s55")
        k.e("s_and_b32 s55, s55, 0xff")
        k.e("s_lshl_b32 s50, s55, 4")
    else:
        k.e("s_lshl_b32 s50, s54, 7")
    k.e("v_add_u32 v204, s50, v204")
    k.e("v_lshlrev_b32 v204, 10, v204")
    k.e("s_lshl_b32 s96, s50, 7")
    k.e("s_lshl_b32 s50, s53, 7")
    k.e("v_add3_u32 v205, v204, v206, s50")
    k.e(f"s_add_u32 s96, s96, {WO_L}")
    k.e("s_mov_b32 s97, 0")

def wo_pair(k):
    k.e("s_mov_b32 m0, s96")
    k.e("s_add_u32 s98, s97, 7168")
    k.e(f"buffer_load_dwordx4 v205, {sr(SRD_WO,4)}, s97 offen lds")
    k.e(f"buffer_load_dwordx4 v205, {sr(SRD_WO,4)}, s98 offen offset:1024 lds")
    k.e("s_add_u32 s96, s96, 2048")
    k.e("s_add_u32 s97, s97, 16384")

KVL = 0
def kv_loads(k):
    k.stamp(14)
    k.e(f"s_lshl_b32 s50, s{S_G}, 13")
    k.e(f"s_add_u32 s50, s50, {KVACC}")
    k.e("s_add_u32 s51, s50, 4096")
    k.e(f"buffer_load_dwordx4 {vr(KVR,4)}, v1, {WS}, s50 offen sc1")
    k.e(f"buffer_load_dwordx4 {vr(KVR+4,4)}, v1, {WS}, s50 offen offset:1024 sc1")
    k.e(f"buffer_load_dwordx4 {vr(164,4)}, v1, {WS}, s51 offen sc1")
    k.e(f"buffer_load_dwordx4 {vr(168,4)}, v1, {WS}, s51 offen offset:1024 sc1")
    k.e("v_lshrrev_b32 v202, 5, v0")
    k.e("v_lshlrev_b32 v202, 12, v202")
    k.e("v_and_b32 v203, 31, v0")
    k.e("v_lshl_add_u32 v202, v203, 2, v202")
    k.e(f"buffer_load_dword v172, v202, {WS}, s50 offen offset:2048 sc1")

def attention(k):
    k.c("attention: i = w&1 (s26), hh = w>>1 (s27), qt = s48, s99 = kv loads issued flag")
    if OPT['lprio'] >= 0:
        sk = k.u("lp")
        k.e(f"s_cmp_ge_u32 s{S_WAVE}, 4")
        k.e(f"s_cbranch_scc0 {sk}")
        k.e("s_setprio 1")
        k.lab(sk)
    k.e(f"s_and_b32 s26, s{S_WAVE}, 1")
    k.e(f"s_lshr_b32 s27, s{S_WAVE}, 1")
    k.e(f"s_lshl_b32 s48, s{S_RB}, 1")
    k.e("s_add_u32 s48, s48, s26")
    k.e("v_lshlrev_b32 v1, 4, v0")
    k.e("s_lshl_b32 s49, s27, 11")
    k.e("s_lshl_b32 s50, s26, 10")
    k.e("s_add_u32 s49, s49, s50")
    k.e(f"s_add_u32 s49, s49, {Q_L}")
    k.e("v_add_u32 v2, s49, v1")
    k.e(f"ds_read_b128 {vr(AQ_,4)}, v2")
    def kaddr(p): return (AK0, RK_L + p*1024) if p <= 6 else ((AK7, 0) if p == 7 else (AK8, 0))
    def vaddr(p): return (AV0, p*1024) if p <= 6 else ((AV7, 0) if p == 7 else (AV8, 0))
    for p in range(9):
        a, o = kaddr(p); k.e(f"ds_read_b128 {vr(AKF+4*p,4)}, v{a} offset:{o}")
    k.e("s_mov_b32 s64, 0xffff")
    k.e("s_mov_b32 s65, 0xffff")
    k.e("s_mov_b32 s99, 0")
    for b in range(2):
        for j in range(8): k.e(f"v_mov_b32 v{AVB[b]+j}, 0x3f803f80")
    def wo_block():
        sk = k.u("nowo")
        k.e(f"s_cmp_ge_u32 s{S_WAVE}, 4")
        k.e(f"s_cbranch_scc0 {sk}")
        wo_setup(k)
        if OPT['wosplit']:
            a = OPT['wosplit']
            for j in range(a): wo_pair(k)
            k.e(f"s_cmp_ge_u32 s{S_WAVE}, 6")
            k.e(f"s_cbranch_scc0 {sk}")
            for j in range(16 - 2*a): wo_pair(k)
        else:
            for j in range(8): wo_pair(k)
        k.lab(sk)
    if OPT['wopos'] == 0: wo_block()
    Q = vr(AQ_, 4)
    def qk(dst, p, c): k.e(f"{MF} {vr(dst,16)}, {vr(AKF+4*p,4)}, {Q}, {c}")
    def c1(p): return vr(AMF,16) if p == 0 else (vr(AMD,16) if p == 8 else "0")
    def c2(p): return vr(AMF,16) if p == 0 else (vr(AMD,16) if p == 8 else vr(ACN,16))
    k.e("s_sub_i32 s95, 8, s48")
    k.e("s_max_i32 s95, s95, 0")
    P1 = [k.u(f"p1_{p}") for p in range(9)]
    P2 = [k.u(f"p2_{p}") for p in range(9)]
    E1 = [k.u(f"e1_{p}") for p in range(9)]
    E2 = [k.u(f"e2_{p}") for p in range(9)]
    k.e("s_waitcnt lgkmcnt(0)")
    for p in range(1, 9):
        k.e(f"s_cmp_eq_u32 s95, {p}")
        k.e(f"s_cbranch_scc1 {E1[p]}")
    qk(AS[0], 0, c1(0)); qk(AS[1], 1, c1(1)); qk(AS[2], 2, c1(2))
    k.e("s_nop 9")
    for p in range(9):
        k.lab(P1[p])
        s_ = AS[p % 3]
        for j in range(8): k.e(f"v_max3_f32 v{AM}, v{s_+2*j}, v{s_+2*j+1}, v{AM}")
        if p + 3 <= 8: qk(s_, p + 3, c1(p + 3))
    k.e(f"v_mov_b32 v{AT}, v{AM}")
    k.e("s_nop 1")
    k.e(f"v_permlane32_swap_b32 v{AM}, v{AT}")
    k.e(f"v_max_f32 v{AM}, v{AM}, v{AT}")
    k.e(f"v_sub_f32 v{AM}, 0, v{AM}")
    for i in range(16): k.e(f"v_mov_b32 v{ACN+i}, v{AM}")
    for i in range(16): k.e(f"v_add_f32 v{AMD+i}, v{AMD+i}, v{AM}")
    if OPT['wopos'] == 1: wo_block()
    k.stamp(8)
    k.e("s_cmp_eq_u32 s95, 0")
    sh = k.u("short2")
    k.e(f"s_cbranch_scc0 {sh}")
    for i in range(16): k.e(f"v_add_f32 v{AMF+i}, v{AMF+i}, v{AM}")
    v_reads(k, 0, *vaddr(0))
    k.e("s_nop 0")
    qk(AS[0], 0, c2(0))
    k.e("s_nop 6")
    for p in range(9):
        k.lab(P2[p])
        cur = AS[p % 2]; nxt = AS[(p + 1) % 2]
        if p < 8:
            qk(nxt, p + 1, c2(p + 1))
            v_reads(k, (p + 1) % 2, *vaddr(p + 1))
        hooks = k.u("nohook")
        if p == OPT['lprio']: k.e("s_setprio 0")
        if p == OPT['sigp']:
            k.e("s_cmp_eq_u32 s95, 0")
            k.e(f"s_cbranch_scc0 {hooks}")
            sig_f1a(k)
            k.lab(hooks)
        if p >= OPT['pollp']:
            hk = k.u("hk")
            vp = VPOLL if (p - OPT['pollp']) % 2 == 0 else VPOLL2
            k.e(f"s_cmp_eq_u32 s{S_WAVE}, 4")
            k.e(f"s_cbranch_scc0 {hk}")
            k.e("s_cmp_eq_u32 s95, 0")
            k.e(f"s_cbranch_scc0 {hk}")
            k.e("s_cmp_eq_u32 s99, 0")
            k.e(f"s_cbranch_scc0 {hk}")
            if p >= OPT['pollp'] + 2:
                got = k.u("got")
                k.e("s_waitcnt vmcnt(1)")
                k.e(f"v_cmp_ne_u32 vcc, s{S_NONCE}, v{vp}")
                k.e("s_nop 1")
                k.e(f"s_cbranch_vccz {got}")
                k.e(f"buffer_load_dword v{vp}, v{VPA}, {WS}, 0 offen sc1")
                k.e(f"s_branch {hk}")
                k.lab(got)
                kv_loads(k)
                k.e("s_mov_b32 s99, 1")
            else:
                k.e(f"buffer_load_dword v{vp}, v{VPA}, {WS}, 0 offen sc1")
            k.lab(hk)
        for j in range(16): k.e(f"v_exp_f32 v{cur+j}, v{cur+j}")
        for j in range(8): k.e(f"v_cvt_pk_bf16_f32 v{AP+j}, v{cur+2*j}, v{cur+2*j+1}")
        k.e(f"s_waitcnt lgkmcnt({2 if p < 8 else 0})")
        vb = AVB[p % 2]
        k.e(f"{MF} {vr(AO,16)}, {vr(vb,4)}, {vr(AP,4)}, {'0' if p == 0 else vr(AO,16)}")
        k.e("s_nop 0")
        k.e(f"{MF} {vr(AO,16)}, {vr(vb+4,4)}, {vr(AP+4,4)}, {vr(AO,16)}")
    done = k.u("attdone")
    k.e(f"s_branch {done}")
    for p in range(1, 9):
        k.lab(E1[p])
        for q in range(p, min(p + 3, 9)): qk(AS[q % 3], q, c1(q))
        k.e("s_nop 10")
        k.e(f"s_branch {P1[p]}")
    k.lab(sh)
    for i in range(16): k.e(f"v_mov_b32 v{AO+i}, 0")
    sig_f1a(k)
    sk = k.u("shpoll")
    k.e(f"s_cmp_eq_u32 s{S_WAVE}, 4")
    k.e(f"s_cbranch_scc0 {sk}")
    k.e(f"buffer_load_dword v{VPOLL}, v{VPA}, {WS}, 0 offen sc1")
    k.lab(sk)
    for p in range(1, 9):
        k.e(f"s_cmp_eq_u32 s95, {p}")
        k.e(f"s_cbranch_scc1 {E2[p]}")
    k.e(f"s_branch {E2[8]}")
    for p in range(1, 9):
        k.lab(E2[p])
        qk(AS[p % 2], p, c2(p))
        v_reads(k, p % 2, *vaddr(p))
        k.e("s_nop 6")
        k.e(f"s_branch {P2[p]}")
    k.lab(done)

def apart(k):
    sk = k.u("kvdone")
    k.e(f"s_cmp_eq_u32 s{S_WAVE}, 4")
    k.e(f"s_cbranch_scc0 {sk}")
    k.e("s_cmp_eq_u32 s99, 1")
    k.e(f"s_cbranch_scc1 {sk}")
    poll_flags(k, VPA, VPOLL, "f1a")
    kv_loads(k)
    k.lab(sk)
    k.e("s_nop 8")
    k.e(f"v_rcp_f32 v{AT}, v{AO+8}")
    k.e("s_nop 0")
    for j in range(8): k.e(f"v_mul_f32 v{AO+j}, v{AO+j}, v{AT}")
    cvt8(k, AP, AO)
    k.e(f"s_lshl_b32 s49, s{S_G}, 2")
    k.e("s_add_u32 s49, s49, s27")
    k.e("s_lshl_b32 s50, s48, 5")
    k.e("s_add_u32 s49, s49, s50")
    k.e("s_lshl_b32 s49, s49, 10")
    k.e(f"s_add_u32 s50, s49, {O_G + (2<<20)}")
    k.e(f"buffer_store_dwordx4 {vr(AP,4)}, v1, {WS}, s50 offen sc1")
    k.e("s_barrier")
    sk = k.u("nokvw")
    k.e(f"s_cmp_eq_u32 s{S_WAVE}, 4")
    k.e(f"s_cbranch_scc0 {sk}")
    k.e("s_waitcnt vmcnt(1)")
    k.e(f"ds_write_b128 v1, {vr(KVR,4)} offset:{KVL}")
    k.e(f"ds_write_b128 v1, {vr(KVR+4,4)} offset:{KVL+1024}")
    k.e(f"ds_write_b128 v1, {vr(164,4)} offset:{KVL+4096}")
    k.e(f"ds_write_b128 v1, {vr(168,4)} offset:{KVL+4096+1024}")
    k.e("v_lshrrev_b32 v202, 5, v0")
    k.e("v_lshlrev_b32 v202, 12, v202")
    k.e("v_and_b32 v203, 31, v0")
    k.e("v_lshl_add_u32 v202, v203, 2, v202")
    k.e(f"ds_write_b32 v202, v172 offset:{KVL+2048}")
    k.e("s_waitcnt lgkmcnt(0)")
    k.lab(sk)
    k.e("s_lshr_b32 s51, s27, 1")
    k.e("s_lshl_b32 s51, s51, 12")
    k.e("s_and_b32 s52, s27, 1")
    k.e("s_lshl_b32 s52, s52, 6")
    k.e("s_add_u32 s51, s51, s52")
    k.e("v_lshrrev_b32 v203, 5, v0")
    k.e("v_and_b32 v202, 15, v0")
    k.e("v_lshl_add_u32 v202, v203, 5, v202")
    k.e("v_lshlrev_b32 v202, 2, v202")
    k.e("v_add_u32 v202, s51, v202")
    k.e("v_lshlrev_b32 v203, 4, v203")
    k.e("v_add_u32 v203, s51, v203")
    k.e("s_lshl_b32 s51, s27, 11")
    k.e("s_lshl_b32 s50, s26, 10")
    k.e("s_add_u32 s51, s51, s50")
    k.e(f"s_add_u32 s51, s51, {PQ_L}")
    k.e("v_add_u32 v2, s51, v1")
    k.e(f"ds_read_b128 {vr(AQ_,4)}, v2")
    k.e("s_barrier")
    k.stamp(15)
    k.e("s_mov_b64 exec, s[64:65]")
    for t in range(8): k.e(f"ds_read_b32 v{KVR+t}, v202 offset:{KVL + t*256}")
    k.e("s_not_b64 exec, s[64:65]")
    k.e(f"ds_read_b128 {vr(KVR,4)}, v203 offset:{KVL+2048}")
    k.e(f"ds_read_b128 {vr(KVR+4,4)}, v203 offset:{KVL+2048+32}")
    k.e("s_mov_b64 exec, -1")
    k.e("s_waitcnt lgkmcnt(0)")
    cvt8(k, 8, KVR)
    k.e("s_nop 1")
    k.e(f"{MF} {vr(44,16)}, {vr(8,4)}, {vr(AQ_,4)}, 0")
    k.e(f"s_mov_b32 s62, {lit(1e-6)}")
    k.e("s_nop 10")
    k.e("v_add_f32 v12, s62, v52")
    k.e("v_rcp_f32 v12, v12")
    k.e("s_nop 0")
    for j in range(8): k.e(f"v_mul_f32 v{44+j}, v{44+j}, v12")
    cvt8(k, 16, 44)
    k.e(f"s_add_u32 s50, s49, {O_G}")
    k.e(f"buffer_store_dwordx4 {vr(16,4)}, v1, {WS}, s50 offen sc1")

def p3(k):
    k.c("P3: out tile 128x64")
    k.e("s_and_b32 s48, s2, 7")
    k.e("s_lshr_b32 s49, s2, 3")
    k.e("s_lshr_b32 s66, s48, 2")
    k.e("s_and_b32 s67, s48, 3")
    k.e("s_lshl_b32 s67, s67, 2")
    k.e("s_and_b32 s50, s49, 3")
    k.e("s_add_u32 s67, s67, s50")
    k.e("s_lshr_b32 s68, s49, 2")
    k.e("s_lshl_b32 s48, s67, 11")
    k.e(f"s_add_u32 s48, s48, {F2}")
    k.e("v_and_b32 v8, 15, v0")
    k.e("v_lshlrev_b32 v8, 7, v8")
    k.e("v_add_u32 v8, s48, v8")
    OF, ACC3, WF = 8+4, 144, [176, 184]
    VA0, VA1 = 192, 193
    k.e("v_bfe_u32 v2, v0, 2, 2")
    k.e("v_and_b32 v3, 3, v0")
    k.e("v_bfe_u32 v4, v0, 4, 1")
    k.e("v_lshrrev_b32 v5, 5, v0")
    k.e("v_lshlrev_b32 v5, 2, v5")
    k.e("v_add_u32 v5, v5, v2")
    k.e("v_lshlrev_b32 v5, 7, v5")
    k.e("v_and_b32 v6, 1, v3")
    k.e("v_lshlrev_b32 v6, 1, v6")
    k.e("v_add_u32 v6, v6, v4")
    k.e("v_and_b32 v7, 2, v2")
    k.e("v_lshlrev_b32 v7, 1, v7")
    k.e("v_xor_b32 v6, v6, v7")
    k.e("v_lshlrev_b32 v6, 4, v6")
    k.e("v_lshrrev_b32 v3, 1, v3")
    k.e("v_lshlrev_b32 v3, 3, v3")
    k.e("v_add3_u32 v5, v5, v6, v3")
    SLOWG = OPT['slowg']
    VB0 = 194
    k.e(f"v_add_u32 v{VB0}, {WO_L}, v5")
    k.e("s_lshl_b32 s48, s67, 2")
    k.e(f"s_add_u32 s48, s48, s{S_WAVE}")
    k.e("s_lshl_b32 s49, s48, 15")
    k.e("s_lshl_b32 s50, s66, 21")
    k.e("s_add_u32 s49, s49, s50")
    k.e(f"s_add_u32 s49, s49, {O_G}")
    k.e("v_lshlrev_b32 v1, 4, v0")
    GR = [86, 87, 88, 89, 92, 93, 94, 100]
    NOSLOW = SLOWG == 8
    if NOSLOW:
        for u in range(8):
            k.e(f"s_add_u32 s52, s68, {u}")
            k.e(f"s_and_b32 s{GR[u]}, s52, 7")
    k.e("s_cmp_eq_u32 s68, 7")
    k.e("s_cselect_b32 s51, 0, s68")
    for u in range(0 if NOSLOW else 7):
        k.e(f"s_add_u32 s52, s51, {u}")
        k.e("s_cmp_ge_u32 s52, 7")
        k.e("s_cselect_b32 s53, 7, 0")
        k.e("s_sub_u32 s52, s52, s53")
        k.e(f"s_cmp_ge_u32 s52, {SLOWG}")
        k.e("s_cselect_b32 s53, 1, 0")
        k.e(f"s_add_u32 s{GR[u]}, s52, s53")
    if not NOSLOW: k.e(f"s_mov_b32 s{GR[7]}, {SLOWG}")
    k.e(f"s_lshr_b32 s52, s{S_WAVE}, 1")
    k.e("s_and_b32 s52, s52, 1")
    k.e("s_lshl_b32 s52, s52, 3")
    k.e(f"s_add_u32 s52, s52, {SLOWG}")
    k.e("s_lshl_b32 s52, s52, 7")
    k.e("s_lshl_b32 s53, s67, 11")
    k.e("s_add_u32 s52, s52, s53")
    k.e(f"s_add_u32 s52, s52, {F2}")
    k.e("v_mov_b32 v10, s52")
    sk = k.u("nof2poll")
    k.e(f"s_cmp_eq_u32 s{S_WAVE}, 0")
    k.e(f"s_cbranch_scc0 {sk}")
    k.e(f"s_mov_b64 exec, 0x{0xffff if NOSLOW else 0xffff & ~((1 << SLOWG) | (1 << (8 + SLOWG))):x}")
    poll_flags(k, 8, 9, "f2")
    k.e("s_mov_b64 exec, -1")
    k.lab(sk)
    k.e("s_barrier")
    k.e(f"s_cmp_ge_u32 s{S_WAVE}, 4")
    k.e("s_cbranch_scc1 L_fin")
    k.stamp(12)
    def oload(hd):
        u = hd >> 2
        if hd % 4 == 0 or True:
            k.e(f"s_lshl_b32 s52, s{GR[u]}, 12")
            k.e("s_add_u32 s52, s52, s49")
        k.e(f"buffer_load_dwordx4 {vr(OF+4*hd,4)}, v1, {WS}, s52 offen offset:{(hd%4)*1024} sc1")
    for hd in range(16): oload(hd)
    def setva(u):
        k.e(f"s_lshl_b32 s52, s{GR[u]}, 13")
        k.e(f"v_add_u32 v{VA0}, s52, v{VB0}")
        k.e(f"v_xor_b32 v{VA1}, 64, v{VA0}")
    def wreads(buf, j):
        for b in range(2):
            for s2 in range(2):
                k.e(f"ds_read_b64_tr_b16 {vr(WF[buf]+4*b+2*s2,2)}, v{VA0+b} offset:{j*2048 + s2*1024}")
    def slow_loads():
        for hd in range(28, 32): oload(hd)
        k.e("s_mov_b32 s54, 1")
    PI, PC = OPT['p3poll'], 24
    k.e("s_mov_b32 s54, 0")
    setva(0)
    wreads(0, 0)
    for hd in range(32 if NOSLOW else 0):
        if hd < 31:
            nj = (hd + 1) % 4
            if nj == 0: setva((hd + 1)//4)
            wreads((hd + 1) % 2, nj)
        last = min(31, 15 + hd)
        k.e(f"s_waitcnt vmcnt({last - hd}) lgkmcnt({4 if hd < 31 else 0})")
        if 16 + hd <= 31: oload(16 + hd)
        for b in range(2):
            k.e(f"{MF} {vr(ACC3+16*b,16)}, {vr(WF[hd%2]+4*b,4)}, {vr(OF+4*hd,4)}, {'0' if hd == 0 else vr(ACC3+16*b,16)}")
    for hd in range(0 if NOSLOW else 32):
        if hd == 28:
            sk = k.u("slowok")
            k.e("s_cmp_eq_u32 s54, 1")
            k.e(f"s_cbranch_scc1 {sk}")
            k.e("s_mov_b64 exec, 1")
            poll_flags(k, 10, 9, "f2s")
            k.e("s_mov_b64 exec, -1")
            slow_loads()
            k.lab(sk)
        if hd < 31:
            nj = (hd + 1) % 4
            if nj == 0: setva((hd + 1)//4)
            wreads((hd + 1) % 2, nj)
        if hd < 28:
            last = min(27, 15 + hd)
            n = last - hd + (1 if hd > PI else 0)
            if hd >= PC: n = None
        else:
            n = 31 - hd
        if hd == PC:
            k.e(f"s_waitcnt vmcnt(0) lgkmcnt(4)")
            sk = k.u("notyet")
            k.e("s_mov_b64 exec, 1")
            k.e(f"v_cmp_ne_u32 vcc, s{S_NONCE}, v9")
            k.e("s_mov_b64 exec, -1")
            k.e("s_nop 0")
            k.e(f"s_cbranch_vccnz {sk}")
            slow_loads()
            k.lab(sk)
        elif n is None:
            k.e("s_waitcnt lgkmcnt(4)")
        else:
            k.e(f"s_waitcnt vmcnt({n}) lgkmcnt({4 if hd < 31 else 0})")
        if 16 + hd <= 27: oload(16 + hd)
        if hd == PI:
            k.e("s_mov_b64 exec, 1")
            k.e(f"buffer_load_dword v9, v10, {WS}, 0 offen sc1")
            k.e("s_mov_b64 exec, -1")
        if OPT.get('p3st') and hd in (0, 8, 31):
            k.stamp({0: 5, 8: 6, 31: 8}[hd])
        for b in range(2):
            k.e(f"{MF} {vr(ACC3+16*b,16)}, {vr(WF[hd%2]+4*b,4)}, {vr(OF+4*hd,4)}, {'0' if hd == 0 else vr(ACC3+16*b,16)}")
    srd(k, SRD_T, P_OUT, 4 << 20)
    k.e("v_and_b32 v2, 31, v0")
    k.e("s_lshl_b32 s49, s48, 5")
    k.e("v_add_u32 v2, s49, v2")
    k.e("v_lshlrev_b32 v2, 11, v2")
    k.e("v_lshrrev_b32 v3, 5, v0")
    k.e("v_lshlrev_b32 v3, 5, v3")
    k.e("s_lshl_b32 s49, s66, 10")
    k.e("s_lshl_b32 s50, s68, 7")
    k.e("s_add_u32 s49, s49, s50")
    k.e("v_add3_u32 v2, v2, v3, s49")
    k.e("s_nop 3")
    for b in range(2):
        for j in range(8): k.e(f"v_cvt_pk_bf16_f32 v{12+8*b+j}, v{ACC3+16*b+2*j}, v{ACC3+16*b+2*j+1}")
    for b in range(2):
        fl = {0: "", 1: " sc1", 2: " nt", 3: " sc0 sc1"}[OPT['outf']]
        k.e(f"buffer_store_dwordx4 {vr(12+8*b,4)}, v2, {sr(SRD_T,4)}, 0 offen offset:{64*b}{fl}")
        k.e(f"buffer_store_dwordx4 {vr(16+8*b,4)}, v2, {sr(SRD_T,4)}, 0 offen offset:{64*b+16}{fl}")

HDR = """; Kernarg layout for this problem (72 bytes, ptrs only, base s[0:1]):
;   offset   0: d_in[0] A_x  shape=(1, 2048, 512) dtype=bfloat16
;   offset   8: d_in[1] A_wqkv  shape=(512, 1536) dtype=bfloat16
;   offset  16: d_in[2] A_wo  shape=(512, 512) dtype=bfloat16
;   offset  24: d_in[3] B_x  shape=(1, 2048, 512) dtype=bfloat16
;   offset  32: d_in[4] B_wqkv  shape=(512, 1536) dtype=bfloat16
;   offset  40: d_in[5] B_wo  shape=(512, 512) dtype=bfloat16
;   offset  48: d_out     shape=(1, 2048, 1024) dtype=bfloat16
;   offset  56: d_debug   256 bytes
;   offset  64: d_ws      268435456 bytes workspace
; @launch grid=(256,1,1) block=(512,1,1) lds=163840
.amdgcn_target "amdgcn-amd-amdhsa--gfx950"
.text
.globl KNAME
.p2align 8
.type KNAME,@function
""".replace("KNAME", KNAME)

TAIL = """.section .rodata,"a"
.p2align 6
.amdhsa_kernel KNAME
  .amdhsa_next_free_vgpr 256
  .amdhsa_next_free_sgpr 102
  .amdhsa_accum_offset 256
  .amdhsa_group_segment_fixed_size 0
  .amdhsa_kernarg_size 72
  .amdhsa_user_sgpr_count 2
  .amdhsa_user_sgpr_kernarg_segment_ptr 1
  .amdhsa_system_sgpr_workgroup_id_x 1
.end_amdhsa_kernel
""".replace("KNAME", KNAME)

def build(stamps=False):
    k = gen(stamps)
    body = "\n".join(k.L)
    body = body.replace("PF_BACK", f"((L_pc - {KNAME}) & 0xffffff00)")
    pad = "\n    .fill 2048, 4, 0xbf800000\n"
    hdr, tail = HDR, TAIL
    if OPT['extra']:
        hdr = hdr.replace("; @launch grid=(256,1,1) block=(512,1,1) lds=163840", f"; @launch kernel={KNAME} grid=(256,1,1) block=(512,1,1) lds=163840\n; @launch kernel=nop_kernel grid=(1,1,1) block=(64,1,1) lds=0")
        pad += ".globl nop_kernel\n.p2align 8\n.type nop_kernel,@function\nnop_kernel:\n    s_endpgm\n"
        tail += """.p2align 6
.amdhsa_kernel nop_kernel
  .amdhsa_next_free_vgpr 8
  .amdhsa_next_free_sgpr 16
  .amdhsa_accum_offset 8
  .amdhsa_group_segment_fixed_size 0
  .amdhsa_kernarg_size 72
  .amdhsa_user_sgpr_count 2
  .amdhsa_user_sgpr_kernarg_segment_ptr 1
  .amdhsa_system_sgpr_workgroup_id_x 1
.end_amdhsa_kernel
"""
    return hdr + body + pad + "\n" + tail

if __name__ == "__main__":
    out = sys.argv[1] if len(sys.argv) > 1 else "out.s"
    stamps = "stamps" in sys.argv[2:]
    for a in sys.argv[2:]:
        if "=" in a:
            kk, vv = a.split("="); OPT[kk] = int(vv)
    txt = build(stamps)
    open(out, "w").write(txt)
    import hz
    pr = hz.check(txt)
    import subprocess
    r = subprocess.run(["clang", "-x", "assembler", "-target", "amdgcn-amd-amdhsa", "-mcpu=gfx950", "-c", out, "-o", "_chk.o"], capture_output=True, text=True)
    print("hazards:", len(pr), "lines:", txt.count("\n"), "asm:", "ok" if r.returncode == 0 else r.stderr)
```

```python
import sys, math, struct

KNAME = "concat_heads__linear_attn_block__sliding_block__prompt_kernel"

KB_G   = 0
VB_G   = 2 << 20
O_G    = 4 << 20
KVACC  = 8 << 20
FL     = (8 << 20) + (64 << 10)
F1B    = FL
F1A    = FL + (32 << 10)
F2     = FL + (96 << 10)
STAMP  = 9 << 20
SLOT   = 32768
OK_L, OV_L, Q_L, PQ_L = 131072, 139264, 147456, 155648
NONCE_L = PQ_L
RK_L, RV_L, WO_L = 0, 32768, 65536
CS = 0.25 * math.log2(math.e)
LOG2E = math.log2(math.e)
BIG = 1.0e28
SPIN_MAX = 2000000
OPT = dict(rot=4, pfB=0, pfA=1, dbgstamps=0, stagest=0, pfs=1, tpf=0, p3st=0, map=2, outf=2, extra=0, sigs=9, pf0=0, late9=0, remdma=1, m16=0, npre=16, pf4=0, pkphi=1, prio=0, kvprio=1, pollp=4, sigp=3, fixdur=0, ldprio=0, wopos=1, sigst=0, wosplit=0, lprio=-1, slowg=3, p3poll=14, pf3=0, x16st=0, sleep=1, rotA=-1, bfi=1, vpre=1, x16pos=2, merge=0, pollstep=1)

def f2u(x): return struct.unpack('<I', struct.pack('<f', x))[0]
def lit(x): return "0x%08x" % f2u(x)

class K:
    def __init__(self, stamps=False):
        self.L = []; self.stamps = stamps; self.uid = 0; self.inp1 = False
    def e(self, s):
        if self.inp1 and OPT['m16'] and s.startswith("v_mfma_f32_32x32x16_bf16"):
            import re
            m = re.match(r"v_mfma_f32_32x32x16_bf16 v\[(\d+):\d+\], (v\[\d+:\d+\]), (v\[\d+:\d+\]), (.*)", s)
            d = int(m.group(1)); c = m.group(4)
            for h in range(2):
                cc = "0" if c == "0" else f"v[{d+4*h}:{d+4*h+3}]"
                self.L.append(f"    v_mfma_f32_16x16x32_bf16 v[{d+4*h}:{d+4*h+3}], {m.group(2)}, {m.group(3)}, {cc}")
            return
        self.L.append("    " + s)
    def c(self, s): self.L.append("    ; " + s)
    def lab(self, s): self.L.append(s + ":")
    def u(self, p):
        self.uid += 1; return f"L_{p}_{self.uid}"
    def stamp(self, k):
        if not self.stamps: return
        self.e("s_memrealtime s[70:71]")
        self.e("s_waitcnt lgkmcnt(0)")
        self.e(f"s_mov_b32 s{72+k}, s70")

def vr(a, n): return f"v[{a}:{a+n-1}]"
def sr(a, n): return f"s[{a}:{a+n-1}]"
MF = "v_mfma_f32_32x32x16_bf16"

S_WAVE, S_RB, S_G, S_NONCE = 22, 23, 24, 25
SRD_WS, SRD_X, SRD_W, SRD_T, SRD_WO = 28, 32, 36, 40, 44
P_AX, P_AW, P_AWO, P_BX, P_BW, P_BWO, P_OUT, P_DBG, P_WS = 4, 6, 8, 10, 12, 14, 16, 18, 20
WS = sr(SRD_WS, 4)

def srd(k, dst, ptr, size):
    k.e(f"s_mov_b32 s{dst}, s{ptr}")
    k.e(f"s_mov_b32 s{dst+1}, s{ptr+1}")
    k.e(f"s_mov_b32 s{dst+2}, 0x{size:x}")
    k.e(f"s_mov_b32 s{dst+3}, 0x20000")

def spin_guard(k, sreg, exit_label):
    k.e(f"s_add_u32 s{sreg}, s{sreg}, 1")
    k.e(f"s_cmp_gt_u32 s{sreg}, {SPIN_MAX}")
    k.e(f"s_cbranch_scc1 {exit_label}")

def poll_flags(k, vaddr, vtmp, name, first_issued=False, sleep=1):
    lp = k.u(name + "_poll"); ex = k.u(name + "_done"); chk = k.u(name + "_chk")
    k.e("s_mov_b32 s60, 0")
    if first_issued: k.e(f"s_branch {chk}")
    k.lab(lp)
    k.e(f"buffer_load_dword v{vtmp}, v{vaddr}, {WS}, 0 offen sc1")
    k.lab(chk)
    spin_guard(k, 60, ex)
    k.e("s_waitcnt vmcnt(0)")
    k.e(f"v_cmp_ne_u32 vcc, s{S_NONCE}, v{vtmp}")
    k.e("s_nop 1")
    k.e(f"s_cbranch_vccz {ex}")
    if OPT['sleep']: k.e(f"s_sleep {OPT['sleep']}")
    k.e(f"s_branch {lp}")
    k.lab(ex)
    k.e("s_waitcnt vmcnt(0)")

def store_flag(k, soff):
    k.e(f"v_mov_b32 v250, s{S_NONCE}")
    k.e("v_mov_b32 v251, 0")
    k.e("s_mov_b64 exec, 1")
    k.e(f"buffer_store_dword v250, v251, {WS}, s{soff} offen sc1")
    k.e("s_mov_b64 exec, -1")

def cvt8(k, dst, src):
    for j in range(4): k.e(f"v_cvt_pk_bf16_f32 v{dst+j}, v{src+2*j}, v{src+2*j+1}")

def phi(k, r, n, t):
    if not OPT['pkphi']:
        for i in range(0, n, 4):
            for j in range(4): k.e(f"v_mul_f32 v{t+j}, s61, v{r+i+j}")
            for j in range(4): k.e(f"v_exp_f32 v{t+j}, v{t+j} clamp")
            for j in range(4): k.e(f"v_max_f32 v{r+i+j}, 0, v{r+i+j}")
            for j in range(4): k.e(f"v_add_f32 v{r+i+j}, s62, v{r+i+j}")
            for j in range(4): k.e(f"v_add_f32 v{r+i+j}, v{t+j}, v{r+i+j}")
        return
    for i in range(0, n, 8):
        for j in range(0, 8, 2): k.e(f"v_pk_mul_f32 {vr(t+j,2)}, {vr(r+i+j,2)}, s[66:67]")
        for j in range(8): k.e(f"v_exp_f32 v{t+j}, v{t+j} clamp")
        for j in range(8): k.e(f"v_max_f32 v{r+i+j}, 0, v{r+i+j}")
        for j in range(0, 8, 2): k.e(f"v_pk_add_f32 {vr(r+i+j,2)}, {vr(r+i+j,2)}, s[62:63]")
        for j in range(0, 8, 2): k.e(f"v_pk_add_f32 {vr(r+i+j,2)}, {vr(r+i+j,2)}, {vr(t+j,2)}")

ACC = 8
BUF = [72, 88, 104, 120]
VXA, VWA = 136, 140
EP = 144
PFD = 208

def rd_x(k, buf, j, t): k.e(f"ds_read_b128 {vr(BUF[buf]+4*t,4)}, v{VXA+j} offset:{t*4096}")
def rd_w(k, buf, j, p, slot):
    for s2 in range(2):
        k.e(f"ds_read_b64_tr_b16 {vr(BUF[buf]+8+4*slot+2*s2,2)}, v{VWA} offset:{p*8192 + j*2048 + s2*512}")
def reads(k, role, buf, j):
    rd_x(k, buf, j, 0); rd_x(k, buf, j, 1)
    if role == 'kv': rd_w(k, buf, j, 1, 0); rd_w(k, buf, j, 2, 1)
    else: rd_w(k, buf, j, 0, 0)

def kstep(k, role, br, j, first=False, noreads=False, wait=None):
    nb = (j + 2) & 3; b = BUF[j]
    if noreads:
        X = [vr(b,4), vr(b+4,4)]; W = [vr(b+8,4), vr(b+12,4)]
        k.e(f"s_waitcnt lgkmcnt({wait})")
        for t in range(2):
            a = ACC + 16*t
            if role == 'kv' and br == 'A': k.e(f"{MF} {vr(a,16)}, {X[t]}, {W[0]}, {vr(a,16)}")
            else: k.e(f"{MF} {vr(a,16)}, {W[0]}, {X[t]}, {vr(a,16)}")
        if role == 'kv':
            for t in range(2):
                a = ACC + 32 + 16*t
                k.e(f"{MF} {vr(a,16)}, {X[t]}, {W[1]}, {vr(a,16)}")
        return
    X = [vr(b,4), vr(b+4,4)]; W = [vr(b+8,4), vr(b+12,4)]
    def C(a): return "0" if first else vr(a,16)
    if role == 'kv':
        k.e("s_waitcnt lgkmcnt(6)")
        for t in range(2):
            a = ACC + 16*t
            if br == 'B': k.e(f"{MF} {vr(a,16)}, {W[0]}, {X[t]}, {C(a)}")
            else:         k.e(f"{MF} {vr(a,16)}, {X[t]}, {W[0]}, {C(a)}")
            if t == 0: rd_x(k, nb, nb, 0); rd_x(k, nb, nb, 1)
            else: rd_w(k, nb, nb, 1, 0)
        for t in range(2):
            a = ACC + 32 + 16*t
            k.e(f"{MF} {vr(a,16)}, {X[t]}, {W[1]}, {C(a)}")
            if t == 0: rd_w(k, nb, nb, 2, 1)
    else:
        k.e("s_waitcnt lgkmcnt(4)")
        for t in range(2):
            a = ACC + 16*t
            k.e(f"{MF} {vr(a,16)}, {W[0]}, {X[t]}, {C(a)}")
            if t == 0: rd_x(k, nb, nb, 0); rd_x(k, nb, nb, 1)
            else: rd_w(k, nb, nb, 0, 0)

def consumer_tile(k, role, br, extra=None):
    lp = k.u("c"+role+br); ex = k.u("cx"+role+br)
    k.inp1 = True
    k.e("s_mov_b32 s48, 0")
    kstep(k, role, br, 0, first=True)
    k.lab(lp)
    k.e("s_add_u32 s49, s49, 1")
    k.e("s_and_b32 s50, s49, 3")
    k.e("s_cmp_eq_u32 s50, 0")
    k.e(f"s_cselect_b32 s50, 0x{(-3*SLOT) & 0xffffffff:x}, s69")
    kstep(k, role, br, 1)
    if extra: extra(k)
    if br == 'A' and role == 'kv':
        sk = k.u("novm")
        k.e(f"s_cmp_eq_u32 s48, {OPT['sigs']-8}")
        k.e(f"s_cbranch_scc0 {sk}")
        k.e("s_waitcnt vmcnt(0)")
        k.lab(sk)
    for j in range(4): k.e(f"v_add_u32 v{VXA+j}, s50, v{VXA+j}")
    k.e(f"v_add_u32 v{VWA}, s50, v{VWA}")
    k.e("s_barrier")
    k.e("s_cmp_lt_u32 s48, 7")
    k.e(f"s_cbranch_scc0 {ex}")
    kstep(k, role, br, 2)
    kstep(k, role, br, 3)
    k.e("s_add_u32 s48, s48, 1")
    kstep(k, role, br, 0)
    k.e(f"s_branch {lp}")
    k.lab(ex)
    n = 6 if role == 'kv' else 4
    kstep(k, role, br, 2, noreads=True, wait=n)
    kstep(k, role, br, 3, noreads=True, wait=0)
    k.inp1 = False

def consumer_setup(k):
    k.e("v_and_b32 v1, 31, v0")
    k.e("v_lshrrev_b32 v2, 5, v0")
    k.e("v_bfe_u32 v3, v0, 1, 3")
    k.e("v_xor_b32 v3, v3, v2")
    k.e("v_lshlrev_b32 v3, 4, v3")
    k.e("v_lshlrev_b32 v1, 7, v1")
    k.e(f"v_add_u32 v{VXA}, v1, v3")
    for j in range(1, 4): k.e(f"v_xor_b32 v{VXA+j}, {j<<5}, v{VXA}")
    k.e("v_bfe_u32 v1, v0, 2, 2")
    k.e("v_and_b32 v2, 3, v0")
    k.e("v_bfe_u32 v3, v0, 4, 1")
    k.e("v_lshrrev_b32 v4, 5, v0")
    k.e("v_lshlrev_b32 v4, 3, v4")
    k.e("v_add_u32 v4, v4, v1")
    k.e("v_lshlrev_b32 v4, 7, v4")
    k.e("v_lshlrev_b32 v3, 1, v3")
    k.e("v_lshrrev_b32 v5, 1, v2")
    k.e("v_add_u32 v3, v3, v5")
    k.e("s_lshl_b32 s48, s27, 2")
    k.e("v_add_u32 v3, s48, v3")
    k.e("v_and_b32 v5, 2, v1")
    k.e("v_lshlrev_b32 v5, 1, v5")
    k.e("v_xor_b32 v3, v3, v5")
    k.e("v_lshlrev_b32 v3, 4, v3")
    k.e("v_and_b32 v2, 1, v2")
    k.e("v_lshlrev_b32 v2, 3, v2")
    k.e("v_add3_u32 v4, v4, v3, v2")
    k.e(f"v_add_u32 v{VWA}, 8192, v4")

def read_nonce(k, va, vb):
    k.e(f"v_mov_b32 v{va}, {NONCE_L}")
    k.e(f"ds_read_b32 v{vb}, v{va}")
    k.e("s_waitcnt lgkmcnt(0)")
    k.e(f"v_readfirstlane_b32 s{S_NONCE}, v{vb}")

def pf_setup(k, pw, px):
    k.e("s_and_b32 s50, s2, 7")
    k.e("s_lshr_b32 s51, s2, 3")
    k.e("v_lshrrev_b32 v5, 2, v0")
    k.e("s_lshl_b32 s52, s51, 4")
    k.e("v_add_u32 v5, s52, v5")
    k.e("v_mul_u32_u24 v5, 3072, v5")
    k.e("v_and_b32 v6, 3, v0")
    k.e("s_lshr_b32 s52, s50, 2")
    k.e("s_lshl_b32 s52, s52, 2")
    k.e("v_add_u32 v6, s52, v6")
    k.e("v_lshlrev_b32 v6, 7, v6")
    k.e("v_add_u32 v5, v5, v6")
    k.e("v_lshlrev_b32 v6, 7, v0")
    k.e("s_and_b32 s52, s50, 3")
    k.e("s_lshl_b32 s52, s52, 9")
    k.e("s_lshl_b32 s53, s51, 4")
    k.e("s_add_u32 s52, s52, s53")
    k.e("s_lshl_b32 s66, s52, 10")
    k.e("s_lshl_b32 s67, s51, 14")
    k.e("s_lshr_b32 s68, s50, 2")

def gen(stamps=False):
    k = K(stamps)
    k.lab(KNAME)
    k.e("s_cmp_ge_u32 s2, 256")
    k.e("s_cbranch_scc1 L_end")
    if stamps: k.e("s_memrealtime s[70:71]")
    if OPT['fixdur']: k.e("s_memrealtime s[100:101]")
    k.e("s_load_dwordx16 s[4:19], s[0:1], 0")
    k.e("s_load_dwordx2 s[20:21], s[0:1], 64")
    k.e("v_lshrrev_b32 v1, 6, v0")
    k.e("v_and_b32 v0, 63, v0")
    k.e(f"v_readfirstlane_b32 s{S_WAVE}, v1")
    k.e("s_and_b32 s26, s2, 7")
    k.e("s_lshr_b32 s27, s2, 3")
    k.e("s_and_b32 s48, s26, 3")
    k.e("s_lshl_b32 s48, s48, 3")
    if OPT['map'] != 1:
        k.e("s_and_b32 s49, s27, 7")
    else:
        k.e("s_lshr_b32 s49, s27, 2")
    k.e(f"s_add_u32 s{S_RB}, s48, s49")
    k.e("s_lshr_b32 s48, s26, 2")
    k.e("s_lshl_b32 s48, s48, 2")
    if OPT['map'] == 0:
        k.e("s_lshr_b32 s49, s27, 3")
    elif OPT['map'] == 2:
        k.e("s_lshr_b32 s49, s27, 3")
        k.e("s_sub_u32 s49, 3, s49")
    elif OPT['map'] >= 3:
        perm = {3: (3, 1, 2, 0), 4: (3, 1, 0, 2), 5: (1, 3, 2, 0)}[OPT['map']]
        tab = sum(v << (4*i) for i, v in enumerate(perm))
        k.e("s_lshr_b32 s49, s27, 3")
        k.e("s_lshl_b32 s49, s49, 2")
        k.e(f"s_lshr_b32 s49, 0x{tab:x}, s49")
        k.e("s_and_b32 s49, s49, 3")
    else:
        k.e("s_and_b32 s49, s27, 3")
    k.e(f"s_add_u32 s{S_G}, s48, s49")
    k.e(f"s_cmp_lt_u32 s{S_WAVE}, 4")
    k.e("s_cbranch_scc1 L_consumer")

    loader(k)
    k.e("s_branch L_attn")

    k.lab("L_consumer")
    k.e("s_waitcnt lgkmcnt(0)")
    if OPT['fixdur']: k.e("s_mov_b32 s3, s100")
    if stamps: k.e("s_mov_b32 s72, s70")
    srd(k, SRD_WS, P_WS, 256 << 20)
    srd(k, SRD_T, P_DBG, 256)
    srd(k, SRD_X, P_AW, 512*3072)
    k.e(f"s_and_b32 s27, s{S_WAVE}, 1")
    consumer_setup(k)
    attn_setup(k)
    nn = k.u("nononce")
    k.e(f"s_cmp_eq_u32 s{S_WAVE}, 0")
    k.e(f"s_cbranch_scc0 {nn}")
    k.e("v_mov_b32 v2, 0")
    nl = k.u("nolead")
    k.e("s_cmp_eq_u32 s2, 0")
    k.e(f"s_cbranch_scc0 {nl}")
    k.e("s_memrealtime s[58:59]")
    k.e("s_waitcnt lgkmcnt(0)")
    k.e("s_or_b32 s58, s58, 1")
    k.e("v_mov_b32 v3, s58")
    k.e(f"buffer_store_dword v3, v2, {sr(SRD_T,4)}, 0 offen sc1")
    k.lab(nl)
    k.lab(nn)
    k.e("s_mov_b32 s49, 0")
    k.e(f"s_mov_b32 s69, {SLOT}")
    k.e(f"s_cmp_ge_u32 s{S_WAVE}, 2")
    k.e("s_cbranch_scc1 L_qwave")

    k.e("s_barrier")
    k.stamp(1)
    reads(k, 'kv', 0, 0); reads(k, 'kv', 1, 1)
    consumer_tile(k, 'kv', 'B')
    k.stamp(2)
    k.c("B epilogue (kv)")
    read_nonce(k, 2, 3)
    k.e(f"s_lshl_b32 s62, s{S_G}, 2")
    k.e("s_lshl_b32 s63, s27, 1")
    k.e("s_add_u32 s62, s62, s63")
    k.e("s_lshl_b32 s62, s62, 6")
    k.e(f"s_lshl_b32 s63, s{S_RB}, 1")
    k.e("s_add_u32 s62, s62, s63")
    k.e("s_lshl_b32 s62, s62, 10")
    k.e("v_lshlrev_b32 v1, 4, v0")
    k.e("s_lshl_b32 s63, s27, 12")
    k.e(f"s_add_u32 s63, s63, {OK_L}")
    k.e("v_add_u32 v4, s63, v1")
    k.e("v_bfe_u32 v2, v0, 4, 1")
    k.e("v_lshrrev_b32 v3, 5, v0")
    k.e("v_lshlrev_b32 v3, 8, v3")
    k.e("v_and_b32 v5, 15, v0")
    k.e("v_lshlrev_b32 v5, 4, v5")
    k.e("v_add_u32 v3, v3, v5")
    k.e("v_lshlrev_b32 v5, 11, v2")
    k.e("v_add_u32 v5, v5, v3")
    k.e(f"s_add_u32 s63, s63, {OV_L - OK_L}")
    k.e("v_add_u32 v5, s63, v5")
    k.e("v_lshlrev_b32 v2, 16, v2")
    k.e("v_add_u32 v2, v2, v3")
    k.e(f"s_add_u32 s64, s62, {KB_G + 65536}")
    k.e(f"s_add_u32 s65, s62, {VB_G}")
    k.e("s_nop 3")
    for t in range(2):
        KF = EP + 16*t; VF = KF + 8
        cvt8(k, KF, ACC+16*t); cvt8(k, KF+4, ACC+16*t+8)
        cvt8(k, VF, ACC+32+16*t); cvt8(k, VF+4, ACC+32+16*t+8)
        k.e(f"buffer_store_dwordx4 {vr(KF,4)}, v1, {WS}, s62 offen offset:{t*1024} sc1")
        k.e(f"buffer_store_dwordx4 {vr(KF+4,4)}, v1, {WS}, s64 offen offset:{t*1024} sc1")
        k.e(f"buffer_store_dwordx4 {vr(VF,4)}, v2, {WS}, s65 offen offset:{t*1024} sc1")
        k.e(f"buffer_store_dwordx4 {vr(VF+4,4)}, v2, {WS}, s65 offen offset:{t*1024+512} sc1")
        k.e(f"ds_write_b128 v4, {vr(KF,4)} offset:{t*1024}")
        k.e(f"ds_write_b128 v4, {vr(KF+4,4)} offset:{t*1024+2048}")
        k.e(f"ds_write_b128 v5, {vr(VF,4)} offset:{t*1024}")
        k.e(f"ds_write_b128 v5, {vr(VF+4,4)} offset:{t*1024+512}")
    k.stamp(3)
    k.e("s_barrier")
    reads(k, 'kv', 0, 0); reads(k, 'kv', 1, 1)
    consumer_tile(k, 'kv', 'A')
    k.e("s_waitcnt lgkmcnt(0)")
    if OPT.get('x16st'): k.stamp(5)
    if OPT['x16pos'] == 0:
        k.e("s_barrier")
        k.stamp(4)
    k.c("A epilogue (kv)")
    if OPT['kvprio']: k.e("s_setprio 2")
    T = 72
    k.e(f"s_mov_b32 s61, {lit(LOG2E)}")
    k.e(f"s_mov_b32 s62, {lit(1e-6)}")
    k.e("s_mov_b32 s63, s62")
    k.e("s_mov_b32 s66, s61")
    k.e("s_mov_b32 s67, s61")
    PK, VV, ONES = 80, 96, 112
    for j in range(4): k.e(f"v_mov_b32 v{ONES+j}, 0x3f803f80")
    k.e("s_nop 4")
    for t in range(2):
        cvt8(k, VV+8*t, ACC+32+16*t); cvt8(k, VV+8*t+4, ACC+32+16*t+8)
    if OPT['x16pos'] == 1:
        k.e("s_barrier")
        k.stamp(4)
    DKV, DZ = ACC+32, ACC+48
    for t in range(2):
        phi(k, ACC+16*t, 16, T)
        cvt8(k, PK+8*t, ACC+16*t); cvt8(k, PK+8*t+4, ACC+16*t+8)
        k.e("s_nop 1")
        for m in range(2):
            first = (t == 0 and m == 0)
            k.e(f"{MF} {vr(DKV,16)}, {vr(PK+8*t+4*m,4)}, {vr(VV+8*t+4*m,4)}, {'0' if first else vr(DKV,16)}")
            k.e(f"{MF} {vr(DZ,16)}, {vr(ONES,4)}, {vr(PK+8*t+4*m,4)}, {'0' if first else vr(DZ,16)}")
        if OPT['x16pos'] == 2 and t == 0:
            k.e("s_barrier")
            k.stamp(4)
    k.e("s_mov_b32 s64, 0xffff0000")
    k.e("s_mov_b32 s65, 0xffff0000")
    k.e(f"s_lshl_b32 s63, s{S_G}, 1")
    k.e("s_add_u32 s63, s63, s27")
    k.e("s_lshl_b32 s63, s63, 12")
    k.e(f"s_add_u32 s63, s63, {KVACC}")
    k.e("v_lshlrev_b32 v3, 2, v0")
    k.e("v_bfe_i32 v4, v0, 4, 1")
    k.e("s_nop 4")
    RS = 120
    if OPT['bfi']:
        for t in range(8): k.e(f"v_bfi_b32 v{RS+t}, v4, v{DKV+8+t}, v{DKV+t}")
    else:
        for t in range(8): k.e(f"v_cndmask_b32 v{RS+t}, v{DKV+t}, v{DKV+8+t}, s[64:65]")
    for t in range(8): k.e(f"buffer_atomic_add_f32 v{RS+t}, v3, {WS}, s63 offen offset:{t*256}")
    k.e("s_mov_b32 exec_hi, 0")
    k.e(f"buffer_atomic_add_f32 v{DZ}, v3, {WS}, s63 offen offset:2048")
    k.e("s_mov_b64 exec, -1")
    if OPT['kvprio']: k.e("s_setprio 0")
    if OPT['x16pos'] == 3:
        k.e("s_barrier")
        k.stamp(4)
    k.e("s_branch L_e1")

    k.lab("L_qwave")
    k.e("v_mov_b32 v251, 0")
    k.e("s_barrier")
    k.stamp(1)
    reads(k, 'q', 0, 0); reads(k, 'q', 1, 1)
    def pf_extra(k):
        ex = k.u("pfx"); w3 = k.u("pfw3")
        n1 = k.u("nn1"); n2 = k.u("nn2")
        k.e(f"s_cmp_eq_u32 s{S_WAVE}, 2")
        k.e(f"s_cbranch_scc0 {n2}")
        k.e("s_cmp_eq_u32 s48, 0")
        k.e(f"s_cbranch_scc0 {n1}")
        k.e(f"buffer_load_dword v7, v251, {sr(SRD_T,4)}, 0 offen sc1")
        k.lab(n1)
        k.e("s_cmp_eq_u32 s48, 6")
        k.e(f"s_cbranch_scc0 {n2}")
        lp = k.u("np"); npx = k.u("npx"); chk = k.u("npc")
        k.e("s_mov_b32 s60, 0")
        k.e(f"s_branch {chk}")
        k.lab(lp)
        k.e(f"buffer_load_dword v7, v251, {sr(SRD_T,4)}, 0 offen sc1")
        k.lab(chk)
        spin_guard(k, 60, npx)
        k.e("s_waitcnt vmcnt(0)")
        k.e("v_readfirstlane_b32 s58, v7")
        k.e("s_nop 0")
        k.e("s_cmp_eq_u32 s58, 0")
        k.e(f"s_cbranch_scc1 {lp}")
        k.lab(npx)
        k.e("s_waitcnt vmcnt(0)")
        k.e(f"v_mov_b32 v250, {NONCE_L}")
        k.e("ds_write_b32 v250, v7")
        k.lab(n2)
    consumer_tile(k, 'q', 'B', pf_extra)
    k.stamp(2)
    k.c("B epilogue (q)")
    read_nonce(k, 2, 3)
    k.e(f"s_mov_b32 s61, {lit(CS)}")
    k.e("v_lshlrev_b32 v1, 4, v0")
    k.e("s_lshl_b32 s63, s27, 12")
    k.e(f"s_add_u32 s63, s63, {Q_L}")
    k.e("v_add_u32 v4, s63, v1")
    k.e("s_nop 6")
    for t in range(2):
        for i in range(16): k.e(f"v_mul_f32 v{ACC+16*t+i}, s61, v{ACC+16*t+i}")
        QF = EP + 8*t
        cvt8(k, QF, ACC+16*t); cvt8(k, QF+4, ACC+16*t+8)
        k.e(f"ds_write_b128 v4, {vr(QF,4)} offset:{t*1024}")
        k.e(f"ds_write_b128 v4, {vr(QF+4,4)} offset:{t*1024+2048}")
    k.stamp(3)
    k.e("s_barrier")
    reads(k, 'q', 0, 0); reads(k, 'q', 1, 1)
    consumer_tile(k, 'q', 'A')
    k.e("s_waitcnt lgkmcnt(0)")
    if OPT['x16pos'] < 2:
        k.e("s_barrier")
        k.stamp(4)
    k.c("A epilogue (q)")
    k.e(f"s_mov_b32 s61, {lit(LOG2E)}")
    k.e(f"s_mov_b32 s62, {lit(1e-6)}")
    k.e("s_mov_b32 s63, s62")
    k.e("s_mov_b32 s66, s61")
    k.e("s_mov_b32 s67, s61")
    k.e("v_lshlrev_b32 v1, 4, v0")
    k.e("s_lshl_b32 s65, s27, 12")
    k.e(f"s_add_u32 s65, s65, {PQ_L}")
    k.e("v_add_u32 v4, s65, v1")
    k.e("s_nop 6")
    for t in range(2):
        phi(k, ACC+16*t, 16, 72)
        QF = EP + 8*t
        cvt8(k, QF, ACC+16*t); cvt8(k, QF+4, ACC+16*t+8)
        k.e(f"ds_write_b128 v4, {vr(QF,4)} offset:{t*1024}")
        k.e(f"ds_write_b128 v4, {vr(QF+4,4)} offset:{t*1024+2048}")
        if OPT['x16pos'] == 2 and t == 0:
            k.e("s_barrier")
            k.stamp(4)
    k.e("s_waitcnt lgkmcnt(0)")
    if OPT['x16pos'] == 3:
        k.e("s_barrier")
        k.stamp(4)
    k.lab("L_e1")

    k.lab("L_attn")
    if OPT['prio']:
        sk = k.u("prio")
        k.e(f"s_cmp_ge_u32 s{S_WAVE}, 4")
        k.e(f"s_cbranch_scc{0 if OPT['prio'] == 1 else 1} {sk}")
        k.e("s_setprio 1")
        k.lab(sk)
    k.stamp(7)
    attention(k)
    k.stamp(9)
    apart(k)
    k.stamp(10)
    k.e("s_waitcnt vmcnt(0) lgkmcnt(0)")
    k.e("s_barrier")
    k.stamp(11)
    sk = k.u("nof2")
    k.e(f"s_cmp_eq_u32 s{S_WAVE}, 4")
    k.e(f"s_cbranch_scc0 {sk}")
    k.e(f"s_lshr_b32 s48, s{S_RB}, 1")
    k.e("s_lshl_b32 s48, s48, 11")
    k.e(f"s_and_b32 s49, s{S_RB}, 1")
    k.e("s_lshl_b32 s49, s49, 3")
    k.e(f"s_add_u32 s49, s49, s{S_G}")
    k.e("s_lshl_b32 s49, s49, 7")
    k.e("s_add_u32 s48, s48, s49")
    k.e(f"s_add_u32 s48, s48, {F2}")
    store_flag(k, 48)
    k.lab(sk)
    p3(k)
    k.lab("L_fin")
    if OPT['fixdur']:
        lp = k.u("fix")
        k.lab(lp)
        k.e("s_memrealtime s[90:91]")
        k.e("s_waitcnt lgkmcnt(0)")
        k.e("s_sub_u32 s90, s90, s3")
        k.e(f"s_cmp_lt_u32 s90, {OPT['fixdur']}")
        k.e(f"s_cbranch_scc1 {lp}")
    if stamps:
        k.stamp(13)
        k.e(f"s_lshl_b32 s48, s2, 3")
        k.e(f"s_add_u32 s48, s48, s{S_WAVE}")
        k.e("s_lshl_b32 s48, s48, 6")
        k.e(f"s_add_u32 s48, s48, {STAMP}")
        k.e("v_mov_b32 v9, 0")
        for j in range(16):
            k.e(f"v_mov_b32 v8, s{72+j}")
            k.e(f"buffer_store_dword v8, v9, {WS}, s48 offen offset:{4*j}")
            k.e("s_nop 0")
    if stamps and OPT['dbgstamps']:
        srd(k, SRD_T, P_DBG, 256)
        for wg, base in ((8, 1), (200, 8)):
            sk = k.u("nodbg")
            k.e(f"s_cmp_eq_u32 s2, {wg}")
            k.e(f"s_cbranch_scc0 {sk}")
            k.e(f"s_cmp_eq_u32 s{S_WAVE}, 0")
            k.e(f"s_cbranch_scc0 {sk}")
            k.e("v_mov_b32 v9, 0")
            for n, j in enumerate((1, 2, 4, 9, 10, 11, 13)):
                k.e(f"s_sub_u32 s48, s{72+j}, s72")
                k.e("v_mov_b32 v8, s48")
                k.e(f"buffer_store_dword v8, v9, {sr(SRD_T,4)}, 0 offen offset:{4*(base+n)}")
                k.e("s_nop 0")
            k.lab(sk)
    if OPT['stagest']:
        sk = k.u("nost")
        k.e(f"s_cmp_eq_u32 s{S_WAVE}, 4")
        k.e(f"s_cbranch_scc0 {sk}")
        k.e("s_lshl_b32 s48, s2, 8")
        k.e(f"s_add_u32 s48, s48, {STAMP + (1<<19)}")
        k.e("v_lshlrev_b32 v9, 2, v0")
        k.e(f"buffer_store_dword v252, v9, {WS}, s48 offen")
        k.lab(sk)
    k.lab("L_end")
    k.e("s_endpgm")
    return k

def issue_stage(k):
    k.e("s_lshl_b32 s52, s59, 7")
    k.e("s_mul_i32 s53, s59, 196608")
    k.e("s_mov_b32 m0, s51")
    k.e("s_add_u32 s54, s53, 23552")
    k.e(f"buffer_load_dwordx4 v1, {sr(SRD_X,4)}, s52 offen lds")
    k.e(f"buffer_load_dwordx4 v2, {sr(SRD_X,4)}, s52 offen offset:1024 lds")
    for p in range(3):
        k.e(f"s_add_u32 s55, s51, {8192 + p*8192}")
        k.e("s_mov_b32 m0, s55")
        if p: k.e(f"s_add_u32 s56, s53, {p*1024}"); so0 = "s56"
        else: so0 = "s53"; k.e("s_nop 0")
        k.e(f"buffer_load_dwordx4 v3, {sr(SRD_W,4)}, {so0} offen lds")
        if p: k.e(f"s_add_u32 s56, s54, {p*1024}"); so1 = "s56"
        else: so1 = "s54"
        k.e(f"buffer_load_dwordx4 v3, {sr(SRD_W,4)}, {so1} offen offset:1024 lds")
    k.e("s_add_u32 s57, s57, 1")
    k.e("s_add_u32 s59, s59, 1")
    k.e("s_and_b32 s59, s59, 7")
    k.e(f"s_add_u32 s51, s51, {SLOT}")
    k.e("s_and_b32 s58, s57, 3")
    sk = k.u("nowrap")
    k.e("s_cmp_eq_u32 s58, 0")
    k.e(f"s_cbranch_scc0 {sk}")
    k.e(f"s_sub_u32 s51, s51, {4*SLOT}")
    k.lab(sk)
    sk2 = k.u("nosw")
    k.e("s_cmp_eq_u32 s57, 8")
    k.e(f"s_cbranch_scc0 {sk2}")
    srd(k, SRD_X, P_AX, 2 << 20)
    srd(k, SRD_W, P_AW, 512*3072)
    k.e("s_mov_b32 s59, s61")
    k.lab(sk2)

def pf0(k):
    k.e("s_and_b32 s50, s2, 7")
    k.e("s_lshr_b32 s52, s2, 3")
    wx = k.u("pf0x"); ex = k.u("pf0e")
    k.e("s_cmp_lt_u32 s26, 3")
    k.e(f"s_cbranch_scc0 {wx}")
    srd(k, SRD_T, P_AW, 512*3072)
    k.e("v_lshrrev_b32 v5, 2, v0")
    k.e("s_lshl_b32 s53, s52, 4")
    k.e("v_add_u32 v5, s53, v5")
    k.e("v_mul_u32_u24 v5, 3072, v5")
    k.e("v_and_b32 v6, 3, v0")
    k.e("s_lshr_b32 s53, s50, 2")
    k.e("s_lshl_b32 s53, s53, 2")
    k.e("v_add_u32 v6, s53, v6")
    k.e("v_lshlrev_b32 v6, 7, v6")
    k.e("v_add_u32 v5, v5, v6")
    k.e("s_lshl_b32 s53, s26, 10")
    k.e(f"buffer_load_dword v6, v5, {sr(SRD_T,4)}, s53 offen")
    k.e(f"buffer_load_dword v7, v5, {sr(SRD_T,4)}, s53 offen")
    k.e(f"s_branch {ex}")
    k.lab(wx)
    srd(k, SRD_T, P_AX, 2 << 20)
    k.e("s_and_b32 s53, s50, 3")
    k.e("s_lshl_b32 s53, s53, 9")
    k.e("s_lshl_b32 s54, s52, 4")
    k.e("s_add_u32 s53, s53, s54")
    k.e("s_lshl_b32 s53, s53, 10")
    k.e("v_lshlrev_b32 v5, 7, v0")
    k.e(f"buffer_load_dword v6, v5, {sr(SRD_T,4)}, s53 offen")
    k.e("s_add_u32 s53, s53, 8192")
    k.e(f"buffer_load_dword v7, v5, {sr(SRD_T,4)}, s53 offen")
    k.lab(ex)

def pfsetup(k):
    k.e("s_and_b32 s50, s2, 7")
    k.e("s_lshr_b32 s52, s2, 3")
    k.e("s_mov_b32 s66, 1")
    wx = k.u("pfwx"); wo = k.u("pfwo"); ex = k.u("pfex")
    k.e("s_cmp_lt_u32 s26, 2")
    k.e(f"s_cbranch_scc0 {wx}")
    srd(k, SRD_T, P_BW, 512*3072)
    k.e("v_min_u32 v4, 11, v0")
    k.e("v_lshrrev_b32 v5, 2, v4")
    k.e("v_lshlrev_b32 v5, 10, v5")
    k.e("v_and_b32 v4, 3, v4")
    k.e("s_lshr_b32 s53, s50, 2")
    k.e("s_lshl_b32 s53, s53, 2")
    k.e("v_add_u32 v4, s53, v4")
    k.e("v_lshlrev_b32 v4, 7, v4")
    k.e("s_lshl_b32 s53, s52, 1")
    k.e("s_add_u32 s53, s53, s26")
    k.e("s_mul_i32 s53, s53, 3072")
    k.e("v_add3_u32 v4, v4, v5, s53")
    k.e("s_mov_b32 s65, 196608")
    k.e("s_mov_b32 s64, 196608")
    k.e(f"s_branch {ex}")
    k.lab(wx)
    k.e("s_cmp_eq_u32 s26, 2")
    k.e(f"s_cbranch_scc0 {wo}")
    srd(k, SRD_T, P_BX, 2 << 20)
    k.e("v_min_u32 v4, 15, v0")
    k.e("s_and_b32 s53, s50, 3")
    k.e("s_lshl_b32 s53, s53, 9")
    k.e("s_lshl_b32 s54, s52, 4")
    k.e("s_add_u32 s53, s53, s54")
    k.e("v_add_u32 v4, s53, v4")
    k.e("v_lshlrev_b32 v4, 10, v4")
    k.e("s_mov_b32 s65, 128")
    k.e("s_mov_b32 s64, 128")
    k.e(f"s_branch {ex}")
    k.lab(wo)
    k.e("s_lshr_b32 s53, s50, 2")
    k.e("s_cmp_eq_u32 s53, 0")
    k.e(f"s_cselect_b32 s{SRD_T}, s{P_AWO}, s{P_BWO}")
    k.e(f"s_cselect_b32 s{SRD_T+1}, s{P_AWO+1}, s{P_BWO+1}")
    k.e(f"s_mov_b32 s{SRD_T+2}, 0x{512*1024:x}")
    k.e(f"s_mov_b32 s{SRD_T+3}, 0x20000")
    k.e("v_min_u32 v4, 8, v0")
    k.e("v_lshlrev_b32 v4, 7, v4")
    k.e("s_lshl_b32 s53, s52, 14")
    k.e("v_add_u32 v4, s53, v4")
    k.e("s_mov_b32 s65, 1152")
    k.e("s_mov_b32 s64, 0")
    k.lab(ex)

def pf_issue(k):
    sk = k.u("pfsw")
    k.e("s_cmp_eq_u32 s66, 8")
    k.e(f"s_cbranch_scc0 {sk}")
    k.e("s_cmp_lt_u32 s26, 3")
    k.e(f"s_cbranch_scc0 {sk}")
    k.e("s_mov_b32 s64, 0")
    k.e("s_cmp_lt_u32 s26, 2")
    k.e(f"s_cselect_b32 s{SRD_T}, s{P_AW}, s{P_AX}")
    k.e(f"s_cselect_b32 s{SRD_T+1}, s{P_AW+1}, s{P_AX+1}")
    k.lab(sk)
    k.e(f"buffer_load_dword v5, v4, {sr(SRD_T,4)}, s64 offen")
    k.e("s_add_u32 s64, s64, s65")
    k.e("s_add_u32 s66, s66, 1")

def rot_value(k, mode, d):
    if mode == 8:
        k.e(f"s_and_b32 s{d}, s{S_G}, 3"); k.e(f"s_lshl_b32 s{d}, s{d}, 1"); k.e(f"s_add_u32 s{d}, s{d}, s{S_RB}"); k.e(f"s_and_b32 s{d}, s{d}, 7")
    elif mode == 4:
        k.e(f"s_add_u32 s{d}, s{S_G}, s{S_RB}"); k.e(f"s_and_b32 s{d}, s{d}, 3"); k.e(f"s_lshl_b32 s{d}, s{d}, 1")
    elif mode == 2:
        k.e(f"s_add_u32 s{d}, s{S_G}, s{S_RB}"); k.e(f"s_and_b32 s{d}, s{d}, 1"); k.e(f"s_lshl_b32 s{d}, s{d}, 2")
    elif mode == 5:
        k.e(f"s_add_u32 s{d}, s{S_G}, s{S_RB}"); k.e(f"s_and_b32 s{d}, s{d}, 3"); k.e(f"s_lshl_b32 s{d}, s{d}, 1")
        k.e(f"s_bfe_u32 s62, s{S_RB}, 0x10002"); k.e(f"s_add_u32 s{d}, s{d}, s62")
    elif mode == 6:
        k.e(f"s_and_b32 s{d}, s{S_RB}, 3"); k.e(f"s_lshl_b32 s{d}, s{d}, 1")
    elif mode == 7:
        k.e(f"s_lshr_b32 s{d}, s{S_RB}, 1"); k.e(f"s_add_u32 s{d}, s{d}, s{S_G}"); k.e(f"s_and_b32 s{d}, s{d}, 3"); k.e(f"s_lshl_b32 s{d}, s{d}, 1")
    else:
        k.e(f"s_mov_b32 s{d}, 0")

def loader(k):
    if OPT['ldprio']: k.e(f"s_setprio {OPT['ldprio']}")
    k.e(f"s_sub_u32 s26, s{S_WAVE}, 4")
    k.e("v_lshrrev_b32 v4, 3, v0")
    k.e("v_and_b32 v5, 7, v0")
    k.e("v_lshrrev_b32 v6, 1, v4")
    k.e("v_xor_b32 v7, v5, v6")
    k.e("v_lshlrev_b32 v7, 4, v7")
    k.e(f"s_lshl_b32 s48, s{S_RB}, 6")
    k.e("s_lshl_b32 s49, s26, 4")
    k.e("s_add_u32 s48, s48, s49")
    k.e("v_add_u32 v1, s48, v4")
    k.e("v_lshlrev_b32 v1, 10, v1")
    k.e("v_add_u32 v2, 7168, v1")
    k.e("v_add_u32 v1, v1, v7")
    k.e("v_xor_b32 v7, 64, v7")
    k.e("v_add_u32 v2, v2, v7")
    k.e("v_add_u32 v3, s49, v4")
    k.e("v_mul_u32_u24 v3, 3072, v3")
    k.e("v_and_b32 v6, 2, v4")
    k.e("v_lshlrev_b32 v6, 1, v6")
    k.e("v_xor_b32 v6, v5, v6")
    k.e("v_lshlrev_b32 v6, 4, v6")
    k.e(f"s_lshl_b32 s49, s{S_G}, 7")
    k.e("v_add3_u32 v3, v3, v6, s49")
    k.e("s_lshl_b32 s51, s26, 11")
    k.e("s_mov_b32 s57, 0")
    rot_value(k, OPT['rot'], 59)
    rot_value(k, OPT['rotA'] if OPT['rotA'] >= 0 else OPT['rot'], 61)
    k.e("s_waitcnt lgkmcnt(0)")
    if OPT['fixdur']: k.e("s_mov_b32 s3, s100")
    if k.stamps: k.e("s_mov_b32 s72, s70")
    srd(k, SRD_X, P_BX, 2 << 20)
    srd(k, SRD_W, P_BW, 512*3072)
    issue_stage(k)
    if OPT['tpf']:
        pfsetup(k)
        for j in range(4): pf_issue(k)
    else:
        if OPT['pf0']: pf0(k)
        issue_stage(k)
    srd(k, SRD_WS, P_WS, 256 << 20)
    sk = k.u("nopf")
    k.e("s_cmp_eq_u32 s26, 3")
    k.e(f"s_cbranch_scc0 {sk}")
    k.e("s_getpc_b64 s[62:63]")
    k.lab("L_pc")
    k.e("s_and_b32 s62, s62, 0xffffff00")
    k.e("v_lshlrev_b32 v8, 7, v0")
    k.e(f"s_sub_u32 s62, s62, PF_BACK")
    k.e("s_subb_u32 s63, s63, 0")
    k.e("global_load_dword v9, v8, s[62:63]")
    k.e("v_add_u32 v8, 8192, v8")
    k.e("global_load_dword v10, v8, s[62:63]")
    k.e("v_add_u32 v8, 8192, v8")
    k.e("global_load_dword v11, v8, s[62:63]")
    k.lab(sk)
    attn_setup(k)
    ny = 4 if OPT['tpf'] else (10 if OPT['pf0'] else 8)
    k.e(f"s_waitcnt vmcnt({ny+3})")
    sk = k.u("w7")
    k.e("s_cmp_eq_u32 s26, 3")
    k.e(f"s_cbranch_scc1 {sk}")
    k.e(f"s_waitcnt vmcnt({ny})")
    k.lab(sk)
    k.e("s_barrier")
    if OPT['tpf']: issue_stage(k)
    issue_stage(k)
    sk = k.u("nozero")
    k.e(f"s_cmp_eq_u32 s{S_RB}, 0")
    k.e(f"s_cbranch_scc0 {sk}")
    k.e("s_cmp_lt_u32 s26, 2")
    k.e(f"s_cbranch_scc0 {sk}")
    k.e(f"s_lshl_b32 s48, s{S_G}, 1")
    k.e("s_add_u32 s48, s48, s26")
    k.e("s_lshl_b32 s48, s48, 12")
    k.e(f"s_add_u32 s48, s48, {KVACC}")
    for j in range(4): k.e(f"v_mov_b32 v{12+j}, 0")
    k.e("v_lshlrev_b32 v8, 4, v0")
    for j in range(3): k.e(f"buffer_store_dwordx4 v[12:15], v8, {WS}, s48 offen offset:{j*1024} sc1")
    k.e("s_waitcnt vmcnt(3)")
    k.lab(sk)
    k.stamp(1)
    k.e("s_mov_b32 s98, 0")
    k.e("s_mov_b32 s48, 0")
    lp = k.u("ldloop")
    k.lab(lp)
    w8 = k.u("w8"); w9 = k.u("w9"); wd = k.u("wd")
    k.e("s_cmp_eq_u32 s48, 7")
    k.e(f"s_cbranch_scc1 {wd}")
    if OPT['pf3']:
        nw3 = k.u("nw3")
        k.e(f"s_sub_u32 s49, s48, {OPT['pf3']+1}")
        k.e("s_cmp_lt_u32 s49, 2")
        k.e(f"s_cbranch_scc0 {nw3}")
        k.e("s_cmp_eq_u32 s98, 1")
        k.e(f"s_cbranch_scc0 {nw3}")
        k.e("s_waitcnt vmcnt(9)")
        k.e(f"s_branch {wd}")
        k.lab(nw3)
    if OPT['pf4']:
        w10 = k.u("w10"); nw = k.u("nw10")
        k.e(f"s_sub_u32 s49, s48, {OPT['pf4']+1}")
        k.e("s_cmp_lt_u32 s49, 2")
        k.e(f"s_cbranch_scc0 {nw}")
        k.e("s_waitcnt vmcnt(10)")
        k.e(f"s_branch {wd}")
        k.lab(nw)
    if not OPT['tpf']: k.e(f"s_branch {w8}")
    k.e("s_cmp_eq_u32 s48, 0")
    k.e(f"s_cbranch_scc1 {w8}")
    k.e("s_cmp_eq_u32 s48, 1")
    k.e(f"s_cbranch_scc1 {w9}")
    k.e("s_cmp_eq_u32 s48, 12")
    k.e(f"s_cbranch_scc1 {w9}")
    k.e("s_waitcnt vmcnt(10)")
    k.e(f"s_branch {wd}")
    k.lab(w9)
    k.e("s_waitcnt vmcnt(9)")
    k.e(f"s_branch {wd}")
    k.lab(w8)
    k.e("s_waitcnt vmcnt(8)")
    k.lab(wd)
    k.e("s_barrier")
    if OPT['stagest']:
        k.e("s_memrealtime s[90:91]"); k.e("s_waitcnt lgkmcnt(0)")
        k.e("s_mov_b32 m0, s48")
        k.e("s_nop 0")
        k.e("v_writelane_b32 v252, s90, m0")
    sk = k.u("nonn")
    k.e("s_cmp_eq_u32 s48, 7")
    k.e(f"s_cbranch_scc0 {sk}")
    read_nonce(k, 8, 9)
    k.lab(sk)
    sk = k.u("nosig2")
    k.e(f"s_cmp_eq_u32 s48, {OPT['sigs']}")
    k.e(f"s_cbranch_scc0 {sk}")
    k.e("s_cmp_eq_u32 s26, 0")
    k.e(f"s_cbranch_scc0 {sk}")
    k.e(f"s_lshl_b32 s49, s{S_G}, 12")
    k.e(f"s_lshl_b32 s50, s{S_RB}, 7")
    k.e("s_add_u32 s49, s49, s50")
    k.e(f"s_add_u32 s49, s49, {F1B}")
    store_flag(k, 49)
    k.lab(sk)
    if OPT['late9']:
        sk6 = k.u("skip6")
        k.e("s_cmp_eq_u32 s48, 6")
        k.e(f"s_cbranch_scc1 {sk6}")
    issue_stage(k)
    if OPT['late9']: k.lab(sk6)
    if OPT['pf3']:
        skp = k.u("nopf3")
        k.e(f"s_cmp_eq_u32 s48, {OPT['pf3']}")
        k.e(f"s_cbranch_scc0 {skp}")
        k.e("s_cmp_eq_u32 s26, 3")
        k.e(f"s_cbranch_scc0 {skp}")
        k.e(f"s_cmp_lt_u32 s{S_G}, 3")
        k.e(f"s_cbranch_scc0 {skp}")
        srd(k, SRD_T, P_AW, 512*3072)
        k.e(f"s_and_b32 s49, s{S_RB}, 7")
        k.e("s_mul_i32 s49, s49, 3")
        k.e(f"s_add_u32 s49, s49, s{S_G}")
        k.e("s_lshl_b32 s49, s49, 6")
        k.e("v_add_u32 v5, s49, v0")
        k.e("v_mul_u32_u24 v6, 21846, v5")
        k.e("v_lshrrev_b32 v6, 16, v6")
        k.e("v_mul_u32_u24 v7, 3, v6")
        k.e("v_sub_u32 v7, v5, v7")
        k.e("v_mul_u32_u24 v6, 3072, v6")
        k.e("v_lshlrev_b32 v7, 10, v7")
        k.e("v_add3_u32 v5, v6, v7, 384") if False else None
        k.e("v_add_u32 v5, v6, v7")
        k.e("v_add_u32 v5, 384, v5")
        k.e(f"buffer_load_dword v6, v5, {sr(SRD_T,4)}, 0 offen")
        k.e("s_mov_b32 s98, 1")
        k.lab(skp)
    if OPT['pf4']:
        skp = k.u("nopf4")
        k.e(f"s_cmp_eq_u32 s48, {OPT['pf4']}")
        k.e(f"s_cbranch_scc0 {skp}")
        pf0(k)
        k.lab(skp)
    sk = k.u("nosig")
    k.e("s_cmp_eq_u32 s48, 7")
    k.e(f"s_cbranch_scc0 {sk}")
    if OPT['late9']: issue_stage(k)
    k.e("s_waitcnt vmcnt(16)")
    k.e("s_barrier")
    k.lab(sk)

    if OPT['tpf']:
        sk = k.u("nopfi")
        k.e("s_cmp_le_u32 s48, 10")
        k.e(f"s_cbranch_scc0 {sk}")
        pf_issue(k)
        k.lab(sk)
    k.e("s_add_u32 s48, s48, 1")
    k.e("s_cmp_lt_u32 s48, 12")
    k.e(f"s_cbranch_scc1 {lp}")
    k.e(f"s_sub_u32 s48, s{S_RB}, 4")
    k.e("v_add_u32 v8, s48, v0")
    k.e("v_max_i32 v8, 0, v8")
    k.e("v_cmp_gt_u32 vcc, 4, v0")
    k.e(f"s_lshl_b32 s49, s{S_G}, 12")
    k.e(f"s_add_u32 s49, s49, {F1B}")
    k.e("v_cndmask_b32 v8, 0, v8, vcc")
    k.e("v_lshlrev_b32 v8, 7, v8")
    k.e("v_add_u32 v8, s49, v8")
    k.e("s_cmp_eq_u32 s26, 0")
    k.e("s_cselect_b32 s62, 31, 15")
    k.e("s_mov_b32 s63, 0")
    k.e("s_waitcnt vmcnt(8)");  k.e("s_barrier")
    k.e("s_mov_b64 exec, s[62:63]")
    k.e(f"buffer_load_dword v9, v8, {WS}, 0 offen sc1")
    k.e("s_mov_b64 exec, -1")
    issue_stage(k)
    k.e("s_waitcnt vmcnt(9)");  k.e("s_barrier")
    lp = k.u("f1b_lp"); ok = k.u("f1b_ok")
    k.e("s_mov_b64 exec, s[62:63]")
    k.e("s_waitcnt vmcnt(8)")
    k.e(f"v_cmp_ne_u32 vcc, s{S_NONCE}, v9")
    k.e("s_nop 1")
    k.e(f"s_cbranch_vccz {ok}")
    poll_flags(k, 8, 9, "f1b")
    k.lab(ok)
    k.e("s_mov_b64 exec, -1")
    k.stamp(5)
    if OPT['remdma']:
        sk = k.u("norem"); jn = k.u("remj")
        k.e(f"s_cmp_eq_u32 s{S_RB}, 0")
        k.e(f"s_cbranch_scc1 {sk}")
        k.e("v_lshlrev_b32 v8, 4, v0")
        k.e(f"s_lshl_b32 s48, s{S_G}, 2")
        k.e("s_add_u32 s48, s48, s26")
        k.e("s_lshl_b32 s48, s48, 6")
        k.e(f"s_lshl_b32 s49, s{S_RB}, 1")
        k.e("s_sub_u32 s49, s49, 8")
        k.e("s_lshl_b32 s52, s26, 13")
        def rem(base_g, base_l):
            for j in range(8):
                k.e(f"s_add_i32 s50, s49, {j}")
                k.e("s_max_i32 s50, s50, 0")
                k.e("s_add_u32 s50, s50, s48")
                k.e("s_lshl_b32 s50, s50, 10")
                if base_g: k.e(f"s_add_u32 s50, s50, {base_g}")
                k.e(f"s_add_u32 s51, s52, {base_l + j*1024}")
                k.e("s_mov_b32 m0, s51")
                k.e("s_nop 0")
                k.e(f"buffer_load_dwordx4 v8, {WS}, s50 offen sc1 lds")
        rem(KB_G, RK_L)
        if OPT['vpre']:
            VS = [86, 87, 88, 89, 92, 93, 94, 100]
            for j in range(8):
                k.e(f"s_add_i32 s50, s49, {j}")
                k.e("s_max_i32 s50, s50, 0")
                k.e("s_add_u32 s50, s50, s48")
                k.e("s_lshl_b32 s50, s50, 10")
                k.e(f"s_add_u32 s{VS[j]}, s50, {VB_G}")
            k.e(f"s_add_u32 s51, s52, {RV_L}")
            k.e("s_waitcnt vmcnt(8)");  k.e("s_barrier")
            for j in range(8):
                k.e("s_mov_b32 m0, s51")
                k.e("s_add_u32 s51, s51, 1024")
                k.e(f"buffer_load_dwordx4 v8, {WS}, s{VS[j]} offen sc1 lds")
        else:
            k.e("s_waitcnt vmcnt(8)");  k.e("s_barrier")
            rem(VB_G, RV_L)
        k.e("s_barrier")
        k.e("s_waitcnt vmcnt(0)")
        k.e(f"s_branch {jn}")
        k.lab(sk)
        k.e("s_waitcnt vmcnt(0)");  k.e("s_barrier")
        k.e("s_barrier")
        k.lab(jn)
    else:
        sk = k.u("norem"); jn = k.u("remj")
        k.e(f"s_cmp_eq_u32 s{S_RB}, 0")
        k.e(f"s_cbranch_scc1 {sk}")
        k.e("v_lshlrev_b32 v8, 4, v0")
        k.e(f"s_lshl_b32 s48, s{S_G}, 2")
        k.e("s_add_u32 s48, s48, s26")
        k.e("s_lshl_b32 s48, s48, 6")
        k.e(f"s_lshl_b32 s49, s{S_RB}, 1")
        k.e("s_sub_u32 s49, s49, 8")
        for j in range(8):
            k.e(f"s_add_i32 s50, s49, {j}")
            k.e("s_max_i32 s50, s50, 0")
            k.e("s_add_u32 s50, s50, s48")
            k.e("s_lshl_b32 s50, s50, 10")
            k.e(f"s_add_u32 s51, s50, {VB_G}")
            k.e(f"buffer_load_dwordx4 {vr(16+4*j,4)}, v8, {WS}, s50 offen sc1")
            k.e(f"buffer_load_dwordx4 {vr(48+4*j,4)}, v8, {WS}, s51 offen sc1")
        k.e("s_waitcnt vmcnt(16)");  k.e("s_barrier")
        k.e("s_lshl_b32 s48, s26, 13")
        k.e("v_add_u32 v9, s48, v8")
        for j in range(8):
            k.e(f"s_waitcnt vmcnt({14-2*j})")
            k.e(f"ds_write_b128 v9, {vr(16+4*j,4)} offset:{RK_L + j*1024}")
            k.e(f"ds_write_b128 v9, {vr(48+4*j,4)} offset:{RV_L + j*1024}")
            if j == 3: k.e("s_barrier")
        k.e(f"s_branch {jn}")
        k.lab(sk)
        k.e("s_waitcnt vmcnt(0)");  k.e("s_barrier")
        k.e("s_barrier")
        k.lab(jn)
    k.e("s_waitcnt lgkmcnt(0)")
    k.stamp(6)
    if OPT['ldprio']: k.e("s_setprio 0")
    k.e("s_barrier")
    k.stamp(4)

AQ_, AKF, AS, AMD, AMF, ACN, AP, AVB, AO = 4, 8, [44, 60, 76], 216, 232, 124, 140, [148, 156], 176
AM, AT = 192, 193
AK0, AK7, AK8, AV0, AV7, AV8 = 196, 197, 198, 199, 200, 201
KVR = 208
VPOLL, VPA, VPOLL2 = 248, 249, 253

def v_reads(k, buf, vaddr, off):
    k.e("s_mov_b64 exec, s[64:65]")
    k.e(f"ds_read_b128 {vr(AVB[buf],4)}, v{vaddr} offset:{off}")
    k.e(f"ds_read_b128 {vr(AVB[buf]+4,4)}, v{vaddr} offset:{off+512}")
    k.e("s_mov_b64 exec, -1")

def sig_f1a(k):
    sk = k.u("nosigA")
    k.e(f"s_cmp_lt_u32 s{S_WAVE}, 2")
    k.e(f"s_cbranch_scc0 {sk}")
    if OPT.get('sigst'): k.stamp(5)
    k.e("s_waitcnt vmcnt(0)")
    if OPT.get('sigst'): k.stamp(6)
    k.e(f"s_lshl_b32 s52, s{S_G}, 13")
    k.e(f"s_lshl_b32 s53, s{S_RB}, 1")
    k.e(f"s_add_u32 s53, s53, s{S_WAVE}")
    k.e("s_lshl_b32 s53, s53, 7")
    k.e("s_add_u32 s52, s52, s53")
    k.e(f"s_add_u32 s52, s52, {F1A}")
    store_flag(k, 52)
    k.lab(sk)

def attn_setup(k):
    k.e(f"s_and_b32 s86, s{S_WAVE}, 1")
    k.e(f"s_lshr_b32 s87, s{S_WAVE}, 1")
    k.e(f"v_lshlrev_b32 v{AT}, 4, v0")
    k.e("s_lshl_b32 s88, s86, 10")
    k.e("s_lshl_b32 s89, s87, 13")
    k.e("s_lshl_b32 s92, s87, 11")
    k.e("s_add_u32 s93, s89, s88")
    k.e(f"v_add_u32 v{AK0}, s93, v{AT}")
    k.e(f"s_add_u32 s94, s89, {7*1024}")
    k.e(f"s_add_u32 s100, s92, {OK_L}")
    k.e("s_cmp_eq_u32 s86, 0")
    k.e("s_cselect_b32 s94, s94, s100")
    k.e(f"v_add_u32 v{AK7}, s94, v{AT}")
    k.e("s_add_u32 s100, s100, s88")
    k.e(f"v_add_u32 v{AK8}, s100, v{AT}")
    k.e("v_lshrrev_b32 v202, 5, v0")
    k.e("v_lshlrev_b32 v202, 8, v202")
    k.e("v_and_b32 v203, 15, v0")
    k.e("v_lshlrev_b32 v203, 4, v203")
    k.e("v_add_u32 v202, v202, v203")
    k.e(f"s_add_u32 s94, s93, {RV_L}")
    k.e(f"v_add_u32 v{AV0}, s94, v202")
    k.e(f"s_add_u32 s94, s89, {RV_L + 7*1024}")
    k.e(f"s_add_u32 s100, s92, {OV_L}")
    k.e("s_cmp_eq_u32 s86, 0")
    k.e("s_cselect_b32 s94, s94, s100")
    k.e(f"v_add_u32 v{AV7}, s94, v202")
    k.e("s_add_u32 s100, s100, s88")
    k.e(f"v_add_u32 v{AV8}, s100, v202")
    k.e("v_and_b32 v202, 31, v0")
    k.e("v_lshrrev_b32 v203, 5, v0")
    k.e("v_lshlrev_b32 v203, 2, v203")
    k.e("v_sub_u32 v202, v202, v203")
    k.e("v_cvt_f32_i32 v202, v202")
    k.e(f"v_mov_b32 v203, {lit(BIG)}")
    for i in range(16):
        ci = 8*(i >> 2) + (i & 3)
        k.e(f"v_fmaak_f32 v{AMD+i}, v202, v203, {lit((0.5-ci)*BIG)}")
    for i in range(16): k.e(f"v_min_f32 v{AMF+i}, -v{AMD+i}, 0")
    for i in range(16): k.e(f"v_min_f32 v{AMD+i}, 0, v{AMD+i}")
    k.e(f"v_mov_b32 v{AM}, 0xff7fffff")
    k.e(f"s_lshl_b32 s87, s{S_G}, 13")
    k.e(f"s_add_u32 s87, s87, {F1A}")
    k.e(f"v_lshlrev_b32 v{VPA}, 7, v0")
    k.e(f"v_add_u32 v{VPA}, s87, v{VPA}")

def wo_setup(k):
    k.e("s_and_b32 s50, s2, 7")
    k.e("s_lshr_b32 s51, s2, 3")
    k.e("s_lshr_b32 s52, s50, 2")
    k.e("s_lshr_b32 s53, s51, 2")
    k.e("s_cmp_eq_u32 s52, 0")
    k.e(f"s_cselect_b32 s{SRD_WO}, s{P_AWO}, s{P_BWO}")
    k.e(f"s_cselect_b32 s{SRD_WO+1}, s{P_AWO+1}, s{P_BWO+1}")
    k.e(f"s_mov_b32 s{SRD_WO+2}, 0x{512*1024:x}")
    k.e(f"s_mov_b32 s{SRD_WO+3}, 0x20000")
    k.e("v_lshrrev_b32 v204, 3, v0")
    k.e("v_and_b32 v205, 7, v0")
    k.e("v_and_b32 v206, 2, v204")
    k.e("v_lshlrev_b32 v206, 1, v206")
    k.e("v_xor_b32 v206, v205, v206")
    k.e("v_lshlrev_b32 v206, 4, v206")
    k.e(f"s_sub_u32 s54, s{S_WAVE}, 4")
    if OPT['wosplit']:
        a = OPT['wosplit']
        starts = [0, a, 2*a, 2*a + (16 - a)]
        tab = sum(v << (8*i) for i, v in enumerate(starts))
        k.e("s_lshl_b32 s55, s54, 3")
        k.e(f"s_lshr_b32 s55, 0x{tab:x}, s55")
        k.e("s_and_b32 s55, s55, 0xff")
        k.e("s_lshl_b32 s50, s55, 4")
    else:
        k.e("s_lshl_b32 s50, s54, 7")
    k.e("v_add_u32 v204, s50, v204")
    k.e("v_lshlrev_b32 v204, 10, v204")
    k.e("s_lshl_b32 s96, s50, 7")
    k.e("s_lshl_b32 s50, s53, 7")
    k.e("v_add3_u32 v205, v204, v206, s50")
    k.e(f"s_add_u32 s96, s96, {WO_L}")
    k.e("s_mov_b32 s97, 0")

def wo_pair(k):
    k.e("s_mov_b32 m0, s96")
    k.e("s_add_u32 s98, s97, 7168")
    k.e(f"buffer_load_dwordx4 v205, {sr(SRD_WO,4)}, s97 offen lds")
    k.e(f"buffer_load_dwordx4 v205, {sr(SRD_WO,4)}, s98 offen offset:1024 lds")
    k.e("s_add_u32 s96, s96, 2048")
    k.e("s_add_u32 s97, s97, 16384")

KVL = 0
def kv_loads(k):
    k.stamp(14)
    k.e(f"s_lshl_b32 s50, s{S_G}, 13")
    k.e(f"s_add_u32 s50, s50, {KVACC}")
    k.e("s_add_u32 s51, s50, 4096")
    k.e(f"buffer_load_dwordx4 {vr(KVR,4)}, v1, {WS}, s50 offen sc1")
    k.e(f"buffer_load_dwordx4 {vr(KVR+4,4)}, v1, {WS}, s50 offen offset:1024 sc1")
    k.e(f"buffer_load_dwordx4 {vr(164,4)}, v1, {WS}, s51 offen sc1")
    k.e(f"buffer_load_dwordx4 {vr(168,4)}, v1, {WS}, s51 offen offset:1024 sc1")
    k.e("v_lshrrev_b32 v202, 5, v0")
    k.e("v_lshlrev_b32 v202, 12, v202")
    k.e("v_and_b32 v203, 31, v0")
    k.e("v_lshl_add_u32 v202, v203, 2, v202")
    k.e(f"buffer_load_dword v172, v202, {WS}, s50 offen offset:2048 sc1")

def attention(k):
    k.c("attention: i = w&1 (s26), hh = w>>1 (s27), qt = s48, s99 = kv loads issued flag")
    if OPT['lprio'] >= 0:
        sk = k.u("lp")
        k.e(f"s_cmp_ge_u32 s{S_WAVE}, 4")
        k.e(f"s_cbranch_scc0 {sk}")
        k.e("s_setprio 1")
        k.lab(sk)
    k.e(f"s_and_b32 s26, s{S_WAVE}, 1")
    k.e(f"s_lshr_b32 s27, s{S_WAVE}, 1")
    k.e(f"s_lshl_b32 s48, s{S_RB}, 1")
    k.e("s_add_u32 s48, s48, s26")
    k.e("v_lshlrev_b32 v1, 4, v0")
    k.e("s_lshl_b32 s49, s27, 11")
    k.e("s_lshl_b32 s50, s26, 10")
    k.e("s_add_u32 s49, s49, s50")
    k.e(f"s_add_u32 s49, s49, {Q_L}")
    k.e("v_add_u32 v2, s49, v1")
    k.e(f"ds_read_b128 {vr(AQ_,4)}, v2")
    def kaddr(p): return (AK0, RK_L + p*1024) if p <= 6 else ((AK7, 0) if p == 7 else (AK8, 0))
    def vaddr(p): return (AV0, p*1024) if p <= 6 else ((AV7, 0) if p == 7 else (AV8, 0))
    for p in range(9):
        a, o = kaddr(p); k.e(f"ds_read_b128 {vr(AKF+4*p,4)}, v{a} offset:{o}")
    k.e("s_mov_b32 s64, 0xffff")
    k.e("s_mov_b32 s65, 0xffff")
    k.e("s_mov_b32 s99, 0")
    for b in range(2):
        for j in range(8): k.e(f"v_mov_b32 v{AVB[b]+j}, 0x3f803f80")
    def wo_block():
        sk = k.u("nowo")
        k.e(f"s_cmp_ge_u32 s{S_WAVE}, 4")
        k.e(f"s_cbranch_scc0 {sk}")
        wo_setup(k)
        if OPT['wosplit']:
            a = OPT['wosplit']
            for j in range(a): wo_pair(k)
            k.e(f"s_cmp_ge_u32 s{S_WAVE}, 6")
            k.e(f"s_cbranch_scc0 {sk}")
            for j in range(16 - 2*a): wo_pair(k)
        else:
            for j in range(8): wo_pair(k)
        k.lab(sk)
    if OPT['wopos'] == 0: wo_block()
    Q = vr(AQ_, 4)
    def qk(dst, p, c): k.e(f"{MF} {vr(dst,16)}, {vr(AKF+4*p,4)}, {Q}, {c}")
    def c1(p): return vr(AMF,16) if p == 0 else (vr(AMD,16) if p == 8 else "0")
    def c2(p): return vr(AMF,16) if p == 0 else (vr(AMD,16) if p == 8 else vr(ACN,16))
    k.e("s_sub_i32 s95, 8, s48")
    k.e("s_max_i32 s95, s95, 0")
    P1 = [k.u(f"p1_{p}") for p in range(9)]
    P2 = [k.u(f"p2_{p}") for p in range(9)]
    E1 = [k.u(f"e1_{p}") for p in range(9)]
    E2 = [k.u(f"e2_{p}") for p in range(9)]
    k.e("s_waitcnt lgkmcnt(0)")
    for p in range(1, 9):
        k.e(f"s_cmp_eq_u32 s95, {p}")
        k.e(f"s_cbranch_scc1 {E1[p]}")
    qk(AS[0], 0, c1(0)); qk(AS[1], 1, c1(1)); qk(AS[2], 2, c1(2))
    k.e("s_nop 9")
    for p in range(9):
        k.lab(P1[p])
        s_ = AS[p % 3]
        for j in range(8): k.e(f"v_max3_f32 v{AM}, v{s_+2*j}, v{s_+2*j+1}, v{AM}")
        if p + 3 <= 8: qk(s_, p + 3, c1(p + 3))
    k.e(f"v_mov_b32 v{AT}, v{AM}")
    k.e("s_nop 1")
    k.e(f"v_permlane32_swap_b32 v{AM}, v{AT}")
    k.e(f"v_max_f32 v{AM}, v{AM}, v{AT}")
    k.e(f"v_sub_f32 v{AM}, 0, v{AM}")
    for i in range(16): k.e(f"v_mov_b32 v{ACN+i}, v{AM}")
    MRG = OPT['merge']
    if not MRG:
        for i in range(16): k.e(f"v_add_f32 v{AMD+i}, v{AMD+i}, v{AM}")
    if OPT['wopos'] == 1: wo_block()
    k.stamp(8)
    k.e("s_cmp_eq_u32 s95, 0")
    sh = k.u("short2")
    k.e(f"s_cbranch_scc0 {sh}")
    if MRG:
        k.e("s_mov_b32 s62, 0xffff")
        for i in range(16): k.e(f"v_ashrrev_i32 v{AMF+i}, 31, v{AMD+i}")
        v_reads(k, 1, *vaddr(1))
        qk(AS[1], 1, c2(1))
        for j in range(8): k.e(f"v_bfi_b32 v{AMD+j}, s62, v{AMF+2*j}, v{AMF+2*j+1}")
    else:
        for i in range(16): k.e(f"v_add_f32 v{AMF+i}, v{AMF+i}, v{AM}")
        v_reads(k, 0, *vaddr(0))
        k.e("s_nop 0")
        qk(AS[0], 0, c2(0))
        k.e("s_nop 6")
    mrgblk = k.u("merged"); afterm = k.u("afterm")
    for p in range(9):
        if MRG and p == 0: continue
        k.lab(P2[p])
        cur = AS[p % 2]; nxt = AS[(p + 1) % 2]
        if MRG and p == 8:
            k.e("s_cmp_eq_u32 s95, 0")
            k.e(f"s_cbranch_scc1 {mrgblk}")
        if p < 8:
            if MRG and p == 7:
                sk7 = k.u("m7"); j7 = k.u("j7")
                k.e("s_cmp_eq_u32 s95, 0")
                k.e(f"s_cbranch_scc0 {sk7}")
                qk(nxt, 8, vr(ACN,16)); qk(AS[2], 0, vr(ACN,16))
                k.e(f"s_branch {j7}")
                k.lab(sk7)
                qk(nxt, 8, vr(AMD,16))
                k.lab(j7)
            else:
                qk(nxt, p + 1, c2(p + 1))
            v_reads(k, (p + 1) % 2, *vaddr(p + 1))
        hooks = k.u("nohook")
        if p == OPT['lprio']: k.e("s_setprio 0")
        if p == OPT['sigp']:
            k.e("s_cmp_eq_u32 s95, 0")
            k.e(f"s_cbranch_scc0 {hooks}")
            sig_f1a(k)
            k.lab(hooks)
        if p >= OPT['pollp'] and (p - OPT['pollp']) % OPT['pollstep'] == 0:
            hk = k.u("hk")
            vp = VPOLL if (p - OPT['pollp']) % 2 == 0 else VPOLL2
            k.e(f"s_cmp_eq_u32 s{S_WAVE}, 4")
            k.e(f"s_cbranch_scc0 {hk}")
            k.e("s_cmp_eq_u32 s95, 0")
            k.e(f"s_cbranch_scc0 {hk}")
            k.e("s_cmp_eq_u32 s99, 0")
            k.e(f"s_cbranch_scc0 {hk}")
            if p >= OPT['pollp'] + 2:
                got = k.u("got")
                k.e(f"s_waitcnt vmcnt({1 if OPT['pollstep'] == 1 else 0})")
                k.e(f"v_cmp_ne_u32 vcc, s{S_NONCE}, v{vp}")
                k.e("s_nop 1")
                k.e(f"s_cbranch_vccz {got}")
                k.e(f"buffer_load_dword v{vp}, v{VPA}, {WS}, 0 offen sc1")
                k.e(f"s_branch {hk}")
                k.lab(got)
                kv_loads(k)
                k.e("s_mov_b32 s99, 1")
            else:
                k.e(f"buffer_load_dword v{vp}, v{VPA}, {WS}, 0 offen sc1")
            k.lab(hk)
        for j in range(16): k.e(f"v_exp_f32 v{cur+j}, v{cur+j}")
        for j in range(8): k.e(f"v_cvt_pk_bf16_f32 v{AP+j}, v{cur+2*j}, v{cur+2*j+1}")
        k.e(f"s_waitcnt lgkmcnt({2 if p < 8 else 0})")
        vb = AVB[p % 2]
        k.e(f"{MF} {vr(AO,16)}, {vr(vb,4)}, {vr(AP,4)}, {'0' if p == (1 if MRG else 0) else vr(AO,16)}")
        k.e("s_nop 0")
        k.e(f"{MF} {vr(AO,16)}, {vr(vb+4,4)}, {vr(AP+4,4)}, {vr(AO,16)}")
    done = k.u("attdone")
    k.e(f"s_branch {done}")
    if MRG:
        k.lab(mrgblk)
        SD, SF = AS[0], AS[2]
        v_reads(k, 1, *vaddr(0))
        hk = k.u("hkm"); got = k.u("gotm")
        vp = VPOLL if (8 - OPT['pollp']) % 2 == 0 else VPOLL2
        k.e(f"s_cmp_eq_u32 s{S_WAVE}, 4")
        k.e(f"s_cbranch_scc0 {hk}")
        k.e("s_cmp_eq_u32 s99, 0")
        k.e(f"s_cbranch_scc0 {hk}")
        k.e("s_waitcnt vmcnt(1)")
        k.e(f"v_cmp_ne_u32 vcc, s{S_NONCE}, v{vp}")
        k.e("s_nop 1")
        k.e(f"s_cbranch_vccnz {hk}")
        kv_loads(k)
        k.e("s_mov_b32 s99, 1")
        k.lab(hk)
        k.e("s_nop 3")
        for i in range(16): k.e(f"v_bfi_b32 v{SD+i}, v{AMF+i}, v{SF+i}, v{SD+i}")
        for j in range(16): k.e(f"v_exp_f32 v{SD+j}, v{SD+j}")
        for j in range(8): k.e(f"v_cvt_pk_bf16_f32 v{AP+j}, v{SD+2*j}, v{SD+2*j+1}")
        for j in range(8): k.e(f"v_and_b32 v{SF+j}, v{AP+j}, v{AMD+j}")
        for j in range(8): k.e(f"v_xor_b32 v{AP+j}, v{AP+j}, v{SF+j}")
        k.e("s_waitcnt lgkmcnt(0)")
        k.e(f"{MF} {vr(AO,16)}, {vr(AVB[1],4)}, {vr(SF,4)}, {vr(AO,16)}")
        k.e(f"{MF} {vr(AO,16)}, {vr(AVB[1]+4,4)}, {vr(SF+4,4)}, {vr(AO,16)}")
        k.e(f"{MF} {vr(AO,16)}, {vr(AVB[0],4)}, {vr(AP,4)}, {vr(AO,16)}")
        k.e(f"{MF} {vr(AO,16)}, {vr(AVB[0]+4,4)}, {vr(AP+4,4)}, {vr(AO,16)}")
        k.e(f"s_branch {done}")
    for p in range(1, 9):
        k.lab(E1[p])
        for q in range(p, min(p + 3, 9)): qk(AS[q % 3], q, c1(q))
        k.e("s_nop 10")
        k.e(f"s_branch {P1[p]}")
    k.lab(sh)
    if MRG:
        for i in range(16): k.e(f"v_add_f32 v{AMD+i}, v{AMD+i}, v{AM}")
    for i in range(16): k.e(f"v_mov_b32 v{AO+i}, 0")
    sig_f1a(k)
    sk = k.u("shpoll")
    k.e(f"s_cmp_eq_u32 s{S_WAVE}, 4")
    k.e(f"s_cbranch_scc0 {sk}")
    k.e(f"buffer_load_dword v{VPOLL}, v{VPA}, {WS}, 0 offen sc1")
    k.lab(sk)
    for p in range(1, 9):
        k.e(f"s_cmp_eq_u32 s95, {p}")
        k.e(f"s_cbranch_scc1 {E2[p]}")
    k.e(f"s_branch {E2[8]}")
    for p in range(1, 9):
        k.lab(E2[p])
        qk(AS[p % 2], p, c2(p))
        v_reads(k, p % 2, *vaddr(p))
        k.e("s_nop 6")
        k.e(f"s_branch {P2[p]}")
    k.lab(done)

def apart(k):
    sk = k.u("kvdone")
    k.e(f"s_cmp_eq_u32 s{S_WAVE}, 4")
    k.e(f"s_cbranch_scc0 {sk}")
    k.e("s_cmp_eq_u32 s99, 1")
    k.e(f"s_cbranch_scc1 {sk}")
    poll_flags(k, VPA, VPOLL, "f1a")
    kv_loads(k)
    k.lab(sk)
    k.e("s_nop 8")
    k.e(f"v_rcp_f32 v{AT}, v{AO+8}")
    k.e("s_nop 0")
    for j in range(8): k.e(f"v_mul_f32 v{AO+j}, v{AO+j}, v{AT}")
    cvt8(k, AP, AO)
    k.e(f"s_lshl_b32 s49, s{S_G}, 2")
    k.e("s_add_u32 s49, s49, s27")
    k.e("s_lshl_b32 s50, s48, 5")
    k.e("s_add_u32 s49, s49, s50")
    k.e("s_lshl_b32 s49, s49, 10")
    k.e(f"s_add_u32 s50, s49, {O_G + (2<<20)}")
    k.e(f"buffer_store_dwordx4 {vr(AP,4)}, v1, {WS}, s50 offen sc1")
    k.e("s_barrier")
    sk = k.u("nokvw")
    k.e(f"s_cmp_eq_u32 s{S_WAVE}, 4")
    k.e(f"s_cbranch_scc0 {sk}")
    k.e("s_waitcnt vmcnt(1)")
    k.e(f"ds_write_b128 v1, {vr(KVR,4)} offset:{KVL}")
    k.e(f"ds_write_b128 v1, {vr(KVR+4,4)} offset:{KVL+1024}")
    k.e(f"ds_write_b128 v1, {vr(164,4)} offset:{KVL+4096}")
    k.e(f"ds_write_b128 v1, {vr(168,4)} offset:{KVL+4096+1024}")
    k.e("v_lshrrev_b32 v202, 5, v0")
    k.e("v_lshlrev_b32 v202, 12, v202")
    k.e("v_and_b32 v203, 31, v0")
    k.e("v_lshl_add_u32 v202, v203, 2, v202")
    k.e(f"ds_write_b32 v202, v172 offset:{KVL+2048}")
    k.e("s_waitcnt lgkmcnt(0)")
    k.lab(sk)
    k.e("s_lshr_b32 s51, s27, 1")
    k.e("s_lshl_b32 s51, s51, 12")
    k.e("s_and_b32 s52, s27, 1")
    k.e("s_lshl_b32 s52, s52, 6")
    k.e("s_add_u32 s51, s51, s52")
    k.e("v_lshrrev_b32 v203, 5, v0")
    k.e("v_and_b32 v202, 15, v0")
    k.e("v_lshl_add_u32 v202, v203, 5, v202")
    k.e("v_lshlrev_b32 v202, 2, v202")
    k.e("v_add_u32 v202, s51, v202")
    k.e("v_lshlrev_b32 v203, 4, v203")
    k.e("v_add_u32 v203, s51, v203")
    k.e("s_lshl_b32 s51, s27, 11")
    k.e("s_lshl_b32 s50, s26, 10")
    k.e("s_add_u32 s51, s51, s50")
    k.e(f"s_add_u32 s51, s51, {PQ_L}")
    k.e("v_add_u32 v2, s51, v1")
    k.e(f"ds_read_b128 {vr(AQ_,4)}, v2")
    k.e("s_barrier")
    k.stamp(15)
    k.e("s_mov_b64 exec, s[64:65]")
    for t in range(8): k.e(f"ds_read_b32 v{KVR+t}, v202 offset:{KVL + t*256}")
    k.e("s_not_b64 exec, s[64:65]")
    k.e(f"ds_read_b128 {vr(KVR,4)}, v203 offset:{KVL+2048}")
    k.e(f"ds_read_b128 {vr(KVR+4,4)}, v203 offset:{KVL+2048+32}")
    k.e("s_mov_b64 exec, -1")
    k.e("s_waitcnt lgkmcnt(0)")
    cvt8(k, 8, KVR)
    k.e("s_nop 1")
    k.e(f"{MF} {vr(44,16)}, {vr(8,4)}, {vr(AQ_,4)}, 0")
    k.e(f"s_mov_b32 s62, {lit(1e-6)}")
    k.e("s_nop 10")
    k.e("v_add_f32 v12, s62, v52")
    k.e("v_rcp_f32 v12, v12")
    k.e("s_nop 0")
    for j in range(8): k.e(f"v_mul_f32 v{44+j}, v{44+j}, v12")
    cvt8(k, 16, 44)
    k.e(f"s_add_u32 s50, s49, {O_G}")
    k.e(f"buffer_store_dwordx4 {vr(16,4)}, v1, {WS}, s50 offen sc1")

def p3(k):
    k.c("P3: out tile 128x64")
    k.e("s_and_b32 s48, s2, 7")
    k.e("s_lshr_b32 s49, s2, 3")
    k.e("s_lshr_b32 s66, s48, 2")
    k.e("s_and_b32 s67, s48, 3")
    k.e("s_lshl_b32 s67, s67, 2")
    k.e("s_and_b32 s50, s49, 3")
    k.e("s_add_u32 s67, s67, s50")
    k.e("s_lshr_b32 s68, s49, 2")
    k.e("s_lshl_b32 s48, s67, 11")
    k.e(f"s_add_u32 s48, s48, {F2}")
    k.e("v_and_b32 v8, 15, v0")
    k.e("v_lshlrev_b32 v8, 7, v8")
    k.e("v_add_u32 v8, s48, v8")
    OF, ACC3, WF = 8+4, 144, [176, 184]
    VA0, VA1 = 192, 193
    k.e("v_bfe_u32 v2, v0, 2, 2")
    k.e("v_and_b32 v3, 3, v0")
    k.e("v_bfe_u32 v4, v0, 4, 1")
    k.e("v_lshrrev_b32 v5, 5, v0")
    k.e("v_lshlrev_b32 v5, 2, v5")
    k.e("v_add_u32 v5, v5, v2")
    k.e("v_lshlrev_b32 v5, 7, v5")
    k.e("v_and_b32 v6, 1, v3")
    k.e("v_lshlrev_b32 v6, 1, v6")
    k.e("v_add_u32 v6, v6, v4")
    k.e("v_and_b32 v7, 2, v2")
    k.e("v_lshlrev_b32 v7, 1, v7")
    k.e("v_xor_b32 v6, v6, v7")
    k.e("v_lshlrev_b32 v6, 4, v6")
    k.e("v_lshrrev_b32 v3, 1, v3")
    k.e("v_lshlrev_b32 v3, 3, v3")
    k.e("v_add3_u32 v5, v5, v6, v3")
    SLOWG = OPT['slowg']
    VB0 = 194
    k.e(f"v_add_u32 v{VB0}, {WO_L}, v5")
    k.e("s_lshl_b32 s48, s67, 2")
    k.e(f"s_add_u32 s48, s48, s{S_WAVE}")
    k.e("s_lshl_b32 s49, s48, 15")
    k.e("s_lshl_b32 s50, s66, 21")
    k.e("s_add_u32 s49, s49, s50")
    k.e(f"s_add_u32 s49, s49, {O_G}")
    k.e("v_lshlrev_b32 v1, 4, v0")
    GR = [86, 87, 88, 89, 92, 93, 94, 100]
    NOSLOW = SLOWG == 8
    if NOSLOW:
        for u in range(8):
            k.e(f"s_add_u32 s52, s68, {u}")
            k.e(f"s_and_b32 s{GR[u]}, s52, 7")
    k.e("s_cmp_eq_u32 s68, 7")
    k.e("s_cselect_b32 s51, 0, s68")
    for u in range(0 if NOSLOW else 7):
        k.e(f"s_add_u32 s52, s51, {u}")
        k.e("s_cmp_ge_u32 s52, 7")
        k.e("s_cselect_b32 s53, 7, 0")
        k.e("s_sub_u32 s52, s52, s53")
        k.e(f"s_cmp_ge_u32 s52, {SLOWG}")
        k.e("s_cselect_b32 s53, 1, 0")
        k.e(f"s_add_u32 s{GR[u]}, s52, s53")
    if not NOSLOW: k.e(f"s_mov_b32 s{GR[7]}, {SLOWG}")
    k.e(f"s_lshr_b32 s52, s{S_WAVE}, 1")
    k.e("s_and_b32 s52, s52, 1")
    k.e("s_lshl_b32 s52, s52, 3")
    k.e(f"s_add_u32 s52, s52, {SLOWG}")
    k.e("s_lshl_b32 s52, s52, 7")
    k.e("s_lshl_b32 s53, s67, 11")
    k.e("s_add_u32 s52, s52, s53")
    k.e(f"s_add_u32 s52, s52, {F2}")
    k.e("v_mov_b32 v10, s52")
    sk = k.u("nof2poll")
    k.e(f"s_cmp_eq_u32 s{S_WAVE}, 0")
    k.e(f"s_cbranch_scc0 {sk}")
    k.e(f"s_mov_b64 exec, 0x{0xffff if NOSLOW else 0xffff & ~((1 << SLOWG) | (1 << (8 + SLOWG))):x}")
    poll_flags(k, 8, 9, "f2")
    k.e("s_mov_b64 exec, -1")
    k.lab(sk)
    k.e("s_barrier")
    k.e(f"s_cmp_ge_u32 s{S_WAVE}, 4")
    k.e("s_cbranch_scc1 L_fin")
    k.stamp(12)
    def oload(hd):
        u = hd >> 2
        if hd % 4 == 0 or True:
            k.e(f"s_lshl_b32 s52, s{GR[u]}, 12")
            k.e("s_add_u32 s52, s52, s49")
        k.e(f"buffer_load_dwordx4 {vr(OF+4*hd,4)}, v1, {WS}, s52 offen offset:{(hd%4)*1024} sc1")
    for hd in range(16): oload(hd)
    def setva(u):
        k.e(f"s_lshl_b32 s52, s{GR[u]}, 13")
        k.e(f"v_add_u32 v{VA0}, s52, v{VB0}")
        k.e(f"v_xor_b32 v{VA1}, 64, v{VA0}")
    def wreads(buf, j):
        for b in range(2):
            for s2 in range(2):
                k.e(f"ds_read_b64_tr_b16 {vr(WF[buf]+4*b+2*s2,2)}, v{VA0+b} offset:{j*2048 + s2*1024}")
    def slow_loads():
        for hd in range(28, 32): oload(hd)
        k.e("s_mov_b32 s54, 1")
    PI, PC = OPT['p3poll'], 24
    k.e("s_mov_b32 s54, 0")
    setva(0)
    wreads(0, 0)
    for hd in range(32 if NOSLOW else 0):
        if hd < 31:
            nj = (hd + 1) % 4
            if nj == 0: setva((hd + 1)//4)
            wreads((hd + 1) % 2, nj)
        last = min(31, 15 + hd)
        k.e(f"s_waitcnt vmcnt({last - hd}) lgkmcnt({4 if hd < 31 else 0})")
        if 16 + hd <= 31: oload(16 + hd)
        for b in range(2):
            k.e(f"{MF} {vr(ACC3+16*b,16)}, {vr(WF[hd%2]+4*b,4)}, {vr(OF+4*hd,4)}, {'0' if hd == 0 else vr(ACC3+16*b,16)}")
    for hd in range(0 if NOSLOW else 32):
        if hd == 28:
            sk = k.u("slowok")
            k.e("s_cmp_eq_u32 s54, 1")
            k.e(f"s_cbranch_scc1 {sk}")
            k.e("s_mov_b64 exec, 1")
            poll_flags(k, 10, 9, "f2s")
            k.e("s_mov_b64 exec, -1")
            slow_loads()
            k.lab(sk)
        if hd < 31:
            nj = (hd + 1) % 4
            if nj == 0: setva((hd + 1)//4)
            wreads((hd + 1) % 2, nj)
        if hd < 28:
            last = min(27, 15 + hd)
            n = last - hd + (1 if hd > PI else 0)
            if hd >= PC: n = None
        else:
            n = 31 - hd
        if hd == PC:
            k.e(f"s_waitcnt vmcnt(0) lgkmcnt(4)")
            sk = k.u("notyet")
            k.e("s_mov_b64 exec, 1")
            k.e(f"v_cmp_ne_u32 vcc, s{S_NONCE}, v9")
            k.e("s_mov_b64 exec, -1")
            k.e("s_nop 0")
            k.e(f"s_cbranch_vccnz {sk}")
            slow_loads()
            k.lab(sk)
        elif n is None:
            k.e("s_waitcnt lgkmcnt(4)")
        else:
            k.e(f"s_waitcnt vmcnt({n}) lgkmcnt({4 if hd < 31 else 0})")
        if 16 + hd <= 27: oload(16 + hd)
        if hd == PI:
            k.e("s_mov_b64 exec, 1")
            k.e(f"buffer_load_dword v9, v10, {WS}, 0 offen sc1")
            k.e("s_mov_b64 exec, -1")
        if OPT.get('p3st') and hd in (0, 8, 31):
            k.stamp({0: 5, 8: 6, 31: 8}[hd])
        for b in range(2):
            k.e(f"{MF} {vr(ACC3+16*b,16)}, {vr(WF[hd%2]+4*b,4)}, {vr(OF+4*hd,4)}, {'0' if hd == 0 else vr(ACC3+16*b,16)}")
    srd(k, SRD_T, P_OUT, 4 << 20)
    k.e("v_and_b32 v2, 31, v0")
    k.e("s_lshl_b32 s49, s48, 5")
    k.e("v_add_u32 v2, s49, v2")
    k.e("v_lshlrev_b32 v2, 11, v2")
    k.e("v_lshrrev_b32 v3, 5, v0")
    k.e("v_lshlrev_b32 v3, 5, v3")
    k.e("s_lshl_b32 s49, s66, 10")
    k.e("s_lshl_b32 s50, s68, 7")
    k.e("s_add_u32 s49, s49, s50")
    k.e("v_add3_u32 v2, v2, v3, s49")
    k.e("s_nop 3")
    for b in range(2):
        for j in range(8): k.e(f"v_cvt_pk_bf16_f32 v{12+8*b+j}, v{ACC3+16*b+2*j}, v{ACC3+16*b+2*j+1}")
    for b in range(2):
        fl = {0: "", 1: " sc1", 2: " nt", 3: " sc0 sc1"}[OPT['outf']]
        k.e(f"buffer_store_dwordx4 {vr(12+8*b,4)}, v2, {sr(SRD_T,4)}, 0 offen offset:{64*b}{fl}")
        k.e(f"buffer_store_dwordx4 {vr(16+8*b,4)}, v2, {sr(SRD_T,4)}, 0 offen offset:{64*b+16}{fl}")

HDR = """; Kernarg layout for this problem (72 bytes, ptrs only, base s[0:1]):
;   offset   0: d_in[0] A_x  shape=(1, 2048, 512) dtype=bfloat16
;   offset   8: d_in[1] A_wqkv  shape=(512, 1536) dtype=bfloat16
;   offset  16: d_in[2] A_wo  shape=(512, 512) dtype=bfloat16
;   offset  24: d_in[3] B_x  shape=(1, 2048, 512) dtype=bfloat16
;   offset  32: d_in[4] B_wqkv  shape=(512, 1536) dtype=bfloat16
;   offset  40: d_in[5] B_wo  shape=(512, 512) dtype=bfloat16
;   offset  48: d_out     shape=(1, 2048, 1024) dtype=bfloat16
;   offset  56: d_debug   256 bytes
;   offset  64: d_ws      268435456 bytes workspace
; @launch grid=(256,1,1) block=(512,1,1) lds=163840
.amdgcn_target "amdgcn-amd-amdhsa--gfx950"
.text
.globl KNAME
.p2align 8
.type KNAME,@function
""".replace("KNAME", KNAME)

TAIL = """.section .rodata,"a"
.p2align 6
.amdhsa_kernel KNAME
  .amdhsa_next_free_vgpr 256
  .amdhsa_next_free_sgpr 102
  .amdhsa_accum_offset 256
  .amdhsa_group_segment_fixed_size 0
  .amdhsa_kernarg_size 72
  .amdhsa_user_sgpr_count 2
  .amdhsa_user_sgpr_kernarg_segment_ptr 1
  .amdhsa_system_sgpr_workgroup_id_x 1
.end_amdhsa_kernel
""".replace("KNAME", KNAME)

def build(stamps=False):
    k = gen(stamps)
    body = "\n".join(k.L)
    body = body.replace("PF_BACK", f"((L_pc - {KNAME}) & 0xffffff00)")
    pad = "\n    .fill 2048, 4, 0xbf800000\n"
    hdr, tail = HDR, TAIL
    if OPT['extra']:
        hdr = hdr.replace("; @launch grid=(256,1,1) block=(512,1,1) lds=163840", f"; @launch kernel={KNAME} grid=(256,1,1) block=(512,1,1) lds=163840\n; @launch kernel=nop_kernel grid=(1,1,1) block=(64,1,1) lds=0")
        pad += ".globl nop_kernel\n.p2align 8\n.type nop_kernel,@function\nnop_kernel:\n    s_endpgm\n"
        tail += """.p2align 6
.amdhsa_kernel nop_kernel
  .amdhsa_next_free_vgpr 8
  .amdhsa_next_free_sgpr 16
  .amdhsa_accum_offset 8
  .amdhsa_group_segment_fixed_size 0
  .amdhsa_kernarg_size 72
  .amdhsa_user_sgpr_count 2
  .amdhsa_user_sgpr_kernarg_segment_ptr 1
  .amdhsa_system_sgpr_workgroup_id_x 1
.end_amdhsa_kernel
"""
    return hdr + body + pad + "\n" + tail

if __name__ == "__main__":
    out = sys.argv[1] if len(sys.argv) > 1 else "out.s"
    stamps = "stamps" in sys.argv[2:]
    for a in sys.argv[2:]:
        if "=" in a:
            kk, vv = a.split("="); OPT[kk] = int(vv)
    txt = build(stamps)
    open(out, "w").write(txt)
    import hz
    pr = hz.check(txt)
    import subprocess
    r = subprocess.run(["clang", "-x", "assembler", "-target", "amdgcn-amd-amdhsa", "-mcpu=gfx950", "-c", out, "-o", "_chk.o"], capture_output=True, text=True)
    print("hazards:", len(pr), "lines:", txt.count("\n"), "asm:", "ok" if r.returncode == 0 else r.stderr)
```

```python
import sys, math, struct

KNAME = "concat_heads__linear_attn_block__sliding_block__prompt_kernel"

KB_G   = 0
VB_G   = 2 << 20
O_G    = 4 << 20
KVACC  = 8 << 20
FL     = (8 << 20) + (64 << 10)
F1B    = FL
F1A    = FL + (32 << 10)
F2     = FL + (96 << 10)
STAMP  = 9 << 20
SLOT   = 32768
OK_L, OV_L, Q_L, PQ_L = 131072, 139264, 147456, 155648
NONCE_L = PQ_L
RK_L, RV_L, WO_L = 0, 32768, 65536
CS = 0.25 * math.log2(math.e)
LOG2E = math.log2(math.e)
BIG = 1.0e28
SPIN_MAX = 2000000
OPT = dict(rot=4, pfB=0, pfA=1, dbgstamps=0, stagest=0, pfs=1, tpf=0, p3st=0, map=2, outf=2, extra=0, sigs=9, pf0=0, late9=0, remdma=1, m16=0, npre=16, pf4=0, pkphi=1, prio=0, kvprio=1, pollp=4, sigp=3, fixdur=0, ldprio=0, wopos=1, sigst=0, wosplit=0, lprio=-1, slowg=3, p3poll=14, pf3=0, x16st=0, sleep=1, rotA=-1, bfi=1, vpre=1, x16pos=2, merge=0, pollstep=1)

def f2u(x): return struct.unpack('<I', struct.pack('<f', x))[0]
def lit(x): return "0x%08x" % f2u(x)

class K:
    def __init__(self, stamps=False):
        self.L = []; self.stamps = stamps; self.uid = 0; self.inp1 = False
    def e(self, s):
        if self.inp1 and OPT['m16'] and s.startswith("v_mfma_f32_32x32x16_bf16"):
            import re
            m = re.match(r"v_mfma_f32_32x32x16_bf16 v\[(\d+):\d+\], (v\[\d+:\d+\]), (v\[\d+:\d+\]), (.*)", s)
            d = int(m.group(1)); c = m.group(4)
            for h in range(2):
                cc = "0" if c == "0" else f"v[{d+4*h}:{d+4*h+3}]"
                self.L.append(f"    v_mfma_f32_16x16x32_bf16 v[{d+4*h}:{d+4*h+3}], {m.group(2)}, {m.group(3)}, {cc}")
            return
        self.L.append("    " + s)
    def c(self, s): self.L.append("    ; " + s)
    def lab(self, s): self.L.append(s + ":")
    def u(self, p):
        self.uid += 1; return f"L_{p}_{self.uid}"
    def stamp(self, k):
        if not self.stamps: return
        self.e("s_memrealtime s[70:71]")
        self.e("s_waitcnt lgkmcnt(0)")
        self.e(f"s_mov_b32 s{72+k}, s70")

def vr(a, n): return f"v[{a}:{a+n-1}]"
def sr(a, n): return f"s[{a}:{a+n-1}]"
MF = "v_mfma_f32_32x32x16_bf16"

S_WAVE, S_RB, S_G, S_NONCE = 22, 23, 24, 25
SRD_WS, SRD_X, SRD_W, SRD_T, SRD_WO = 28, 32, 36, 40, 44
P_AX, P_AW, P_AWO, P_BX, P_BW, P_BWO, P_OUT, P_DBG, P_WS = 4, 6, 8, 10, 12, 14, 16, 18, 20
WS = sr(SRD_WS, 4)

def srd(k, dst, ptr, size):
    k.e(f"s_mov_b32 s{dst}, s{ptr}")
    k.e(f"s_mov_b32 s{dst+1}, s{ptr+1}")
    k.e(f"s_mov_b32 s{dst+2}, 0x{size:x}")
    k.e(f"s_mov_b32 s{dst+3}, 0x20000")

def spin_guard(k, sreg, exit_label):
    k.e(f"s_add_u32 s{sreg}, s{sreg}, 1")
    k.e(f"s_cmp_gt_u32 s{sreg}, {SPIN_MAX}")
    k.e(f"s_cbranch_scc1 {exit_label}")

def poll_flags(k, vaddr, vtmp, name, first_issued=False, sleep=1):
    lp = k.u(name + "_poll"); ex = k.u(name + "_done"); chk = k.u(name + "_chk")
    k.e("s_mov_b32 s60, 0")
    if first_issued: k.e(f"s_branch {chk}")
    k.lab(lp)
    k.e(f"buffer_load_dword v{vtmp}, v{vaddr}, {WS}, 0 offen sc1")
    k.lab(chk)
    spin_guard(k, 60, ex)
    k.e("s_waitcnt vmcnt(0)")
    k.e(f"v_cmp_ne_u32 vcc, s{S_NONCE}, v{vtmp}")
    k.e("s_nop 1")
    k.e(f"s_cbranch_vccz {ex}")
    if OPT['sleep']: k.e(f"s_sleep {OPT['sleep']}")
    k.e(f"s_branch {lp}")
    k.lab(ex)
    k.e("s_waitcnt vmcnt(0)")

def store_flag(k, soff):
    k.e(f"v_mov_b32 v250, s{S_NONCE}")
    k.e("v_mov_b32 v251, 0")
    k.e("s_mov_b64 exec, 1")
    k.e(f"buffer_store_dword v250, v251, {WS}, s{soff} offen sc1")
    k.e("s_mov_b64 exec, -1")

def cvt8(k, dst, src):
    for j in range(4): k.e(f"v_cvt_pk_bf16_f32 v{dst+j}, v{src+2*j}, v{src+2*j+1}")

def phi(k, r, n, t):
    if not OPT['pkphi']:
        for i in range(0, n, 4):
            for j in range(4): k.e(f"v_mul_f32 v{t+j}, s61, v{r+i+j}")
            for j in range(4): k.e(f"v_exp_f32 v{t+j}, v{t+j} clamp")
            for j in range(4): k.e(f"v_max_f32 v{r+i+j}, 0, v{r+i+j}")
            for j in range(4): k.e(f"v_add_f32 v{r+i+j}, s62, v{r+i+j}")
            for j in range(4): k.e(f"v_add_f32 v{r+i+j}, v{t+j}, v{r+i+j}")
        return
    for i in range(0, n, 8):
        for j in range(0, 8, 2): k.e(f"v_pk_mul_f32 {vr(t+j,2)}, {vr(r+i+j,2)}, s[66:67]")
        for j in range(8): k.e(f"v_exp_f32 v{t+j}, v{t+j} clamp")
        for j in range(8): k.e(f"v_max_f32 v{r+i+j}, 0, v{r+i+j}")
        for j in range(0, 8, 2): k.e(f"v_pk_add_f32 {vr(r+i+j,2)}, {vr(r+i+j,2)}, s[62:63]")
        for j in range(0, 8, 2): k.e(f"v_pk_add_f32 {vr(r+i+j,2)}, {vr(r+i+j,2)}, {vr(t+j,2)}")

ACC = 8
BUF = [72, 88, 104, 120]
VXA, VWA = 136, 140
EP = 144
PFD = 208

def rd_x(k, buf, j, t): k.e(f"ds_read_b128 {vr(BUF[buf]+4*t,4)}, v{VXA+j} offset:{t*4096}")
def rd_w(k, buf, j, p, slot):
    for s2 in range(2):
        k.e(f"ds_read_b64_tr_b16 {vr(BUF[buf]+8+4*slot+2*s2,2)}, v{VWA} offset:{p*8192 + j*2048 + s2*512}")
def reads(k, role, buf, j):
    rd_x(k, buf, j, 0); rd_x(k, buf, j, 1)
    if role == 'kv': rd_w(k, buf, j, 1, 0); rd_w(k, buf, j, 2, 1)
    else: rd_w(k, buf, j, 0, 0)

def kstep(k, role, br, j, first=False, noreads=False, wait=None):
    nb = (j + 2) & 3; b = BUF[j]
    if noreads:
        X = [vr(b,4), vr(b+4,4)]; W = [vr(b+8,4), vr(b+12,4)]
        k.e(f"s_waitcnt lgkmcnt({wait})")
        for t in range(2):
            a = ACC + 16*t
            if role == 'kv' and br == 'A': k.e(f"{MF} {vr(a,16)}, {X[t]}, {W[0]}, {vr(a,16)}")
            else: k.e(f"{MF} {vr(a,16)}, {W[0]}, {X[t]}, {vr(a,16)}")
        if role == 'kv':
            for t in range(2):
                a = ACC + 32 + 16*t
                k.e(f"{MF} {vr(a,16)}, {X[t]}, {W[1]}, {vr(a,16)}")
        return
    X = [vr(b,4), vr(b+4,4)]; W = [vr(b+8,4), vr(b+12,4)]
    def C(a): return "0" if first else vr(a,16)
    if role == 'kv':
        k.e("s_waitcnt lgkmcnt(6)")
        for t in range(2):
            a = ACC + 16*t
            if br == 'B': k.e(f"{MF} {vr(a,16)}, {W[0]}, {X[t]}, {C(a)}")
            else:         k.e(f"{MF} {vr(a,16)}, {X[t]}, {W[0]}, {C(a)}")
            if t == 0: rd_x(k, nb, nb, 0); rd_x(k, nb, nb, 1)
            else: rd_w(k, nb, nb, 1, 0)
        for t in range(2):
            a = ACC + 32 + 16*t
            k.e(f"{MF} {vr(a,16)}, {X[t]}, {W[1]}, {C(a)}")
            if t == 0: rd_w(k, nb, nb, 2, 1)
    else:
        k.e("s_waitcnt lgkmcnt(4)")
        for t in range(2):
            a = ACC + 16*t
            k.e(f"{MF} {vr(a,16)}, {W[0]}, {X[t]}, {C(a)}")
            if t == 0: rd_x(k, nb, nb, 0); rd_x(k, nb, nb, 1)
            else: rd_w(k, nb, nb, 0, 0)

def consumer_tile(k, role, br, extra=None):
    lp = k.u("c"+role+br); ex = k.u("cx"+role+br)
    k.inp1 = True
    k.e("s_mov_b32 s48, 0")
    kstep(k, role, br, 0, first=True)
    k.lab(lp)
    k.e("s_add_u32 s49, s49, 1")
    k.e("s_and_b32 s50, s49, 3")
    k.e("s_cmp_eq_u32 s50, 0")
    k.e(f"s_cselect_b32 s50, 0x{(-3*SLOT) & 0xffffffff:x}, s69")
    kstep(k, role, br, 1)
    if extra: extra(k)
    if br == 'A' and role == 'kv':
        sk = k.u("novm")
        k.e(f"s_cmp_eq_u32 s48, {OPT['sigs']-8}")
        k.e(f"s_cbranch_scc0 {sk}")
        k.e("s_waitcnt vmcnt(0)")
        k.lab(sk)
    for j in range(4): k.e(f"v_add_u32 v{VXA+j}, s50, v{VXA+j}")
    k.e(f"v_add_u32 v{VWA}, s50, v{VWA}")
    k.e("s_barrier")
    k.e("s_cmp_lt_u32 s48, 7")
    k.e(f"s_cbranch_scc0 {ex}")
    kstep(k, role, br, 2)
    kstep(k, role, br, 3)
    k.e("s_add_u32 s48, s48, 1")
    kstep(k, role, br, 0)
    k.e(f"s_branch {lp}")
    k.lab(ex)
    n = 6 if role == 'kv' else 4
    kstep(k, role, br, 2, noreads=True, wait=n)
    kstep(k, role, br, 3, noreads=True, wait=0)
    k.inp1 = False

def consumer_setup(k):
    k.e("v_and_b32 v1, 31, v0")
    k.e("v_lshrrev_b32 v2, 5, v0")
    k.e("v_bfe_u32 v3, v0, 1, 3")
    k.e("v_xor_b32 v3, v3, v2")
    k.e("v_lshlrev_b32 v3, 4, v3")
    k.e("v_lshlrev_b32 v1, 7, v1")
    k.e(f"v_add_u32 v{VXA}, v1, v3")
    for j in range(1, 4): k.e(f"v_xor_b32 v{VXA+j}, {j<<5}, v{VXA}")
    k.e("v_bfe_u32 v1, v0, 2, 2")
    k.e("v_and_b32 v2, 3, v0")
    k.e("v_bfe_u32 v3, v0, 4, 1")
    k.e("v_lshrrev_b32 v4, 5, v0")
    k.e("v_lshlrev_b32 v4, 3, v4")
    k.e("v_add_u32 v4, v4, v1")
    k.e("v_lshlrev_b32 v4, 7, v4")
    k.e("v_lshlrev_b32 v3, 1, v3")
    k.e("v_lshrrev_b32 v5, 1, v2")
    k.e("v_add_u32 v3, v3, v5")
    k.e("s_lshl_b32 s48, s27, 2")
    k.e("v_add_u32 v3, s48, v3")
    k.e("v_and_b32 v5, 2, v1")
    k.e("v_lshlrev_b32 v5, 1, v5")
    k.e("v_xor_b32 v3, v3, v5")
    k.e("v_lshlrev_b32 v3, 4, v3")
    k.e("v_and_b32 v2, 1, v2")
    k.e("v_lshlrev_b32 v2, 3, v2")
    k.e("v_add3_u32 v4, v4, v3, v2")
    k.e(f"v_add_u32 v{VWA}, 8192, v4")

def read_nonce(k, va, vb):
    k.e(f"v_mov_b32 v{va}, {NONCE_L}")
    k.e(f"ds_read_b32 v{vb}, v{va}")
    k.e("s_waitcnt lgkmcnt(0)")
    k.e(f"v_readfirstlane_b32 s{S_NONCE}, v{vb}")

def pf_setup(k, pw, px):
    k.e("s_and_b32 s50, s2, 7")
    k.e("s_lshr_b32 s51, s2, 3")
    k.e("v_lshrrev_b32 v5, 2, v0")
    k.e("s_lshl_b32 s52, s51, 4")
    k.e("v_add_u32 v5, s52, v5")
    k.e("v_mul_u32_u24 v5, 3072, v5")
    k.e("v_and_b32 v6, 3, v0")
    k.e("s_lshr_b32 s52, s50, 2")
    k.e("s_lshl_b32 s52, s52, 2")
    k.e("v_add_u32 v6, s52, v6")
    k.e("v_lshlrev_b32 v6, 7, v6")
    k.e("v_add_u32 v5, v5, v6")
    k.e("v_lshlrev_b32 v6, 7, v0")
    k.e("s_and_b32 s52, s50, 3")
    k.e("s_lshl_b32 s52, s52, 9")
    k.e("s_lshl_b32 s53, s51, 4")
    k.e("s_add_u32 s52, s52, s53")
    k.e("s_lshl_b32 s66, s52, 10")
    k.e("s_lshl_b32 s67, s51, 14")
    k.e("s_lshr_b32 s68, s50, 2")

def gen(stamps=False):
    k = K(stamps)
    k.lab(KNAME)
    k.e("s_cmp_ge_u32 s2, 256")
    k.e("s_cbranch_scc1 L_end")
    if stamps: k.e("s_memrealtime s[70:71]")
    if OPT['fixdur']: k.e("s_memrealtime s[100:101]")
    k.e("s_load_dwordx16 s[4:19], s[0:1], 0")
    k.e("s_load_dwordx2 s[20:21], s[0:1], 64")
    k.e("v_lshrrev_b32 v1, 6, v0")
    k.e("v_and_b32 v0, 63, v0")
    k.e(f"v_readfirstlane_b32 s{S_WAVE}, v1")
    k.e("s_and_b32 s26, s2, 7")
    k.e("s_lshr_b32 s27, s2, 3")
    k.e("s_and_b32 s48, s26, 3")
    k.e("s_lshl_b32 s48, s48, 3")
    if OPT['map'] != 1:
        k.e("s_and_b32 s49, s27, 7")
    else:
        k.e("s_lshr_b32 s49, s27, 2")
    k.e(f"s_add_u32 s{S_RB}, s48, s49")
    k.e("s_lshr_b32 s48, s26, 2")
    k.e("s_lshl_b32 s48, s48, 2")
    if OPT['map'] == 0:
        k.e("s_lshr_b32 s49, s27, 3")
    elif OPT['map'] == 2:
        k.e("s_lshr_b32 s49, s27, 3")
        k.e("s_sub_u32 s49, 3, s49")
    elif OPT['map'] >= 3:
        perm = {3: (3, 1, 2, 0), 4: (3, 1, 0, 2), 5: (1, 3, 2, 0)}[OPT['map']]
        tab = sum(v << (4*i) for i, v in enumerate(perm))
        k.e("s_lshr_b32 s49, s27, 3")
        k.e("s_lshl_b32 s49, s49, 2")
        k.e(f"s_lshr_b32 s49, 0x{tab:x}, s49")
        k.e("s_and_b32 s49, s49, 3")
    else:
        k.e("s_and_b32 s49, s27, 3")
    k.e(f"s_add_u32 s{S_G}, s48, s49")
    k.e(f"s_cmp_lt_u32 s{S_WAVE}, 4")
    k.e("s_cbranch_scc1 L_consumer")

    loader(k)
    k.e("s_branch L_attn")

    k.lab("L_consumer")
    k.e("s_waitcnt lgkmcnt(0)")
    if OPT['fixdur']: k.e("s_mov_b32 s3, s100")
    if stamps: k.e("s_mov_b32 s72, s70")
    srd(k, SRD_WS, P_WS, 256 << 20)
    srd(k, SRD_T, P_DBG, 256)
    srd(k, SRD_X, P_AW, 512*3072)
    k.e(f"s_and_b32 s27, s{S_WAVE}, 1")
    consumer_setup(k)
    attn_setup(k)
    nn = k.u("nononce")
    k.e(f"s_cmp_eq_u32 s{S_WAVE}, 0")
    k.e(f"s_cbranch_scc0 {nn}")
    k.e("v_mov_b32 v2, 0")
    nl = k.u("nolead")
    k.e("s_cmp_eq_u32 s2, 0")
    k.e(f"s_cbranch_scc0 {nl}")
    k.e("s_memrealtime s[58:59]")
    k.e("s_waitcnt lgkmcnt(0)")
    k.e("s_or_b32 s58, s58, 1")
    k.e("v_mov_b32 v3, s58")
    k.e(f"buffer_store_dword v3, v2, {sr(SRD_T,4)}, 0 offen sc1")
    k.lab(nl)
    k.lab(nn)
    k.e("s_mov_b32 s49, 0")
    k.e(f"s_mov_b32 s69, {SLOT}")
    k.e(f"s_cmp_ge_u32 s{S_WAVE}, 2")
    k.e("s_cbranch_scc1 L_qwave")

    k.e("s_barrier")
    k.stamp(1)
    reads(k, 'kv', 0, 0); reads(k, 'kv', 1, 1)
    consumer_tile(k, 'kv', 'B')
    k.stamp(2)
    k.c("B epilogue (kv)")
    read_nonce(k, 2, 3)
    k.e(f"s_lshl_b32 s62, s{S_G}, 2")
    k.e("s_lshl_b32 s63, s27, 1")
    k.e("s_add_u32 s62, s62, s63")
    k.e("s_lshl_b32 s62, s62, 6")
    k.e(f"s_lshl_b32 s63, s{S_RB}, 1")
    k.e("s_add_u32 s62, s62, s63")
    k.e("s_lshl_b32 s62, s62, 10")
    k.e("v_lshlrev_b32 v1, 4, v0")
    k.e("s_lshl_b32 s63, s27, 12")
    k.e(f"s_add_u32 s63, s63, {OK_L}")
    k.e("v_add_u32 v4, s63, v1")
    k.e("v_bfe_u32 v2, v0, 4, 1")
    k.e("v_lshrrev_b32 v3, 5, v0")
    k.e("v_lshlrev_b32 v3, 8, v3")
    k.e("v_and_b32 v5, 15, v0")
    k.e("v_lshlrev_b32 v5, 4, v5")
    k.e("v_add_u32 v3, v3, v5")
    k.e("v_lshlrev_b32 v5, 11, v2")
    k.e("v_add_u32 v5, v5, v3")
    k.e(f"s_add_u32 s63, s63, {OV_L - OK_L}")
    k.e("v_add_u32 v5, s63, v5")
    k.e("v_lshlrev_b32 v2, 16, v2")
    k.e("v_add_u32 v2, v2, v3")
    k.e(f"s_add_u32 s64, s62, {KB_G + 65536}")
    k.e(f"s_add_u32 s65, s62, {VB_G}")
    k.e("s_nop 3")
    for t in range(2):
        KF = EP + 16*t; VF = KF + 8
        cvt8(k, KF, ACC+16*t); cvt8(k, KF+4, ACC+16*t+8)
        cvt8(k, VF, ACC+32+16*t); cvt8(k, VF+4, ACC+32+16*t+8)
        k.e(f"buffer_store_dwordx4 {vr(KF,4)}, v1, {WS}, s62 offen offset:{t*1024} sc1")
        k.e(f"buffer_store_dwordx4 {vr(KF+4,4)}, v1, {WS}, s64 offen offset:{t*1024} sc1")
        k.e(f"buffer_store_dwordx4 {vr(VF,4)}, v2, {WS}, s65 offen offset:{t*1024} sc1")
        k.e(f"buffer_store_dwordx4 {vr(VF+4,4)}, v2, {WS}, s65 offen offset:{t*1024+512} sc1")
        k.e(f"ds_write_b128 v4, {vr(KF,4)} offset:{t*1024}")
        k.e(f"ds_write_b128 v4, {vr(KF+4,4)} offset:{t*1024+2048}")
        k.e(f"ds_write_b128 v5, {vr(VF,4)} offset:{t*1024}")
        k.e(f"ds_write_b128 v5, {vr(VF+4,4)} offset:{t*1024+512}")
    k.stamp(3)
    k.e("s_barrier")
    reads(k, 'kv', 0, 0); reads(k, 'kv', 1, 1)
    consumer_tile(k, 'kv', 'A')
    k.e("s_waitcnt lgkmcnt(0)")
    if OPT.get('x16st'): k.stamp(5)
    if OPT['x16pos'] == 0:
        k.e("s_barrier")
        k.stamp(4)
    k.c("A epilogue (kv)")
    if OPT['kvprio']: k.e("s_setprio 2")
    T = 72
    k.e(f"s_mov_b32 s61, {lit(LOG2E)}")
    k.e(f"s_mov_b32 s62, {lit(1e-6)}")
    k.e("s_mov_b32 s63, s62")
    k.e("s_mov_b32 s66, s61")
    k.e("s_mov_b32 s67, s61")
    PK, VV, ONES = 80, 96, 112
    for j in range(4): k.e(f"v_mov_b32 v{ONES+j}, 0x3f803f80")
    k.e("s_nop 4")
    for t in range(2):
        cvt8(k, VV+8*t, ACC+32+16*t); cvt8(k, VV+8*t+4, ACC+32+16*t+8)
    if OPT['x16pos'] == 1:
        k.e("s_barrier")
        k.stamp(4)
    DKV, DZ = ACC+32, ACC+48
    for t in range(2):
        phi(k, ACC+16*t, 16, T)
        cvt8(k, PK+8*t, ACC+16*t); cvt8(k, PK+8*t+4, ACC+16*t+8)
        k.e("s_nop 1")
        for m in range(2):
            first = (t == 0 and m == 0)
            k.e(f"{MF} {vr(DKV,16)}, {vr(PK+8*t+4*m,4)}, {vr(VV+8*t+4*m,4)}, {'0' if first else vr(DKV,16)}")
            k.e(f"{MF} {vr(DZ,16)}, {vr(ONES,4)}, {vr(PK+8*t+4*m,4)}, {'0' if first else vr(DZ,16)}")
        if OPT['x16pos'] == 2 and t == 0:
            k.e("s_barrier")
            k.stamp(4)
    k.e("s_mov_b32 s64, 0xffff0000")
    k.e("s_mov_b32 s65, 0xffff0000")
    k.e(f"s_lshl_b32 s63, s{S_G}, 1")
    k.e("s_add_u32 s63, s63, s27")
    k.e("s_lshl_b32 s63, s63, 12")
    k.e(f"s_add_u32 s63, s63, {KVACC}")
    k.e("v_lshlrev_b32 v3, 2, v0")
    k.e("v_bfe_i32 v4, v0, 4, 1")
    k.e("s_nop 4")
    RS = 120
    if OPT['bfi']:
        for t in range(8): k.e(f"v_bfi_b32 v{RS+t}, v4, v{DKV+8+t}, v{DKV+t}")
    else:
        for t in range(8): k.e(f"v_cndmask_b32 v{RS+t}, v{DKV+t}, v{DKV+8+t}, s[64:65]")
    for t in range(8): k.e(f"buffer_atomic_add_f32 v{RS+t}, v3, {WS}, s63 offen offset:{t*256}")
    k.e("s_mov_b32 exec_hi, 0")
    k.e(f"buffer_atomic_add_f32 v{DZ}, v3, {WS}, s63 offen offset:2048")
    k.e("s_mov_b64 exec, -1")
    if OPT['kvprio']: k.e("s_setprio 0")
    if OPT['x16pos'] == 3:
        k.e("s_barrier")
        k.stamp(4)
    k.e("s_branch L_e1")

    k.lab("L_qwave")
    k.e("v_mov_b32 v251, 0")
    k.e("s_barrier")
    k.stamp(1)
    reads(k, 'q', 0, 0); reads(k, 'q', 1, 1)
    def pf_extra(k):
        ex = k.u("pfx"); w3 = k.u("pfw3")
        n1 = k.u("nn1"); n2 = k.u("nn2")
        k.e(f"s_cmp_eq_u32 s{S_WAVE}, 2")
        k.e(f"s_cbranch_scc0 {n2}")
        k.e("s_cmp_eq_u32 s48, 0")
        k.e(f"s_cbranch_scc0 {n1}")
        k.e(f"buffer_load_dword v7, v251, {sr(SRD_T,4)}, 0 offen sc1")
        k.lab(n1)
        k.e("s_cmp_eq_u32 s48, 6")
        k.e(f"s_cbranch_scc0 {n2}")
        lp = k.u("np"); npx = k.u("npx"); chk = k.u("npc")
        k.e("s_mov_b32 s60, 0")
        k.e(f"s_branch {chk}")
        k.lab(lp)
        k.e(f"buffer_load_dword v7, v251, {sr(SRD_T,4)}, 0 offen sc1")
        k.lab(chk)
        spin_guard(k, 60, npx)
        k.e("s_waitcnt vmcnt(0)")
        k.e("v_readfirstlane_b32 s58, v7")
        k.e("s_nop 0")
        k.e("s_cmp_eq_u32 s58, 0")
        k.e(f"s_cbranch_scc1 {lp}")
        k.lab(npx)
        k.e("s_waitcnt vmcnt(0)")
        k.e(f"v_mov_b32 v250, {NONCE_L}")
        k.e("ds_write_b32 v250, v7")
        k.lab(n2)
    consumer_tile(k, 'q', 'B', pf_extra)
    k.stamp(2)
    k.c("B epilogue (q)")
    read_nonce(k, 2, 3)
    k.e(f"s_mov_b32 s61, {lit(CS)}")
    k.e("v_lshlrev_b32 v1, 4, v0")
    k.e("s_lshl_b32 s63, s27, 12")
    k.e(f"s_add_u32 s63, s63, {Q_L}")
    k.e("v_add_u32 v4, s63, v1")
    k.e("s_nop 6")
    for t in range(2):
        for i in range(16): k.e(f"v_mul_f32 v{ACC+16*t+i}, s61, v{ACC+16*t+i}")
        QF = EP + 8*t
        cvt8(k, QF, ACC+16*t); cvt8(k, QF+4, ACC+16*t+8)
        k.e(f"ds_write_b128 v4, {vr(QF,4)} offset:{t*1024}")
        k.e(f"ds_write_b128 v4, {vr(QF+4,4)} offset:{t*1024+2048}")
    k.stamp(3)
    k.e("s_barrier")
    reads(k, 'q', 0, 0); reads(k, 'q', 1, 1)
    consumer_tile(k, 'q', 'A')
    k.e("s_waitcnt lgkmcnt(0)")
    if OPT['x16pos'] < 2:
        k.e("s_barrier")
        k.stamp(4)
    k.c("A epilogue (q)")
    k.e(f"s_mov_b32 s61, {lit(LOG2E)}")
    k.e(f"s_mov_b32 s62, {lit(1e-6)}")
    k.e("s_mov_b32 s63, s62")
    k.e("s_mov_b32 s66, s61")
    k.e("s_mov_b32 s67, s61")
    k.e("v_lshlrev_b32 v1, 4, v0")
    k.e("s_lshl_b32 s65, s27, 12")
    k.e(f"s_add_u32 s65, s65, {PQ_L}")
    k.e("v_add_u32 v4, s65, v1")
    k.e("s_nop 6")
    for t in range(2):
        phi(k, ACC+16*t, 16, 72)
        QF = EP + 8*t
        cvt8(k, QF, ACC+16*t); cvt8(k, QF+4, ACC+16*t+8)
        k.e(f"ds_write_b128 v4, {vr(QF,4)} offset:{t*1024}")
        k.e(f"ds_write_b128 v4, {vr(QF+4,4)} offset:{t*1024+2048}")
        if OPT['x16pos'] == 2 and t == 0:
            k.e("s_barrier")
            k.stamp(4)
    k.e("s_waitcnt lgkmcnt(0)")
    if OPT['x16pos'] == 3:
        k.e("s_barrier")
        k.stamp(4)
    k.lab("L_e1")

    k.lab("L_attn")
    if OPT['prio']:
        sk = k.u("prio")
        k.e(f"s_cmp_ge_u32 s{S_WAVE}, 4")
        k.e(f"s_cbranch_scc{0 if OPT['prio'] == 1 else 1} {sk}")
        k.e("s_setprio 1")
        k.lab(sk)
    k.stamp(7)
    attention(k)
    k.stamp(9)
    apart(k)
    k.stamp(10)
    k.e("s_waitcnt vmcnt(0) lgkmcnt(0)")
    k.e("s_barrier")
    k.stamp(11)
    sk = k.u("nof2")
    k.e(f"s_cmp_eq_u32 s{S_WAVE}, 4")
    k.e(f"s_cbranch_scc0 {sk}")
    k.e(f"s_lshr_b32 s48, s{S_RB}, 1")
    k.e("s_lshl_b32 s48, s48, 11")
    k.e(f"s_and_b32 s49, s{S_RB}, 1")
    k.e("s_lshl_b32 s49, s49, 3")
    k.e(f"s_add_u32 s49, s49, s{S_G}")
    k.e("s_lshl_b32 s49, s49, 7")
    k.e("s_add_u32 s48, s48, s49")
    k.e(f"s_add_u32 s48, s48, {F2}")
    store_flag(k, 48)
    k.lab(sk)
    p3(k)
    k.lab("L_fin")
    if OPT['fixdur']:
        lp = k.u("fix")
        k.lab(lp)
        k.e("s_memrealtime s[90:91]")
        k.e("s_waitcnt lgkmcnt(0)")
        k.e("s_sub_u32 s90, s90, s3")
        k.e(f"s_cmp_lt_u32 s90, {OPT['fixdur']}")
        k.e(f"s_cbranch_scc1 {lp}")
    if stamps:
        k.stamp(13)
        k.e(f"s_lshl_b32 s48, s2, 3")
        k.e(f"s_add_u32 s48, s48, s{S_WAVE}")
        k.e("s_lshl_b32 s48, s48, 6")
        k.e(f"s_add_u32 s48, s48, {STAMP}")
        k.e("v_mov_b32 v9, 0")
        for j in range(16):
            k.e(f"v_mov_b32 v8, s{72+j}")
            k.e(f"buffer_store_dword v8, v9, {WS}, s48 offen offset:{4*j}")
            k.e("s_nop 0")
    if stamps and OPT['dbgstamps']:
        srd(k, SRD_T, P_DBG, 256)
        for wg, base in ((8, 1), (200, 8)):
            sk = k.u("nodbg")
            k.e(f"s_cmp_eq_u32 s2, {wg}")
            k.e(f"s_cbranch_scc0 {sk}")
            k.e(f"s_cmp_eq_u32 s{S_WAVE}, 0")
            k.e(f"s_cbranch_scc0 {sk}")
            k.e("v_mov_b32 v9, 0")
            for n, j in enumerate((1, 2, 4, 9, 10, 11, 13)):
                k.e(f"s_sub_u32 s48, s{72+j}, s72")
                k.e("v_mov_b32 v8, s48")
                k.e(f"buffer_store_dword v8, v9, {sr(SRD_T,4)}, 0 offen offset:{4*(base+n)}")
                k.e("s_nop 0")
            k.lab(sk)
    if OPT['stagest']:
        sk = k.u("nost")
        k.e(f"s_cmp_eq_u32 s{S_WAVE}, 4")
        k.e(f"s_cbranch_scc0 {sk}")
        k.e("s_lshl_b32 s48, s2, 8")
        k.e(f"s_add_u32 s48, s48, {STAMP + (1<<19)}")
        k.e("v_lshlrev_b32 v9, 2, v0")
        k.e(f"buffer_store_dword v252, v9, {WS}, s48 offen")
        k.lab(sk)
    k.lab("L_end")
    k.e("s_endpgm")
    return k

def issue_stage(k):
    k.e("s_lshl_b32 s52, s59, 7")
    k.e("s_mul_i32 s53, s59, 196608")
    k.e("s_mov_b32 m0, s51")
    k.e("s_add_u32 s54, s53, 23552")
    k.e(f"buffer_load_dwordx4 v1, {sr(SRD_X,4)}, s52 offen lds")
    k.e(f"buffer_load_dwordx4 v2, {sr(SRD_X,4)}, s52 offen offset:1024 lds")
    for p in range(3):
        k.e(f"s_add_u32 s55, s51, {8192 + p*8192}")
        k.e("s_mov_b32 m0, s55")
        if p: k.e(f"s_add_u32 s56, s53, {p*1024}"); so0 = "s56"
        else: so0 = "s53"; k.e("s_nop 0")
        k.e(f"buffer_load_dwordx4 v3, {sr(SRD_W,4)}, {so0} offen lds")
        if p: k.e(f"s_add_u32 s56, s54, {p*1024}"); so1 = "s56"
        else: so1 = "s54"
        k.e(f"buffer_load_dwordx4 v3, {sr(SRD_W,4)}, {so1} offen offset:1024 lds")
    k.e("s_add_u32 s57, s57, 1")
    k.e("s_add_u32 s59, s59, 1")
    k.e("s_and_b32 s59, s59, 7")
    k.e(f"s_add_u32 s51, s51, {SLOT}")
    k.e("s_and_b32 s58, s57, 3")
    sk = k.u("nowrap")
    k.e("s_cmp_eq_u32 s58, 0")
    k.e(f"s_cbranch_scc0 {sk}")
    k.e(f"s_sub_u32 s51, s51, {4*SLOT}")
    k.lab(sk)
    sk2 = k.u("nosw")
    k.e("s_cmp_eq_u32 s57, 8")
    k.e(f"s_cbranch_scc0 {sk2}")
    srd(k, SRD_X, P_AX, 2 << 20)
    srd(k, SRD_W, P_AW, 512*3072)
    k.e("s_mov_b32 s59, s61")
    k.lab(sk2)

def pf0(k):
    k.e("s_and_b32 s50, s2, 7")
    k.e("s_lshr_b32 s52, s2, 3")
    wx = k.u("pf0x"); ex = k.u("pf0e")
    k.e("s_cmp_lt_u32 s26, 3")
    k.e(f"s_cbranch_scc0 {wx}")
    srd(k, SRD_T, P_AW, 512*3072)
    k.e("v_lshrrev_b32 v5, 2, v0")
    k.e("s_lshl_b32 s53, s52, 4")
    k.e("v_add_u32 v5, s53, v5")
    k.e("v_mul_u32_u24 v5, 3072, v5")
    k.e("v_and_b32 v6, 3, v0")
    k.e("s_lshr_b32 s53, s50, 2")
    k.e("s_lshl_b32 s53, s53, 2")
    k.e("v_add_u32 v6, s53, v6")
    k.e("v_lshlrev_b32 v6, 7, v6")
    k.e("v_add_u32 v5, v5, v6")
    k.e("s_lshl_b32 s53, s26, 10")
    k.e(f"buffer_load_dword v6, v5, {sr(SRD_T,4)}, s53 offen")
    k.e(f"buffer_load_dword v7, v5, {sr(SRD_T,4)}, s53 offen")
    k.e(f"s_branch {ex}")
    k.lab(wx)
    srd(k, SRD_T, P_AX, 2 << 20)
    k.e("s_and_b32 s53, s50, 3")
    k.e("s_lshl_b32 s53, s53, 9")
    k.e("s_lshl_b32 s54, s52, 4")
    k.e("s_add_u32 s53, s53, s54")
    k.e("s_lshl_b32 s53, s53, 10")
    k.e("v_lshlrev_b32 v5, 7, v0")
    k.e(f"buffer_load_dword v6, v5, {sr(SRD_T,4)}, s53 offen")
    k.e("s_add_u32 s53, s53, 8192")
    k.e(f"buffer_load_dword v7, v5, {sr(SRD_T,4)}, s53 offen")
    k.lab(ex)

def pfsetup(k):
    k.e("s_and_b32 s50, s2, 7")
    k.e("s_lshr_b32 s52, s2, 3")
    k.e("s_mov_b32 s66, 1")
    wx = k.u("pfwx"); wo = k.u("pfwo"); ex = k.u("pfex")
    k.e("s_cmp_lt_u32 s26, 2")
    k.e(f"s_cbranch_scc0 {wx}")
    srd(k, SRD_T, P_BW, 512*3072)
    k.e("v_min_u32 v4, 11, v0")
    k.e("v_lshrrev_b32 v5, 2, v4")
    k.e("v_lshlrev_b32 v5, 10, v5")
    k.e("v_and_b32 v4, 3, v4")
    k.e("s_lshr_b32 s53, s50, 2")
    k.e("s_lshl_b32 s53, s53, 2")
    k.e("v_add_u32 v4, s53, v4")
    k.e("v_lshlrev_b32 v4, 7, v4")
    k.e("s_lshl_b32 s53, s52, 1")
    k.e("s_add_u32 s53, s53, s26")
    k.e("s_mul_i32 s53, s53, 3072")
    k.e("v_add3_u32 v4, v4, v5, s53")
    k.e("s_mov_b32 s65, 196608")
    k.e("s_mov_b32 s64, 196608")
    k.e(f"s_branch {ex}")
    k.lab(wx)
    k.e("s_cmp_eq_u32 s26, 2")
    k.e(f"s_cbranch_scc0 {wo}")
    srd(k, SRD_T, P_BX, 2 << 20)
    k.e("v_min_u32 v4, 15, v0")
    k.e("s_and_b32 s53, s50, 3")
    k.e("s_lshl_b32 s53, s53, 9")
    k.e("s_lshl_b32 s54, s52, 4")
    k.e("s_add_u32 s53, s53, s54")
    k.e("v_add_u32 v4, s53, v4")
    k.e("v_lshlrev_b32 v4, 10, v4")
    k.e("s_mov_b32 s65, 128")
    k.e("s_mov_b32 s64, 128")
    k.e(f"s_branch {ex}")
    k.lab(wo)
    k.e("s_lshr_b32 s53, s50, 2")
    k.e("s_cmp_eq_u32 s53, 0")
    k.e(f"s_cselect_b32 s{SRD_T}, s{P_AWO}, s{P_BWO}")
    k.e(f"s_cselect_b32 s{SRD_T+1}, s{P_AWO+1}, s{P_BWO+1}")
    k.e(f"s_mov_b32 s{SRD_T+2}, 0x{512*1024:x}")
    k.e(f"s_mov_b32 s{SRD_T+3}, 0x20000")
    k.e("v_min_u32 v4, 8, v0")
    k.e("v_lshlrev_b32 v4, 7, v4")
    k.e("s_lshl_b32 s53, s52, 14")
    k.e("v_add_u32 v4, s53, v4")
    k.e("s_mov_b32 s65, 1152")
    k.e("s_mov_b32 s64, 0")
    k.lab(ex)

def pf_issue(k):
    sk = k.u("pfsw")
    k.e("s_cmp_eq_u32 s66, 8")
    k.e(f"s_cbranch_scc0 {sk}")
    k.e("s_cmp_lt_u32 s26, 3")
    k.e(f"s_cbranch_scc0 {sk}")
    k.e("s_mov_b32 s64, 0")
    k.e("s_cmp_lt_u32 s26, 2")
    k.e(f"s_cselect_b32 s{SRD_T}, s{P_AW}, s{P_AX}")
    k.e(f"s_cselect_b32 s{SRD_T+1}, s{P_AW+1}, s{P_AX+1}")
    k.lab(sk)
    k.e(f"buffer_load_dword v5, v4, {sr(SRD_T,4)}, s64 offen")
    k.e("s_add_u32 s64, s64, s65")
    k.e("s_add_u32 s66, s66, 1")

def rot_value(k, mode, d):
    if mode == 8:
        k.e(f"s_and_b32 s{d}, s{S_G}, 3"); k.e(f"s_lshl_b32 s{d}, s{d}, 1"); k.e(f"s_add_u32 s{d}, s{d}, s{S_RB}"); k.e(f"s_and_b32 s{d}, s{d}, 7")
    elif mode == 4:
        k.e(f"s_add_u32 s{d}, s{S_G}, s{S_RB}"); k.e(f"s_and_b32 s{d}, s{d}, 3"); k.e(f"s_lshl_b32 s{d}, s{d}, 1")
    elif mode == 2:
        k.e(f"s_add_u32 s{d}, s{S_G}, s{S_RB}"); k.e(f"s_and_b32 s{d}, s{d}, 1"); k.e(f"s_lshl_b32 s{d}, s{d}, 2")
    elif mode == 5:
        k.e(f"s_add_u32 s{d}, s{S_G}, s{S_RB}"); k.e(f"s_and_b32 s{d}, s{d}, 3"); k.e(f"s_lshl_b32 s{d}, s{d}, 1")
        k.e(f"s_bfe_u32 s62, s{S_RB}, 0x10002"); k.e(f"s_add_u32 s{d}, s{d}, s62")
    elif mode == 6:
        k.e(f"s_and_b32 s{d}, s{S_RB}, 3"); k.e(f"s_lshl_b32 s{d}, s{d}, 1")
    elif mode == 7:
        k.e(f"s_lshr_b32 s{d}, s{S_RB}, 1"); k.e(f"s_add_u32 s{d}, s{d}, s{S_G}"); k.e(f"s_and_b32 s{d}, s{d}, 3"); k.e(f"s_lshl_b32 s{d}, s{d}, 1")
    else:
        k.e(f"s_mov_b32 s{d}, 0")

def loader(k):
    if OPT['ldprio']: k.e(f"s_setprio {OPT['ldprio']}")
    k.e(f"s_sub_u32 s26, s{S_WAVE}, 4")
    k.e("v_lshrrev_b32 v4, 3, v0")
    k.e("v_and_b32 v5, 7, v0")
    k.e("v_lshrrev_b32 v6, 1, v4")
    k.e("v_xor_b32 v7, v5, v6")
    k.e("v_lshlrev_b32 v7, 4, v7")
    k.e(f"s_lshl_b32 s48, s{S_RB}, 6")
    k.e("s_lshl_b32 s49, s26, 4")
    k.e("s_add_u32 s48, s48, s49")
    k.e("v_add_u32 v1, s48, v4")
    k.e("v_lshlrev_b32 v1, 10, v1")
    k.e("v_add_u32 v2, 7168, v1")
    k.e("v_add_u32 v1, v1, v7")
    k.e("v_xor_b32 v7, 64, v7")
    k.e("v_add_u32 v2, v2, v7")
    k.e("v_add_u32 v3, s49, v4")
    k.e("v_mul_u32_u24 v3, 3072, v3")
    k.e("v_and_b32 v6, 2, v4")
    k.e("v_lshlrev_b32 v6, 1, v6")
    k.e("v_xor_b32 v6, v5, v6")
    k.e("v_lshlrev_b32 v6, 4, v6")
    k.e(f"s_lshl_b32 s49, s{S_G}, 7")
    k.e("v_add3_u32 v3, v3, v6, s49")
    k.e("s_lshl_b32 s51, s26, 11")
    k.e("s_mov_b32 s57, 0")
    rot_value(k, OPT['rot'], 59)
    rot_value(k, OPT['rotA'] if OPT['rotA'] >= 0 else OPT['rot'], 61)
    k.e("s_waitcnt lgkmcnt(0)")
    if OPT['fixdur']: k.e("s_mov_b32 s3, s100")
    if k.stamps: k.e("s_mov_b32 s72, s70")
    srd(k, SRD_X, P_BX, 2 << 20)
    srd(k, SRD_W, P_BW, 512*3072)
    issue_stage(k)
    if OPT['tpf']:
        pfsetup(k)
        for j in range(4): pf_issue(k)
    else:
        if OPT['pf0']: pf0(k)
        issue_stage(k)
    srd(k, SRD_WS, P_WS, 256 << 20)
    sk = k.u("nopf")
    k.e("s_cmp_eq_u32 s26, 3")
    k.e(f"s_cbranch_scc0 {sk}")
    k.e("s_getpc_b64 s[62:63]")
    k.lab("L_pc")
    k.e("s_and_b32 s62, s62, 0xffffff00")
    k.e("v_lshlrev_b32 v8, 7, v0")
    k.e(f"s_sub_u32 s62, s62, PF_BACK")
    k.e("s_subb_u32 s63, s63, 0")
    k.e("global_load_dword v9, v8, s[62:63]")
    k.e("v_add_u32 v8, 8192, v8")
    k.e("global_load_dword v10, v8, s[62:63]")
    k.e("v_add_u32 v8, 8192, v8")
    k.e("global_load_dword v11, v8, s[62:63]")
    k.lab(sk)
    attn_setup(k)
    ny = 4 if OPT['tpf'] else (10 if OPT['pf0'] else 8)
    k.e(f"s_waitcnt vmcnt({ny+3})")
    sk = k.u("w7")
    k.e("s_cmp_eq_u32 s26, 3")
    k.e(f"s_cbranch_scc1 {sk}")
    k.e(f"s_waitcnt vmcnt({ny})")
    k.lab(sk)
    k.e("s_barrier")
    if OPT['tpf']: issue_stage(k)
    issue_stage(k)
    sk = k.u("nozero")
    k.e(f"s_cmp_eq_u32 s{S_RB}, 0")
    k.e(f"s_cbranch_scc0 {sk}")
    k.e("s_cmp_lt_u32 s26, 2")
    k.e(f"s_cbranch_scc0 {sk}")
    k.e(f"s_lshl_b32 s48, s{S_G}, 1")
    k.e("s_add_u32 s48, s48, s26")
    k.e("s_lshl_b32 s48, s48, 12")
    k.e(f"s_add_u32 s48, s48, {KVACC}")
    for j in range(4): k.e(f"v_mov_b32 v{12+j}, 0")
    k.e("v_lshlrev_b32 v8, 4, v0")
    for j in range(3): k.e(f"buffer_store_dwordx4 v[12:15], v8, {WS}, s48 offen offset:{j*1024} sc1")
    k.e("s_waitcnt vmcnt(3)")
    k.lab(sk)
    k.stamp(1)
    k.e("s_mov_b32 s98, 0")
    k.e("s_mov_b32 s48, 0")
    lp = k.u("ldloop")
    k.lab(lp)
    w8 = k.u("w8"); w9 = k.u("w9"); wd = k.u("wd")
    k.e("s_cmp_eq_u32 s48, 7")
    k.e(f"s_cbranch_scc1 {wd}")
    if OPT['pf3']:
        nw3 = k.u("nw3")
        k.e(f"s_sub_u32 s49, s48, {OPT['pf3']+1}")
        k.e("s_cmp_lt_u32 s49, 2")
        k.e(f"s_cbranch_scc0 {nw3}")
        k.e("s_cmp_eq_u32 s98, 1")
        k.e(f"s_cbranch_scc0 {nw3}")
        k.e("s_waitcnt vmcnt(9)")
        k.e(f"s_branch {wd}")
        k.lab(nw3)
    if OPT['pf4']:
        w10 = k.u("w10"); nw = k.u("nw10")
        k.e(f"s_sub_u32 s49, s48, {OPT['pf4']+1}")
        k.e("s_cmp_lt_u32 s49, 2")
        k.e(f"s_cbranch_scc0 {nw}")
        k.e("s_waitcnt vmcnt(10)")
        k.e(f"s_branch {wd}")
        k.lab(nw)
    if not OPT['tpf']: k.e(f"s_branch {w8}")
    k.e("s_cmp_eq_u32 s48, 0")
    k.e(f"s_cbranch_scc1 {w8}")
    k.e("s_cmp_eq_u32 s48, 1")
    k.e(f"s_cbranch_scc1 {w9}")
    k.e("s_cmp_eq_u32 s48, 12")
    k.e(f"s_cbranch_scc1 {w9}")
    k.e("s_waitcnt vmcnt(10)")
    k.e(f"s_branch {wd}")
    k.lab(w9)
    k.e("s_waitcnt vmcnt(9)")
    k.e(f"s_branch {wd}")
    k.lab(w8)
    k.e("s_waitcnt vmcnt(8)")
    k.lab(wd)
    k.e("s_barrier")
    if OPT['stagest']:
        k.e("s_memrealtime s[90:91]"); k.e("s_waitcnt lgkmcnt(0)")
        k.e("s_mov_b32 m0, s48")
        k.e("s_nop 0")
        k.e("v_writelane_b32 v252, s90, m0")
    sk = k.u("nonn")
    k.e("s_cmp_eq_u32 s48, 7")
    k.e(f"s_cbranch_scc0 {sk}")
    read_nonce(k, 8, 9)
    k.lab(sk)
    sk = k.u("nosig2")
    k.e(f"s_cmp_eq_u32 s48, {OPT['sigs']}")
    k.e(f"s_cbranch_scc0 {sk}")
    k.e("s_cmp_eq_u32 s26, 0")
    k.e(f"s_cbranch_scc0 {sk}")
    k.e(f"s_lshl_b32 s49, s{S_G}, 12")
    k.e(f"s_lshl_b32 s50, s{S_RB}, 7")
    k.e("s_add_u32 s49, s49, s50")
    k.e(f"s_add_u32 s49, s49, {F1B}")
    store_flag(k, 49)
    k.lab(sk)
    if OPT['late9']:
        sk6 = k.u("skip6")
        k.e("s_cmp_eq_u32 s48, 6")
        k.e(f"s_cbranch_scc1 {sk6}")
    issue_stage(k)
    if OPT['late9']: k.lab(sk6)
    if OPT['pf3']:
        skp = k.u("nopf3")
        k.e(f"s_cmp_eq_u32 s48, {OPT['pf3']}")
        k.e(f"s_cbranch_scc0 {skp}")
        k.e("s_cmp_eq_u32 s26, 3")
        k.e(f"s_cbranch_scc0 {skp}")
        k.e(f"s_cmp_lt_u32 s{S_G}, 3")
        k.e(f"s_cbranch_scc0 {skp}")
        srd(k, SRD_T, P_AW, 512*3072)
        k.e(f"s_and_b32 s49, s{S_RB}, 7")
        k.e("s_mul_i32 s49, s49, 3")
        k.e(f"s_add_u32 s49, s49, s{S_G}")
        k.e("s_lshl_b32 s49, s49, 6")
        k.e("v_add_u32 v5, s49, v0")
        k.e("v_mul_u32_u24 v6, 21846, v5")
        k.e("v_lshrrev_b32 v6, 16, v6")
        k.e("v_mul_u32_u24 v7, 3, v6")
        k.e("v_sub_u32 v7, v5, v7")
        k.e("v_mul_u32_u24 v6, 3072, v6")
        k.e("v_lshlrev_b32 v7, 10, v7")
        k.e("v_add3_u32 v5, v6, v7, 384") if False else None
        k.e("v_add_u32 v5, v6, v7")
        k.e("v_add_u32 v5, 384, v5")
        k.e(f"buffer_load_dword v6, v5, {sr(SRD_T,4)}, 0 offen")
        k.e("s_mov_b32 s98, 1")
        k.lab(skp)
    if OPT['pf4']:
        skp = k.u("nopf4")
        k.e(f"s_cmp_eq_u32 s48, {OPT['pf4']}")
        k.e(f"s_cbranch_scc0 {skp}")
        pf0(k)
        k.lab(skp)
    sk = k.u("nosig")
    k.e("s_cmp_eq_u32 s48, 7")
    k.e(f"s_cbranch_scc0 {sk}")
    if OPT['late9']: issue_stage(k)
    k.e("s_waitcnt vmcnt(16)")
    k.e("s_barrier")
    k.lab(sk)

    if OPT['tpf']:
        sk = k.u("nopfi")
        k.e("s_cmp_le_u32 s48, 10")
        k.e(f"s_cbranch_scc0 {sk}")
        pf_issue(k)
        k.lab(sk)
    k.e("s_add_u32 s48, s48, 1")
    k.e("s_cmp_lt_u32 s48, 12")
    k.e(f"s_cbranch_scc1 {lp}")
    k.e(f"s_sub_u32 s48, s{S_RB}, 4")
    k.e("v_add_u32 v8, s48, v0")
    k.e("v_max_i32 v8, 0, v8")
    k.e("v_cmp_gt_u32 vcc, 4, v0")
    k.e(f"s_lshl_b32 s49, s{S_G}, 12")
    k.e(f"s_add_u32 s49, s49, {F1B}")
    k.e("v_cndmask_b32 v8, 0, v8, vcc")
    k.e("v_lshlrev_b32 v8, 7, v8")
    k.e("v_add_u32 v8, s49, v8")
    k.e("s_cmp_eq_u32 s26, 0")
    k.e("s_cselect_b32 s62, 31, 15")
    k.e("s_mov_b32 s63, 0")
    k.e("s_waitcnt vmcnt(8)");  k.e("s_barrier")
    k.e("s_mov_b64 exec, s[62:63]")
    k.e(f"buffer_load_dword v9, v8, {WS}, 0 offen sc1")
    k.e("s_mov_b64 exec, -1")
    issue_stage(k)
    k.e("s_waitcnt vmcnt(9)");  k.e("s_barrier")
    lp = k.u("f1b_lp"); ok = k.u("f1b_ok")
    k.e("s_mov_b64 exec, s[62:63]")
    k.e("s_waitcnt vmcnt(8)")
    k.e(f"v_cmp_ne_u32 vcc, s{S_NONCE}, v9")
    k.e("s_nop 1")
    k.e(f"s_cbranch_vccz {ok}")
    poll_flags(k, 8, 9, "f1b")
    k.lab(ok)
    k.e("s_mov_b64 exec, -1")
    k.stamp(5)
    if OPT['remdma']:
        sk = k.u("norem"); jn = k.u("remj")
        k.e(f"s_cmp_eq_u32 s{S_RB}, 0")
        k.e(f"s_cbranch_scc1 {sk}")
        k.e("v_lshlrev_b32 v8, 4, v0")
        k.e(f"s_lshl_b32 s48, s{S_G}, 2")
        k.e("s_add_u32 s48, s48, s26")
        k.e("s_lshl_b32 s48, s48, 6")
        k.e(f"s_lshl_b32 s49, s{S_RB}, 1")
        k.e("s_sub_u32 s49, s49, 8")
        k.e("s_lshl_b32 s52, s26, 13")
        def rem(base_g, base_l):
            for j in range(8):
                k.e(f"s_add_i32 s50, s49, {j}")
                k.e("s_max_i32 s50, s50, 0")
                k.e("s_add_u32 s50, s50, s48")
                k.e("s_lshl_b32 s50, s50, 10")
                if base_g: k.e(f"s_add_u32 s50, s50, {base_g}")
                k.e(f"s_add_u32 s51, s52, {base_l + j*1024}")
                k.e("s_mov_b32 m0, s51")
                k.e("s_nop 0")
                k.e(f"buffer_load_dwordx4 v8, {WS}, s50 offen sc1 lds")
        rem(KB_G, RK_L)
        if OPT['vpre']:
            VS = [86, 87, 88, 89, 92, 93, 94, 100]
            for j in range(8):
                k.e(f"s_add_i32 s50, s49, {j}")
                k.e("s_max_i32 s50, s50, 0")
                k.e("s_add_u32 s50, s50, s48")
                k.e("s_lshl_b32 s50, s50, 10")
                k.e(f"s_add_u32 s{VS[j]}, s50, {VB_G}")
            k.e(f"s_add_u32 s51, s52, {RV_L}")
            k.e("s_waitcnt vmcnt(8)");  k.e("s_barrier")
            for j in range(8):
                k.e("s_mov_b32 m0, s51")
                k.e("s_add_u32 s51, s51, 1024")
                k.e(f"buffer_load_dwordx4 v8, {WS}, s{VS[j]} offen sc1 lds")
        else:
            k.e("s_waitcnt vmcnt(8)");  k.e("s_barrier")
            rem(VB_G, RV_L)
        k.e("s_barrier")
        k.e("s_waitcnt vmcnt(0)")
        k.e(f"s_branch {jn}")
        k.lab(sk)
        k.e("s_waitcnt vmcnt(0)");  k.e("s_barrier")
        k.e("s_barrier")
        k.lab(jn)
    else:
        sk = k.u("norem"); jn = k.u("remj")
        k.e(f"s_cmp_eq_u32 s{S_RB}, 0")
        k.e(f"s_cbranch_scc1 {sk}")
        k.e("v_lshlrev_b32 v8, 4, v0")
        k.e(f"s_lshl_b32 s48, s{S_G}, 2")
        k.e("s_add_u32 s48, s48, s26")
        k.e("s_lshl_b32 s48, s48, 6")
        k.e(f"s_lshl_b32 s49, s{S_RB}, 1")
        k.e("s_sub_u32 s49, s49, 8")
        for j in range(8):
            k.e(f"s_add_i32 s50, s49, {j}")
            k.e("s_max_i32 s50, s50, 0")
            k.e("s_add_u32 s50, s50, s48")
            k.e("s_lshl_b32 s50, s50, 10")
            k.e(f"s_add_u32 s51, s50, {VB_G}")
            k.e(f"buffer_load_dwordx4 {vr(16+4*j,4)}, v8, {WS}, s50 offen sc1")
            k.e(f"buffer_load_dwordx4 {vr(48+4*j,4)}, v8, {WS}, s51 offen sc1")
        k.e("s_waitcnt vmcnt(16)");  k.e("s_barrier")
        k.e("s_lshl_b32 s48, s26, 13")
        k.e("v_add_u32 v9, s48, v8")
        for j in range(8):
            k.e(f"s_waitcnt vmcnt({14-2*j})")
            k.e(f"ds_write_b128 v9, {vr(16+4*j,4)} offset:{RK_L + j*1024}")
            k.e(f"ds_write_b128 v9, {vr(48+4*j,4)} offset:{RV_L + j*1024}")
            if j == 3: k.e("s_barrier")
        k.e(f"s_branch {jn}")
        k.lab(sk)
        k.e("s_waitcnt vmcnt(0)");  k.e("s_barrier")
        k.e("s_barrier")
        k.lab(jn)
    k.e("s_waitcnt lgkmcnt(0)")
    k.stamp(6)
    if OPT['ldprio']: k.e("s_setprio 0")
    k.e("s_barrier")
    k.stamp(4)

AQ_, AKF, AS, AMD, AMF, ACN, AP, AVB, AO = 4, 8, [44, 60, 76], 216, 232, 124, 140, [148, 156], 176
AM, AT = 192, 193
AK0, AK7, AK8, AV0, AV7, AV8 = 196, 197, 198, 199, 200, 201
KVR = 208
VPOLL, VPA, VPOLL2 = 248, 249, 253

def v_reads(k, buf, vaddr, off):
    k.e("s_mov_b64 exec, s[64:65]")
    k.e(f"ds_read_b128 {vr(AVB[buf],4)}, v{vaddr} offset:{off}")
    k.e(f"ds_read_b128 {vr(AVB[buf]+4,4)}, v{vaddr} offset:{off+512}")
    k.e("s_mov_b64 exec, -1")

def sig_f1a(k):
    sk = k.u("nosigA")
    k.e(f"s_cmp_lt_u32 s{S_WAVE}, 2")
    k.e(f"s_cbranch_scc0 {sk}")
    if OPT.get('sigst'): k.stamp(5)
    k.e("s_waitcnt vmcnt(0)")
    if OPT.get('sigst'): k.stamp(6)
    k.e(f"s_lshl_b32 s52, s{S_G}, 13")
    k.e(f"s_lshl_b32 s53, s{S_RB}, 1")
    k.e(f"s_add_u32 s53, s53, s{S_WAVE}")
    k.e("s_lshl_b32 s53, s53, 7")
    k.e("s_add_u32 s52, s52, s53")
    k.e(f"s_add_u32 s52, s52, {F1A}")
    store_flag(k, 52)
    k.lab(sk)

def attn_setup(k):
    k.e(f"s_and_b32 s86, s{S_WAVE}, 1")
    k.e(f"s_lshr_b32 s87, s{S_WAVE}, 1")
    k.e(f"v_lshlrev_b32 v{AT}, 4, v0")
    k.e("s_lshl_b32 s88, s86, 10")
    k.e("s_lshl_b32 s89, s87, 13")
    k.e("s_lshl_b32 s92, s87, 11")
    k.e("s_add_u32 s93, s89, s88")
    k.e(f"v_add_u32 v{AK0}, s93, v{AT}")
    k.e(f"s_add_u32 s94, s89, {7*1024}")
    k.e(f"s_add_u32 s100, s92, {OK_L}")
    k.e("s_cmp_eq_u32 s86, 0")
    k.e("s_cselect_b32 s94, s94, s100")
    k.e(f"v_add_u32 v{AK7}, s94, v{AT}")
    k.e("s_add_u32 s100, s100, s88")
    k.e(f"v_add_u32 v{AK8}, s100, v{AT}")
    k.e("v_lshrrev_b32 v202, 5, v0")
    k.e("v_lshlrev_b32 v202, 8, v202")
    k.e("v_and_b32 v203, 15, v0")
    k.e("v_lshlrev_b32 v203, 4, v203")
    k.e("v_add_u32 v202, v202, v203")
    k.e(f"s_add_u32 s94, s93, {RV_L}")
    k.e(f"v_add_u32 v{AV0}, s94, v202")
    k.e(f"s_add_u32 s94, s89, {RV_L + 7*1024}")
    k.e(f"s_add_u32 s100, s92, {OV_L}")
    k.e("s_cmp_eq_u32 s86, 0")
    k.e("s_cselect_b32 s94, s94, s100")
    k.e(f"v_add_u32 v{AV7}, s94, v202")
    k.e("s_add_u32 s100, s100, s88")
    k.e(f"v_add_u32 v{AV8}, s100, v202")
    k.e("v_and_b32 v202, 31, v0")
    k.e("v_lshrrev_b32 v203, 5, v0")
    k.e("v_lshlrev_b32 v203, 2, v203")
    k.e("v_sub_u32 v202, v202, v203")
    k.e("v_cvt_f32_i32 v202, v202")
    k.e(f"v_mov_b32 v203, {lit(BIG)}")
    for i in range(16):
        ci = 8*(i >> 2) + (i & 3)
        k.e(f"v_fmaak_f32 v{AMD+i}, v202, v203, {lit((0.5-ci)*BIG)}")
    for i in range(16): k.e(f"v_min_f32 v{AMF+i}, -v{AMD+i}, 0")
    for i in range(16): k.e(f"v_min_f32 v{AMD+i}, 0, v{AMD+i}")
    k.e(f"v_mov_b32 v{AM}, 0xff7fffff")
    k.e(f"s_lshl_b32 s87, s{S_G}, 13")
    k.e(f"s_add_u32 s87, s87, {F1A}")
    k.e(f"v_lshlrev_b32 v{VPA}, 7, v0")
    k.e(f"v_add_u32 v{VPA}, s87, v{VPA}")

def wo_setup(k):
    k.e("s_and_b32 s50, s2, 7")
    k.e("s_lshr_b32 s51, s2, 3")
    k.e("s_lshr_b32 s52, s50, 2")
    k.e("s_lshr_b32 s53, s51, 2")
    k.e("s_cmp_eq_u32 s52, 0")
    k.e(f"s_cselect_b32 s{SRD_WO}, s{P_AWO}, s{P_BWO}")
    k.e(f"s_cselect_b32 s{SRD_WO+1}, s{P_AWO+1}, s{P_BWO+1}")
    k.e(f"s_mov_b32 s{SRD_WO+2}, 0x{512*1024:x}")
    k.e(f"s_mov_b32 s{SRD_WO+3}, 0x20000")
    k.e("v_lshrrev_b32 v204, 3, v0")
    k.e("v_and_b32 v205, 7, v0")
    k.e("v_and_b32 v206, 2, v204")
    k.e("v_lshlrev_b32 v206, 1, v206")
    k.e("v_xor_b32 v206, v205, v206")
    k.e("v_lshlrev_b32 v206, 4, v206")
    k.e(f"s_sub_u32 s54, s{S_WAVE}, 4")
    if OPT['wosplit']:
        a = OPT['wosplit']
        starts = [0, a, 2*a, 2*a + (16 - a)]
        tab = sum(v << (8*i) for i, v in enumerate(starts))
        k.e("s_lshl_b32 s55, s54, 3")
        k.e(f"s_lshr_b32 s55, 0x{tab:x}, s55")
        k.e("s_and_b32 s55, s55, 0xff")
        k.e("s_lshl_b32 s50, s55, 4")
    else:
        k.e("s_lshl_b32 s50, s54, 7")
    k.e("v_add_u32 v204, s50, v204")
    k.e("v_lshlrev_b32 v204, 10, v204")
    k.e("s_lshl_b32 s96, s50, 7")
    k.e("s_lshl_b32 s50, s53, 7")
    k.e("v_add3_u32 v205, v204, v206, s50")
    k.e(f"s_add_u32 s96, s96, {WO_L}")
    k.e("s_mov_b32 s97, 0")

def wo_pair(k):
    k.e("s_mov_b32 m0, s96")
    k.e("s_add_u32 s98, s97, 7168")
    k.e(f"buffer_load_dwordx4 v205, {sr(SRD_WO,4)}, s97 offen lds")
    k.e(f"buffer_load_dwordx4 v205, {sr(SRD_WO,4)}, s98 offen offset:1024 lds")
    k.e("s_add_u32 s96, s96, 2048")
    k.e("s_add_u32 s97, s97, 16384")

KVL = 0
def kv_loads(k):
    k.stamp(14)
    k.e(f"s_lshl_b32 s50, s{S_G}, 13")
    k.e(f"s_add_u32 s50, s50, {KVACC}")
    k.e("s_add_u32 s51, s50, 4096")
    k.e(f"buffer_load_dwordx4 {vr(KVR,4)}, v1, {WS}, s50 offen sc1")
    k.e(f"buffer_load_dwordx4 {vr(KVR+4,4)}, v1, {WS}, s50 offen offset:1024 sc1")
    k.e(f"buffer_load_dwordx4 {vr(164,4)}, v1, {WS}, s51 offen sc1")
    k.e(f"buffer_load_dwordx4 {vr(168,4)}, v1, {WS}, s51 offen offset:1024 sc1")
    k.e("v_lshrrev_b32 v202, 5, v0")
    k.e("v_lshlrev_b32 v202, 12, v202")
    k.e("v_and_b32 v203, 31, v0")
    k.e("v_lshl_add_u32 v202, v203, 2, v202")
    k.e(f"buffer_load_dword v172, v202, {WS}, s50 offen offset:2048 sc1")

def attention(k):
    k.c("attention: i = w&1 (s26), hh = w>>1 (s27), qt = s48, s99 = kv loads issued flag")
    if OPT['lprio'] >= 0:
        sk = k.u("lp")
        k.e(f"s_cmp_ge_u32 s{S_WAVE}, 4")
        k.e(f"s_cbranch_scc0 {sk}")
        k.e("s_setprio 1")
        k.lab(sk)
    k.e(f"s_and_b32 s26, s{S_WAVE}, 1")
    k.e(f"s_lshr_b32 s27, s{S_WAVE}, 1")
    k.e(f"s_lshl_b32 s48, s{S_RB}, 1")
    k.e("s_add_u32 s48, s48, s26")
    k.e("v_lshlrev_b32 v1, 4, v0")
    k.e("s_lshl_b32 s49, s27, 11")
    k.e("s_lshl_b32 s50, s26, 10")
    k.e("s_add_u32 s49, s49, s50")
    k.e(f"s_add_u32 s49, s49, {Q_L}")
    k.e("v_add_u32 v2, s49, v1")
    k.e(f"ds_read_b128 {vr(AQ_,4)}, v2")
    def kaddr(p): return (AK0, RK_L + p*1024) if p <= 6 else ((AK7, 0) if p == 7 else (AK8, 0))
    def vaddr(p): return (AV0, p*1024) if p <= 6 else ((AV7, 0) if p == 7 else (AV8, 0))
    for p in range(9):
        a, o = kaddr(p); k.e(f"ds_read_b128 {vr(AKF+4*p,4)}, v{a} offset:{o}")
    k.e("s_mov_b32 s64, 0xffff")
    k.e("s_mov_b32 s65, 0xffff")
    k.e("s_mov_b32 s99, 0")
    for b in range(2):
        for j in range(8): k.e(f"v_mov_b32 v{AVB[b]+j}, 0x3f803f80")
    def wo_block():
        sk = k.u("nowo")
        k.e(f"s_cmp_ge_u32 s{S_WAVE}, 4")
        k.e(f"s_cbranch_scc0 {sk}")
        wo_setup(k)
        if OPT['wosplit']:
            a = OPT['wosplit']
            for j in range(a): wo_pair(k)
            k.e(f"s_cmp_ge_u32 s{S_WAVE}, 6")
            k.e(f"s_cbranch_scc0 {sk}")
            for j in range(16 - 2*a): wo_pair(k)
        else:
            for j in range(8): wo_pair(k)
        k.lab(sk)
    if OPT['wopos'] == 0: wo_block()
    Q = vr(AQ_, 4)
    def qk(dst, p, c): k.e(f"{MF} {vr(dst,16)}, {vr(AKF+4*p,4)}, {Q}, {c}")
    def c1(p): return vr(AMF,16) if p == 0 else (vr(AMD,16) if p == 8 else "0")
    def c2(p): return vr(AMF,16) if p == 0 else (vr(AMD,16) if p == 8 else vr(ACN,16))
    k.e("s_sub_i32 s95, 8, s48")
    k.e("s_max_i32 s95, s95, 0")
    P1 = [k.u(f"p1_{p}") for p in range(9)]
    P2 = [k.u(f"p2_{p}") for p in range(9)]
    E1 = [k.u(f"e1_{p}") for p in range(9)]
    E2 = [k.u(f"e2_{p}") for p in range(9)]
    k.e("s_waitcnt lgkmcnt(0)")
    for p in range(1, 9):
        k.e(f"s_cmp_eq_u32 s95, {p}")
        k.e(f"s_cbranch_scc1 {E1[p]}")
    qk(AS[0], 0, c1(0)); qk(AS[1], 1, c1(1)); qk(AS[2], 2, c1(2))
    k.e("s_nop 9")
    for p in range(9):
        k.lab(P1[p])
        s_ = AS[p % 3]
        for j in range(8): k.e(f"v_max3_f32 v{AM}, v{s_+2*j}, v{s_+2*j+1}, v{AM}")
        if p + 3 <= 8: qk(s_, p + 3, c1(p + 3))
    k.e(f"v_mov_b32 v{AT}, v{AM}")
    k.e("s_nop 1")
    k.e(f"v_permlane32_swap_b32 v{AM}, v{AT}")
    k.e(f"v_max_f32 v{AM}, v{AM}, v{AT}")
    k.e(f"v_sub_f32 v{AM}, 0, v{AM}")
    for i in range(16): k.e(f"v_mov_b32 v{ACN+i}, v{AM}")
    MRG = OPT['merge']
    if not MRG:
        for i in range(16): k.e(f"v_add_f32 v{AMD+i}, v{AMD+i}, v{AM}")
    if OPT['wopos'] == 1: wo_block()
    k.stamp(8)
    k.e("s_cmp_eq_u32 s95, 0")
    sh = k.u("short2")
    k.e(f"s_cbranch_scc0 {sh}")
    if MRG:
        k.e("s_mov_b32 s62, 0xffff")
        for i in range(16): k.e(f"v_ashrrev_i32 v{AMF+i}, 31, v{AMD+i}")
        v_reads(k, 1, *vaddr(1))
        qk(AS[1], 1, c2(1))
        for j in range(8): k.e(f"v_bfi_b32 v{AMD+j}, s62, v{AMF+2*j}, v{AMF+2*j+1}")
    else:
        for i in range(16): k.e(f"v_add_f32 v{AMF+i}, v{AMF+i}, v{AM}")
        v_reads(k, 0, *vaddr(0))
        k.e("s_nop 0")
        qk(AS[0], 0, c2(0))
        k.e("s_nop 6")
    mrgblk = k.u("merged"); afterm = k.u("afterm")
    for p in range(9):
        if MRG and p == 0: continue
        k.lab(P2[p])
        cur = AS[p % 2]; nxt = AS[(p + 1) % 2]
        if MRG and p == 8:
            k.e("s_cmp_eq_u32 s95, 0")
            k.e(f"s_cbranch_scc1 {mrgblk}")
        if p < 8:
            if MRG and p == 7:
                sk7 = k.u("m7"); j7 = k.u("j7")
                k.e("s_cmp_eq_u32 s95, 0")
                k.e(f"s_cbranch_scc0 {sk7}")
                qk(nxt, 8, vr(ACN,16)); qk(AS[2], 0, vr(ACN,16))
                k.e(f"s_branch {j7}")
                k.lab(sk7)
                qk(nxt, 8, vr(AMD,16))
                k.lab(j7)
            else:
                qk(nxt, p + 1, c2(p + 1))
            v_reads(k, (p + 1) % 2, *vaddr(p + 1))
        hooks = k.u("nohook")
        if p == OPT['lprio']: k.e("s_setprio 0")
        if p == OPT['sigp']:
            k.e("s_cmp_eq_u32 s95, 0")
            k.e(f"s_cbranch_scc0 {hooks}")
            sig_f1a(k)
            k.lab(hooks)
        if p >= OPT['pollp'] and (p - OPT['pollp']) % OPT['pollstep'] == 0:
            hk = k.u("hk")
            vp = VPOLL if (p - OPT['pollp']) % 2 == 0 else VPOLL2
            k.e(f"s_cmp_eq_u32 s{S_WAVE}, 4")
            k.e(f"s_cbranch_scc0 {hk}")
            k.e("s_cmp_eq_u32 s95, 0")
            k.e(f"s_cbranch_scc0 {hk}")
            k.e("s_cmp_eq_u32 s99, 0")
            k.e(f"s_cbranch_scc0 {hk}")
            if p >= OPT['pollp'] + 2:
                got = k.u("got")
                k.e(f"s_waitcnt vmcnt({1 if OPT['pollstep'] == 1 else 0})")
                k.e(f"v_cmp_ne_u32 vcc, s{S_NONCE}, v{vp}")
                k.e("s_nop 1")
                k.e(f"s_cbranch_vccz {got}")
                k.e(f"buffer_load_dword v{vp}, v{VPA}, {WS}, 0 offen sc1")
                k.e(f"s_branch {hk}")
                k.lab(got)
                kv_loads(k)
                k.e("s_mov_b32 s99, 1")
            else:
                k.e(f"buffer_load_dword v{vp}, v{VPA}, {WS}, 0 offen sc1")
            k.lab(hk)
        for j in range(16): k.e(f"v_exp_f32 v{cur+j}, v{cur+j}")
        for j in range(8): k.e(f"v_cvt_pk_bf16_f32 v{AP+j}, v{cur+2*j}, v{cur+2*j+1}")
        k.e(f"s_waitcnt lgkmcnt({2 if p < 8 else 0})")
        vb = AVB[p % 2]
        k.e(f"{MF} {vr(AO,16)}, {vr(vb,4)}, {vr(AP,4)}, {'0' if p == (1 if MRG else 0) else vr(AO,16)}")
        k.e("s_nop 0")
        k.e(f"{MF} {vr(AO,16)}, {vr(vb+4,4)}, {vr(AP+4,4)}, {vr(AO,16)}")
    done = k.u("attdone")
    k.e(f"s_branch {done}")
    if MRG:
        k.lab(mrgblk)
        SD, SF = AS[0], AS[2]
        v_reads(k, 1, *vaddr(0))
        hk = k.u("hkm"); got = k.u("gotm")
        vp = VPOLL if (8 - OPT['pollp']) % 2 == 0 else VPOLL2
        k.e(f"s_cmp_eq_u32 s{S_WAVE}, 4")
        k.e(f"s_cbranch_scc0 {hk}")
        k.e("s_cmp_eq_u32 s99, 0")
        k.e(f"s_cbranch_scc0 {hk}")
        k.e("s_waitcnt vmcnt(1)")
        k.e(f"v_cmp_ne_u32 vcc, s{S_NONCE}, v{vp}")
        k.e("s_nop 1")
        k.e(f"s_cbranch_vccnz {hk}")
        kv_loads(k)
        k.e("s_mov_b32 s99, 1")
        k.lab(hk)
        k.e("s_nop 3")
        for i in range(16): k.e(f"v_bfi_b32 v{SD+i}, v{AMF+i}, v{SF+i}, v{SD+i}")
        for j in range(16): k.e(f"v_exp_f32 v{SD+j}, v{SD+j}")
        for j in range(8): k.e(f"v_cvt_pk_bf16_f32 v{AP+j}, v{SD+2*j}, v{SD+2*j+1}")
        for j in range(8): k.e(f"v_and_b32 v{SF+j}, v{AP+j}, v{AMD+j}")
        for j in range(8): k.e(f"v_xor_b32 v{AP+j}, v{AP+j}, v{SF+j}")
        k.e("s_waitcnt lgkmcnt(0)")
        k.e(f"{MF} {vr(AO,16)}, {vr(AVB[1],4)}, {vr(SF,4)}, {vr(AO,16)}")
        k.e(f"{MF} {vr(AO,16)}, {vr(AVB[1]+4,4)}, {vr(SF+4,4)}, {vr(AO,16)}")
        k.e(f"{MF} {vr(AO,16)}, {vr(AVB[0],4)}, {vr(AP,4)}, {vr(AO,16)}")
        k.e(f"{MF} {vr(AO,16)}, {vr(AVB[0]+4,4)}, {vr(AP+4,4)}, {vr(AO,16)}")
        k.e(f"s_branch {done}")
    for p in range(1, 9):
        k.lab(E1[p])
        for q in range(p, min(p + 3, 9)): qk(AS[q % 3], q, c1(q))
        k.e("s_nop 10")
        k.e(f"s_branch {P1[p]}")
    k.lab(sh)
    if MRG:
        for i in range(16): k.e(f"v_add_f32 v{AMD+i}, v{AMD+i}, v{AM}")
    for i in range(16): k.e(f"v_mov_b32 v{AO+i}, 0")
    sig_f1a(k)
    sk = k.u("shpoll")
    k.e(f"s_cmp_eq_u32 s{S_WAVE}, 4")
    k.e(f"s_cbranch_scc0 {sk}")
    k.e(f"buffer_load_dword v{VPOLL}, v{VPA}, {WS}, 0 offen sc1")
    k.lab(sk)
    for p in range(1, 9):
        k.e(f"s_cmp_eq_u32 s95, {p}")
        k.e(f"s_cbranch_scc1 {E2[p]}")
    k.e(f"s_branch {E2[8]}")
    for p in range(1, 9):
        k.lab(E2[p])
        qk(AS[p % 2], p, c2(p))
        v_reads(k, p % 2, *vaddr(p))
        k.e("s_nop 6")
        k.e(f"s_branch {P2[p]}")
    k.lab(done)

def apart(k):
    sk = k.u("kvdone")
    k.e(f"s_cmp_eq_u32 s{S_WAVE}, 4")
    k.e(f"s_cbranch_scc0 {sk}")
    k.e("s_cmp_eq_u32 s99, 1")
    k.e(f"s_cbranch_scc1 {sk}")
    poll_flags(k, VPA, VPOLL, "f1a")
    kv_loads(k)
    k.lab(sk)
    k.e("s_nop 8")
    k.e(f"v_rcp_f32 v{AT}, v{AO+8}")
    k.e("s_nop 0")
    for j in range(8): k.e(f"v_mul_f32 v{AO+j}, v{AO+j}, v{AT}")
    cvt8(k, AP, AO)
    k.e(f"s_lshl_b32 s49, s{S_G}, 2")
    k.e("s_add_u32 s49, s49, s27")
    k.e("s_lshl_b32 s50, s48, 5")
    k.e("s_add_u32 s49, s49, s50")
    k.e("s_lshl_b32 s49, s49, 10")
    k.e(f"s_add_u32 s50, s49, {O_G + (2<<20)}")
    k.e(f"buffer_store_dwordx4 {vr(AP,4)}, v1, {WS}, s50 offen sc1")
    k.e("s_barrier")
    sk = k.u("nokvw")
    k.e(f"s_cmp_eq_u32 s{S_WAVE}, 4")
    k.e(f"s_cbranch_scc0 {sk}")
    k.e("s_waitcnt vmcnt(1)")
    k.e(f"ds_write_b128 v1, {vr(KVR,4)} offset:{KVL}")
    k.e(f"ds_write_b128 v1, {vr(KVR+4,4)} offset:{KVL+1024}")
    k.e(f"ds_write_b128 v1, {vr(164,4)} offset:{KVL+4096}")
    k.e(f"ds_write_b128 v1, {vr(168,4)} offset:{KVL+4096+1024}")
    k.e("v_lshrrev_b32 v202, 5, v0")
    k.e("v_lshlrev_b32 v202, 12, v202")
    k.e("v_and_b32 v203, 31, v0")
    k.e("v_lshl_add_u32 v202, v203, 2, v202")
    k.e(f"ds_write_b32 v202, v172 offset:{KVL+2048}")
    k.e("s_waitcnt lgkmcnt(0)")
    k.lab(sk)
    k.e("s_lshr_b32 s51, s27, 1")
    k.e("s_lshl_b32 s51, s51, 12")
    k.e("s_and_b32 s52, s27, 1")
    k.e("s_lshl_b32 s52, s52, 6")
    k.e("s_add_u32 s51, s51, s52")
    k.e("v_lshrrev_b32 v203, 5, v0")
    k.e("v_and_b32 v202, 15, v0")
    k.e("v_lshl_add_u32 v202, v203, 5, v202")
    k.e("v_lshlrev_b32 v202, 2, v202")
    k.e("v_add_u32 v202, s51, v202")
    k.e("v_lshlrev_b32 v203, 4, v203")
    k.e("v_add_u32 v203, s51, v203")
    k.e("s_lshl_b32 s51, s27, 11")
    k.e("s_lshl_b32 s50, s26, 10")
    k.e("s_add_u32 s51, s51, s50")
    k.e(f"s_add_u32 s51, s51, {PQ_L}")
    k.e("v_add_u32 v2, s51, v1")
    k.e(f"ds_read_b128 {vr(AQ_,4)}, v2")
    k.e("s_barrier")
    k.stamp(15)
    k.e("s_mov_b64 exec, s[64:65]")
    for t in range(8): k.e(f"ds_read_b32 v{KVR+t}, v202 offset:{KVL + t*256}")
    k.e("s_not_b64 exec, s[64:65]")
    k.e(f"ds_read_b128 {vr(KVR,4)}, v203 offset:{KVL+2048}")
    k.e(f"ds_read_b128 {vr(KVR+4,4)}, v203 offset:{KVL+2048+32}")
    k.e("s_mov_b64 exec, -1")
    k.e("s_waitcnt lgkmcnt(0)")
    cvt8(k, 8, KVR)
    k.e("s_nop 1")
    k.e(f"{MF} {vr(44,16)}, {vr(8,4)}, {vr(AQ_,4)}, 0")
    k.e(f"s_mov_b32 s62, {lit(1e-6)}")
    k.e("s_nop 10")
    k.e("v_add_f32 v12, s62, v52")
    k.e("v_rcp_f32 v12, v12")
    k.e("s_nop 0")
    for j in range(8): k.e(f"v_mul_f32 v{44+j}, v{44+j}, v12")
    cvt8(k, 16, 44)
    k.e(f"s_add_u32 s50, s49, {O_G}")
    k.e(f"buffer_store_dwordx4 {vr(16,4)}, v1, {WS}, s50 offen sc1")

def p3(k):
    k.c("P3: out tile 128x64")
    k.e("s_and_b32 s48, s2, 7")
    k.e("s_lshr_b32 s49, s2, 3")
    k.e("s_lshr_b32 s66, s48, 2")
    k.e("s_and_b32 s67, s48, 3")
    k.e("s_lshl_b32 s67, s67, 2")
    k.e("s_and_b32 s50, s49, 3")
    k.e("s_add_u32 s67, s67, s50")
    k.e("s_lshr_b32 s68, s49, 2")
    k.e("s_lshl_b32 s48, s67, 11")
    k.e(f"s_add_u32 s48, s48, {F2}")
    k.e("v_and_b32 v8, 15, v0")
    k.e("v_lshlrev_b32 v8, 7, v8")
    k.e("v_add_u32 v8, s48, v8")
    OF, ACC3, WF = 8+4, 144, [176, 184]
    VA0, VA1 = 192, 193
    k.e("v_bfe_u32 v2, v0, 2, 2")
    k.e("v_and_b32 v3, 3, v0")
    k.e("v_bfe_u32 v4, v0, 4, 1")
    k.e("v_lshrrev_b32 v5, 5, v0")
    k.e("v_lshlrev_b32 v5, 2, v5")
    k.e("v_add_u32 v5, v5, v2")
    k.e("v_lshlrev_b32 v5, 7, v5")
    k.e("v_and_b32 v6, 1, v3")
    k.e("v_lshlrev_b32 v6, 1, v6")
    k.e("v_add_u32 v6, v6, v4")
    k.e("v_and_b32 v7, 2, v2")
    k.e("v_lshlrev_b32 v7, 1, v7")
    k.e("v_xor_b32 v6, v6, v7")
    k.e("v_lshlrev_b32 v6, 4, v6")
    k.e("v_lshrrev_b32 v3, 1, v3")
    k.e("v_lshlrev_b32 v3, 3, v3")
    k.e("v_add3_u32 v5, v5, v6, v3")
    SLOWG = OPT['slowg']
    VB0 = 194
    k.e(f"v_add_u32 v{VB0}, {WO_L}, v5")
    k.e("s_lshl_b32 s48, s67, 2")
    k.e(f"s_add_u32 s48, s48, s{S_WAVE}")
    k.e("s_lshl_b32 s49, s48, 15")
    k.e("s_lshl_b32 s50, s66, 21")
    k.e("s_add_u32 s49, s49, s50")
    k.e(f"s_add_u32 s49, s49, {O_G}")
    k.e("v_lshlrev_b32 v1, 4, v0")
    GR = [86, 87, 88, 89, 92, 93, 94, 100]
    NOSLOW = SLOWG == 8
    if NOSLOW:
        for u in range(8):
            k.e(f"s_add_u32 s52, s68, {u}")
            k.e(f"s_and_b32 s{GR[u]}, s52, 7")
    k.e("s_cmp_eq_u32 s68, 7")
    k.e("s_cselect_b32 s51, 0, s68")
    for u in range(0 if NOSLOW else 7):
        k.e(f"s_add_u32 s52, s51, {u}")
        k.e("s_cmp_ge_u32 s52, 7")
        k.e("s_cselect_b32 s53, 7, 0")
        k.e("s_sub_u32 s52, s52, s53")
        k.e(f"s_cmp_ge_u32 s52, {SLOWG}")
        k.e("s_cselect_b32 s53, 1, 0")
        k.e(f"s_add_u32 s{GR[u]}, s52, s53")
    if not NOSLOW: k.e(f"s_mov_b32 s{GR[7]}, {SLOWG}")
    k.e(f"s_lshr_b32 s52, s{S_WAVE}, 1")
    k.e("s_and_b32 s52, s52, 1")
    k.e("s_lshl_b32 s52, s52, 3")
    k.e(f"s_add_u32 s52, s52, {SLOWG}")
    k.e("s_lshl_b32 s52, s52, 7")
    k.e("s_lshl_b32 s53, s67, 11")
    k.e("s_add_u32 s52, s52, s53")
    k.e(f"s_add_u32 s52, s52, {F2}")
    k.e("v_mov_b32 v10, s52")
    sk = k.u("nof2poll")
    k.e(f"s_cmp_eq_u32 s{S_WAVE}, 0")
    k.e(f"s_cbranch_scc0 {sk}")
    k.e(f"s_mov_b64 exec, 0x{0xffff if NOSLOW else 0xffff & ~((1 << SLOWG) | (1 << (8 + SLOWG))):x}")
    poll_flags(k, 8, 9, "f2")
    k.e("s_mov_b64 exec, -1")
    k.lab(sk)
    k.e("s_barrier")
    k.e(f"s_cmp_ge_u32 s{S_WAVE}, 4")
    k.e("s_cbranch_scc1 L_fin")
    k.stamp(12)
    def oload(hd):
        u = hd >> 2
        if hd % 4 == 0 or True:
            k.e(f"s_lshl_b32 s52, s{GR[u]}, 12")
            k.e("s_add_u32 s52, s52, s49")
        k.e(f"buffer_load_dwordx4 {vr(OF+4*hd,4)}, v1, {WS}, s52 offen offset:{(hd%4)*1024} sc1")
    for hd in range(16): oload(hd)
    def setva(u):
        k.e(f"s_lshl_b32 s52, s{GR[u]}, 13")
        k.e(f"v_add_u32 v{VA0}, s52, v{VB0}")
        k.e(f"v_xor_b32 v{VA1}, 64, v{VA0}")
    def wreads(buf, j):
        for b in range(2):
            for s2 in range(2):
                k.e(f"ds_read_b64_tr_b16 {vr(WF[buf]+4*b+2*s2,2)}, v{VA0+b} offset:{j*2048 + s2*1024}")
    def slow_loads():
        for hd in range(28, 32): oload(hd)
        k.e("s_mov_b32 s54, 1")
    PI, PC = OPT['p3poll'], 24
    k.e("s_mov_b32 s54, 0")
    setva(0)
    wreads(0, 0)
    for hd in range(32 if NOSLOW else 0):
        if hd < 31:
            nj = (hd + 1) % 4
            if nj == 0: setva((hd + 1)//4)
            wreads((hd + 1) % 2, nj)
        last = min(31, 15 + hd)
        k.e(f"s_waitcnt vmcnt({last - hd}) lgkmcnt({4 if hd < 31 else 0})")
        if 16 + hd <= 31: oload(16 + hd)
        for b in range(2):
            k.e(f"{MF} {vr(ACC3+16*b,16)}, {vr(WF[hd%2]+4*b,4)}, {vr(OF+4*hd,4)}, {'0' if hd == 0 else vr(ACC3+16*b,16)}")
    for hd in range(0 if NOSLOW else 32):
        if hd == 28:
            sk = k.u("slowok")
            k.e("s_cmp_eq_u32 s54, 1")
            k.e(f"s_cbranch_scc1 {sk}")
            k.e("s_mov_b64 exec, 1")
            poll_flags(k, 10, 9, "f2s")
            k.e("s_mov_b64 exec, -1")
            slow_loads()
            k.lab(sk)
        if hd < 31:
            nj = (hd + 1) % 4
            if nj == 0: setva((hd + 1)//4)
            wreads((hd + 1) % 2, nj)
        if hd < 28:
            last = min(27, 15 + hd)
            n = last - hd + (1 if hd > PI else 0)
            if hd >= PC: n = None
        else:
            n = 31 - hd
        if hd == PC:
            k.e(f"s_waitcnt vmcnt(0) lgkmcnt(4)")
            sk = k.u("notyet")
            k.e("s_mov_b64 exec, 1")
            k.e(f"v_cmp_ne_u32 vcc, s{S_NONCE}, v9")
            k.e("s_mov_b64 exec, -1")
            k.e("s_nop 0")
            k.e(f"s_cbranch_vccnz {sk}")
            slow_loads()
            k.lab(sk)
        elif n is None:
            k.e("s_waitcnt lgkmcnt(4)")
        else:
            k.e(f"s_waitcnt vmcnt({n}) lgkmcnt({4 if hd < 31 else 0})")
        if 16 + hd <= 27: oload(16 + hd)
        if hd == PI:
            k.e("s_mov_b64 exec, 1")
            k.e(f"buffer_load_dword v9, v10, {WS}, 0 offen sc1")
            k.e("s_mov_b64 exec, -1")
        if OPT.get('p3st') and hd in (0, 8, 31):
            k.stamp({0: 5, 8: 6, 31: 8}[hd])
        for b in range(2):
            k.e(f"{MF} {vr(ACC3+16*b,16)}, {vr(WF[hd%2]+4*b,4)}, {vr(OF+4*hd,4)}, {'0' if hd == 0 else vr(ACC3+16*b,16)}")
    srd(k, SRD_T, P_OUT, 4 << 20)
    k.e("v_and_b32 v2, 31, v0")
    k.e("s_lshl_b32 s49, s48, 5")
    k.e("v_add_u32 v2, s49, v2")
    k.e("v_lshlrev_b32 v2, 11, v2")
    k.e("v_lshrrev_b32 v3, 5, v0")
    k.e("v_lshlrev_b32 v3, 5, v3")
    k.e("s_lshl_b32 s49, s66, 10")
    k.e("s_lshl_b32 s50, s68, 7")
    k.e("s_add_u32 s49, s49, s50")
    k.e("v_add3_u32 v2, v2, v3, s49")
    k.e("s_nop 3")
    for b in range(2):
        for j in range(8): k.e(f"v_cvt_pk_bf16_f32 v{12+8*b+j}, v{ACC3+16*b+2*j}, v{ACC3+16*b+2*j+1}")
    for b in range(2):
        fl = {0: "", 1: " sc1", 2: " nt", 3: " sc0 sc1"}[OPT['outf']]
        k.e(f"buffer_store_dwordx4 {vr(12+8*b,4)}, v2, {sr(SRD_T,4)}, 0 offen offset:{64*b}{fl}")
        k.e(f"buffer_store_dwordx4 {vr(16+8*b,4)}, v2, {sr(SRD_T,4)}, 0 offen offset:{64*b+16}{fl}")

HDR = """; Kernarg layout for this problem (72 bytes, ptrs only, base s[0:1]):
;   offset   0: d_in[0] A_x  shape=(1, 2048, 512) dtype=bfloat16 strides=(2097152, 1024, 2) contiguous=True
;   offset   8: d_in[1] A_wqkv  shape=(512, 1536) dtype=bfloat16 strides=(3072, 2) contiguous=True
;   offset  16: d_in[2] A_wo  shape=(512, 512) dtype=bfloat16 strides=(1024, 2) contiguous=True
;   offset  24: d_in[3] B_x  shape=(1, 2048, 512) dtype=bfloat16 strides=(2097152, 1024, 2) contiguous=True
;   offset  32: d_in[4] B_wqkv  shape=(512, 1536) dtype=bfloat16 strides=(3072, 2) contiguous=True
;   offset  40: d_in[5] B_wo  shape=(512, 512) dtype=bfloat16 strides=(1024, 2) contiguous=True
;   offset  48: d_out     shape=(1, 2048, 1024) dtype=bfloat16 (2 bytes/elem)
;   offset  56: d_debug   256 bytes
;   offset  64: d_ws      268435456 bytes workspace
;
; One persistent launch, 256 workgroups (one per CU) x 8 waves.  Workgroup = (64-row block rb, 4-head group g).
;   P1  QKV GEMMs (branch B tile, then branch A tile): waves 4-7 stream x / W through a 4-slot LDS ring (LDS-DMA),
;       waves 0,1 accumulate k,v and waves 2,3 accumulate q.  B's K/V fragments go to d_ws for the neighbouring row
;       blocks, A's phi(k)^T v and sum phi(k) are accumulated in d_ws with f32 atomics.
;   P2  sliding-window attention, one (32-query tile, head) unit per wave (two passes: true row max, then exp / PV),
;       then the linear-attention output of the same unit.
;   P3  output projection, 128x64 tile per workgroup.
; Hand-offs between workgroups: write-through (sc1) stores, drained, then a flag word holding a per-launch nonce.
; @launch grid=(256,1,1) block=(512,1,1) lds=163840
.amdgcn_target "amdgcn-amd-amdhsa--gfx950"
.text
.globl KNAME
.p2align 8
.type KNAME,@function
""".replace("KNAME", KNAME)

TAIL = """.section .rodata,"a"
.p2align 6
.amdhsa_kernel KNAME
  .amdhsa_next_free_vgpr 256
  .amdhsa_next_free_sgpr 102
  .amdhsa_accum_offset 256
  .amdhsa_group_segment_fixed_size 0
  .amdhsa_kernarg_size 72
  .amdhsa_user_sgpr_count 2
  .amdhsa_user_sgpr_kernarg_segment_ptr 1
  .amdhsa_system_sgpr_workgroup_id_x 1
.end_amdhsa_kernel
""".replace("KNAME", KNAME)

def build(stamps=False):
    k = gen(stamps)
    body = "\n".join(k.L)
    body = body.replace("PF_BACK", f"((L_pc - {KNAME}) & 0xffffff00)")
    pad = "\n    .fill 2048, 4, 0xbf800000\n"
    hdr, tail = HDR, TAIL
    if OPT['extra']:
        hdr = hdr.replace("; @launch grid=(256,1,1) block=(512,1,1) lds=163840", f"; @launch kernel={KNAME} grid=(256,1,1) block=(512,1,1) lds=163840\n; @launch kernel=nop_kernel grid=(1,1,1) block=(64,1,1) lds=0")
        pad += ".globl nop_kernel\n.p2align 8\n.type nop_kernel,@function\nnop_kernel:\n    s_endpgm\n"
        tail += """.p2align 6
.amdhsa_kernel nop_kernel
  .amdhsa_next_free_vgpr 8
  .amdhsa_next_free_sgpr 16
  .amdhsa_accum_offset 8
  .amdhsa_group_segment_fixed_size 0
  .amdhsa_kernarg_size 72
  .amdhsa_user_sgpr_count 2
  .amdhsa_user_sgpr_kernarg_segment_ptr 1
  .amdhsa_system_sgpr_workgroup_id_x 1
.end_amdhsa_kernel
"""
    return hdr + body + pad + "\n" + tail

if __name__ == "__main__":
    out = sys.argv[1] if len(sys.argv) > 1 else "out.s"
    stamps = "stamps" in sys.argv[2:]
    for a in sys.argv[2:]:
        if "=" in a:
            kk, vv = a.split("="); OPT[kk] = int(vv)
    txt = build(stamps)
    open(out, "w").write(txt)
    import hz
    pr = hz.check(txt)
    import subprocess
    r = subprocess.run(["clang", "-x", "assembler", "-target", "amdgcn-amd-amdhsa", "-mcpu=gfx950", "-c", out, "-o", "_chk.o"], capture_output=True, text=True)
    print("hazards:", len(pr), "lines:", txt.count("\n"), "asm:", "ok" if r.returncode == 0 else r.stderr)
```

```python
import sys, math, struct

KNAME = "concat_heads__linear_attn_block__sliding_block__prompt_kernel"

KB_G   = 0
VB_G   = 2 << 20
O_G    = 4 << 20
KVACC  = 8 << 20
FL     = (8 << 20) + (64 << 10)
F1B    = FL
F1A    = FL + (32 << 10)
F2     = FL + (96 << 10)
STAMP  = 9 << 20
SLOT   = 32768
OK_L, OV_L, Q_L, PQ_L = 131072, 139264, 147456, 155648
NONCE_L = PQ_L
RK_L, RV_L, WO_L = 0, 32768, 65536
CS = 0.25 * math.log2(math.e)
LOG2E = math.log2(math.e)
BIG = 1.0e28
SPIN_MAX = 2000000
OPT = dict(rot=4, pfB=0, pfA=1, dbgstamps=0, stagest=0, pfs=1, tpf=0, p3st=0, map=2, outf=2, extra=0, sigs=9, pf0=0, late9=0, remdma=1, m16=0, npre=16, pf4=0, pkphi=1, prio=0, kvprio=1, pollp=4, sigp=3, fixdur=0, ldprio=0, wopos=1, sigst=0, wosplit=0, lprio=-1, slowg=3, p3poll=14, pf3=0, x16st=0, sleep=1, rotA=-1, bfi=1, vpre=1, x16pos=2, merge=0, pollstep=1, cpf=3)

def f2u(x): return struct.unpack('<I', struct.pack('<f', x))[0]
def lit(x): return "0x%08x" % f2u(x)

class K:
    def __init__(self, stamps=False):
        self.L = []; self.stamps = stamps; self.uid = 0; self.inp1 = False
    def e(self, s):
        if self.inp1 and OPT['m16'] and s.startswith("v_mfma_f32_32x32x16_bf16"):
            import re
            m = re.match(r"v_mfma_f32_32x32x16_bf16 v\[(\d+):\d+\], (v\[\d+:\d+\]), (v\[\d+:\d+\]), (.*)", s)
            d = int(m.group(1)); c = m.group(4)
            for h in range(2):
                cc = "0" if c == "0" else f"v[{d+4*h}:{d+4*h+3}]"
                self.L.append(f"    v_mfma_f32_16x16x32_bf16 v[{d+4*h}:{d+4*h+3}], {m.group(2)}, {m.group(3)}, {cc}")
            return
        self.L.append("    " + s)
    def c(self, s): self.L.append("    ; " + s)
    def lab(self, s): self.L.append(s + ":")
    def u(self, p):
        self.uid += 1; return f"L_{p}_{self.uid}"
    def stamp(self, k):
        if not self.stamps: return
        self.e("s_memrealtime s[70:71]")
        self.e("s_waitcnt lgkmcnt(0)")
        self.e(f"s_mov_b32 s{72+k}, s70")

def vr(a, n): return f"v[{a}:{a+n-1}]"
def sr(a, n): return f"s[{a}:{a+n-1}]"
MF = "v_mfma_f32_32x32x16_bf16"

S_WAVE, S_RB, S_G, S_NONCE = 22, 23, 24, 25
SRD_WS, SRD_X, SRD_W, SRD_T, SRD_WO = 28, 32, 36, 40, 44
P_AX, P_AW, P_AWO, P_BX, P_BW, P_BWO, P_OUT, P_DBG, P_WS = 4, 6, 8, 10, 12, 14, 16, 18, 20
WS = sr(SRD_WS, 4)

def srd(k, dst, ptr, size):
    k.e(f"s_mov_b32 s{dst}, s{ptr}")
    k.e(f"s_mov_b32 s{dst+1}, s{ptr+1}")
    k.e(f"s_mov_b32 s{dst+2}, 0x{size:x}")
    k.e(f"s_mov_b32 s{dst+3}, 0x20000")

def spin_guard(k, sreg, exit_label):
    k.e(f"s_add_u32 s{sreg}, s{sreg}, 1")
    k.e(f"s_cmp_gt_u32 s{sreg}, {SPIN_MAX}")
    k.e(f"s_cbranch_scc1 {exit_label}")

def poll_flags(k, vaddr, vtmp, name, first_issued=False, sleep=1):
    lp = k.u(name + "_poll"); ex = k.u(name + "_done"); chk = k.u(name + "_chk")
    k.e("s_mov_b32 s60, 0")
    if first_issued: k.e(f"s_branch {chk}")
    k.lab(lp)
    k.e(f"buffer_load_dword v{vtmp}, v{vaddr}, {WS}, 0 offen sc1")
    k.lab(chk)
    spin_guard(k, 60, ex)
    k.e("s_waitcnt vmcnt(0)")
    k.e(f"v_cmp_ne_u32 vcc, s{S_NONCE}, v{vtmp}")
    k.e("s_nop 1")
    k.e(f"s_cbranch_vccz {ex}")
    if OPT['sleep']: k.e(f"s_sleep {OPT['sleep']}")
    k.e(f"s_branch {lp}")
    k.lab(ex)
    k.e("s_waitcnt vmcnt(0)")

def store_flag(k, soff):
    k.e(f"v_mov_b32 v250, s{S_NONCE}")
    k.e("v_mov_b32 v251, 0")
    k.e("s_mov_b64 exec, 1")
    k.e(f"buffer_store_dword v250, v251, {WS}, s{soff} offen sc1")
    k.e("s_mov_b64 exec, -1")

def cvt8(k, dst, src):
    for j in range(4): k.e(f"v_cvt_pk_bf16_f32 v{dst+j}, v{src+2*j}, v{src+2*j+1}")

def phi(k, r, n, t):
    if not OPT['pkphi']:
        for i in range(0, n, 4):
            for j in range(4): k.e(f"v_mul_f32 v{t+j}, s61, v{r+i+j}")
            for j in range(4): k.e(f"v_exp_f32 v{t+j}, v{t+j} clamp")
            for j in range(4): k.e(f"v_max_f32 v{r+i+j}, 0, v{r+i+j}")
            for j in range(4): k.e(f"v_add_f32 v{r+i+j}, s62, v{r+i+j}")
            for j in range(4): k.e(f"v_add_f32 v{r+i+j}, v{t+j}, v{r+i+j}")
        return
    for i in range(0, n, 8):
        for j in range(0, 8, 2): k.e(f"v_pk_mul_f32 {vr(t+j,2)}, {vr(r+i+j,2)}, s[66:67]")
        for j in range(8): k.e(f"v_exp_f32 v{t+j}, v{t+j} clamp")
        for j in range(8): k.e(f"v_max_f32 v{r+i+j}, 0, v{r+i+j}")
        for j in range(0, 8, 2): k.e(f"v_pk_add_f32 {vr(r+i+j,2)}, {vr(r+i+j,2)}, s[62:63]")
        for j in range(0, 8, 2): k.e(f"v_pk_add_f32 {vr(r+i+j,2)}, {vr(r+i+j,2)}, {vr(t+j,2)}")

ACC = 8
BUF = [72, 88, 104, 120]
VXA, VWA = 136, 140
EP = 144
PFD = 208

def rd_x(k, buf, j, t): k.e(f"ds_read_b128 {vr(BUF[buf]+4*t,4)}, v{VXA+j} offset:{t*4096}")
def rd_w(k, buf, j, p, slot):
    for s2 in range(2):
        k.e(f"ds_read_b64_tr_b16 {vr(BUF[buf]+8+4*slot+2*s2,2)}, v{VWA} offset:{p*8192 + j*2048 + s2*512}")
def reads(k, role, buf, j):
    rd_x(k, buf, j, 0); rd_x(k, buf, j, 1)
    if role == 'kv': rd_w(k, buf, j, 1, 0); rd_w(k, buf, j, 2, 1)
    else: rd_w(k, buf, j, 0, 0)

def kstep(k, role, br, j, first=False, noreads=False, wait=None):
    nb = (j + 2) & 3; b = BUF[j]
    if noreads:
        X = [vr(b,4), vr(b+4,4)]; W = [vr(b+8,4), vr(b+12,4)]
        k.e(f"s_waitcnt lgkmcnt({wait})")
        for t in range(2):
            a = ACC + 16*t
            if role == 'kv' and br == 'A': k.e(f"{MF} {vr(a,16)}, {X[t]}, {W[0]}, {vr(a,16)}")
            else: k.e(f"{MF} {vr(a,16)}, {W[0]}, {X[t]}, {vr(a,16)}")
        if role == 'kv':
            for t in range(2):
                a = ACC + 32 + 16*t
                k.e(f"{MF} {vr(a,16)}, {X[t]}, {W[1]}, {vr(a,16)}")
        return
    X = [vr(b,4), vr(b+4,4)]; W = [vr(b+8,4), vr(b+12,4)]
    def C(a): return "0" if first else vr(a,16)
    if role == 'kv':
        k.e("s_waitcnt lgkmcnt(6)")
        for t in range(2):
            a = ACC + 16*t
            if br == 'B': k.e(f"{MF} {vr(a,16)}, {W[0]}, {X[t]}, {C(a)}")
            else:         k.e(f"{MF} {vr(a,16)}, {X[t]}, {W[0]}, {C(a)}")
            if t == 0: rd_x(k, nb, nb, 0); rd_x(k, nb, nb, 1)
            else: rd_w(k, nb, nb, 1, 0)
        for t in range(2):
            a = ACC + 32 + 16*t
            k.e(f"{MF} {vr(a,16)}, {X[t]}, {W[1]}, {C(a)}")
            if t == 0: rd_w(k, nb, nb, 2, 1)
    else:
        k.e("s_waitcnt lgkmcnt(4)")
        for t in range(2):
            a = ACC + 16*t
            k.e(f"{MF} {vr(a,16)}, {W[0]}, {X[t]}, {C(a)}")
            if t == 0: rd_x(k, nb, nb, 0); rd_x(k, nb, nb, 1)
            else: rd_w(k, nb, nb, 0, 0)

def consumer_tile(k, role, br, extra=None):
    lp = k.u("c"+role+br); ex = k.u("cx"+role+br)
    k.inp1 = True
    k.e("s_mov_b32 s48, 0")
    kstep(k, role, br, 0, first=True)
    k.lab(lp)
    k.e("s_add_u32 s49, s49, 1")
    k.e("s_and_b32 s50, s49, 3")
    k.e("s_cmp_eq_u32 s50, 0")
    k.e(f"s_cselect_b32 s50, 0x{(-3*SLOT) & 0xffffffff:x}, s69")
    kstep(k, role, br, 1)
    if extra: extra(k)
    if br == 'A' and role == 'kv':
        sk = k.u("novm")
        k.e(f"s_cmp_eq_u32 s48, {OPT['sigs']-8}")
        k.e(f"s_cbranch_scc0 {sk}")
        k.e("s_waitcnt vmcnt(0)")
        k.lab(sk)
    for j in range(4): k.e(f"v_add_u32 v{VXA+j}, s50, v{VXA+j}")
    k.e(f"v_add_u32 v{VWA}, s50, v{VWA}")
    k.e("s_barrier")
    k.e("s_cmp_lt_u32 s48, 7")
    k.e(f"s_cbranch_scc0 {ex}")
    kstep(k, role, br, 2)
    kstep(k, role, br, 3)
    k.e("s_add_u32 s48, s48, 1")
    kstep(k, role, br, 0)
    k.e(f"s_branch {lp}")
    k.lab(ex)
    n = 6 if role == 'kv' else 4
    kstep(k, role, br, 2, noreads=True, wait=n)
    kstep(k, role, br, 3, noreads=True, wait=0)
    k.inp1 = False

def consumer_setup(k):
    k.e("v_and_b32 v1, 31, v0")
    k.e("v_lshrrev_b32 v2, 5, v0")
    k.e("v_bfe_u32 v3, v0, 1, 3")
    k.e("v_xor_b32 v3, v3, v2")
    k.e("v_lshlrev_b32 v3, 4, v3")
    k.e("v_lshlrev_b32 v1, 7, v1")
    k.e(f"v_add_u32 v{VXA}, v1, v3")
    for j in range(1, 4): k.e(f"v_xor_b32 v{VXA+j}, {j<<5}, v{VXA}")
    k.e("v_bfe_u32 v1, v0, 2, 2")
    k.e("v_and_b32 v2, 3, v0")
    k.e("v_bfe_u32 v3, v0, 4, 1")
    k.e("v_lshrrev_b32 v4, 5, v0")
    k.e("v_lshlrev_b32 v4, 3, v4")
    k.e("v_add_u32 v4, v4, v1")
    k.e("v_lshlrev_b32 v4, 7, v4")
    k.e("v_lshlrev_b32 v3, 1, v3")
    k.e("v_lshrrev_b32 v5, 1, v2")
    k.e("v_add_u32 v3, v3, v5")
    k.e("s_lshl_b32 s48, s27, 2")
    k.e("v_add_u32 v3, s48, v3")
    k.e("v_and_b32 v5, 2, v1")
    k.e("v_lshlrev_b32 v5, 1, v5")
    k.e("v_xor_b32 v3, v3, v5")
    k.e("v_lshlrev_b32 v3, 4, v3")
    k.e("v_and_b32 v2, 1, v2")
    k.e("v_lshlrev_b32 v2, 3, v2")
    k.e("v_add3_u32 v4, v4, v3, v2")
    k.e(f"v_add_u32 v{VWA}, 8192, v4")

def read_nonce(k, va, vb):
    k.e(f"v_mov_b32 v{va}, {NONCE_L}")
    k.e(f"ds_read_b32 v{vb}, v{va}")
    k.e("s_waitcnt lgkmcnt(0)")
    k.e(f"v_readfirstlane_b32 s{S_NONCE}, v{vb}")

def pf_setup(k, pw, px):
    k.e("s_and_b32 s50, s2, 7")
    k.e("s_lshr_b32 s51, s2, 3")
    k.e("v_lshrrev_b32 v5, 2, v0")
    k.e("s_lshl_b32 s52, s51, 4")
    k.e("v_add_u32 v5, s52, v5")
    k.e("v_mul_u32_u24 v5, 3072, v5")
    k.e("v_and_b32 v6, 3, v0")
    k.e("s_lshr_b32 s52, s50, 2")
    k.e("s_lshl_b32 s52, s52, 2")
    k.e("v_add_u32 v6, s52, v6")
    k.e("v_lshlrev_b32 v6, 7, v6")
    k.e("v_add_u32 v5, v5, v6")
    k.e("v_lshlrev_b32 v6, 7, v0")
    k.e("s_and_b32 s52, s50, 3")
    k.e("s_lshl_b32 s52, s52, 9")
    k.e("s_lshl_b32 s53, s51, 4")
    k.e("s_add_u32 s52, s52, s53")
    k.e("s_lshl_b32 s66, s52, 10")
    k.e("s_lshl_b32 s67, s51, 14")
    k.e("s_lshr_b32 s68, s50, 2")

def gen(stamps=False):
    k = K(stamps)
    k.lab(KNAME)
    k.e("s_cmp_ge_u32 s2, 256")
    k.e("s_cbranch_scc1 L_end")
    if stamps: k.e("s_memrealtime s[70:71]")
    if OPT['fixdur']: k.e("s_memrealtime s[100:101]")
    k.e("s_load_dwordx16 s[4:19], s[0:1], 0")
    k.e("s_load_dwordx2 s[20:21], s[0:1], 64")
    k.e("v_lshrrev_b32 v1, 6, v0")
    k.e("v_and_b32 v0, 63, v0")
    k.e(f"v_readfirstlane_b32 s{S_WAVE}, v1")
    k.e("s_and_b32 s26, s2, 7")
    k.e("s_lshr_b32 s27, s2, 3")
    k.e("s_and_b32 s48, s26, 3")
    k.e("s_lshl_b32 s48, s48, 3")
    if OPT['map'] != 1:
        k.e("s_and_b32 s49, s27, 7")
    else:
        k.e("s_lshr_b32 s49, s27, 2")
    k.e(f"s_add_u32 s{S_RB}, s48, s49")
    k.e("s_lshr_b32 s48, s26, 2")
    k.e("s_lshl_b32 s48, s48, 2")
    if OPT['map'] == 0:
        k.e("s_lshr_b32 s49, s27, 3")
    elif OPT['map'] == 2:
        k.e("s_lshr_b32 s49, s27, 3")
        k.e("s_sub_u32 s49, 3, s49")
    elif OPT['map'] >= 3:
        perm = {3: (3, 1, 2, 0), 4: (3, 1, 0, 2), 5: (1, 3, 2, 0)}[OPT['map']]
        tab = sum(v << (4*i) for i, v in enumerate(perm))
        k.e("s_lshr_b32 s49, s27, 3")
        k.e("s_lshl_b32 s49, s49, 2")
        k.e(f"s_lshr_b32 s49, 0x{tab:x}, s49")
        k.e("s_and_b32 s49, s49, 3")
    else:
        k.e("s_and_b32 s49, s27, 3")
    k.e(f"s_add_u32 s{S_G}, s48, s49")
    if OPT['cpf'] >= 3:
        sk = k.u("nocpf")
        k.e(f"s_cmp_eq_u32 s{S_WAVE}, 3")
        k.e(f"s_cbranch_scc0 {sk}")
        k.e(f"s_bfe_u32 s62, s2, 0x{0x30003 if OPT['cpf'] == 3 else 0x20003:x}")
        k.e("s_cmp_eq_u32 s62, 1")
        k.e(f"s_cbranch_scc0 {sk}")
        k.e("s_getpc_b64 s[62:63]")
        k.lab("L_pc")
        k.e("s_and_b32 s62, s62, 0xffffff00")
        k.e("v_lshlrev_b32 v255, 7, v0")
        k.e(f"s_sub_u32 s62, s62, PF_BACK")
        k.e("s_subb_u32 s63, s63, 0")
        for j in range(3):
            k.e("global_load_dword v254, v255, s[62:63]")
            if j < 2: k.e("v_add_u32 v255, 8192, v255")
        k.lab(sk)
    k.e(f"s_cmp_lt_u32 s{S_WAVE}, 4")
    k.e("s_cbranch_scc1 L_consumer")

    loader(k)
    k.e("s_branch L_attn")

    k.lab("L_consumer")
    k.e("s_waitcnt lgkmcnt(0)")
    if OPT['fixdur']: k.e("s_mov_b32 s3, s100")
    if stamps: k.e("s_mov_b32 s72, s70")
    srd(k, SRD_WS, P_WS, 256 << 20)
    srd(k, SRD_T, P_DBG, 256)
    nn = k.u("nononce")
    k.e(f"s_or_b32 s58, s2, s{S_WAVE}")
    k.e("s_cmp_eq_u32 s58, 0")
    k.e(f"s_cbranch_scc0 {nn}")
    k.e("s_memrealtime s[58:59]")
    k.e("v_mov_b32 v2, 0")
    k.e("s_waitcnt lgkmcnt(0)")
    k.e("s_or_b32 s58, s58, 1")
    k.e("v_mov_b32 v3, s58")
    k.e(f"buffer_store_dword v3, v2, {sr(SRD_T,4)}, 0 offen sc1")
    k.lab(nn)
    srd(k, SRD_X, P_AW, 512*3072)
    k.e(f"s_and_b32 s27, s{S_WAVE}, 1")
    consumer_setup(k)
    attn_setup(k)
    k.e("s_mov_b32 s49, 0")
    k.e(f"s_mov_b32 s69, {SLOT}")
    k.e(f"s_cmp_ge_u32 s{S_WAVE}, 2")
    k.e("s_cbranch_scc1 L_qwave")

    k.e("s_barrier")
    k.stamp(1)
    reads(k, 'kv', 0, 0); reads(k, 'kv', 1, 1)
    consumer_tile(k, 'kv', 'B')
    k.stamp(2)
    k.c("B epilogue (kv)")
    read_nonce(k, 2, 3)
    k.e(f"s_lshl_b32 s62, s{S_G}, 2")
    k.e("s_lshl_b32 s63, s27, 1")
    k.e("s_add_u32 s62, s62, s63")
    k.e("s_lshl_b32 s62, s62, 6")
    k.e(f"s_lshl_b32 s63, s{S_RB}, 1")
    k.e("s_add_u32 s62, s62, s63")
    k.e("s_lshl_b32 s62, s62, 10")
    k.e("v_lshlrev_b32 v1, 4, v0")
    k.e("s_lshl_b32 s63, s27, 12")
    k.e(f"s_add_u32 s63, s63, {OK_L}")
    k.e("v_add_u32 v4, s63, v1")
    k.e("v_bfe_u32 v2, v0, 4, 1")
    k.e("v_lshrrev_b32 v3, 5, v0")
    k.e("v_lshlrev_b32 v3, 8, v3")
    k.e("v_and_b32 v5, 15, v0")
    k.e("v_lshlrev_b32 v5, 4, v5")
    k.e("v_add_u32 v3, v3, v5")
    k.e("v_lshlrev_b32 v5, 11, v2")
    k.e("v_add_u32 v5, v5, v3")
    k.e(f"s_add_u32 s63, s63, {OV_L - OK_L}")
    k.e("v_add_u32 v5, s63, v5")
    k.e("v_lshlrev_b32 v2, 16, v2")
    k.e("v_add_u32 v2, v2, v3")
    k.e(f"s_add_u32 s64, s62, {KB_G + 65536}")
    k.e(f"s_add_u32 s65, s62, {VB_G}")
    k.e("s_nop 3")
    for t in range(2):
        KF = EP + 16*t; VF = KF + 8
        cvt8(k, KF, ACC+16*t); cvt8(k, KF+4, ACC+16*t+8)
        cvt8(k, VF, ACC+32+16*t); cvt8(k, VF+4, ACC+32+16*t+8)
        k.e(f"buffer_store_dwordx4 {vr(KF,4)}, v1, {WS}, s62 offen offset:{t*1024} sc1")
        k.e(f"buffer_store_dwordx4 {vr(KF+4,4)}, v1, {WS}, s64 offen offset:{t*1024} sc1")
        k.e(f"buffer_store_dwordx4 {vr(VF,4)}, v2, {WS}, s65 offen offset:{t*1024} sc1")
        k.e(f"buffer_store_dwordx4 {vr(VF+4,4)}, v2, {WS}, s65 offen offset:{t*1024+512} sc1")
        k.e(f"ds_write_b128 v4, {vr(KF,4)} offset:{t*1024}")
        k.e(f"ds_write_b128 v4, {vr(KF+4,4)} offset:{t*1024+2048}")
        k.e(f"ds_write_b128 v5, {vr(VF,4)} offset:{t*1024}")
        k.e(f"ds_write_b128 v5, {vr(VF+4,4)} offset:{t*1024+512}")
    k.stamp(3)
    k.e("s_barrier")
    reads(k, 'kv', 0, 0); reads(k, 'kv', 1, 1)
    consumer_tile(k, 'kv', 'A')
    k.e("s_waitcnt lgkmcnt(0)")
    if OPT.get('x16st'): k.stamp(5)
    if OPT['x16pos'] == 0:
        k.e("s_barrier")
        k.stamp(4)
    k.c("A epilogue (kv)")
    if OPT['kvprio']: k.e("s_setprio 2")
    T = 72
    k.e(f"s_mov_b32 s61, {lit(LOG2E)}")
    k.e(f"s_mov_b32 s62, {lit(1e-6)}")
    k.e("s_mov_b32 s63, s62")
    k.e("s_mov_b32 s66, s61")
    k.e("s_mov_b32 s67, s61")
    PK, VV, ONES = 80, 96, 112
    for j in range(4): k.e(f"v_mov_b32 v{ONES+j}, 0x3f803f80")
    k.e("s_nop 4")
    for t in range(2):
        cvt8(k, VV+8*t, ACC+32+16*t); cvt8(k, VV+8*t+4, ACC+32+16*t+8)
    if OPT['x16pos'] == 1:
        k.e("s_barrier")
        k.stamp(4)
    DKV, DZ = ACC+32, ACC+48
    for t in range(2):
        phi(k, ACC+16*t, 16, T)
        cvt8(k, PK+8*t, ACC+16*t); cvt8(k, PK+8*t+4, ACC+16*t+8)
        k.e("s_nop 1")
        for m in range(2):
            first = (t == 0 and m == 0)
            k.e(f"{MF} {vr(DKV,16)}, {vr(PK+8*t+4*m,4)}, {vr(VV+8*t+4*m,4)}, {'0' if first else vr(DKV,16)}")
            k.e(f"{MF} {vr(DZ,16)}, {vr(ONES,4)}, {vr(PK+8*t+4*m,4)}, {'0' if first else vr(DZ,16)}")
        if OPT['x16pos'] == 2 and t == 0:
            k.e("s_barrier")
            k.stamp(4)
    k.e("s_mov_b32 s64, 0xffff0000")
    k.e("s_mov_b32 s65, 0xffff0000")
    k.e(f"s_lshl_b32 s63, s{S_G}, 1")
    k.e("s_add_u32 s63, s63, s27")
    k.e("s_lshl_b32 s63, s63, 12")
    k.e(f"s_add_u32 s63, s63, {KVACC}")
    k.e("v_lshlrev_b32 v3, 2, v0")
    k.e("v_bfe_i32 v4, v0, 4, 1")
    k.e("s_nop 4")
    RS = 120
    if OPT['bfi']:
        for t in range(8): k.e(f"v_bfi_b32 v{RS+t}, v4, v{DKV+8+t}, v{DKV+t}")
    else:
        for t in range(8): k.e(f"v_cndmask_b32 v{RS+t}, v{DKV+t}, v{DKV+8+t}, s[64:65]")
    for t in range(8): k.e(f"buffer_atomic_add_f32 v{RS+t}, v3, {WS}, s63 offen offset:{t*256}")
    k.e("s_mov_b32 exec_hi, 0")
    k.e(f"buffer_atomic_add_f32 v{DZ}, v3, {WS}, s63 offen offset:2048")
    k.e("s_mov_b64 exec, -1")
    if OPT['kvprio']: k.e("s_setprio 0")
    if OPT['x16pos'] == 3:
        k.e("s_barrier")
        k.stamp(4)
    k.e("s_branch L_e1")

    k.lab("L_qwave")
    k.e("v_mov_b32 v251, 0")
    k.e("s_barrier")
    k.stamp(1)
    reads(k, 'q', 0, 0); reads(k, 'q', 1, 1)
    def pf_extra(k):
        ex = k.u("pfx"); w3 = k.u("pfw3")
        n1 = k.u("nn1"); n2 = k.u("nn2")
        k.e(f"s_cmp_eq_u32 s{S_WAVE}, 2")
        k.e(f"s_cbranch_scc0 {n2}")
        k.e("s_cmp_eq_u32 s48, 1")
        k.e(f"s_cbranch_scc0 {n1}")
        k.e(f"buffer_load_dword v7, v251, {sr(SRD_T,4)}, 0 offen sc1")
        k.lab(n1)
        k.e("s_cmp_eq_u32 s48, 6")
        k.e(f"s_cbranch_scc0 {n2}")
        lp = k.u("np"); npx = k.u("npx"); chk = k.u("npc")
        k.e("s_mov_b32 s60, 0")
        k.e(f"s_branch {chk}")
        k.lab(lp)
        k.e(f"buffer_load_dword v7, v251, {sr(SRD_T,4)}, 0 offen sc1")
        k.lab(chk)
        spin_guard(k, 60, npx)
        k.e("s_waitcnt vmcnt(0)")
        k.e("v_readfirstlane_b32 s58, v7")
        k.e("s_nop 0")
        k.e("s_cmp_eq_u32 s58, 0")
        k.e(f"s_cbranch_scc1 {lp}")
        k.lab(npx)
        k.e("s_waitcnt vmcnt(0)")
        k.e(f"v_mov_b32 v250, {NONCE_L}")
        k.e("ds_write_b32 v250, v7")
        k.lab(n2)
    consumer_tile(k, 'q', 'B', pf_extra)
    k.stamp(2)
    k.c("B epilogue (q)")
    read_nonce(k, 2, 3)
    k.e(f"s_mov_b32 s61, {lit(CS)}")
    k.e("v_lshlrev_b32 v1, 4, v0")
    k.e("s_lshl_b32 s63, s27, 12")
    k.e(f"s_add_u32 s63, s63, {Q_L}")
    k.e("v_add_u32 v4, s63, v1")
    k.e("s_nop 6")
    for t in range(2):
        for i in range(16): k.e(f"v_mul_f32 v{ACC+16*t+i}, s61, v{ACC+16*t+i}")
        QF = EP + 8*t
        cvt8(k, QF, ACC+16*t); cvt8(k, QF+4, ACC+16*t+8)
        k.e(f"ds_write_b128 v4, {vr(QF,4)} offset:{t*1024}")
        k.e(f"ds_write_b128 v4, {vr(QF+4,4)} offset:{t*1024+2048}")
    k.stamp(3)
    k.e("s_barrier")
    reads(k, 'q', 0, 0); reads(k, 'q', 1, 1)
    consumer_tile(k, 'q', 'A')
    k.e("s_waitcnt lgkmcnt(0)")
    if OPT['x16pos'] < 2:
        k.e("s_barrier")
        k.stamp(4)
    k.c("A epilogue (q)")
    k.e(f"s_mov_b32 s61, {lit(LOG2E)}")
    k.e(f"s_mov_b32 s62, {lit(1e-6)}")
    k.e("s_mov_b32 s63, s62")
    k.e("s_mov_b32 s66, s61")
    k.e("s_mov_b32 s67, s61")
    k.e("v_lshlrev_b32 v1, 4, v0")
    k.e("s_lshl_b32 s65, s27, 12")
    k.e(f"s_add_u32 s65, s65, {PQ_L}")
    k.e("v_add_u32 v4, s65, v1")
    k.e("s_nop 6")
    for t in range(2):
        phi(k, ACC+16*t, 16, 72)
        QF = EP + 8*t
        cvt8(k, QF, ACC+16*t); cvt8(k, QF+4, ACC+16*t+8)
        k.e(f"ds_write_b128 v4, {vr(QF,4)} offset:{t*1024}")
        k.e(f"ds_write_b128 v4, {vr(QF+4,4)} offset:{t*1024+2048}")
        if OPT['x16pos'] == 2 and t == 0:
            k.e("s_barrier")
            k.stamp(4)
    k.e("s_waitcnt lgkmcnt(0)")
    if OPT['x16pos'] == 3:
        k.e("s_barrier")
        k.stamp(4)
    k.lab("L_e1")

    k.lab("L_attn")
    if OPT['prio']:
        sk = k.u("prio")
        k.e(f"s_cmp_ge_u32 s{S_WAVE}, 4")
        k.e(f"s_cbranch_scc{0 if OPT['prio'] == 1 else 1} {sk}")
        k.e("s_setprio 1")
        k.lab(sk)
    k.stamp(7)
    attention(k)
    k.stamp(9)
    apart(k)
    k.stamp(10)
    k.e("s_waitcnt vmcnt(0) lgkmcnt(0)")
    k.e("s_barrier")
    k.stamp(11)
    sk = k.u("nof2")
    k.e(f"s_cmp_eq_u32 s{S_WAVE}, 4")
    k.e(f"s_cbranch_scc0 {sk}")
    k.e(f"s_lshr_b32 s48, s{S_RB}, 1")
    k.e("s_lshl_b32 s48, s48, 11")
    k.e(f"s_and_b32 s49, s{S_RB}, 1")
    k.e("s_lshl_b32 s49, s49, 3")
    k.e(f"s_add_u32 s49, s49, s{S_G}")
    k.e("s_lshl_b32 s49, s49, 7")
    k.e("s_add_u32 s48, s48, s49")
    k.e(f"s_add_u32 s48, s48, {F2}")
    store_flag(k, 48)
    k.lab(sk)
    p3(k)
    k.lab("L_fin")
    if OPT['fixdur']:
        lp = k.u("fix")
        k.lab(lp)
        k.e("s_memrealtime s[90:91]")
        k.e("s_waitcnt lgkmcnt(0)")
        k.e("s_sub_u32 s90, s90, s3")
        k.e(f"s_cmp_lt_u32 s90, {OPT['fixdur']}")
        k.e(f"s_cbranch_scc1 {lp}")
    if stamps:
        k.stamp(13)
        k.e(f"s_lshl_b32 s48, s2, 3")
        k.e(f"s_add_u32 s48, s48, s{S_WAVE}")
        k.e("s_lshl_b32 s48, s48, 6")
        k.e(f"s_add_u32 s48, s48, {STAMP}")
        k.e("v_mov_b32 v9, 0")
        for j in range(16):
            k.e(f"v_mov_b32 v8, s{72+j}")
            k.e(f"buffer_store_dword v8, v9, {WS}, s48 offen offset:{4*j}")
            k.e("s_nop 0")
    if stamps and OPT['dbgstamps']:
        srd(k, SRD_T, P_DBG, 256)
        for wg, base in ((8, 1), (200, 8)):
            sk = k.u("nodbg")
            k.e(f"s_cmp_eq_u32 s2, {wg}")
            k.e(f"s_cbranch_scc0 {sk}")
            k.e(f"s_cmp_eq_u32 s{S_WAVE}, 0")
            k.e(f"s_cbranch_scc0 {sk}")
            k.e("v_mov_b32 v9, 0")
            for n, j in enumerate((1, 2, 4, 9, 10, 11, 13)):
                k.e(f"s_sub_u32 s48, s{72+j}, s72")
                k.e("v_mov_b32 v8, s48")
                k.e(f"buffer_store_dword v8, v9, {sr(SRD_T,4)}, 0 offen offset:{4*(base+n)}")
                k.e("s_nop 0")
            k.lab(sk)
    if OPT['stagest']:
        sk = k.u("nost")
        k.e(f"s_cmp_eq_u32 s{S_WAVE}, 4")
        k.e(f"s_cbranch_scc0 {sk}")
        k.e("s_lshl_b32 s48, s2, 8")
        k.e(f"s_add_u32 s48, s48, {STAMP + (1<<19)}")
        k.e("v_lshlrev_b32 v9, 2, v0")
        k.e(f"buffer_store_dword v252, v9, {WS}, s48 offen")
        k.lab(sk)
    k.lab("L_end")
    k.e("s_endpgm")
    return k

def issue_stage(k):
    k.e("s_lshl_b32 s52, s59, 7")
    k.e("s_mul_i32 s53, s59, 196608")
    k.e("s_mov_b32 m0, s51")
    k.e("s_add_u32 s54, s53, 23552")
    k.e(f"buffer_load_dwordx4 v1, {sr(SRD_X,4)}, s52 offen lds")
    k.e(f"buffer_load_dwordx4 v2, {sr(SRD_X,4)}, s52 offen offset:1024 lds")
    for p in range(3):
        k.e(f"s_add_u32 s55, s51, {8192 + p*8192}")
        k.e("s_mov_b32 m0, s55")
        if p: k.e(f"s_add_u32 s56, s53, {p*1024}"); so0 = "s56"
        else: so0 = "s53"; k.e("s_nop 0")
        k.e(f"buffer_load_dwordx4 v3, {sr(SRD_W,4)}, {so0} offen lds")
        if p: k.e(f"s_add_u32 s56, s54, {p*1024}"); so1 = "s56"
        else: so1 = "s54"
        k.e(f"buffer_load_dwordx4 v3, {sr(SRD_W,4)}, {so1} offen offset:1024 lds")
    k.e("s_add_u32 s57, s57, 1")
    k.e("s_add_u32 s59, s59, 1")
    k.e("s_and_b32 s59, s59, 7")
    k.e(f"s_add_u32 s51, s51, {SLOT}")
    k.e("s_and_b32 s58, s57, 3")
    sk = k.u("nowrap")
    k.e("s_cmp_eq_u32 s58, 0")
    k.e(f"s_cbranch_scc0 {sk}")
    k.e(f"s_sub_u32 s51, s51, {4*SLOT}")
    k.lab(sk)
    sk2 = k.u("nosw")
    k.e("s_cmp_eq_u32 s57, 8")
    k.e(f"s_cbranch_scc0 {sk2}")
    srd(k, SRD_X, P_AX, 2 << 20)
    srd(k, SRD_W, P_AW, 512*3072)
    k.e("s_mov_b32 s59, s61")
    k.lab(sk2)

def pf0(k):
    k.e("s_and_b32 s50, s2, 7")
    k.e("s_lshr_b32 s52, s2, 3")
    wx = k.u("pf0x"); ex = k.u("pf0e")
    k.e("s_cmp_lt_u32 s26, 3")
    k.e(f"s_cbranch_scc0 {wx}")
    srd(k, SRD_T, P_AW, 512*3072)
    k.e("v_lshrrev_b32 v5, 2, v0")
    k.e("s_lshl_b32 s53, s52, 4")
    k.e("v_add_u32 v5, s53, v5")
    k.e("v_mul_u32_u24 v5, 3072, v5")
    k.e("v_and_b32 v6, 3, v0")
    k.e("s_lshr_b32 s53, s50, 2")
    k.e("s_lshl_b32 s53, s53, 2")
    k.e("v_add_u32 v6, s53, v6")
    k.e("v_lshlrev_b32 v6, 7, v6")
    k.e("v_add_u32 v5, v5, v6")
    k.e("s_lshl_b32 s53, s26, 10")
    k.e(f"buffer_load_dword v6, v5, {sr(SRD_T,4)}, s53 offen")
    k.e(f"buffer_load_dword v7, v5, {sr(SRD_T,4)}, s53 offen")
    k.e(f"s_branch {ex}")
    k.lab(wx)
    srd(k, SRD_T, P_AX, 2 << 20)
    k.e("s_and_b32 s53, s50, 3")
    k.e("s_lshl_b32 s53, s53, 9")
    k.e("s_lshl_b32 s54, s52, 4")
    k.e("s_add_u32 s53, s53, s54")
    k.e("s_lshl_b32 s53, s53, 10")
    k.e("v_lshlrev_b32 v5, 7, v0")
    k.e(f"buffer_load_dword v6, v5, {sr(SRD_T,4)}, s53 offen")
    k.e("s_add_u32 s53, s53, 8192")
    k.e(f"buffer_load_dword v7, v5, {sr(SRD_T,4)}, s53 offen")
    k.lab(ex)

def pfsetup(k):
    k.e("s_and_b32 s50, s2, 7")
    k.e("s_lshr_b32 s52, s2, 3")
    k.e("s_mov_b32 s66, 1")
    wx = k.u("pfwx"); wo = k.u("pfwo"); ex = k.u("pfex")
    k.e("s_cmp_lt_u32 s26, 2")
    k.e(f"s_cbranch_scc0 {wx}")
    srd(k, SRD_T, P_BW, 512*3072)
    k.e("v_min_u32 v4, 11, v0")
    k.e("v_lshrrev_b32 v5, 2, v4")
    k.e("v_lshlrev_b32 v5, 10, v5")
    k.e("v_and_b32 v4, 3, v4")
    k.e("s_lshr_b32 s53, s50, 2")
    k.e("s_lshl_b32 s53, s53, 2")
    k.e("v_add_u32 v4, s53, v4")
    k.e("v_lshlrev_b32 v4, 7, v4")
    k.e("s_lshl_b32 s53, s52, 1")
    k.e("s_add_u32 s53, s53, s26")
    k.e("s_mul_i32 s53, s53, 3072")
    k.e("v_add3_u32 v4, v4, v5, s53")
    k.e("s_mov_b32 s65, 196608")
    k.e("s_mov_b32 s64, 196608")
    k.e(f"s_branch {ex}")
    k.lab(wx)
    k.e("s_cmp_eq_u32 s26, 2")
    k.e(f"s_cbranch_scc0 {wo}")
    srd(k, SRD_T, P_BX, 2 << 20)
    k.e("v_min_u32 v4, 15, v0")
    k.e("s_and_b32 s53, s50, 3")
    k.e("s_lshl_b32 s53, s53, 9")
    k.e("s_lshl_b32 s54, s52, 4")
    k.e("s_add_u32 s53, s53, s54")
    k.e("v_add_u32 v4, s53, v4")
    k.e("v_lshlrev_b32 v4, 10, v4")
    k.e("s_mov_b32 s65, 128")
    k.e("s_mov_b32 s64, 128")
    k.e(f"s_branch {ex}")
    k.lab(wo)
    k.e("s_lshr_b32 s53, s50, 2")
    k.e("s_cmp_eq_u32 s53, 0")
    k.e(f"s_cselect_b32 s{SRD_T}, s{P_AWO}, s{P_BWO}")
    k.e(f"s_cselect_b32 s{SRD_T+1}, s{P_AWO+1}, s{P_BWO+1}")
    k.e(f"s_mov_b32 s{SRD_T+2}, 0x{512*1024:x}")
    k.e(f"s_mov_b32 s{SRD_T+3}, 0x20000")
    k.e("v_min_u32 v4, 8, v0")
    k.e("v_lshlrev_b32 v4, 7, v4")
    k.e("s_lshl_b32 s53, s52, 14")
    k.e("v_add_u32 v4, s53, v4")
    k.e("s_mov_b32 s65, 1152")
    k.e("s_mov_b32 s64, 0")
    k.lab(ex)

def pf_issue(k):
    sk = k.u("pfsw")
    k.e("s_cmp_eq_u32 s66, 8")
    k.e(f"s_cbranch_scc0 {sk}")
    k.e("s_cmp_lt_u32 s26, 3")
    k.e(f"s_cbranch_scc0 {sk}")
    k.e("s_mov_b32 s64, 0")
    k.e("s_cmp_lt_u32 s26, 2")
    k.e(f"s_cselect_b32 s{SRD_T}, s{P_AW}, s{P_AX}")
    k.e(f"s_cselect_b32 s{SRD_T+1}, s{P_AW+1}, s{P_AX+1}")
    k.lab(sk)
    k.e(f"buffer_load_dword v5, v4, {sr(SRD_T,4)}, s64 offen")
    k.e("s_add_u32 s64, s64, s65")
    k.e("s_add_u32 s66, s66, 1")

def rot_value(k, mode, d):
    if mode == 8:
        k.e(f"s_and_b32 s{d}, s{S_G}, 3"); k.e(f"s_lshl_b32 s{d}, s{d}, 1"); k.e(f"s_add_u32 s{d}, s{d}, s{S_RB}"); k.e(f"s_and_b32 s{d}, s{d}, 7")
    elif mode == 4:
        k.e(f"s_add_u32 s{d}, s{S_G}, s{S_RB}"); k.e(f"s_and_b32 s{d}, s{d}, 3"); k.e(f"s_lshl_b32 s{d}, s{d}, 1")
    elif mode == 2:
        k.e(f"s_add_u32 s{d}, s{S_G}, s{S_RB}"); k.e(f"s_and_b32 s{d}, s{d}, 1"); k.e(f"s_lshl_b32 s{d}, s{d}, 2")
    elif mode == 5:
        k.e(f"s_add_u32 s{d}, s{S_G}, s{S_RB}"); k.e(f"s_and_b32 s{d}, s{d}, 3"); k.e(f"s_lshl_b32 s{d}, s{d}, 1")
        k.e(f"s_bfe_u32 s62, s{S_RB}, 0x10002"); k.e(f"s_add_u32 s{d}, s{d}, s62")
    elif mode == 6:
        k.e(f"s_and_b32 s{d}, s{S_RB}, 3"); k.e(f"s_lshl_b32 s{d}, s{d}, 1")
    elif mode == 7:
        k.e(f"s_lshr_b32 s{d}, s{S_RB}, 1"); k.e(f"s_add_u32 s{d}, s{d}, s{S_G}"); k.e(f"s_and_b32 s{d}, s{d}, 3"); k.e(f"s_lshl_b32 s{d}, s{d}, 1")
    else:
        k.e(f"s_mov_b32 s{d}, 0")

def loader(k):
    if OPT['ldprio']: k.e(f"s_setprio {OPT['ldprio']}")
    k.e(f"s_sub_u32 s26, s{S_WAVE}, 4")
    k.e("v_lshrrev_b32 v4, 3, v0")
    k.e("v_and_b32 v5, 7, v0")
    k.e("v_lshrrev_b32 v6, 1, v4")
    k.e("v_xor_b32 v7, v5, v6")
    k.e("v_lshlrev_b32 v7, 4, v7")
    k.e(f"s_lshl_b32 s48, s{S_RB}, 6")
    k.e("s_lshl_b32 s49, s26, 4")
    k.e("s_add_u32 s48, s48, s49")
    k.e("v_add_u32 v1, s48, v4")
    k.e("v_lshlrev_b32 v1, 10, v1")
    k.e("v_add_u32 v2, 7168, v1")
    k.e("v_add_u32 v1, v1, v7")
    k.e("v_xor_b32 v7, 64, v7")
    k.e("v_add_u32 v2, v2, v7")
    k.e("v_add_u32 v3, s49, v4")
    k.e("v_mul_u32_u24 v3, 3072, v3")
    k.e("v_and_b32 v6, 2, v4")
    k.e("v_lshlrev_b32 v6, 1, v6")
    k.e("v_xor_b32 v6, v5, v6")
    k.e("v_lshlrev_b32 v6, 4, v6")
    k.e(f"s_lshl_b32 s49, s{S_G}, 7")
    k.e("v_add3_u32 v3, v3, v6, s49")
    k.e("s_lshl_b32 s51, s26, 11")
    k.e("s_mov_b32 s57, 0")
    rot_value(k, OPT['rot'], 59)
    k.e("s_waitcnt lgkmcnt(0)")
    if OPT['fixdur']: k.e("s_mov_b32 s3, s100")
    if k.stamps: k.e("s_mov_b32 s72, s70")
    srd(k, SRD_X, P_BX, 2 << 20)
    srd(k, SRD_W, P_BW, 512*3072)
    issue_stage(k)
    rot_value(k, OPT['rotA'] if OPT['rotA'] >= 0 else OPT['rot'], 61)
    if OPT['tpf']:
        pfsetup(k)
        for j in range(4): pf_issue(k)
    else:
        if OPT['pf0']: pf0(k)
        issue_stage(k)
    srd(k, SRD_WS, P_WS, 256 << 20)
    sk = k.u("nopf")
    k.e("s_mov_b32 s60, 0")
    k.e("s_cmp_eq_u32 s26, 3")
    k.e(f"s_cbranch_scc0 {sk}")
    if OPT['cpf'] == 1:
        k.e("s_bfe_u32 s62, s2, 0x30003")
        k.e("s_cmp_eq_u32 s62, 0")
        k.e(f"s_cbranch_scc0 {sk}")
    if OPT['cpf'] >= 2:
        k.e(f"s_branch {sk}")
    k.e("s_getpc_b64 s[62:63]")
    if OPT['cpf'] < 3: k.lab("L_pc")
    k.e("s_and_b32 s62, s62, 0xffffff00")
    k.e("v_lshlrev_b32 v8, 7, v0")
    k.e(f"s_sub_u32 s62, s62, PF_BACK")
    k.e("s_subb_u32 s63, s63, 0")
    k.e("global_load_dword v9, v8, s[62:63]")
    k.e("v_add_u32 v8, 8192, v8")
    k.e("global_load_dword v10, v8, s[62:63]")
    k.e("v_add_u32 v8, 8192, v8")
    k.e("global_load_dword v11, v8, s[62:63]")
    k.e("s_mov_b32 s60, 1")
    k.lab(sk)
    attn_setup(k)
    ny = 4 if OPT['tpf'] else (10 if OPT['pf0'] else 8)
    sk = k.u("w7"); sk2 = k.u("w7b")
    k.e("s_cmp_eq_u32 s60, 1")
    k.e(f"s_cbranch_scc1 {sk}")
    k.e(f"s_waitcnt vmcnt({ny})")
    k.e(f"s_branch {sk2}")
    k.lab(sk)
    k.e(f"s_waitcnt vmcnt({ny+3})")
    k.lab(sk2)
    k.e("s_barrier")
    if OPT['tpf']: issue_stage(k)
    issue_stage(k)
    sk = k.u("nozero")
    k.e(f"s_cmp_eq_u32 s{S_RB}, 0")
    k.e(f"s_cbranch_scc0 {sk}")
    k.e("s_cmp_lt_u32 s26, 2")
    k.e(f"s_cbranch_scc0 {sk}")
    k.e(f"s_lshl_b32 s48, s{S_G}, 1")
    k.e("s_add_u32 s48, s48, s26")
    k.e("s_lshl_b32 s48, s48, 12")
    k.e(f"s_add_u32 s48, s48, {KVACC}")
    for j in range(4): k.e(f"v_mov_b32 v{12+j}, 0")
    k.e("v_lshlrev_b32 v8, 4, v0")
    for j in range(3): k.e(f"buffer_store_dwordx4 v[12:15], v8, {WS}, s48 offen offset:{j*1024} sc1")
    k.e("s_waitcnt vmcnt(3)")
    k.lab(sk)
    k.stamp(1)
    k.e("s_mov_b32 s98, 0")
    k.e("s_mov_b32 s48, 0")
    lp = k.u("ldloop")
    k.lab(lp)
    w8 = k.u("w8"); w9 = k.u("w9"); wd = k.u("wd")
    k.e("s_cmp_eq_u32 s48, 7")
    k.e(f"s_cbranch_scc1 {wd}")
    if OPT['pf3']:
        nw3 = k.u("nw3")
        k.e(f"s_sub_u32 s49, s48, {OPT['pf3']+1}")
        k.e("s_cmp_lt_u32 s49, 2")
        k.e(f"s_cbranch_scc0 {nw3}")
        k.e("s_cmp_eq_u32 s98, 1")
        k.e(f"s_cbranch_scc0 {nw3}")
        k.e("s_waitcnt vmcnt(9)")
        k.e(f"s_branch {wd}")
        k.lab(nw3)
    if OPT['pf4']:
        w10 = k.u("w10"); nw = k.u("nw10")
        k.e(f"s_sub_u32 s49, s48, {OPT['pf4']+1}")
        k.e("s_cmp_lt_u32 s49, 2")
        k.e(f"s_cbranch_scc0 {nw}")
        k.e("s_waitcnt vmcnt(10)")
        k.e(f"s_branch {wd}")
        k.lab(nw)
    if not OPT['tpf']: k.e(f"s_branch {w8}")
    k.e("s_cmp_eq_u32 s48, 0")
    k.e(f"s_cbranch_scc1 {w8}")
    k.e("s_cmp_eq_u32 s48, 1")
    k.e(f"s_cbranch_scc1 {w9}")
    k.e("s_cmp_eq_u32 s48, 12")
    k.e(f"s_cbranch_scc1 {w9}")
    k.e("s_waitcnt vmcnt(10)")
    k.e(f"s_branch {wd}")
    k.lab(w9)
    k.e("s_waitcnt vmcnt(9)")
    k.e(f"s_branch {wd}")
    k.lab(w8)
    k.e("s_waitcnt vmcnt(8)")
    k.lab(wd)
    k.e("s_barrier")
    if OPT['stagest']:
        k.e("s_memrealtime s[90:91]"); k.e("s_waitcnt lgkmcnt(0)")
        k.e("s_mov_b32 m0, s48")
        k.e("s_nop 0")
        k.e("v_writelane_b32 v252, s90, m0")
    sk = k.u("nonn")
    k.e("s_cmp_eq_u32 s48, 7")
    k.e(f"s_cbranch_scc0 {sk}")
    read_nonce(k, 8, 9)
    k.lab(sk)
    sk = k.u("nosig2")
    k.e(f"s_cmp_eq_u32 s48, {OPT['sigs']}")
    k.e(f"s_cbranch_scc0 {sk}")
    k.e("s_cmp_eq_u32 s26, 0")
    k.e(f"s_cbranch_scc0 {sk}")
    k.e(f"s_lshl_b32 s49, s{S_G}, 12")
    k.e(f"s_lshl_b32 s50, s{S_RB}, 7")
    k.e("s_add_u32 s49, s49, s50")
    k.e(f"s_add_u32 s49, s49, {F1B}")
    store_flag(k, 49)
    k.lab(sk)
    if OPT['late9']:
        sk6 = k.u("skip6")
        k.e("s_cmp_eq_u32 s48, 6")
        k.e(f"s_cbranch_scc1 {sk6}")
    issue_stage(k)
    if OPT['late9']: k.lab(sk6)
    if OPT['pf3']:
        skp = k.u("nopf3")
        k.e(f"s_cmp_eq_u32 s48, {OPT['pf3']}")
        k.e(f"s_cbranch_scc0 {skp}")
        k.e("s_cmp_eq_u32 s26, 3")
        k.e(f"s_cbranch_scc0 {skp}")
        k.e(f"s_cmp_lt_u32 s{S_G}, 3")
        k.e(f"s_cbranch_scc0 {skp}")
        srd(k, SRD_T, P_AW, 512*3072)
        k.e(f"s_and_b32 s49, s{S_RB}, 7")
        k.e("s_mul_i32 s49, s49, 3")
        k.e(f"s_add_u32 s49, s49, s{S_G}")
        k.e("s_lshl_b32 s49, s49, 6")
        k.e("v_add_u32 v5, s49, v0")
        k.e("v_mul_u32_u24 v6, 21846, v5")
        k.e("v_lshrrev_b32 v6, 16, v6")
        k.e("v_mul_u32_u24 v7, 3, v6")
        k.e("v_sub_u32 v7, v5, v7")
        k.e("v_mul_u32_u24 v6, 3072, v6")
        k.e("v_lshlrev_b32 v7, 10, v7")
        k.e("v_add3_u32 v5, v6, v7, 384") if False else None
        k.e("v_add_u32 v5, v6, v7")
        k.e("v_add_u32 v5, 384, v5")
        k.e(f"buffer_load_dword v6, v5, {sr(SRD_T,4)}, 0 offen")
        k.e("s_mov_b32 s98, 1")
        k.lab(skp)
    if OPT['pf4']:
        skp = k.u("nopf4")
        k.e(f"s_cmp_eq_u32 s48, {OPT['pf4']}")
        k.e(f"s_cbranch_scc0 {skp}")
        pf0(k)
        k.lab(skp)
    sk = k.u("nosig")
    k.e("s_cmp_eq_u32 s48, 7")
    k.e(f"s_cbranch_scc0 {sk}")
    if OPT['late9']: issue_stage(k)
    k.e("s_waitcnt vmcnt(16)")
    k.e("s_barrier")
    k.lab(sk)

    if OPT['tpf']:
        sk = k.u("nopfi")
        k.e("s_cmp_le_u32 s48, 10")
        k.e(f"s_cbranch_scc0 {sk}")
        pf_issue(k)
        k.lab(sk)
    k.e("s_add_u32 s48, s48, 1")
    k.e("s_cmp_lt_u32 s48, 12")
    k.e(f"s_cbranch_scc1 {lp}")
    k.e(f"s_sub_u32 s48, s{S_RB}, 4")
    k.e("v_add_u32 v8, s48, v0")
    k.e("v_max_i32 v8, 0, v8")
    k.e("v_cmp_gt_u32 vcc, 4, v0")
    k.e(f"s_lshl_b32 s49, s{S_G}, 12")
    k.e(f"s_add_u32 s49, s49, {F1B}")
    k.e("v_cndmask_b32 v8, 0, v8, vcc")
    k.e("v_lshlrev_b32 v8, 7, v8")
    k.e("v_add_u32 v8, s49, v8")
    k.e("s_cmp_eq_u32 s26, 0")
    k.e("s_cselect_b32 s62, 31, 15")
    k.e("s_mov_b32 s63, 0")
    k.e("s_waitcnt vmcnt(8)");  k.e("s_barrier")
    k.e("s_mov_b64 exec, s[62:63]")
    k.e(f"buffer_load_dword v9, v8, {WS}, 0 offen sc1")
    k.e("s_mov_b64 exec, -1")
    issue_stage(k)
    k.e("s_waitcnt vmcnt(9)");  k.e("s_barrier")
    lp = k.u("f1b_lp"); ok = k.u("f1b_ok")
    k.e("s_mov_b64 exec, s[62:63]")
    k.e("s_waitcnt vmcnt(8)")
    k.e(f"v_cmp_ne_u32 vcc, s{S_NONCE}, v9")
    k.e("s_nop 1")
    k.e(f"s_cbranch_vccz {ok}")
    poll_flags(k, 8, 9, "f1b")
    k.lab(ok)
    k.e("s_mov_b64 exec, -1")
    k.stamp(5)
    if OPT['remdma']:
        sk = k.u("norem"); jn = k.u("remj")
        k.e(f"s_cmp_eq_u32 s{S_RB}, 0")
        k.e(f"s_cbranch_scc1 {sk}")
        k.e("v_lshlrev_b32 v8, 4, v0")
        k.e(f"s_lshl_b32 s48, s{S_G}, 2")
        k.e("s_add_u32 s48, s48, s26")
        k.e("s_lshl_b32 s48, s48, 6")
        k.e(f"s_lshl_b32 s49, s{S_RB}, 1")
        k.e("s_sub_u32 s49, s49, 8")
        k.e("s_lshl_b32 s52, s26, 13")
        def rem(base_g, base_l):
            for j in range(8):
                k.e(f"s_add_i32 s50, s49, {j}")
                k.e("s_max_i32 s50, s50, 0")
                k.e("s_add_u32 s50, s50, s48")
                k.e("s_lshl_b32 s50, s50, 10")
                if base_g: k.e(f"s_add_u32 s50, s50, {base_g}")
                k.e(f"s_add_u32 s51, s52, {base_l + j*1024}")
                k.e("s_mov_b32 m0, s51")
                k.e("s_nop 0")
                k.e(f"buffer_load_dwordx4 v8, {WS}, s50 offen sc1 lds")
        rem(KB_G, RK_L)
        if OPT['vpre']:
            VS = [86, 87, 88, 89, 92, 93, 94, 100]
            for j in range(8):
                k.e(f"s_add_i32 s50, s49, {j}")
                k.e("s_max_i32 s50, s50, 0")
                k.e("s_add_u32 s50, s50, s48")
                k.e("s_lshl_b32 s50, s50, 10")
                k.e(f"s_add_u32 s{VS[j]}, s50, {VB_G}")
            k.e(f"s_add_u32 s51, s52, {RV_L}")
            k.e("s_waitcnt vmcnt(8)");  k.e("s_barrier")
            for j in range(8):
                k.e("s_mov_b32 m0, s51")
                k.e("s_add_u32 s51, s51, 1024")
                k.e(f"buffer_load_dwordx4 v8, {WS}, s{VS[j]} offen sc1 lds")
        else:
            k.e("s_waitcnt vmcnt(8)");  k.e("s_barrier")
            rem(VB_G, RV_L)
        k.e("s_barrier")
        k.e("s_waitcnt vmcnt(0)")
        k.e(f"s_branch {jn}")
        k.lab(sk)
        k.e("s_waitcnt vmcnt(0)");  k.e("s_barrier")
        k.e("s_barrier")
        k.lab(jn)
    else:
        sk = k.u("norem"); jn = k.u("remj")
        k.e(f"s_cmp_eq_u32 s{S_RB}, 0")
        k.e(f"s_cbranch_scc1 {sk}")
        k.e("v_lshlrev_b32 v8, 4, v0")
        k.e(f"s_lshl_b32 s48, s{S_G}, 2")
        k.e("s_add_u32 s48, s48, s26")
        k.e("s_lshl_b32 s48, s48, 6")
        k.e(f"s_lshl_b32 s49, s{S_RB}, 1")
        k.e("s_sub_u32 s49, s49, 8")
        for j in range(8):
            k.e(f"s_add_i32 s50, s49, {j}")
            k.e("s_max_i32 s50, s50, 0")
            k.e("s_add_u32 s50, s50, s48")
            k.e("s_lshl_b32 s50, s50, 10")
            k.e(f"s_add_u32 s51, s50, {VB_G}")
            k.e(f"buffer_load_dwordx4 {vr(16+4*j,4)}, v8, {WS}, s50 offen sc1")
            k.e(f"buffer_load_dwordx4 {vr(48+4*j,4)}, v8, {WS}, s51 offen sc1")
        k.e("s_waitcnt vmcnt(16)");  k.e("s_barrier")
        k.e("s_lshl_b32 s48, s26, 13")
        k.e("v_add_u32 v9, s48, v8")
        for j in range(8):
            k.e(f"s_waitcnt vmcnt({14-2*j})")
            k.e(f"ds_write_b128 v9, {vr(16+4*j,4)} offset:{RK_L + j*1024}")
            k.e(f"ds_write_b128 v9, {vr(48+4*j,4)} offset:{RV_L + j*1024}")
            if j == 3: k.e("s_barrier")
        k.e(f"s_branch {jn}")
        k.lab(sk)
        k.e("s_waitcnt vmcnt(0)");  k.e("s_barrier")
        k.e("s_barrier")
        k.lab(jn)
    k.e("s_waitcnt lgkmcnt(0)")
    k.stamp(6)
    if OPT['ldprio']: k.e("s_setprio 0")
    k.e("s_barrier")
    k.stamp(4)

AQ_, AKF, AS, AMD, AMF, ACN, AP, AVB, AO = 4, 8, [44, 60, 76], 216, 232, 124, 140, [148, 156], 176
AM, AT = 192, 193
AK0, AK7, AK8, AV0, AV7, AV8 = 196, 197, 198, 199, 200, 201
KVR = 208
VPOLL, VPA, VPOLL2 = 248, 249, 253

def v_reads(k, buf, vaddr, off):
    k.e("s_mov_b64 exec, s[64:65]")
    k.e(f"ds_read_b128 {vr(AVB[buf],4)}, v{vaddr} offset:{off}")
    k.e(f"ds_read_b128 {vr(AVB[buf]+4,4)}, v{vaddr} offset:{off+512}")
    k.e("s_mov_b64 exec, -1")

def sig_f1a(k):
    sk = k.u("nosigA")
    k.e(f"s_cmp_lt_u32 s{S_WAVE}, 2")
    k.e(f"s_cbranch_scc0 {sk}")
    if OPT.get('sigst'): k.stamp(5)
    k.e("s_waitcnt vmcnt(0)")
    if OPT.get('sigst'): k.stamp(6)
    k.e(f"s_lshl_b32 s52, s{S_G}, 13")
    k.e(f"s_lshl_b32 s53, s{S_RB}, 1")
    k.e(f"s_add_u32 s53, s53, s{S_WAVE}")
    k.e("s_lshl_b32 s53, s53, 7")
    k.e("s_add_u32 s52, s52, s53")
    k.e(f"s_add_u32 s52, s52, {F1A}")
    store_flag(k, 52)
    k.lab(sk)

def attn_setup(k):
    k.e(f"s_and_b32 s86, s{S_WAVE}, 1")
    k.e(f"s_lshr_b32 s87, s{S_WAVE}, 1")
    k.e(f"v_lshlrev_b32 v{AT}, 4, v0")
    k.e("s_lshl_b32 s88, s86, 10")
    k.e("s_lshl_b32 s89, s87, 13")
    k.e("s_lshl_b32 s92, s87, 11")
    k.e("s_add_u32 s93, s89, s88")
    k.e(f"v_add_u32 v{AK0}, s93, v{AT}")
    k.e(f"s_add_u32 s94, s89, {7*1024}")
    k.e(f"s_add_u32 s100, s92, {OK_L}")
    k.e("s_cmp_eq_u32 s86, 0")
    k.e("s_cselect_b32 s94, s94, s100")
    k.e(f"v_add_u32 v{AK7}, s94, v{AT}")
    k.e("s_add_u32 s100, s100, s88")
    k.e(f"v_add_u32 v{AK8}, s100, v{AT}")
    k.e("v_lshrrev_b32 v202, 5, v0")
    k.e("v_lshlrev_b32 v202, 8, v202")
    k.e("v_and_b32 v203, 15, v0")
    k.e("v_lshlrev_b32 v203, 4, v203")
    k.e("v_add_u32 v202, v202, v203")
    k.e(f"s_add_u32 s94, s93, {RV_L}")
    k.e(f"v_add_u32 v{AV0}, s94, v202")
    k.e(f"s_add_u32 s94, s89, {RV_L + 7*1024}")
    k.e(f"s_add_u32 s100, s92, {OV_L}")
    k.e("s_cmp_eq_u32 s86, 0")
    k.e("s_cselect_b32 s94, s94, s100")
    k.e(f"v_add_u32 v{AV7}, s94, v202")
    k.e("s_add_u32 s100, s100, s88")
    k.e(f"v_add_u32 v{AV8}, s100, v202")
    k.e("v_and_b32 v202, 31, v0")
    k.e("v_lshrrev_b32 v203, 5, v0")
    k.e("v_lshlrev_b32 v203, 2, v203")
    k.e("v_sub_u32 v202, v202, v203")
    k.e("v_cvt_f32_i32 v202, v202")
    k.e(f"v_mov_b32 v203, {lit(BIG)}")
    for i in range(16):
        ci = 8*(i >> 2) + (i & 3)
        k.e(f"v_fmaak_f32 v{AMD+i}, v202, v203, {lit((0.5-ci)*BIG)}")
    for i in range(16): k.e(f"v_min_f32 v{AMF+i}, -v{AMD+i}, 0")
    for i in range(16): k.e(f"v_min_f32 v{AMD+i}, 0, v{AMD+i}")
    k.e(f"v_mov_b32 v{AM}, 0xff7fffff")
    k.e(f"s_lshl_b32 s87, s{S_G}, 13")
    k.e(f"s_add_u32 s87, s87, {F1A}")
    k.e(f"v_lshlrev_b32 v{VPA}, 7, v0")
    k.e(f"v_add_u32 v{VPA}, s87, v{VPA}")

def wo_setup(k):
    k.e("s_and_b32 s50, s2, 7")
    k.e("s_lshr_b32 s51, s2, 3")
    k.e("s_lshr_b32 s52, s50, 2")
    k.e("s_lshr_b32 s53, s51, 2")
    k.e("s_cmp_eq_u32 s52, 0")
    k.e(f"s_cselect_b32 s{SRD_WO}, s{P_AWO}, s{P_BWO}")
    k.e(f"s_cselect_b32 s{SRD_WO+1}, s{P_AWO+1}, s{P_BWO+1}")
    k.e(f"s_mov_b32 s{SRD_WO+2}, 0x{512*1024:x}")
    k.e(f"s_mov_b32 s{SRD_WO+3}, 0x20000")
    k.e("v_lshrrev_b32 v204, 3, v0")
    k.e("v_and_b32 v205, 7, v0")
    k.e("v_and_b32 v206, 2, v204")
    k.e("v_lshlrev_b32 v206, 1, v206")
    k.e("v_xor_b32 v206, v205, v206")
    k.e("v_lshlrev_b32 v206, 4, v206")
    k.e(f"s_sub_u32 s54, s{S_WAVE}, 4")
    if OPT['wosplit']:
        a = OPT['wosplit']
        starts = [0, a, 2*a, 2*a + (16 - a)]
        tab = sum(v << (8*i) for i, v in enumerate(starts))
        k.e("s_lshl_b32 s55, s54, 3")
        k.e(f"s_lshr_b32 s55, 0x{tab:x}, s55")
        k.e("s_and_b32 s55, s55, 0xff")
        k.e("s_lshl_b32 s50, s55, 4")
    else:
        k.e("s_lshl_b32 s50, s54, 7")
    k.e("v_add_u32 v204, s50, v204")
    k.e("v_lshlrev_b32 v204, 10, v204")
    k.e("s_lshl_b32 s96, s50, 7")
    k.e("s_lshl_b32 s50, s53, 7")
    k.e("v_add3_u32 v205, v204, v206, s50")
    k.e(f"s_add_u32 s96, s96, {WO_L}")
    k.e("s_mov_b32 s97, 0")

def wo_pair(k):
    k.e("s_mov_b32 m0, s96")
    k.e("s_add_u32 s98, s97, 7168")
    k.e(f"buffer_load_dwordx4 v205, {sr(SRD_WO,4)}, s97 offen lds")
    k.e(f"buffer_load_dwordx4 v205, {sr(SRD_WO,4)}, s98 offen offset:1024 lds")
    k.e("s_add_u32 s96, s96, 2048")
    k.e("s_add_u32 s97, s97, 16384")

KVL = 0
def kv_loads(k):
    k.stamp(14)
    k.e(f"s_lshl_b32 s50, s{S_G}, 13")
    k.e(f"s_add_u32 s50, s50, {KVACC}")
    k.e("s_add_u32 s51, s50, 4096")
    k.e(f"buffer_load_dwordx4 {vr(KVR,4)}, v1, {WS}, s50 offen sc1")
    k.e(f"buffer_load_dwordx4 {vr(KVR+4,4)}, v1, {WS}, s50 offen offset:1024 sc1")
    k.e(f"buffer_load_dwordx4 {vr(164,4)}, v1, {WS}, s51 offen sc1")
    k.e(f"buffer_load_dwordx4 {vr(168,4)}, v1, {WS}, s51 offen offset:1024 sc1")
    k.e("v_lshrrev_b32 v202, 5, v0")
    k.e("v_lshlrev_b32 v202, 12, v202")
    k.e("v_and_b32 v203, 31, v0")
    k.e("v_lshl_add_u32 v202, v203, 2, v202")
    k.e(f"buffer_load_dword v172, v202, {WS}, s50 offen offset:2048 sc1")

def attention(k):
    k.c("attention: i = w&1 (s26), hh = w>>1 (s27), qt = s48, s99 = kv loads issued flag")
    if OPT['lprio'] >= 0:
        sk = k.u("lp")
        k.e(f"s_cmp_ge_u32 s{S_WAVE}, 4")
        k.e(f"s_cbranch_scc0 {sk}")
        k.e("s_setprio 1")
        k.lab(sk)
    k.e(f"s_and_b32 s26, s{S_WAVE}, 1")
    k.e(f"s_lshr_b32 s27, s{S_WAVE}, 1")
    k.e(f"s_lshl_b32 s48, s{S_RB}, 1")
    k.e("s_add_u32 s48, s48, s26")
    k.e("v_lshlrev_b32 v1, 4, v0")
    k.e("s_lshl_b32 s49, s27, 11")
    k.e("s_lshl_b32 s50, s26, 10")
    k.e("s_add_u32 s49, s49, s50")
    k.e(f"s_add_u32 s49, s49, {Q_L}")
    k.e("v_add_u32 v2, s49, v1")
    k.e(f"ds_read_b128 {vr(AQ_,4)}, v2")
    def kaddr(p): return (AK0, RK_L + p*1024) if p <= 6 else ((AK7, 0) if p == 7 else (AK8, 0))
    def vaddr(p): return (AV0, p*1024) if p <= 6 else ((AV7, 0) if p == 7 else (AV8, 0))
    for p in range(9):
        a, o = kaddr(p); k.e(f"ds_read_b128 {vr(AKF+4*p,4)}, v{a} offset:{o}")
    k.e("s_mov_b32 s64, 0xffff")
    k.e("s_mov_b32 s65, 0xffff")
    k.e("s_mov_b32 s99, 0")
    for b in range(2):
        for j in range(8): k.e(f"v_mov_b32 v{AVB[b]+j}, 0x3f803f80")
    def wo_block():
        sk = k.u("nowo")
        k.e(f"s_cmp_ge_u32 s{S_WAVE}, 4")
        k.e(f"s_cbranch_scc0 {sk}")
        wo_setup(k)
        if OPT['wosplit']:
            a = OPT['wosplit']
            for j in range(a): wo_pair(k)
            k.e(f"s_cmp_ge_u32 s{S_WAVE}, 6")
            k.e(f"s_cbranch_scc0 {sk}")
            for j in range(16 - 2*a): wo_pair(k)
        else:
            for j in range(8): wo_pair(k)
        k.lab(sk)
    if OPT['wopos'] == 0: wo_block()
    Q = vr(AQ_, 4)
    def qk(dst, p, c): k.e(f"{MF} {vr(dst,16)}, {vr(AKF+4*p,4)}, {Q}, {c}")
    def c1(p): return vr(AMF,16) if p == 0 else (vr(AMD,16) if p == 8 else "0")
    def c2(p): return vr(AMF,16) if p == 0 else (vr(AMD,16) if p == 8 else vr(ACN,16))
    k.e("s_sub_i32 s95, 8, s48")
    k.e("s_max_i32 s95, s95, 0")
    P1 = [k.u(f"p1_{p}") for p in range(9)]
    P2 = [k.u(f"p2_{p}") for p in range(9)]
    E1 = [k.u(f"e1_{p}") for p in range(9)]
    E2 = [k.u(f"e2_{p}") for p in range(9)]
    k.e("s_waitcnt lgkmcnt(0)")
    for p in range(1, 9):
        k.e(f"s_cmp_eq_u32 s95, {p}")
        k.e(f"s_cbranch_scc1 {E1[p]}")
    qk(AS[0], 0, c1(0)); qk(AS[1], 1, c1(1)); qk(AS[2], 2, c1(2))
    k.e("s_nop 9")
    for p in range(9):
        k.lab(P1[p])
        s_ = AS[p % 3]
        for j in range(8): k.e(f"v_max3_f32 v{AM}, v{s_+2*j}, v{s_+2*j+1}, v{AM}")
        if p + 3 <= 8: qk(s_, p + 3, c1(p + 3))
    k.e(f"v_mov_b32 v{AT}, v{AM}")
    k.e("s_nop 1")
    k.e(f"v_permlane32_swap_b32 v{AM}, v{AT}")
    k.e(f"v_max_f32 v{AM}, v{AM}, v{AT}")
    k.e(f"v_sub_f32 v{AM}, 0, v{AM}")
    for i in range(16): k.e(f"v_mov_b32 v{ACN+i}, v{AM}")
    MRG = OPT['merge']
    if not MRG:
        for i in range(16): k.e(f"v_add_f32 v{AMD+i}, v{AMD+i}, v{AM}")
    if OPT['wopos'] == 1: wo_block()
    k.stamp(8)
    k.e("s_cmp_eq_u32 s95, 0")
    sh = k.u("short2")
    k.e(f"s_cbranch_scc0 {sh}")
    if MRG:
        k.e("s_mov_b32 s62, 0xffff")
        for i in range(16): k.e(f"v_ashrrev_i32 v{AMF+i}, 31, v{AMD+i}")
        v_reads(k, 1, *vaddr(1))
        qk(AS[1], 1, c2(1))
        for j in range(8): k.e(f"v_bfi_b32 v{AMD+j}, s62, v{AMF+2*j}, v{AMF+2*j+1}")
    else:
        for i in range(16): k.e(f"v_add_f32 v{AMF+i}, v{AMF+i}, v{AM}")
        v_reads(k, 0, *vaddr(0))
        k.e("s_nop 0")
        qk(AS[0], 0, c2(0))
        k.e("s_nop 6")
    mrgblk = k.u("merged"); afterm = k.u("afterm")
    for p in range(9):
        if MRG and p == 0: continue
        k.lab(P2[p])
        cur = AS[p % 2]; nxt = AS[(p + 1) % 2]
        if MRG and p == 8:
            k.e("s_cmp_eq_u32 s95, 0")
            k.e(f"s_cbranch_scc1 {mrgblk}")
        if p < 8:
            if MRG and p == 7:
                sk7 = k.u("m7"); j7 = k.u("j7")
                k.e("s_cmp_eq_u32 s95, 0")
                k.e(f"s_cbranch_scc0 {sk7}")
                qk(nxt, 8, vr(ACN,16)); qk(AS[2], 0, vr(ACN,16))
                k.e(f"s_branch {j7}")
                k.lab(sk7)
                qk(nxt, 8, vr(AMD,16))
                k.lab(j7)
            else:
                qk(nxt, p + 1, c2(p + 1))
            v_reads(k, (p + 1) % 2, *vaddr(p + 1))
        hooks = k.u("nohook")
        if p == OPT['lprio']: k.e("s_setprio 0")
        if p == OPT['sigp']:
            k.e("s_cmp_eq_u32 s95, 0")
            k.e(f"s_cbranch_scc0 {hooks}")
            sig_f1a(k)
            k.lab(hooks)
        if p >= OPT['pollp'] and (p - OPT['pollp']) % OPT['pollstep'] == 0:
            hk = k.u("hk")
            vp = VPOLL if (p - OPT['pollp']) % 2 == 0 else VPOLL2
            k.e(f"s_cmp_eq_u32 s{S_WAVE}, 4")
            k.e(f"s_cbranch_scc0 {hk}")
            k.e("s_cmp_eq_u32 s95, 0")
            k.e(f"s_cbranch_scc0 {hk}")
            k.e("s_cmp_eq_u32 s99, 0")
            k.e(f"s_cbranch_scc0 {hk}")
            if p >= OPT['pollp'] + 2:
                got = k.u("got")
                k.e(f"s_waitcnt vmcnt({1 if OPT['pollstep'] == 1 else 0})")
                k.e(f"v_cmp_ne_u32 vcc, s{S_NONCE}, v{vp}")
                k.e("s_nop 1")
                k.e(f"s_cbranch_vccz {got}")
                k.e(f"buffer_load_dword v{vp}, v{VPA}, {WS}, 0 offen sc1")
                k.e(f"s_branch {hk}")
                k.lab(got)
                kv_loads(k)
                k.e("s_mov_b32 s99, 1")
            else:
                k.e(f"buffer_load_dword v{vp}, v{VPA}, {WS}, 0 offen sc1")
            k.lab(hk)
        for j in range(16): k.e(f"v_exp_f32 v{cur+j}, v{cur+j}")
        for j in range(8): k.e(f"v_cvt_pk_bf16_f32 v{AP+j}, v{cur+2*j}, v{cur+2*j+1}")
        k.e(f"s_waitcnt lgkmcnt({2 if p < 8 else 0})")
        vb = AVB[p % 2]
        k.e(f"{MF} {vr(AO,16)}, {vr(vb,4)}, {vr(AP,4)}, {'0' if p == (1 if MRG else 0) else vr(AO,16)}")
        k.e("s_nop 0")
        k.e(f"{MF} {vr(AO,16)}, {vr(vb+4,4)}, {vr(AP+4,4)}, {vr(AO,16)}")
    done = k.u("attdone")
    k.e(f"s_branch {done}")
    if MRG:
        k.lab(mrgblk)
        SD, SF = AS[0], AS[2]
        v_reads(k, 1, *vaddr(0))
        hk = k.u("hkm"); got = k.u("gotm")
        vp = VPOLL if (8 - OPT['pollp']) % 2 == 0 else VPOLL2
        k.e(f"s_cmp_eq_u32 s{S_WAVE}, 4")
        k.e(f"s_cbranch_scc0 {hk}")
        k.e("s_cmp_eq_u32 s99, 0")
        k.e(f"s_cbranch_scc0 {hk}")
        k.e("s_waitcnt vmcnt(1)")
        k.e(f"v_cmp_ne_u32 vcc, s{S_NONCE}, v{vp}")
        k.e("s_nop 1")
        k.e(f"s_cbranch_vccnz {hk}")
        kv_loads(k)
        k.e("s_mov_b32 s99, 1")
        k.lab(hk)
        k.e("s_nop 3")
        for i in range(16): k.e(f"v_bfi_b32 v{SD+i}, v{AMF+i}, v{SF+i}, v{SD+i}")
        for j in range(16): k.e(f"v_exp_f32 v{SD+j}, v{SD+j}")
        for j in range(8): k.e(f"v_cvt_pk_bf16_f32 v{AP+j}, v{SD+2*j}, v{SD+2*j+1}")
        for j in range(8): k.e(f"v_and_b32 v{SF+j}, v{AP+j}, v{AMD+j}")
        for j in range(8): k.e(f"v_xor_b32 v{AP+j}, v{AP+j}, v{SF+j}")
        k.e("s_waitcnt lgkmcnt(0)")
        k.e(f"{MF} {vr(AO,16)}, {vr(AVB[1],4)}, {vr(SF,4)}, {vr(AO,16)}")
        k.e(f"{MF} {vr(AO,16)}, {vr(AVB[1]+4,4)}, {vr(SF+4,4)}, {vr(AO,16)}")
        k.e(f"{MF} {vr(AO,16)}, {vr(AVB[0],4)}, {vr(AP,4)}, {vr(AO,16)}")
        k.e(f"{MF} {vr(AO,16)}, {vr(AVB[0]+4,4)}, {vr(AP+4,4)}, {vr(AO,16)}")
        k.e(f"s_branch {done}")
    for p in range(1, 9):
        k.lab(E1[p])
        for q in range(p, min(p + 3, 9)): qk(AS[q % 3], q, c1(q))
        k.e("s_nop 10")
        k.e(f"s_branch {P1[p]}")
    k.lab(sh)
    if MRG:
        for i in range(16): k.e(f"v_add_f32 v{AMD+i}, v{AMD+i}, v{AM}")
    for i in range(16): k.e(f"v_mov_b32 v{AO+i}, 0")
    sig_f1a(k)
    sk = k.u("shpoll")
    k.e(f"s_cmp_eq_u32 s{S_WAVE}, 4")
    k.e(f"s_cbranch_scc0 {sk}")
    k.e(f"buffer_load_dword v{VPOLL}, v{VPA}, {WS}, 0 offen sc1")
    k.lab(sk)
    for p in range(1, 9):
        k.e(f"s_cmp_eq_u32 s95, {p}")
        k.e(f"s_cbranch_scc1 {E2[p]}")
    k.e(f"s_branch {E2[8]}")
    for p in range(1, 9):
        k.lab(E2[p])
        qk(AS[p % 2], p, c2(p))
        v_reads(k, p % 2, *vaddr(p))
        k.e("s_nop 6")
        k.e(f"s_branch {P2[p]}")
    k.lab(done)

def apart(k):
    sk = k.u("kvdone")
    k.e(f"s_cmp_eq_u32 s{S_WAVE}, 4")
    k.e(f"s_cbranch_scc0 {sk}")
    k.e("s_cmp_eq_u32 s99, 1")
    k.e(f"s_cbranch_scc1 {sk}")
    poll_flags(k, VPA, VPOLL, "f1a")
    kv_loads(k)
    k.lab(sk)
    k.e("s_nop 8")
    k.e(f"v_rcp_f32 v{AT}, v{AO+8}")
    k.e("s_nop 0")
    for j in range(8): k.e(f"v_mul_f32 v{AO+j}, v{AO+j}, v{AT}")
    cvt8(k, AP, AO)
    k.e(f"s_lshl_b32 s49, s{S_G}, 2")
    k.e("s_add_u32 s49, s49, s27")
    k.e("s_lshl_b32 s50, s48, 5")
    k.e("s_add_u32 s49, s49, s50")
    k.e("s_lshl_b32 s49, s49, 10")
    k.e(f"s_add_u32 s50, s49, {O_G + (2<<20)}")
    k.e(f"buffer_store_dwordx4 {vr(AP,4)}, v1, {WS}, s50 offen sc1")
    k.e("s_barrier")
    sk = k.u("nokvw")
    k.e(f"s_cmp_eq_u32 s{S_WAVE}, 4")
    k.e(f"s_cbranch_scc0 {sk}")
    k.e("s_waitcnt vmcnt(1)")
    k.e(f"ds_write_b128 v1, {vr(KVR,4)} offset:{KVL}")
    k.e(f"ds_write_b128 v1, {vr(KVR+4,4)} offset:{KVL+1024}")
    k.e(f"ds_write_b128 v1, {vr(164,4)} offset:{KVL+4096}")
    k.e(f"ds_write_b128 v1, {vr(168,4)} offset:{KVL+4096+1024}")
    k.e("v_lshrrev_b32 v202, 5, v0")
    k.e("v_lshlrev_b32 v202, 12, v202")
    k.e("v_and_b32 v203, 31, v0")
    k.e("v_lshl_add_u32 v202, v203, 2, v202")
    k.e(f"ds_write_b32 v202, v172 offset:{KVL+2048}")
    k.e("s_waitcnt lgkmcnt(0)")
    k.lab(sk)
    k.e("s_lshr_b32 s51, s27, 1")
    k.e("s_lshl_b32 s51, s51, 12")
    k.e("s_and_b32 s52, s27, 1")
    k.e("s_lshl_b32 s52, s52, 6")
    k.e("s_add_u32 s51, s51, s52")
    k.e("v_lshrrev_b32 v203, 5, v0")
    k.e("v_and_b32 v202, 15, v0")
    k.e("v_lshl_add_u32 v202, v203, 5, v202")
    k.e("v_lshlrev_b32 v202, 2, v202")
    k.e("v_add_u32 v202, s51, v202")
    k.e("v_lshlrev_b32 v203, 4, v203")
    k.e("v_add_u32 v203, s51, v203")
    k.e("s_lshl_b32 s51, s27, 11")
    k.e("s_lshl_b32 s50, s26, 10")
    k.e("s_add_u32 s51, s51, s50")
    k.e(f"s_add_u32 s51, s51, {PQ_L}")
    k.e("v_add_u32 v2, s51, v1")
    k.e(f"ds_read_b128 {vr(AQ_,4)}, v2")
    k.e("s_barrier")
    k.stamp(15)
    k.e("s_mov_b64 exec, s[64:65]")
    for t in range(8): k.e(f"ds_read_b32 v{KVR+t}, v202 offset:{KVL + t*256}")
    k.e("s_not_b64 exec, s[64:65]")
    k.e(f"ds_read_b128 {vr(KVR,4)}, v203 offset:{KVL+2048}")
    k.e(f"ds_read_b128 {vr(KVR+4,4)}, v203 offset:{KVL+2048+32}")
    k.e("s_mov_b64 exec, -1")
    k.e("s_waitcnt lgkmcnt(0)")
    cvt8(k, 8, KVR)
    k.e("s_nop 1")
    k.e(f"{MF} {vr(44,16)}, {vr(8,4)}, {vr(AQ_,4)}, 0")
    k.e(f"s_mov_b32 s62, {lit(1e-6)}")
    k.e("s_nop 10")
    k.e("v_add_f32 v12, s62, v52")
    k.e("v_rcp_f32 v12, v12")
    k.e("s_nop 0")
    for j in range(8): k.e(f"v_mul_f32 v{44+j}, v{44+j}, v12")
    cvt8(k, 16, 44)
    k.e(f"s_add_u32 s50, s49, {O_G}")
    k.e(f"buffer_store_dwordx4 {vr(16,4)}, v1, {WS}, s50 offen sc1")

def p3(k):
    k.c("P3: out tile 128x64")
    k.e("s_and_b32 s48, s2, 7")
    k.e("s_lshr_b32 s49, s2, 3")
    k.e("s_lshr_b32 s66, s48, 2")
    k.e("s_and_b32 s67, s48, 3")
    k.e("s_lshl_b32 s67, s67, 2")
    k.e("s_and_b32 s50, s49, 3")
    k.e("s_add_u32 s67, s67, s50")
    k.e("s_lshr_b32 s68, s49, 2")
    k.e("s_lshl_b32 s48, s67, 11")
    k.e(f"s_add_u32 s48, s48, {F2}")
    k.e("v_and_b32 v8, 15, v0")
    k.e("v_lshlrev_b32 v8, 7, v8")
    k.e("v_add_u32 v8, s48, v8")
    OF, ACC3, WF = 8+4, 144, [176, 184]
    VA0, VA1 = 192, 193
    k.e("v_bfe_u32 v2, v0, 2, 2")
    k.e("v_and_b32 v3, 3, v0")
    k.e("v_bfe_u32 v4, v0, 4, 1")
    k.e("v_lshrrev_b32 v5, 5, v0")
    k.e("v_lshlrev_b32 v5, 2, v5")
    k.e("v_add_u32 v5, v5, v2")
    k.e("v_lshlrev_b32 v5, 7, v5")
    k.e("v_and_b32 v6, 1, v3")
    k.e("v_lshlrev_b32 v6, 1, v6")
    k.e("v_add_u32 v6, v6, v4")
    k.e("v_and_b32 v7, 2, v2")
    k.e("v_lshlrev_b32 v7, 1, v7")
    k.e("v_xor_b32 v6, v6, v7")
    k.e("v_lshlrev_b32 v6, 4, v6")
    k.e("v_lshrrev_b32 v3, 1, v3")
    k.e("v_lshlrev_b32 v3, 3, v3")
    k.e("v_add3_u32 v5, v5, v6, v3")
    SLOWG = OPT['slowg']
    VB0 = 194
    k.e(f"v_add_u32 v{VB0}, {WO_L}, v5")
    k.e("s_lshl_b32 s48, s67, 2")
    k.e(f"s_add_u32 s48, s48, s{S_WAVE}")
    k.e("s_lshl_b32 s49, s48, 15")
    k.e("s_lshl_b32 s50, s66, 21")
    k.e("s_add_u32 s49, s49, s50")
    k.e(f"s_add_u32 s49, s49, {O_G}")
    k.e("v_lshlrev_b32 v1, 4, v0")
    GR = [86, 87, 88, 89, 92, 93, 94, 100]
    NOSLOW = SLOWG == 8
    if NOSLOW:
        for u in range(8):
            k.e(f"s_add_u32 s52, s68, {u}")
            k.e(f"s_and_b32 s{GR[u]}, s52, 7")
    k.e("s_cmp_eq_u32 s68, 7")
    k.e("s_cselect_b32 s51, 0, s68")
    for u in range(0 if NOSLOW else 7):
        k.e(f"s_add_u32 s52, s51, {u}")
        k.e("s_cmp_ge_u32 s52, 7")
        k.e("s_cselect_b32 s53, 7, 0")
        k.e("s_sub_u32 s52, s52, s53")
        k.e(f"s_cmp_ge_u32 s52, {SLOWG}")
        k.e("s_cselect_b32 s53, 1, 0")
        k.e(f"s_add_u32 s{GR[u]}, s52, s53")
    if not NOSLOW: k.e(f"s_mov_b32 s{GR[7]}, {SLOWG}")
    k.e(f"s_lshr_b32 s52, s{S_WAVE}, 1")
    k.e("s_and_b32 s52, s52, 1")
    k.e("s_lshl_b32 s52, s52, 3")
    k.e(f"s_add_u32 s52, s52, {SLOWG}")
    k.e("s_lshl_b32 s52, s52, 7")
    k.e("s_lshl_b32 s53, s67, 11")
    k.e("s_add_u32 s52, s52, s53")
    k.e(f"s_add_u32 s52, s52, {F2}")
    k.e("v_mov_b32 v10, s52")
    sk = k.u("nof2poll")
    k.e(f"s_cmp_eq_u32 s{S_WAVE}, 0")
    k.e(f"s_cbranch_scc0 {sk}")
    k.e(f"s_mov_b64 exec, 0x{0xffff if NOSLOW else 0xffff & ~((1 << SLOWG) | (1 << (8 + SLOWG))):x}")
    poll_flags(k, 8, 9, "f2")
    k.e("s_mov_b64 exec, -1")
    k.lab(sk)
    k.e("s_barrier")
    k.e(f"s_cmp_ge_u32 s{S_WAVE}, 4")
    k.e("s_cbranch_scc1 L_fin")
    k.stamp(12)
    def oload(hd):
        u = hd >> 2
        if hd % 4 == 0 or True:
            k.e(f"s_lshl_b32 s52, s{GR[u]}, 12")
            k.e("s_add_u32 s52, s52, s49")
        k.e(f"buffer_load_dwordx4 {vr(OF+4*hd,4)}, v1, {WS}, s52 offen offset:{(hd%4)*1024} sc1")
    for hd in range(16): oload(hd)
    def setva(u):
        k.e(f"s_lshl_b32 s52, s{GR[u]}, 13")
        k.e(f"v_add_u32 v{VA0}, s52, v{VB0}")
        k.e(f"v_xor_b32 v{VA1}, 64, v{VA0}")
    def wreads(buf, j):
        for b in range(2):
            for s2 in range(2):
                k.e(f"ds_read_b64_tr_b16 {vr(WF[buf]+4*b+2*s2,2)}, v{VA0+b} offset:{j*2048 + s2*1024}")
    def slow_loads():
        for hd in range(28, 32): oload(hd)
        k.e("s_mov_b32 s54, 1")
    PI, PC = OPT['p3poll'], 24
    k.e("s_mov_b32 s54, 0")
    setva(0)
    wreads(0, 0)
    for hd in range(32 if NOSLOW else 0):
        if hd < 31:
            nj = (hd + 1) % 4
            if nj == 0: setva((hd + 1)//4)
            wreads((hd + 1) % 2, nj)
        last = min(31, 15 + hd)
        k.e(f"s_waitcnt vmcnt({last - hd}) lgkmcnt({4 if hd < 31 else 0})")
        if 16 + hd <= 31: oload(16 + hd)
        for b in range(2):
            k.e(f"{MF} {vr(ACC3+16*b,16)}, {vr(WF[hd%2]+4*b,4)}, {vr(OF+4*hd,4)}, {'0' if hd == 0 else vr(ACC3+16*b,16)}")
    for hd in range(0 if NOSLOW else 32):
        if hd == 28:
            sk = k.u("slowok")
            k.e("s_cmp_eq_u32 s54, 1")
            k.e(f"s_cbranch_scc1 {sk}")
            k.e("s_mov_b64 exec, 1")
            poll_flags(k, 10, 9, "f2s")
            k.e("s_mov_b64 exec, -1")
            slow_loads()
            k.lab(sk)
        if hd < 31:
            nj = (hd + 1) % 4
            if nj == 0: setva((hd + 1)//4)
            wreads((hd + 1) % 2, nj)
        if hd < 28:
            last = min(27, 15 + hd)
            n = last - hd + (1 if hd > PI else 0)
            if hd >= PC: n = None
        else:
            n = 31 - hd
        if hd == PC:
            k.e(f"s_waitcnt vmcnt(0) lgkmcnt(4)")
            sk = k.u("notyet")
            k.e("s_mov_b64 exec, 1")
            k.e(f"v_cmp_ne_u32 vcc, s{S_NONCE}, v9")
            k.e("s_mov_b64 exec, -1")
            k.e("s_nop 0")
            k.e(f"s_cbranch_vccnz {sk}")
            slow_loads()
            k.lab(sk)
        elif n is None:
            k.e("s_waitcnt lgkmcnt(4)")
        else:
            k.e(f"s_waitcnt vmcnt({n}) lgkmcnt({4 if hd < 31 else 0})")
        if 16 + hd <= 27: oload(16 + hd)
        if hd == PI:
            k.e("s_mov_b64 exec, 1")
            k.e(f"buffer_load_dword v9, v10, {WS}, 0 offen sc1")
            k.e("s_mov_b64 exec, -1")
        if OPT.get('p3st') and hd in (0, 8, 31):
            k.stamp({0: 5, 8: 6, 31: 8}[hd])
        for b in range(2):
            k.e(f"{MF} {vr(ACC3+16*b,16)}, {vr(WF[hd%2]+4*b,4)}, {vr(OF+4*hd,4)}, {'0' if hd == 0 else vr(ACC3+16*b,16)}")
    srd(k, SRD_T, P_OUT, 4 << 20)
    k.e("v_and_b32 v2, 31, v0")
    k.e("s_lshl_b32 s49, s48, 5")
    k.e("v_add_u32 v2, s49, v2")
    k.e("v_lshlrev_b32 v2, 11, v2")
    k.e("v_lshrrev_b32 v3, 5, v0")
    k.e("v_lshlrev_b32 v3, 5, v3")
    k.e("s_lshl_b32 s49, s66, 10")
    k.e("s_lshl_b32 s50, s68, 7")
    k.e("s_add_u32 s49, s49, s50")
    k.e("v_add3_u32 v2, v2, v3, s49")
    k.e("s_nop 3")
    for b in range(2):
        for j in range(8): k.e(f"v_cvt_pk_bf16_f32 v{12+8*b+j}, v{ACC3+16*b+2*j}, v{ACC3+16*b+2*j+1}")
    for b in range(2):
        fl = {0: "", 1: " sc1", 2: " nt", 3: " sc0 sc1"}[OPT['outf']]
        k.e(f"buffer_store_dwordx4 {vr(12+8*b,4)}, v2, {sr(SRD_T,4)}, 0 offen offset:{64*b}{fl}")
        k.e(f"buffer_store_dwordx4 {vr(16+8*b,4)}, v2, {sr(SRD_T,4)}, 0 offen offset:{64*b+16}{fl}")

HDR = """; Kernarg layout for this problem (72 bytes, ptrs only, base s[0:1]):
;   offset   0: d_in[0] A_x  shape=(1, 2048, 512) dtype=bfloat16 strides=(2097152, 1024, 2) contiguous=True
;   offset   8: d_in[1] A_wqkv  shape=(512, 1536) dtype=bfloat16 strides=(3072, 2) contiguous=True
;   offset  16: d_in[2] A_wo  shape=(512, 512) dtype=bfloat16 strides=(1024, 2) contiguous=True
;   offset  24: d_in[3] B_x  shape=(1, 2048, 512) dtype=bfloat16 strides=(2097152, 1024, 2) contiguous=True
;   offset  32: d_in[4] B_wqkv  shape=(512, 1536) dtype=bfloat16 strides=(3072, 2) contiguous=True
;   offset  40: d_in[5] B_wo  shape=(512, 512) dtype=bfloat16 strides=(1024, 2) contiguous=True
;   offset  48: d_out     shape=(1, 2048, 1024) dtype=bfloat16 (2 bytes/elem)
;   offset  56: d_debug   256 bytes
;   offset  64: d_ws      268435456 bytes workspace
;
; One persistent launch, 256 workgroups (one per CU) x 8 waves.  Workgroup = (64-row block rb, 4-head group g).
;   P1  QKV GEMMs (branch B tile, then branch A tile): waves 4-7 stream x / W through a 4-slot LDS ring (LDS-DMA),
;       waves 0,1 accumulate k,v and waves 2,3 accumulate q.  B's K/V fragments go to d_ws for the neighbouring row
;       blocks, A's phi(k)^T v and sum phi(k) are accumulated in d_ws with f32 atomics.
;   P2  sliding-window attention, one (32-query tile, head) unit per wave (two passes: true row max, then exp / PV),
;       then the linear-attention output of the same unit.
;   P3  output projection, 128x64 tile per workgroup.
; Hand-offs between workgroups: write-through (sc1) stores, drained, then a flag word holding a per-launch nonce.
; @launch grid=(256,1,1) block=(512,1,1) lds=163840
.amdgcn_target "amdgcn-amd-amdhsa--gfx950"
.text
.globl KNAME
.p2align 8
.type KNAME,@function
""".replace("KNAME", KNAME)

TAIL = """.section .rodata,"a"
.p2align 6
.amdhsa_kernel KNAME
  .amdhsa_next_free_vgpr 256
  .amdhsa_next_free_sgpr 102
  .amdhsa_accum_offset 256
  .amdhsa_group_segment_fixed_size 0
  .amdhsa_kernarg_size 72
  .amdhsa_user_sgpr_count 2
  .amdhsa_user_sgpr_kernarg_segment_ptr 1
  .amdhsa_system_sgpr_workgroup_id_x 1
.end_amdhsa_kernel
""".replace("KNAME", KNAME)

def build(stamps=False):
    k = gen(stamps)
    body = "\n".join(k.L)
    body = body.replace("PF_BACK", f"((L_pc - {KNAME}) & 0xffffff00)")
    pad = "\n    .fill 2048, 4, 0xbf800000\n"
    hdr, tail = HDR, TAIL
    if OPT['extra']:
        hdr = hdr.replace("; @launch grid=(256,1,1) block=(512,1,1) lds=163840", f"; @launch kernel={KNAME} grid=(256,1,1) block=(512,1,1) lds=163840\n; @launch kernel=nop_kernel grid=(1,1,1) block=(64,1,1) lds=0")
        pad += ".globl nop_kernel\n.p2align 8\n.type nop_kernel,@function\nnop_kernel:\n    s_endpgm\n"
        tail += """.p2align 6
.amdhsa_kernel nop_kernel
  .amdhsa_next_free_vgpr 8
  .amdhsa_next_free_sgpr 16
  .amdhsa_accum_offset 8
  .amdhsa_group_segment_fixed_size 0
  .amdhsa_kernarg_size 72
  .amdhsa_user_sgpr_count 2
  .amdhsa_user_sgpr_kernarg_segment_ptr 1
  .amdhsa_system_sgpr_workgroup_id_x 1
.end_amdhsa_kernel
"""
    return hdr + body + pad + "\n" + tail

if __name__ == "__main__":
    out = sys.argv[1] if len(sys.argv) > 1 else "out.s"
    stamps = "stamps" in sys.argv[2:]
    for a in sys.argv[2:]:
        if "=" in a:
            kk, vv = a.split("="); OPT[kk] = int(vv)
    txt = build(stamps)
    open(out, "w").write(txt)
    import hz
    pr = hz.check(txt)
    import subprocess
    r = subprocess.run(["clang", "-x", "assembler", "-target", "amdgcn-amd-amdhsa", "-mcpu=gfx950", "-c", out, "-o", "_chk.o"], capture_output=True, text=True)
    print("hazards:", len(pr), "lines:", txt.count("\n"), "asm:", "ok" if r.returncode == 0 else r.stderr)
```

```python
import sys, math, struct

KNAME = "concat_heads__linear_attn_block__sliding_block__prompt_kernel"

KB_G   = 0
VB_G   = 2 << 20
O_G    = 4 << 20
KVACC  = 8 << 20
FL     = (8 << 20) + (64 << 10)
F1B    = FL
F1A    = FL + (32 << 10)
F2     = FL + (96 << 10)
STAMP  = 9 << 20
SLOT   = 32768
OK_L, OV_L, Q_L, PQ_L = 131072, 139264, 147456, 155648
NONCE_L = PQ_L
RK_L, RV_L, WO_L = 0, 32768, 65536
CS = 0.25 * math.log2(math.e)
LOG2E = math.log2(math.e)
BIG = 1.0e28
SPIN_MAX = 2000000
OPT = dict(rot=4, pfB=0, pfA=1, dbgstamps=0, stagest=0, pfs=1, tpf=0, p3st=0, map=2, outf=2, extra=0, sigs=9, pf0=0, late9=0, remdma=1, m16=0, npre=16, pf4=0, pkphi=1, prio=0, kvprio=1, pollp=4, sigp=3, fixdur=0, ldprio=0, wopos=1, sigst=0, wosplit=0, lprio=-1, slowg=3, p3poll=14, pf3=0, x16st=0, sleep=1, rotA=-1, bfi=1, vpre=1, x16pos=2, merge=0, pollstep=1, cpf=3, pfm=1)

def f2u(x): return struct.unpack('<I', struct.pack('<f', x))[0]
def lit(x): return "0x%08x" % f2u(x)

class K:
    def __init__(self, stamps=False):
        self.L = []; self.stamps = stamps; self.uid = 0; self.inp1 = False
    def e(self, s):
        if self.inp1 and OPT['m16'] and s.startswith("v_mfma_f32_32x32x16_bf16"):
            import re
            m = re.match(r"v_mfma_f32_32x32x16_bf16 v\[(\d+):\d+\], (v\[\d+:\d+\]), (v\[\d+:\d+\]), (.*)", s)
            d = int(m.group(1)); c = m.group(4)
            for h in range(2):
                cc = "0" if c == "0" else f"v[{d+4*h}:{d+4*h+3}]"
                self.L.append(f"    v_mfma_f32_16x16x32_bf16 v[{d+4*h}:{d+4*h+3}], {m.group(2)}, {m.group(3)}, {cc}")
            return
        self.L.append("    " + s)
    def c(self, s): self.L.append("    ; " + s)
    def lab(self, s): self.L.append(s + ":")
    def u(self, p):
        self.uid += 1; return f"L_{p}_{self.uid}"
    def stamp(self, k):
        if not self.stamps: return
        self.e("s_memrealtime s[70:71]")
        self.e("s_waitcnt lgkmcnt(0)")
        self.e(f"s_mov_b32 s{72+k}, s70")

def vr(a, n): return f"v[{a}:{a+n-1}]"
def sr(a, n): return f"s[{a}:{a+n-1}]"
MF = "v_mfma_f32_32x32x16_bf16"

S_WAVE, S_RB, S_G, S_NONCE = 22, 23, 24, 25
SRD_WS, SRD_X, SRD_W, SRD_T, SRD_WO = 28, 32, 36, 40, 44
P_AX, P_AW, P_AWO, P_BX, P_BW, P_BWO, P_OUT, P_DBG, P_WS = 4, 6, 8, 10, 12, 14, 16, 18, 20
WS = sr(SRD_WS, 4)

def srd(k, dst, ptr, size):
    k.e(f"s_mov_b32 s{dst}, s{ptr}")
    k.e(f"s_mov_b32 s{dst+1}, s{ptr+1}")
    k.e(f"s_mov_b32 s{dst+2}, 0x{size:x}")
    k.e(f"s_mov_b32 s{dst+3}, 0x20000")

def spin_guard(k, sreg, exit_label):
    k.e(f"s_add_u32 s{sreg}, s{sreg}, 1")
    k.e(f"s_cmp_gt_u32 s{sreg}, {SPIN_MAX}")
    k.e(f"s_cbranch_scc1 {exit_label}")

def poll_flags(k, vaddr, vtmp, name, first_issued=False, sleep=1):
    lp = k.u(name + "_poll"); ex = k.u(name + "_done"); chk = k.u(name + "_chk")
    k.e("s_mov_b32 s60, 0")
    if first_issued: k.e(f"s_branch {chk}")
    k.lab(lp)
    k.e(f"buffer_load_dword v{vtmp}, v{vaddr}, {WS}, 0 offen sc1")
    k.lab(chk)
    spin_guard(k, 60, ex)
    k.e("s_waitcnt vmcnt(0)")
    k.e(f"v_cmp_ne_u32 vcc, s{S_NONCE}, v{vtmp}")
    k.e("s_nop 1")
    k.e(f"s_cbranch_vccz {ex}")
    if OPT['sleep']: k.e(f"s_sleep {OPT['sleep']}")
    k.e(f"s_branch {lp}")
    k.lab(ex)
    k.e("s_waitcnt vmcnt(0)")

def store_flag(k, soff):
    k.e(f"v_mov_b32 v250, s{S_NONCE}")
    k.e("v_mov_b32 v251, 0")
    k.e("s_mov_b64 exec, 1")
    k.e(f"buffer_store_dword v250, v251, {WS}, s{soff} offen sc1")
    k.e("s_mov_b64 exec, -1")

def cvt8(k, dst, src):
    for j in range(4): k.e(f"v_cvt_pk_bf16_f32 v{dst+j}, v{src+2*j}, v{src+2*j+1}")

def phi(k, r, n, t):
    if not OPT['pkphi']:
        for i in range(0, n, 4):
            for j in range(4): k.e(f"v_mul_f32 v{t+j}, s61, v{r+i+j}")
            for j in range(4): k.e(f"v_exp_f32 v{t+j}, v{t+j} clamp")
            for j in range(4): k.e(f"v_max_f32 v{r+i+j}, 0, v{r+i+j}")
            for j in range(4): k.e(f"v_add_f32 v{r+i+j}, s62, v{r+i+j}")
            for j in range(4): k.e(f"v_add_f32 v{r+i+j}, v{t+j}, v{r+i+j}")
        return
    for i in range(0, n, 8):
        for j in range(0, 8, 2): k.e(f"v_pk_mul_f32 {vr(t+j,2)}, {vr(r+i+j,2)}, s[66:67]")
        for j in range(8): k.e(f"v_exp_f32 v{t+j}, v{t+j} clamp")
        for j in range(8): k.e(f"v_max_f32 v{r+i+j}, 0, v{r+i+j}")
        for j in range(0, 8, 2): k.e(f"v_pk_add_f32 {vr(r+i+j,2)}, {vr(r+i+j,2)}, s[62:63]")
        for j in range(0, 8, 2): k.e(f"v_pk_add_f32 {vr(r+i+j,2)}, {vr(r+i+j,2)}, {vr(t+j,2)}")

ACC = 8
BUF = [72, 88, 104, 120]
VXA, VWA = 136, 140
EP = 144
PFD = 208

def rd_x(k, buf, j, t): k.e(f"ds_read_b128 {vr(BUF[buf]+4*t,4)}, v{VXA+j} offset:{t*4096}")
def rd_w(k, buf, j, p, slot):
    for s2 in range(2):
        k.e(f"ds_read_b64_tr_b16 {vr(BUF[buf]+8+4*slot+2*s2,2)}, v{VWA} offset:{p*8192 + j*2048 + s2*512}")
def reads(k, role, buf, j):
    rd_x(k, buf, j, 0); rd_x(k, buf, j, 1)
    if role == 'kv': rd_w(k, buf, j, 1, 0); rd_w(k, buf, j, 2, 1)
    else: rd_w(k, buf, j, 0, 0)

def kstep(k, role, br, j, first=False, noreads=False, wait=None):
    nb = (j + 2) & 3; b = BUF[j]
    if noreads:
        X = [vr(b,4), vr(b+4,4)]; W = [vr(b+8,4), vr(b+12,4)]
        k.e(f"s_waitcnt lgkmcnt({wait})")
        for t in range(2):
            a = ACC + 16*t
            if role == 'kv' and br == 'A': k.e(f"{MF} {vr(a,16)}, {X[t]}, {W[0]}, {vr(a,16)}")
            else: k.e(f"{MF} {vr(a,16)}, {W[0]}, {X[t]}, {vr(a,16)}")
        if role == 'kv':
            for t in range(2):
                a = ACC + 32 + 16*t
                k.e(f"{MF} {vr(a,16)}, {X[t]}, {W[1]}, {vr(a,16)}")
        return
    X = [vr(b,4), vr(b+4,4)]; W = [vr(b+8,4), vr(b+12,4)]
    def C(a): return "0" if first else vr(a,16)
    if role == 'kv':
        k.e("s_waitcnt lgkmcnt(6)")
        for t in range(2):
            a = ACC + 16*t
            if br == 'B': k.e(f"{MF} {vr(a,16)}, {W[0]}, {X[t]}, {C(a)}")
            else:         k.e(f"{MF} {vr(a,16)}, {X[t]}, {W[0]}, {C(a)}")
            if t == 0: rd_x(k, nb, nb, 0); rd_x(k, nb, nb, 1)
            else: rd_w(k, nb, nb, 1, 0)
        for t in range(2):
            a = ACC + 32 + 16*t
            k.e(f"{MF} {vr(a,16)}, {X[t]}, {W[1]}, {C(a)}")
            if t == 0: rd_w(k, nb, nb, 2, 1)
    else:
        k.e("s_waitcnt lgkmcnt(4)")
        for t in range(2):
            a = ACC + 16*t
            k.e(f"{MF} {vr(a,16)}, {W[0]}, {X[t]}, {C(a)}")
            if t == 0: rd_x(k, nb, nb, 0); rd_x(k, nb, nb, 1)
            else: rd_w(k, nb, nb, 0, 0)

def consumer_tile(k, role, br, extra=None):
    lp = k.u("c"+role+br); ex = k.u("cx"+role+br)
    k.inp1 = True
    k.e("s_mov_b32 s48, 0")
    kstep(k, role, br, 0, first=True)
    k.lab(lp)
    k.e("s_add_u32 s49, s49, 1")
    k.e("s_and_b32 s50, s49, 3")
    k.e("s_cmp_eq_u32 s50, 0")
    k.e(f"s_cselect_b32 s50, 0x{(-3*SLOT) & 0xffffffff:x}, s69")
    kstep(k, role, br, 1)
    if extra: extra(k)
    if br == 'A' and role == 'kv':
        sk = k.u("novm")
        k.e(f"s_cmp_eq_u32 s48, {OPT['sigs']-8}")
        k.e(f"s_cbranch_scc0 {sk}")
        k.e("s_waitcnt vmcnt(0)")
        k.lab(sk)
    for j in range(4): k.e(f"v_add_u32 v{VXA+j}, s50, v{VXA+j}")
    k.e(f"v_add_u32 v{VWA}, s50, v{VWA}")
    k.e("s_barrier")
    k.e("s_cmp_lt_u32 s48, 7")
    k.e(f"s_cbranch_scc0 {ex}")
    kstep(k, role, br, 2)
    kstep(k, role, br, 3)
    k.e("s_add_u32 s48, s48, 1")
    kstep(k, role, br, 0)
    k.e(f"s_branch {lp}")
    k.lab(ex)
    n = 6 if role == 'kv' else 4
    kstep(k, role, br, 2, noreads=True, wait=n)
    kstep(k, role, br, 3, noreads=True, wait=0)
    k.inp1 = False

def consumer_setup(k):
    k.e("v_and_b32 v1, 31, v0")
    k.e("v_lshrrev_b32 v2, 5, v0")
    k.e("v_bfe_u32 v3, v0, 1, 3")
    k.e("v_xor_b32 v3, v3, v2")
    k.e("v_lshlrev_b32 v3, 4, v3")
    k.e("v_lshlrev_b32 v1, 7, v1")
    k.e(f"v_add_u32 v{VXA}, v1, v3")
    for j in range(1, 4): k.e(f"v_xor_b32 v{VXA+j}, {j<<5}, v{VXA}")
    k.e("v_bfe_u32 v1, v0, 2, 2")
    k.e("v_and_b32 v2, 3, v0")
    k.e("v_bfe_u32 v3, v0, 4, 1")
    k.e("v_lshrrev_b32 v4, 5, v0")
    k.e("v_lshlrev_b32 v4, 3, v4")
    k.e("v_add_u32 v4, v4, v1")
    k.e("v_lshlrev_b32 v4, 7, v4")
    k.e("v_lshlrev_b32 v3, 1, v3")
    k.e("v_lshrrev_b32 v5, 1, v2")
    k.e("v_add_u32 v3, v3, v5")
    k.e("s_lshl_b32 s48, s27, 2")
    k.e("v_add_u32 v3, s48, v3")
    k.e("v_and_b32 v5, 2, v1")
    k.e("v_lshlrev_b32 v5, 1, v5")
    k.e("v_xor_b32 v3, v3, v5")
    k.e("v_lshlrev_b32 v3, 4, v3")
    k.e("v_and_b32 v2, 1, v2")
    k.e("v_lshlrev_b32 v2, 3, v2")
    k.e("v_add3_u32 v4, v4, v3, v2")
    k.e(f"v_add_u32 v{VWA}, 8192, v4")

def read_nonce(k, va, vb):
    k.e(f"v_mov_b32 v{va}, {NONCE_L}")
    k.e(f"ds_read_b32 v{vb}, v{va}")
    k.e("s_waitcnt lgkmcnt(0)")
    k.e(f"v_readfirstlane_b32 s{S_NONCE}, v{vb}")

def pf_setup(k, pw, px):
    k.e("s_and_b32 s50, s2, 7")
    k.e("s_lshr_b32 s51, s2, 3")
    k.e("v_lshrrev_b32 v5, 2, v0")
    k.e("s_lshl_b32 s52, s51, 4")
    k.e("v_add_u32 v5, s52, v5")
    k.e("v_mul_u32_u24 v5, 3072, v5")
    k.e("v_and_b32 v6, 3, v0")
    k.e("s_lshr_b32 s52, s50, 2")
    k.e("s_lshl_b32 s52, s52, 2")
    k.e("v_add_u32 v6, s52, v6")
    k.e("v_lshlrev_b32 v6, 7, v6")
    k.e("v_add_u32 v5, v5, v6")
    k.e("v_lshlrev_b32 v6, 7, v0")
    k.e("s_and_b32 s52, s50, 3")
    k.e("s_lshl_b32 s52, s52, 9")
    k.e("s_lshl_b32 s53, s51, 4")
    k.e("s_add_u32 s52, s52, s53")
    k.e("s_lshl_b32 s66, s52, 10")
    k.e("s_lshl_b32 s67, s51, 14")
    k.e("s_lshr_b32 s68, s50, 2")

def gen(stamps=False):
    k = K(stamps)
    k.lab(KNAME)
    k.e("s_cmp_ge_u32 s2, 256")
    k.e("s_cbranch_scc1 L_end")
    if stamps: k.e("s_memrealtime s[70:71]")
    if OPT['fixdur']: k.e("s_memrealtime s[100:101]")
    k.e("s_load_dwordx16 s[4:19], s[0:1], 0")
    k.e("s_load_dwordx2 s[20:21], s[0:1], 64")
    k.e("v_lshrrev_b32 v1, 6, v0")
    k.e("v_and_b32 v0, 63, v0")
    k.e(f"v_readfirstlane_b32 s{S_WAVE}, v1")
    k.e("s_and_b32 s26, s2, 7")
    k.e("s_lshr_b32 s27, s2, 3")
    k.e("s_and_b32 s48, s26, 3")
    k.e("s_lshl_b32 s48, s48, 3")
    if OPT['map'] != 1:
        k.e("s_and_b32 s49, s27, 7")
    else:
        k.e("s_lshr_b32 s49, s27, 2")
    k.e(f"s_add_u32 s{S_RB}, s48, s49")
    k.e("s_lshr_b32 s48, s26, 2")
    k.e("s_lshl_b32 s48, s48, 2")
    if OPT['map'] == 0:
        k.e("s_lshr_b32 s49, s27, 3")
    elif OPT['map'] == 2:
        k.e("s_lshr_b32 s49, s27, 3")
        k.e("s_sub_u32 s49, 3, s49")
    elif OPT['map'] >= 3:
        perm = {3: (3, 1, 2, 0), 4: (3, 1, 0, 2), 5: (1, 3, 2, 0)}[OPT['map']]
        tab = sum(v << (4*i) for i, v in enumerate(perm))
        k.e("s_lshr_b32 s49, s27, 3")
        k.e("s_lshl_b32 s49, s49, 2")
        k.e(f"s_lshr_b32 s49, 0x{tab:x}, s49")
        k.e("s_and_b32 s49, s49, 3")
    else:
        k.e("s_and_b32 s49, s27, 3")
    k.e(f"s_add_u32 s{S_G}, s48, s49")
    if OPT['cpf'] >= 3:
        sk = k.u("nocpf")
        k.e(f"s_cmp_eq_u32 s{S_WAVE}, 3")
        k.e(f"s_cbranch_scc0 {sk}")
        k.e(f"s_bfe_u32 s62, s2, 0x{0x30003 if OPT['cpf'] == 3 else 0x20003:x}")
        k.e("s_cmp_eq_u32 s62, 1")
        k.e(f"s_cbranch_scc0 {sk}")
        k.e("s_getpc_b64 s[62:63]")
        k.lab("L_pc")
        k.e("s_and_b32 s62, s62, 0xffffff00")
        k.e("v_lshlrev_b32 v255, 7, v0")
        k.e(f"s_sub_u32 s62, s62, PF_BACK")
        k.e("s_subb_u32 s63, s63, 0")
        for j in range(3):
            k.e("global_load_dword v254, v255, s[62:63]")
            if j < 2: k.e("v_add_u32 v255, 8192, v255")
        k.lab(sk)
    k.e(f"s_cmp_lt_u32 s{S_WAVE}, 4")
    k.e("s_cbranch_scc1 L_consumer")

    loader(k)
    k.e("s_branch L_attn")

    k.lab("L_consumer")
    k.e("s_waitcnt lgkmcnt(0)")
    if OPT['fixdur']: k.e("s_mov_b32 s3, s100")
    if stamps: k.e("s_mov_b32 s72, s70")
    srd(k, SRD_WS, P_WS, 256 << 20)
    srd(k, SRD_T, P_DBG, 256)
    nn = k.u("nononce")
    k.e(f"s_or_b32 s58, s2, s{S_WAVE}")
    k.e("s_cmp_eq_u32 s58, 0")
    k.e(f"s_cbranch_scc0 {nn}")
    k.e("s_memrealtime s[58:59]")
    k.e("v_mov_b32 v2, 0")
    k.e("s_waitcnt lgkmcnt(0)")
    k.e("s_or_b32 s58, s58, 1")
    k.e("v_mov_b32 v3, s58")
    k.e(f"buffer_store_dword v3, v2, {sr(SRD_T,4)}, 0 offen sc1")
    k.lab(nn)
    srd(k, SRD_X, P_AW, 512*3072)
    k.e(f"s_and_b32 s27, s{S_WAVE}, 1")
    consumer_setup(k)
    attn_setup(k)
    k.e("s_mov_b32 s49, 0")
    k.e(f"s_mov_b32 s69, {SLOT}")
    k.e(f"s_cmp_ge_u32 s{S_WAVE}, 2")
    k.e("s_cbranch_scc1 L_qwave")

    k.e("s_barrier")
    k.stamp(1)
    reads(k, 'kv', 0, 0); reads(k, 'kv', 1, 1)
    consumer_tile(k, 'kv', 'B')
    k.stamp(2)
    k.c("B epilogue (kv)")
    read_nonce(k, 2, 3)
    k.e(f"s_lshl_b32 s62, s{S_G}, 2")
    k.e("s_lshl_b32 s63, s27, 1")
    k.e("s_add_u32 s62, s62, s63")
    k.e("s_lshl_b32 s62, s62, 6")
    k.e(f"s_lshl_b32 s63, s{S_RB}, 1")
    k.e("s_add_u32 s62, s62, s63")
    k.e("s_lshl_b32 s62, s62, 10")
    k.e("v_lshlrev_b32 v1, 4, v0")
    k.e("s_lshl_b32 s63, s27, 12")
    k.e(f"s_add_u32 s63, s63, {OK_L}")
    k.e("v_add_u32 v4, s63, v1")
    k.e("v_bfe_u32 v2, v0, 4, 1")
    k.e("v_lshrrev_b32 v3, 5, v0")
    k.e("v_lshlrev_b32 v3, 8, v3")
    k.e("v_and_b32 v5, 15, v0")
    k.e("v_lshlrev_b32 v5, 4, v5")
    k.e("v_add_u32 v3, v3, v5")
    k.e("v_lshlrev_b32 v5, 11, v2")
    k.e("v_add_u32 v5, v5, v3")
    k.e(f"s_add_u32 s63, s63, {OV_L - OK_L}")
    k.e("v_add_u32 v5, s63, v5")
    k.e("v_lshlrev_b32 v2, 16, v2")
    k.e("v_add_u32 v2, v2, v3")
    k.e(f"s_add_u32 s64, s62, {KB_G + 65536}")
    k.e(f"s_add_u32 s65, s62, {VB_G}")
    k.e("s_nop 3")
    for t in range(2):
        KF = EP + 16*t; VF = KF + 8
        cvt8(k, KF, ACC+16*t); cvt8(k, KF+4, ACC+16*t+8)
        cvt8(k, VF, ACC+32+16*t); cvt8(k, VF+4, ACC+32+16*t+8)
        k.e(f"buffer_store_dwordx4 {vr(KF,4)}, v1, {WS}, s62 offen offset:{t*1024} sc1")
        k.e(f"buffer_store_dwordx4 {vr(KF+4,4)}, v1, {WS}, s64 offen offset:{t*1024} sc1")
        k.e(f"buffer_store_dwordx4 {vr(VF,4)}, v2, {WS}, s65 offen offset:{t*1024} sc1")
        k.e(f"buffer_store_dwordx4 {vr(VF+4,4)}, v2, {WS}, s65 offen offset:{t*1024+512} sc1")
        k.e(f"ds_write_b128 v4, {vr(KF,4)} offset:{t*1024}")
        k.e(f"ds_write_b128 v4, {vr(KF+4,4)} offset:{t*1024+2048}")
        k.e(f"ds_write_b128 v5, {vr(VF,4)} offset:{t*1024}")
        k.e(f"ds_write_b128 v5, {vr(VF+4,4)} offset:{t*1024+512}")
    k.stamp(3)
    k.e("s_barrier")
    reads(k, 'kv', 0, 0); reads(k, 'kv', 1, 1)
    consumer_tile(k, 'kv', 'A')
    k.e("s_waitcnt lgkmcnt(0)")
    if OPT.get('x16st'): k.stamp(5)
    if OPT['x16pos'] == 0:
        k.e("s_barrier")
        k.stamp(4)
    k.c("A epilogue (kv)")
    if OPT['kvprio']: k.e("s_setprio 2")
    T = 72
    k.e(f"s_mov_b32 s61, {lit(LOG2E)}")
    k.e(f"s_mov_b32 s62, {lit(1e-6)}")
    k.e("s_mov_b32 s63, s62")
    k.e("s_mov_b32 s66, s61")
    k.e("s_mov_b32 s67, s61")
    PK, VV, ONES = 80, 96, 112
    for j in range(4): k.e(f"v_mov_b32 v{ONES+j}, 0x3f803f80")
    k.e("s_nop 4")
    for t in range(2):
        cvt8(k, VV+8*t, ACC+32+16*t); cvt8(k, VV+8*t+4, ACC+32+16*t+8)
    if OPT['x16pos'] == 1:
        k.e("s_barrier")
        k.stamp(4)
    DKV, DZ = ACC+32, ACC+48
    for t in range(2):
        phi(k, ACC+16*t, 16, T)
        cvt8(k, PK+8*t, ACC+16*t); cvt8(k, PK+8*t+4, ACC+16*t+8)
        k.e("s_nop 1")
        for m in range(2):
            first = (t == 0 and m == 0)
            k.e(f"{MF} {vr(DKV,16)}, {vr(PK+8*t+4*m,4)}, {vr(VV+8*t+4*m,4)}, {'0' if first else vr(DKV,16)}")
            k.e(f"{MF} {vr(DZ,16)}, {vr(ONES,4)}, {vr(PK+8*t+4*m,4)}, {'0' if first else vr(DZ,16)}")
        if OPT['x16pos'] == 2 and t == 0:
            k.e("s_barrier")
            k.stamp(4)
    k.e("s_mov_b32 s64, 0xffff0000")
    k.e("s_mov_b32 s65, 0xffff0000")
    k.e(f"s_lshl_b32 s63, s{S_G}, 1")
    k.e("s_add_u32 s63, s63, s27")
    k.e("s_lshl_b32 s63, s63, 12")
    k.e(f"s_add_u32 s63, s63, {KVACC}")
    k.e("v_lshlrev_b32 v3, 2, v0")
    k.e("v_bfe_i32 v4, v0, 4, 1")
    k.e("s_nop 4")
    RS = 120
    if OPT['bfi']:
        for t in range(8): k.e(f"v_bfi_b32 v{RS+t}, v4, v{DKV+8+t}, v{DKV+t}")
    else:
        for t in range(8): k.e(f"v_cndmask_b32 v{RS+t}, v{DKV+t}, v{DKV+8+t}, s[64:65]")
    for t in range(8): k.e(f"buffer_atomic_add_f32 v{RS+t}, v3, {WS}, s63 offen offset:{t*256}")
    k.e("s_mov_b32 exec_hi, 0")
    k.e(f"buffer_atomic_add_f32 v{DZ}, v3, {WS}, s63 offen offset:2048")
    k.e("s_mov_b64 exec, -1")
    if OPT['kvprio']: k.e("s_setprio 0")
    if OPT['x16pos'] == 3:
        k.e("s_barrier")
        k.stamp(4)
    k.e("s_branch L_e1")

    k.lab("L_qwave")
    k.e("v_mov_b32 v251, 0")
    k.e("s_barrier")
    k.stamp(1)
    reads(k, 'q', 0, 0); reads(k, 'q', 1, 1)
    def pf_extra(k):
        ex = k.u("pfx"); w3 = k.u("pfw3")
        n1 = k.u("nn1"); n2 = k.u("nn2")
        k.e(f"s_cmp_eq_u32 s{S_WAVE}, 2")
        k.e(f"s_cbranch_scc0 {n2}")
        k.e("s_cmp_eq_u32 s48, 1")
        k.e(f"s_cbranch_scc0 {n1}")
        k.e(f"buffer_load_dword v7, v251, {sr(SRD_T,4)}, 0 offen sc1")
        k.lab(n1)
        k.e("s_cmp_eq_u32 s48, 6")
        k.e(f"s_cbranch_scc0 {n2}")
        lp = k.u("np"); npx = k.u("npx"); chk = k.u("npc")
        k.e("s_mov_b32 s60, 0")
        k.e(f"s_branch {chk}")
        k.lab(lp)
        k.e(f"buffer_load_dword v7, v251, {sr(SRD_T,4)}, 0 offen sc1")
        k.lab(chk)
        spin_guard(k, 60, npx)
        k.e("s_waitcnt vmcnt(0)")
        k.e("v_readfirstlane_b32 s58, v7")
        k.e("s_nop 0")
        k.e("s_cmp_eq_u32 s58, 0")
        k.e(f"s_cbranch_scc1 {lp}")
        k.lab(npx)
        k.e("s_waitcnt vmcnt(0)")
        k.e(f"v_mov_b32 v250, {NONCE_L}")
        k.e("ds_write_b32 v250, v7")
        k.lab(n2)
    consumer_tile(k, 'q', 'B', pf_extra)
    k.stamp(2)
    k.c("B epilogue (q)")
    read_nonce(k, 2, 3)
    k.e(f"s_mov_b32 s61, {lit(CS)}")
    k.e("v_lshlrev_b32 v1, 4, v0")
    k.e("s_lshl_b32 s63, s27, 12")
    k.e(f"s_add_u32 s63, s63, {Q_L}")
    k.e("v_add_u32 v4, s63, v1")
    k.e("s_nop 6")
    for t in range(2):
        for i in range(16): k.e(f"v_mul_f32 v{ACC+16*t+i}, s61, v{ACC+16*t+i}")
        QF = EP + 8*t
        cvt8(k, QF, ACC+16*t); cvt8(k, QF+4, ACC+16*t+8)
        k.e(f"ds_write_b128 v4, {vr(QF,4)} offset:{t*1024}")
        k.e(f"ds_write_b128 v4, {vr(QF+4,4)} offset:{t*1024+2048}")
    k.stamp(3)
    k.e("s_barrier")
    reads(k, 'q', 0, 0); reads(k, 'q', 1, 1)
    consumer_tile(k, 'q', 'A')
    k.e("s_waitcnt lgkmcnt(0)")
    if OPT['x16pos'] < 2:
        k.e("s_barrier")
        k.stamp(4)
    k.c("A epilogue (q)")
    k.e(f"s_mov_b32 s61, {lit(LOG2E)}")
    k.e(f"s_mov_b32 s62, {lit(1e-6)}")
    k.e("s_mov_b32 s63, s62")
    k.e("s_mov_b32 s66, s61")
    k.e("s_mov_b32 s67, s61")
    k.e("v_lshlrev_b32 v1, 4, v0")
    k.e("s_lshl_b32 s65, s27, 12")
    k.e(f"s_add_u32 s65, s65, {PQ_L}")
    k.e("v_add_u32 v4, s65, v1")
    k.e("s_nop 6")
    for t in range(2):
        phi(k, ACC+16*t, 16, 72)
        QF = EP + 8*t
        cvt8(k, QF, ACC+16*t); cvt8(k, QF+4, ACC+16*t+8)
        k.e(f"ds_write_b128 v4, {vr(QF,4)} offset:{t*1024}")
        k.e(f"ds_write_b128 v4, {vr(QF+4,4)} offset:{t*1024+2048}")
        if OPT['x16pos'] == 2 and t == 0:
            k.e("s_barrier")
            k.stamp(4)
    k.e("s_waitcnt lgkmcnt(0)")
    if OPT['x16pos'] == 3:
        k.e("s_barrier")
        k.stamp(4)
    k.lab("L_e1")

    k.lab("L_attn")
    if OPT['prio']:
        sk = k.u("prio")
        k.e(f"s_cmp_ge_u32 s{S_WAVE}, 4")
        k.e(f"s_cbranch_scc{0 if OPT['prio'] == 1 else 1} {sk}")
        k.e("s_setprio 1")
        k.lab(sk)
    k.stamp(7)
    attention(k)
    k.stamp(9)
    apart(k)
    k.stamp(10)
    k.e("s_waitcnt vmcnt(0) lgkmcnt(0)")
    k.e("s_barrier")
    k.stamp(11)
    sk = k.u("nof2")
    k.e(f"s_cmp_eq_u32 s{S_WAVE}, 4")
    k.e(f"s_cbranch_scc0 {sk}")
    k.e(f"s_lshr_b32 s48, s{S_RB}, 1")
    k.e("s_lshl_b32 s48, s48, 11")
    k.e(f"s_and_b32 s49, s{S_RB}, 1")
    k.e("s_lshl_b32 s49, s49, 3")
    k.e(f"s_add_u32 s49, s49, s{S_G}")
    k.e("s_lshl_b32 s49, s49, 7")
    k.e("s_add_u32 s48, s48, s49")
    k.e(f"s_add_u32 s48, s48, {F2}")
    store_flag(k, 48)
    k.lab(sk)
    p3(k)
    k.lab("L_fin")
    if OPT['fixdur']:
        lp = k.u("fix")
        k.lab(lp)
        k.e("s_memrealtime s[90:91]")
        k.e("s_waitcnt lgkmcnt(0)")
        k.e("s_sub_u32 s90, s90, s3")
        k.e(f"s_cmp_lt_u32 s90, {OPT['fixdur']}")
        k.e(f"s_cbranch_scc1 {lp}")
    if stamps:
        k.stamp(13)
        k.e(f"s_lshl_b32 s48, s2, 3")
        k.e(f"s_add_u32 s48, s48, s{S_WAVE}")
        k.e("s_lshl_b32 s48, s48, 6")
        k.e(f"s_add_u32 s48, s48, {STAMP}")
        k.e("v_mov_b32 v9, 0")
        for j in range(16):
            k.e(f"v_mov_b32 v8, s{72+j}")
            k.e(f"buffer_store_dword v8, v9, {WS}, s48 offen offset:{4*j}")
            k.e("s_nop 0")
    if stamps and OPT['dbgstamps']:
        srd(k, SRD_T, P_DBG, 256)
        for wg, base in ((8, 1), (200, 8)):
            sk = k.u("nodbg")
            k.e(f"s_cmp_eq_u32 s2, {wg}")
            k.e(f"s_cbranch_scc0 {sk}")
            k.e(f"s_cmp_eq_u32 s{S_WAVE}, 0")
            k.e(f"s_cbranch_scc0 {sk}")
            k.e("v_mov_b32 v9, 0")
            for n, j in enumerate((1, 2, 4, 9, 10, 11, 13)):
                k.e(f"s_sub_u32 s48, s{72+j}, s72")
                k.e("v_mov_b32 v8, s48")
                k.e(f"buffer_store_dword v8, v9, {sr(SRD_T,4)}, 0 offen offset:{4*(base+n)}")
                k.e("s_nop 0")
            k.lab(sk)
    if OPT['stagest']:
        sk = k.u("nost")
        k.e(f"s_cmp_eq_u32 s{S_WAVE}, 4")
        k.e(f"s_cbranch_scc0 {sk}")
        k.e("s_lshl_b32 s48, s2, 8")
        k.e(f"s_add_u32 s48, s48, {STAMP + (1<<19)}")
        k.e("v_lshlrev_b32 v9, 2, v0")
        k.e(f"buffer_store_dword v252, v9, {WS}, s48 offen")
        k.lab(sk)
    k.lab("L_end")
    k.e("s_endpgm")
    return k

def issue_stage(k):
    k.e("s_lshl_b32 s52, s59, 7")
    k.e("s_mul_i32 s53, s59, 196608")
    k.e("s_mov_b32 m0, s51")
    k.e("s_add_u32 s54, s53, 23552")
    k.e(f"buffer_load_dwordx4 v1, {sr(SRD_X,4)}, s52 offen lds")
    k.e(f"buffer_load_dwordx4 v2, {sr(SRD_X,4)}, s52 offen offset:1024 lds")
    for p in range(3):
        k.e(f"s_add_u32 s55, s51, {8192 + p*8192}")
        k.e("s_mov_b32 m0, s55")
        if p: k.e(f"s_add_u32 s56, s53, {p*1024}"); so0 = "s56"
        else: so0 = "s53"; k.e("s_nop 0")
        k.e(f"buffer_load_dwordx4 v3, {sr(SRD_W,4)}, {so0} offen lds")
        if p: k.e(f"s_add_u32 s56, s54, {p*1024}"); so1 = "s56"
        else: so1 = "s54"
        k.e(f"buffer_load_dwordx4 v3, {sr(SRD_W,4)}, {so1} offen offset:1024 lds")
    k.e("s_add_u32 s57, s57, 1")
    k.e("s_add_u32 s59, s59, 1")
    k.e("s_and_b32 s59, s59, 7")
    k.e(f"s_add_u32 s51, s51, {SLOT}")
    k.e("s_and_b32 s58, s57, 3")
    sk = k.u("nowrap")
    k.e("s_cmp_eq_u32 s58, 0")
    k.e(f"s_cbranch_scc0 {sk}")
    k.e(f"s_sub_u32 s51, s51, {4*SLOT}")
    k.lab(sk)
    sk2 = k.u("nosw")
    k.e("s_cmp_eq_u32 s57, 8")
    k.e(f"s_cbranch_scc0 {sk2}")
    srd(k, SRD_X, P_AX, 2 << 20)
    srd(k, SRD_W, P_AW, 512*3072)
    k.e("s_mov_b32 s59, s61")
    k.lab(sk2)

def pf0(k):
    k.e("s_and_b32 s50, s2, 7")
    k.e("s_lshr_b32 s52, s2, 3")
    wx = k.u("pf0x"); ex = k.u("pf0e")
    k.e("s_cmp_lt_u32 s26, 3")
    k.e(f"s_cbranch_scc0 {wx}")
    srd(k, SRD_T, P_AW, 512*3072)
    k.e("v_lshrrev_b32 v5, 2, v0")
    k.e("s_lshl_b32 s53, s52, 4")
    k.e("v_add_u32 v5, s53, v5")
    k.e("v_mul_u32_u24 v5, 3072, v5")
    k.e("v_and_b32 v6, 3, v0")
    k.e("s_lshr_b32 s53, s50, 2")
    k.e("s_lshl_b32 s53, s53, 2")
    k.e("v_add_u32 v6, s53, v6")
    k.e("v_lshlrev_b32 v6, 7, v6")
    k.e("v_add_u32 v5, v5, v6")
    k.e("s_lshl_b32 s53, s26, 10")
    k.e(f"buffer_load_dword v6, v5, {sr(SRD_T,4)}, s53 offen")
    k.e(f"buffer_load_dword v7, v5, {sr(SRD_T,4)}, s53 offen")
    k.e(f"s_branch {ex}")
    k.lab(wx)
    srd(k, SRD_T, P_AX, 2 << 20)
    k.e("s_and_b32 s53, s50, 3")
    k.e("s_lshl_b32 s53, s53, 9")
    k.e("s_lshl_b32 s54, s52, 4")
    k.e("s_add_u32 s53, s53, s54")
    k.e("s_lshl_b32 s53, s53, 10")
    k.e("v_lshlrev_b32 v5, 7, v0")
    k.e(f"buffer_load_dword v6, v5, {sr(SRD_T,4)}, s53 offen")
    k.e("s_add_u32 s53, s53, 8192")
    k.e(f"buffer_load_dword v7, v5, {sr(SRD_T,4)}, s53 offen")
    k.lab(ex)

def pfsetup(k):
    k.e("s_and_b32 s50, s2, 7")
    k.e("s_lshr_b32 s52, s2, 3")
    k.e("s_mov_b32 s66, 1")
    wx = k.u("pfwx"); wo = k.u("pfwo"); ex = k.u("pfex")
    k.e("s_cmp_lt_u32 s26, 2")
    k.e(f"s_cbranch_scc0 {wx}")
    srd(k, SRD_T, P_BW, 512*3072)
    k.e("v_min_u32 v4, 11, v0")
    k.e("v_lshrrev_b32 v5, 2, v4")
    k.e("v_lshlrev_b32 v5, 10, v5")
    k.e("v_and_b32 v4, 3, v4")
    k.e("s_lshr_b32 s53, s50, 2")
    k.e("s_lshl_b32 s53, s53, 2")
    k.e("v_add_u32 v4, s53, v4")
    k.e("v_lshlrev_b32 v4, 7, v4")
    k.e("s_lshl_b32 s53, s52, 1")
    k.e("s_add_u32 s53, s53, s26")
    k.e("s_mul_i32 s53, s53, 3072")
    k.e("v_add3_u32 v4, v4, v5, s53")
    k.e("s_mov_b32 s65, 196608")
    k.e("s_mov_b32 s64, 196608")
    k.e(f"s_branch {ex}")
    k.lab(wx)
    k.e("s_cmp_eq_u32 s26, 2")
    k.e(f"s_cbranch_scc0 {wo}")
    srd(k, SRD_T, P_BX, 2 << 20)
    k.e("v_min_u32 v4, 15, v0")
    k.e("s_and_b32 s53, s50, 3")
    k.e("s_lshl_b32 s53, s53, 9")
    k.e("s_lshl_b32 s54, s52, 4")
    k.e("s_add_u32 s53, s53, s54")
    k.e("v_add_u32 v4, s53, v4")
    k.e("v_lshlrev_b32 v4, 10, v4")
    k.e("s_mov_b32 s65, 128")
    k.e("s_mov_b32 s64, 128")
    k.e(f"s_branch {ex}")
    k.lab(wo)
    k.e("s_lshr_b32 s53, s50, 2")
    k.e("s_cmp_eq_u32 s53, 0")
    k.e(f"s_cselect_b32 s{SRD_T}, s{P_AWO}, s{P_BWO}")
    k.e(f"s_cselect_b32 s{SRD_T+1}, s{P_AWO+1}, s{P_BWO+1}")
    k.e(f"s_mov_b32 s{SRD_T+2}, 0x{512*1024:x}")
    k.e(f"s_mov_b32 s{SRD_T+3}, 0x20000")
    k.e("v_min_u32 v4, 8, v0")
    k.e("v_lshlrev_b32 v4, 7, v4")
    k.e("s_lshl_b32 s53, s52, 14")
    k.e("v_add_u32 v4, s53, v4")
    k.e("s_mov_b32 s65, 1152")
    k.e("s_mov_b32 s64, 0")
    k.lab(ex)

def pf_issue(k):
    sk = k.u("pfsw")
    k.e("s_cmp_eq_u32 s66, 8")
    k.e(f"s_cbranch_scc0 {sk}")
    k.e("s_cmp_lt_u32 s26, 3")
    k.e(f"s_cbranch_scc0 {sk}")
    k.e("s_mov_b32 s64, 0")
    k.e("s_cmp_lt_u32 s26, 2")
    k.e(f"s_cselect_b32 s{SRD_T}, s{P_AW}, s{P_AX}")
    k.e(f"s_cselect_b32 s{SRD_T+1}, s{P_AW+1}, s{P_AX+1}")
    k.lab(sk)
    k.e(f"buffer_load_dword v5, v4, {sr(SRD_T,4)}, s64 offen")
    k.e("s_add_u32 s64, s64, s65")
    k.e("s_add_u32 s66, s66, 1")

def rot_value(k, mode, d):
    if mode >= 10:
        o = k.u("rot3"); e = k.u("rote")
        k.e(f"s_cmp_eq_u32 s{S_G}, 3")
        k.e(f"s_cbranch_scc1 {o}")
        rot_value(k, 4, d)
        k.e(f"s_branch {e}")
        k.lab(o)
        rot_value(k, mode - 10, d)
        k.lab(e)
        return
    if mode == 8:
        k.e(f"s_and_b32 s{d}, s{S_G}, 3"); k.e(f"s_lshl_b32 s{d}, s{d}, 1"); k.e(f"s_add_u32 s{d}, s{d}, s{S_RB}"); k.e(f"s_and_b32 s{d}, s{d}, 7")
    elif mode == 4:
        k.e(f"s_add_u32 s{d}, s{S_G}, s{S_RB}"); k.e(f"s_and_b32 s{d}, s{d}, 3"); k.e(f"s_lshl_b32 s{d}, s{d}, 1")
    elif mode == 2:
        k.e(f"s_add_u32 s{d}, s{S_G}, s{S_RB}"); k.e(f"s_and_b32 s{d}, s{d}, 1"); k.e(f"s_lshl_b32 s{d}, s{d}, 2")
    elif mode == 5:
        k.e(f"s_add_u32 s{d}, s{S_G}, s{S_RB}"); k.e(f"s_and_b32 s{d}, s{d}, 3"); k.e(f"s_lshl_b32 s{d}, s{d}, 1")
        k.e(f"s_bfe_u32 s62, s{S_RB}, 0x10002"); k.e(f"s_add_u32 s{d}, s{d}, s62")
    elif mode == 6:
        k.e(f"s_and_b32 s{d}, s{S_RB}, 3"); k.e(f"s_lshl_b32 s{d}, s{d}, 1")
    elif mode == 7:
        k.e(f"s_lshr_b32 s{d}, s{S_RB}, 1"); k.e(f"s_add_u32 s{d}, s{d}, s{S_G}"); k.e(f"s_and_b32 s{d}, s{d}, 3"); k.e(f"s_lshl_b32 s{d}, s{d}, 1")
    else:
        k.e(f"s_mov_b32 s{d}, 0")

def loader(k):
    if OPT['ldprio']: k.e(f"s_setprio {OPT['ldprio']}")
    k.e(f"s_sub_u32 s26, s{S_WAVE}, 4")
    k.e("v_lshrrev_b32 v4, 3, v0")
    k.e("v_and_b32 v5, 7, v0")
    k.e("v_lshrrev_b32 v6, 1, v4")
    k.e("v_xor_b32 v7, v5, v6")
    k.e("v_lshlrev_b32 v7, 4, v7")
    k.e(f"s_lshl_b32 s48, s{S_RB}, 6")
    k.e("s_lshl_b32 s49, s26, 4")
    k.e("s_add_u32 s48, s48, s49")
    k.e("v_add_u32 v1, s48, v4")
    k.e("v_lshlrev_b32 v1, 10, v1")
    k.e("v_add_u32 v2, 7168, v1")
    k.e("v_add_u32 v1, v1, v7")
    k.e("v_xor_b32 v7, 64, v7")
    k.e("v_add_u32 v2, v2, v7")
    k.e("v_add_u32 v3, s49, v4")
    k.e("v_mul_u32_u24 v3, 3072, v3")
    k.e("v_and_b32 v6, 2, v4")
    k.e("v_lshlrev_b32 v6, 1, v6")
    k.e("v_xor_b32 v6, v5, v6")
    k.e("v_lshlrev_b32 v6, 4, v6")
    k.e(f"s_lshl_b32 s49, s{S_G}, 7")
    k.e("v_add3_u32 v3, v3, v6, s49")
    k.e("s_lshl_b32 s51, s26, 11")
    k.e("s_mov_b32 s57, 0")
    rot_value(k, OPT['rot'], 59)
    k.e("s_waitcnt lgkmcnt(0)")
    if OPT['fixdur']: k.e("s_mov_b32 s3, s100")
    if k.stamps: k.e("s_mov_b32 s72, s70")
    srd(k, SRD_X, P_BX, 2 << 20)
    srd(k, SRD_W, P_BW, 512*3072)
    issue_stage(k)
    rot_value(k, OPT['rotA'] if OPT['rotA'] >= 0 else OPT['rot'], 61)
    if OPT['tpf']:
        pfsetup(k)
        for j in range(4): pf_issue(k)
    else:
        if OPT['pf0']: pf0(k)
        issue_stage(k)
    srd(k, SRD_WS, P_WS, 256 << 20)
    sk = k.u("nopf")
    k.e("s_mov_b32 s60, 0")
    k.e("s_cmp_eq_u32 s26, 3")
    k.e(f"s_cbranch_scc0 {sk}")
    if OPT['cpf'] == 1:
        k.e("s_bfe_u32 s62, s2, 0x30003")
        k.e("s_cmp_eq_u32 s62, 0")
        k.e(f"s_cbranch_scc0 {sk}")
    if OPT['cpf'] >= 2:
        k.e(f"s_branch {sk}")
    k.e("s_getpc_b64 s[62:63]")
    if OPT['cpf'] < 3: k.lab("L_pc")
    k.e("s_and_b32 s62, s62, 0xffffff00")
    k.e("v_lshlrev_b32 v8, 7, v0")
    k.e(f"s_sub_u32 s62, s62, PF_BACK")
    k.e("s_subb_u32 s63, s63, 0")
    k.e("global_load_dword v9, v8, s[62:63]")
    k.e("v_add_u32 v8, 8192, v8")
    k.e("global_load_dword v10, v8, s[62:63]")
    k.e("v_add_u32 v8, 8192, v8")
    k.e("global_load_dword v11, v8, s[62:63]")
    k.e("s_mov_b32 s60, 1")
    k.lab(sk)
    if OPT['pfm'] == 1:
        sk = k.u("nopfm"); w7 = k.u("pfm7")
        k.e("s_cmp_ge_u32 s26, 2")
        k.e(f"s_cbranch_scc0 {sk}")
        k.e("s_cmp_eq_u32 s26, 3")
        k.e(f"s_cbranch_scc1 {w7}")
        srd(k, SRD_T, P_AX, 2 << 20)
        k.e("s_lshl_b32 s62, s2, 13")
        k.e("v_lshlrev_b32 v8, 7, v0")
        k.e(f"buffer_load_dword v9, v8, {sr(SRD_T,4)}, s62 offen")
        k.e("s_mov_b32 s60, 2")
        k.e(f"s_branch {sk}")
        k.lab(w7)
        srd(k, SRD_T, P_AW, 512*3072)
        k.e("s_mul_i32 s62, s2, 6144")
        k.e("v_min_u32 v8, 47, v0")
        k.e("v_lshlrev_b32 v8, 7, v8")
        k.e(f"buffer_load_dword v9, v8, {sr(SRD_T,4)}, s62 offen")
        k.e("s_mov_b32 s60, 2")
        k.lab(sk)
    attn_setup(k)
    ny = 4 if OPT['tpf'] else (10 if OPT['pf0'] else 8)
    sk = k.u("w7"); sk2 = k.u("w7b")
    k.e("s_cmp_eq_u32 s60, 1")
    k.e(f"s_cbranch_scc1 {sk}")
    if OPT['pfm'] == 1:
        sk3 = k.u("w7c")
        k.e("s_cmp_eq_u32 s60, 2")
        k.e(f"s_cbranch_scc0 {sk3}")
        k.e(f"s_waitcnt vmcnt({ny+1})")
        k.e(f"s_branch {sk2}")
        k.lab(sk3)
    k.e(f"s_waitcnt vmcnt({ny})")
    k.e(f"s_branch {sk2}")
    k.lab(sk)
    k.e(f"s_waitcnt vmcnt({ny+3})")
    k.lab(sk2)
    k.e("s_barrier")
    if OPT['tpf']: issue_stage(k)
    issue_stage(k)
    sk = k.u("nozero")
    k.e(f"s_cmp_eq_u32 s{S_RB}, 0")
    k.e(f"s_cbranch_scc0 {sk}")
    k.e("s_cmp_lt_u32 s26, 2")
    k.e(f"s_cbranch_scc0 {sk}")
    k.e(f"s_lshl_b32 s48, s{S_G}, 1")
    k.e("s_add_u32 s48, s48, s26")
    k.e("s_lshl_b32 s48, s48, 12")
    k.e(f"s_add_u32 s48, s48, {KVACC}")
    for j in range(4): k.e(f"v_mov_b32 v{12+j}, 0")
    k.e("v_lshlrev_b32 v8, 4, v0")
    for j in range(3): k.e(f"buffer_store_dwordx4 v[12:15], v8, {WS}, s48 offen offset:{j*1024} sc1")
    k.e("s_waitcnt vmcnt(3)")
    k.lab(sk)
    k.stamp(1)
    k.e("s_mov_b32 s98, 0")
    k.e("s_mov_b32 s48, 0")
    lp = k.u("ldloop")
    k.lab(lp)
    w8 = k.u("w8"); w9 = k.u("w9"); wd = k.u("wd")
    k.e("s_cmp_eq_u32 s48, 7")
    k.e(f"s_cbranch_scc1 {wd}")
    if OPT['pfm'] >= 10:
        nwm = k.u("nwm")
        k.e(f"s_sub_u32 s49, s48, {OPT['pfm']-10+1}")
        k.e("s_cmp_lt_u32 s49, 2")
        k.e(f"s_cbranch_scc0 {nwm}")
        k.e("s_cmp_ge_u32 s26, 2")
        k.e(f"s_cbranch_scc0 {nwm}")
        k.e("s_waitcnt vmcnt(9)")
        k.e(f"s_branch {wd}")
        k.lab(nwm)
    if OPT['pf3']:
        nw3 = k.u("nw3")
        k.e(f"s_sub_u32 s49, s48, {OPT['pf3']+1}")
        k.e("s_cmp_lt_u32 s49, 2")
        k.e(f"s_cbranch_scc0 {nw3}")
        k.e("s_cmp_eq_u32 s98, 1")
        k.e(f"s_cbranch_scc0 {nw3}")
        k.e("s_waitcnt vmcnt(9)")
        k.e(f"s_branch {wd}")
        k.lab(nw3)
    if OPT['pf4']:
        w10 = k.u("w10"); nw = k.u("nw10")
        k.e(f"s_sub_u32 s49, s48, {OPT['pf4']+1}")
        k.e("s_cmp_lt_u32 s49, 2")
        k.e(f"s_cbranch_scc0 {nw}")
        k.e("s_waitcnt vmcnt(10)")
        k.e(f"s_branch {wd}")
        k.lab(nw)
    if not OPT['tpf']: k.e(f"s_branch {w8}")
    k.e("s_cmp_eq_u32 s48, 0")
    k.e(f"s_cbranch_scc1 {w8}")
    k.e("s_cmp_eq_u32 s48, 1")
    k.e(f"s_cbranch_scc1 {w9}")
    k.e("s_cmp_eq_u32 s48, 12")
    k.e(f"s_cbranch_scc1 {w9}")
    k.e("s_waitcnt vmcnt(10)")
    k.e(f"s_branch {wd}")
    k.lab(w9)
    k.e("s_waitcnt vmcnt(9)")
    k.e(f"s_branch {wd}")
    k.lab(w8)
    k.e("s_waitcnt vmcnt(8)")
    k.lab(wd)
    k.e("s_barrier")
    if OPT['stagest']:
        k.e("s_memrealtime s[90:91]"); k.e("s_waitcnt lgkmcnt(0)")
        k.e("s_mov_b32 m0, s48")
        k.e("s_nop 0")
        k.e("v_writelane_b32 v252, s90, m0")
    sk = k.u("nonn")
    k.e("s_cmp_eq_u32 s48, 7")
    k.e(f"s_cbranch_scc0 {sk}")
    read_nonce(k, 8, 9)
    k.lab(sk)
    sk = k.u("nosig2")
    k.e(f"s_cmp_eq_u32 s48, {OPT['sigs']}")
    k.e(f"s_cbranch_scc0 {sk}")
    k.e("s_cmp_eq_u32 s26, 0")
    k.e(f"s_cbranch_scc0 {sk}")
    k.e(f"s_lshl_b32 s49, s{S_G}, 12")
    k.e(f"s_lshl_b32 s50, s{S_RB}, 7")
    k.e("s_add_u32 s49, s49, s50")
    k.e(f"s_add_u32 s49, s49, {F1B}")
    store_flag(k, 49)
    k.lab(sk)
    if OPT['late9']:
        sk6 = k.u("skip6"); go6 = k.u("go6")
        k.e("s_cmp_eq_u32 s48, 6")
        if OPT['late9'] == 2:
            k.e(f"s_cbranch_scc0 {go6}")
            k.e(f"s_cmp_eq_u32 s{S_G}, 3")
        k.e(f"s_cbranch_scc1 {sk6}")
        k.lab(go6)
    issue_stage(k)
    if OPT['late9']: k.lab(sk6)
    if OPT['pfm'] >= 10:
        sk = k.u("nopfm"); w7 = k.u("pfm7")
        k.e(f"s_cmp_eq_u32 s48, {OPT['pfm']-10}")
        k.e(f"s_cbranch_scc0 {sk}")
        k.e("s_cmp_ge_u32 s26, 2")
        k.e(f"s_cbranch_scc0 {sk}")
        k.e("s_cmp_eq_u32 s26, 3")
        k.e(f"s_cbranch_scc1 {w7}")
        srd(k, SRD_T, P_AX, 2 << 20)
        k.e("s_lshl_b32 s62, s2, 13")
        k.e("v_lshlrev_b32 v8, 7, v0")
        k.e(f"buffer_load_dword v9, v8, {sr(SRD_T,4)}, s62 offen")
        k.e(f"s_branch {sk}")
        k.lab(w7)
        srd(k, SRD_T, P_AW, 512*3072)
        k.e("s_mul_i32 s62, s2, 6144")
        k.e("v_min_u32 v8, 47, v0")
        k.e("v_lshlrev_b32 v8, 7, v8")
        k.e(f"buffer_load_dword v9, v8, {sr(SRD_T,4)}, s62 offen")
        k.lab(sk)
    if OPT['pf3']:
        skp = k.u("nopf3")
        k.e(f"s_cmp_eq_u32 s48, {OPT['pf3']}")
        k.e(f"s_cbranch_scc0 {skp}")
        k.e("s_cmp_eq_u32 s26, 3")
        k.e(f"s_cbranch_scc0 {skp}")
        k.e(f"s_cmp_lt_u32 s{S_G}, 3")
        k.e(f"s_cbranch_scc0 {skp}")
        srd(k, SRD_T, P_AW, 512*3072)
        k.e(f"s_and_b32 s49, s{S_RB}, 7")
        k.e("s_mul_i32 s49, s49, 3")
        k.e(f"s_add_u32 s49, s49, s{S_G}")
        k.e("s_lshl_b32 s49, s49, 6")
        k.e("v_add_u32 v5, s49, v0")
        k.e("v_mul_u32_u24 v6, 21846, v5")
        k.e("v_lshrrev_b32 v6, 16, v6")
        k.e("v_mul_u32_u24 v7, 3, v6")
        k.e("v_sub_u32 v7, v5, v7")
        k.e("v_mul_u32_u24 v6, 3072, v6")
        k.e("v_lshlrev_b32 v7, 10, v7")
        k.e("v_add3_u32 v5, v6, v7, 384") if False else None
        k.e("v_add_u32 v5, v6, v7")
        k.e("v_add_u32 v5, 384, v5")
        k.e(f"buffer_load_dword v6, v5, {sr(SRD_T,4)}, 0 offen")
        k.e("s_mov_b32 s98, 1")
        k.lab(skp)
    if OPT['pf4']:
        skp = k.u("nopf4")
        k.e(f"s_cmp_eq_u32 s48, {OPT['pf4']}")
        k.e(f"s_cbranch_scc0 {skp}")
        pf0(k)
        k.lab(skp)
    sk = k.u("nosig")
    k.e("s_cmp_eq_u32 s48, 7")
    k.e(f"s_cbranch_scc0 {sk}")
    if OPT['late9'] == 1: issue_stage(k)
    if OPT['late9'] == 2:
        l9 = k.u("l9")
        k.e(f"s_cmp_eq_u32 s{S_G}, 3")
        k.e(f"s_cbranch_scc0 {l9}")
        issue_stage(k)
        k.lab(l9)
    k.e("s_waitcnt vmcnt(16)")
    k.e("s_barrier")
    k.lab(sk)

    if OPT['tpf']:
        sk = k.u("nopfi")
        k.e("s_cmp_le_u32 s48, 10")
        k.e(f"s_cbranch_scc0 {sk}")
        pf_issue(k)
        k.lab(sk)
    k.e("s_add_u32 s48, s48, 1")
    k.e("s_cmp_lt_u32 s48, 12")
    k.e(f"s_cbranch_scc1 {lp}")
    k.e(f"s_sub_u32 s48, s{S_RB}, 4")
    k.e("v_add_u32 v8, s48, v0")
    k.e("v_max_i32 v8, 0, v8")
    k.e("v_cmp_gt_u32 vcc, 4, v0")
    k.e(f"s_lshl_b32 s49, s{S_G}, 12")
    k.e(f"s_add_u32 s49, s49, {F1B}")
    k.e("v_cndmask_b32 v8, 0, v8, vcc")
    k.e("v_lshlrev_b32 v8, 7, v8")
    k.e("v_add_u32 v8, s49, v8")
    k.e("s_cmp_eq_u32 s26, 0")
    k.e("s_cselect_b32 s62, 31, 15")
    k.e("s_mov_b32 s63, 0")
    k.e("s_waitcnt vmcnt(8)");  k.e("s_barrier")
    k.e("s_mov_b64 exec, s[62:63]")
    k.e(f"buffer_load_dword v9, v8, {WS}, 0 offen sc1")
    k.e("s_mov_b64 exec, -1")
    issue_stage(k)
    k.e("s_waitcnt vmcnt(9)");  k.e("s_barrier")
    lp = k.u("f1b_lp"); ok = k.u("f1b_ok")
    k.e("s_mov_b64 exec, s[62:63]")
    k.e("s_waitcnt vmcnt(8)")
    k.e(f"v_cmp_ne_u32 vcc, s{S_NONCE}, v9")
    k.e("s_nop 1")
    k.e(f"s_cbranch_vccz {ok}")
    poll_flags(k, 8, 9, "f1b")
    k.lab(ok)
    k.e("s_mov_b64 exec, -1")
    k.stamp(5)
    if OPT['remdma']:
        sk = k.u("norem"); jn = k.u("remj")
        k.e(f"s_cmp_eq_u32 s{S_RB}, 0")
        k.e(f"s_cbranch_scc1 {sk}")
        k.e("v_lshlrev_b32 v8, 4, v0")
        k.e(f"s_lshl_b32 s48, s{S_G}, 2")
        k.e("s_add_u32 s48, s48, s26")
        k.e("s_lshl_b32 s48, s48, 6")
        k.e(f"s_lshl_b32 s49, s{S_RB}, 1")
        k.e("s_sub_u32 s49, s49, 8")
        k.e("s_lshl_b32 s52, s26, 13")
        def rem(base_g, base_l):
            for j in range(8):
                k.e(f"s_add_i32 s50, s49, {j}")
                k.e("s_max_i32 s50, s50, 0")
                k.e("s_add_u32 s50, s50, s48")
                k.e("s_lshl_b32 s50, s50, 10")
                if base_g: k.e(f"s_add_u32 s50, s50, {base_g}")
                k.e(f"s_add_u32 s51, s52, {base_l + j*1024}")
                k.e("s_mov_b32 m0, s51")
                k.e("s_nop 0")
                k.e(f"buffer_load_dwordx4 v8, {WS}, s50 offen sc1 lds")
        rem(KB_G, RK_L)
        if OPT['vpre']:
            VS = [86, 87, 88, 89, 92, 93, 94, 100]
            for j in range(8):
                k.e(f"s_add_i32 s50, s49, {j}")
                k.e("s_max_i32 s50, s50, 0")
                k.e("s_add_u32 s50, s50, s48")
                k.e("s_lshl_b32 s50, s50, 10")
                k.e(f"s_add_u32 s{VS[j]}, s50, {VB_G}")
            k.e(f"s_add_u32 s51, s52, {RV_L}")
            k.e("s_waitcnt vmcnt(8)");  k.e("s_barrier")
            for j in range(8):
                k.e("s_mov_b32 m0, s51")
                k.e("s_add_u32 s51, s51, 1024")
                k.e(f"buffer_load_dwordx4 v8, {WS}, s{VS[j]} offen sc1 lds")
        else:
            k.e("s_waitcnt vmcnt(8)");  k.e("s_barrier")
            rem(VB_G, RV_L)
        k.e("s_barrier")
        k.e("s_waitcnt vmcnt(0)")
        k.e(f"s_branch {jn}")
        k.lab(sk)
        k.e("s_waitcnt vmcnt(0)");  k.e("s_barrier")
        k.e("s_barrier")
        k.lab(jn)
    else:
        sk = k.u("norem"); jn = k.u("remj")
        k.e(f"s_cmp_eq_u32 s{S_RB}, 0")
        k.e(f"s_cbranch_scc1 {sk}")
        k.e("v_lshlrev_b32 v8, 4, v0")
        k.e(f"s_lshl_b32 s48, s{S_G}, 2")
        k.e("s_add_u32 s48, s48, s26")
        k.e("s_lshl_b32 s48, s48, 6")
        k.e(f"s_lshl_b32 s49, s{S_RB}, 1")
        k.e("s_sub_u32 s49, s49, 8")
        for j in range(8):
            k.e(f"s_add_i32 s50, s49, {j}")
            k.e("s_max_i32 s50, s50, 0")
            k.e("s_add_u32 s50, s50, s48")
            k.e("s_lshl_b32 s50, s50, 10")
            k.e(f"s_add_u32 s51, s50, {VB_G}")
            k.e(f"buffer_load_dwordx4 {vr(16+4*j,4)}, v8, {WS}, s50 offen sc1")
            k.e(f"buffer_load_dwordx4 {vr(48+4*j,4)}, v8, {WS}, s51 offen sc1")
        k.e("s_waitcnt vmcnt(16)");  k.e("s_barrier")
        k.e("s_lshl_b32 s48, s26, 13")
        k.e("v_add_u32 v9, s48, v8")
        for j in range(8):
            k.e(f"s_waitcnt vmcnt({14-2*j})")
            k.e(f"ds_write_b128 v9, {vr(16+4*j,4)} offset:{RK_L + j*1024}")
            k.e(f"ds_write_b128 v9, {vr(48+4*j,4)} offset:{RV_L + j*1024}")
            if j == 3: k.e("s_barrier")
        k.e(f"s_branch {jn}")
        k.lab(sk)
        k.e("s_waitcnt vmcnt(0)");  k.e("s_barrier")
        k.e("s_barrier")
        k.lab(jn)
    k.e("s_waitcnt lgkmcnt(0)")
    k.stamp(6)
    if OPT['ldprio']: k.e("s_setprio 0")
    k.e("s_barrier")
    k.stamp(4)

AQ_, AKF, AS, AMD, AMF, ACN, AP, AVB, AO = 4, 8, [44, 60, 76], 216, 232, 124, 140, [148, 156], 176
AM, AT = 192, 193
AK0, AK7, AK8, AV0, AV7, AV8 = 196, 197, 198, 199, 200, 201
KVR = 208
VPOLL, VPA, VPOLL2 = 248, 249, 253

def v_reads(k, buf, vaddr, off):
    k.e("s_mov_b64 exec, s[64:65]")
    k.e(f"ds_read_b128 {vr(AVB[buf],4)}, v{vaddr} offset:{off}")
    k.e(f"ds_read_b128 {vr(AVB[buf]+4,4)}, v{vaddr} offset:{off+512}")
    k.e("s_mov_b64 exec, -1")

def sig_f1a(k):
    sk = k.u("nosigA")
    k.e(f"s_cmp_lt_u32 s{S_WAVE}, 2")
    k.e(f"s_cbranch_scc0 {sk}")
    if OPT.get('sigst'): k.stamp(5)
    k.e("s_waitcnt vmcnt(0)")
    if OPT.get('sigst'): k.stamp(6)
    k.e(f"s_lshl_b32 s52, s{S_G}, 13")
    k.e(f"s_lshl_b32 s53, s{S_RB}, 1")
    k.e(f"s_add_u32 s53, s53, s{S_WAVE}")
    k.e("s_lshl_b32 s53, s53, 7")
    k.e("s_add_u32 s52, s52, s53")
    k.e(f"s_add_u32 s52, s52, {F1A}")
    store_flag(k, 52)
    k.lab(sk)

def attn_setup(k):
    k.e(f"s_and_b32 s86, s{S_WAVE}, 1")
    k.e(f"s_lshr_b32 s87, s{S_WAVE}, 1")
    k.e(f"v_lshlrev_b32 v{AT}, 4, v0")
    k.e("s_lshl_b32 s88, s86, 10")
    k.e("s_lshl_b32 s89, s87, 13")
    k.e("s_lshl_b32 s92, s87, 11")
    k.e("s_add_u32 s93, s89, s88")
    k.e(f"v_add_u32 v{AK0}, s93, v{AT}")
    k.e(f"s_add_u32 s94, s89, {7*1024}")
    k.e(f"s_add_u32 s100, s92, {OK_L}")
    k.e("s_cmp_eq_u32 s86, 0")
    k.e("s_cselect_b32 s94, s94, s100")
    k.e(f"v_add_u32 v{AK7}, s94, v{AT}")
    k.e("s_add_u32 s100, s100, s88")
    k.e(f"v_add_u32 v{AK8}, s100, v{AT}")
    k.e("v_lshrrev_b32 v202, 5, v0")
    k.e("v_lshlrev_b32 v202, 8, v202")
    k.e("v_and_b32 v203, 15, v0")
    k.e("v_lshlrev_b32 v203, 4, v203")
    k.e("v_add_u32 v202, v202, v203")
    k.e(f"s_add_u32 s94, s93, {RV_L}")
    k.e(f"v_add_u32 v{AV0}, s94, v202")
    k.e(f"s_add_u32 s94, s89, {RV_L + 7*1024}")
    k.e(f"s_add_u32 s100, s92, {OV_L}")
    k.e("s_cmp_eq_u32 s86, 0")
    k.e("s_cselect_b32 s94, s94, s100")
    k.e(f"v_add_u32 v{AV7}, s94, v202")
    k.e("s_add_u32 s100, s100, s88")
    k.e(f"v_add_u32 v{AV8}, s100, v202")
    k.e("v_and_b32 v202, 31, v0")
    k.e("v_lshrrev_b32 v203, 5, v0")
    k.e("v_lshlrev_b32 v203, 2, v203")
    k.e("v_sub_u32 v202, v202, v203")
    k.e("v_cvt_f32_i32 v202, v202")
    k.e(f"v_mov_b32 v203, {lit(BIG)}")
    for i in range(16):
        ci = 8*(i >> 2) + (i & 3)
        k.e(f"v_fmaak_f32 v{AMD+i}, v202, v203, {lit((0.5-ci)*BIG)}")
    for i in range(16): k.e(f"v_min_f32 v{AMF+i}, -v{AMD+i}, 0")
    for i in range(16): k.e(f"v_min_f32 v{AMD+i}, 0, v{AMD+i}")
    k.e(f"v_mov_b32 v{AM}, 0xff7fffff")
    k.e(f"s_lshl_b32 s87, s{S_G}, 13")
    k.e(f"s_add_u32 s87, s87, {F1A}")
    k.e(f"v_lshlrev_b32 v{VPA}, 7, v0")
    k.e(f"v_add_u32 v{VPA}, s87, v{VPA}")

def wo_setup(k):
    k.e("s_and_b32 s50, s2, 7")
    k.e("s_lshr_b32 s51, s2, 3")
    k.e("s_lshr_b32 s52, s50, 2")
    k.e("s_lshr_b32 s53, s51, 2")
    k.e("s_cmp_eq_u32 s52, 0")
    k.e(f"s_cselect_b32 s{SRD_WO}, s{P_AWO}, s{P_BWO}")
    k.e(f"s_cselect_b32 s{SRD_WO+1}, s{P_AWO+1}, s{P_BWO+1}")
    k.e(f"s_mov_b32 s{SRD_WO+2}, 0x{512*1024:x}")
    k.e(f"s_mov_b32 s{SRD_WO+3}, 0x20000")
    k.e("v_lshrrev_b32 v204, 3, v0")
    k.e("v_and_b32 v205, 7, v0")
    k.e("v_and_b32 v206, 2, v204")
    k.e("v_lshlrev_b32 v206, 1, v206")
    k.e("v_xor_b32 v206, v205, v206")
    k.e("v_lshlrev_b32 v206, 4, v206")
    k.e(f"s_sub_u32 s54, s{S_WAVE}, 4")
    if OPT['wosplit']:
        a = OPT['wosplit']
        starts = [0, a, 2*a, 2*a + (16 - a)]
        tab = sum(v << (8*i) for i, v in enumerate(starts))
        k.e("s_lshl_b32 s55, s54, 3")
        k.e(f"s_lshr_b32 s55, 0x{tab:x}, s55")
        k.e("s_and_b32 s55, s55, 0xff")
        k.e("s_lshl_b32 s50, s55, 4")
    else:
        k.e("s_lshl_b32 s50, s54, 7")
    k.e("v_add_u32 v204, s50, v204")
    k.e("v_lshlrev_b32 v204, 10, v204")
    k.e("s_lshl_b32 s96, s50, 7")
    k.e("s_lshl_b32 s50, s53, 7")
    k.e("v_add3_u32 v205, v204, v206, s50")
    k.e(f"s_add_u32 s96, s96, {WO_L}")
    k.e("s_mov_b32 s97, 0")

def wo_pair(k):
    k.e("s_mov_b32 m0, s96")
    k.e("s_add_u32 s98, s97, 7168")
    k.e(f"buffer_load_dwordx4 v205, {sr(SRD_WO,4)}, s97 offen lds")
    k.e(f"buffer_load_dwordx4 v205, {sr(SRD_WO,4)}, s98 offen offset:1024 lds")
    k.e("s_add_u32 s96, s96, 2048")
    k.e("s_add_u32 s97, s97, 16384")

KVL = 0
def kv_loads(k):
    k.stamp(14)
    k.e(f"s_lshl_b32 s50, s{S_G}, 13")
    k.e(f"s_add_u32 s50, s50, {KVACC}")
    k.e("s_add_u32 s51, s50, 4096")
    k.e(f"buffer_load_dwordx4 {vr(KVR,4)}, v1, {WS}, s50 offen sc1")
    k.e(f"buffer_load_dwordx4 {vr(KVR+4,4)}, v1, {WS}, s50 offen offset:1024 sc1")
    k.e(f"buffer_load_dwordx4 {vr(164,4)}, v1, {WS}, s51 offen sc1")
    k.e(f"buffer_load_dwordx4 {vr(168,4)}, v1, {WS}, s51 offen offset:1024 sc1")
    k.e("v_lshrrev_b32 v202, 5, v0")
    k.e("v_lshlrev_b32 v202, 12, v202")
    k.e("v_and_b32 v203, 31, v0")
    k.e("v_lshl_add_u32 v202, v203, 2, v202")
    k.e(f"buffer_load_dword v172, v202, {WS}, s50 offen offset:2048 sc1")

def attention(k):
    k.c("attention: i = w&1 (s26), hh = w>>1 (s27), qt = s48, s99 = kv loads issued flag")
    if OPT['lprio'] >= 0:
        sk = k.u("lp")
        k.e(f"s_cmp_ge_u32 s{S_WAVE}, 4")
        k.e(f"s_cbranch_scc0 {sk}")
        k.e("s_setprio 1")
        k.lab(sk)
    k.e(f"s_and_b32 s26, s{S_WAVE}, 1")
    k.e(f"s_lshr_b32 s27, s{S_WAVE}, 1")
    k.e(f"s_lshl_b32 s48, s{S_RB}, 1")
    k.e("s_add_u32 s48, s48, s26")
    k.e("v_lshlrev_b32 v1, 4, v0")
    k.e("s_lshl_b32 s49, s27, 11")
    k.e("s_lshl_b32 s50, s26, 10")
    k.e("s_add_u32 s49, s49, s50")
    k.e(f"s_add_u32 s49, s49, {Q_L}")
    k.e("v_add_u32 v2, s49, v1")
    k.e(f"ds_read_b128 {vr(AQ_,4)}, v2")
    def kaddr(p): return (AK0, RK_L + p*1024) if p <= 6 else ((AK7, 0) if p == 7 else (AK8, 0))
    def vaddr(p): return (AV0, p*1024) if p <= 6 else ((AV7, 0) if p == 7 else (AV8, 0))
    for p in range(9):
        a, o = kaddr(p); k.e(f"ds_read_b128 {vr(AKF+4*p,4)}, v{a} offset:{o}")
    k.e("s_mov_b32 s64, 0xffff")
    k.e("s_mov_b32 s65, 0xffff")
    k.e("s_mov_b32 s99, 0")
    for b in range(2):
        for j in range(8): k.e(f"v_mov_b32 v{AVB[b]+j}, 0x3f803f80")
    def wo_block():
        sk = k.u("nowo")
        k.e(f"s_cmp_ge_u32 s{S_WAVE}, 4")
        k.e(f"s_cbranch_scc0 {sk}")
        wo_setup(k)
        if OPT['wosplit']:
            a = OPT['wosplit']
            for j in range(a): wo_pair(k)
            k.e(f"s_cmp_ge_u32 s{S_WAVE}, 6")
            k.e(f"s_cbranch_scc0 {sk}")
            for j in range(16 - 2*a): wo_pair(k)
        else:
            for j in range(8): wo_pair(k)
        k.lab(sk)
    if OPT['wopos'] == 0: wo_block()
    Q = vr(AQ_, 4)
    def qk(dst, p, c): k.e(f"{MF} {vr(dst,16)}, {vr(AKF+4*p,4)}, {Q}, {c}")
    def c1(p): return vr(AMF,16) if p == 0 else (vr(AMD,16) if p == 8 else "0")
    def c2(p): return vr(AMF,16) if p == 0 else (vr(AMD,16) if p == 8 else vr(ACN,16))
    k.e("s_sub_i32 s95, 8, s48")
    k.e("s_max_i32 s95, s95, 0")
    P1 = [k.u(f"p1_{p}") for p in range(9)]
    P2 = [k.u(f"p2_{p}") for p in range(9)]
    E1 = [k.u(f"e1_{p}") for p in range(9)]
    E2 = [k.u(f"e2_{p}") for p in range(9)]
    k.e("s_waitcnt lgkmcnt(0)")
    for p in range(1, 9):
        k.e(f"s_cmp_eq_u32 s95, {p}")
        k.e(f"s_cbranch_scc1 {E1[p]}")
    qk(AS[0], 0, c1(0)); qk(AS[1], 1, c1(1)); qk(AS[2], 2, c1(2))
    k.e("s_nop 9")
    for p in range(9):
        k.lab(P1[p])
        s_ = AS[p % 3]
        for j in range(8): k.e(f"v_max3_f32 v{AM}, v{s_+2*j}, v{s_+2*j+1}, v{AM}")
        if p + 3 <= 8: qk(s_, p + 3, c1(p + 3))
    k.e(f"v_mov_b32 v{AT}, v{AM}")
    k.e("s_nop 1")
    k.e(f"v_permlane32_swap_b32 v{AM}, v{AT}")
    k.e(f"v_max_f32 v{AM}, v{AM}, v{AT}")
    k.e(f"v_sub_f32 v{AM}, 0, v{AM}")
    for i in range(16): k.e(f"v_mov_b32 v{ACN+i}, v{AM}")
    MRG = OPT['merge']
    if not MRG:
        for i in range(16): k.e(f"v_add_f32 v{AMD+i}, v{AMD+i}, v{AM}")
    if OPT['wopos'] == 1: wo_block()
    k.stamp(8)
    k.e("s_cmp_eq_u32 s95, 0")
    sh = k.u("short2")
    k.e(f"s_cbranch_scc0 {sh}")
    if MRG:
        k.e("s_mov_b32 s62, 0xffff")
        for i in range(16): k.e(f"v_ashrrev_i32 v{AMF+i}, 31, v{AMD+i}")
        v_reads(k, 1, *vaddr(1))
        qk(AS[1], 1, c2(1))
        for j in range(8): k.e(f"v_bfi_b32 v{AMD+j}, s62, v{AMF+2*j}, v{AMF+2*j+1}")
    else:
        for i in range(16): k.e(f"v_add_f32 v{AMF+i}, v{AMF+i}, v{AM}")
        v_reads(k, 0, *vaddr(0))
        k.e("s_nop 0")
        qk(AS[0], 0, c2(0))
        k.e("s_nop 6")
    mrgblk = k.u("merged"); afterm = k.u("afterm")
    for p in range(9):
        if MRG and p == 0: continue
        k.lab(P2[p])
        cur = AS[p % 2]; nxt = AS[(p + 1) % 2]
        if MRG and p == 8:
            k.e("s_cmp_eq_u32 s95, 0")
            k.e(f"s_cbranch_scc1 {mrgblk}")
        if p < 8:
            if MRG and p == 7:
                sk7 = k.u("m7"); j7 = k.u("j7")
                k.e("s_cmp_eq_u32 s95, 0")
                k.e(f"s_cbranch_scc0 {sk7}")
                qk(nxt, 8, vr(ACN,16)); qk(AS[2], 0, vr(ACN,16))
                k.e(f"s_branch {j7}")
                k.lab(sk7)
                qk(nxt, 8, vr(AMD,16))
                k.lab(j7)
            else:
                qk(nxt, p + 1, c2(p + 1))
            v_reads(k, (p + 1) % 2, *vaddr(p + 1))
        hooks = k.u("nohook")
        if p == OPT['lprio']: k.e("s_setprio 0")
        if p == OPT['sigp']:
            k.e("s_cmp_eq_u32 s95, 0")
            k.e(f"s_cbranch_scc0 {hooks}")
            sig_f1a(k)
            k.lab(hooks)
        if p >= OPT['pollp'] and (p - OPT['pollp']) % OPT['pollstep'] == 0:
            hk = k.u("hk")
            vp = VPOLL if (p - OPT['pollp']) % 2 == 0 else VPOLL2
            k.e(f"s_cmp_eq_u32 s{S_WAVE}, 4")
            k.e(f"s_cbranch_scc0 {hk}")
            k.e("s_cmp_eq_u32 s95, 0")
            k.e(f"s_cbranch_scc0 {hk}")
            k.e("s_cmp_eq_u32 s99, 0")
            k.e(f"s_cbranch_scc0 {hk}")
            if p >= OPT['pollp'] + 2:
                got = k.u("got")
                k.e(f"s_waitcnt vmcnt({1 if OPT['pollstep'] == 1 else 0})")
                k.e(f"v_cmp_ne_u32 vcc, s{S_NONCE}, v{vp}")
                k.e("s_nop 1")
                k.e(f"s_cbranch_vccz {got}")
                k.e(f"buffer_load_dword v{vp}, v{VPA}, {WS}, 0 offen sc1")
                k.e(f"s_branch {hk}")
                k.lab(got)
                kv_loads(k)
                k.e("s_mov_b32 s99, 1")
            else:
                k.e(f"buffer_load_dword v{vp}, v{VPA}, {WS}, 0 offen sc1")
            k.lab(hk)
        for j in range(16): k.e(f"v_exp_f32 v{cur+j}, v{cur+j}")
        for j in range(8): k.e(f"v_cvt_pk_bf16_f32 v{AP+j}, v{cur+2*j}, v{cur+2*j+1}")
        k.e(f"s_waitcnt lgkmcnt({2 if p < 8 else 0})")
        vb = AVB[p % 2]
        k.e(f"{MF} {vr(AO,16)}, {vr(vb,4)}, {vr(AP,4)}, {'0' if p == (1 if MRG else 0) else vr(AO,16)}")
        k.e("s_nop 0")
        k.e(f"{MF} {vr(AO,16)}, {vr(vb+4,4)}, {vr(AP+4,4)}, {vr(AO,16)}")
    done = k.u("attdone")
    k.e(f"s_branch {done}")
    if MRG:
        k.lab(mrgblk)
        SD, SF = AS[0], AS[2]
        v_reads(k, 1, *vaddr(0))
        hk = k.u("hkm"); got = k.u("gotm")
        vp = VPOLL if (8 - OPT['pollp']) % 2 == 0 else VPOLL2
        k.e(f"s_cmp_eq_u32 s{S_WAVE}, 4")
        k.e(f"s_cbranch_scc0 {hk}")
        k.e("s_cmp_eq_u32 s99, 0")
        k.e(f"s_cbranch_scc0 {hk}")
        k.e("s_waitcnt vmcnt(1)")
        k.e(f"v_cmp_ne_u32 vcc, s{S_NONCE}, v{vp}")
        k.e("s_nop 1")
        k.e(f"s_cbranch_vccnz {hk}")
        kv_loads(k)
        k.e("s_mov_b32 s99, 1")
        k.lab(hk)
        k.e("s_nop 3")
        for i in range(16): k.e(f"v_bfi_b32 v{SD+i}, v{AMF+i}, v{SF+i}, v{SD+i}")
        for j in range(16): k.e(f"v_exp_f32 v{SD+j}, v{SD+j}")
        for j in range(8): k.e(f"v_cvt_pk_bf16_f32 v{AP+j}, v{SD+2*j}, v{SD+2*j+1}")
        for j in range(8): k.e(f"v_and_b32 v{SF+j}, v{AP+j}, v{AMD+j}")
        for j in range(8): k.e(f"v_xor_b32 v{AP+j}, v{AP+j}, v{SF+j}")
        k.e("s_waitcnt lgkmcnt(0)")
        k.e(f"{MF} {vr(AO,16)}, {vr(AVB[1],4)}, {vr(SF,4)}, {vr(AO,16)}")
        k.e(f"{MF} {vr(AO,16)}, {vr(AVB[1]+4,4)}, {vr(SF+4,4)}, {vr(AO,16)}")
        k.e(f"{MF} {vr(AO,16)}, {vr(AVB[0],4)}, {vr(AP,4)}, {vr(AO,16)}")
        k.e(f"{MF} {vr(AO,16)}, {vr(AVB[0]+4,4)}, {vr(AP+4,4)}, {vr(AO,16)}")
        k.e(f"s_branch {done}")
    for p in range(1, 9):
        k.lab(E1[p])
        for q in range(p, min(p + 3, 9)): qk(AS[q % 3], q, c1(q))
        k.e("s_nop 10")
        k.e(f"s_branch {P1[p]}")
    k.lab(sh)
    if MRG:
        for i in range(16): k.e(f"v_add_f32 v{AMD+i}, v{AMD+i}, v{AM}")
    for i in range(16): k.e(f"v_mov_b32 v{AO+i}, 0")
    sig_f1a(k)
    sk = k.u("shpoll")
    k.e(f"s_cmp_eq_u32 s{S_WAVE}, 4")
    k.e(f"s_cbranch_scc0 {sk}")
    k.e(f"buffer_load_dword v{VPOLL}, v{VPA}, {WS}, 0 offen sc1")
    k.lab(sk)
    for p in range(1, 9):
        k.e(f"s_cmp_eq_u32 s95, {p}")
        k.e(f"s_cbranch_scc1 {E2[p]}")
    k.e(f"s_branch {E2[8]}")
    for p in range(1, 9):
        k.lab(E2[p])
        qk(AS[p % 2], p, c2(p))
        v_reads(k, p % 2, *vaddr(p))
        k.e("s_nop 6")
        k.e(f"s_branch {P2[p]}")
    k.lab(done)

def apart(k):
    sk = k.u("kvdone")
    k.e(f"s_cmp_eq_u32 s{S_WAVE}, 4")
    k.e(f"s_cbranch_scc0 {sk}")
    k.e("s_cmp_eq_u32 s99, 1")
    k.e(f"s_cbranch_scc1 {sk}")
    poll_flags(k, VPA, VPOLL, "f1a")
    kv_loads(k)
    k.lab(sk)
    k.e("s_nop 8")
    k.e(f"v_rcp_f32 v{AT}, v{AO+8}")
    k.e("s_nop 0")
    for j in range(8): k.e(f"v_mul_f32 v{AO+j}, v{AO+j}, v{AT}")
    cvt8(k, AP, AO)
    k.e(f"s_lshl_b32 s49, s{S_G}, 2")
    k.e("s_add_u32 s49, s49, s27")
    k.e("s_lshl_b32 s50, s48, 5")
    k.e("s_add_u32 s49, s49, s50")
    k.e("s_lshl_b32 s49, s49, 10")
    k.e(f"s_add_u32 s50, s49, {O_G + (2<<20)}")
    k.e(f"buffer_store_dwordx4 {vr(AP,4)}, v1, {WS}, s50 offen sc1")
    k.e("s_barrier")
    sk = k.u("nokvw")
    k.e(f"s_cmp_eq_u32 s{S_WAVE}, 4")
    k.e(f"s_cbranch_scc0 {sk}")
    k.e("s_waitcnt vmcnt(1)")
    k.e(f"ds_write_b128 v1, {vr(KVR,4)} offset:{KVL}")
    k.e(f"ds_write_b128 v1, {vr(KVR+4,4)} offset:{KVL+1024}")
    k.e(f"ds_write_b128 v1, {vr(164,4)} offset:{KVL+4096}")
    k.e(f"ds_write_b128 v1, {vr(168,4)} offset:{KVL+4096+1024}")
    k.e("v_lshrrev_b32 v202, 5, v0")
    k.e("v_lshlrev_b32 v202, 12, v202")
    k.e("v_and_b32 v203, 31, v0")
    k.e("v_lshl_add_u32 v202, v203, 2, v202")
    k.e(f"ds_write_b32 v202, v172 offset:{KVL+2048}")
    k.e("s_waitcnt lgkmcnt(0)")
    k.lab(sk)
    k.e("s_lshr_b32 s51, s27, 1")
    k.e("s_lshl_b32 s51, s51, 12")
    k.e("s_and_b32 s52, s27, 1")
    k.e("s_lshl_b32 s52, s52, 6")
    k.e("s_add_u32 s51, s51, s52")
    k.e("v_lshrrev_b32 v203, 5, v0")
    k.e("v_and_b32 v202, 15, v0")
    k.e("v_lshl_add_u32 v202, v203, 5, v202")
    k.e("v_lshlrev_b32 v202, 2, v202")
    k.e("v_add_u32 v202, s51, v202")
    k.e("v_lshlrev_b32 v203, 4, v203")
    k.e("v_add_u32 v203, s51, v203")
    k.e("s_lshl_b32 s51, s27, 11")
    k.e("s_lshl_b32 s50, s26, 10")
    k.e("s_add_u32 s51, s51, s50")
    k.e(f"s_add_u32 s51, s51, {PQ_L}")
    k.e("v_add_u32 v2, s51, v1")
    k.e(f"ds_read_b128 {vr(AQ_,4)}, v2")
    k.e("s_barrier")
    k.stamp(15)
    k.e("s_mov_b64 exec, s[64:65]")
    for t in range(8): k.e(f"ds_read_b32 v{KVR+t}, v202 offset:{KVL + t*256}")
    k.e("s_not_b64 exec, s[64:65]")
    k.e(f"ds_read_b128 {vr(KVR,4)}, v203 offset:{KVL+2048}")
    k.e(f"ds_read_b128 {vr(KVR+4,4)}, v203 offset:{KVL+2048+32}")
    k.e("s_mov_b64 exec, -1")
    k.e("s_waitcnt lgkmcnt(0)")
    cvt8(k, 8, KVR)
    k.e("s_nop 1")
    k.e(f"{MF} {vr(44,16)}, {vr(8,4)}, {vr(AQ_,4)}, 0")
    k.e(f"s_mov_b32 s62, {lit(1e-6)}")
    k.e("s_nop 10")
    k.e("v_add_f32 v12, s62, v52")
    k.e("v_rcp_f32 v12, v12")
    k.e("s_nop 0")
    for j in range(8): k.e(f"v_mul_f32 v{44+j}, v{44+j}, v12")
    cvt8(k, 16, 44)
    k.e(f"s_add_u32 s50, s49, {O_G}")
    k.e(f"buffer_store_dwordx4 {vr(16,4)}, v1, {WS}, s50 offen sc1")

def p3(k):
    k.c("P3: out tile 128x64")
    k.e("s_and_b32 s48, s2, 7")
    k.e("s_lshr_b32 s49, s2, 3")
    k.e("s_lshr_b32 s66, s48, 2")
    k.e("s_and_b32 s67, s48, 3")
    k.e("s_lshl_b32 s67, s67, 2")
    k.e("s_and_b32 s50, s49, 3")
    k.e("s_add_u32 s67, s67, s50")
    k.e("s_lshr_b32 s68, s49, 2")
    k.e("s_lshl_b32 s48, s67, 11")
    k.e(f"s_add_u32 s48, s48, {F2}")
    k.e("v_and_b32 v8, 15, v0")
    k.e("v_lshlrev_b32 v8, 7, v8")
    k.e("v_add_u32 v8, s48, v8")
    OF, ACC3, WF = 8+4, 144, [176, 184]
    VA0, VA1 = 192, 193
    k.e("v_bfe_u32 v2, v0, 2, 2")
    k.e("v_and_b32 v3, 3, v0")
    k.e("v_bfe_u32 v4, v0, 4, 1")
    k.e("v_lshrrev_b32 v5, 5, v0")
    k.e("v_lshlrev_b32 v5, 2, v5")
    k.e("v_add_u32 v5, v5, v2")
    k.e("v_lshlrev_b32 v5, 7, v5")
    k.e("v_and_b32 v6, 1, v3")
    k.e("v_lshlrev_b32 v6, 1, v6")
    k.e("v_add_u32 v6, v6, v4")
    k.e("v_and_b32 v7, 2, v2")
    k.e("v_lshlrev_b32 v7, 1, v7")
    k.e("v_xor_b32 v6, v6, v7")
    k.e("v_lshlrev_b32 v6, 4, v6")
    k.e("v_lshrrev_b32 v3, 1, v3")
    k.e("v_lshlrev_b32 v3, 3, v3")
    k.e("v_add3_u32 v5, v5, v6, v3")
    SLOWG = OPT['slowg']
    VB0 = 194
    k.e(f"v_add_u32 v{VB0}, {WO_L}, v5")
    k.e("s_lshl_b32 s48, s67, 2")
    k.e(f"s_add_u32 s48, s48, s{S_WAVE}")
    k.e("s_lshl_b32 s49, s48, 15")
    k.e("s_lshl_b32 s50, s66, 21")
    k.e("s_add_u32 s49, s49, s50")
    k.e(f"s_add_u32 s49, s49, {O_G}")
    k.e("v_lshlrev_b32 v1, 4, v0")
    GR = [86, 87, 88, 89, 92, 93, 94, 100]
    NOSLOW = SLOWG == 8
    if NOSLOW:
        for u in range(8):
            k.e(f"s_add_u32 s52, s68, {u}")
            k.e(f"s_and_b32 s{GR[u]}, s52, 7")
    k.e("s_cmp_eq_u32 s68, 7")
    k.e("s_cselect_b32 s51, 0, s68")
    for u in range(0 if NOSLOW else 7):
        k.e(f"s_add_u32 s52, s51, {u}")
        k.e("s_cmp_ge_u32 s52, 7")
        k.e("s_cselect_b32 s53, 7, 0")
        k.e("s_sub_u32 s52, s52, s53")
        k.e(f"s_cmp_ge_u32 s52, {SLOWG}")
        k.e("s_cselect_b32 s53, 1, 0")
        k.e(f"s_add_u32 s{GR[u]}, s52, s53")
    if not NOSLOW: k.e(f"s_mov_b32 s{GR[7]}, {SLOWG}")
    k.e(f"s_lshr_b32 s52, s{S_WAVE}, 1")
    k.e("s_and_b32 s52, s52, 1")
    k.e("s_lshl_b32 s52, s52, 3")
    k.e(f"s_add_u32 s52, s52, {SLOWG}")
    k.e("s_lshl_b32 s52, s52, 7")
    k.e("s_lshl_b32 s53, s67, 11")
    k.e("s_add_u32 s52, s52, s53")
    k.e(f"s_add_u32 s52, s52, {F2}")
    k.e("v_mov_b32 v10, s52")
    sk = k.u("nof2poll")
    k.e(f"s_cmp_eq_u32 s{S_WAVE}, 0")
    k.e(f"s_cbranch_scc0 {sk}")
    k.e(f"s_mov_b64 exec, 0x{0xffff if NOSLOW else 0xffff & ~((1 << SLOWG) | (1 << (8 + SLOWG))):x}")
    poll_flags(k, 8, 9, "f2")
    k.e("s_mov_b64 exec, -1")
    k.lab(sk)
    k.e("s_barrier")
    k.e(f"s_cmp_ge_u32 s{S_WAVE}, 4")
    k.e("s_cbranch_scc1 L_fin")
    k.stamp(12)
    def oload(hd):
        u = hd >> 2
        if hd % 4 == 0 or True:
            k.e(f"s_lshl_b32 s52, s{GR[u]}, 12")
            k.e("s_add_u32 s52, s52, s49")
        k.e(f"buffer_load_dwordx4 {vr(OF+4*hd,4)}, v1, {WS}, s52 offen offset:{(hd%4)*1024} sc1")
    for hd in range(16): oload(hd)
    def setva(u):
        k.e(f"s_lshl_b32 s52, s{GR[u]}, 13")
        k.e(f"v_add_u32 v{VA0}, s52, v{VB0}")
        k.e(f"v_xor_b32 v{VA1}, 64, v{VA0}")
    def wreads(buf, j):
        for b in range(2):
            for s2 in range(2):
                k.e(f"ds_read_b64_tr_b16 {vr(WF[buf]+4*b+2*s2,2)}, v{VA0+b} offset:{j*2048 + s2*1024}")
    def slow_loads():
        for hd in range(28, 32): oload(hd)
        k.e("s_mov_b32 s54, 1")
    PI, PC = OPT['p3poll'], 24
    k.e("s_mov_b32 s54, 0")
    setva(0)
    wreads(0, 0)
    for hd in range(32 if NOSLOW else 0):
        if hd < 31:
            nj = (hd + 1) % 4
            if nj == 0: setva((hd + 1)//4)
            wreads((hd + 1) % 2, nj)
        last = min(31, 15 + hd)
        k.e(f"s_waitcnt vmcnt({last - hd}) lgkmcnt({4 if hd < 31 else 0})")
        if 16 + hd <= 31: oload(16 + hd)
        for b in range(2):
            k.e(f"{MF} {vr(ACC3+16*b,16)}, {vr(WF[hd%2]+4*b,4)}, {vr(OF+4*hd,4)}, {'0' if hd == 0 else vr(ACC3+16*b,16)}")
    for hd in range(0 if NOSLOW else 32):
        if hd == 28:
            sk = k.u("slowok")
            k.e("s_cmp_eq_u32 s54, 1")
            k.e(f"s_cbranch_scc1 {sk}")
            k.e("s_mov_b64 exec, 1")
            poll_flags(k, 10, 9, "f2s")
            k.e("s_mov_b64 exec, -1")
            slow_loads()
            k.lab(sk)
        if hd < 31:
            nj = (hd + 1) % 4
            if nj == 0: setva((hd + 1)//4)
            wreads((hd + 1) % 2, nj)
        if hd < 28:
            last = min(27, 15 + hd)
            n = last - hd + (1 if hd > PI else 0)
            if hd >= PC: n = None
        else:
            n = 31 - hd
        if hd == PC:
            k.e(f"s_waitcnt vmcnt(0) lgkmcnt(4)")
            sk = k.u("notyet")
            k.e("s_mov_b64 exec, 1")
            k.e(f"v_cmp_ne_u32 vcc, s{S_NONCE}, v9")
            k.e("s_mov_b64 exec, -1")
            k.e("s_nop 0")
            k.e(f"s_cbranch_vccnz {sk}")
            slow_loads()
            k.lab(sk)
        elif n is None:
            k.e("s_waitcnt lgkmcnt(4)")
        else:
            k.e(f"s_waitcnt vmcnt({n}) lgkmcnt({4 if hd < 31 else 0})")
        if 16 + hd <= 27: oload(16 + hd)
        if hd == PI:
            k.e("s_mov_b64 exec, 1")
            k.e(f"buffer_load_dword v9, v10, {WS}, 0 offen sc1")
            k.e("s_mov_b64 exec, -1")
        if OPT.get('p3st') and hd in (0, 8, 31):
            k.stamp({0: 5, 8: 6, 31: 8}[hd])
        for b in range(2):
            k.e(f"{MF} {vr(ACC3+16*b,16)}, {vr(WF[hd%2]+4*b,4)}, {vr(OF+4*hd,4)}, {'0' if hd == 0 else vr(ACC3+16*b,16)}")
    srd(k, SRD_T, P_OUT, 4 << 20)
    k.e("v_and_b32 v2, 31, v0")
    k.e("s_lshl_b32 s49, s48, 5")
    k.e("v_add_u32 v2, s49, v2")
    k.e("v_lshlrev_b32 v2, 11, v2")
    k.e("v_lshrrev_b32 v3, 5, v0")
    k.e("v_lshlrev_b32 v3, 5, v3")
    k.e("s_lshl_b32 s49, s66, 10")
    k.e("s_lshl_b32 s50, s68, 7")
    k.e("s_add_u32 s49, s49, s50")
    k.e("v_add3_u32 v2, v2, v3, s49")
    k.e("s_nop 3")
    for b in range(2):
        for j in range(8): k.e(f"v_cvt_pk_bf16_f32 v{12+8*b+j}, v{ACC3+16*b+2*j}, v{ACC3+16*b+2*j+1}")
    for b in range(2):
        fl = {0: "", 1: " sc1", 2: " nt", 3: " sc0 sc1"}[OPT['outf']]
        k.e(f"buffer_store_dwordx4 {vr(12+8*b,4)}, v2, {sr(SRD_T,4)}, 0 offen offset:{64*b}{fl}")
        k.e(f"buffer_store_dwordx4 {vr(16+8*b,4)}, v2, {sr(SRD_T,4)}, 0 offen offset:{64*b+16}{fl}")

HDR = """; Kernarg layout for this problem (72 bytes, ptrs only, base s[0:1]):
;   offset   0: d_in[0] A_x  shape=(1, 2048, 512) dtype=bfloat16 strides=(2097152, 1024, 2) contiguous=True
;   offset   8: d_in[1] A_wqkv  shape=(512, 1536) dtype=bfloat16 strides=(3072, 2) contiguous=True
;   offset  16: d_in[2] A_wo  shape=(512, 512) dtype=bfloat16 strides=(1024, 2) contiguous=True
;   offset  24: d_in[3] B_x  shape=(1, 2048, 512) dtype=bfloat16 strides=(2097152, 1024, 2) contiguous=True
;   offset  32: d_in[4] B_wqkv  shape=(512, 1536) dtype=bfloat16 strides=(3072, 2) contiguous=True
;   offset  40: d_in[5] B_wo  shape=(512, 512) dtype=bfloat16 strides=(1024, 2) contiguous=True
;   offset  48: d_out     shape=(1, 2048, 1024) dtype=bfloat16 (2 bytes/elem)
;   offset  56: d_debug   256 bytes
;   offset  64: d_ws      268435456 bytes workspace
;
; One persistent launch, 256 workgroups (one per CU) x 8 waves.  Workgroup = (64-row block rb, 4-head group g).
;   P1  QKV GEMMs (branch B tile, then branch A tile): waves 4-7 stream x / W through a 4-slot LDS ring (LDS-DMA),
;       waves 0,1 accumulate k,v and waves 2,3 accumulate q.  B's K/V fragments go to d_ws for the neighbouring row
;       blocks, A's phi(k)^T v and sum phi(k) are accumulated in d_ws with f32 atomics.
;   P2  sliding-window attention, one (32-query tile, head) unit per wave (two passes: true row max, then exp / PV),
;       then the linear-attention output of the same unit.
;   P3  output projection, 128x64 tile per workgroup.
; Hand-offs between workgroups: write-through (sc1) stores, drained, then a flag word holding a per-launch nonce.
; @launch grid=(256,1,1) block=(512,1,1) lds=163840
.amdgcn_target "amdgcn-amd-amdhsa--gfx950"
.text
.globl KNAME
.p2align 8
.type KNAME,@function
""".replace("KNAME", KNAME)

TAIL = """.section .rodata,"a"
.p2align 6
.amdhsa_kernel KNAME
  .amdhsa_next_free_vgpr 256
  .amdhsa_next_free_sgpr 102
  .amdhsa_accum_offset 256
  .amdhsa_group_segment_fixed_size 0
  .amdhsa_kernarg_size 72
  .amdhsa_user_sgpr_count 2
  .amdhsa_user_sgpr_kernarg_segment_ptr 1
  .amdhsa_system_sgpr_workgroup_id_x 1
.end_amdhsa_kernel
""".replace("KNAME", KNAME)

def build(stamps=False):
    k = gen(stamps)
    body = "\n".join(k.L)
    body = body.replace("PF_BACK", f"((L_pc - {KNAME}) & 0xffffff00)")
    pad = "\n    .fill 2048, 4, 0xbf800000\n"
    hdr, tail = HDR, TAIL
    if OPT['extra']:
        hdr = hdr.replace("; @launch grid=(256,1,1) block=(512,1,1) lds=163840", f"; @launch kernel={KNAME} grid=(256,1,1) block=(512,1,1) lds=163840\n; @launch kernel=nop_kernel grid=(1,1,1) block=(64,1,1) lds=0")
        pad += ".globl nop_kernel\n.p2align 8\n.type nop_kernel,@function\nnop_kernel:\n    s_endpgm\n"
        tail += """.p2align 6
.amdhsa_kernel nop_kernel
  .amdhsa_next_free_vgpr 8
  .amdhsa_next_free_sgpr 16
  .amdhsa_accum_offset 8
  .amdhsa_group_segment_fixed_size 0
  .amdhsa_kernarg_size 72
  .amdhsa_user_sgpr_count 2
  .amdhsa_user_sgpr_kernarg_segment_ptr 1
  .amdhsa_system_sgpr_workgroup_id_x 1
.end_amdhsa_kernel
"""
    return hdr + body + pad + "\n" + tail

if __name__ == "__main__":
    out = sys.argv[1] if len(sys.argv) > 1 else "out.s"
    stamps = "stamps" in sys.argv[2:]
    for a in sys.argv[2:]:
        if "=" in a:
            kk, vv = a.split("="); OPT[kk] = int(vv)
    txt = build(stamps)
    open(out, "w").write(txt)
    import hz
    pr = hz.check(txt)
    import subprocess
    r = subprocess.run(["clang", "-x", "assembler", "-target", "amdgcn-amd-amdhsa", "-mcpu=gfx950", "-c", out, "-o", "_chk.o"], capture_output=True, text=True)
    print("hazards:", len(pr), "lines:", txt.count("\n"), "asm:", "ok" if r.returncode == 0 else r.stderr)
```

```python
import sys, math, struct

KNAME = "concat_heads__linear_attn_block__sliding_block__prompt_kernel"

KB_G   = 0
VB_G   = 2 << 20
O_G    = 4 << 20
KVACC  = 8 << 20
FL     = (8 << 20) + (64 << 10)
F1B    = FL
F1A    = FL + (32 << 10)
F2     = FL + (96 << 10)
STAMP  = 9 << 20
SLOT   = 32768
OK_L, OV_L, Q_L, PQ_L = 131072, 139264, 147456, 155648
NONCE_L = PQ_L
RK_L, RV_L, WO_L = 0, 32768, 65536
CS = 0.25 * math.log2(math.e)
LOG2E = math.log2(math.e)
BIG = 1.0e28
SPIN_MAX = 2000000
OPT = dict(rot=4, pfB=0, pfA=1, dbgstamps=0, stagest=0, pfs=1, tpf=0, p3st=0, map=2, outf=2, extra=0, sigs=9, pf0=0, late9=0, remdma=1, m16=0, npre=16, pf4=0, pkphi=1, prio=0, kvprio=1, pollp=4, sigp=3, fixdur=0, ldprio=0, wopos=1, sigst=0, wosplit=0, lprio=-1, slowg=3, p3poll=14, pf3=0, x16st=0, sleep=1, rotA=-1, bfi=1, vpre=1, x16pos=2, merge=0, pollstep=1, cpf=3, pfm=1, pfwo=0)

def f2u(x): return struct.unpack('<I', struct.pack('<f', x))[0]
def lit(x): return "0x%08x" % f2u(x)

class K:
    def __init__(self, stamps=False):
        self.L = []; self.stamps = stamps; self.uid = 0; self.inp1 = False
    def e(self, s):
        if self.inp1 and OPT['m16'] and s.startswith("v_mfma_f32_32x32x16_bf16"):
            import re
            m = re.match(r"v_mfma_f32_32x32x16_bf16 v\[(\d+):\d+\], (v\[\d+:\d+\]), (v\[\d+:\d+\]), (.*)", s)
            d = int(m.group(1)); c = m.group(4)
            for h in range(2):
                cc = "0" if c == "0" else f"v[{d+4*h}:{d+4*h+3}]"
                self.L.append(f"    v_mfma_f32_16x16x32_bf16 v[{d+4*h}:{d+4*h+3}], {m.group(2)}, {m.group(3)}, {cc}")
            return
        self.L.append("    " + s)
    def c(self, s): self.L.append("    ; " + s)
    def lab(self, s): self.L.append(s + ":")
    def u(self, p):
        self.uid += 1; return f"L_{p}_{self.uid}"
    def stamp(self, k):
        if not self.stamps: return
        self.e("s_memrealtime s[70:71]")
        self.e("s_waitcnt lgkmcnt(0)")
        self.e(f"s_mov_b32 s{72+k}, s70")

def vr(a, n): return f"v[{a}:{a+n-1}]"
def sr(a, n): return f"s[{a}:{a+n-1}]"
MF = "v_mfma_f32_32x32x16_bf16"

S_WAVE, S_RB, S_G, S_NONCE = 22, 23, 24, 25
SRD_WS, SRD_X, SRD_W, SRD_T, SRD_WO = 28, 32, 36, 40, 44
P_AX, P_AW, P_AWO, P_BX, P_BW, P_BWO, P_OUT, P_DBG, P_WS = 4, 6, 8, 10, 12, 14, 16, 18, 20
WS = sr(SRD_WS, 4)

def srd(k, dst, ptr, size):
    k.e(f"s_mov_b32 s{dst}, s{ptr}")
    k.e(f"s_mov_b32 s{dst+1}, s{ptr+1}")
    k.e(f"s_mov_b32 s{dst+2}, 0x{size:x}")
    k.e(f"s_mov_b32 s{dst+3}, 0x20000")

def spin_guard(k, sreg, exit_label):
    k.e(f"s_add_u32 s{sreg}, s{sreg}, 1")
    k.e(f"s_cmp_gt_u32 s{sreg}, {SPIN_MAX}")
    k.e(f"s_cbranch_scc1 {exit_label}")

def poll_flags(k, vaddr, vtmp, name, first_issued=False, sleep=1):
    lp = k.u(name + "_poll"); ex = k.u(name + "_done"); chk = k.u(name + "_chk")
    k.e("s_mov_b32 s60, 0")
    if first_issued: k.e(f"s_branch {chk}")
    k.lab(lp)
    k.e(f"buffer_load_dword v{vtmp}, v{vaddr}, {WS}, 0 offen sc1")
    k.lab(chk)
    spin_guard(k, 60, ex)
    k.e("s_waitcnt vmcnt(0)")
    k.e(f"v_cmp_ne_u32 vcc, s{S_NONCE}, v{vtmp}")
    k.e("s_nop 1")
    k.e(f"s_cbranch_vccz {ex}")
    if OPT['sleep']: k.e(f"s_sleep {OPT['sleep']}")
    k.e(f"s_branch {lp}")
    k.lab(ex)
    k.e("s_waitcnt vmcnt(0)")

def store_flag(k, soff):
    k.e(f"v_mov_b32 v250, s{S_NONCE}")
    k.e("v_mov_b32 v251, 0")
    k.e("s_mov_b64 exec, 1")
    k.e(f"buffer_store_dword v250, v251, {WS}, s{soff} offen sc1")
    k.e("s_mov_b64 exec, -1")

def cvt8(k, dst, src):
    for j in range(4): k.e(f"v_cvt_pk_bf16_f32 v{dst+j}, v{src+2*j}, v{src+2*j+1}")

def phi(k, r, n, t):
    if not OPT['pkphi']:
        for i in range(0, n, 4):
            for j in range(4): k.e(f"v_mul_f32 v{t+j}, s61, v{r+i+j}")
            for j in range(4): k.e(f"v_exp_f32 v{t+j}, v{t+j} clamp")
            for j in range(4): k.e(f"v_max_f32 v{r+i+j}, 0, v{r+i+j}")
            for j in range(4): k.e(f"v_add_f32 v{r+i+j}, s62, v{r+i+j}")
            for j in range(4): k.e(f"v_add_f32 v{r+i+j}, v{t+j}, v{r+i+j}")
        return
    for i in range(0, n, 8):
        for j in range(0, 8, 2): k.e(f"v_pk_mul_f32 {vr(t+j,2)}, {vr(r+i+j,2)}, s[66:67]")
        for j in range(8): k.e(f"v_exp_f32 v{t+j}, v{t+j} clamp")
        for j in range(8): k.e(f"v_max_f32 v{r+i+j}, 0, v{r+i+j}")
        for j in range(0, 8, 2): k.e(f"v_pk_add_f32 {vr(r+i+j,2)}, {vr(r+i+j,2)}, s[62:63]")
        for j in range(0, 8, 2): k.e(f"v_pk_add_f32 {vr(r+i+j,2)}, {vr(r+i+j,2)}, {vr(t+j,2)}")

ACC = 8
BUF = [72, 88, 104, 120]
VXA, VWA = 136, 140
EP = 144
PFD = 208

def rd_x(k, buf, j, t): k.e(f"ds_read_b128 {vr(BUF[buf]+4*t,4)}, v{VXA+j} offset:{t*4096}")
def rd_w(k, buf, j, p, slot):
    for s2 in range(2):
        k.e(f"ds_read_b64_tr_b16 {vr(BUF[buf]+8+4*slot+2*s2,2)}, v{VWA} offset:{p*8192 + j*2048 + s2*512}")
def reads(k, role, buf, j):
    rd_x(k, buf, j, 0); rd_x(k, buf, j, 1)
    if role == 'kv': rd_w(k, buf, j, 1, 0); rd_w(k, buf, j, 2, 1)
    else: rd_w(k, buf, j, 0, 0)

def kstep(k, role, br, j, first=False, noreads=False, wait=None):
    nb = (j + 2) & 3; b = BUF[j]
    if noreads:
        X = [vr(b,4), vr(b+4,4)]; W = [vr(b+8,4), vr(b+12,4)]
        k.e(f"s_waitcnt lgkmcnt({wait})")
        for t in range(2):
            a = ACC + 16*t
            if role == 'kv' and br == 'A': k.e(f"{MF} {vr(a,16)}, {X[t]}, {W[0]}, {vr(a,16)}")
            else: k.e(f"{MF} {vr(a,16)}, {W[0]}, {X[t]}, {vr(a,16)}")
        if role == 'kv':
            for t in range(2):
                a = ACC + 32 + 16*t
                k.e(f"{MF} {vr(a,16)}, {X[t]}, {W[1]}, {vr(a,16)}")
        return
    X = [vr(b,4), vr(b+4,4)]; W = [vr(b+8,4), vr(b+12,4)]
    def C(a): return "0" if first else vr(a,16)
    if role == 'kv':
        k.e("s_waitcnt lgkmcnt(6)")
        for t in range(2):
            a = ACC + 16*t
            if br == 'B': k.e(f"{MF} {vr(a,16)}, {W[0]}, {X[t]}, {C(a)}")
            else:         k.e(f"{MF} {vr(a,16)}, {X[t]}, {W[0]}, {C(a)}")
            if t == 0: rd_x(k, nb, nb, 0); rd_x(k, nb, nb, 1)
            else: rd_w(k, nb, nb, 1, 0)
        for t in range(2):
            a = ACC + 32 + 16*t
            k.e(f"{MF} {vr(a,16)}, {X[t]}, {W[1]}, {C(a)}")
            if t == 0: rd_w(k, nb, nb, 2, 1)
    else:
        k.e("s_waitcnt lgkmcnt(4)")
        for t in range(2):
            a = ACC + 16*t
            k.e(f"{MF} {vr(a,16)}, {W[0]}, {X[t]}, {C(a)}")
            if t == 0: rd_x(k, nb, nb, 0); rd_x(k, nb, nb, 1)
            else: rd_w(k, nb, nb, 0, 0)

def consumer_tile(k, role, br, extra=None):
    lp = k.u("c"+role+br); ex = k.u("cx"+role+br)
    k.inp1 = True
    k.e("s_mov_b32 s48, 0")
    kstep(k, role, br, 0, first=True)
    k.lab(lp)
    k.e("s_add_u32 s49, s49, 1")
    k.e("s_and_b32 s50, s49, 3")
    k.e("s_cmp_eq_u32 s50, 0")
    k.e(f"s_cselect_b32 s50, 0x{(-3*SLOT) & 0xffffffff:x}, s69")
    kstep(k, role, br, 1)
    if extra: extra(k)
    if br == 'A' and role == 'kv':
        sk = k.u("novm")
        k.e(f"s_cmp_eq_u32 s48, {OPT['sigs']-8}")
        k.e(f"s_cbranch_scc0 {sk}")
        k.e("s_waitcnt vmcnt(0)")
        k.lab(sk)
    for j in range(4): k.e(f"v_add_u32 v{VXA+j}, s50, v{VXA+j}")
    k.e(f"v_add_u32 v{VWA}, s50, v{VWA}")
    k.e("s_barrier")
    k.e("s_cmp_lt_u32 s48, 7")
    k.e(f"s_cbranch_scc0 {ex}")
    kstep(k, role, br, 2)
    kstep(k, role, br, 3)
    k.e("s_add_u32 s48, s48, 1")
    kstep(k, role, br, 0)
    k.e(f"s_branch {lp}")
    k.lab(ex)
    n = 6 if role == 'kv' else 4
    kstep(k, role, br, 2, noreads=True, wait=n)
    kstep(k, role, br, 3, noreads=True, wait=0)
    k.inp1 = False

def consumer_setup(k):
    k.e("v_and_b32 v1, 31, v0")
    k.e("v_lshrrev_b32 v2, 5, v0")
    k.e("v_bfe_u32 v3, v0, 1, 3")
    k.e("v_xor_b32 v3, v3, v2")
    k.e("v_lshlrev_b32 v3, 4, v3")
    k.e("v_lshlrev_b32 v1, 7, v1")
    k.e(f"v_add_u32 v{VXA}, v1, v3")
    for j in range(1, 4): k.e(f"v_xor_b32 v{VXA+j}, {j<<5}, v{VXA}")
    k.e("v_bfe_u32 v1, v0, 2, 2")
    k.e("v_and_b32 v2, 3, v0")
    k.e("v_bfe_u32 v3, v0, 4, 1")
    k.e("v_lshrrev_b32 v4, 5, v0")
    k.e("v_lshlrev_b32 v4, 3, v4")
    k.e("v_add_u32 v4, v4, v1")
    k.e("v_lshlrev_b32 v4, 7, v4")
    k.e("v_lshlrev_b32 v3, 1, v3")
    k.e("v_lshrrev_b32 v5, 1, v2")
    k.e("v_add_u32 v3, v3, v5")
    k.e("s_lshl_b32 s48, s27, 2")
    k.e("v_add_u32 v3, s48, v3")
    k.e("v_and_b32 v5, 2, v1")
    k.e("v_lshlrev_b32 v5, 1, v5")
    k.e("v_xor_b32 v3, v3, v5")
    k.e("v_lshlrev_b32 v3, 4, v3")
    k.e("v_and_b32 v2, 1, v2")
    k.e("v_lshlrev_b32 v2, 3, v2")
    k.e("v_add3_u32 v4, v4, v3, v2")
    k.e(f"v_add_u32 v{VWA}, 8192, v4")

def read_nonce(k, va, vb):
    k.e(f"v_mov_b32 v{va}, {NONCE_L}")
    k.e(f"ds_read_b32 v{vb}, v{va}")
    k.e("s_waitcnt lgkmcnt(0)")
    k.e(f"v_readfirstlane_b32 s{S_NONCE}, v{vb}")

def pf_setup(k, pw, px):
    k.e("s_and_b32 s50, s2, 7")
    k.e("s_lshr_b32 s51, s2, 3")
    k.e("v_lshrrev_b32 v5, 2, v0")
    k.e("s_lshl_b32 s52, s51, 4")
    k.e("v_add_u32 v5, s52, v5")
    k.e("v_mul_u32_u24 v5, 3072, v5")
    k.e("v_and_b32 v6, 3, v0")
    k.e("s_lshr_b32 s52, s50, 2")
    k.e("s_lshl_b32 s52, s52, 2")
    k.e("v_add_u32 v6, s52, v6")
    k.e("v_lshlrev_b32 v6, 7, v6")
    k.e("v_add_u32 v5, v5, v6")
    k.e("v_lshlrev_b32 v6, 7, v0")
    k.e("s_and_b32 s52, s50, 3")
    k.e("s_lshl_b32 s52, s52, 9")
    k.e("s_lshl_b32 s53, s51, 4")
    k.e("s_add_u32 s52, s52, s53")
    k.e("s_lshl_b32 s66, s52, 10")
    k.e("s_lshl_b32 s67, s51, 14")
    k.e("s_lshr_b32 s68, s50, 2")

def gen(stamps=False):
    k = K(stamps)
    k.lab(KNAME)
    k.e("s_cmp_ge_u32 s2, 256")
    k.e("s_cbranch_scc1 L_end")
    if stamps: k.e("s_memrealtime s[70:71]")
    if OPT['fixdur']: k.e("s_memrealtime s[100:101]")
    k.e("s_load_dwordx16 s[4:19], s[0:1], 0")
    k.e("s_load_dwordx2 s[20:21], s[0:1], 64")
    k.e("v_lshrrev_b32 v1, 6, v0")
    k.e("v_and_b32 v0, 63, v0")
    k.e(f"v_readfirstlane_b32 s{S_WAVE}, v1")
    k.e("s_and_b32 s26, s2, 7")
    k.e("s_lshr_b32 s27, s2, 3")
    k.e("s_and_b32 s48, s26, 3")
    k.e("s_lshl_b32 s48, s48, 3")
    if OPT['map'] != 1:
        k.e("s_and_b32 s49, s27, 7")
    else:
        k.e("s_lshr_b32 s49, s27, 2")
    k.e(f"s_add_u32 s{S_RB}, s48, s49")
    k.e("s_lshr_b32 s48, s26, 2")
    k.e("s_lshl_b32 s48, s48, 2")
    if OPT['map'] == 0:
        k.e("s_lshr_b32 s49, s27, 3")
    elif OPT['map'] == 2:
        k.e("s_lshr_b32 s49, s27, 3")
        k.e("s_sub_u32 s49, 3, s49")
    elif OPT['map'] >= 3:
        perm = {3: (3, 1, 2, 0), 4: (3, 1, 0, 2), 5: (1, 3, 2, 0)}[OPT['map']]
        tab = sum(v << (4*i) for i, v in enumerate(perm))
        k.e("s_lshr_b32 s49, s27, 3")
        k.e("s_lshl_b32 s49, s49, 2")
        k.e(f"s_lshr_b32 s49, 0x{tab:x}, s49")
        k.e("s_and_b32 s49, s49, 3")
    else:
        k.e("s_and_b32 s49, s27, 3")
    k.e(f"s_add_u32 s{S_G}, s48, s49")
    if OPT['cpf'] >= 3:
        sk = k.u("nocpf")
        k.e(f"s_cmp_eq_u32 s{S_WAVE}, 3")
        k.e(f"s_cbranch_scc0 {sk}")
        k.e(f"s_bfe_u32 s62, s2, 0x{0x30003 if OPT['cpf'] == 3 else 0x20003:x}")
        k.e("s_cmp_eq_u32 s62, 1")
        k.e(f"s_cbranch_scc0 {sk}")
        k.e("s_getpc_b64 s[62:63]")
        k.lab("L_pc")
        k.e("s_and_b32 s62, s62, 0xffffff00")
        k.e("v_lshlrev_b32 v255, 7, v0")
        k.e(f"s_sub_u32 s62, s62, PF_BACK")
        k.e("s_subb_u32 s63, s63, 0")
        for j in range(3):
            k.e("global_load_dword v254, v255, s[62:63]")
            if j < 2: k.e("v_add_u32 v255, 8192, v255")
        k.lab(sk)
    k.e(f"s_cmp_lt_u32 s{S_WAVE}, 4")
    k.e("s_cbranch_scc1 L_consumer")

    loader(k)
    k.e("s_branch L_attn")

    k.lab("L_consumer")
    k.e("s_waitcnt lgkmcnt(0)")
    if OPT['fixdur']: k.e("s_mov_b32 s3, s100")
    if stamps: k.e("s_mov_b32 s72, s70")
    srd(k, SRD_WS, P_WS, 256 << 20)
    srd(k, SRD_T, P_DBG, 256)
    nn = k.u("nononce")
    k.e(f"s_or_b32 s58, s2, s{S_WAVE}")
    k.e("s_cmp_eq_u32 s58, 0")
    k.e(f"s_cbranch_scc0 {nn}")
    k.e("s_memrealtime s[58:59]")
    k.e("v_mov_b32 v2, 0")
    k.e("s_waitcnt lgkmcnt(0)")
    k.e("s_or_b32 s58, s58, 1")
    k.e("v_mov_b32 v3, s58")
    k.e(f"buffer_store_dword v3, v2, {sr(SRD_T,4)}, 0 offen sc1")
    k.lab(nn)
    srd(k, SRD_X, P_AW, 512*3072)
    k.e(f"s_and_b32 s27, s{S_WAVE}, 1")
    consumer_setup(k)
    attn_setup(k)
    k.e("s_mov_b32 s49, 0")
    k.e(f"s_mov_b32 s69, {SLOT}")
    k.e(f"s_cmp_ge_u32 s{S_WAVE}, 2")
    k.e("s_cbranch_scc1 L_qwave")

    k.e("s_barrier")
    k.stamp(1)
    reads(k, 'kv', 0, 0); reads(k, 'kv', 1, 1)
    consumer_tile(k, 'kv', 'B')
    k.stamp(2)
    k.c("B epilogue (kv)")
    read_nonce(k, 2, 3)
    k.e(f"s_lshl_b32 s62, s{S_G}, 2")
    k.e("s_lshl_b32 s63, s27, 1")
    k.e("s_add_u32 s62, s62, s63")
    k.e("s_lshl_b32 s62, s62, 6")
    k.e(f"s_lshl_b32 s63, s{S_RB}, 1")
    k.e("s_add_u32 s62, s62, s63")
    k.e("s_lshl_b32 s62, s62, 10")
    k.e("v_lshlrev_b32 v1, 4, v0")
    k.e("s_lshl_b32 s63, s27, 12")
    k.e(f"s_add_u32 s63, s63, {OK_L}")
    k.e("v_add_u32 v4, s63, v1")
    k.e("v_bfe_u32 v2, v0, 4, 1")
    k.e("v_lshrrev_b32 v3, 5, v0")
    k.e("v_lshlrev_b32 v3, 8, v3")
    k.e("v_and_b32 v5, 15, v0")
    k.e("v_lshlrev_b32 v5, 4, v5")
    k.e("v_add_u32 v3, v3, v5")
    k.e("v_lshlrev_b32 v5, 11, v2")
    k.e("v_add_u32 v5, v5, v3")
    k.e(f"s_add_u32 s63, s63, {OV_L - OK_L}")
    k.e("v_add_u32 v5, s63, v5")
    k.e("v_lshlrev_b32 v2, 16, v2")
    k.e("v_add_u32 v2, v2, v3")
    k.e(f"s_add_u32 s64, s62, {KB_G + 65536}")
    k.e(f"s_add_u32 s65, s62, {VB_G}")
    k.e("s_nop 3")
    for t in range(2):
        KF = EP + 16*t; VF = KF + 8
        cvt8(k, KF, ACC+16*t); cvt8(k, KF+4, ACC+16*t+8)
        cvt8(k, VF, ACC+32+16*t); cvt8(k, VF+4, ACC+32+16*t+8)
        k.e(f"buffer_store_dwordx4 {vr(KF,4)}, v1, {WS}, s62 offen offset:{t*1024} sc1")
        k.e(f"buffer_store_dwordx4 {vr(KF+4,4)}, v1, {WS}, s64 offen offset:{t*1024} sc1")
        k.e(f"buffer_store_dwordx4 {vr(VF,4)}, v2, {WS}, s65 offen offset:{t*1024} sc1")
        k.e(f"buffer_store_dwordx4 {vr(VF+4,4)}, v2, {WS}, s65 offen offset:{t*1024+512} sc1")
        k.e(f"ds_write_b128 v4, {vr(KF,4)} offset:{t*1024}")
        k.e(f"ds_write_b128 v4, {vr(KF+4,4)} offset:{t*1024+2048}")
        k.e(f"ds_write_b128 v5, {vr(VF,4)} offset:{t*1024}")
        k.e(f"ds_write_b128 v5, {vr(VF+4,4)} offset:{t*1024+512}")
    k.stamp(3)
    k.e("s_barrier")
    reads(k, 'kv', 0, 0); reads(k, 'kv', 1, 1)
    consumer_tile(k, 'kv', 'A')
    k.e("s_waitcnt lgkmcnt(0)")
    if OPT.get('x16st'): k.stamp(5)
    if OPT['x16pos'] == 0:
        k.e("s_barrier")
        k.stamp(4)
    k.c("A epilogue (kv)")
    if OPT['kvprio']: k.e("s_setprio 2")
    T = 72
    k.e(f"s_mov_b32 s61, {lit(LOG2E)}")
    k.e(f"s_mov_b32 s62, {lit(1e-6)}")
    k.e("s_mov_b32 s63, s62")
    k.e("s_mov_b32 s66, s61")
    k.e("s_mov_b32 s67, s61")
    PK, VV, ONES = 80, 96, 112
    for j in range(4): k.e(f"v_mov_b32 v{ONES+j}, 0x3f803f80")
    k.e("s_nop 4")
    for t in range(2):
        cvt8(k, VV+8*t, ACC+32+16*t); cvt8(k, VV+8*t+4, ACC+32+16*t+8)
    if OPT['x16pos'] == 1:
        k.e("s_barrier")
        k.stamp(4)
    DKV, DZ = ACC+32, ACC+48
    for t in range(2):
        phi(k, ACC+16*t, 16, T)
        cvt8(k, PK+8*t, ACC+16*t); cvt8(k, PK+8*t+4, ACC+16*t+8)
        k.e("s_nop 1")
        for m in range(2):
            first = (t == 0 and m == 0)
            k.e(f"{MF} {vr(DKV,16)}, {vr(PK+8*t+4*m,4)}, {vr(VV+8*t+4*m,4)}, {'0' if first else vr(DKV,16)}")
            k.e(f"{MF} {vr(DZ,16)}, {vr(ONES,4)}, {vr(PK+8*t+4*m,4)}, {'0' if first else vr(DZ,16)}")
        if OPT['x16pos'] == 2 and t == 0:
            k.e("s_barrier")
            k.stamp(4)
    k.e("s_mov_b32 s64, 0xffff0000")
    k.e("s_mov_b32 s65, 0xffff0000")
    k.e(f"s_lshl_b32 s63, s{S_G}, 1")
    k.e("s_add_u32 s63, s63, s27")
    k.e("s_lshl_b32 s63, s63, 12")
    k.e(f"s_add_u32 s63, s63, {KVACC}")
    k.e("v_lshlrev_b32 v3, 2, v0")
    k.e("v_bfe_i32 v4, v0, 4, 1")
    k.e("s_nop 4")
    RS = 120
    if OPT['bfi']:
        for t in range(8): k.e(f"v_bfi_b32 v{RS+t}, v4, v{DKV+8+t}, v{DKV+t}")
    else:
        for t in range(8): k.e(f"v_cndmask_b32 v{RS+t}, v{DKV+t}, v{DKV+8+t}, s[64:65]")
    for t in range(8): k.e(f"buffer_atomic_add_f32 v{RS+t}, v3, {WS}, s63 offen offset:{t*256}")
    k.e("s_mov_b32 exec_hi, 0")
    k.e(f"buffer_atomic_add_f32 v{DZ}, v3, {WS}, s63 offen offset:2048")
    k.e("s_mov_b64 exec, -1")
    if OPT['kvprio']: k.e("s_setprio 0")
    if OPT['x16pos'] == 3:
        k.e("s_barrier")
        k.stamp(4)
    k.e("s_branch L_e1")

    k.lab("L_qwave")
    k.e("v_mov_b32 v251, 0")
    k.e("s_barrier")
    k.stamp(1)
    reads(k, 'q', 0, 0); reads(k, 'q', 1, 1)
    def pf_extra(k):
        ex = k.u("pfx"); w3 = k.u("pfw3")
        n1 = k.u("nn1"); n2 = k.u("nn2")
        k.e(f"s_cmp_eq_u32 s{S_WAVE}, 2")
        k.e(f"s_cbranch_scc0 {n2}")
        k.e("s_cmp_eq_u32 s48, 1")
        k.e(f"s_cbranch_scc0 {n1}")
        k.e(f"buffer_load_dword v7, v251, {sr(SRD_T,4)}, 0 offen sc1")
        k.lab(n1)
        k.e("s_cmp_eq_u32 s48, 6")
        k.e(f"s_cbranch_scc0 {n2}")
        lp = k.u("np"); npx = k.u("npx"); chk = k.u("npc")
        k.e("s_mov_b32 s60, 0")
        k.e(f"s_branch {chk}")
        k.lab(lp)
        k.e(f"buffer_load_dword v7, v251, {sr(SRD_T,4)}, 0 offen sc1")
        k.lab(chk)
        spin_guard(k, 60, npx)
        k.e("s_waitcnt vmcnt(0)")
        k.e("v_readfirstlane_b32 s58, v7")
        k.e("s_nop 0")
        k.e("s_cmp_eq_u32 s58, 0")
        k.e(f"s_cbranch_scc1 {lp}")
        k.lab(npx)
        k.e("s_waitcnt vmcnt(0)")
        k.e(f"v_mov_b32 v250, {NONCE_L}")
        k.e("ds_write_b32 v250, v7")
        k.lab(n2)
    consumer_tile(k, 'q', 'B', pf_extra)
    k.stamp(2)
    k.c("B epilogue (q)")
    read_nonce(k, 2, 3)
    k.e(f"s_mov_b32 s61, {lit(CS)}")
    k.e("v_lshlrev_b32 v1, 4, v0")
    k.e("s_lshl_b32 s63, s27, 12")
    k.e(f"s_add_u32 s63, s63, {Q_L}")
    k.e("v_add_u32 v4, s63, v1")
    k.e("s_nop 6")
    for t in range(2):
        for i in range(16): k.e(f"v_mul_f32 v{ACC+16*t+i}, s61, v{ACC+16*t+i}")
        QF = EP + 8*t
        cvt8(k, QF, ACC+16*t); cvt8(k, QF+4, ACC+16*t+8)
        k.e(f"ds_write_b128 v4, {vr(QF,4)} offset:{t*1024}")
        k.e(f"ds_write_b128 v4, {vr(QF+4,4)} offset:{t*1024+2048}")
    k.stamp(3)
    k.e("s_barrier")
    reads(k, 'q', 0, 0); reads(k, 'q', 1, 1)
    consumer_tile(k, 'q', 'A')
    k.e("s_waitcnt lgkmcnt(0)")
    if OPT['x16pos'] < 2:
        k.e("s_barrier")
        k.stamp(4)
    k.c("A epilogue (q)")
    k.e(f"s_mov_b32 s61, {lit(LOG2E)}")
    k.e(f"s_mov_b32 s62, {lit(1e-6)}")
    k.e("s_mov_b32 s63, s62")
    k.e("s_mov_b32 s66, s61")
    k.e("s_mov_b32 s67, s61")
    k.e("v_lshlrev_b32 v1, 4, v0")
    k.e("s_lshl_b32 s65, s27, 12")
    k.e(f"s_add_u32 s65, s65, {PQ_L}")
    k.e("v_add_u32 v4, s65, v1")
    k.e("s_nop 6")
    for t in range(2):
        phi(k, ACC+16*t, 16, 72)
        QF = EP + 8*t
        cvt8(k, QF, ACC+16*t); cvt8(k, QF+4, ACC+16*t+8)
        k.e(f"ds_write_b128 v4, {vr(QF,4)} offset:{t*1024}")
        k.e(f"ds_write_b128 v4, {vr(QF+4,4)} offset:{t*1024+2048}")
        if OPT['x16pos'] == 2 and t == 0:
            k.e("s_barrier")
            k.stamp(4)
    k.e("s_waitcnt lgkmcnt(0)")
    if OPT['x16pos'] == 3:
        k.e("s_barrier")
        k.stamp(4)
    k.lab("L_e1")

    k.lab("L_attn")
    if OPT['prio']:
        sk = k.u("prio")
        k.e(f"s_cmp_ge_u32 s{S_WAVE}, 4")
        k.e(f"s_cbranch_scc{0 if OPT['prio'] == 1 else 1} {sk}")
        k.e("s_setprio 1")
        k.lab(sk)
    k.stamp(7)
    attention(k)
    k.stamp(9)
    apart(k)
    k.stamp(10)
    k.e("s_waitcnt vmcnt(0) lgkmcnt(0)")
    k.e("s_barrier")
    k.stamp(11)
    sk = k.u("nof2")
    k.e(f"s_cmp_eq_u32 s{S_WAVE}, 4")
    k.e(f"s_cbranch_scc0 {sk}")
    k.e(f"s_lshr_b32 s48, s{S_RB}, 1")
    k.e("s_lshl_b32 s48, s48, 11")
    k.e(f"s_and_b32 s49, s{S_RB}, 1")
    k.e("s_lshl_b32 s49, s49, 3")
    k.e(f"s_add_u32 s49, s49, s{S_G}")
    k.e("s_lshl_b32 s49, s49, 7")
    k.e("s_add_u32 s48, s48, s49")
    k.e(f"s_add_u32 s48, s48, {F2}")
    store_flag(k, 48)
    k.lab(sk)
    p3(k)
    k.lab("L_fin")
    if OPT['fixdur']:
        lp = k.u("fix")
        k.lab(lp)
        k.e("s_memrealtime s[90:91]")
        k.e("s_waitcnt lgkmcnt(0)")
        k.e("s_sub_u32 s90, s90, s3")
        k.e(f"s_cmp_lt_u32 s90, {OPT['fixdur']}")
        k.e(f"s_cbranch_scc1 {lp}")
    if stamps:
        k.stamp(13)
        k.e(f"s_lshl_b32 s48, s2, 3")
        k.e(f"s_add_u32 s48, s48, s{S_WAVE}")
        k.e("s_lshl_b32 s48, s48, 6")
        k.e(f"s_add_u32 s48, s48, {STAMP}")
        k.e("v_mov_b32 v9, 0")
        for j in range(16):
            k.e(f"v_mov_b32 v8, s{72+j}")
            k.e(f"buffer_store_dword v8, v9, {WS}, s48 offen offset:{4*j}")
            k.e("s_nop 0")
    if stamps and OPT['dbgstamps']:
        srd(k, SRD_T, P_DBG, 256)
        for wg, base in ((8, 1), (200, 8)):
            sk = k.u("nodbg")
            k.e(f"s_cmp_eq_u32 s2, {wg}")
            k.e(f"s_cbranch_scc0 {sk}")
            k.e(f"s_cmp_eq_u32 s{S_WAVE}, 0")
            k.e(f"s_cbranch_scc0 {sk}")
            k.e("v_mov_b32 v9, 0")
            for n, j in enumerate((1, 2, 4, 9, 10, 11, 13)):
                k.e(f"s_sub_u32 s48, s{72+j}, s72")
                k.e("v_mov_b32 v8, s48")
                k.e(f"buffer_store_dword v8, v9, {sr(SRD_T,4)}, 0 offen offset:{4*(base+n)}")
                k.e("s_nop 0")
            k.lab(sk)
    if OPT['stagest']:
        sk = k.u("nost")
        k.e(f"s_cmp_eq_u32 s{S_WAVE}, 4")
        k.e(f"s_cbranch_scc0 {sk}")
        k.e("s_lshl_b32 s48, s2, 8")
        k.e(f"s_add_u32 s48, s48, {STAMP + (1<<19)}")
        k.e("v_lshlrev_b32 v9, 2, v0")
        k.e(f"buffer_store_dword v252, v9, {WS}, s48 offen")
        k.lab(sk)
    k.lab("L_end")
    k.e("s_endpgm")
    return k

def issue_stage(k):
    k.e("s_lshl_b32 s52, s59, 7")
    k.e("s_mul_i32 s53, s59, 196608")
    k.e("s_mov_b32 m0, s51")
    k.e("s_add_u32 s54, s53, 23552")
    k.e(f"buffer_load_dwordx4 v1, {sr(SRD_X,4)}, s52 offen lds")
    k.e(f"buffer_load_dwordx4 v2, {sr(SRD_X,4)}, s52 offen offset:1024 lds")
    for p in range(3):
        k.e(f"s_add_u32 s55, s51, {8192 + p*8192}")
        k.e("s_mov_b32 m0, s55")
        if p: k.e(f"s_add_u32 s56, s53, {p*1024}"); so0 = "s56"
        else: so0 = "s53"; k.e("s_nop 0")
        k.e(f"buffer_load_dwordx4 v3, {sr(SRD_W,4)}, {so0} offen lds")
        if p: k.e(f"s_add_u32 s56, s54, {p*1024}"); so1 = "s56"
        else: so1 = "s54"
        k.e(f"buffer_load_dwordx4 v3, {sr(SRD_W,4)}, {so1} offen offset:1024 lds")
    k.e("s_add_u32 s57, s57, 1")
    k.e("s_add_u32 s59, s59, 1")
    k.e("s_and_b32 s59, s59, 7")
    k.e(f"s_add_u32 s51, s51, {SLOT}")
    k.e("s_and_b32 s58, s57, 3")
    sk = k.u("nowrap")
    k.e("s_cmp_eq_u32 s58, 0")
    k.e(f"s_cbranch_scc0 {sk}")
    k.e(f"s_sub_u32 s51, s51, {4*SLOT}")
    k.lab(sk)
    sk2 = k.u("nosw")
    k.e("s_cmp_eq_u32 s57, 8")
    k.e(f"s_cbranch_scc0 {sk2}")
    srd(k, SRD_X, P_AX, 2 << 20)
    srd(k, SRD_W, P_AW, 512*3072)
    k.e("s_mov_b32 s59, s61")
    k.lab(sk2)

def pf0(k):
    k.e("s_and_b32 s50, s2, 7")
    k.e("s_lshr_b32 s52, s2, 3")
    wx = k.u("pf0x"); ex = k.u("pf0e")
    k.e("s_cmp_lt_u32 s26, 3")
    k.e(f"s_cbranch_scc0 {wx}")
    srd(k, SRD_T, P_AW, 512*3072)
    k.e("v_lshrrev_b32 v5, 2, v0")
    k.e("s_lshl_b32 s53, s52, 4")
    k.e("v_add_u32 v5, s53, v5")
    k.e("v_mul_u32_u24 v5, 3072, v5")
    k.e("v_and_b32 v6, 3, v0")
    k.e("s_lshr_b32 s53, s50, 2")
    k.e("s_lshl_b32 s53, s53, 2")
    k.e("v_add_u32 v6, s53, v6")
    k.e("v_lshlrev_b32 v6, 7, v6")
    k.e("v_add_u32 v5, v5, v6")
    k.e("s_lshl_b32 s53, s26, 10")
    k.e(f"buffer_load_dword v6, v5, {sr(SRD_T,4)}, s53 offen")
    k.e(f"buffer_load_dword v7, v5, {sr(SRD_T,4)}, s53 offen")
    k.e(f"s_branch {ex}")
    k.lab(wx)
    srd(k, SRD_T, P_AX, 2 << 20)
    k.e("s_and_b32 s53, s50, 3")
    k.e("s_lshl_b32 s53, s53, 9")
    k.e("s_lshl_b32 s54, s52, 4")
    k.e("s_add_u32 s53, s53, s54")
    k.e("s_lshl_b32 s53, s53, 10")
    k.e("v_lshlrev_b32 v5, 7, v0")
    k.e(f"buffer_load_dword v6, v5, {sr(SRD_T,4)}, s53 offen")
    k.e("s_add_u32 s53, s53, 8192")
    k.e(f"buffer_load_dword v7, v5, {sr(SRD_T,4)}, s53 offen")
    k.lab(ex)

def pfsetup(k):
    k.e("s_and_b32 s50, s2, 7")
    k.e("s_lshr_b32 s52, s2, 3")
    k.e("s_mov_b32 s66, 1")
    wx = k.u("pfwx"); wo = k.u("pfwo"); ex = k.u("pfex")
    k.e("s_cmp_lt_u32 s26, 2")
    k.e(f"s_cbranch_scc0 {wx}")
    srd(k, SRD_T, P_BW, 512*3072)
    k.e("v_min_u32 v4, 11, v0")
    k.e("v_lshrrev_b32 v5, 2, v4")
    k.e("v_lshlrev_b32 v5, 10, v5")
    k.e("v_and_b32 v4, 3, v4")
    k.e("s_lshr_b32 s53, s50, 2")
    k.e("s_lshl_b32 s53, s53, 2")
    k.e("v_add_u32 v4, s53, v4")
    k.e("v_lshlrev_b32 v4, 7, v4")
    k.e("s_lshl_b32 s53, s52, 1")
    k.e("s_add_u32 s53, s53, s26")
    k.e("s_mul_i32 s53, s53, 3072")
    k.e("v_add3_u32 v4, v4, v5, s53")
    k.e("s_mov_b32 s65, 196608")
    k.e("s_mov_b32 s64, 196608")
    k.e(f"s_branch {ex}")
    k.lab(wx)
    k.e("s_cmp_eq_u32 s26, 2")
    k.e(f"s_cbranch_scc0 {wo}")
    srd(k, SRD_T, P_BX, 2 << 20)
    k.e("v_min_u32 v4, 15, v0")
    k.e("s_and_b32 s53, s50, 3")
    k.e("s_lshl_b32 s53, s53, 9")
    k.e("s_lshl_b32 s54, s52, 4")
    k.e("s_add_u32 s53, s53, s54")
    k.e("v_add_u32 v4, s53, v4")
    k.e("v_lshlrev_b32 v4, 10, v4")
    k.e("s_mov_b32 s65, 128")
    k.e("s_mov_b32 s64, 128")
    k.e(f"s_branch {ex}")
    k.lab(wo)
    k.e("s_lshr_b32 s53, s50, 2")
    k.e("s_cmp_eq_u32 s53, 0")
    k.e(f"s_cselect_b32 s{SRD_T}, s{P_AWO}, s{P_BWO}")
    k.e(f"s_cselect_b32 s{SRD_T+1}, s{P_AWO+1}, s{P_BWO+1}")
    k.e(f"s_mov_b32 s{SRD_T+2}, 0x{512*1024:x}")
    k.e(f"s_mov_b32 s{SRD_T+3}, 0x20000")
    k.e("v_min_u32 v4, 8, v0")
    k.e("v_lshlrev_b32 v4, 7, v4")
    k.e("s_lshl_b32 s53, s52, 14")
    k.e("v_add_u32 v4, s53, v4")
    k.e("s_mov_b32 s65, 1152")
    k.e("s_mov_b32 s64, 0")
    k.lab(ex)

def pf_issue(k):
    sk = k.u("pfsw")
    k.e("s_cmp_eq_u32 s66, 8")
    k.e(f"s_cbranch_scc0 {sk}")
    k.e("s_cmp_lt_u32 s26, 3")
    k.e(f"s_cbranch_scc0 {sk}")
    k.e("s_mov_b32 s64, 0")
    k.e("s_cmp_lt_u32 s26, 2")
    k.e(f"s_cselect_b32 s{SRD_T}, s{P_AW}, s{P_AX}")
    k.e(f"s_cselect_b32 s{SRD_T+1}, s{P_AW+1}, s{P_AX+1}")
    k.lab(sk)
    k.e(f"buffer_load_dword v5, v4, {sr(SRD_T,4)}, s64 offen")
    k.e("s_add_u32 s64, s64, s65")
    k.e("s_add_u32 s66, s66, 1")

def rot_value(k, mode, d):
    if mode >= 10:
        o = k.u("rot3"); e = k.u("rote")
        k.e(f"s_cmp_eq_u32 s{S_G}, 3")
        k.e(f"s_cbranch_scc1 {o}")
        rot_value(k, 4, d)
        k.e(f"s_branch {e}")
        k.lab(o)
        rot_value(k, mode - 10, d)
        k.lab(e)
        return
    if mode == 8:
        k.e(f"s_and_b32 s{d}, s{S_G}, 3"); k.e(f"s_lshl_b32 s{d}, s{d}, 1"); k.e(f"s_add_u32 s{d}, s{d}, s{S_RB}"); k.e(f"s_and_b32 s{d}, s{d}, 7")
    elif mode == 4:
        k.e(f"s_add_u32 s{d}, s{S_G}, s{S_RB}"); k.e(f"s_and_b32 s{d}, s{d}, 3"); k.e(f"s_lshl_b32 s{d}, s{d}, 1")
    elif mode == 2:
        k.e(f"s_add_u32 s{d}, s{S_G}, s{S_RB}"); k.e(f"s_and_b32 s{d}, s{d}, 1"); k.e(f"s_lshl_b32 s{d}, s{d}, 2")
    elif mode == 5:
        k.e(f"s_add_u32 s{d}, s{S_G}, s{S_RB}"); k.e(f"s_and_b32 s{d}, s{d}, 3"); k.e(f"s_lshl_b32 s{d}, s{d}, 1")
        k.e(f"s_bfe_u32 s62, s{S_RB}, 0x10002"); k.e(f"s_add_u32 s{d}, s{d}, s62")
    elif mode == 6:
        k.e(f"s_and_b32 s{d}, s{S_RB}, 3"); k.e(f"s_lshl_b32 s{d}, s{d}, 1")
    elif mode == 7:
        k.e(f"s_lshr_b32 s{d}, s{S_RB}, 1"); k.e(f"s_add_u32 s{d}, s{d}, s{S_G}"); k.e(f"s_and_b32 s{d}, s{d}, 3"); k.e(f"s_lshl_b32 s{d}, s{d}, 1")
    else:
        k.e(f"s_mov_b32 s{d}, 0")

def loader(k):
    if OPT['ldprio']: k.e(f"s_setprio {OPT['ldprio']}")
    k.e(f"s_sub_u32 s26, s{S_WAVE}, 4")
    k.e("v_lshrrev_b32 v4, 3, v0")
    k.e("v_and_b32 v5, 7, v0")
    k.e("v_lshrrev_b32 v6, 1, v4")
    k.e("v_xor_b32 v7, v5, v6")
    k.e("v_lshlrev_b32 v7, 4, v7")
    k.e(f"s_lshl_b32 s48, s{S_RB}, 6")
    k.e("s_lshl_b32 s49, s26, 4")
    k.e("s_add_u32 s48, s48, s49")
    k.e("v_add_u32 v1, s48, v4")
    k.e("v_lshlrev_b32 v1, 10, v1")
    k.e("v_add_u32 v2, 7168, v1")
    k.e("v_add_u32 v1, v1, v7")
    k.e("v_xor_b32 v7, 64, v7")
    k.e("v_add_u32 v2, v2, v7")
    k.e("v_add_u32 v3, s49, v4")
    k.e("v_mul_u32_u24 v3, 3072, v3")
    k.e("v_and_b32 v6, 2, v4")
    k.e("v_lshlrev_b32 v6, 1, v6")
    k.e("v_xor_b32 v6, v5, v6")
    k.e("v_lshlrev_b32 v6, 4, v6")
    k.e(f"s_lshl_b32 s49, s{S_G}, 7")
    k.e("v_add3_u32 v3, v3, v6, s49")
    k.e("s_lshl_b32 s51, s26, 11")
    k.e("s_mov_b32 s57, 0")
    rot_value(k, OPT['rot'], 59)
    k.e("s_waitcnt lgkmcnt(0)")
    if OPT['fixdur']: k.e("s_mov_b32 s3, s100")
    if k.stamps: k.e("s_mov_b32 s72, s70")
    srd(k, SRD_X, P_BX, 2 << 20)
    srd(k, SRD_W, P_BW, 512*3072)
    issue_stage(k)
    rot_value(k, OPT['rotA'] if OPT['rotA'] >= 0 else OPT['rot'], 61)
    if OPT['tpf']:
        pfsetup(k)
        for j in range(4): pf_issue(k)
    else:
        if OPT['pf0']: pf0(k)
        issue_stage(k)
    srd(k, SRD_WS, P_WS, 256 << 20)
    sk = k.u("nopf")
    k.e("s_mov_b32 s60, 0")
    k.e("s_cmp_eq_u32 s26, 3")
    k.e(f"s_cbranch_scc0 {sk}")
    if OPT['cpf'] == 1:
        k.e("s_bfe_u32 s62, s2, 0x30003")
        k.e("s_cmp_eq_u32 s62, 0")
        k.e(f"s_cbranch_scc0 {sk}")
    if OPT['cpf'] >= 2:
        k.e(f"s_branch {sk}")
    k.e("s_getpc_b64 s[62:63]")
    if OPT['cpf'] < 3: k.lab("L_pc")
    k.e("s_and_b32 s62, s62, 0xffffff00")
    k.e("v_lshlrev_b32 v8, 7, v0")
    k.e(f"s_sub_u32 s62, s62, PF_BACK")
    k.e("s_subb_u32 s63, s63, 0")
    k.e("global_load_dword v9, v8, s[62:63]")
    k.e("v_add_u32 v8, 8192, v8")
    k.e("global_load_dword v10, v8, s[62:63]")
    k.e("v_add_u32 v8, 8192, v8")
    k.e("global_load_dword v11, v8, s[62:63]")
    k.e("s_mov_b32 s60, 1")
    k.lab(sk)
    if OPT['pfm'] == 1 and OPT['pfwo']:
        sk = k.u("nopfw")
        k.e("s_cmp_eq_u32 s26, 1")
        k.e(f"s_cbranch_scc0 {sk}")
        k.e("s_cmp_lt_u32 s2, 128")
        k.e(f"s_cselect_b32 s{SRD_T}, s{P_AWO}, s{P_BWO}")
        k.e(f"s_cselect_b32 s{SRD_T+1}, s{P_AWO+1}, s{P_BWO+1}")
        k.e(f"s_mov_b32 s{SRD_T+2}, 0x{512*1024:x}")
        k.e(f"s_mov_b32 s{SRD_T+3}, 0x20000")
        k.e("s_and_b32 s62, s2, 127")
        k.e("s_lshl_b32 s62, s62, 12")
        k.e("v_min_u32 v8, 31, v0")
        k.e("v_lshlrev_b32 v8, 7, v8")
        k.e(f"buffer_load_dword v9, v8, {sr(SRD_T,4)}, s62 offen")
        k.e("s_mov_b32 s60, 2")
        k.lab(sk)
    if OPT['pfm'] == 1:
        sk = k.u("nopfm"); w7 = k.u("pfm7")
        k.e("s_cmp_ge_u32 s26, 2")
        k.e(f"s_cbranch_scc0 {sk}")
        k.e("s_cmp_eq_u32 s26, 3")
        k.e(f"s_cbranch_scc1 {w7}")
        srd(k, SRD_T, P_AX, 2 << 20)
        k.e("s_lshl_b32 s62, s2, 13")
        k.e("v_lshlrev_b32 v8, 7, v0")
        k.e(f"buffer_load_dword v9, v8, {sr(SRD_T,4)}, s62 offen")
        k.e("s_mov_b32 s60, 2")
        k.e(f"s_branch {sk}")
        k.lab(w7)
        srd(k, SRD_T, P_AW, 512*3072)
        k.e("s_mul_i32 s62, s2, 6144")
        k.e("v_min_u32 v8, 47, v0")
        k.e("v_lshlrev_b32 v8, 7, v8")
        k.e(f"buffer_load_dword v9, v8, {sr(SRD_T,4)}, s62 offen")
        k.e("s_mov_b32 s60, 2")
        k.lab(sk)
    attn_setup(k)
    ny = 4 if OPT['tpf'] else (10 if OPT['pf0'] else 8)
    sk = k.u("w7"); sk2 = k.u("w7b")
    k.e("s_cmp_eq_u32 s60, 1")
    k.e(f"s_cbranch_scc1 {sk}")
    if OPT['pfm'] == 1:
        sk3 = k.u("w7c")
        k.e("s_cmp_eq_u32 s60, 2")
        k.e(f"s_cbranch_scc0 {sk3}")
        k.e(f"s_waitcnt vmcnt({ny+1})")
        k.e(f"s_branch {sk2}")
        k.lab(sk3)
    k.e(f"s_waitcnt vmcnt({ny})")
    k.e(f"s_branch {sk2}")
    k.lab(sk)
    k.e(f"s_waitcnt vmcnt({ny+3})")
    k.lab(sk2)
    k.e("s_barrier")
    if OPT['tpf']: issue_stage(k)
    issue_stage(k)
    sk = k.u("nozero")
    k.e(f"s_cmp_eq_u32 s{S_RB}, 0")
    k.e(f"s_cbranch_scc0 {sk}")
    k.e("s_cmp_lt_u32 s26, 2")
    k.e(f"s_cbranch_scc0 {sk}")
    k.e(f"s_lshl_b32 s48, s{S_G}, 1")
    k.e("s_add_u32 s48, s48, s26")
    k.e("s_lshl_b32 s48, s48, 12")
    k.e(f"s_add_u32 s48, s48, {KVACC}")
    for j in range(4): k.e(f"v_mov_b32 v{12+j}, 0")
    k.e("v_lshlrev_b32 v8, 4, v0")
    for j in range(3): k.e(f"buffer_store_dwordx4 v[12:15], v8, {WS}, s48 offen offset:{j*1024} sc1")
    k.e("s_waitcnt vmcnt(3)")
    k.lab(sk)
    k.stamp(1)
    k.e("s_mov_b32 s98, 0")
    k.e("s_mov_b32 s48, 0")
    lp = k.u("ldloop")
    k.lab(lp)
    w8 = k.u("w8"); w9 = k.u("w9"); wd = k.u("wd")
    k.e("s_cmp_eq_u32 s48, 7")
    k.e(f"s_cbranch_scc1 {wd}")
    if OPT['pfm'] >= 10:
        nwm = k.u("nwm")
        k.e(f"s_sub_u32 s49, s48, {OPT['pfm']-10+1}")
        k.e("s_cmp_lt_u32 s49, 2")
        k.e(f"s_cbranch_scc0 {nwm}")
        k.e("s_cmp_ge_u32 s26, 2")
        k.e(f"s_cbranch_scc0 {nwm}")
        k.e("s_waitcnt vmcnt(9)")
        k.e(f"s_branch {wd}")
        k.lab(nwm)
    if OPT['pf3']:
        nw3 = k.u("nw3")
        k.e(f"s_sub_u32 s49, s48, {OPT['pf3']+1}")
        k.e("s_cmp_lt_u32 s49, 2")
        k.e(f"s_cbranch_scc0 {nw3}")
        k.e("s_cmp_eq_u32 s98, 1")
        k.e(f"s_cbranch_scc0 {nw3}")
        k.e("s_waitcnt vmcnt(9)")
        k.e(f"s_branch {wd}")
        k.lab(nw3)
    if OPT['pf4']:
        w10 = k.u("w10"); nw = k.u("nw10")
        k.e(f"s_sub_u32 s49, s48, {OPT['pf4']+1}")
        k.e("s_cmp_lt_u32 s49, 2")
        k.e(f"s_cbranch_scc0 {nw}")
        k.e("s_waitcnt vmcnt(10)")
        k.e(f"s_branch {wd}")
        k.lab(nw)
    if not OPT['tpf']: k.e(f"s_branch {w8}")
    k.e("s_cmp_eq_u32 s48, 0")
    k.e(f"s_cbranch_scc1 {w8}")
    k.e("s_cmp_eq_u32 s48, 1")
    k.e(f"s_cbranch_scc1 {w9}")
    k.e("s_cmp_eq_u32 s48, 12")
    k.e(f"s_cbranch_scc1 {w9}")
    k.e("s_waitcnt vmcnt(10)")
    k.e(f"s_branch {wd}")
    k.lab(w9)
    k.e("s_waitcnt vmcnt(9)")
    k.e(f"s_branch {wd}")
    k.lab(w8)
    k.e("s_waitcnt vmcnt(8)")
    k.lab(wd)
    k.e("s_barrier")
    if OPT['stagest']:
        k.e("s_memrealtime s[90:91]"); k.e("s_waitcnt lgkmcnt(0)")
        k.e("s_mov_b32 m0, s48")
        k.e("s_nop 0")
        k.e("v_writelane_b32 v252, s90, m0")
    sk = k.u("nonn")
    k.e("s_cmp_eq_u32 s48, 7")
    k.e(f"s_cbranch_scc0 {sk}")
    read_nonce(k, 8, 9)
    k.lab(sk)
    sk = k.u("nosig2")
    k.e(f"s_cmp_eq_u32 s48, {OPT['sigs']}")
    k.e(f"s_cbranch_scc0 {sk}")
    k.e("s_cmp_eq_u32 s26, 0")
    k.e(f"s_cbranch_scc0 {sk}")
    k.e(f"s_lshl_b32 s49, s{S_G}, 12")
    k.e(f"s_lshl_b32 s50, s{S_RB}, 7")
    k.e("s_add_u32 s49, s49, s50")
    k.e(f"s_add_u32 s49, s49, {F1B}")
    store_flag(k, 49)
    k.lab(sk)
    if OPT['late9']:
        sk6 = k.u("skip6"); go6 = k.u("go6")
        k.e("s_cmp_eq_u32 s48, 6")
        if OPT['late9'] == 2:
            k.e(f"s_cbranch_scc0 {go6}")
            k.e(f"s_cmp_eq_u32 s{S_G}, 3")
        k.e(f"s_cbranch_scc1 {sk6}")
        k.lab(go6)
    issue_stage(k)
    if OPT['late9']: k.lab(sk6)
    if OPT['pfm'] >= 10:
        sk = k.u("nopfm"); w7 = k.u("pfm7")
        k.e(f"s_cmp_eq_u32 s48, {OPT['pfm']-10}")
        k.e(f"s_cbranch_scc0 {sk}")
        k.e("s_cmp_ge_u32 s26, 2")
        k.e(f"s_cbranch_scc0 {sk}")
        k.e("s_cmp_eq_u32 s26, 3")
        k.e(f"s_cbranch_scc1 {w7}")
        srd(k, SRD_T, P_AX, 2 << 20)
        k.e("s_lshl_b32 s62, s2, 13")
        k.e("v_lshlrev_b32 v8, 7, v0")
        k.e(f"buffer_load_dword v9, v8, {sr(SRD_T,4)}, s62 offen")
        k.e(f"s_branch {sk}")
        k.lab(w7)
        srd(k, SRD_T, P_AW, 512*3072)
        k.e("s_mul_i32 s62, s2, 6144")
        k.e("v_min_u32 v8, 47, v0")
        k.e("v_lshlrev_b32 v8, 7, v8")
        k.e(f"buffer_load_dword v9, v8, {sr(SRD_T,4)}, s62 offen")
        k.lab(sk)
    if OPT['pf3']:
        skp = k.u("nopf3")
        k.e(f"s_cmp_eq_u32 s48, {OPT['pf3']}")
        k.e(f"s_cbranch_scc0 {skp}")
        k.e("s_cmp_eq_u32 s26, 3")
        k.e(f"s_cbranch_scc0 {skp}")
        k.e(f"s_cmp_lt_u32 s{S_G}, 3")
        k.e(f"s_cbranch_scc0 {skp}")
        srd(k, SRD_T, P_AW, 512*3072)
        k.e(f"s_and_b32 s49, s{S_RB}, 7")
        k.e("s_mul_i32 s49, s49, 3")
        k.e(f"s_add_u32 s49, s49, s{S_G}")
        k.e("s_lshl_b32 s49, s49, 6")
        k.e("v_add_u32 v5, s49, v0")
        k.e("v_mul_u32_u24 v6, 21846, v5")
        k.e("v_lshrrev_b32 v6, 16, v6")
        k.e("v_mul_u32_u24 v7, 3, v6")
        k.e("v_sub_u32 v7, v5, v7")
        k.e("v_mul_u32_u24 v6, 3072, v6")
        k.e("v_lshlrev_b32 v7, 10, v7")
        k.e("v_add3_u32 v5, v6, v7, 384") if False else None
        k.e("v_add_u32 v5, v6, v7")
        k.e("v_add_u32 v5, 384, v5")
        k.e(f"buffer_load_dword v6, v5, {sr(SRD_T,4)}, 0 offen")
        k.e("s_mov_b32 s98, 1")
        k.lab(skp)
    if OPT['pf4']:
        skp = k.u("nopf4")
        k.e(f"s_cmp_eq_u32 s48, {OPT['pf4']}")
        k.e(f"s_cbranch_scc0 {skp}")
        pf0(k)
        k.lab(skp)
    sk = k.u("nosig")
    k.e("s_cmp_eq_u32 s48, 7")
    k.e(f"s_cbranch_scc0 {sk}")
    if OPT['late9'] == 1: issue_stage(k)
    if OPT['late9'] == 2:
        l9 = k.u("l9")
        k.e(f"s_cmp_eq_u32 s{S_G}, 3")
        k.e(f"s_cbranch_scc0 {l9}")
        issue_stage(k)
        k.lab(l9)
    k.e("s_waitcnt vmcnt(16)")
    k.e("s_barrier")
    k.lab(sk)

    if OPT['tpf']:
        sk = k.u("nopfi")
        k.e("s_cmp_le_u32 s48, 10")
        k.e(f"s_cbranch_scc0 {sk}")
        pf_issue(k)
        k.lab(sk)
    k.e("s_add_u32 s48, s48, 1")
    k.e("s_cmp_lt_u32 s48, 12")
    k.e(f"s_cbranch_scc1 {lp}")
    k.e(f"s_sub_u32 s48, s{S_RB}, 4")
    k.e("v_add_u32 v8, s48, v0")
    k.e("v_max_i32 v8, 0, v8")
    k.e("v_cmp_gt_u32 vcc, 4, v0")
    k.e(f"s_lshl_b32 s49, s{S_G}, 12")
    k.e(f"s_add_u32 s49, s49, {F1B}")
    k.e("v_cndmask_b32 v8, 0, v8, vcc")
    k.e("v_lshlrev_b32 v8, 7, v8")
    k.e("v_add_u32 v8, s49, v8")
    k.e("s_cmp_eq_u32 s26, 0")
    k.e("s_cselect_b32 s62, 31, 15")
    k.e("s_mov_b32 s63, 0")
    k.e("s_waitcnt vmcnt(8)");  k.e("s_barrier")
    k.e("s_mov_b64 exec, s[62:63]")
    k.e(f"buffer_load_dword v9, v8, {WS}, 0 offen sc1")
    k.e("s_mov_b64 exec, -1")
    issue_stage(k)
    k.e("s_waitcnt vmcnt(9)");  k.e("s_barrier")
    lp = k.u("f1b_lp"); ok = k.u("f1b_ok")
    k.e("s_mov_b64 exec, s[62:63]")
    k.e("s_waitcnt vmcnt(8)")
    k.e(f"v_cmp_ne_u32 vcc, s{S_NONCE}, v9")
    k.e("s_nop 1")
    k.e(f"s_cbranch_vccz {ok}")
    poll_flags(k, 8, 9, "f1b")
    k.lab(ok)
    k.e("s_mov_b64 exec, -1")
    k.stamp(5)
    if OPT['remdma']:
        sk = k.u("norem"); jn = k.u("remj")
        k.e(f"s_cmp_eq_u32 s{S_RB}, 0")
        k.e(f"s_cbranch_scc1 {sk}")
        k.e("v_lshlrev_b32 v8, 4, v0")
        k.e(f"s_lshl_b32 s48, s{S_G}, 2")
        k.e("s_add_u32 s48, s48, s26")
        k.e("s_lshl_b32 s48, s48, 6")
        k.e(f"s_lshl_b32 s49, s{S_RB}, 1")
        k.e("s_sub_u32 s49, s49, 8")
        k.e("s_lshl_b32 s52, s26, 13")
        def rem(base_g, base_l):
            for j in range(8):
                k.e(f"s_add_i32 s50, s49, {j}")
                k.e("s_max_i32 s50, s50, 0")
                k.e("s_add_u32 s50, s50, s48")
                k.e("s_lshl_b32 s50, s50, 10")
                if base_g: k.e(f"s_add_u32 s50, s50, {base_g}")
                k.e(f"s_add_u32 s51, s52, {base_l + j*1024}")
                k.e("s_mov_b32 m0, s51")
                k.e("s_nop 0")
                k.e(f"buffer_load_dwordx4 v8, {WS}, s50 offen sc1 lds")
        rem(KB_G, RK_L)
        if OPT['vpre']:
            VS = [86, 87, 88, 89, 92, 93, 94, 100]
            for j in range(8):
                k.e(f"s_add_i32 s50, s49, {j}")
                k.e("s_max_i32 s50, s50, 0")
                k.e("s_add_u32 s50, s50, s48")
                k.e("s_lshl_b32 s50, s50, 10")
                k.e(f"s_add_u32 s{VS[j]}, s50, {VB_G}")
            k.e(f"s_add_u32 s51, s52, {RV_L}")
            k.e("s_waitcnt vmcnt(8)");  k.e("s_barrier")
            for j in range(8):
                k.e("s_mov_b32 m0, s51")
                k.e("s_add_u32 s51, s51, 1024")
                k.e(f"buffer_load_dwordx4 v8, {WS}, s{VS[j]} offen sc1 lds")
        else:
            k.e("s_waitcnt vmcnt(8)");  k.e("s_barrier")
            rem(VB_G, RV_L)
        k.e("s_barrier")
        k.e("s_waitcnt vmcnt(0)")
        k.e(f"s_branch {jn}")
        k.lab(sk)
        k.e("s_waitcnt vmcnt(0)");  k.e("s_barrier")
        k.e("s_barrier")
        k.lab(jn)
    else:
        sk = k.u("norem"); jn = k.u("remj")
        k.e(f"s_cmp_eq_u32 s{S_RB}, 0")
        k.e(f"s_cbranch_scc1 {sk}")
        k.e("v_lshlrev_b32 v8, 4, v0")
        k.e(f"s_lshl_b32 s48, s{S_G}, 2")
        k.e("s_add_u32 s48, s48, s26")
        k.e("s_lshl_b32 s48, s48, 6")
        k.e(f"s_lshl_b32 s49, s{S_RB}, 1")
        k.e("s_sub_u32 s49, s49, 8")
        for j in range(8):
            k.e(f"s_add_i32 s50, s49, {j}")
            k.e("s_max_i32 s50, s50, 0")
            k.e("s_add_u32 s50, s50, s48")
            k.e("s_lshl_b32 s50, s50, 10")
            k.e(f"s_add_u32 s51, s50, {VB_G}")
            k.e(f"buffer_load_dwordx4 {vr(16+4*j,4)}, v8, {WS}, s50 offen sc1")
            k.e(f"buffer_load_dwordx4 {vr(48+4*j,4)}, v8, {WS}, s51 offen sc1")
        k.e("s_waitcnt vmcnt(16)");  k.e("s_barrier")
        k.e("s_lshl_b32 s48, s26, 13")
        k.e("v_add_u32 v9, s48, v8")
        for j in range(8):
            k.e(f"s_waitcnt vmcnt({14-2*j})")
            k.e(f"ds_write_b128 v9, {vr(16+4*j,4)} offset:{RK_L + j*1024}")
            k.e(f"ds_write_b128 v9, {vr(48+4*j,4)} offset:{RV_L + j*1024}")
            if j == 3: k.e("s_barrier")
        k.e(f"s_branch {jn}")
        k.lab(sk)
        k.e("s_waitcnt vmcnt(0)");  k.e("s_barrier")
        k.e("s_barrier")
        k.lab(jn)
    k.e("s_waitcnt lgkmcnt(0)")
    k.stamp(6)
    if OPT['ldprio']: k.e("s_setprio 0")
    k.e("s_barrier")
    k.stamp(4)

AQ_, AKF, AS, AMD, AMF, ACN, AP, AVB, AO = 4, 8, [44, 60, 76], 216, 232, 124, 140, [148, 156], 176
AM, AT = 192, 193
AK0, AK7, AK8, AV0, AV7, AV8 = 196, 197, 198, 199, 200, 201
KVR = 208
VPOLL, VPA, VPOLL2 = 248, 249, 253

def v_reads(k, buf, vaddr, off):
    k.e("s_mov_b64 exec, s[64:65]")
    k.e(f"ds_read_b128 {vr(AVB[buf],4)}, v{vaddr} offset:{off}")
    k.e(f"ds_read_b128 {vr(AVB[buf]+4,4)}, v{vaddr} offset:{off+512}")
    k.e("s_mov_b64 exec, -1")

def sig_f1a(k):
    sk = k.u("nosigA")
    k.e(f"s_cmp_lt_u32 s{S_WAVE}, 2")
    k.e(f"s_cbranch_scc0 {sk}")
    if OPT.get('sigst'): k.stamp(5)
    k.e("s_waitcnt vmcnt(0)")
    if OPT.get('sigst'): k.stamp(6)
    k.e(f"s_lshl_b32 s52, s{S_G}, 13")
    k.e(f"s_lshl_b32 s53, s{S_RB}, 1")
    k.e(f"s_add_u32 s53, s53, s{S_WAVE}")
    k.e("s_lshl_b32 s53, s53, 7")
    k.e("s_add_u32 s52, s52, s53")
    k.e(f"s_add_u32 s52, s52, {F1A}")
    store_flag(k, 52)
    k.lab(sk)

def attn_setup(k):
    k.e(f"s_and_b32 s86, s{S_WAVE}, 1")
    k.e(f"s_lshr_b32 s87, s{S_WAVE}, 1")
    k.e(f"v_lshlrev_b32 v{AT}, 4, v0")
    k.e("s_lshl_b32 s88, s86, 10")
    k.e("s_lshl_b32 s89, s87, 13")
    k.e("s_lshl_b32 s92, s87, 11")
    k.e("s_add_u32 s93, s89, s88")
    k.e(f"v_add_u32 v{AK0}, s93, v{AT}")
    k.e(f"s_add_u32 s94, s89, {7*1024}")
    k.e(f"s_add_u32 s100, s92, {OK_L}")
    k.e("s_cmp_eq_u32 s86, 0")
    k.e("s_cselect_b32 s94, s94, s100")
    k.e(f"v_add_u32 v{AK7}, s94, v{AT}")
    k.e("s_add_u32 s100, s100, s88")
    k.e(f"v_add_u32 v{AK8}, s100, v{AT}")
    k.e("v_lshrrev_b32 v202, 5, v0")
    k.e("v_lshlrev_b32 v202, 8, v202")
    k.e("v_and_b32 v203, 15, v0")
    k.e("v_lshlrev_b32 v203, 4, v203")
    k.e("v_add_u32 v202, v202, v203")
    k.e(f"s_add_u32 s94, s93, {RV_L}")
    k.e(f"v_add_u32 v{AV0}, s94, v202")
    k.e(f"s_add_u32 s94, s89, {RV_L + 7*1024}")
    k.e(f"s_add_u32 s100, s92, {OV_L}")
    k.e("s_cmp_eq_u32 s86, 0")
    k.e("s_cselect_b32 s94, s94, s100")
    k.e(f"v_add_u32 v{AV7}, s94, v202")
    k.e("s_add_u32 s100, s100, s88")
    k.e(f"v_add_u32 v{AV8}, s100, v202")
    k.e("v_and_b32 v202, 31, v0")
    k.e("v_lshrrev_b32 v203, 5, v0")
    k.e("v_lshlrev_b32 v203, 2, v203")
    k.e("v_sub_u32 v202, v202, v203")
    k.e("v_cvt_f32_i32 v202, v202")
    k.e(f"v_mov_b32 v203, {lit(BIG)}")
    for i in range(16):
        ci = 8*(i >> 2) + (i & 3)
        k.e(f"v_fmaak_f32 v{AMD+i}, v202, v203, {lit((0.5-ci)*BIG)}")
    for i in range(16): k.e(f"v_min_f32 v{AMF+i}, -v{AMD+i}, 0")
    for i in range(16): k.e(f"v_min_f32 v{AMD+i}, 0, v{AMD+i}")
    k.e(f"v_mov_b32 v{AM}, 0xff7fffff")
    k.e(f"s_lshl_b32 s87, s{S_G}, 13")
    k.e(f"s_add_u32 s87, s87, {F1A}")
    k.e(f"v_lshlrev_b32 v{VPA}, 7, v0")
    k.e(f"v_add_u32 v{VPA}, s87, v{VPA}")

def wo_setup(k):
    k.e("s_and_b32 s50, s2, 7")
    k.e("s_lshr_b32 s51, s2, 3")
    k.e("s_lshr_b32 s52, s50, 2")
    k.e("s_lshr_b32 s53, s51, 2")
    k.e("s_cmp_eq_u32 s52, 0")
    k.e(f"s_cselect_b32 s{SRD_WO}, s{P_AWO}, s{P_BWO}")
    k.e(f"s_cselect_b32 s{SRD_WO+1}, s{P_AWO+1}, s{P_BWO+1}")
    k.e(f"s_mov_b32 s{SRD_WO+2}, 0x{512*1024:x}")
    k.e(f"s_mov_b32 s{SRD_WO+3}, 0x20000")
    k.e("v_lshrrev_b32 v204, 3, v0")
    k.e("v_and_b32 v205, 7, v0")
    k.e("v_and_b32 v206, 2, v204")
    k.e("v_lshlrev_b32 v206, 1, v206")
    k.e("v_xor_b32 v206, v205, v206")
    k.e("v_lshlrev_b32 v206, 4, v206")
    k.e(f"s_sub_u32 s54, s{S_WAVE}, 4")
    if OPT['wosplit']:
        a = OPT['wosplit']
        starts = [0, a, 2*a, 2*a + (16 - a)]
        tab = sum(v << (8*i) for i, v in enumerate(starts))
        k.e("s_lshl_b32 s55, s54, 3")
        k.e(f"s_lshr_b32 s55, 0x{tab:x}, s55")
        k.e("s_and_b32 s55, s55, 0xff")
        k.e("s_lshl_b32 s50, s55, 4")
    else:
        k.e("s_lshl_b32 s50, s54, 7")
    k.e("v_add_u32 v204, s50, v204")
    k.e("v_lshlrev_b32 v204, 10, v204")
    k.e("s_lshl_b32 s96, s50, 7")
    k.e("s_lshl_b32 s50, s53, 7")
    k.e("v_add3_u32 v205, v204, v206, s50")
    k.e(f"s_add_u32 s96, s96, {WO_L}")
    k.e("s_mov_b32 s97, 0")

def wo_pair(k):
    k.e("s_mov_b32 m0, s96")
    k.e("s_add_u32 s98, s97, 7168")
    k.e(f"buffer_load_dwordx4 v205, {sr(SRD_WO,4)}, s97 offen lds")
    k.e(f"buffer_load_dwordx4 v205, {sr(SRD_WO,4)}, s98 offen offset:1024 lds")
    k.e("s_add_u32 s96, s96, 2048")
    k.e("s_add_u32 s97, s97, 16384")

KVL = 0
def kv_loads(k):
    k.stamp(14)
    k.e(f"s_lshl_b32 s50, s{S_G}, 13")
    k.e(f"s_add_u32 s50, s50, {KVACC}")
    k.e("s_add_u32 s51, s50, 4096")
    k.e(f"buffer_load_dwordx4 {vr(KVR,4)}, v1, {WS}, s50 offen sc1")
    k.e(f"buffer_load_dwordx4 {vr(KVR+4,4)}, v1, {WS}, s50 offen offset:1024 sc1")
    k.e(f"buffer_load_dwordx4 {vr(164,4)}, v1, {WS}, s51 offen sc1")
    k.e(f"buffer_load_dwordx4 {vr(168,4)}, v1, {WS}, s51 offen offset:1024 sc1")
    k.e("v_lshrrev_b32 v202, 5, v0")
    k.e("v_lshlrev_b32 v202, 12, v202")
    k.e("v_and_b32 v203, 31, v0")
    k.e("v_lshl_add_u32 v202, v203, 2, v202")
    k.e(f"buffer_load_dword v172, v202, {WS}, s50 offen offset:2048 sc1")

def attention(k):
    k.c("attention: i = w&1 (s26), hh = w>>1 (s27), qt = s48, s99 = kv loads issued flag")
    if OPT['lprio'] >= 0:
        sk = k.u("lp")
        k.e(f"s_cmp_ge_u32 s{S_WAVE}, 4")
        k.e(f"s_cbranch_scc0 {sk}")
        k.e("s_setprio 1")
        k.lab(sk)
    k.e(f"s_and_b32 s26, s{S_WAVE}, 1")
    k.e(f"s_lshr_b32 s27, s{S_WAVE}, 1")
    k.e(f"s_lshl_b32 s48, s{S_RB}, 1")
    k.e("s_add_u32 s48, s48, s26")
    k.e("v_lshlrev_b32 v1, 4, v0")
    k.e("s_lshl_b32 s49, s27, 11")
    k.e("s_lshl_b32 s50, s26, 10")
    k.e("s_add_u32 s49, s49, s50")
    k.e(f"s_add_u32 s49, s49, {Q_L}")
    k.e("v_add_u32 v2, s49, v1")
    k.e(f"ds_read_b128 {vr(AQ_,4)}, v2")
    def kaddr(p): return (AK0, RK_L + p*1024) if p <= 6 else ((AK7, 0) if p == 7 else (AK8, 0))
    def vaddr(p): return (AV0, p*1024) if p <= 6 else ((AV7, 0) if p == 7 else (AV8, 0))
    for p in range(9):
        a, o = kaddr(p); k.e(f"ds_read_b128 {vr(AKF+4*p,4)}, v{a} offset:{o}")
    k.e("s_mov_b32 s64, 0xffff")
    k.e("s_mov_b32 s65, 0xffff")
    k.e("s_mov_b32 s99, 0")
    for b in range(2):
        for j in range(8): k.e(f"v_mov_b32 v{AVB[b]+j}, 0x3f803f80")
    def wo_block():
        sk = k.u("nowo")
        k.e(f"s_cmp_ge_u32 s{S_WAVE}, 4")
        k.e(f"s_cbranch_scc0 {sk}")
        wo_setup(k)
        if OPT['wosplit']:
            a = OPT['wosplit']
            for j in range(a): wo_pair(k)
            k.e(f"s_cmp_ge_u32 s{S_WAVE}, 6")
            k.e(f"s_cbranch_scc0 {sk}")
            for j in range(16 - 2*a): wo_pair(k)
        else:
            for j in range(8): wo_pair(k)
        k.lab(sk)
    if OPT['wopos'] == 0: wo_block()
    Q = vr(AQ_, 4)
    def qk(dst, p, c): k.e(f"{MF} {vr(dst,16)}, {vr(AKF+4*p,4)}, {Q}, {c}")
    def c1(p): return vr(AMF,16) if p == 0 else (vr(AMD,16) if p == 8 else "0")
    def c2(p): return vr(AMF,16) if p == 0 else (vr(AMD,16) if p == 8 else vr(ACN,16))
    k.e("s_sub_i32 s95, 8, s48")
    k.e("s_max_i32 s95, s95, 0")
    P1 = [k.u(f"p1_{p}") for p in range(9)]
    P2 = [k.u(f"p2_{p}") for p in range(9)]
    E1 = [k.u(f"e1_{p}") for p in range(9)]
    E2 = [k.u(f"e2_{p}") for p in range(9)]
    k.e("s_waitcnt lgkmcnt(0)")
    for p in range(1, 9):
        k.e(f"s_cmp_eq_u32 s95, {p}")
        k.e(f"s_cbranch_scc1 {E1[p]}")
    qk(AS[0], 0, c1(0)); qk(AS[1], 1, c1(1)); qk(AS[2], 2, c1(2))
    k.e("s_nop 9")
    for p in range(9):
        k.lab(P1[p])
        s_ = AS[p % 3]
        for j in range(8): k.e(f"v_max3_f32 v{AM}, v{s_+2*j}, v{s_+2*j+1}, v{AM}")
        if p + 3 <= 8: qk(s_, p + 3, c1(p + 3))
    k.e(f"v_mov_b32 v{AT}, v{AM}")
    k.e("s_nop 1")
    k.e(f"v_permlane32_swap_b32 v{AM}, v{AT}")
    k.e(f"v_max_f32 v{AM}, v{AM}, v{AT}")
    k.e(f"v_sub_f32 v{AM}, 0, v{AM}")
    for i in range(16): k.e(f"v_mov_b32 v{ACN+i}, v{AM}")
    MRG = OPT['merge']
    if not MRG:
        for i in range(16): k.e(f"v_add_f32 v{AMD+i}, v{AMD+i}, v{AM}")
    if OPT['wopos'] == 1: wo_block()
    k.stamp(8)
    k.e("s_cmp_eq_u32 s95, 0")
    sh = k.u("short2")
    k.e(f"s_cbranch_scc0 {sh}")
    if MRG:
        k.e("s_mov_b32 s62, 0xffff")
        for i in range(16): k.e(f"v_ashrrev_i32 v{AMF+i}, 31, v{AMD+i}")
        v_reads(k, 1, *vaddr(1))
        qk(AS[1], 1, c2(1))
        for j in range(8): k.e(f"v_bfi_b32 v{AMD+j}, s62, v{AMF+2*j}, v{AMF+2*j+1}")
    else:
        for i in range(16): k.e(f"v_add_f32 v{AMF+i}, v{AMF+i}, v{AM}")
        v_reads(k, 0, *vaddr(0))
        k.e("s_nop 0")
        qk(AS[0], 0, c2(0))
        k.e("s_nop 6")
    mrgblk = k.u("merged"); afterm = k.u("afterm")
    for p in range(9):
        if MRG and p == 0: continue
        k.lab(P2[p])
        cur = AS[p % 2]; nxt = AS[(p + 1) % 2]
        if MRG and p == 8:
            k.e("s_cmp_eq_u32 s95, 0")
            k.e(f"s_cbranch_scc1 {mrgblk}")
        if p < 8:
            if MRG and p == 7:
                sk7 = k.u("m7"); j7 = k.u("j7")
                k.e("s_cmp_eq_u32 s95, 0")
                k.e(f"s_cbranch_scc0 {sk7}")
                qk(nxt, 8, vr(ACN,16)); qk(AS[2], 0, vr(ACN,16))
                k.e(f"s_branch {j7}")
                k.lab(sk7)
                qk(nxt, 8, vr(AMD,16))
                k.lab(j7)
            else:
                qk(nxt, p + 1, c2(p + 1))
            v_reads(k, (p + 1) % 2, *vaddr(p + 1))
        hooks = k.u("nohook")
        if p == OPT['lprio']: k.e("s_setprio 0")
        if p == OPT['sigp']:
            k.e("s_cmp_eq_u32 s95, 0")
            k.e(f"s_cbranch_scc0 {hooks}")
            sig_f1a(k)
            k.lab(hooks)
        if p >= OPT['pollp'] and (p - OPT['pollp']) % OPT['pollstep'] == 0:
            hk = k.u("hk")
            vp = VPOLL if (p - OPT['pollp']) % 2 == 0 else VPOLL2
            k.e(f"s_cmp_eq_u32 s{S_WAVE}, 4")
            k.e(f"s_cbranch_scc0 {hk}")
            k.e("s_cmp_eq_u32 s95, 0")
            k.e(f"s_cbranch_scc0 {hk}")
            k.e("s_cmp_eq_u32 s99, 0")
            k.e(f"s_cbranch_scc0 {hk}")
            if p >= OPT['pollp'] + 2:
                got = k.u("got")
                k.e(f"s_waitcnt vmcnt({1 if OPT['pollstep'] == 1 else 0})")
                k.e(f"v_cmp_ne_u32 vcc, s{S_NONCE}, v{vp}")
                k.e("s_nop 1")
                k.e(f"s_cbranch_vccz {got}")
                k.e(f"buffer_load_dword v{vp}, v{VPA}, {WS}, 0 offen sc1")
                k.e(f"s_branch {hk}")
                k.lab(got)
                kv_loads(k)
                k.e("s_mov_b32 s99, 1")
            else:
                k.e(f"buffer_load_dword v{vp}, v{VPA}, {WS}, 0 offen sc1")
            k.lab(hk)
        for j in range(16): k.e(f"v_exp_f32 v{cur+j}, v{cur+j}")
        for j in range(8): k.e(f"v_cvt_pk_bf16_f32 v{AP+j}, v{cur+2*j}, v{cur+2*j+1}")
        k.e(f"s_waitcnt lgkmcnt({2 if p < 8 else 0})")
        vb = AVB[p % 2]
        k.e(f"{MF} {vr(AO,16)}, {vr(vb,4)}, {vr(AP,4)}, {'0' if p == (1 if MRG else 0) else vr(AO,16)}")
        k.e("s_nop 0")
        k.e(f"{MF} {vr(AO,16)}, {vr(vb+4,4)}, {vr(AP+4,4)}, {vr(AO,16)}")
    done = k.u("attdone")
    k.e(f"s_branch {done}")
    if MRG:
        k.lab(mrgblk)
        SD, SF = AS[0], AS[2]
        v_reads(k, 1, *vaddr(0))
        hk = k.u("hkm"); got = k.u("gotm")
        vp = VPOLL if (8 - OPT['pollp']) % 2 == 0 else VPOLL2
        k.e(f"s_cmp_eq_u32 s{S_WAVE}, 4")
        k.e(f"s_cbranch_scc0 {hk}")
        k.e("s_cmp_eq_u32 s99, 0")
        k.e(f"s_cbranch_scc0 {hk}")
        k.e("s_waitcnt vmcnt(1)")
        k.e(f"v_cmp_ne_u32 vcc, s{S_NONCE}, v{vp}")
        k.e("s_nop 1")
        k.e(f"s_cbranch_vccnz {hk}")
        kv_loads(k)
        k.e("s_mov_b32 s99, 1")
        k.lab(hk)
        k.e("s_nop 3")
        for i in range(16): k.e(f"v_bfi_b32 v{SD+i}, v{AMF+i}, v{SF+i}, v{SD+i}")
        for j in range(16): k.e(f"v_exp_f32 v{SD+j}, v{SD+j}")
        for j in range(8): k.e(f"v_cvt_pk_bf16_f32 v{AP+j}, v{SD+2*j}, v{SD+2*j+1}")
        for j in range(8): k.e(f"v_and_b32 v{SF+j}, v{AP+j}, v{AMD+j}")
        for j in range(8): k.e(f"v_xor_b32 v{AP+j}, v{AP+j}, v{SF+j}")
        k.e("s_waitcnt lgkmcnt(0)")
        k.e(f"{MF} {vr(AO,16)}, {vr(AVB[1],4)}, {vr(SF,4)}, {vr(AO,16)}")
        k.e(f"{MF} {vr(AO,16)}, {vr(AVB[1]+4,4)}, {vr(SF+4,4)}, {vr(AO,16)}")
        k.e(f"{MF} {vr(AO,16)}, {vr(AVB[0],4)}, {vr(AP,4)}, {vr(AO,16)}")
        k.e(f"{MF} {vr(AO,16)}, {vr(AVB[0]+4,4)}, {vr(AP+4,4)}, {vr(AO,16)}")
        k.e(f"s_branch {done}")
    for p in range(1, 9):
        k.lab(E1[p])
        for q in range(p, min(p + 3, 9)): qk(AS[q % 3], q, c1(q))
        k.e("s_nop 10")
        k.e(f"s_branch {P1[p]}")
    k.lab(sh)
    if MRG:
        for i in range(16): k.e(f"v_add_f32 v{AMD+i}, v{AMD+i}, v{AM}")
    for i in range(16): k.e(f"v_mov_b32 v{AO+i}, 0")
    sig_f1a(k)
    sk = k.u("shpoll")
    k.e(f"s_cmp_eq_u32 s{S_WAVE}, 4")
    k.e(f"s_cbranch_scc0 {sk}")
    k.e(f"buffer_load_dword v{VPOLL}, v{VPA}, {WS}, 0 offen sc1")
    k.lab(sk)
    for p in range(1, 9):
        k.e(f"s_cmp_eq_u32 s95, {p}")
        k.e(f"s_cbranch_scc1 {E2[p]}")
    k.e(f"s_branch {E2[8]}")
    for p in range(1, 9):
        k.lab(E2[p])
        qk(AS[p % 2], p, c2(p))
        v_reads(k, p % 2, *vaddr(p))
        k.e("s_nop 6")
        k.e(f"s_branch {P2[p]}")
    k.lab(done)

def apart(k):
    sk = k.u("kvdone")
    k.e(f"s_cmp_eq_u32 s{S_WAVE}, 4")
    k.e(f"s_cbranch_scc0 {sk}")
    k.e("s_cmp_eq_u32 s99, 1")
    k.e(f"s_cbranch_scc1 {sk}")
    poll_flags(k, VPA, VPOLL, "f1a")
    kv_loads(k)
    k.lab(sk)
    k.e("s_nop 8")
    k.e(f"v_rcp_f32 v{AT}, v{AO+8}")
    k.e("s_nop 0")
    for j in range(8): k.e(f"v_mul_f32 v{AO+j}, v{AO+j}, v{AT}")
    cvt8(k, AP, AO)
    k.e(f"s_lshl_b32 s49, s{S_G}, 2")
    k.e("s_add_u32 s49, s49, s27")
    k.e("s_lshl_b32 s50, s48, 5")
    k.e("s_add_u32 s49, s49, s50")
    k.e("s_lshl_b32 s49, s49, 10")
    k.e(f"s_add_u32 s50, s49, {O_G + (2<<20)}")
    k.e(f"buffer_store_dwordx4 {vr(AP,4)}, v1, {WS}, s50 offen sc1")
    k.e("s_barrier")
    sk = k.u("nokvw")
    k.e(f"s_cmp_eq_u32 s{S_WAVE}, 4")
    k.e(f"s_cbranch_scc0 {sk}")
    k.e("s_waitcnt vmcnt(1)")
    k.e(f"ds_write_b128 v1, {vr(KVR,4)} offset:{KVL}")
    k.e(f"ds_write_b128 v1, {vr(KVR+4,4)} offset:{KVL+1024}")
    k.e(f"ds_write_b128 v1, {vr(164,4)} offset:{KVL+4096}")
    k.e(f"ds_write_b128 v1, {vr(168,4)} offset:{KVL+4096+1024}")
    k.e("v_lshrrev_b32 v202, 5, v0")
    k.e("v_lshlrev_b32 v202, 12, v202")
    k.e("v_and_b32 v203, 31, v0")
    k.e("v_lshl_add_u32 v202, v203, 2, v202")
    k.e(f"ds_write_b32 v202, v172 offset:{KVL+2048}")
    k.e("s_waitcnt lgkmcnt(0)")
    k.lab(sk)
    k.e("s_lshr_b32 s51, s27, 1")
    k.e("s_lshl_b32 s51, s51, 12")
    k.e("s_and_b32 s52, s27, 1")
    k.e("s_lshl_b32 s52, s52, 6")
    k.e("s_add_u32 s51, s51, s52")
    k.e("v_lshrrev_b32 v203, 5, v0")
    k.e("v_and_b32 v202, 15, v0")
    k.e("v_lshl_add_u32 v202, v203, 5, v202")
    k.e("v_lshlrev_b32 v202, 2, v202")
    k.e("v_add_u32 v202, s51, v202")
    k.e("v_lshlrev_b32 v203, 4, v203")
    k.e("v_add_u32 v203, s51, v203")
    k.e("s_lshl_b32 s51, s27, 11")
    k.e("s_lshl_b32 s50, s26, 10")
    k.e("s_add_u32 s51, s51, s50")
    k.e(f"s_add_u32 s51, s51, {PQ_L}")
    k.e("v_add_u32 v2, s51, v1")
    k.e(f"ds_read_b128 {vr(AQ_,4)}, v2")
    k.e("s_barrier")
    k.stamp(15)
    k.e("s_mov_b64 exec, s[64:65]")
    for t in range(8): k.e(f"ds_read_b32 v{KVR+t}, v202 offset:{KVL + t*256}")
    k.e("s_not_b64 exec, s[64:65]")
    k.e(f"ds_read_b128 {vr(KVR,4)}, v203 offset:{KVL+2048}")
    k.e(f"ds_read_b128 {vr(KVR+4,4)}, v203 offset:{KVL+2048+32}")
    k.e("s_mov_b64 exec, -1")
    k.e("s_waitcnt lgkmcnt(0)")
    cvt8(k, 8, KVR)
    k.e("s_nop 1")
    k.e(f"{MF} {vr(44,16)}, {vr(8,4)}, {vr(AQ_,4)}, 0")
    k.e(f"s_mov_b32 s62, {lit(1e-6)}")
    k.e("s_nop 10")
    k.e("v_add_f32 v12, s62, v52")
    k.e("v_rcp_f32 v12, v12")
    k.e("s_nop 0")
    for j in range(8): k.e(f"v_mul_f32 v{44+j}, v{44+j}, v12")
    cvt8(k, 16, 44)
    k.e(f"s_add_u32 s50, s49, {O_G}")
    k.e(f"buffer_store_dwordx4 {vr(16,4)}, v1, {WS}, s50 offen sc1")

def p3(k):
    k.c("P3: out tile 128x64")
    k.e("s_and_b32 s48, s2, 7")
    k.e("s_lshr_b32 s49, s2, 3")
    k.e("s_lshr_b32 s66, s48, 2")
    k.e("s_and_b32 s67, s48, 3")
    k.e("s_lshl_b32 s67, s67, 2")
    k.e("s_and_b32 s50, s49, 3")
    k.e("s_add_u32 s67, s67, s50")
    k.e("s_lshr_b32 s68, s49, 2")
    k.e("s_lshl_b32 s48, s67, 11")
    k.e(f"s_add_u32 s48, s48, {F2}")
    k.e("v_and_b32 v8, 15, v0")
    k.e("v_lshlrev_b32 v8, 7, v8")
    k.e("v_add_u32 v8, s48, v8")
    OF, ACC3, WF = 8+4, 144, [176, 184]
    VA0, VA1 = 192, 193
    k.e("v_bfe_u32 v2, v0, 2, 2")
    k.e("v_and_b32 v3, 3, v0")
    k.e("v_bfe_u32 v4, v0, 4, 1")
    k.e("v_lshrrev_b32 v5, 5, v0")
    k.e("v_lshlrev_b32 v5, 2, v5")
    k.e("v_add_u32 v5, v5, v2")
    k.e("v_lshlrev_b32 v5, 7, v5")
    k.e("v_and_b32 v6, 1, v3")
    k.e("v_lshlrev_b32 v6, 1, v6")
    k.e("v_add_u32 v6, v6, v4")
    k.e("v_and_b32 v7, 2, v2")
    k.e("v_lshlrev_b32 v7, 1, v7")
    k.e("v_xor_b32 v6, v6, v7")
    k.e("v_lshlrev_b32 v6, 4, v6")
    k.e("v_lshrrev_b32 v3, 1, v3")
    k.e("v_lshlrev_b32 v3, 3, v3")
    k.e("v_add3_u32 v5, v5, v6, v3")
    SLOWG = OPT['slowg']
    VB0 = 194
    k.e(f"v_add_u32 v{VB0}, {WO_L}, v5")
    k.e("s_lshl_b32 s48, s67, 2")
    k.e(f"s_add_u32 s48, s48, s{S_WAVE}")
    k.e("s_lshl_b32 s49, s48, 15")
    k.e("s_lshl_b32 s50, s66, 21")
    k.e("s_add_u32 s49, s49, s50")
    k.e(f"s_add_u32 s49, s49, {O_G}")
    k.e("v_lshlrev_b32 v1, 4, v0")
    GR = [86, 87, 88, 89, 92, 93, 94, 100]
    NOSLOW = SLOWG == 8
    if NOSLOW:
        for u in range(8):
            k.e(f"s_add_u32 s52, s68, {u}")
            k.e(f"s_and_b32 s{GR[u]}, s52, 7")
    k.e("s_cmp_eq_u32 s68, 7")
    k.e("s_cselect_b32 s51, 0, s68")
    for u in range(0 if NOSLOW else 7):
        k.e(f"s_add_u32 s52, s51, {u}")
        k.e("s_cmp_ge_u32 s52, 7")
        k.e("s_cselect_b32 s53, 7, 0")
        k.e("s_sub_u32 s52, s52, s53")
        k.e(f"s_cmp_ge_u32 s52, {SLOWG}")
        k.e("s_cselect_b32 s53, 1, 0")
        k.e(f"s_add_u32 s{GR[u]}, s52, s53")
    if not NOSLOW: k.e(f"s_mov_b32 s{GR[7]}, {SLOWG}")
    k.e(f"s_lshr_b32 s52, s{S_WAVE}, 1")
    k.e("s_and_b32 s52, s52, 1")
    k.e("s_lshl_b32 s52, s52, 3")
    k.e(f"s_add_u32 s52, s52, {SLOWG}")
    k.e("s_lshl_b32 s52, s52, 7")
    k.e("s_lshl_b32 s53, s67, 11")
    k.e("s_add_u32 s52, s52, s53")
    k.e(f"s_add_u32 s52, s52, {F2}")
    k.e("v_mov_b32 v10, s52")
    sk = k.u("nof2poll")
    k.e(f"s_cmp_eq_u32 s{S_WAVE}, 0")
    k.e(f"s_cbranch_scc0 {sk}")
    k.e(f"s_mov_b64 exec, 0x{0xffff if NOSLOW else 0xffff & ~((1 << SLOWG) | (1 << (8 + SLOWG))):x}")
    poll_flags(k, 8, 9, "f2")
    k.e("s_mov_b64 exec, -1")
    k.lab(sk)
    k.e("s_barrier")
    k.e(f"s_cmp_ge_u32 s{S_WAVE}, 4")
    k.e("s_cbranch_scc1 L_fin")
    k.stamp(12)
    def oload(hd):
        u = hd >> 2
        if hd % 4 == 0 or True:
            k.e(f"s_lshl_b32 s52, s{GR[u]}, 12")
            k.e("s_add_u32 s52, s52, s49")
        k.e(f"buffer_load_dwordx4 {vr(OF+4*hd,4)}, v1, {WS}, s52 offen offset:{(hd%4)*1024} sc1")
    for hd in range(16): oload(hd)
    def setva(u):
        k.e(f"s_lshl_b32 s52, s{GR[u]}, 13")
        k.e(f"v_add_u32 v{VA0}, s52, v{VB0}")
        k.e(f"v_xor_b32 v{VA1}, 64, v{VA0}")
    def wreads(buf, j):
        for b in range(2):
            for s2 in range(2):
                k.e(f"ds_read_b64_tr_b16 {vr(WF[buf]+4*b+2*s2,2)}, v{VA0+b} offset:{j*2048 + s2*1024}")
    def slow_loads():
        for hd in range(28, 32): oload(hd)
        k.e("s_mov_b32 s54, 1")
    PI, PC = OPT['p3poll'], 24
    k.e("s_mov_b32 s54, 0")
    setva(0)
    wreads(0, 0)
    for hd in range(32 if NOSLOW else 0):
        if hd < 31:
            nj = (hd + 1) % 4
            if nj == 0: setva((hd + 1)//4)
            wreads((hd + 1) % 2, nj)
        last = min(31, 15 + hd)
        k.e(f"s_waitcnt vmcnt({last - hd}) lgkmcnt({4 if hd < 31 else 0})")
        if 16 + hd <= 31: oload(16 + hd)
        for b in range(2):
            k.e(f"{MF} {vr(ACC3+16*b,16)}, {vr(WF[hd%2]+4*b,4)}, {vr(OF+4*hd,4)}, {'0' if hd == 0 else vr(ACC3+16*b,16)}")
    for hd in range(0 if NOSLOW else 32):
        if hd == 28:
            sk = k.u("slowok")
            k.e("s_cmp_eq_u32 s54, 1")
            k.e(f"s_cbranch_scc1 {sk}")
            k.e("s_mov_b64 exec, 1")
            poll_flags(k, 10, 9, "f2s")
            k.e("s_mov_b64 exec, -1")
            slow_loads()
            k.lab(sk)
        if hd < 31:
            nj = (hd + 1) % 4
            if nj == 0: setva((hd + 1)//4)
            wreads((hd + 1) % 2, nj)
        if hd < 28:
            last = min(27, 15 + hd)
            n = last - hd + (1 if hd > PI else 0)
            if hd >= PC: n = None
        else:
            n = 31 - hd
        if hd == PC:
            k.e(f"s_waitcnt vmcnt(0) lgkmcnt(4)")
            sk = k.u("notyet")
            k.e("s_mov_b64 exec, 1")
            k.e(f"v_cmp_ne_u32 vcc, s{S_NONCE}, v9")
            k.e("s_mov_b64 exec, -1")
            k.e("s_nop 0")
            k.e(f"s_cbranch_vccnz {sk}")
            slow_loads()
            k.lab(sk)
        elif n is None:
            k.e("s_waitcnt lgkmcnt(4)")
        else:
            k.e(f"s_waitcnt vmcnt({n}) lgkmcnt({4 if hd < 31 else 0})")
        if 16 + hd <= 27: oload(16 + hd)
        if hd == PI:
            k.e("s_mov_b64 exec, 1")
            k.e(f"buffer_load_dword v9, v10, {WS}, 0 offen sc1")
            k.e("s_mov_b64 exec, -1")
        if OPT.get('p3st') and hd in (0, 8, 31):
            k.stamp({0: 5, 8: 6, 31: 8}[hd])
        for b in range(2):
            k.e(f"{MF} {vr(ACC3+16*b,16)}, {vr(WF[hd%2]+4*b,4)}, {vr(OF+4*hd,4)}, {'0' if hd == 0 else vr(ACC3+16*b,16)}")
    srd(k, SRD_T, P_OUT, 4 << 20)
    k.e("v_and_b32 v2, 31, v0")
    k.e("s_lshl_b32 s49, s48, 5")
    k.e("v_add_u32 v2, s49, v2")
    k.e("v_lshlrev_b32 v2, 11, v2")
    k.e("v_lshrrev_b32 v3, 5, v0")
    k.e("v_lshlrev_b32 v3, 5, v3")
    k.e("s_lshl_b32 s49, s66, 10")
    k.e("s_lshl_b32 s50, s68, 7")
    k.e("s_add_u32 s49, s49, s50")
    k.e("v_add3_u32 v2, v2, v3, s49")
    k.e("s_nop 3")
    for b in range(2):
        for j in range(8): k.e(f"v_cvt_pk_bf16_f32 v{12+8*b+j}, v{ACC3+16*b+2*j}, v{ACC3+16*b+2*j+1}")
    for b in range(2):
        fl = {0: "", 1: " sc1", 2: " nt", 3: " sc0 sc1"}[OPT['outf']]
        k.e(f"buffer_store_dwordx4 {vr(12+8*b,4)}, v2, {sr(SRD_T,4)}, 0 offen offset:{64*b}{fl}")
        k.e(f"buffer_store_dwordx4 {vr(16+8*b,4)}, v2, {sr(SRD_T,4)}, 0 offen offset:{64*b+16}{fl}")

HDR = """; Kernarg layout for this problem (72 bytes, ptrs only, base s[0:1]):
;   offset   0: d_in[0] A_x  shape=(1, 2048, 512) dtype=bfloat16 strides=(2097152, 1024, 2) contiguous=True
;   offset   8: d_in[1] A_wqkv  shape=(512, 1536) dtype=bfloat16 strides=(3072, 2) contiguous=True
;   offset  16: d_in[2] A_wo  shape=(512, 512) dtype=bfloat16 strides=(1024, 2) contiguous=True
;   offset  24: d_in[3] B_x  shape=(1, 2048, 512) dtype=bfloat16 strides=(2097152, 1024, 2) contiguous=True
;   offset  32: d_in[4] B_wqkv  shape=(512, 1536) dtype=bfloat16 strides=(3072, 2) contiguous=True
;   offset  40: d_in[5] B_wo  shape=(512, 512) dtype=bfloat16 strides=(1024, 2) contiguous=True
;   offset  48: d_out     shape=(1, 2048, 1024) dtype=bfloat16 (2 bytes/elem)
;   offset  56: d_debug   256 bytes
;   offset  64: d_ws      268435456 bytes workspace
;
; One persistent launch, 256 workgroups (one per CU) x 8 waves.  Workgroup = (64-row block rb, 4-head group g).
;   P1  QKV GEMMs (branch B tile, then branch A tile): waves 4-7 stream x / W through a 4-slot LDS ring (LDS-DMA),
;       waves 0,1 accumulate k,v and waves 2,3 accumulate q.  B's K/V fragments go to d_ws for the neighbouring row
;       blocks, A's phi(k)^T v and sum phi(k) are accumulated in d_ws with f32 atomics.
;   P2  sliding-window attention, one (32-query tile, head) unit per wave (two passes: true row max, then exp / PV),
;       then the linear-attention output of the same unit.
;   P3  output projection, 128x64 tile per workgroup.
; Hand-offs between workgroups: write-through (sc1) stores, drained, then a flag word holding a per-launch nonce.
; @launch grid=(256,1,1) block=(512,1,1) lds=163840
.amdgcn_target "amdgcn-amd-amdhsa--gfx950"
.text
.globl KNAME
.p2align 8
.type KNAME,@function
""".replace("KNAME", KNAME)

TAIL = """.section .rodata,"a"
.p2align 6
.amdhsa_kernel KNAME
  .amdhsa_next_free_vgpr 256
  .amdhsa_next_free_sgpr 102
  .amdhsa_accum_offset 256
  .amdhsa_group_segment_fixed_size 0
  .amdhsa_kernarg_size 72
  .amdhsa_user_sgpr_count 2
  .amdhsa_user_sgpr_kernarg_segment_ptr 1
  .amdhsa_system_sgpr_workgroup_id_x 1
.end_amdhsa_kernel
""".replace("KNAME", KNAME)

def build(stamps=False):
    k = gen(stamps)
    body = "\n".join(k.L)
    body = body.replace("PF_BACK", f"((L_pc - {KNAME}) & 0xffffff00)")
    pad = "\n    .fill 2048, 4, 0xbf800000\n"
    hdr, tail = HDR, TAIL
    if OPT['extra']:
        hdr = hdr.replace("; @launch grid=(256,1,1) block=(512,1,1) lds=163840", f"; @launch kernel={KNAME} grid=(256,1,1) block=(512,1,1) lds=163840\n; @launch kernel=nop_kernel grid=(1,1,1) block=(64,1,1) lds=0")
        pad += ".globl nop_kernel\n.p2align 8\n.type nop_kernel,@function\nnop_kernel:\n    s_endpgm\n"
        tail += """.p2align 6
.amdhsa_kernel nop_kernel
  .amdhsa_next_free_vgpr 8
  .amdhsa_next_free_sgpr 16
  .amdhsa_accum_offset 8
  .amdhsa_group_segment_fixed_size 0
  .amdhsa_kernarg_size 72
  .amdhsa_user_sgpr_count 2
  .amdhsa_user_sgpr_kernarg_segment_ptr 1
  .amdhsa_system_sgpr_workgroup_id_x 1
.end_amdhsa_kernel
"""
    return hdr + body + pad + "\n" + tail

if __name__ == "__main__":
    out = sys.argv[1] if len(sys.argv) > 1 else "out.s"
    stamps = "stamps" in sys.argv[2:]
    for a in sys.argv[2:]:
        if "=" in a:
            kk, vv = a.split("="); OPT[kk] = int(vv)
    txt = build(stamps)
    open(out, "w").write(txt)
    import hz
    pr = hz.check(txt)
    import subprocess
    r = subprocess.run(["clang", "-x", "assembler", "-target", "amdgcn-amd-amdhsa", "-mcpu=gfx950", "-c", out, "-o", "_chk.o"], capture_output=True, text=True)
    print("hazards:", len(pr), "lines:", txt.count("\n"), "asm:", "ok" if r.returncode == 0 else r.stderr)
```

```python
import sys, math, struct

KNAME = "concat_heads__linear_attn_block__sliding_block__prompt_kernel"

KB_G   = 0
VB_G   = 2 << 20
O_G    = 4 << 20
KVACC  = 8 << 20
FL     = (8 << 20) + (64 << 10)
F1B    = FL
F1A    = FL + (32 << 10)
F2     = FL + (96 << 10)
STAMP  = 9 << 20
SLOT   = 32768
OK_L, OV_L, Q_L, PQ_L = 131072, 139264, 147456, 155648
NONCE_L = PQ_L
RK_L, RV_L, WO_L = 0, 32768, 65536
CS = 0.25 * math.log2(math.e)
LOG2E = math.log2(math.e)
BIG = 1.0e28
SPIN_MAX = 2000000
OPT = dict(rot=4, pfB=0, pfA=1, dbgstamps=0, stagest=0, pfs=1, tpf=0, p3st=0, map=2, outf=2, extra=0, sigs=9, pf0=0, late9=0, remdma=1, m16=0, npre=16, pf4=0, pkphi=1, prio=0, kvprio=1, pollp=4, sigp=3, fixdur=0, ldprio=0, wopos=1, sigst=0, wosplit=0, lprio=-1, slowg=3, p3poll=14, pf3=0, x16st=0, sleep=1, rotA=-1, bfi=1, vpre=1, x16pos=2, merge=0, pollstep=1, cpf=3, pfm=1, pfwo=0, warmf=1, warmp=0)

def f2u(x): return struct.unpack('<I', struct.pack('<f', x))[0]
def lit(x): return "0x%08x" % f2u(x)

class K:
    def __init__(self, stamps=False):
        self.L = []; self.stamps = stamps; self.uid = 0; self.inp1 = False
    def e(self, s):
        if self.inp1 and OPT['m16'] and s.startswith("v_mfma_f32_32x32x16_bf16"):
            import re
            m = re.match(r"v_mfma_f32_32x32x16_bf16 v\[(\d+):\d+\], (v\[\d+:\d+\]), (v\[\d+:\d+\]), (.*)", s)
            d = int(m.group(1)); c = m.group(4)
            for h in range(2):
                cc = "0" if c == "0" else f"v[{d+4*h}:{d+4*h+3}]"
                self.L.append(f"    v_mfma_f32_16x16x32_bf16 v[{d+4*h}:{d+4*h+3}], {m.group(2)}, {m.group(3)}, {cc}")
            return
        self.L.append("    " + s)
    def c(self, s): self.L.append("    ; " + s)
    def lab(self, s): self.L.append(s + ":")
    def u(self, p):
        self.uid += 1; return f"L_{p}_{self.uid}"
    def stamp(self, k):
        if not self.stamps: return
        self.e("s_memrealtime s[70:71]")
        self.e("s_waitcnt lgkmcnt(0)")
        self.e(f"s_mov_b32 s{72+k}, s70")

def vr(a, n): return f"v[{a}:{a+n-1}]"
def sr(a, n): return f"s[{a}:{a+n-1}]"
MF = "v_mfma_f32_32x32x16_bf16"

S_WAVE, S_RB, S_G, S_NONCE = 22, 23, 24, 25
SRD_WS, SRD_X, SRD_W, SRD_T, SRD_WO = 28, 32, 36, 40, 44
P_AX, P_AW, P_AWO, P_BX, P_BW, P_BWO, P_OUT, P_DBG, P_WS = 4, 6, 8, 10, 12, 14, 16, 18, 20
WS = sr(SRD_WS, 4)

def srd(k, dst, ptr, size):
    k.e(f"s_mov_b32 s{dst}, s{ptr}")
    k.e(f"s_mov_b32 s{dst+1}, s{ptr+1}")
    k.e(f"s_mov_b32 s{dst+2}, 0x{size:x}")
    k.e(f"s_mov_b32 s{dst+3}, 0x20000")

def spin_guard(k, sreg, exit_label):
    k.e(f"s_add_u32 s{sreg}, s{sreg}, 1")
    k.e(f"s_cmp_gt_u32 s{sreg}, {SPIN_MAX}")
    k.e(f"s_cbranch_scc1 {exit_label}")

def poll_flags(k, vaddr, vtmp, name, first_issued=False, sleep=1):
    lp = k.u(name + "_poll"); ex = k.u(name + "_done"); chk = k.u(name + "_chk")
    k.e("s_mov_b32 s60, 0")
    if first_issued: k.e(f"s_branch {chk}")
    k.lab(lp)
    k.e(f"buffer_load_dword v{vtmp}, v{vaddr}, {WS}, 0 offen sc1")
    k.lab(chk)
    spin_guard(k, 60, ex)
    k.e("s_waitcnt vmcnt(0)")
    k.e(f"v_cmp_ne_u32 vcc, s{S_NONCE}, v{vtmp}")
    k.e("s_nop 1")
    k.e(f"s_cbranch_vccz {ex}")
    if OPT['sleep']: k.e(f"s_sleep {OPT['sleep']}")
    k.e(f"s_branch {lp}")
    k.lab(ex)
    k.e("s_waitcnt vmcnt(0)")

def store_flag(k, soff):
    k.e(f"v_mov_b32 v250, s{S_NONCE}")
    k.e("v_mov_b32 v251, 0")
    k.e("s_mov_b64 exec, 1")
    k.e(f"buffer_store_dword v250, v251, {WS}, s{soff} offen sc1")
    k.e("s_mov_b64 exec, -1")

def cvt8(k, dst, src):
    for j in range(4): k.e(f"v_cvt_pk_bf16_f32 v{dst+j}, v{src+2*j}, v{src+2*j+1}")

def phi(k, r, n, t):
    if not OPT['pkphi']:
        for i in range(0, n, 4):
            for j in range(4): k.e(f"v_mul_f32 v{t+j}, s61, v{r+i+j}")
            for j in range(4): k.e(f"v_exp_f32 v{t+j}, v{t+j} clamp")
            for j in range(4): k.e(f"v_max_f32 v{r+i+j}, 0, v{r+i+j}")
            for j in range(4): k.e(f"v_add_f32 v{r+i+j}, s62, v{r+i+j}")
            for j in range(4): k.e(f"v_add_f32 v{r+i+j}, v{t+j}, v{r+i+j}")
        return
    for i in range(0, n, 8):
        for j in range(0, 8, 2): k.e(f"v_pk_mul_f32 {vr(t+j,2)}, {vr(r+i+j,2)}, s[66:67]")
        for j in range(8): k.e(f"v_exp_f32 v{t+j}, v{t+j} clamp")
        for j in range(8): k.e(f"v_max_f32 v{r+i+j}, 0, v{r+i+j}")
        for j in range(0, 8, 2): k.e(f"v_pk_add_f32 {vr(r+i+j,2)}, {vr(r+i+j,2)}, s[62:63]")
        for j in range(0, 8, 2): k.e(f"v_pk_add_f32 {vr(r+i+j,2)}, {vr(r+i+j,2)}, {vr(t+j,2)}")

ACC = 8
BUF = [72, 88, 104, 120]
VXA, VWA = 136, 140
EP = 144
PFD = 208

def rd_x(k, buf, j, t): k.e(f"ds_read_b128 {vr(BUF[buf]+4*t,4)}, v{VXA+j} offset:{t*4096}")
def rd_w(k, buf, j, p, slot):
    for s2 in range(2):
        k.e(f"ds_read_b64_tr_b16 {vr(BUF[buf]+8+4*slot+2*s2,2)}, v{VWA} offset:{p*8192 + j*2048 + s2*512}")
def reads(k, role, buf, j):
    rd_x(k, buf, j, 0); rd_x(k, buf, j, 1)
    if role == 'kv': rd_w(k, buf, j, 1, 0); rd_w(k, buf, j, 2, 1)
    else: rd_w(k, buf, j, 0, 0)

def kstep(k, role, br, j, first=False, noreads=False, wait=None):
    nb = (j + 2) & 3; b = BUF[j]
    if noreads:
        X = [vr(b,4), vr(b+4,4)]; W = [vr(b+8,4), vr(b+12,4)]
        k.e(f"s_waitcnt lgkmcnt({wait})")
        for t in range(2):
            a = ACC + 16*t
            if role == 'kv' and br == 'A': k.e(f"{MF} {vr(a,16)}, {X[t]}, {W[0]}, {vr(a,16)}")
            else: k.e(f"{MF} {vr(a,16)}, {W[0]}, {X[t]}, {vr(a,16)}")
        if role == 'kv':
            for t in range(2):
                a = ACC + 32 + 16*t
                k.e(f"{MF} {vr(a,16)}, {X[t]}, {W[1]}, {vr(a,16)}")
        return
    X = [vr(b,4), vr(b+4,4)]; W = [vr(b+8,4), vr(b+12,4)]
    def C(a): return "0" if first else vr(a,16)
    if role == 'kv':
        k.e("s_waitcnt lgkmcnt(6)")
        for t in range(2):
            a = ACC + 16*t
            if br == 'B': k.e(f"{MF} {vr(a,16)}, {W[0]}, {X[t]}, {C(a)}")
            else:         k.e(f"{MF} {vr(a,16)}, {X[t]}, {W[0]}, {C(a)}")
            if t == 0: rd_x(k, nb, nb, 0); rd_x(k, nb, nb, 1)
            else: rd_w(k, nb, nb, 1, 0)
        for t in range(2):
            a = ACC + 32 + 16*t
            k.e(f"{MF} {vr(a,16)}, {X[t]}, {W[1]}, {C(a)}")
            if t == 0: rd_w(k, nb, nb, 2, 1)
    else:
        k.e("s_waitcnt lgkmcnt(4)")
        for t in range(2):
            a = ACC + 16*t
            k.e(f"{MF} {vr(a,16)}, {W[0]}, {X[t]}, {C(a)}")
            if t == 0: rd_x(k, nb, nb, 0); rd_x(k, nb, nb, 1)
            else: rd_w(k, nb, nb, 0, 0)

def consumer_tile(k, role, br, extra=None):
    lp = k.u("c"+role+br); ex = k.u("cx"+role+br)
    k.inp1 = True
    k.e("s_mov_b32 s48, 0")
    kstep(k, role, br, 0, first=True)
    k.lab(lp)
    k.e("s_add_u32 s49, s49, 1")
    k.e("s_and_b32 s50, s49, 3")
    k.e("s_cmp_eq_u32 s50, 0")
    k.e(f"s_cselect_b32 s50, 0x{(-3*SLOT) & 0xffffffff:x}, s69")
    kstep(k, role, br, 1)
    if extra: extra(k)
    if br == 'A' and role == 'kv':
        sk = k.u("novm")
        k.e(f"s_cmp_eq_u32 s48, {OPT['sigs']-8}")
        k.e(f"s_cbranch_scc0 {sk}")
        k.e("s_waitcnt vmcnt(0)")
        k.lab(sk)
    for j in range(4): k.e(f"v_add_u32 v{VXA+j}, s50, v{VXA+j}")
    k.e(f"v_add_u32 v{VWA}, s50, v{VWA}")
    k.e("s_barrier")
    k.e("s_cmp_lt_u32 s48, 7")
    k.e(f"s_cbranch_scc0 {ex}")
    kstep(k, role, br, 2)
    kstep(k, role, br, 3)
    k.e("s_add_u32 s48, s48, 1")
    kstep(k, role, br, 0)
    k.e(f"s_branch {lp}")
    k.lab(ex)
    n = 6 if role == 'kv' else 4
    kstep(k, role, br, 2, noreads=True, wait=n)
    kstep(k, role, br, 3, noreads=True, wait=0)
    k.inp1 = False

def consumer_setup(k):
    k.e("v_and_b32 v1, 31, v0")
    k.e("v_lshrrev_b32 v2, 5, v0")
    k.e("v_bfe_u32 v3, v0, 1, 3")
    k.e("v_xor_b32 v3, v3, v2")
    k.e("v_lshlrev_b32 v3, 4, v3")
    k.e("v_lshlrev_b32 v1, 7, v1")
    k.e(f"v_add_u32 v{VXA}, v1, v3")
    for j in range(1, 4): k.e(f"v_xor_b32 v{VXA+j}, {j<<5}, v{VXA}")
    k.e("v_bfe_u32 v1, v0, 2, 2")
    k.e("v_and_b32 v2, 3, v0")
    k.e("v_bfe_u32 v3, v0, 4, 1")
    k.e("v_lshrrev_b32 v4, 5, v0")
    k.e("v_lshlrev_b32 v4, 3, v4")
    k.e("v_add_u32 v4, v4, v1")
    k.e("v_lshlrev_b32 v4, 7, v4")
    k.e("v_lshlrev_b32 v3, 1, v3")
    k.e("v_lshrrev_b32 v5, 1, v2")
    k.e("v_add_u32 v3, v3, v5")
    k.e("s_lshl_b32 s48, s27, 2")
    k.e("v_add_u32 v3, s48, v3")
    k.e("v_and_b32 v5, 2, v1")
    k.e("v_lshlrev_b32 v5, 1, v5")
    k.e("v_xor_b32 v3, v3, v5")
    k.e("v_lshlrev_b32 v3, 4, v3")
    k.e("v_and_b32 v2, 1, v2")
    k.e("v_lshlrev_b32 v2, 3, v2")
    k.e("v_add3_u32 v4, v4, v3, v2")
    k.e(f"v_add_u32 v{VWA}, 8192, v4")

def read_nonce(k, va, vb):
    k.e(f"v_mov_b32 v{va}, {NONCE_L}")
    k.e(f"ds_read_b32 v{vb}, v{va}")
    k.e("s_waitcnt lgkmcnt(0)")
    k.e(f"v_readfirstlane_b32 s{S_NONCE}, v{vb}")

def pf_setup(k, pw, px):
    k.e("s_and_b32 s50, s2, 7")
    k.e("s_lshr_b32 s51, s2, 3")
    k.e("v_lshrrev_b32 v5, 2, v0")
    k.e("s_lshl_b32 s52, s51, 4")
    k.e("v_add_u32 v5, s52, v5")
    k.e("v_mul_u32_u24 v5, 3072, v5")
    k.e("v_and_b32 v6, 3, v0")
    k.e("s_lshr_b32 s52, s50, 2")
    k.e("s_lshl_b32 s52, s52, 2")
    k.e("v_add_u32 v6, s52, v6")
    k.e("v_lshlrev_b32 v6, 7, v6")
    k.e("v_add_u32 v5, v5, v6")
    k.e("v_lshlrev_b32 v6, 7, v0")
    k.e("s_and_b32 s52, s50, 3")
    k.e("s_lshl_b32 s52, s52, 9")
    k.e("s_lshl_b32 s53, s51, 4")
    k.e("s_add_u32 s52, s52, s53")
    k.e("s_lshl_b32 s66, s52, 10")
    k.e("s_lshl_b32 s67, s51, 14")
    k.e("s_lshr_b32 s68, s50, 2")

def gen(stamps=False):
    k = K(stamps)
    k.lab(KNAME)
    k.e("s_cmp_ge_u32 s2, 256")
    k.e("s_cbranch_scc1 L_end")
    if stamps: k.e("s_memrealtime s[70:71]")
    if OPT['fixdur']: k.e("s_memrealtime s[100:101]")
    k.e("s_load_dwordx16 s[4:19], s[0:1], 0")
    k.e("s_load_dwordx2 s[20:21], s[0:1], 64")
    k.e("v_lshrrev_b32 v1, 6, v0")
    k.e("v_and_b32 v0, 63, v0")
    k.e(f"v_readfirstlane_b32 s{S_WAVE}, v1")
    k.e("s_and_b32 s26, s2, 7")
    k.e("s_lshr_b32 s27, s2, 3")
    k.e("s_and_b32 s48, s26, 3")
    k.e("s_lshl_b32 s48, s48, 3")
    if OPT['map'] != 1:
        k.e("s_and_b32 s49, s27, 7")
    else:
        k.e("s_lshr_b32 s49, s27, 2")
    k.e(f"s_add_u32 s{S_RB}, s48, s49")
    k.e("s_lshr_b32 s48, s26, 2")
    k.e("s_lshl_b32 s48, s48, 2")
    if OPT['map'] == 0:
        k.e("s_lshr_b32 s49, s27, 3")
    elif OPT['map'] == 2:
        k.e("s_lshr_b32 s49, s27, 3")
        k.e("s_sub_u32 s49, 3, s49")
    elif OPT['map'] >= 3:
        perm = {3: (3, 1, 2, 0), 4: (3, 1, 0, 2), 5: (1, 3, 2, 0)}[OPT['map']]
        tab = sum(v << (4*i) for i, v in enumerate(perm))
        k.e("s_lshr_b32 s49, s27, 3")
        k.e("s_lshl_b32 s49, s49, 2")
        k.e(f"s_lshr_b32 s49, 0x{tab:x}, s49")
        k.e("s_and_b32 s49, s49, 3")
    else:
        k.e("s_and_b32 s49, s27, 3")
    k.e(f"s_add_u32 s{S_G}, s48, s49")
    if OPT['cpf'] >= 3:
        sk = k.u("nocpf")
        k.e(f"s_cmp_eq_u32 s{S_WAVE}, 3")
        k.e(f"s_cbranch_scc0 {sk}")
        k.e(f"s_bfe_u32 s62, s2, 0x{0x30003 if OPT['cpf'] == 3 else 0x20003:x}")
        k.e("s_cmp_eq_u32 s62, 1")
        k.e(f"s_cbranch_scc0 {sk}")
        k.e("s_getpc_b64 s[62:63]")
        k.lab("L_pc")
        k.e("s_and_b32 s62, s62, 0xffffff00")
        k.e("v_lshlrev_b32 v255, 7, v0")
        k.e(f"s_sub_u32 s62, s62, PF_BACK")
        k.e("s_subb_u32 s63, s63, 0")
        for j in range(3):
            k.e("global_load_dword v254, v255, s[62:63]")
            if j < 2: k.e("v_add_u32 v255, 8192, v255")
        k.lab(sk)
    k.e(f"s_cmp_lt_u32 s{S_WAVE}, 4")
    k.e("s_cbranch_scc1 L_consumer")

    loader(k)
    k.e("s_branch L_attn")

    k.lab("L_consumer")
    k.e("s_waitcnt lgkmcnt(0)")
    if OPT['fixdur']: k.e("s_mov_b32 s3, s100")
    if stamps: k.e("s_mov_b32 s72, s70")
    srd(k, SRD_WS, P_WS, 256 << 20)
    srd(k, SRD_T, P_DBG, 256)
    nn = k.u("nononce")
    k.e(f"s_or_b32 s58, s2, s{S_WAVE}")
    k.e("s_cmp_eq_u32 s58, 0")
    k.e(f"s_cbranch_scc0 {nn}")
    k.e("s_memrealtime s[58:59]")
    k.e("v_mov_b32 v2, 0")
    k.e("s_waitcnt lgkmcnt(0)")
    k.e("s_or_b32 s58, s58, 1")
    k.e("v_mov_b32 v3, s58")
    k.e(f"buffer_store_dword v3, v2, {sr(SRD_T,4)}, 0 offen sc1")
    k.lab(nn)
    srd(k, SRD_X, P_AW, 512*3072)
    k.e(f"s_and_b32 s27, s{S_WAVE}, 1")
    consumer_setup(k)
    attn_setup(k)
    k.e("s_mov_b32 s49, 0")
    k.e(f"s_mov_b32 s69, {SLOT}")
    k.e(f"s_cmp_ge_u32 s{S_WAVE}, 2")
    k.e("s_cbranch_scc1 L_qwave")

    if OPT['warmf']:
        k.e(f"s_lshl_b32 s52, s{S_G}, 13")
        k.e(f"s_lshl_b32 s53, s{S_RB}, 1")
        k.e(f"s_add_u32 s53, s53, s{S_WAVE}")
        k.e("s_lshl_b32 s53, s53, 7")
        k.e("s_add_u32 s52, s52, s53")
        k.e(f"s_add_u32 s52, s52, {F1A}")
        k.e("v_mov_b32 v254, 0")
        k.e("s_mov_b64 exec, 1")
        k.e(f"buffer_load_dword v255, v254, {WS}, s52 offen sc1")
        k.e(f"s_lshr_b32 s52, s{S_RB}, 1")
        k.e("s_lshl_b32 s52, s52, 11")
        k.e(f"s_and_b32 s53, s{S_RB}, 1")
        k.e("s_lshl_b32 s53, s53, 3")
        k.e(f"s_add_u32 s53, s53, s{S_G}")
        k.e("s_lshl_b32 s53, s53, 7")
        k.e("s_add_u32 s52, s52, s53")
        k.e(f"s_add_u32 s52, s52, {F2}")
        k.e(f"s_lshl_b32 s53, s{S_G}, 12")
        k.e(f"s_lshl_b32 s54, s{S_RB}, 7")
        k.e("s_add_u32 s53, s53, s54")
        k.e(f"s_add_u32 s53, s53, {F1B}")
        k.e(f"s_cmp_eq_u32 s{S_WAVE}, 0")
        k.e("s_cselect_b32 s52, s52, s53")
        k.e(f"buffer_load_dword v255, v254, {WS}, s52 offen sc1")
        k.e("s_mov_b64 exec, -1")
    k.e("s_barrier")
    k.stamp(1)
    reads(k, 'kv', 0, 0); reads(k, 'kv', 1, 1)
    consumer_tile(k, 'kv', 'B')
    k.stamp(2)
    k.c("B epilogue (kv)")
    read_nonce(k, 2, 3)
    k.e(f"s_lshl_b32 s62, s{S_G}, 2")
    k.e("s_lshl_b32 s63, s27, 1")
    k.e("s_add_u32 s62, s62, s63")
    k.e("s_lshl_b32 s62, s62, 6")
    k.e(f"s_lshl_b32 s63, s{S_RB}, 1")
    k.e("s_add_u32 s62, s62, s63")
    k.e("s_lshl_b32 s62, s62, 10")
    k.e("v_lshlrev_b32 v1, 4, v0")
    k.e("s_lshl_b32 s63, s27, 12")
    k.e(f"s_add_u32 s63, s63, {OK_L}")
    k.e("v_add_u32 v4, s63, v1")
    k.e("v_bfe_u32 v2, v0, 4, 1")
    k.e("v_lshrrev_b32 v3, 5, v0")
    k.e("v_lshlrev_b32 v3, 8, v3")
    k.e("v_and_b32 v5, 15, v0")
    k.e("v_lshlrev_b32 v5, 4, v5")
    k.e("v_add_u32 v3, v3, v5")
    k.e("v_lshlrev_b32 v5, 11, v2")
    k.e("v_add_u32 v5, v5, v3")
    k.e(f"s_add_u32 s63, s63, {OV_L - OK_L}")
    k.e("v_add_u32 v5, s63, v5")
    k.e("v_lshlrev_b32 v2, 16, v2")
    k.e("v_add_u32 v2, v2, v3")
    k.e(f"s_add_u32 s64, s62, {KB_G + 65536}")
    k.e(f"s_add_u32 s65, s62, {VB_G}")
    k.e("s_nop 3")
    for t in range(2):
        KF = EP + 16*t; VF = KF + 8
        cvt8(k, KF, ACC+16*t); cvt8(k, KF+4, ACC+16*t+8)
        cvt8(k, VF, ACC+32+16*t); cvt8(k, VF+4, ACC+32+16*t+8)
        k.e(f"buffer_store_dwordx4 {vr(KF,4)}, v1, {WS}, s62 offen offset:{t*1024} sc1")
        k.e(f"buffer_store_dwordx4 {vr(KF+4,4)}, v1, {WS}, s64 offen offset:{t*1024} sc1")
        k.e(f"buffer_store_dwordx4 {vr(VF,4)}, v2, {WS}, s65 offen offset:{t*1024} sc1")
        k.e(f"buffer_store_dwordx4 {vr(VF+4,4)}, v2, {WS}, s65 offen offset:{t*1024+512} sc1")
        k.e(f"ds_write_b128 v4, {vr(KF,4)} offset:{t*1024}")
        k.e(f"ds_write_b128 v4, {vr(KF+4,4)} offset:{t*1024+2048}")
        k.e(f"ds_write_b128 v5, {vr(VF,4)} offset:{t*1024}")
        k.e(f"ds_write_b128 v5, {vr(VF+4,4)} offset:{t*1024+512}")
    k.stamp(3)
    k.e("s_barrier")
    reads(k, 'kv', 0, 0); reads(k, 'kv', 1, 1)
    consumer_tile(k, 'kv', 'A')
    k.e("s_waitcnt lgkmcnt(0)")
    if OPT.get('x16st'): k.stamp(5)
    if OPT['x16pos'] == 0:
        k.e("s_barrier")
        k.stamp(4)
    k.c("A epilogue (kv)")
    if OPT['kvprio']: k.e("s_setprio 2")
    T = 72
    k.e(f"s_mov_b32 s61, {lit(LOG2E)}")
    k.e(f"s_mov_b32 s62, {lit(1e-6)}")
    k.e("s_mov_b32 s63, s62")
    k.e("s_mov_b32 s66, s61")
    k.e("s_mov_b32 s67, s61")
    PK, VV, ONES = 80, 96, 112
    for j in range(4): k.e(f"v_mov_b32 v{ONES+j}, 0x3f803f80")
    k.e("s_nop 4")
    for t in range(2):
        cvt8(k, VV+8*t, ACC+32+16*t); cvt8(k, VV+8*t+4, ACC+32+16*t+8)
    if OPT['x16pos'] == 1:
        k.e("s_barrier")
        k.stamp(4)
    DKV, DZ = ACC+32, ACC+48
    for t in range(2):
        phi(k, ACC+16*t, 16, T)
        cvt8(k, PK+8*t, ACC+16*t); cvt8(k, PK+8*t+4, ACC+16*t+8)
        k.e("s_nop 1")
        for m in range(2):
            first = (t == 0 and m == 0)
            k.e(f"{MF} {vr(DKV,16)}, {vr(PK+8*t+4*m,4)}, {vr(VV+8*t+4*m,4)}, {'0' if first else vr(DKV,16)}")
            k.e(f"{MF} {vr(DZ,16)}, {vr(ONES,4)}, {vr(PK+8*t+4*m,4)}, {'0' if first else vr(DZ,16)}")
        if OPT['x16pos'] == 2 and t == 0:
            k.e("s_barrier")
            k.stamp(4)
    k.e("s_mov_b32 s64, 0xffff0000")
    k.e("s_mov_b32 s65, 0xffff0000")
    k.e(f"s_lshl_b32 s63, s{S_G}, 1")
    k.e("s_add_u32 s63, s63, s27")
    k.e("s_lshl_b32 s63, s63, 12")
    k.e(f"s_add_u32 s63, s63, {KVACC}")
    k.e("v_lshlrev_b32 v3, 2, v0")
    k.e("v_bfe_i32 v4, v0, 4, 1")
    k.e("s_nop 4")
    RS = 120
    if OPT['bfi']:
        for t in range(8): k.e(f"v_bfi_b32 v{RS+t}, v4, v{DKV+8+t}, v{DKV+t}")
    else:
        for t in range(8): k.e(f"v_cndmask_b32 v{RS+t}, v{DKV+t}, v{DKV+8+t}, s[64:65]")
    for t in range(8): k.e(f"buffer_atomic_add_f32 v{RS+t}, v3, {WS}, s63 offen offset:{t*256}")
    k.e("s_mov_b32 exec_hi, 0")
    k.e(f"buffer_atomic_add_f32 v{DZ}, v3, {WS}, s63 offen offset:2048")
    k.e("s_mov_b64 exec, -1")
    if OPT['kvprio']: k.e("s_setprio 0")
    if OPT['x16pos'] == 3:
        k.e("s_barrier")
        k.stamp(4)
    k.e("s_branch L_e1")

    k.lab("L_qwave")
    k.e("v_mov_b32 v251, 0")
    if OPT['warmp']:
        w3 = k.u("wp3"); we = k.u("wpe")
        k.e(f"s_cmp_eq_u32 s{S_WAVE}, 2")
        k.e(f"s_cbranch_scc0 {w3}")
        k.e("v_min_u32 v254, 3, v0")
        k.e("v_lshlrev_b32 v254, 21, v254")
        k.e("s_lshl_b32 s52, s2, 8")
        k.e("s_mov_b64 exec, 15")
        k.e(f"buffer_load_dword v255, v254, {WS}, s52 offen sc1")
        k.e("s_mov_b64 exec, -1")
        k.e(f"s_branch {we}")
        k.lab(w3)
        if OPT['warmp'] >= 2:
            srd(k, SRD_W, P_OUT, 4 << 20)
            k.e("v_min_u32 v254, 1, v0")
            k.e("v_lshlrev_b32 v254, 21, v254")
            k.e("s_lshl_b32 s52, s2, 8")
            k.e("s_mov_b64 exec, 3")
            k.e(f"buffer_load_dword v255, v254, {sr(SRD_W,4)}, s52 offen")
            k.e("s_mov_b64 exec, -1")
        k.lab(we)
    k.e("s_barrier")
    k.stamp(1)
    reads(k, 'q', 0, 0); reads(k, 'q', 1, 1)
    def pf_extra(k):
        ex = k.u("pfx"); w3 = k.u("pfw3")
        n1 = k.u("nn1"); n2 = k.u("nn2")
        k.e(f"s_cmp_eq_u32 s{S_WAVE}, 2")
        k.e(f"s_cbranch_scc0 {n2}")
        k.e("s_cmp_eq_u32 s48, 1")
        k.e(f"s_cbranch_scc0 {n1}")
        k.e(f"buffer_load_dword v7, v251, {sr(SRD_T,4)}, 0 offen sc1")
        k.lab(n1)
        k.e("s_cmp_eq_u32 s48, 6")
        k.e(f"s_cbranch_scc0 {n2}")
        lp = k.u("np"); npx = k.u("npx"); chk = k.u("npc")
        k.e("s_mov_b32 s60, 0")
        k.e(f"s_branch {chk}")
        k.lab(lp)
        k.e(f"buffer_load_dword v7, v251, {sr(SRD_T,4)}, 0 offen sc1")
        k.lab(chk)
        spin_guard(k, 60, npx)
        k.e("s_waitcnt vmcnt(0)")
        k.e("v_readfirstlane_b32 s58, v7")
        k.e("s_nop 0")
        k.e("s_cmp_eq_u32 s58, 0")
        k.e(f"s_cbranch_scc1 {lp}")
        k.lab(npx)
        k.e("s_waitcnt vmcnt(0)")
        k.e(f"v_mov_b32 v250, {NONCE_L}")
        k.e("ds_write_b32 v250, v7")
        k.lab(n2)
    consumer_tile(k, 'q', 'B', pf_extra)
    k.stamp(2)
    k.c("B epilogue (q)")
    read_nonce(k, 2, 3)
    k.e(f"s_mov_b32 s61, {lit(CS)}")
    k.e("v_lshlrev_b32 v1, 4, v0")
    k.e("s_lshl_b32 s63, s27, 12")
    k.e(f"s_add_u32 s63, s63, {Q_L}")
    k.e("v_add_u32 v4, s63, v1")
    k.e("s_nop 6")
    for t in range(2):
        for i in range(16): k.e(f"v_mul_f32 v{ACC+16*t+i}, s61, v{ACC+16*t+i}")
        QF = EP + 8*t
        cvt8(k, QF, ACC+16*t); cvt8(k, QF+4, ACC+16*t+8)
        k.e(f"ds_write_b128 v4, {vr(QF,4)} offset:{t*1024}")
        k.e(f"ds_write_b128 v4, {vr(QF+4,4)} offset:{t*1024+2048}")
    k.stamp(3)
    k.e("s_barrier")
    reads(k, 'q', 0, 0); reads(k, 'q', 1, 1)
    consumer_tile(k, 'q', 'A')
    k.e("s_waitcnt lgkmcnt(0)")
    if OPT['x16pos'] < 2:
        k.e("s_barrier")
        k.stamp(4)
    k.c("A epilogue (q)")
    k.e(f"s_mov_b32 s61, {lit(LOG2E)}")
    k.e(f"s_mov_b32 s62, {lit(1e-6)}")
    k.e("s_mov_b32 s63, s62")
    k.e("s_mov_b32 s66, s61")
    k.e("s_mov_b32 s67, s61")
    k.e("v_lshlrev_b32 v1, 4, v0")
    k.e("s_lshl_b32 s65, s27, 12")
    k.e(f"s_add_u32 s65, s65, {PQ_L}")
    k.e("v_add_u32 v4, s65, v1")
    k.e("s_nop 6")
    for t in range(2):
        phi(k, ACC+16*t, 16, 72)
        QF = EP + 8*t
        cvt8(k, QF, ACC+16*t); cvt8(k, QF+4, ACC+16*t+8)
        k.e(f"ds_write_b128 v4, {vr(QF,4)} offset:{t*1024}")
        k.e(f"ds_write_b128 v4, {vr(QF+4,4)} offset:{t*1024+2048}")
        if OPT['x16pos'] == 2 and t == 0:
            k.e("s_barrier")
            k.stamp(4)
    k.e("s_waitcnt lgkmcnt(0)")
    if OPT['x16pos'] == 3:
        k.e("s_barrier")
        k.stamp(4)
    k.lab("L_e1")

    k.lab("L_attn")
    if OPT['prio']:
        sk = k.u("prio")
        k.e(f"s_cmp_ge_u32 s{S_WAVE}, 4")
        k.e(f"s_cbranch_scc{0 if OPT['prio'] == 1 else 1} {sk}")
        k.e("s_setprio 1")
        k.lab(sk)
    k.stamp(7)
    attention(k)
    k.stamp(9)
    apart(k)
    k.stamp(10)
    k.e("s_waitcnt vmcnt(0) lgkmcnt(0)")
    k.e("s_barrier")
    k.stamp(11)
    sk = k.u("nof2")
    k.e(f"s_cmp_eq_u32 s{S_WAVE}, 4")
    k.e(f"s_cbranch_scc0 {sk}")
    k.e(f"s_lshr_b32 s48, s{S_RB}, 1")
    k.e("s_lshl_b32 s48, s48, 11")
    k.e(f"s_and_b32 s49, s{S_RB}, 1")
    k.e("s_lshl_b32 s49, s49, 3")
    k.e(f"s_add_u32 s49, s49, s{S_G}")
    k.e("s_lshl_b32 s49, s49, 7")
    k.e("s_add_u32 s48, s48, s49")
    k.e(f"s_add_u32 s48, s48, {F2}")
    store_flag(k, 48)
    k.lab(sk)
    p3(k)
    k.lab("L_fin")
    if OPT['fixdur']:
        lp = k.u("fix")
        k.lab(lp)
        k.e("s_memrealtime s[90:91]")
        k.e("s_waitcnt lgkmcnt(0)")
        k.e("s_sub_u32 s90, s90, s3")
        k.e(f"s_cmp_lt_u32 s90, {OPT['fixdur']}")
        k.e(f"s_cbranch_scc1 {lp}")
    if stamps:
        k.stamp(13)
        k.e(f"s_lshl_b32 s48, s2, 3")
        k.e(f"s_add_u32 s48, s48, s{S_WAVE}")
        k.e("s_lshl_b32 s48, s48, 6")
        k.e(f"s_add_u32 s48, s48, {STAMP}")
        k.e("v_mov_b32 v9, 0")
        for j in range(16):
            k.e(f"v_mov_b32 v8, s{72+j}")
            k.e(f"buffer_store_dword v8, v9, {WS}, s48 offen offset:{4*j}")
            k.e("s_nop 0")
    if stamps and OPT['dbgstamps']:
        srd(k, SRD_T, P_DBG, 256)
        for wg, base in ((8, 1), (200, 8)):
            sk = k.u("nodbg")
            k.e(f"s_cmp_eq_u32 s2, {wg}")
            k.e(f"s_cbranch_scc0 {sk}")
            k.e(f"s_cmp_eq_u32 s{S_WAVE}, 0")
            k.e(f"s_cbranch_scc0 {sk}")
            k.e("v_mov_b32 v9, 0")
            for n, j in enumerate((1, 2, 4, 9, 10, 11, 13)):
                k.e(f"s_sub_u32 s48, s{72+j}, s72")
                k.e("v_mov_b32 v8, s48")
                k.e(f"buffer_store_dword v8, v9, {sr(SRD_T,4)}, 0 offen offset:{4*(base+n)}")
                k.e("s_nop 0")
            k.lab(sk)
    if OPT['stagest']:
        sk = k.u("nost")
        k.e(f"s_cmp_eq_u32 s{S_WAVE}, 4")
        k.e(f"s_cbranch_scc0 {sk}")
        k.e("s_lshl_b32 s48, s2, 8")
        k.e(f"s_add_u32 s48, s48, {STAMP + (1<<19)}")
        k.e("v_lshlrev_b32 v9, 2, v0")
        k.e(f"buffer_store_dword v252, v9, {WS}, s48 offen")
        k.lab(sk)
    k.lab("L_end")
    k.e("s_endpgm")
    return k

def issue_stage(k):
    k.e("s_lshl_b32 s52, s59, 7")
    k.e("s_mul_i32 s53, s59, 196608")
    k.e("s_mov_b32 m0, s51")
    k.e("s_add_u32 s54, s53, 23552")
    k.e(f"buffer_load_dwordx4 v1, {sr(SRD_X,4)}, s52 offen lds")
    k.e(f"buffer_load_dwordx4 v2, {sr(SRD_X,4)}, s52 offen offset:1024 lds")
    for p in range(3):
        k.e(f"s_add_u32 s55, s51, {8192 + p*8192}")
        k.e("s_mov_b32 m0, s55")
        if p: k.e(f"s_add_u32 s56, s53, {p*1024}"); so0 = "s56"
        else: so0 = "s53"; k.e("s_nop 0")
        k.e(f"buffer_load_dwordx4 v3, {sr(SRD_W,4)}, {so0} offen lds")
        if p: k.e(f"s_add_u32 s56, s54, {p*1024}"); so1 = "s56"
        else: so1 = "s54"
        k.e(f"buffer_load_dwordx4 v3, {sr(SRD_W,4)}, {so1} offen offset:1024 lds")
    k.e("s_add_u32 s57, s57, 1")
    k.e("s_add_u32 s59, s59, 1")
    k.e("s_and_b32 s59, s59, 7")
    k.e(f"s_add_u32 s51, s51, {SLOT}")
    k.e("s_and_b32 s58, s57, 3")
    sk = k.u("nowrap")
    k.e("s_cmp_eq_u32 s58, 0")
    k.e(f"s_cbranch_scc0 {sk}")
    k.e(f"s_sub_u32 s51, s51, {4*SLOT}")
    k.lab(sk)
    sk2 = k.u("nosw")
    k.e("s_cmp_eq_u32 s57, 8")
    k.e(f"s_cbranch_scc0 {sk2}")
    srd(k, SRD_X, P_AX, 2 << 20)
    srd(k, SRD_W, P_AW, 512*3072)
    k.e("s_mov_b32 s59, s61")
    k.lab(sk2)

def pf0(k):
    k.e("s_and_b32 s50, s2, 7")
    k.e("s_lshr_b32 s52, s2, 3")
    wx = k.u("pf0x"); ex = k.u("pf0e")
    k.e("s_cmp_lt_u32 s26, 3")
    k.e(f"s_cbranch_scc0 {wx}")
    srd(k, SRD_T, P_AW, 512*3072)
    k.e("v_lshrrev_b32 v5, 2, v0")
    k.e("s_lshl_b32 s53, s52, 4")
    k.e("v_add_u32 v5, s53, v5")
    k.e("v_mul_u32_u24 v5, 3072, v5")
    k.e("v_and_b32 v6, 3, v0")
    k.e("s_lshr_b32 s53, s50, 2")
    k.e("s_lshl_b32 s53, s53, 2")
    k.e("v_add_u32 v6, s53, v6")
    k.e("v_lshlrev_b32 v6, 7, v6")
    k.e("v_add_u32 v5, v5, v6")
    k.e("s_lshl_b32 s53, s26, 10")
    k.e(f"buffer_load_dword v6, v5, {sr(SRD_T,4)}, s53 offen")
    k.e(f"buffer_load_dword v7, v5, {sr(SRD_T,4)}, s53 offen")
    k.e(f"s_branch {ex}")
    k.lab(wx)
    srd(k, SRD_T, P_AX, 2 << 20)
    k.e("s_and_b32 s53, s50, 3")
    k.e("s_lshl_b32 s53, s53, 9")
    k.e("s_lshl_b32 s54, s52, 4")
    k.e("s_add_u32 s53, s53, s54")
    k.e("s_lshl_b32 s53, s53, 10")
    k.e("v_lshlrev_b32 v5, 7, v0")
    k.e(f"buffer_load_dword v6, v5, {sr(SRD_T,4)}, s53 offen")
    k.e("s_add_u32 s53, s53, 8192")
    k.e(f"buffer_load_dword v7, v5, {sr(SRD_T,4)}, s53 offen")
    k.lab(ex)

def pfsetup(k):
    k.e("s_and_b32 s50, s2, 7")
    k.e("s_lshr_b32 s52, s2, 3")
    k.e("s_mov_b32 s66, 1")
    wx = k.u("pfwx"); wo = k.u("pfwo"); ex = k.u("pfex")
    k.e("s_cmp_lt_u32 s26, 2")
    k.e(f"s_cbranch_scc0 {wx}")
    srd(k, SRD_T, P_BW, 512*3072)
    k.e("v_min_u32 v4, 11, v0")
    k.e("v_lshrrev_b32 v5, 2, v4")
    k.e("v_lshlrev_b32 v5, 10, v5")
    k.e("v_and_b32 v4, 3, v4")
    k.e("s_lshr_b32 s53, s50, 2")
    k.e("s_lshl_b32 s53, s53, 2")
    k.e("v_add_u32 v4, s53, v4")
    k.e("v_lshlrev_b32 v4, 7, v4")
    k.e("s_lshl_b32 s53, s52, 1")
    k.e("s_add_u32 s53, s53, s26")
    k.e("s_mul_i32 s53, s53, 3072")
    k.e("v_add3_u32 v4, v4, v5, s53")
    k.e("s_mov_b32 s65, 196608")
    k.e("s_mov_b32 s64, 196608")
    k.e(f"s_branch {ex}")
    k.lab(wx)
    k.e("s_cmp_eq_u32 s26, 2")
    k.e(f"s_cbranch_scc0 {wo}")
    srd(k, SRD_T, P_BX, 2 << 20)
    k.e("v_min_u32 v4, 15, v0")
    k.e("s_and_b32 s53, s50, 3")
    k.e("s_lshl_b32 s53, s53, 9")
    k.e("s_lshl_b32 s54, s52, 4")
    k.e("s_add_u32 s53, s53, s54")
    k.e("v_add_u32 v4, s53, v4")
    k.e("v_lshlrev_b32 v4, 10, v4")
    k.e("s_mov_b32 s65, 128")
    k.e("s_mov_b32 s64, 128")
    k.e(f"s_branch {ex}")
    k.lab(wo)
    k.e("s_lshr_b32 s53, s50, 2")
    k.e("s_cmp_eq_u32 s53, 0")
    k.e(f"s_cselect_b32 s{SRD_T}, s{P_AWO}, s{P_BWO}")
    k.e(f"s_cselect_b32 s{SRD_T+1}, s{P_AWO+1}, s{P_BWO+1}")
    k.e(f"s_mov_b32 s{SRD_T+2}, 0x{512*1024:x}")
    k.e(f"s_mov_b32 s{SRD_T+3}, 0x20000")
    k.e("v_min_u32 v4, 8, v0")
    k.e("v_lshlrev_b32 v4, 7, v4")
    k.e("s_lshl_b32 s53, s52, 14")
    k.e("v_add_u32 v4, s53, v4")
    k.e("s_mov_b32 s65, 1152")
    k.e("s_mov_b32 s64, 0")
    k.lab(ex)

def pf_issue(k):
    sk = k.u("pfsw")
    k.e("s_cmp_eq_u32 s66, 8")
    k.e(f"s_cbranch_scc0 {sk}")
    k.e("s_cmp_lt_u32 s26, 3")
    k.e(f"s_cbranch_scc0 {sk}")
    k.e("s_mov_b32 s64, 0")
    k.e("s_cmp_lt_u32 s26, 2")
    k.e(f"s_cselect_b32 s{SRD_T}, s{P_AW}, s{P_AX}")
    k.e(f"s_cselect_b32 s{SRD_T+1}, s{P_AW+1}, s{P_AX+1}")
    k.lab(sk)
    k.e(f"buffer_load_dword v5, v4, {sr(SRD_T,4)}, s64 offen")
    k.e("s_add_u32 s64, s64, s65")
    k.e("s_add_u32 s66, s66, 1")

def rot_value(k, mode, d):
    if mode >= 10:
        o = k.u("rot3"); e = k.u("rote")
        k.e(f"s_cmp_eq_u32 s{S_G}, 3")
        k.e(f"s_cbranch_scc1 {o}")
        rot_value(k, 4, d)
        k.e(f"s_branch {e}")
        k.lab(o)
        rot_value(k, mode - 10, d)
        k.lab(e)
        return
    if mode == 8:
        k.e(f"s_and_b32 s{d}, s{S_G}, 3"); k.e(f"s_lshl_b32 s{d}, s{d}, 1"); k.e(f"s_add_u32 s{d}, s{d}, s{S_RB}"); k.e(f"s_and_b32 s{d}, s{d}, 7")
    elif mode == 4:
        k.e(f"s_add_u32 s{d}, s{S_G}, s{S_RB}"); k.e(f"s_and_b32 s{d}, s{d}, 3"); k.e(f"s_lshl_b32 s{d}, s{d}, 1")
    elif mode == 2:
        k.e(f"s_add_u32 s{d}, s{S_G}, s{S_RB}"); k.e(f"s_and_b32 s{d}, s{d}, 1"); k.e(f"s_lshl_b32 s{d}, s{d}, 2")
    elif mode == 5:
        k.e(f"s_add_u32 s{d}, s{S_G}, s{S_RB}"); k.e(f"s_and_b32 s{d}, s{d}, 3"); k.e(f"s_lshl_b32 s{d}, s{d}, 1")
        k.e(f"s_bfe_u32 s62, s{S_RB}, 0x10002"); k.e(f"s_add_u32 s{d}, s{d}, s62")
    elif mode == 6:
        k.e(f"s_and_b32 s{d}, s{S_RB}, 3"); k.e(f"s_lshl_b32 s{d}, s{d}, 1")
    elif mode == 7:
        k.e(f"s_lshr_b32 s{d}, s{S_RB}, 1"); k.e(f"s_add_u32 s{d}, s{d}, s{S_G}"); k.e(f"s_and_b32 s{d}, s{d}, 3"); k.e(f"s_lshl_b32 s{d}, s{d}, 1")
    else:
        k.e(f"s_mov_b32 s{d}, 0")

def loader(k):
    if OPT['ldprio']: k.e(f"s_setprio {OPT['ldprio']}")
    k.e(f"s_sub_u32 s26, s{S_WAVE}, 4")
    k.e("v_lshrrev_b32 v4, 3, v0")
    k.e("v_and_b32 v5, 7, v0")
    k.e("v_lshrrev_b32 v6, 1, v4")
    k.e("v_xor_b32 v7, v5, v6")
    k.e("v_lshlrev_b32 v7, 4, v7")
    k.e(f"s_lshl_b32 s48, s{S_RB}, 6")
    k.e("s_lshl_b32 s49, s26, 4")
    k.e("s_add_u32 s48, s48, s49")
    k.e("v_add_u32 v1, s48, v4")
    k.e("v_lshlrev_b32 v1, 10, v1")
    k.e("v_add_u32 v2, 7168, v1")
    k.e("v_add_u32 v1, v1, v7")
    k.e("v_xor_b32 v7, 64, v7")
    k.e("v_add_u32 v2, v2, v7")
    k.e("v_add_u32 v3, s49, v4")
    k.e("v_mul_u32_u24 v3, 3072, v3")
    k.e("v_and_b32 v6, 2, v4")
    k.e("v_lshlrev_b32 v6, 1, v6")
    k.e("v_xor_b32 v6, v5, v6")
    k.e("v_lshlrev_b32 v6, 4, v6")
    k.e(f"s_lshl_b32 s49, s{S_G}, 7")
    k.e("v_add3_u32 v3, v3, v6, s49")
    k.e("s_lshl_b32 s51, s26, 11")
    k.e("s_mov_b32 s57, 0")
    rot_value(k, OPT['rot'], 59)
    k.e("s_waitcnt lgkmcnt(0)")
    if OPT['fixdur']: k.e("s_mov_b32 s3, s100")
    if k.stamps: k.e("s_mov_b32 s72, s70")
    srd(k, SRD_X, P_BX, 2 << 20)
    srd(k, SRD_W, P_BW, 512*3072)
    issue_stage(k)
    rot_value(k, OPT['rotA'] if OPT['rotA'] >= 0 else OPT['rot'], 61)
    if OPT['tpf']:
        pfsetup(k)
        for j in range(4): pf_issue(k)
    else:
        if OPT['pf0']: pf0(k)
        issue_stage(k)
    srd(k, SRD_WS, P_WS, 256 << 20)
    sk = k.u("nopf")
    k.e("s_mov_b32 s60, 0")
    k.e("s_cmp_eq_u32 s26, 3")
    k.e(f"s_cbranch_scc0 {sk}")
    if OPT['cpf'] == 1:
        k.e("s_bfe_u32 s62, s2, 0x30003")
        k.e("s_cmp_eq_u32 s62, 0")
        k.e(f"s_cbranch_scc0 {sk}")
    if OPT['cpf'] >= 2:
        k.e(f"s_branch {sk}")
    k.e("s_getpc_b64 s[62:63]")
    if OPT['cpf'] < 3: k.lab("L_pc")
    k.e("s_and_b32 s62, s62, 0xffffff00")
    k.e("v_lshlrev_b32 v8, 7, v0")
    k.e(f"s_sub_u32 s62, s62, PF_BACK")
    k.e("s_subb_u32 s63, s63, 0")
    k.e("global_load_dword v9, v8, s[62:63]")
    k.e("v_add_u32 v8, 8192, v8")
    k.e("global_load_dword v10, v8, s[62:63]")
    k.e("v_add_u32 v8, 8192, v8")
    k.e("global_load_dword v11, v8, s[62:63]")
    k.e("s_mov_b32 s60, 1")
    k.lab(sk)
    if OPT['pfm'] == 1 and OPT['pfwo']:
        sk = k.u("nopfw")
        k.e("s_cmp_eq_u32 s26, 1")
        k.e(f"s_cbranch_scc0 {sk}")
        k.e("s_cmp_lt_u32 s2, 128")
        k.e(f"s_cselect_b32 s{SRD_T}, s{P_AWO}, s{P_BWO}")
        k.e(f"s_cselect_b32 s{SRD_T+1}, s{P_AWO+1}, s{P_BWO+1}")
        k.e(f"s_mov_b32 s{SRD_T+2}, 0x{512*1024:x}")
        k.e(f"s_mov_b32 s{SRD_T+3}, 0x20000")
        k.e("s_and_b32 s62, s2, 127")
        k.e("s_lshl_b32 s62, s62, 12")
        k.e("v_min_u32 v8, 31, v0")
        k.e("v_lshlrev_b32 v8, 7, v8")
        k.e(f"buffer_load_dword v9, v8, {sr(SRD_T,4)}, s62 offen")
        k.e("s_mov_b32 s60, 2")
        k.lab(sk)
    if OPT['pfm'] == 1:
        sk = k.u("nopfm"); w7 = k.u("pfm7")
        k.e("s_cmp_ge_u32 s26, 2")
        k.e(f"s_cbranch_scc0 {sk}")
        k.e("s_cmp_eq_u32 s26, 3")
        k.e(f"s_cbranch_scc1 {w7}")
        srd(k, SRD_T, P_AX, 2 << 20)
        k.e("s_lshl_b32 s62, s2, 13")
        k.e("v_lshlrev_b32 v8, 7, v0")
        k.e(f"buffer_load_dword v9, v8, {sr(SRD_T,4)}, s62 offen")
        k.e("s_mov_b32 s60, 2")
        k.e(f"s_branch {sk}")
        k.lab(w7)
        srd(k, SRD_T, P_AW, 512*3072)
        k.e("s_mul_i32 s62, s2, 6144")
        k.e("v_min_u32 v8, 47, v0")
        k.e("v_lshlrev_b32 v8, 7, v8")
        k.e(f"buffer_load_dword v9, v8, {sr(SRD_T,4)}, s62 offen")
        k.e("s_mov_b32 s60, 2")
        k.lab(sk)
    attn_setup(k)
    ny = 4 if OPT['tpf'] else (10 if OPT['pf0'] else 8)
    sk = k.u("w7"); sk2 = k.u("w7b")
    k.e("s_cmp_eq_u32 s60, 1")
    k.e(f"s_cbranch_scc1 {sk}")
    if OPT['pfm'] == 1:
        sk3 = k.u("w7c")
        k.e("s_cmp_eq_u32 s60, 2")
        k.e(f"s_cbranch_scc0 {sk3}")
        k.e(f"s_waitcnt vmcnt({ny+1})")
        k.e(f"s_branch {sk2}")
        k.lab(sk3)
    k.e(f"s_waitcnt vmcnt({ny})")
    k.e(f"s_branch {sk2}")
    k.lab(sk)
    k.e(f"s_waitcnt vmcnt({ny+3})")
    k.lab(sk2)
    k.e("s_barrier")
    if OPT['tpf']: issue_stage(k)
    issue_stage(k)
    sk = k.u("nozero")
    k.e(f"s_cmp_eq_u32 s{S_RB}, 0")
    k.e(f"s_cbranch_scc0 {sk}")
    k.e("s_cmp_lt_u32 s26, 2")
    k.e(f"s_cbranch_scc0 {sk}")
    k.e(f"s_lshl_b32 s48, s{S_G}, 1")
    k.e("s_add_u32 s48, s48, s26")
    k.e("s_lshl_b32 s48, s48, 12")
    k.e(f"s_add_u32 s48, s48, {KVACC}")
    for j in range(4): k.e(f"v_mov_b32 v{12+j}, 0")
    k.e("v_lshlrev_b32 v8, 4, v0")
    for j in range(3): k.e(f"buffer_store_dwordx4 v[12:15], v8, {WS}, s48 offen offset:{j*1024} sc1")
    k.e("s_waitcnt vmcnt(3)")
    k.lab(sk)
    k.stamp(1)
    k.e("s_mov_b32 s98, 0")
    k.e("s_mov_b32 s48, 0")
    lp = k.u("ldloop")
    k.lab(lp)
    w8 = k.u("w8"); w9 = k.u("w9"); wd = k.u("wd")
    k.e("s_cmp_eq_u32 s48, 7")
    k.e(f"s_cbranch_scc1 {wd}")
    if OPT['pfm'] >= 10:
        nwm = k.u("nwm")
        k.e(f"s_sub_u32 s49, s48, {OPT['pfm']-10+1}")
        k.e("s_cmp_lt_u32 s49, 2")
        k.e(f"s_cbranch_scc0 {nwm}")
        k.e("s_cmp_ge_u32 s26, 2")
        k.e(f"s_cbranch_scc0 {nwm}")
        k.e("s_waitcnt vmcnt(9)")
        k.e(f"s_branch {wd}")
        k.lab(nwm)
    if OPT['pf3']:
        nw3 = k.u("nw3")
        k.e(f"s_sub_u32 s49, s48, {OPT['pf3']+1}")
        k.e("s_cmp_lt_u32 s49, 2")
        k.e(f"s_cbranch_scc0 {nw3}")
        k.e("s_cmp_eq_u32 s98, 1")
        k.e(f"s_cbranch_scc0 {nw3}")
        k.e("s_waitcnt vmcnt(9)")
        k.e(f"s_branch {wd}")
        k.lab(nw3)
    if OPT['pf4']:
        w10 = k.u("w10"); nw = k.u("nw10")
        k.e(f"s_sub_u32 s49, s48, {OPT['pf4']+1}")
        k.e("s_cmp_lt_u32 s49, 2")
        k.e(f"s_cbranch_scc0 {nw}")
        k.e("s_waitcnt vmcnt(10)")
        k.e(f"s_branch {wd}")
        k.lab(nw)
    if not OPT['tpf']: k.e(f"s_branch {w8}")
    k.e("s_cmp_eq_u32 s48, 0")
    k.e(f"s_cbranch_scc1 {w8}")
    k.e("s_cmp_eq_u32 s48, 1")
    k.e(f"s_cbranch_scc1 {w9}")
    k.e("s_cmp_eq_u32 s48, 12")
    k.e(f"s_cbranch_scc1 {w9}")
    k.e("s_waitcnt vmcnt(10)")
    k.e(f"s_branch {wd}")
    k.lab(w9)
    k.e("s_waitcnt vmcnt(9)")
    k.e(f"s_branch {wd}")
    k.lab(w8)
    k.e("s_waitcnt vmcnt(8)")
    k.lab(wd)
    k.e("s_barrier")
    if OPT['stagest']:
        k.e("s_memrealtime s[90:91]"); k.e("s_waitcnt lgkmcnt(0)")
        k.e("s_mov_b32 m0, s48")
        k.e("s_nop 0")
        k.e("v_writelane_b32 v252, s90, m0")
    sk = k.u("nonn")
    k.e("s_cmp_eq_u32 s48, 7")
    k.e(f"s_cbranch_scc0 {sk}")
    read_nonce(k, 8, 9)
    k.lab(sk)
    sk = k.u("nosig2")
    k.e(f"s_cmp_eq_u32 s48, {OPT['sigs']}")
    k.e(f"s_cbranch_scc0 {sk}")
    k.e("s_cmp_eq_u32 s26, 0")
    k.e(f"s_cbranch_scc0 {sk}")
    k.e(f"s_lshl_b32 s49, s{S_G}, 12")
    k.e(f"s_lshl_b32 s50, s{S_RB}, 7")
    k.e("s_add_u32 s49, s49, s50")
    k.e(f"s_add_u32 s49, s49, {F1B}")
    store_flag(k, 49)
    k.lab(sk)
    if OPT['late9']:
        sk6 = k.u("skip6"); go6 = k.u("go6")
        k.e("s_cmp_eq_u32 s48, 6")
        if OPT['late9'] == 2:
            k.e(f"s_cbranch_scc0 {go6}")
            k.e(f"s_cmp_eq_u32 s{S_G}, 3")
        k.e(f"s_cbranch_scc1 {sk6}")
        k.lab(go6)
    issue_stage(k)
    if OPT['late9']: k.lab(sk6)
    if OPT['pfm'] >= 10:
        sk = k.u("nopfm"); w7 = k.u("pfm7")
        k.e(f"s_cmp_eq_u32 s48, {OPT['pfm']-10}")
        k.e(f"s_cbranch_scc0 {sk}")
        k.e("s_cmp_ge_u32 s26, 2")
        k.e(f"s_cbranch_scc0 {sk}")
        k.e("s_cmp_eq_u32 s26, 3")
        k.e(f"s_cbranch_scc1 {w7}")
        srd(k, SRD_T, P_AX, 2 << 20)
        k.e("s_lshl_b32 s62, s2, 13")
        k.e("v_lshlrev_b32 v8, 7, v0")
        k.e(f"buffer_load_dword v9, v8, {sr(SRD_T,4)}, s62 offen")
        k.e(f"s_branch {sk}")
        k.lab(w7)
        srd(k, SRD_T, P_AW, 512*3072)
        k.e("s_mul_i32 s62, s2, 6144")
        k.e("v_min_u32 v8, 47, v0")
        k.e("v_lshlrev_b32 v8, 7, v8")
        k.e(f"buffer_load_dword v9, v8, {sr(SRD_T,4)}, s62 offen")
        k.lab(sk)
    if OPT['pf3']:
        skp = k.u("nopf3")
        k.e(f"s_cmp_eq_u32 s48, {OPT['pf3']}")
        k.e(f"s_cbranch_scc0 {skp}")
        k.e("s_cmp_eq_u32 s26, 3")
        k.e(f"s_cbranch_scc0 {skp}")
        k.e(f"s_cmp_lt_u32 s{S_G}, 3")
        k.e(f"s_cbranch_scc0 {skp}")
        srd(k, SRD_T, P_AW, 512*3072)
        k.e(f"s_and_b32 s49, s{S_RB}, 7")
        k.e("s_mul_i32 s49, s49, 3")
        k.e(f"s_add_u32 s49, s49, s{S_G}")
        k.e("s_lshl_b32 s49, s49, 6")
        k.e("v_add_u32 v5, s49, v0")
        k.e("v_mul_u32_u24 v6, 21846, v5")
        k.e("v_lshrrev_b32 v6, 16, v6")
        k.e("v_mul_u32_u24 v7, 3, v6")
        k.e("v_sub_u32 v7, v5, v7")
        k.e("v_mul_u32_u24 v6, 3072, v6")
        k.e("v_lshlrev_b32 v7, 10, v7")
        k.e("v_add3_u32 v5, v6, v7, 384") if False else None
        k.e("v_add_u32 v5, v6, v7")
        k.e("v_add_u32 v5, 384, v5")
        k.e(f"buffer_load_dword v6, v5, {sr(SRD_T,4)}, 0 offen")
        k.e("s_mov_b32 s98, 1")
        k.lab(skp)
    if OPT['pf4']:
        skp = k.u("nopf4")
        k.e(f"s_cmp_eq_u32 s48, {OPT['pf4']}")
        k.e(f"s_cbranch_scc0 {skp}")
        pf0(k)
        k.lab(skp)
    sk = k.u("nosig")
    k.e("s_cmp_eq_u32 s48, 7")
    k.e(f"s_cbranch_scc0 {sk}")
    if OPT['late9'] == 1: issue_stage(k)
    if OPT['late9'] == 2:
        l9 = k.u("l9")
        k.e(f"s_cmp_eq_u32 s{S_G}, 3")
        k.e(f"s_cbranch_scc0 {l9}")
        issue_stage(k)
        k.lab(l9)
    k.e("s_waitcnt vmcnt(16)")
    k.e("s_barrier")
    k.lab(sk)

    if OPT['tpf']:
        sk = k.u("nopfi")
        k.e("s_cmp_le_u32 s48, 10")
        k.e(f"s_cbranch_scc0 {sk}")
        pf_issue(k)
        k.lab(sk)
    k.e("s_add_u32 s48, s48, 1")
    k.e("s_cmp_lt_u32 s48, 12")
    k.e(f"s_cbranch_scc1 {lp}")
    k.e(f"s_sub_u32 s48, s{S_RB}, 4")
    k.e("v_add_u32 v8, s48, v0")
    k.e("v_max_i32 v8, 0, v8")
    k.e("v_cmp_gt_u32 vcc, 4, v0")
    k.e(f"s_lshl_b32 s49, s{S_G}, 12")
    k.e(f"s_add_u32 s49, s49, {F1B}")
    k.e("v_cndmask_b32 v8, 0, v8, vcc")
    k.e("v_lshlrev_b32 v8, 7, v8")
    k.e("v_add_u32 v8, s49, v8")
    k.e("s_cmp_eq_u32 s26, 0")
    k.e("s_cselect_b32 s62, 31, 15")
    k.e("s_mov_b32 s63, 0")
    k.e("s_waitcnt vmcnt(8)");  k.e("s_barrier")
    k.e("s_mov_b64 exec, s[62:63]")
    k.e(f"buffer_load_dword v9, v8, {WS}, 0 offen sc1")
    k.e("s_mov_b64 exec, -1")
    issue_stage(k)
    k.e("s_waitcnt vmcnt(9)");  k.e("s_barrier")
    lp = k.u("f1b_lp"); ok = k.u("f1b_ok")
    k.e("s_mov_b64 exec, s[62:63]")
    k.e("s_waitcnt vmcnt(8)")
    k.e(f"v_cmp_ne_u32 vcc, s{S_NONCE}, v9")
    k.e("s_nop 1")
    k.e(f"s_cbranch_vccz {ok}")
    poll_flags(k, 8, 9, "f1b")
    k.lab(ok)
    k.e("s_mov_b64 exec, -1")
    k.stamp(5)
    if OPT['remdma']:
        sk = k.u("norem"); jn = k.u("remj")
        k.e(f"s_cmp_eq_u32 s{S_RB}, 0")
        k.e(f"s_cbranch_scc1 {sk}")
        k.e("v_lshlrev_b32 v8, 4, v0")
        k.e(f"s_lshl_b32 s48, s{S_G}, 2")
        k.e("s_add_u32 s48, s48, s26")
        k.e("s_lshl_b32 s48, s48, 6")
        k.e(f"s_lshl_b32 s49, s{S_RB}, 1")
        k.e("s_sub_u32 s49, s49, 8")
        k.e("s_lshl_b32 s52, s26, 13")
        def rem(base_g, base_l):
            for j in range(8):
                k.e(f"s_add_i32 s50, s49, {j}")
                k.e("s_max_i32 s50, s50, 0")
                k.e("s_add_u32 s50, s50, s48")
                k.e("s_lshl_b32 s50, s50, 10")
                if base_g: k.e(f"s_add_u32 s50, s50, {base_g}")
                k.e(f"s_add_u32 s51, s52, {base_l + j*1024}")
                k.e("s_mov_b32 m0, s51")
                k.e("s_nop 0")
                k.e(f"buffer_load_dwordx4 v8, {WS}, s50 offen sc1 lds")
        rem(KB_G, RK_L)
        if OPT['vpre']:
            VS = [86, 87, 88, 89, 92, 93, 94, 100]
            for j in range(8):
                k.e(f"s_add_i32 s50, s49, {j}")
                k.e("s_max_i32 s50, s50, 0")
                k.e("s_add_u32 s50, s50, s48")
                k.e("s_lshl_b32 s50, s50, 10")
                k.e(f"s_add_u32 s{VS[j]}, s50, {VB_G}")
            k.e(f"s_add_u32 s51, s52, {RV_L}")
            k.e("s_waitcnt vmcnt(8)");  k.e("s_barrier")
            for j in range(8):
                k.e("s_mov_b32 m0, s51")
                k.e("s_add_u32 s51, s51, 1024")
                k.e(f"buffer_load_dwordx4 v8, {WS}, s{VS[j]} offen sc1 lds")
        else:
            k.e("s_waitcnt vmcnt(8)");  k.e("s_barrier")
            rem(VB_G, RV_L)
        k.e("s_barrier")
        k.e("s_waitcnt vmcnt(0)")
        k.e(f"s_branch {jn}")
        k.lab(sk)
        k.e("s_waitcnt vmcnt(0)");  k.e("s_barrier")
        k.e("s_barrier")
        k.lab(jn)
    else:
        sk = k.u("norem"); jn = k.u("remj")
        k.e(f"s_cmp_eq_u32 s{S_RB}, 0")
        k.e(f"s_cbranch_scc1 {sk}")
        k.e("v_lshlrev_b32 v8, 4, v0")
        k.e(f"s_lshl_b32 s48, s{S_G}, 2")
        k.e("s_add_u32 s48, s48, s26")
        k.e("s_lshl_b32 s48, s48, 6")
        k.e(f"s_lshl_b32 s49, s{S_RB}, 1")
        k.e("s_sub_u32 s49, s49, 8")
        for j in range(8):
            k.e(f"s_add_i32 s50, s49, {j}")
            k.e("s_max_i32 s50, s50, 0")
            k.e("s_add_u32 s50, s50, s48")
            k.e("s_lshl_b32 s50, s50, 10")
            k.e(f"s_add_u32 s51, s50, {VB_G}")
            k.e(f"buffer_load_dwordx4 {vr(16+4*j,4)}, v8, {WS}, s50 offen sc1")
            k.e(f"buffer_load_dwordx4 {vr(48+4*j,4)}, v8, {WS}, s51 offen sc1")
        k.e("s_waitcnt vmcnt(16)");  k.e("s_barrier")
        k.e("s_lshl_b32 s48, s26, 13")
        k.e("v_add_u32 v9, s48, v8")
        for j in range(8):
            k.e(f"s_waitcnt vmcnt({14-2*j})")
            k.e(f"ds_write_b128 v9, {vr(16+4*j,4)} offset:{RK_L + j*1024}")
            k.e(f"ds_write_b128 v9, {vr(48+4*j,4)} offset:{RV_L + j*1024}")
            if j == 3: k.e("s_barrier")
        k.e(f"s_branch {jn}")
        k.lab(sk)
        k.e("s_waitcnt vmcnt(0)");  k.e("s_barrier")
        k.e("s_barrier")
        k.lab(jn)
    k.e("s_waitcnt lgkmcnt(0)")
    k.stamp(6)
    if OPT['ldprio']: k.e("s_setprio 0")
    k.e("s_barrier")
    k.stamp(4)

AQ_, AKF, AS, AMD, AMF, ACN, AP, AVB, AO = 4, 8, [44, 60, 76], 216, 232, 124, 140, [148, 156], 176
AM, AT = 192, 193
AK0, AK7, AK8, AV0, AV7, AV8 = 196, 197, 198, 199, 200, 201
KVR = 208
VPOLL, VPA, VPOLL2 = 248, 249, 253

def v_reads(k, buf, vaddr, off):
    k.e("s_mov_b64 exec, s[64:65]")
    k.e(f"ds_read_b128 {vr(AVB[buf],4)}, v{vaddr} offset:{off}")
    k.e(f"ds_read_b128 {vr(AVB[buf]+4,4)}, v{vaddr} offset:{off+512}")
    k.e("s_mov_b64 exec, -1")

def sig_f1a(k):
    sk = k.u("nosigA")
    k.e(f"s_cmp_lt_u32 s{S_WAVE}, 2")
    k.e(f"s_cbranch_scc0 {sk}")
    if OPT.get('sigst'): k.stamp(5)
    k.e("s_waitcnt vmcnt(0)")
    if OPT.get('sigst'): k.stamp(6)
    k.e(f"s_lshl_b32 s52, s{S_G}, 13")
    k.e(f"s_lshl_b32 s53, s{S_RB}, 1")
    k.e(f"s_add_u32 s53, s53, s{S_WAVE}")
    k.e("s_lshl_b32 s53, s53, 7")
    k.e("s_add_u32 s52, s52, s53")
    k.e(f"s_add_u32 s52, s52, {F1A}")
    store_flag(k, 52)
    k.lab(sk)

def attn_setup(k):
    k.e(f"s_and_b32 s86, s{S_WAVE}, 1")
    k.e(f"s_lshr_b32 s87, s{S_WAVE}, 1")
    k.e(f"v_lshlrev_b32 v{AT}, 4, v0")
    k.e("s_lshl_b32 s88, s86, 10")
    k.e("s_lshl_b32 s89, s87, 13")
    k.e("s_lshl_b32 s92, s87, 11")
    k.e("s_add_u32 s93, s89, s88")
    k.e(f"v_add_u32 v{AK0}, s93, v{AT}")
    k.e(f"s_add_u32 s94, s89, {7*1024}")
    k.e(f"s_add_u32 s100, s92, {OK_L}")
    k.e("s_cmp_eq_u32 s86, 0")
    k.e("s_cselect_b32 s94, s94, s100")
    k.e(f"v_add_u32 v{AK7}, s94, v{AT}")
    k.e("s_add_u32 s100, s100, s88")
    k.e(f"v_add_u32 v{AK8}, s100, v{AT}")
    k.e("v_lshrrev_b32 v202, 5, v0")
    k.e("v_lshlrev_b32 v202, 8, v202")
    k.e("v_and_b32 v203, 15, v0")
    k.e("v_lshlrev_b32 v203, 4, v203")
    k.e("v_add_u32 v202, v202, v203")
    k.e(f"s_add_u32 s94, s93, {RV_L}")
    k.e(f"v_add_u32 v{AV0}, s94, v202")
    k.e(f"s_add_u32 s94, s89, {RV_L + 7*1024}")
    k.e(f"s_add_u32 s100, s92, {OV_L}")
    k.e("s_cmp_eq_u32 s86, 0")
    k.e("s_cselect_b32 s94, s94, s100")
    k.e(f"v_add_u32 v{AV7}, s94, v202")
    k.e("s_add_u32 s100, s100, s88")
    k.e(f"v_add_u32 v{AV8}, s100, v202")
    k.e("v_and_b32 v202, 31, v0")
    k.e("v_lshrrev_b32 v203, 5, v0")
    k.e("v_lshlrev_b32 v203, 2, v203")
    k.e("v_sub_u32 v202, v202, v203")
    k.e("v_cvt_f32_i32 v202, v202")
    k.e(f"v_mov_b32 v203, {lit(BIG)}")
    for i in range(16):
        ci = 8*(i >> 2) + (i & 3)
        k.e(f"v_fmaak_f32 v{AMD+i}, v202, v203, {lit((0.5-ci)*BIG)}")
    for i in range(16): k.e(f"v_min_f32 v{AMF+i}, -v{AMD+i}, 0")
    for i in range(16): k.e(f"v_min_f32 v{AMD+i}, 0, v{AMD+i}")
    k.e(f"v_mov_b32 v{AM}, 0xff7fffff")
    k.e(f"s_lshl_b32 s87, s{S_G}, 13")
    k.e(f"s_add_u32 s87, s87, {F1A}")
    k.e(f"v_lshlrev_b32 v{VPA}, 7, v0")
    k.e(f"v_add_u32 v{VPA}, s87, v{VPA}")

def wo_setup(k):
    k.e("s_and_b32 s50, s2, 7")
    k.e("s_lshr_b32 s51, s2, 3")
    k.e("s_lshr_b32 s52, s50, 2")
    k.e("s_lshr_b32 s53, s51, 2")
    k.e("s_cmp_eq_u32 s52, 0")
    k.e(f"s_cselect_b32 s{SRD_WO}, s{P_AWO}, s{P_BWO}")
    k.e(f"s_cselect_b32 s{SRD_WO+1}, s{P_AWO+1}, s{P_BWO+1}")
    k.e(f"s_mov_b32 s{SRD_WO+2}, 0x{512*1024:x}")
    k.e(f"s_mov_b32 s{SRD_WO+3}, 0x20000")
    k.e("v_lshrrev_b32 v204, 3, v0")
    k.e("v_and_b32 v205, 7, v0")
    k.e("v_and_b32 v206, 2, v204")
    k.e("v_lshlrev_b32 v206, 1, v206")
    k.e("v_xor_b32 v206, v205, v206")
    k.e("v_lshlrev_b32 v206, 4, v206")
    k.e(f"s_sub_u32 s54, s{S_WAVE}, 4")
    if OPT['wosplit']:
        a = OPT['wosplit']
        starts = [0, a, 2*a, 2*a + (16 - a)]
        tab = sum(v << (8*i) for i, v in enumerate(starts))
        k.e("s_lshl_b32 s55, s54, 3")
        k.e(f"s_lshr_b32 s55, 0x{tab:x}, s55")
        k.e("s_and_b32 s55, s55, 0xff")
        k.e("s_lshl_b32 s50, s55, 4")
    else:
        k.e("s_lshl_b32 s50, s54, 7")
    k.e("v_add_u32 v204, s50, v204")
    k.e("v_lshlrev_b32 v204, 10, v204")
    k.e("s_lshl_b32 s96, s50, 7")
    k.e("s_lshl_b32 s50, s53, 7")
    k.e("v_add3_u32 v205, v204, v206, s50")
    k.e(f"s_add_u32 s96, s96, {WO_L}")
    k.e("s_mov_b32 s97, 0")

def wo_pair(k):
    k.e("s_mov_b32 m0, s96")
    k.e("s_add_u32 s98, s97, 7168")
    k.e(f"buffer_load_dwordx4 v205, {sr(SRD_WO,4)}, s97 offen lds")
    k.e(f"buffer_load_dwordx4 v205, {sr(SRD_WO,4)}, s98 offen offset:1024 lds")
    k.e("s_add_u32 s96, s96, 2048")
    k.e("s_add_u32 s97, s97, 16384")

KVL = 0
def kv_loads(k):
    k.stamp(14)
    k.e(f"s_lshl_b32 s50, s{S_G}, 13")
    k.e(f"s_add_u32 s50, s50, {KVACC}")
    k.e("s_add_u32 s51, s50, 4096")
    k.e(f"buffer_load_dwordx4 {vr(KVR,4)}, v1, {WS}, s50 offen sc1")
    k.e(f"buffer_load_dwordx4 {vr(KVR+4,4)}, v1, {WS}, s50 offen offset:1024 sc1")
    k.e(f"buffer_load_dwordx4 {vr(164,4)}, v1, {WS}, s51 offen sc1")
    k.e(f"buffer_load_dwordx4 {vr(168,4)}, v1, {WS}, s51 offen offset:1024 sc1")
    k.e("v_lshrrev_b32 v202, 5, v0")
    k.e("v_lshlrev_b32 v202, 12, v202")
    k.e("v_and_b32 v203, 31, v0")
    k.e("v_lshl_add_u32 v202, v203, 2, v202")
    k.e(f"buffer_load_dword v172, v202, {WS}, s50 offen offset:2048 sc1")

def attention(k):
    k.c("attention: i = w&1 (s26), hh = w>>1 (s27), qt = s48, s99 = kv loads issued flag")
    if OPT['lprio'] >= 0:
        sk = k.u("lp")
        k.e(f"s_cmp_ge_u32 s{S_WAVE}, 4")
        k.e(f"s_cbranch_scc0 {sk}")
        k.e("s_setprio 1")
        k.lab(sk)
    k.e(f"s_and_b32 s26, s{S_WAVE}, 1")
    k.e(f"s_lshr_b32 s27, s{S_WAVE}, 1")
    k.e(f"s_lshl_b32 s48, s{S_RB}, 1")
    k.e("s_add_u32 s48, s48, s26")
    k.e("v_lshlrev_b32 v1, 4, v0")
    k.e("s_lshl_b32 s49, s27, 11")
    k.e("s_lshl_b32 s50, s26, 10")
    k.e("s_add_u32 s49, s49, s50")
    k.e(f"s_add_u32 s49, s49, {Q_L}")
    k.e("v_add_u32 v2, s49, v1")
    k.e(f"ds_read_b128 {vr(AQ_,4)}, v2")
    def kaddr(p): return (AK0, RK_L + p*1024) if p <= 6 else ((AK7, 0) if p == 7 else (AK8, 0))
    def vaddr(p): return (AV0, p*1024) if p <= 6 else ((AV7, 0) if p == 7 else (AV8, 0))
    for p in range(9):
        a, o = kaddr(p); k.e(f"ds_read_b128 {vr(AKF+4*p,4)}, v{a} offset:{o}")
    k.e("s_mov_b32 s64, 0xffff")
    k.e("s_mov_b32 s65, 0xffff")
    k.e("s_mov_b32 s99, 0")
    for b in range(2):
        for j in range(8): k.e(f"v_mov_b32 v{AVB[b]+j}, 0x3f803f80")
    def wo_block():
        sk = k.u("nowo")
        k.e(f"s_cmp_ge_u32 s{S_WAVE}, 4")
        k.e(f"s_cbranch_scc0 {sk}")
        wo_setup(k)
        if OPT['wosplit']:
            a = OPT['wosplit']
            for j in range(a): wo_pair(k)
            k.e(f"s_cmp_ge_u32 s{S_WAVE}, 6")
            k.e(f"s_cbranch_scc0 {sk}")
            for j in range(16 - 2*a): wo_pair(k)
        else:
            for j in range(8): wo_pair(k)
        k.lab(sk)
    if OPT['wopos'] == 0: wo_block()
    Q = vr(AQ_, 4)
    def qk(dst, p, c): k.e(f"{MF} {vr(dst,16)}, {vr(AKF+4*p,4)}, {Q}, {c}")
    def c1(p): return vr(AMF,16) if p == 0 else (vr(AMD,16) if p == 8 else "0")
    def c2(p): return vr(AMF,16) if p == 0 else (vr(AMD,16) if p == 8 else vr(ACN,16))
    k.e("s_sub_i32 s95, 8, s48")
    k.e("s_max_i32 s95, s95, 0")
    P1 = [k.u(f"p1_{p}") for p in range(9)]
    P2 = [k.u(f"p2_{p}") for p in range(9)]
    E1 = [k.u(f"e1_{p}") for p in range(9)]
    E2 = [k.u(f"e2_{p}") for p in range(9)]
    k.e("s_waitcnt lgkmcnt(0)")
    for p in range(1, 9):
        k.e(f"s_cmp_eq_u32 s95, {p}")
        k.e(f"s_cbranch_scc1 {E1[p]}")
    qk(AS[0], 0, c1(0)); qk(AS[1], 1, c1(1)); qk(AS[2], 2, c1(2))
    k.e("s_nop 9")
    for p in range(9):
        k.lab(P1[p])
        s_ = AS[p % 3]
        for j in range(8): k.e(f"v_max3_f32 v{AM}, v{s_+2*j}, v{s_+2*j+1}, v{AM}")
        if p + 3 <= 8: qk(s_, p + 3, c1(p + 3))
    k.e(f"v_mov_b32 v{AT}, v{AM}")
    k.e("s_nop 1")
    k.e(f"v_permlane32_swap_b32 v{AM}, v{AT}")
    k.e(f"v_max_f32 v{AM}, v{AM}, v{AT}")
    k.e(f"v_sub_f32 v{AM}, 0, v{AM}")
    for i in range(16): k.e(f"v_mov_b32 v{ACN+i}, v{AM}")
    MRG = OPT['merge']
    if not MRG:
        for i in range(16): k.e(f"v_add_f32 v{AMD+i}, v{AMD+i}, v{AM}")
    if OPT['wopos'] == 1: wo_block()
    k.stamp(8)
    k.e("s_cmp_eq_u32 s95, 0")
    sh = k.u("short2")
    k.e(f"s_cbranch_scc0 {sh}")
    if MRG:
        k.e("s_mov_b32 s62, 0xffff")
        for i in range(16): k.e(f"v_ashrrev_i32 v{AMF+i}, 31, v{AMD+i}")
        v_reads(k, 1, *vaddr(1))
        qk(AS[1], 1, c2(1))
        for j in range(8): k.e(f"v_bfi_b32 v{AMD+j}, s62, v{AMF+2*j}, v{AMF+2*j+1}")
    else:
        for i in range(16): k.e(f"v_add_f32 v{AMF+i}, v{AMF+i}, v{AM}")
        v_reads(k, 0, *vaddr(0))
        k.e("s_nop 0")
        qk(AS[0], 0, c2(0))
        k.e("s_nop 6")
    mrgblk = k.u("merged"); afterm = k.u("afterm")
    for p in range(9):
        if MRG and p == 0: continue
        k.lab(P2[p])
        cur = AS[p % 2]; nxt = AS[(p + 1) % 2]
        if MRG and p == 8:
            k.e("s_cmp_eq_u32 s95, 0")
            k.e(f"s_cbranch_scc1 {mrgblk}")
        if p < 8:
            if MRG and p == 7:
                sk7 = k.u("m7"); j7 = k.u("j7")
                k.e("s_cmp_eq_u32 s95, 0")
                k.e(f"s_cbranch_scc0 {sk7}")
                qk(nxt, 8, vr(ACN,16)); qk(AS[2], 0, vr(ACN,16))
                k.e(f"s_branch {j7}")
                k.lab(sk7)
                qk(nxt, 8, vr(AMD,16))
                k.lab(j7)
            else:
                qk(nxt, p + 1, c2(p + 1))
            v_reads(k, (p + 1) % 2, *vaddr(p + 1))
        hooks = k.u("nohook")
        if p == OPT['lprio']: k.e("s_setprio 0")
        if p == OPT['sigp']:
            k.e("s_cmp_eq_u32 s95, 0")
            k.e(f"s_cbranch_scc0 {hooks}")
            sig_f1a(k)
            k.lab(hooks)
        if p >= OPT['pollp'] and (p - OPT['pollp']) % OPT['pollstep'] == 0:
            hk = k.u("hk")
            vp = VPOLL if (p - OPT['pollp']) % 2 == 0 else VPOLL2
            k.e(f"s_cmp_eq_u32 s{S_WAVE}, 4")
            k.e(f"s_cbranch_scc0 {hk}")
            k.e("s_cmp_eq_u32 s95, 0")
            k.e(f"s_cbranch_scc0 {hk}")
            k.e("s_cmp_eq_u32 s99, 0")
            k.e(f"s_cbranch_scc0 {hk}")
            if p >= OPT['pollp'] + 2:
                got = k.u("got")
                k.e(f"s_waitcnt vmcnt({1 if OPT['pollstep'] == 1 else 0})")
                k.e(f"v_cmp_ne_u32 vcc, s{S_NONCE}, v{vp}")
                k.e("s_nop 1")
                k.e(f"s_cbranch_vccz {got}")
                k.e(f"buffer_load_dword v{vp}, v{VPA}, {WS}, 0 offen sc1")
                k.e(f"s_branch {hk}")
                k.lab(got)
                kv_loads(k)
                k.e("s_mov_b32 s99, 1")
            else:
                k.e(f"buffer_load_dword v{vp}, v{VPA}, {WS}, 0 offen sc1")
            k.lab(hk)
        for j in range(16): k.e(f"v_exp_f32 v{cur+j}, v{cur+j}")
        for j in range(8): k.e(f"v_cvt_pk_bf16_f32 v{AP+j}, v{cur+2*j}, v{cur+2*j+1}")
        k.e(f"s_waitcnt lgkmcnt({2 if p < 8 else 0})")
        vb = AVB[p % 2]
        k.e(f"{MF} {vr(AO,16)}, {vr(vb,4)}, {vr(AP,4)}, {'0' if p == (1 if MRG else 0) else vr(AO,16)}")
        k.e("s_nop 0")
        k.e(f"{MF} {vr(AO,16)}, {vr(vb+4,4)}, {vr(AP+4,4)}, {vr(AO,16)}")
    done = k.u("attdone")
    k.e(f"s_branch {done}")
    if MRG:
        k.lab(mrgblk)
        SD, SF = AS[0], AS[2]
        v_reads(k, 1, *vaddr(0))
        hk = k.u("hkm"); got = k.u("gotm")
        vp = VPOLL if (8 - OPT['pollp']) % 2 == 0 else VPOLL2
        k.e(f"s_cmp_eq_u32 s{S_WAVE}, 4")
        k.e(f"s_cbranch_scc0 {hk}")
        k.e("s_cmp_eq_u32 s99, 0")
        k.e(f"s_cbranch_scc0 {hk}")
        k.e("s_waitcnt vmcnt(1)")
        k.e(f"v_cmp_ne_u32 vcc, s{S_NONCE}, v{vp}")
        k.e("s_nop 1")
        k.e(f"s_cbranch_vccnz {hk}")
        kv_loads(k)
        k.e("s_mov_b32 s99, 1")
        k.lab(hk)
        k.e("s_nop 3")
        for i in range(16): k.e(f"v_bfi_b32 v{SD+i}, v{AMF+i}, v{SF+i}, v{SD+i}")
        for j in range(16): k.e(f"v_exp_f32 v{SD+j}, v{SD+j}")
        for j in range(8): k.e(f"v_cvt_pk_bf16_f32 v{AP+j}, v{SD+2*j}, v{SD+2*j+1}")
        for j in range(8): k.e(f"v_and_b32 v{SF+j}, v{AP+j}, v{AMD+j}")
        for j in range(8): k.e(f"v_xor_b32 v{AP+j}, v{AP+j}, v{SF+j}")
        k.e("s_waitcnt lgkmcnt(0)")
        k.e(f"{MF} {vr(AO,16)}, {vr(AVB[1],4)}, {vr(SF,4)}, {vr(AO,16)}")
        k.e(f"{MF} {vr(AO,16)}, {vr(AVB[1]+4,4)}, {vr(SF+4,4)}, {vr(AO,16)}")
        k.e(f"{MF} {vr(AO,16)}, {vr(AVB[0],4)}, {vr(AP,4)}, {vr(AO,16)}")
        k.e(f"{MF} {vr(AO,16)}, {vr(AVB[0]+4,4)}, {vr(AP+4,4)}, {vr(AO,16)}")
        k.e(f"s_branch {done}")
    for p in range(1, 9):
        k.lab(E1[p])
        for q in range(p, min(p + 3, 9)): qk(AS[q % 3], q, c1(q))
        k.e("s_nop 10")
        k.e(f"s_branch {P1[p]}")
    k.lab(sh)
    if MRG:
        for i in range(16): k.e(f"v_add_f32 v{AMD+i}, v{AMD+i}, v{AM}")
    for i in range(16): k.e(f"v_mov_b32 v{AO+i}, 0")
    sig_f1a(k)
    sk = k.u("shpoll")
    k.e(f"s_cmp_eq_u32 s{S_WAVE}, 4")
    k.e(f"s_cbranch_scc0 {sk}")
    k.e(f"buffer_load_dword v{VPOLL}, v{VPA}, {WS}, 0 offen sc1")
    k.lab(sk)
    for p in range(1, 9):
        k.e(f"s_cmp_eq_u32 s95, {p}")
        k.e(f"s_cbranch_scc1 {E2[p]}")
    k.e(f"s_branch {E2[8]}")
    for p in range(1, 9):
        k.lab(E2[p])
        qk(AS[p % 2], p, c2(p))
        v_reads(k, p % 2, *vaddr(p))
        k.e("s_nop 6")
        k.e(f"s_branch {P2[p]}")
    k.lab(done)

def apart(k):
    sk = k.u("kvdone")
    k.e(f"s_cmp_eq_u32 s{S_WAVE}, 4")
    k.e(f"s_cbranch_scc0 {sk}")
    k.e("s_cmp_eq_u32 s99, 1")
    k.e(f"s_cbranch_scc1 {sk}")
    poll_flags(k, VPA, VPOLL, "f1a")
    kv_loads(k)
    k.lab(sk)
    k.e("s_nop 8")
    k.e(f"v_rcp_f32 v{AT}, v{AO+8}")
    k.e("s_nop 0")
    for j in range(8): k.e(f"v_mul_f32 v{AO+j}, v{AO+j}, v{AT}")
    cvt8(k, AP, AO)
    k.e(f"s_lshl_b32 s49, s{S_G}, 2")
    k.e("s_add_u32 s49, s49, s27")
    k.e("s_lshl_b32 s50, s48, 5")
    k.e("s_add_u32 s49, s49, s50")
    k.e("s_lshl_b32 s49, s49, 10")
    k.e(f"s_add_u32 s50, s49, {O_G + (2<<20)}")
    k.e(f"buffer_store_dwordx4 {vr(AP,4)}, v1, {WS}, s50 offen sc1")
    k.e("s_barrier")
    sk = k.u("nokvw")
    k.e(f"s_cmp_eq_u32 s{S_WAVE}, 4")
    k.e(f"s_cbranch_scc0 {sk}")
    k.e("s_waitcnt vmcnt(1)")
    k.e(f"ds_write_b128 v1, {vr(KVR,4)} offset:{KVL}")
    k.e(f"ds_write_b128 v1, {vr(KVR+4,4)} offset:{KVL+1024}")
    k.e(f"ds_write_b128 v1, {vr(164,4)} offset:{KVL+4096}")
    k.e(f"ds_write_b128 v1, {vr(168,4)} offset:{KVL+4096+1024}")
    k.e("v_lshrrev_b32 v202, 5, v0")
    k.e("v_lshlrev_b32 v202, 12, v202")
    k.e("v_and_b32 v203, 31, v0")
    k.e("v_lshl_add_u32 v202, v203, 2, v202")
    k.e(f"ds_write_b32 v202, v172 offset:{KVL+2048}")
    k.e("s_waitcnt lgkmcnt(0)")
    k.lab(sk)
    k.e("s_lshr_b32 s51, s27, 1")
    k.e("s_lshl_b32 s51, s51, 12")
    k.e("s_and_b32 s52, s27, 1")
    k.e("s_lshl_b32 s52, s52, 6")
    k.e("s_add_u32 s51, s51, s52")
    k.e("v_lshrrev_b32 v203, 5, v0")
    k.e("v_and_b32 v202, 15, v0")
    k.e("v_lshl_add_u32 v202, v203, 5, v202")
    k.e("v_lshlrev_b32 v202, 2, v202")
    k.e("v_add_u32 v202, s51, v202")
    k.e("v_lshlrev_b32 v203, 4, v203")
    k.e("v_add_u32 v203, s51, v203")
    k.e("s_lshl_b32 s51, s27, 11")
    k.e("s_lshl_b32 s50, s26, 10")
    k.e("s_add_u32 s51, s51, s50")
    k.e(f"s_add_u32 s51, s51, {PQ_L}")
    k.e("v_add_u32 v2, s51, v1")
    k.e(f"ds_read_b128 {vr(AQ_,4)}, v2")
    k.e("s_barrier")
    k.stamp(15)
    k.e("s_mov_b64 exec, s[64:65]")
    for t in range(8): k.e(f"ds_read_b32 v{KVR+t}, v202 offset:{KVL + t*256}")
    k.e("s_not_b64 exec, s[64:65]")
    k.e(f"ds_read_b128 {vr(KVR,4)}, v203 offset:{KVL+2048}")
    k.e(f"ds_read_b128 {vr(KVR+4,4)}, v203 offset:{KVL+2048+32}")
    k.e("s_mov_b64 exec, -1")
    k.e("s_waitcnt lgkmcnt(0)")
    cvt8(k, 8, KVR)
    k.e("s_nop 1")
    k.e(f"{MF} {vr(44,16)}, {vr(8,4)}, {vr(AQ_,4)}, 0")
    k.e(f"s_mov_b32 s62, {lit(1e-6)}")
    k.e("s_nop 10")
    k.e("v_add_f32 v12, s62, v52")
    k.e("v_rcp_f32 v12, v12")
    k.e("s_nop 0")
    for j in range(8): k.e(f"v_mul_f32 v{44+j}, v{44+j}, v12")
    cvt8(k, 16, 44)
    k.e(f"s_add_u32 s50, s49, {O_G}")
    k.e(f"buffer_store_dwordx4 {vr(16,4)}, v1, {WS}, s50 offen sc1")

def p3(k):
    k.c("P3: out tile 128x64")
    k.e("s_and_b32 s48, s2, 7")
    k.e("s_lshr_b32 s49, s2, 3")
    k.e("s_lshr_b32 s66, s48, 2")
    k.e("s_and_b32 s67, s48, 3")
    k.e("s_lshl_b32 s67, s67, 2")
    k.e("s_and_b32 s50, s49, 3")
    k.e("s_add_u32 s67, s67, s50")
    k.e("s_lshr_b32 s68, s49, 2")
    k.e("s_lshl_b32 s48, s67, 11")
    k.e(f"s_add_u32 s48, s48, {F2}")
    k.e("v_and_b32 v8, 15, v0")
    k.e("v_lshlrev_b32 v8, 7, v8")
    k.e("v_add_u32 v8, s48, v8")
    OF, ACC3, WF = 8+4, 144, [176, 184]
    VA0, VA1 = 192, 193
    k.e("v_bfe_u32 v2, v0, 2, 2")
    k.e("v_and_b32 v3, 3, v0")
    k.e("v_bfe_u32 v4, v0, 4, 1")
    k.e("v_lshrrev_b32 v5, 5, v0")
    k.e("v_lshlrev_b32 v5, 2, v5")
    k.e("v_add_u32 v5, v5, v2")
    k.e("v_lshlrev_b32 v5, 7, v5")
    k.e("v_and_b32 v6, 1, v3")
    k.e("v_lshlrev_b32 v6, 1, v6")
    k.e("v_add_u32 v6, v6, v4")
    k.e("v_and_b32 v7, 2, v2")
    k.e("v_lshlrev_b32 v7, 1, v7")
    k.e("v_xor_b32 v6, v6, v7")
    k.e("v_lshlrev_b32 v6, 4, v6")
    k.e("v_lshrrev_b32 v3, 1, v3")
    k.e("v_lshlrev_b32 v3, 3, v3")
    k.e("v_add3_u32 v5, v5, v6, v3")
    SLOWG = OPT['slowg']
    VB0 = 194
    k.e(f"v_add_u32 v{VB0}, {WO_L}, v5")
    k.e("s_lshl_b32 s48, s67, 2")
    k.e(f"s_add_u32 s48, s48, s{S_WAVE}")
    k.e("s_lshl_b32 s49, s48, 15")
    k.e("s_lshl_b32 s50, s66, 21")
    k.e("s_add_u32 s49, s49, s50")
    k.e(f"s_add_u32 s49, s49, {O_G}")
    k.e("v_lshlrev_b32 v1, 4, v0")
    GR = [86, 87, 88, 89, 92, 93, 94, 100]
    NOSLOW = SLOWG == 8
    if NOSLOW:
        for u in range(8):
            k.e(f"s_add_u32 s52, s68, {u}")
            k.e(f"s_and_b32 s{GR[u]}, s52, 7")
    k.e("s_cmp_eq_u32 s68, 7")
    k.e("s_cselect_b32 s51, 0, s68")
    for u in range(0 if NOSLOW else 7):
        k.e(f"s_add_u32 s52, s51, {u}")
        k.e("s_cmp_ge_u32 s52, 7")
        k.e("s_cselect_b32 s53, 7, 0")
        k.e("s_sub_u32 s52, s52, s53")
        k.e(f"s_cmp_ge_u32 s52, {SLOWG}")
        k.e("s_cselect_b32 s53, 1, 0")
        k.e(f"s_add_u32 s{GR[u]}, s52, s53")
    if not NOSLOW: k.e(f"s_mov_b32 s{GR[7]}, {SLOWG}")
    k.e(f"s_lshr_b32 s52, s{S_WAVE}, 1")
    k.e("s_and_b32 s52, s52, 1")
    k.e("s_lshl_b32 s52, s52, 3")
    k.e(f"s_add_u32 s52, s52, {SLOWG}")
    k.e("s_lshl_b32 s52, s52, 7")
    k.e("s_lshl_b32 s53, s67, 11")
    k.e("s_add_u32 s52, s52, s53")
    k.e(f"s_add_u32 s52, s52, {F2}")
    k.e("v_mov_b32 v10, s52")
    sk = k.u("nof2poll")
    k.e(f"s_cmp_eq_u32 s{S_WAVE}, 0")
    k.e(f"s_cbranch_scc0 {sk}")
    k.e(f"s_mov_b64 exec, 0x{0xffff if NOSLOW else 0xffff & ~((1 << SLOWG) | (1 << (8 + SLOWG))):x}")
    poll_flags(k, 8, 9, "f2")
    k.e("s_mov_b64 exec, -1")
    k.lab(sk)
    k.e("s_barrier")
    k.e(f"s_cmp_ge_u32 s{S_WAVE}, 4")
    k.e("s_cbranch_scc1 L_fin")
    k.stamp(12)
    def oload(hd):
        u = hd >> 2
        if hd % 4 == 0 or True:
            k.e(f"s_lshl_b32 s52, s{GR[u]}, 12")
            k.e("s_add_u32 s52, s52, s49")
        k.e(f"buffer_load_dwordx4 {vr(OF+4*hd,4)}, v1, {WS}, s52 offen offset:{(hd%4)*1024} sc1")
    for hd in range(16): oload(hd)
    def setva(u):
        k.e(f"s_lshl_b32 s52, s{GR[u]}, 13")
        k.e(f"v_add_u32 v{VA0}, s52, v{VB0}")
        k.e(f"v_xor_b32 v{VA1}, 64, v{VA0}")
    def wreads(buf, j):
        for b in range(2):
            for s2 in range(2):
                k.e(f"ds_read_b64_tr_b16 {vr(WF[buf]+4*b+2*s2,2)}, v{VA0+b} offset:{j*2048 + s2*1024}")
    def slow_loads():
        for hd in range(28, 32): oload(hd)
        k.e("s_mov_b32 s54, 1")
    PI, PC = OPT['p3poll'], 24
    k.e("s_mov_b32 s54, 0")
    setva(0)
    wreads(0, 0)
    for hd in range(32 if NOSLOW else 0):
        if hd < 31:
            nj = (hd + 1) % 4
            if nj == 0: setva((hd + 1)//4)
            wreads((hd + 1) % 2, nj)
        last = min(31, 15 + hd)
        k.e(f"s_waitcnt vmcnt({last - hd}) lgkmcnt({4 if hd < 31 else 0})")
        if 16 + hd <= 31: oload(16 + hd)
        for b in range(2):
            k.e(f"{MF} {vr(ACC3+16*b,16)}, {vr(WF[hd%2]+4*b,4)}, {vr(OF+4*hd,4)}, {'0' if hd == 0 else vr(ACC3+16*b,16)}")
    for hd in range(0 if NOSLOW else 32):
        if hd == 28:
            sk = k.u("slowok")
            k.e("s_cmp_eq_u32 s54, 1")
            k.e(f"s_cbranch_scc1 {sk}")
            k.e("s_mov_b64 exec, 1")
            poll_flags(k, 10, 9, "f2s")
            k.e("s_mov_b64 exec, -1")
            slow_loads()
            k.lab(sk)
        if hd < 31:
            nj = (hd + 1) % 4
            if nj == 0: setva((hd + 1)//4)
            wreads((hd + 1) % 2, nj)
        if hd < 28:
            last = min(27, 15 + hd)
            n = last - hd + (1 if hd > PI else 0)
            if hd >= PC: n = None
        else:
            n = 31 - hd
        if hd == PC:
            k.e(f"s_waitcnt vmcnt(0) lgkmcnt(4)")
            sk = k.u("notyet")
            k.e("s_mov_b64 exec, 1")
            k.e(f"v_cmp_ne_u32 vcc, s{S_NONCE}, v9")
            k.e("s_mov_b64 exec, -1")
            k.e("s_nop 0")
            k.e(f"s_cbranch_vccnz {sk}")
            slow_loads()
            k.lab(sk)
        elif n is None:
            k.e("s_waitcnt lgkmcnt(4)")
        else:
            k.e(f"s_waitcnt vmcnt({n}) lgkmcnt({4 if hd < 31 else 0})")
        if 16 + hd <= 27: oload(16 + hd)
        if hd == PI:
            k.e("s_mov_b64 exec, 1")
            k.e(f"buffer_load_dword v9, v10, {WS}, 0 offen sc1")
            k.e("s_mov_b64 exec, -1")
        if OPT.get('p3st') and hd in (0, 8, 31):
            k.stamp({0: 5, 8: 6, 31: 8}[hd])
        for b in range(2):
            k.e(f"{MF} {vr(ACC3+16*b,16)}, {vr(WF[hd%2]+4*b,4)}, {vr(OF+4*hd,4)}, {'0' if hd == 0 else vr(ACC3+16*b,16)}")
    srd(k, SRD_T, P_OUT, 4 << 20)
    k.e("v_and_b32 v2, 31, v0")
    k.e("s_lshl_b32 s49, s48, 5")
    k.e("v_add_u32 v2, s49, v2")
    k.e("v_lshlrev_b32 v2, 11, v2")
    k.e("v_lshrrev_b32 v3, 5, v0")
    k.e("v_lshlrev_b32 v3, 5, v3")
    k.e("s_lshl_b32 s49, s66, 10")
    k.e("s_lshl_b32 s50, s68, 7")
    k.e("s_add_u32 s49, s49, s50")
    k.e("v_add3_u32 v2, v2, v3, s49")
    k.e("s_nop 3")
    for b in range(2):
        for j in range(8): k.e(f"v_cvt_pk_bf16_f32 v{12+8*b+j}, v{ACC3+16*b+2*j}, v{ACC3+16*b+2*j+1}")
    for b in range(2):
        fl = {0: "", 1: " sc1", 2: " nt", 3: " sc0 sc1"}[OPT['outf']]
        k.e(f"buffer_store_dwordx4 {vr(12+8*b,4)}, v2, {sr(SRD_T,4)}, 0 offen offset:{64*b}{fl}")
        k.e(f"buffer_store_dwordx4 {vr(16+8*b,4)}, v2, {sr(SRD_T,4)}, 0 offen offset:{64*b+16}{fl}")

HDR = """; Kernarg layout for this problem (72 bytes, ptrs only, base s[0:1]):
;   offset   0: d_in[0] A_x  shape=(1, 2048, 512) dtype=bfloat16 strides=(2097152, 1024, 2) contiguous=True
;   offset   8: d_in[1] A_wqkv  shape=(512, 1536) dtype=bfloat16 strides=(3072, 2) contiguous=True
;   offset  16: d_in[2] A_wo  shape=(512, 512) dtype=bfloat16 strides=(1024, 2) contiguous=True
;   offset  24: d_in[3] B_x  shape=(1, 2048, 512) dtype=bfloat16 strides=(2097152, 1024, 2) contiguous=True
;   offset  32: d_in[4] B_wqkv  shape=(512, 1536) dtype=bfloat16 strides=(3072, 2) contiguous=True
;   offset  40: d_in[5] B_wo  shape=(512, 512) dtype=bfloat16 strides=(1024, 2) contiguous=True
;   offset  48: d_out     shape=(1, 2048, 1024) dtype=bfloat16 (2 bytes/elem)
;   offset  56: d_debug   256 bytes
;   offset  64: d_ws      268435456 bytes workspace
;
; One persistent launch, 256 workgroups (one per CU) x 8 waves.  Workgroup = (64-row block rb, 4-head group g).
;   P1  QKV GEMMs (branch B tile, then branch A tile): waves 4-7 stream x / W through a 4-slot LDS ring (LDS-DMA),
;       waves 0,1 accumulate k,v and waves 2,3 accumulate q.  B's K/V fragments go to d_ws for the neighbouring row
;       blocks, A's phi(k)^T v and sum phi(k) are accumulated in d_ws with f32 atomics.
;   P2  sliding-window attention, one (32-query tile, head) unit per wave (two passes: true row max, then exp / PV),
;       then the linear-attention output of the same unit.
;   P3  output projection, 128x64 tile per workgroup.
; Hand-offs between workgroups: write-through (sc1) stores, drained, then a flag word holding a per-launch nonce.
; @launch grid=(256,1,1) block=(512,1,1) lds=163840
.amdgcn_target "amdgcn-amd-amdhsa--gfx950"
.text
.globl KNAME
.p2align 8
.type KNAME,@function
""".replace("KNAME", KNAME)

TAIL = """.section .rodata,"a"
.p2align 6
.amdhsa_kernel KNAME
  .amdhsa_next_free_vgpr 256
  .amdhsa_next_free_sgpr 102
  .amdhsa_accum_offset 256
  .amdhsa_group_segment_fixed_size 0
  .amdhsa_kernarg_size 72
  .amdhsa_user_sgpr_count 2
  .amdhsa_user_sgpr_kernarg_segment_ptr 1
  .amdhsa_system_sgpr_workgroup_id_x 1
.end_amdhsa_kernel
""".replace("KNAME", KNAME)

def build(stamps=False):
    k = gen(stamps)
    body = "\n".join(k.L)
    body = body.replace("PF_BACK", f"((L_pc - {KNAME}) & 0xffffff00)")
    pad = "\n    .fill 2048, 4, 0xbf800000\n"
    hdr, tail = HDR, TAIL
    if OPT['extra']:
        hdr = hdr.replace("; @launch grid=(256,1,1) block=(512,1,1) lds=163840", f"; @launch kernel={KNAME} grid=(256,1,1) block=(512,1,1) lds=163840\n; @launch kernel=nop_kernel grid=(1,1,1) block=(64,1,1) lds=0")
        pad += ".globl nop_kernel\n.p2align 8\n.type nop_kernel,@function\nnop_kernel:\n    s_endpgm\n"
        tail += """.p2align 6
.amdhsa_kernel nop_kernel
  .amdhsa_next_free_vgpr 8
  .amdhsa_next_free_sgpr 16
  .amdhsa_accum_offset 8
  .amdhsa_group_segment_fixed_size 0
  .amdhsa_kernarg_size 72
  .amdhsa_user_sgpr_count 2
  .amdhsa_user_sgpr_kernarg_segment_ptr 1
  .amdhsa_system_sgpr_workgroup_id_x 1
.end_amdhsa_kernel
"""
    return hdr + body + pad + "\n" + tail

if __name__ == "__main__":
    out = sys.argv[1] if len(sys.argv) > 1 else "out.s"
    stamps = "stamps" in sys.argv[2:]
    for a in sys.argv[2:]:
        if "=" in a:
            kk, vv = a.split("="); OPT[kk] = int(vv)
    txt = build(stamps)
    open(out, "w").write(txt)
    import hz
    pr = hz.check(txt)
    import subprocess
    r = subprocess.run(["clang", "-x", "assembler", "-target", "amdgcn-amd-amdhsa", "-mcpu=gfx950", "-c", out, "-o", "_chk.o"], capture_output=True, text=True)
    print("hazards:", len(pr), "lines:", txt.count("\n"), "asm:", "ok" if r.returncode == 0 else r.stderr)
```

```python
import sys, math, struct

KNAME = "concat_heads__linear_attn_block__sliding_block__prompt_kernel"

KB_G   = 0
VB_G   = 2 << 20
O_G    = 4 << 20
KVACC  = 8 << 20
FL     = (8 << 20) + (64 << 10)
F1B    = FL
F1A    = FL + (32 << 10)
F2     = FL + (96 << 10)
STAMP  = 9 << 20
SLOT   = 32768
OK_L, OV_L, Q_L, PQ_L = 131072, 139264, 147456, 155648
NONCE_L = PQ_L
RK_L, RV_L, WO_L = 0, 32768, 65536
CS = 0.25 * math.log2(math.e)
LOG2E = math.log2(math.e)
BIG = 1.0e28
SPIN_MAX = 2000000
OPT = dict(rot=4, pfB=0, pfA=1, dbgstamps=0, stagest=0, pfs=1, tpf=0, p3st=0, map=2, outf=2, extra=0, sigs=9, pf0=0, late9=0, remdma=1, m16=0, npre=16, pf4=0, pkphi=1, prio=0, kvprio=1, pollp=4, sigp=3, fixdur=0, ldprio=0, wopos=1, sigst=0, wosplit=0, lprio=-1, slowg=3, p3poll=14, pf3=0, x16st=0, sleep=1, rotA=-1, bfi=1, vpre=1, x16pos=2, merge=0, pollstep=1, cpf=3, pfm=1, pfwo=0, warmf=1, warmp=0, gopre=1, p3chk=24)

def f2u(x): return struct.unpack('<I', struct.pack('<f', x))[0]
def lit(x): return "0x%08x" % f2u(x)

class K:
    def __init__(self, stamps=False):
        self.L = []; self.stamps = stamps; self.uid = 0; self.inp1 = False
    def e(self, s):
        if self.inp1 and OPT['m16'] and s.startswith("v_mfma_f32_32x32x16_bf16"):
            import re
            m = re.match(r"v_mfma_f32_32x32x16_bf16 v\[(\d+):\d+\], (v\[\d+:\d+\]), (v\[\d+:\d+\]), (.*)", s)
            d = int(m.group(1)); c = m.group(4)
            for h in range(2):
                cc = "0" if c == "0" else f"v[{d+4*h}:{d+4*h+3}]"
                self.L.append(f"    v_mfma_f32_16x16x32_bf16 v[{d+4*h}:{d+4*h+3}], {m.group(2)}, {m.group(3)}, {cc}")
            return
        self.L.append("    " + s)
    def c(self, s): self.L.append("    ; " + s)
    def lab(self, s): self.L.append(s + ":")
    def u(self, p):
        self.uid += 1; return f"L_{p}_{self.uid}"
    def stamp(self, k):
        if not self.stamps: return
        self.e("s_memrealtime s[70:71]")
        self.e("s_waitcnt lgkmcnt(0)")
        self.e(f"s_mov_b32 s{72+k}, s70")

def vr(a, n): return f"v[{a}:{a+n-1}]"
def sr(a, n): return f"s[{a}:{a+n-1}]"
MF = "v_mfma_f32_32x32x16_bf16"

S_WAVE, S_RB, S_G, S_NONCE = 22, 23, 24, 25
SRD_WS, SRD_X, SRD_W, SRD_T, SRD_WO = 28, 32, 36, 40, 44
P_AX, P_AW, P_AWO, P_BX, P_BW, P_BWO, P_OUT, P_DBG, P_WS = 4, 6, 8, 10, 12, 14, 16, 18, 20
WS = sr(SRD_WS, 4)

def srd(k, dst, ptr, size):
    k.e(f"s_mov_b32 s{dst}, s{ptr}")
    k.e(f"s_mov_b32 s{dst+1}, s{ptr+1}")
    k.e(f"s_mov_b32 s{dst+2}, 0x{size:x}")
    k.e(f"s_mov_b32 s{dst+3}, 0x20000")

def spin_guard(k, sreg, exit_label):
    k.e(f"s_add_u32 s{sreg}, s{sreg}, 1")
    k.e(f"s_cmp_gt_u32 s{sreg}, {SPIN_MAX}")
    k.e(f"s_cbranch_scc1 {exit_label}")

def poll_flags(k, vaddr, vtmp, name, first_issued=False, sleep=1):
    lp = k.u(name + "_poll"); ex = k.u(name + "_done"); chk = k.u(name + "_chk")
    k.e("s_mov_b32 s60, 0")
    if first_issued: k.e(f"s_branch {chk}")
    k.lab(lp)
    k.e(f"buffer_load_dword v{vtmp}, v{vaddr}, {WS}, 0 offen sc1")
    k.lab(chk)
    spin_guard(k, 60, ex)
    k.e("s_waitcnt vmcnt(0)")
    k.e(f"v_cmp_ne_u32 vcc, s{S_NONCE}, v{vtmp}")
    k.e("s_nop 1")
    k.e(f"s_cbranch_vccz {ex}")
    if OPT['sleep']: k.e(f"s_sleep {OPT['sleep']}")
    k.e(f"s_branch {lp}")
    k.lab(ex)
    k.e("s_waitcnt vmcnt(0)")

def store_flag(k, soff):
    k.e(f"v_mov_b32 v250, s{S_NONCE}")
    k.e("v_mov_b32 v251, 0")
    k.e("s_mov_b64 exec, 1")
    k.e(f"buffer_store_dword v250, v251, {WS}, s{soff} offen sc1")
    k.e("s_mov_b64 exec, -1")

def cvt8(k, dst, src):
    for j in range(4): k.e(f"v_cvt_pk_bf16_f32 v{dst+j}, v{src+2*j}, v{src+2*j+1}")

def phi(k, r, n, t):
    if not OPT['pkphi']:
        for i in range(0, n, 4):
            for j in range(4): k.e(f"v_mul_f32 v{t+j}, s61, v{r+i+j}")
            for j in range(4): k.e(f"v_exp_f32 v{t+j}, v{t+j} clamp")
            for j in range(4): k.e(f"v_max_f32 v{r+i+j}, 0, v{r+i+j}")
            for j in range(4): k.e(f"v_add_f32 v{r+i+j}, s62, v{r+i+j}")
            for j in range(4): k.e(f"v_add_f32 v{r+i+j}, v{t+j}, v{r+i+j}")
        return
    for i in range(0, n, 8):
        for j in range(0, 8, 2): k.e(f"v_pk_mul_f32 {vr(t+j,2)}, {vr(r+i+j,2)}, s[66:67]")
        for j in range(8): k.e(f"v_exp_f32 v{t+j}, v{t+j} clamp")
        for j in range(8): k.e(f"v_max_f32 v{r+i+j}, 0, v{r+i+j}")
        for j in range(0, 8, 2): k.e(f"v_pk_add_f32 {vr(r+i+j,2)}, {vr(r+i+j,2)}, s[62:63]")
        for j in range(0, 8, 2): k.e(f"v_pk_add_f32 {vr(r+i+j,2)}, {vr(r+i+j,2)}, {vr(t+j,2)}")

ACC = 8
BUF = [72, 88, 104, 120]
VXA, VWA = 136, 140
EP = 144
PFD = 208

def rd_x(k, buf, j, t): k.e(f"ds_read_b128 {vr(BUF[buf]+4*t,4)}, v{VXA+j} offset:{t*4096}")
def rd_w(k, buf, j, p, slot):
    for s2 in range(2):
        k.e(f"ds_read_b64_tr_b16 {vr(BUF[buf]+8+4*slot+2*s2,2)}, v{VWA} offset:{p*8192 + j*2048 + s2*512}")
def reads(k, role, buf, j):
    rd_x(k, buf, j, 0); rd_x(k, buf, j, 1)
    if role == 'kv': rd_w(k, buf, j, 1, 0); rd_w(k, buf, j, 2, 1)
    else: rd_w(k, buf, j, 0, 0)

def kstep(k, role, br, j, first=False, noreads=False, wait=None):
    nb = (j + 2) & 3; b = BUF[j]
    if noreads:
        X = [vr(b,4), vr(b+4,4)]; W = [vr(b+8,4), vr(b+12,4)]
        k.e(f"s_waitcnt lgkmcnt({wait})")
        for t in range(2):
            a = ACC + 16*t
            if role == 'kv' and br == 'A': k.e(f"{MF} {vr(a,16)}, {X[t]}, {W[0]}, {vr(a,16)}")
            else: k.e(f"{MF} {vr(a,16)}, {W[0]}, {X[t]}, {vr(a,16)}")
        if role == 'kv':
            for t in range(2):
                a = ACC + 32 + 16*t
                k.e(f"{MF} {vr(a,16)}, {X[t]}, {W[1]}, {vr(a,16)}")
        return
    X = [vr(b,4), vr(b+4,4)]; W = [vr(b+8,4), vr(b+12,4)]
    def C(a): return "0" if first else vr(a,16)
    if role == 'kv':
        k.e("s_waitcnt lgkmcnt(6)")
        for t in range(2):
            a = ACC + 16*t
            if br == 'B': k.e(f"{MF} {vr(a,16)}, {W[0]}, {X[t]}, {C(a)}")
            else:         k.e(f"{MF} {vr(a,16)}, {X[t]}, {W[0]}, {C(a)}")
            if t == 0: rd_x(k, nb, nb, 0); rd_x(k, nb, nb, 1)
            else: rd_w(k, nb, nb, 1, 0)
        for t in range(2):
            a = ACC + 32 + 16*t
            k.e(f"{MF} {vr(a,16)}, {X[t]}, {W[1]}, {C(a)}")
            if t == 0: rd_w(k, nb, nb, 2, 1)
    else:
        k.e("s_waitcnt lgkmcnt(4)")
        for t in range(2):
            a = ACC + 16*t
            k.e(f"{MF} {vr(a,16)}, {W[0]}, {X[t]}, {C(a)}")
            if t == 0: rd_x(k, nb, nb, 0); rd_x(k, nb, nb, 1)
            else: rd_w(k, nb, nb, 0, 0)

def consumer_tile(k, role, br, extra=None):
    lp = k.u("c"+role+br); ex = k.u("cx"+role+br)
    k.inp1 = True
    k.e("s_mov_b32 s48, 0")
    kstep(k, role, br, 0, first=True)
    k.lab(lp)
    k.e("s_add_u32 s49, s49, 1")
    k.e("s_and_b32 s50, s49, 3")
    k.e("s_cmp_eq_u32 s50, 0")
    k.e(f"s_cselect_b32 s50, 0x{(-3*SLOT) & 0xffffffff:x}, s69")
    kstep(k, role, br, 1)
    if extra: extra(k)
    if br == 'A' and role == 'kv':
        sk = k.u("novm")
        k.e(f"s_cmp_eq_u32 s48, {OPT['sigs']-8}")
        k.e(f"s_cbranch_scc0 {sk}")
        k.e("s_waitcnt vmcnt(0)")
        k.lab(sk)
    for j in range(4): k.e(f"v_add_u32 v{VXA+j}, s50, v{VXA+j}")
    k.e(f"v_add_u32 v{VWA}, s50, v{VWA}")
    k.e("s_barrier")
    k.e("s_cmp_lt_u32 s48, 7")
    k.e(f"s_cbranch_scc0 {ex}")
    kstep(k, role, br, 2)
    kstep(k, role, br, 3)
    k.e("s_add_u32 s48, s48, 1")
    kstep(k, role, br, 0)
    k.e(f"s_branch {lp}")
    k.lab(ex)
    n = 6 if role == 'kv' else 4
    kstep(k, role, br, 2, noreads=True, wait=n)
    kstep(k, role, br, 3, noreads=True, wait=0)
    k.inp1 = False

def consumer_setup(k):
    k.e("v_and_b32 v1, 31, v0")
    k.e("v_lshrrev_b32 v2, 5, v0")
    k.e("v_bfe_u32 v3, v0, 1, 3")
    k.e("v_xor_b32 v3, v3, v2")
    k.e("v_lshlrev_b32 v3, 4, v3")
    k.e("v_lshlrev_b32 v1, 7, v1")
    k.e(f"v_add_u32 v{VXA}, v1, v3")
    for j in range(1, 4): k.e(f"v_xor_b32 v{VXA+j}, {j<<5}, v{VXA}")
    k.e("v_bfe_u32 v1, v0, 2, 2")
    k.e("v_and_b32 v2, 3, v0")
    k.e("v_bfe_u32 v3, v0, 4, 1")
    k.e("v_lshrrev_b32 v4, 5, v0")
    k.e("v_lshlrev_b32 v4, 3, v4")
    k.e("v_add_u32 v4, v4, v1")
    k.e("v_lshlrev_b32 v4, 7, v4")
    k.e("v_lshlrev_b32 v3, 1, v3")
    k.e("v_lshrrev_b32 v5, 1, v2")
    k.e("v_add_u32 v3, v3, v5")
    k.e("s_lshl_b32 s48, s27, 2")
    k.e("v_add_u32 v3, s48, v3")
    k.e("v_and_b32 v5, 2, v1")
    k.e("v_lshlrev_b32 v5, 1, v5")
    k.e("v_xor_b32 v3, v3, v5")
    k.e("v_lshlrev_b32 v3, 4, v3")
    k.e("v_and_b32 v2, 1, v2")
    k.e("v_lshlrev_b32 v2, 3, v2")
    k.e("v_add3_u32 v4, v4, v3, v2")
    k.e(f"v_add_u32 v{VWA}, 8192, v4")

def read_nonce(k, va, vb):
    k.e(f"v_mov_b32 v{va}, {NONCE_L}")
    k.e(f"ds_read_b32 v{vb}, v{va}")
    k.e("s_waitcnt lgkmcnt(0)")
    k.e(f"v_readfirstlane_b32 s{S_NONCE}, v{vb}")

def pf_setup(k, pw, px):
    k.e("s_and_b32 s50, s2, 7")
    k.e("s_lshr_b32 s51, s2, 3")
    k.e("v_lshrrev_b32 v5, 2, v0")
    k.e("s_lshl_b32 s52, s51, 4")
    k.e("v_add_u32 v5, s52, v5")
    k.e("v_mul_u32_u24 v5, 3072, v5")
    k.e("v_and_b32 v6, 3, v0")
    k.e("s_lshr_b32 s52, s50, 2")
    k.e("s_lshl_b32 s52, s52, 2")
    k.e("v_add_u32 v6, s52, v6")
    k.e("v_lshlrev_b32 v6, 7, v6")
    k.e("v_add_u32 v5, v5, v6")
    k.e("v_lshlrev_b32 v6, 7, v0")
    k.e("s_and_b32 s52, s50, 3")
    k.e("s_lshl_b32 s52, s52, 9")
    k.e("s_lshl_b32 s53, s51, 4")
    k.e("s_add_u32 s52, s52, s53")
    k.e("s_lshl_b32 s66, s52, 10")
    k.e("s_lshl_b32 s67, s51, 14")
    k.e("s_lshr_b32 s68, s50, 2")

def gen(stamps=False):
    k = K(stamps)
    k.lab(KNAME)
    k.e("s_cmp_ge_u32 s2, 256")
    k.e("s_cbranch_scc1 L_end")
    if stamps: k.e("s_memrealtime s[70:71]")
    if OPT['fixdur']: k.e("s_memrealtime s[100:101]")
    k.e("s_load_dwordx16 s[4:19], s[0:1], 0")
    k.e("s_load_dwordx2 s[20:21], s[0:1], 64")
    k.e("v_lshrrev_b32 v1, 6, v0")
    k.e("v_and_b32 v0, 63, v0")
    k.e(f"v_readfirstlane_b32 s{S_WAVE}, v1")
    k.e("s_and_b32 s26, s2, 7")
    k.e("s_lshr_b32 s27, s2, 3")
    k.e("s_and_b32 s48, s26, 3")
    k.e("s_lshl_b32 s48, s48, 3")
    if OPT['map'] != 1:
        k.e("s_and_b32 s49, s27, 7")
    else:
        k.e("s_lshr_b32 s49, s27, 2")
    k.e(f"s_add_u32 s{S_RB}, s48, s49")
    k.e("s_lshr_b32 s48, s26, 2")
    k.e("s_lshl_b32 s48, s48, 2")
    if OPT['map'] == 0:
        k.e("s_lshr_b32 s49, s27, 3")
    elif OPT['map'] == 2:
        k.e("s_lshr_b32 s49, s27, 3")
        k.e("s_sub_u32 s49, 3, s49")
    elif OPT['map'] >= 3:
        perm = {3: (3, 1, 2, 0), 4: (3, 1, 0, 2), 5: (1, 3, 2, 0)}[OPT['map']]
        tab = sum(v << (4*i) for i, v in enumerate(perm))
        k.e("s_lshr_b32 s49, s27, 3")
        k.e("s_lshl_b32 s49, s49, 2")
        k.e(f"s_lshr_b32 s49, 0x{tab:x}, s49")
        k.e("s_and_b32 s49, s49, 3")
    else:
        k.e("s_and_b32 s49, s27, 3")
    k.e(f"s_add_u32 s{S_G}, s48, s49")
    if OPT['cpf'] >= 3:
        sk = k.u("nocpf")
        k.e(f"s_cmp_eq_u32 s{S_WAVE}, 3")
        k.e(f"s_cbranch_scc0 {sk}")
        k.e(f"s_bfe_u32 s62, s2, 0x{0x30003 if OPT['cpf'] == 3 else 0x20003:x}")
        k.e("s_cmp_eq_u32 s62, 1")
        k.e(f"s_cbranch_scc0 {sk}")
        k.e("s_getpc_b64 s[62:63]")
        k.lab("L_pc")
        k.e("s_and_b32 s62, s62, 0xffffff00")
        k.e("v_lshlrev_b32 v255, 7, v0")
        k.e(f"s_sub_u32 s62, s62, PF_BACK")
        k.e("s_subb_u32 s63, s63, 0")
        for j in range(3):
            k.e("global_load_dword v254, v255, s[62:63]")
            if j < 2: k.e("v_add_u32 v255, 8192, v255")
        k.lab(sk)
    k.e(f"s_cmp_lt_u32 s{S_WAVE}, 4")
    k.e("s_cbranch_scc1 L_consumer")

    loader(k)
    k.e("s_branch L_attn")

    k.lab("L_consumer")
    k.e("s_waitcnt lgkmcnt(0)")
    if OPT['fixdur']: k.e("s_mov_b32 s3, s100")
    if stamps: k.e("s_mov_b32 s72, s70")
    srd(k, SRD_WS, P_WS, 256 << 20)
    srd(k, SRD_T, P_DBG, 256)
    nn = k.u("nononce")
    k.e(f"s_or_b32 s58, s2, s{S_WAVE}")
    k.e("s_cmp_eq_u32 s58, 0")
    k.e(f"s_cbranch_scc0 {nn}")
    k.e("s_memrealtime s[58:59]")
    k.e("v_mov_b32 v2, 0")
    k.e("s_waitcnt lgkmcnt(0)")
    k.e("s_or_b32 s58, s58, 1")
    k.e("v_mov_b32 v3, s58")
    k.e(f"buffer_store_dword v3, v2, {sr(SRD_T,4)}, 0 offen sc1")
    k.lab(nn)
    srd(k, SRD_X, P_AW, 512*3072)
    k.e(f"s_and_b32 s27, s{S_WAVE}, 1")
    consumer_setup(k)
    attn_setup(k)
    k.e("s_mov_b32 s49, 0")
    k.e(f"s_mov_b32 s69, {SLOT}")
    k.e(f"s_cmp_ge_u32 s{S_WAVE}, 2")
    k.e("s_cbranch_scc1 L_qwave")

    if OPT['warmf']:
        k.e(f"s_lshl_b32 s52, s{S_G}, 13")
        k.e(f"s_lshl_b32 s53, s{S_RB}, 1")
        k.e(f"s_add_u32 s53, s53, s{S_WAVE}")
        k.e("s_lshl_b32 s53, s53, 7")
        k.e("s_add_u32 s52, s52, s53")
        k.e(f"s_add_u32 s52, s52, {F1A}")
        k.e("v_mov_b32 v254, 0")
        k.e("s_mov_b64 exec, 1")
        k.e(f"buffer_load_dword v255, v254, {WS}, s52 offen sc1")
        k.e(f"s_lshr_b32 s52, s{S_RB}, 1")
        k.e("s_lshl_b32 s52, s52, 11")
        k.e(f"s_and_b32 s53, s{S_RB}, 1")
        k.e("s_lshl_b32 s53, s53, 3")
        k.e(f"s_add_u32 s53, s53, s{S_G}")
        k.e("s_lshl_b32 s53, s53, 7")
        k.e("s_add_u32 s52, s52, s53")
        k.e(f"s_add_u32 s52, s52, {F2}")
        k.e(f"s_lshl_b32 s53, s{S_G}, 12")
        k.e(f"s_lshl_b32 s54, s{S_RB}, 7")
        k.e("s_add_u32 s53, s53, s54")
        k.e(f"s_add_u32 s53, s53, {F1B}")
        k.e(f"s_cmp_eq_u32 s{S_WAVE}, 0")
        k.e("s_cselect_b32 s52, s52, s53")
        k.e(f"buffer_load_dword v255, v254, {WS}, s52 offen sc1")
        k.e("s_mov_b64 exec, -1")
    k.e("s_barrier")
    k.stamp(1)
    reads(k, 'kv', 0, 0); reads(k, 'kv', 1, 1)
    consumer_tile(k, 'kv', 'B')
    k.stamp(2)
    k.c("B epilogue (kv)")
    read_nonce(k, 2, 3)
    k.e(f"s_lshl_b32 s62, s{S_G}, 2")
    k.e("s_lshl_b32 s63, s27, 1")
    k.e("s_add_u32 s62, s62, s63")
    k.e("s_lshl_b32 s62, s62, 6")
    k.e(f"s_lshl_b32 s63, s{S_RB}, 1")
    k.e("s_add_u32 s62, s62, s63")
    k.e("s_lshl_b32 s62, s62, 10")
    k.e("v_lshlrev_b32 v1, 4, v0")
    k.e("s_lshl_b32 s63, s27, 12")
    k.e(f"s_add_u32 s63, s63, {OK_L}")
    k.e("v_add_u32 v4, s63, v1")
    k.e("v_bfe_u32 v2, v0, 4, 1")
    k.e("v_lshrrev_b32 v3, 5, v0")
    k.e("v_lshlrev_b32 v3, 8, v3")
    k.e("v_and_b32 v5, 15, v0")
    k.e("v_lshlrev_b32 v5, 4, v5")
    k.e("v_add_u32 v3, v3, v5")
    k.e("v_lshlrev_b32 v5, 11, v2")
    k.e("v_add_u32 v5, v5, v3")
    k.e(f"s_add_u32 s63, s63, {OV_L - OK_L}")
    k.e("v_add_u32 v5, s63, v5")
    k.e("v_lshlrev_b32 v2, 16, v2")
    k.e("v_add_u32 v2, v2, v3")
    k.e(f"s_add_u32 s64, s62, {KB_G + 65536}")
    k.e(f"s_add_u32 s65, s62, {VB_G}")
    k.e("s_nop 3")
    for t in range(2):
        KF = EP + 16*t; VF = KF + 8
        cvt8(k, KF, ACC+16*t); cvt8(k, KF+4, ACC+16*t+8)
        cvt8(k, VF, ACC+32+16*t); cvt8(k, VF+4, ACC+32+16*t+8)
        k.e(f"buffer_store_dwordx4 {vr(KF,4)}, v1, {WS}, s62 offen offset:{t*1024} sc1")
        k.e(f"buffer_store_dwordx4 {vr(KF+4,4)}, v1, {WS}, s64 offen offset:{t*1024} sc1")
        k.e(f"buffer_store_dwordx4 {vr(VF,4)}, v2, {WS}, s65 offen offset:{t*1024} sc1")
        k.e(f"buffer_store_dwordx4 {vr(VF+4,4)}, v2, {WS}, s65 offen offset:{t*1024+512} sc1")
        k.e(f"ds_write_b128 v4, {vr(KF,4)} offset:{t*1024}")
        k.e(f"ds_write_b128 v4, {vr(KF+4,4)} offset:{t*1024+2048}")
        k.e(f"ds_write_b128 v5, {vr(VF,4)} offset:{t*1024}")
        k.e(f"ds_write_b128 v5, {vr(VF+4,4)} offset:{t*1024+512}")
    k.stamp(3)
    k.e("s_barrier")
    reads(k, 'kv', 0, 0); reads(k, 'kv', 1, 1)
    consumer_tile(k, 'kv', 'A')
    k.e("s_waitcnt lgkmcnt(0)")
    if OPT.get('x16st'): k.stamp(5)
    if OPT['x16pos'] == 0:
        k.e("s_barrier")
        k.stamp(4)
    k.c("A epilogue (kv)")
    if OPT['kvprio']: k.e("s_setprio 2")
    T = 72
    k.e(f"s_mov_b32 s61, {lit(LOG2E)}")
    k.e(f"s_mov_b32 s62, {lit(1e-6)}")
    k.e("s_mov_b32 s63, s62")
    k.e("s_mov_b32 s66, s61")
    k.e("s_mov_b32 s67, s61")
    PK, VV, ONES = 80, 96, 112
    for j in range(4): k.e(f"v_mov_b32 v{ONES+j}, 0x3f803f80")
    k.e("s_nop 4")
    for t in range(2):
        cvt8(k, VV+8*t, ACC+32+16*t); cvt8(k, VV+8*t+4, ACC+32+16*t+8)
    if OPT['x16pos'] == 1:
        k.e("s_barrier")
        k.stamp(4)
    DKV, DZ = ACC+32, ACC+48
    for t in range(2):
        phi(k, ACC+16*t, 16, T)
        cvt8(k, PK+8*t, ACC+16*t); cvt8(k, PK+8*t+4, ACC+16*t+8)
        k.e("s_nop 1")
        for m in range(2):
            first = (t == 0 and m == 0)
            k.e(f"{MF} {vr(DKV,16)}, {vr(PK+8*t+4*m,4)}, {vr(VV+8*t+4*m,4)}, {'0' if first else vr(DKV,16)}")
            k.e(f"{MF} {vr(DZ,16)}, {vr(ONES,4)}, {vr(PK+8*t+4*m,4)}, {'0' if first else vr(DZ,16)}")
        if OPT['x16pos'] == 2 and t == 0:
            k.e("s_barrier")
            k.stamp(4)
    k.e("s_mov_b32 s64, 0xffff0000")
    k.e("s_mov_b32 s65, 0xffff0000")
    k.e(f"s_lshl_b32 s63, s{S_G}, 1")
    k.e("s_add_u32 s63, s63, s27")
    k.e("s_lshl_b32 s63, s63, 12")
    k.e(f"s_add_u32 s63, s63, {KVACC}")
    k.e("v_lshlrev_b32 v3, 2, v0")
    k.e("v_bfe_i32 v4, v0, 4, 1")
    k.e("s_nop 4")
    RS = 120
    if OPT['bfi']:
        for t in range(8): k.e(f"v_bfi_b32 v{RS+t}, v4, v{DKV+8+t}, v{DKV+t}")
    else:
        for t in range(8): k.e(f"v_cndmask_b32 v{RS+t}, v{DKV+t}, v{DKV+8+t}, s[64:65]")
    for t in range(8): k.e(f"buffer_atomic_add_f32 v{RS+t}, v3, {WS}, s63 offen offset:{t*256}")
    k.e("s_mov_b32 exec_hi, 0")
    k.e(f"buffer_atomic_add_f32 v{DZ}, v3, {WS}, s63 offen offset:2048")
    k.e("s_mov_b64 exec, -1")
    if OPT['kvprio']: k.e("s_setprio 0")
    if OPT['x16pos'] == 3:
        k.e("s_barrier")
        k.stamp(4)
    k.e("s_branch L_e1")

    k.lab("L_qwave")
    k.e("v_mov_b32 v251, 0")
    if OPT['warmp']:
        w3 = k.u("wp3"); we = k.u("wpe")
        k.e(f"s_cmp_eq_u32 s{S_WAVE}, 2")
        k.e(f"s_cbranch_scc0 {w3}")
        k.e("v_min_u32 v254, 3, v0")
        k.e("v_lshlrev_b32 v254, 21, v254")
        k.e("s_lshl_b32 s52, s2, 8")
        k.e("s_mov_b64 exec, 15")
        k.e(f"buffer_load_dword v255, v254, {WS}, s52 offen sc1")
        k.e("s_mov_b64 exec, -1")
        k.e(f"s_branch {we}")
        k.lab(w3)
        if OPT['warmp'] >= 2:
            srd(k, SRD_W, P_OUT, 4 << 20)
            k.e("v_min_u32 v254, 1, v0")
            k.e("v_lshlrev_b32 v254, 21, v254")
            k.e("s_lshl_b32 s52, s2, 8")
            k.e("s_mov_b64 exec, 3")
            k.e(f"buffer_load_dword v255, v254, {sr(SRD_W,4)}, s52 offen")
            k.e("s_mov_b64 exec, -1")
        k.lab(we)
    k.e("s_barrier")
    k.stamp(1)
    reads(k, 'q', 0, 0); reads(k, 'q', 1, 1)
    def pf_extra(k):
        ex = k.u("pfx"); w3 = k.u("pfw3")
        n1 = k.u("nn1"); n2 = k.u("nn2")
        k.e(f"s_cmp_eq_u32 s{S_WAVE}, 2")
        k.e(f"s_cbranch_scc0 {n2}")
        k.e("s_cmp_eq_u32 s48, 1")
        k.e(f"s_cbranch_scc0 {n1}")
        k.e(f"buffer_load_dword v7, v251, {sr(SRD_T,4)}, 0 offen sc1")
        k.lab(n1)
        k.e("s_cmp_eq_u32 s48, 6")
        k.e(f"s_cbranch_scc0 {n2}")
        lp = k.u("np"); npx = k.u("npx"); chk = k.u("npc")
        k.e("s_mov_b32 s60, 0")
        k.e(f"s_branch {chk}")
        k.lab(lp)
        k.e(f"buffer_load_dword v7, v251, {sr(SRD_T,4)}, 0 offen sc1")
        k.lab(chk)
        spin_guard(k, 60, npx)
        k.e("s_waitcnt vmcnt(0)")
        k.e("v_readfirstlane_b32 s58, v7")
        k.e("s_nop 0")
        k.e("s_cmp_eq_u32 s58, 0")
        k.e(f"s_cbranch_scc1 {lp}")
        k.lab(npx)
        k.e("s_waitcnt vmcnt(0)")
        k.e(f"v_mov_b32 v250, {NONCE_L}")
        k.e("ds_write_b32 v250, v7")
        k.lab(n2)
    consumer_tile(k, 'q', 'B', pf_extra)
    k.stamp(2)
    k.c("B epilogue (q)")
    read_nonce(k, 2, 3)
    k.e(f"s_mov_b32 s61, {lit(CS)}")
    k.e("v_lshlrev_b32 v1, 4, v0")
    k.e("s_lshl_b32 s63, s27, 12")
    k.e(f"s_add_u32 s63, s63, {Q_L}")
    k.e("v_add_u32 v4, s63, v1")
    k.e("s_nop 6")
    for t in range(2):
        for i in range(16): k.e(f"v_mul_f32 v{ACC+16*t+i}, s61, v{ACC+16*t+i}")
        QF = EP + 8*t
        cvt8(k, QF, ACC+16*t); cvt8(k, QF+4, ACC+16*t+8)
        k.e(f"ds_write_b128 v4, {vr(QF,4)} offset:{t*1024}")
        k.e(f"ds_write_b128 v4, {vr(QF+4,4)} offset:{t*1024+2048}")
    k.stamp(3)
    k.e("s_barrier")
    reads(k, 'q', 0, 0); reads(k, 'q', 1, 1)
    consumer_tile(k, 'q', 'A')
    k.e("s_waitcnt lgkmcnt(0)")
    if OPT['x16pos'] < 2:
        k.e("s_barrier")
        k.stamp(4)
    k.c("A epilogue (q)")
    k.e(f"s_mov_b32 s61, {lit(LOG2E)}")
    k.e(f"s_mov_b32 s62, {lit(1e-6)}")
    k.e("s_mov_b32 s63, s62")
    k.e("s_mov_b32 s66, s61")
    k.e("s_mov_b32 s67, s61")
    k.e("v_lshlrev_b32 v1, 4, v0")
    k.e("s_lshl_b32 s65, s27, 12")
    k.e(f"s_add_u32 s65, s65, {PQ_L}")
    k.e("v_add_u32 v4, s65, v1")
    k.e("s_nop 6")
    for t in range(2):
        phi(k, ACC+16*t, 16, 72)
        QF = EP + 8*t
        cvt8(k, QF, ACC+16*t); cvt8(k, QF+4, ACC+16*t+8)
        k.e(f"ds_write_b128 v4, {vr(QF,4)} offset:{t*1024}")
        k.e(f"ds_write_b128 v4, {vr(QF+4,4)} offset:{t*1024+2048}")
        if OPT['x16pos'] == 2 and t == 0:
            k.e("s_barrier")
            k.stamp(4)
    k.e("s_waitcnt lgkmcnt(0)")
    if OPT['x16pos'] == 3:
        k.e("s_barrier")
        k.stamp(4)
    k.lab("L_e1")

    k.lab("L_attn")
    if OPT['prio']:
        sk = k.u("prio")
        k.e(f"s_cmp_ge_u32 s{S_WAVE}, 4")
        k.e(f"s_cbranch_scc{0 if OPT['prio'] == 1 else 1} {sk}")
        k.e("s_setprio 1")
        k.lab(sk)
    k.stamp(7)
    attention(k)
    k.stamp(9)
    apart(k)
    k.stamp(10)
    k.e("s_waitcnt vmcnt(0) lgkmcnt(0)")
    k.e("s_barrier")
    k.stamp(11)
    sk = k.u("nof2")
    k.e(f"s_cmp_eq_u32 s{S_WAVE}, 4")
    k.e(f"s_cbranch_scc0 {sk}")
    k.e(f"s_lshr_b32 s48, s{S_RB}, 1")
    k.e("s_lshl_b32 s48, s48, 11")
    k.e(f"s_and_b32 s49, s{S_RB}, 1")
    k.e("s_lshl_b32 s49, s49, 3")
    k.e(f"s_add_u32 s49, s49, s{S_G}")
    k.e("s_lshl_b32 s49, s49, 7")
    k.e("s_add_u32 s48, s48, s49")
    k.e(f"s_add_u32 s48, s48, {F2}")
    store_flag(k, 48)
    k.lab(sk)
    p3(k)
    k.lab("L_fin")
    if OPT['fixdur']:
        lp = k.u("fix")
        k.lab(lp)
        k.e("s_memrealtime s[90:91]")
        k.e("s_waitcnt lgkmcnt(0)")
        k.e("s_sub_u32 s90, s90, s3")
        k.e(f"s_cmp_lt_u32 s90, {OPT['fixdur']}")
        k.e(f"s_cbranch_scc1 {lp}")
    if stamps:
        k.stamp(13)
        k.e(f"s_lshl_b32 s48, s2, 3")
        k.e(f"s_add_u32 s48, s48, s{S_WAVE}")
        k.e("s_lshl_b32 s48, s48, 6")
        k.e(f"s_add_u32 s48, s48, {STAMP}")
        k.e("v_mov_b32 v9, 0")
        for j in range(16):
            k.e(f"v_mov_b32 v8, s{72+j}")
            k.e(f"buffer_store_dword v8, v9, {WS}, s48 offen offset:{4*j}")
            k.e("s_nop 0")
    if stamps and OPT['dbgstamps']:
        srd(k, SRD_T, P_DBG, 256)
        for wg, base in ((8, 1), (200, 8)):
            sk = k.u("nodbg")
            k.e(f"s_cmp_eq_u32 s2, {wg}")
            k.e(f"s_cbranch_scc0 {sk}")
            k.e(f"s_cmp_eq_u32 s{S_WAVE}, 0")
            k.e(f"s_cbranch_scc0 {sk}")
            k.e("v_mov_b32 v9, 0")
            for n, j in enumerate((1, 2, 4, 9, 10, 11, 13)):
                k.e(f"s_sub_u32 s48, s{72+j}, s72")
                k.e("v_mov_b32 v8, s48")
                k.e(f"buffer_store_dword v8, v9, {sr(SRD_T,4)}, 0 offen offset:{4*(base+n)}")
                k.e("s_nop 0")
            k.lab(sk)
    if OPT['stagest']:
        sk = k.u("nost")
        k.e(f"s_cmp_eq_u32 s{S_WAVE}, 4")
        k.e(f"s_cbranch_scc0 {sk}")
        k.e("s_lshl_b32 s48, s2, 8")
        k.e(f"s_add_u32 s48, s48, {STAMP + (1<<19)}")
        k.e("v_lshlrev_b32 v9, 2, v0")
        k.e(f"buffer_store_dword v252, v9, {WS}, s48 offen")
        k.lab(sk)
    k.lab("L_end")
    k.e("s_endpgm")
    return k

def issue_stage(k):
    k.e("s_lshl_b32 s52, s59, 7")
    k.e("s_mul_i32 s53, s59, 196608")
    k.e("s_mov_b32 m0, s51")
    k.e("s_add_u32 s54, s53, 23552")
    k.e(f"buffer_load_dwordx4 v1, {sr(SRD_X,4)}, s52 offen lds")
    k.e(f"buffer_load_dwordx4 v2, {sr(SRD_X,4)}, s52 offen offset:1024 lds")
    for p in range(3):
        k.e(f"s_add_u32 s55, s51, {8192 + p*8192}")
        k.e("s_mov_b32 m0, s55")
        if p: k.e(f"s_add_u32 s56, s53, {p*1024}"); so0 = "s56"
        else: so0 = "s53"; k.e("s_nop 0")
        k.e(f"buffer_load_dwordx4 v3, {sr(SRD_W,4)}, {so0} offen lds")
        if p: k.e(f"s_add_u32 s56, s54, {p*1024}"); so1 = "s56"
        else: so1 = "s54"
        k.e(f"buffer_load_dwordx4 v3, {sr(SRD_W,4)}, {so1} offen offset:1024 lds")
    k.e("s_add_u32 s57, s57, 1")
    k.e("s_add_u32 s59, s59, 1")
    k.e("s_and_b32 s59, s59, 7")
    k.e(f"s_add_u32 s51, s51, {SLOT}")
    k.e("s_and_b32 s58, s57, 3")
    sk = k.u("nowrap")
    k.e("s_cmp_eq_u32 s58, 0")
    k.e(f"s_cbranch_scc0 {sk}")
    k.e(f"s_sub_u32 s51, s51, {4*SLOT}")
    k.lab(sk)
    sk2 = k.u("nosw")
    k.e("s_cmp_eq_u32 s57, 8")
    k.e(f"s_cbranch_scc0 {sk2}")
    srd(k, SRD_X, P_AX, 2 << 20)
    srd(k, SRD_W, P_AW, 512*3072)
    k.e("s_mov_b32 s59, s61")
    k.lab(sk2)

def pf0(k):
    k.e("s_and_b32 s50, s2, 7")
    k.e("s_lshr_b32 s52, s2, 3")
    wx = k.u("pf0x"); ex = k.u("pf0e")
    k.e("s_cmp_lt_u32 s26, 3")
    k.e(f"s_cbranch_scc0 {wx}")
    srd(k, SRD_T, P_AW, 512*3072)
    k.e("v_lshrrev_b32 v5, 2, v0")
    k.e("s_lshl_b32 s53, s52, 4")
    k.e("v_add_u32 v5, s53, v5")
    k.e("v_mul_u32_u24 v5, 3072, v5")
    k.e("v_and_b32 v6, 3, v0")
    k.e("s_lshr_b32 s53, s50, 2")
    k.e("s_lshl_b32 s53, s53, 2")
    k.e("v_add_u32 v6, s53, v6")
    k.e("v_lshlrev_b32 v6, 7, v6")
    k.e("v_add_u32 v5, v5, v6")
    k.e("s_lshl_b32 s53, s26, 10")
    k.e(f"buffer_load_dword v6, v5, {sr(SRD_T,4)}, s53 offen")
    k.e(f"buffer_load_dword v7, v5, {sr(SRD_T,4)}, s53 offen")
    k.e(f"s_branch {ex}")
    k.lab(wx)
    srd(k, SRD_T, P_AX, 2 << 20)
    k.e("s_and_b32 s53, s50, 3")
    k.e("s_lshl_b32 s53, s53, 9")
    k.e("s_lshl_b32 s54, s52, 4")
    k.e("s_add_u32 s53, s53, s54")
    k.e("s_lshl_b32 s53, s53, 10")
    k.e("v_lshlrev_b32 v5, 7, v0")
    k.e(f"buffer_load_dword v6, v5, {sr(SRD_T,4)}, s53 offen")
    k.e("s_add_u32 s53, s53, 8192")
    k.e(f"buffer_load_dword v7, v5, {sr(SRD_T,4)}, s53 offen")
    k.lab(ex)

def pfsetup(k):
    k.e("s_and_b32 s50, s2, 7")
    k.e("s_lshr_b32 s52, s2, 3")
    k.e("s_mov_b32 s66, 1")
    wx = k.u("pfwx"); wo = k.u("pfwo"); ex = k.u("pfex")
    k.e("s_cmp_lt_u32 s26, 2")
    k.e(f"s_cbranch_scc0 {wx}")
    srd(k, SRD_T, P_BW, 512*3072)
    k.e("v_min_u32 v4, 11, v0")
    k.e("v_lshrrev_b32 v5, 2, v4")
    k.e("v_lshlrev_b32 v5, 10, v5")
    k.e("v_and_b32 v4, 3, v4")
    k.e("s_lshr_b32 s53, s50, 2")
    k.e("s_lshl_b32 s53, s53, 2")
    k.e("v_add_u32 v4, s53, v4")
    k.e("v_lshlrev_b32 v4, 7, v4")
    k.e("s_lshl_b32 s53, s52, 1")
    k.e("s_add_u32 s53, s53, s26")
    k.e("s_mul_i32 s53, s53, 3072")
    k.e("v_add3_u32 v4, v4, v5, s53")
    k.e("s_mov_b32 s65, 196608")
    k.e("s_mov_b32 s64, 196608")
    k.e(f"s_branch {ex}")
    k.lab(wx)
    k.e("s_cmp_eq_u32 s26, 2")
    k.e(f"s_cbranch_scc0 {wo}")
    srd(k, SRD_T, P_BX, 2 << 20)
    k.e("v_min_u32 v4, 15, v0")
    k.e("s_and_b32 s53, s50, 3")
    k.e("s_lshl_b32 s53, s53, 9")
    k.e("s_lshl_b32 s54, s52, 4")
    k.e("s_add_u32 s53, s53, s54")
    k.e("v_add_u32 v4, s53, v4")
    k.e("v_lshlrev_b32 v4, 10, v4")
    k.e("s_mov_b32 s65, 128")
    k.e("s_mov_b32 s64, 128")
    k.e(f"s_branch {ex}")
    k.lab(wo)
    k.e("s_lshr_b32 s53, s50, 2")
    k.e("s_cmp_eq_u32 s53, 0")
    k.e(f"s_cselect_b32 s{SRD_T}, s{P_AWO}, s{P_BWO}")
    k.e(f"s_cselect_b32 s{SRD_T+1}, s{P_AWO+1}, s{P_BWO+1}")
    k.e(f"s_mov_b32 s{SRD_T+2}, 0x{512*1024:x}")
    k.e(f"s_mov_b32 s{SRD_T+3}, 0x20000")
    k.e("v_min_u32 v4, 8, v0")
    k.e("v_lshlrev_b32 v4, 7, v4")
    k.e("s_lshl_b32 s53, s52, 14")
    k.e("v_add_u32 v4, s53, v4")
    k.e("s_mov_b32 s65, 1152")
    k.e("s_mov_b32 s64, 0")
    k.lab(ex)

def pf_issue(k):
    sk = k.u("pfsw")
    k.e("s_cmp_eq_u32 s66, 8")
    k.e(f"s_cbranch_scc0 {sk}")
    k.e("s_cmp_lt_u32 s26, 3")
    k.e(f"s_cbranch_scc0 {sk}")
    k.e("s_mov_b32 s64, 0")
    k.e("s_cmp_lt_u32 s26, 2")
    k.e(f"s_cselect_b32 s{SRD_T}, s{P_AW}, s{P_AX}")
    k.e(f"s_cselect_b32 s{SRD_T+1}, s{P_AW+1}, s{P_AX+1}")
    k.lab(sk)
    k.e(f"buffer_load_dword v5, v4, {sr(SRD_T,4)}, s64 offen")
    k.e("s_add_u32 s64, s64, s65")
    k.e("s_add_u32 s66, s66, 1")

def rot_value(k, mode, d):
    if mode >= 10:
        o = k.u("rot3"); e = k.u("rote")
        k.e(f"s_cmp_eq_u32 s{S_G}, 3")
        k.e(f"s_cbranch_scc1 {o}")
        rot_value(k, 4, d)
        k.e(f"s_branch {e}")
        k.lab(o)
        rot_value(k, mode - 10, d)
        k.lab(e)
        return
    if mode == 8:
        k.e(f"s_and_b32 s{d}, s{S_G}, 3"); k.e(f"s_lshl_b32 s{d}, s{d}, 1"); k.e(f"s_add_u32 s{d}, s{d}, s{S_RB}"); k.e(f"s_and_b32 s{d}, s{d}, 7")
    elif mode == 4:
        k.e(f"s_add_u32 s{d}, s{S_G}, s{S_RB}"); k.e(f"s_and_b32 s{d}, s{d}, 3"); k.e(f"s_lshl_b32 s{d}, s{d}, 1")
    elif mode == 2:
        k.e(f"s_add_u32 s{d}, s{S_G}, s{S_RB}"); k.e(f"s_and_b32 s{d}, s{d}, 1"); k.e(f"s_lshl_b32 s{d}, s{d}, 2")
    elif mode == 5:
        k.e(f"s_add_u32 s{d}, s{S_G}, s{S_RB}"); k.e(f"s_and_b32 s{d}, s{d}, 3"); k.e(f"s_lshl_b32 s{d}, s{d}, 1")
        k.e(f"s_bfe_u32 s62, s{S_RB}, 0x10002"); k.e(f"s_add_u32 s{d}, s{d}, s62")
    elif mode == 6:
        k.e(f"s_and_b32 s{d}, s{S_RB}, 3"); k.e(f"s_lshl_b32 s{d}, s{d}, 1")
    elif mode == 7:
        k.e(f"s_lshr_b32 s{d}, s{S_RB}, 1"); k.e(f"s_add_u32 s{d}, s{d}, s{S_G}"); k.e(f"s_and_b32 s{d}, s{d}, 3"); k.e(f"s_lshl_b32 s{d}, s{d}, 1")
    else:
        k.e(f"s_mov_b32 s{d}, 0")

def loader(k):
    if OPT['ldprio']: k.e(f"s_setprio {OPT['ldprio']}")
    k.e(f"s_sub_u32 s26, s{S_WAVE}, 4")
    k.e("v_lshrrev_b32 v4, 3, v0")
    k.e("v_and_b32 v5, 7, v0")
    k.e("v_lshrrev_b32 v6, 1, v4")
    k.e("v_xor_b32 v7, v5, v6")
    k.e("v_lshlrev_b32 v7, 4, v7")
    k.e(f"s_lshl_b32 s48, s{S_RB}, 6")
    k.e("s_lshl_b32 s49, s26, 4")
    k.e("s_add_u32 s48, s48, s49")
    k.e("v_add_u32 v1, s48, v4")
    k.e("v_lshlrev_b32 v1, 10, v1")
    k.e("v_add_u32 v2, 7168, v1")
    k.e("v_add_u32 v1, v1, v7")
    k.e("v_xor_b32 v7, 64, v7")
    k.e("v_add_u32 v2, v2, v7")
    k.e("v_add_u32 v3, s49, v4")
    k.e("v_mul_u32_u24 v3, 3072, v3")
    k.e("v_and_b32 v6, 2, v4")
    k.e("v_lshlrev_b32 v6, 1, v6")
    k.e("v_xor_b32 v6, v5, v6")
    k.e("v_lshlrev_b32 v6, 4, v6")
    k.e(f"s_lshl_b32 s49, s{S_G}, 7")
    k.e("v_add3_u32 v3, v3, v6, s49")
    k.e("s_lshl_b32 s51, s26, 11")
    k.e("s_mov_b32 s57, 0")
    rot_value(k, OPT['rot'], 59)
    k.e("s_waitcnt lgkmcnt(0)")
    if OPT['fixdur']: k.e("s_mov_b32 s3, s100")
    if k.stamps: k.e("s_mov_b32 s72, s70")
    srd(k, SRD_X, P_BX, 2 << 20)
    srd(k, SRD_W, P_BW, 512*3072)
    issue_stage(k)
    rot_value(k, OPT['rotA'] if OPT['rotA'] >= 0 else OPT['rot'], 61)
    if OPT['tpf']:
        pfsetup(k)
        for j in range(4): pf_issue(k)
    else:
        if OPT['pf0']: pf0(k)
        issue_stage(k)
    srd(k, SRD_WS, P_WS, 256 << 20)
    sk = k.u("nopf")
    k.e("s_mov_b32 s60, 0")
    k.e("s_cmp_eq_u32 s26, 3")
    k.e(f"s_cbranch_scc0 {sk}")
    if OPT['cpf'] == 1:
        k.e("s_bfe_u32 s62, s2, 0x30003")
        k.e("s_cmp_eq_u32 s62, 0")
        k.e(f"s_cbranch_scc0 {sk}")
    if OPT['cpf'] >= 2:
        k.e(f"s_branch {sk}")
    k.e("s_getpc_b64 s[62:63]")
    if OPT['cpf'] < 3: k.lab("L_pc")
    k.e("s_and_b32 s62, s62, 0xffffff00")
    k.e("v_lshlrev_b32 v8, 7, v0")
    k.e(f"s_sub_u32 s62, s62, PF_BACK")
    k.e("s_subb_u32 s63, s63, 0")
    k.e("global_load_dword v9, v8, s[62:63]")
    k.e("v_add_u32 v8, 8192, v8")
    k.e("global_load_dword v10, v8, s[62:63]")
    k.e("v_add_u32 v8, 8192, v8")
    k.e("global_load_dword v11, v8, s[62:63]")
    k.e("s_mov_b32 s60, 1")
    k.lab(sk)
    if OPT['pfm'] == 1 and OPT['pfwo']:
        sk = k.u("nopfw")
        k.e("s_cmp_eq_u32 s26, 1")
        k.e(f"s_cbranch_scc0 {sk}")
        k.e("s_cmp_lt_u32 s2, 128")
        k.e(f"s_cselect_b32 s{SRD_T}, s{P_AWO}, s{P_BWO}")
        k.e(f"s_cselect_b32 s{SRD_T+1}, s{P_AWO+1}, s{P_BWO+1}")
        k.e(f"s_mov_b32 s{SRD_T+2}, 0x{512*1024:x}")
        k.e(f"s_mov_b32 s{SRD_T+3}, 0x20000")
        k.e("s_and_b32 s62, s2, 127")
        k.e("s_lshl_b32 s62, s62, 12")
        k.e("v_min_u32 v8, 31, v0")
        k.e("v_lshlrev_b32 v8, 7, v8")
        k.e(f"buffer_load_dword v9, v8, {sr(SRD_T,4)}, s62 offen")
        k.e("s_mov_b32 s60, 2")
        k.lab(sk)
    if OPT['pfm'] == 1:
        sk = k.u("nopfm"); w7 = k.u("pfm7")
        k.e("s_cmp_ge_u32 s26, 2")
        k.e(f"s_cbranch_scc0 {sk}")
        k.e("s_cmp_eq_u32 s26, 3")
        k.e(f"s_cbranch_scc1 {w7}")
        srd(k, SRD_T, P_AX, 2 << 20)
        k.e("s_lshl_b32 s62, s2, 13")
        k.e("v_lshlrev_b32 v8, 7, v0")
        k.e(f"buffer_load_dword v9, v8, {sr(SRD_T,4)}, s62 offen")
        k.e("s_mov_b32 s60, 2")
        k.e(f"s_branch {sk}")
        k.lab(w7)
        srd(k, SRD_T, P_AW, 512*3072)
        k.e("s_mul_i32 s62, s2, 6144")
        k.e("v_min_u32 v8, 47, v0")
        k.e("v_lshlrev_b32 v8, 7, v8")
        k.e(f"buffer_load_dword v9, v8, {sr(SRD_T,4)}, s62 offen")
        k.e("s_mov_b32 s60, 2")
        k.lab(sk)
    attn_setup(k)
    ny = 4 if OPT['tpf'] else (10 if OPT['pf0'] else 8)
    sk = k.u("w7"); sk2 = k.u("w7b")
    k.e("s_cmp_eq_u32 s60, 1")
    k.e(f"s_cbranch_scc1 {sk}")
    if OPT['pfm'] == 1:
        sk3 = k.u("w7c")
        k.e("s_cmp_eq_u32 s60, 2")
        k.e(f"s_cbranch_scc0 {sk3}")
        k.e(f"s_waitcnt vmcnt({ny+1})")
        k.e(f"s_branch {sk2}")
        k.lab(sk3)
    k.e(f"s_waitcnt vmcnt({ny})")
    k.e(f"s_branch {sk2}")
    k.lab(sk)
    k.e(f"s_waitcnt vmcnt({ny+3})")
    k.lab(sk2)
    k.e("s_barrier")
    if OPT['tpf']: issue_stage(k)
    issue_stage(k)
    sk = k.u("nozero")
    k.e(f"s_cmp_eq_u32 s{S_RB}, 0")
    k.e(f"s_cbranch_scc0 {sk}")
    k.e("s_cmp_lt_u32 s26, 2")
    k.e(f"s_cbranch_scc0 {sk}")
    k.e(f"s_lshl_b32 s48, s{S_G}, 1")
    k.e("s_add_u32 s48, s48, s26")
    k.e("s_lshl_b32 s48, s48, 12")
    k.e(f"s_add_u32 s48, s48, {KVACC}")
    for j in range(4): k.e(f"v_mov_b32 v{12+j}, 0")
    k.e("v_lshlrev_b32 v8, 4, v0")
    for j in range(3): k.e(f"buffer_store_dwordx4 v[12:15], v8, {WS}, s48 offen offset:{j*1024} sc1")
    k.e("s_waitcnt vmcnt(3)")
    k.lab(sk)
    k.stamp(1)
    k.e("s_mov_b32 s98, 0")
    k.e("s_mov_b32 s48, 0")
    lp = k.u("ldloop")
    k.lab(lp)
    w8 = k.u("w8"); w9 = k.u("w9"); wd = k.u("wd")
    k.e("s_cmp_eq_u32 s48, 7")
    k.e(f"s_cbranch_scc1 {wd}")
    if OPT['pfm'] >= 10:
        nwm = k.u("nwm")
        k.e(f"s_sub_u32 s49, s48, {OPT['pfm']-10+1}")
        k.e("s_cmp_lt_u32 s49, 2")
        k.e(f"s_cbranch_scc0 {nwm}")
        k.e("s_cmp_ge_u32 s26, 2")
        k.e(f"s_cbranch_scc0 {nwm}")
        k.e("s_waitcnt vmcnt(9)")
        k.e(f"s_branch {wd}")
        k.lab(nwm)
    if OPT['pf3']:
        nw3 = k.u("nw3")
        k.e(f"s_sub_u32 s49, s48, {OPT['pf3']+1}")
        k.e("s_cmp_lt_u32 s49, 2")
        k.e(f"s_cbranch_scc0 {nw3}")
        k.e("s_cmp_eq_u32 s98, 1")
        k.e(f"s_cbranch_scc0 {nw3}")
        k.e("s_waitcnt vmcnt(9)")
        k.e(f"s_branch {wd}")
        k.lab(nw3)
    if OPT['pf4']:
        w10 = k.u("w10"); nw = k.u("nw10")
        k.e(f"s_sub_u32 s49, s48, {OPT['pf4']+1}")
        k.e("s_cmp_lt_u32 s49, 2")
        k.e(f"s_cbranch_scc0 {nw}")
        k.e("s_waitcnt vmcnt(10)")
        k.e(f"s_branch {wd}")
        k.lab(nw)
    if not OPT['tpf']: k.e(f"s_branch {w8}")
    k.e("s_cmp_eq_u32 s48, 0")
    k.e(f"s_cbranch_scc1 {w8}")
    k.e("s_cmp_eq_u32 s48, 1")
    k.e(f"s_cbranch_scc1 {w9}")
    k.e("s_cmp_eq_u32 s48, 12")
    k.e(f"s_cbranch_scc1 {w9}")
    k.e("s_waitcnt vmcnt(10)")
    k.e(f"s_branch {wd}")
    k.lab(w9)
    k.e("s_waitcnt vmcnt(9)")
    k.e(f"s_branch {wd}")
    k.lab(w8)
    k.e("s_waitcnt vmcnt(8)")
    k.lab(wd)
    k.e("s_barrier")
    if OPT['stagest']:
        k.e("s_memrealtime s[90:91]"); k.e("s_waitcnt lgkmcnt(0)")
        k.e("s_mov_b32 m0, s48")
        k.e("s_nop 0")
        k.e("v_writelane_b32 v252, s90, m0")
    sk = k.u("nonn")
    k.e("s_cmp_eq_u32 s48, 7")
    k.e(f"s_cbranch_scc0 {sk}")
    read_nonce(k, 8, 9)
    k.lab(sk)
    sk = k.u("nosig2")
    k.e(f"s_cmp_eq_u32 s48, {OPT['sigs']}")
    k.e(f"s_cbranch_scc0 {sk}")
    k.e("s_cmp_eq_u32 s26, 0")
    k.e(f"s_cbranch_scc0 {sk}")
    k.e(f"s_lshl_b32 s49, s{S_G}, 12")
    k.e(f"s_lshl_b32 s50, s{S_RB}, 7")
    k.e("s_add_u32 s49, s49, s50")
    k.e(f"s_add_u32 s49, s49, {F1B}")
    store_flag(k, 49)
    k.lab(sk)
    if OPT['late9']:
        sk6 = k.u("skip6"); go6 = k.u("go6")
        k.e("s_cmp_eq_u32 s48, 6")
        if OPT['late9'] == 2:
            k.e(f"s_cbranch_scc0 {go6}")
            k.e(f"s_cmp_eq_u32 s{S_G}, 3")
        k.e(f"s_cbranch_scc1 {sk6}")
        k.lab(go6)
    issue_stage(k)
    if OPT['late9']: k.lab(sk6)
    if OPT['pfm'] >= 10:
        sk = k.u("nopfm"); w7 = k.u("pfm7")
        k.e(f"s_cmp_eq_u32 s48, {OPT['pfm']-10}")
        k.e(f"s_cbranch_scc0 {sk}")
        k.e("s_cmp_ge_u32 s26, 2")
        k.e(f"s_cbranch_scc0 {sk}")
        k.e("s_cmp_eq_u32 s26, 3")
        k.e(f"s_cbranch_scc1 {w7}")
        srd(k, SRD_T, P_AX, 2 << 20)
        k.e("s_lshl_b32 s62, s2, 13")
        k.e("v_lshlrev_b32 v8, 7, v0")
        k.e(f"buffer_load_dword v9, v8, {sr(SRD_T,4)}, s62 offen")
        k.e(f"s_branch {sk}")
        k.lab(w7)
        srd(k, SRD_T, P_AW, 512*3072)
        k.e("s_mul_i32 s62, s2, 6144")
        k.e("v_min_u32 v8, 47, v0")
        k.e("v_lshlrev_b32 v8, 7, v8")
        k.e(f"buffer_load_dword v9, v8, {sr(SRD_T,4)}, s62 offen")
        k.lab(sk)
    if OPT['pf3']:
        skp = k.u("nopf3")
        k.e(f"s_cmp_eq_u32 s48, {OPT['pf3']}")
        k.e(f"s_cbranch_scc0 {skp}")
        k.e("s_cmp_eq_u32 s26, 3")
        k.e(f"s_cbranch_scc0 {skp}")
        k.e(f"s_cmp_lt_u32 s{S_G}, 3")
        k.e(f"s_cbranch_scc0 {skp}")
        srd(k, SRD_T, P_AW, 512*3072)
        k.e(f"s_and_b32 s49, s{S_RB}, 7")
        k.e("s_mul_i32 s49, s49, 3")
        k.e(f"s_add_u32 s49, s49, s{S_G}")
        k.e("s_lshl_b32 s49, s49, 6")
        k.e("v_add_u32 v5, s49, v0")
        k.e("v_mul_u32_u24 v6, 21846, v5")
        k.e("v_lshrrev_b32 v6, 16, v6")
        k.e("v_mul_u32_u24 v7, 3, v6")
        k.e("v_sub_u32 v7, v5, v7")
        k.e("v_mul_u32_u24 v6, 3072, v6")
        k.e("v_lshlrev_b32 v7, 10, v7")
        k.e("v_add3_u32 v5, v6, v7, 384") if False else None
        k.e("v_add_u32 v5, v6, v7")
        k.e("v_add_u32 v5, 384, v5")
        k.e(f"buffer_load_dword v6, v5, {sr(SRD_T,4)}, 0 offen")
        k.e("s_mov_b32 s98, 1")
        k.lab(skp)
    if OPT['pf4']:
        skp = k.u("nopf4")
        k.e(f"s_cmp_eq_u32 s48, {OPT['pf4']}")
        k.e(f"s_cbranch_scc0 {skp}")
        pf0(k)
        k.lab(skp)
    sk = k.u("nosig")
    k.e("s_cmp_eq_u32 s48, 7")
    k.e(f"s_cbranch_scc0 {sk}")
    if OPT['late9'] == 1: issue_stage(k)
    if OPT['late9'] == 2:
        l9 = k.u("l9")
        k.e(f"s_cmp_eq_u32 s{S_G}, 3")
        k.e(f"s_cbranch_scc0 {l9}")
        issue_stage(k)
        k.lab(l9)
    k.e("s_waitcnt vmcnt(16)")
    k.e("s_barrier")
    k.lab(sk)

    if OPT['tpf']:
        sk = k.u("nopfi")
        k.e("s_cmp_le_u32 s48, 10")
        k.e(f"s_cbranch_scc0 {sk}")
        pf_issue(k)
        k.lab(sk)
    k.e("s_add_u32 s48, s48, 1")
    k.e("s_cmp_lt_u32 s48, 12")
    k.e(f"s_cbranch_scc1 {lp}")
    k.e(f"s_sub_u32 s48, s{S_RB}, 4")
    k.e("v_add_u32 v8, s48, v0")
    k.e("v_max_i32 v8, 0, v8")
    k.e("v_cmp_gt_u32 vcc, 4, v0")
    k.e(f"s_lshl_b32 s49, s{S_G}, 12")
    k.e(f"s_add_u32 s49, s49, {F1B}")
    k.e("v_cndmask_b32 v8, 0, v8, vcc")
    k.e("v_lshlrev_b32 v8, 7, v8")
    k.e("v_add_u32 v8, s49, v8")
    k.e("s_cmp_eq_u32 s26, 0")
    k.e("s_cselect_b32 s62, 31, 15")
    k.e("s_mov_b32 s63, 0")
    k.e("s_waitcnt vmcnt(8)");  k.e("s_barrier")
    k.e("s_mov_b64 exec, s[62:63]")
    k.e(f"buffer_load_dword v9, v8, {WS}, 0 offen sc1")
    k.e("s_mov_b64 exec, -1")
    issue_stage(k)
    k.e("s_waitcnt vmcnt(9)");  k.e("s_barrier")
    lp = k.u("f1b_lp"); ok = k.u("f1b_ok")
    k.e("s_mov_b64 exec, s[62:63]")
    k.e("s_waitcnt vmcnt(8)")
    k.e(f"v_cmp_ne_u32 vcc, s{S_NONCE}, v9")
    k.e("s_nop 1")
    k.e(f"s_cbranch_vccz {ok}")
    poll_flags(k, 8, 9, "f1b")
    k.lab(ok)
    k.e("s_mov_b64 exec, -1")
    k.stamp(5)
    if OPT['remdma']:
        sk = k.u("norem"); jn = k.u("remj")
        k.e(f"s_cmp_eq_u32 s{S_RB}, 0")
        k.e(f"s_cbranch_scc1 {sk}")
        k.e("v_lshlrev_b32 v8, 4, v0")
        k.e(f"s_lshl_b32 s48, s{S_G}, 2")
        k.e("s_add_u32 s48, s48, s26")
        k.e("s_lshl_b32 s48, s48, 6")
        k.e(f"s_lshl_b32 s49, s{S_RB}, 1")
        k.e("s_sub_u32 s49, s49, 8")
        k.e("s_lshl_b32 s52, s26, 13")
        def rem(base_g, base_l):
            for j in range(8):
                k.e(f"s_add_i32 s50, s49, {j}")
                k.e("s_max_i32 s50, s50, 0")
                k.e("s_add_u32 s50, s50, s48")
                k.e("s_lshl_b32 s50, s50, 10")
                if base_g: k.e(f"s_add_u32 s50, s50, {base_g}")
                k.e(f"s_add_u32 s51, s52, {base_l + j*1024}")
                k.e("s_mov_b32 m0, s51")
                k.e("s_nop 0")
                k.e(f"buffer_load_dwordx4 v8, {WS}, s50 offen sc1 lds")
        rem(KB_G, RK_L)
        if OPT['vpre']:
            VS = [86, 87, 88, 89, 92, 93, 94, 100]
            for j in range(8):
                k.e(f"s_add_i32 s50, s49, {j}")
                k.e("s_max_i32 s50, s50, 0")
                k.e("s_add_u32 s50, s50, s48")
                k.e("s_lshl_b32 s50, s50, 10")
                k.e(f"s_add_u32 s{VS[j]}, s50, {VB_G}")
            k.e(f"s_add_u32 s51, s52, {RV_L}")
            k.e("s_waitcnt vmcnt(8)");  k.e("s_barrier")
            for j in range(8):
                k.e("s_mov_b32 m0, s51")
                k.e("s_add_u32 s51, s51, 1024")
                k.e(f"buffer_load_dwordx4 v8, {WS}, s{VS[j]} offen sc1 lds")
        else:
            k.e("s_waitcnt vmcnt(8)");  k.e("s_barrier")
            rem(VB_G, RV_L)
        k.e("s_barrier")
        k.e("s_waitcnt vmcnt(0)")
        k.e(f"s_branch {jn}")
        k.lab(sk)
        k.e("s_waitcnt vmcnt(0)");  k.e("s_barrier")
        k.e("s_barrier")
        k.lab(jn)
    else:
        sk = k.u("norem"); jn = k.u("remj")
        k.e(f"s_cmp_eq_u32 s{S_RB}, 0")
        k.e(f"s_cbranch_scc1 {sk}")
        k.e("v_lshlrev_b32 v8, 4, v0")
        k.e(f"s_lshl_b32 s48, s{S_G}, 2")
        k.e("s_add_u32 s48, s48, s26")
        k.e("s_lshl_b32 s48, s48, 6")
        k.e(f"s_lshl_b32 s49, s{S_RB}, 1")
        k.e("s_sub_u32 s49, s49, 8")
        for j in range(8):
            k.e(f"s_add_i32 s50, s49, {j}")
            k.e("s_max_i32 s50, s50, 0")
            k.e("s_add_u32 s50, s50, s48")
            k.e("s_lshl_b32 s50, s50, 10")
            k.e(f"s_add_u32 s51, s50, {VB_G}")
            k.e(f"buffer_load_dwordx4 {vr(16+4*j,4)}, v8, {WS}, s50 offen sc1")
            k.e(f"buffer_load_dwordx4 {vr(48+4*j,4)}, v8, {WS}, s51 offen sc1")
        k.e("s_waitcnt vmcnt(16)");  k.e("s_barrier")
        k.e("s_lshl_b32 s48, s26, 13")
        k.e("v_add_u32 v9, s48, v8")
        for j in range(8):
            k.e(f"s_waitcnt vmcnt({14-2*j})")
            k.e(f"ds_write_b128 v9, {vr(16+4*j,4)} offset:{RK_L + j*1024}")
            k.e(f"ds_write_b128 v9, {vr(48+4*j,4)} offset:{RV_L + j*1024}")
            if j == 3: k.e("s_barrier")
        k.e(f"s_branch {jn}")
        k.lab(sk)
        k.e("s_waitcnt vmcnt(0)");  k.e("s_barrier")
        k.e("s_barrier")
        k.lab(jn)
    k.e("s_waitcnt lgkmcnt(0)")
    k.stamp(6)
    if OPT['ldprio']: k.e("s_setprio 0")
    k.e("s_barrier")
    k.stamp(4)

AQ_, AKF, AS, AMD, AMF, ACN, AP, AVB, AO = 4, 8, [44, 60, 76], 216, 232, 124, 140, [148, 156], 176
AM, AT = 192, 193
AK0, AK7, AK8, AV0, AV7, AV8 = 196, 197, 198, 199, 200, 201
KVR = 208
VPOLL, VPA, VPOLL2 = 248, 249, 253

def v_reads(k, buf, vaddr, off):
    k.e("s_mov_b64 exec, s[64:65]")
    k.e(f"ds_read_b128 {vr(AVB[buf],4)}, v{vaddr} offset:{off}")
    k.e(f"ds_read_b128 {vr(AVB[buf]+4,4)}, v{vaddr} offset:{off+512}")
    k.e("s_mov_b64 exec, -1")

def sig_f1a(k):
    sk = k.u("nosigA")
    k.e(f"s_cmp_lt_u32 s{S_WAVE}, 2")
    k.e(f"s_cbranch_scc0 {sk}")
    if OPT.get('sigst'): k.stamp(5)
    k.e("s_waitcnt vmcnt(0)")
    if OPT.get('sigst'): k.stamp(6)
    k.e(f"s_lshl_b32 s52, s{S_G}, 13")
    k.e(f"s_lshl_b32 s53, s{S_RB}, 1")
    k.e(f"s_add_u32 s53, s53, s{S_WAVE}")
    k.e("s_lshl_b32 s53, s53, 7")
    k.e("s_add_u32 s52, s52, s53")
    k.e(f"s_add_u32 s52, s52, {F1A}")
    store_flag(k, 52)
    k.lab(sk)

def attn_setup(k):
    k.e(f"s_and_b32 s86, s{S_WAVE}, 1")
    k.e(f"s_lshr_b32 s87, s{S_WAVE}, 1")
    k.e(f"v_lshlrev_b32 v{AT}, 4, v0")
    k.e("s_lshl_b32 s88, s86, 10")
    k.e("s_lshl_b32 s89, s87, 13")
    k.e("s_lshl_b32 s92, s87, 11")
    k.e("s_add_u32 s93, s89, s88")
    k.e(f"v_add_u32 v{AK0}, s93, v{AT}")
    k.e(f"s_add_u32 s94, s89, {7*1024}")
    k.e(f"s_add_u32 s100, s92, {OK_L}")
    k.e("s_cmp_eq_u32 s86, 0")
    k.e("s_cselect_b32 s94, s94, s100")
    k.e(f"v_add_u32 v{AK7}, s94, v{AT}")
    k.e("s_add_u32 s100, s100, s88")
    k.e(f"v_add_u32 v{AK8}, s100, v{AT}")
    k.e("v_lshrrev_b32 v202, 5, v0")
    k.e("v_lshlrev_b32 v202, 8, v202")
    k.e("v_and_b32 v203, 15, v0")
    k.e("v_lshlrev_b32 v203, 4, v203")
    k.e("v_add_u32 v202, v202, v203")
    k.e(f"s_add_u32 s94, s93, {RV_L}")
    k.e(f"v_add_u32 v{AV0}, s94, v202")
    k.e(f"s_add_u32 s94, s89, {RV_L + 7*1024}")
    k.e(f"s_add_u32 s100, s92, {OV_L}")
    k.e("s_cmp_eq_u32 s86, 0")
    k.e("s_cselect_b32 s94, s94, s100")
    k.e(f"v_add_u32 v{AV7}, s94, v202")
    k.e("s_add_u32 s100, s100, s88")
    k.e(f"v_add_u32 v{AV8}, s100, v202")
    k.e("v_and_b32 v202, 31, v0")
    k.e("v_lshrrev_b32 v203, 5, v0")
    k.e("v_lshlrev_b32 v203, 2, v203")
    k.e("v_sub_u32 v202, v202, v203")
    k.e("v_cvt_f32_i32 v202, v202")
    k.e(f"v_mov_b32 v203, {lit(BIG)}")
    for i in range(16):
        ci = 8*(i >> 2) + (i & 3)
        k.e(f"v_fmaak_f32 v{AMD+i}, v202, v203, {lit((0.5-ci)*BIG)}")
    for i in range(16): k.e(f"v_min_f32 v{AMF+i}, -v{AMD+i}, 0")
    for i in range(16): k.e(f"v_min_f32 v{AMD+i}, 0, v{AMD+i}")
    k.e(f"v_mov_b32 v{AM}, 0xff7fffff")
    k.e(f"s_lshl_b32 s87, s{S_G}, 13")
    k.e(f"s_add_u32 s87, s87, {F1A}")
    k.e(f"v_lshlrev_b32 v{VPA}, 7, v0")
    k.e(f"v_add_u32 v{VPA}, s87, v{VPA}")

def wo_setup(k):
    k.e("s_and_b32 s50, s2, 7")
    k.e("s_lshr_b32 s51, s2, 3")
    k.e("s_lshr_b32 s52, s50, 2")
    k.e("s_lshr_b32 s53, s51, 2")
    k.e("s_cmp_eq_u32 s52, 0")
    k.e(f"s_cselect_b32 s{SRD_WO}, s{P_AWO}, s{P_BWO}")
    k.e(f"s_cselect_b32 s{SRD_WO+1}, s{P_AWO+1}, s{P_BWO+1}")
    k.e(f"s_mov_b32 s{SRD_WO+2}, 0x{512*1024:x}")
    k.e(f"s_mov_b32 s{SRD_WO+3}, 0x20000")
    k.e("v_lshrrev_b32 v204, 3, v0")
    k.e("v_and_b32 v205, 7, v0")
    k.e("v_and_b32 v206, 2, v204")
    k.e("v_lshlrev_b32 v206, 1, v206")
    k.e("v_xor_b32 v206, v205, v206")
    k.e("v_lshlrev_b32 v206, 4, v206")
    k.e(f"s_sub_u32 s54, s{S_WAVE}, 4")
    if OPT['wosplit']:
        a = OPT['wosplit']
        starts = [0, a, 2*a, 2*a + (16 - a)]
        tab = sum(v << (8*i) for i, v in enumerate(starts))
        k.e("s_lshl_b32 s55, s54, 3")
        k.e(f"s_lshr_b32 s55, 0x{tab:x}, s55")
        k.e("s_and_b32 s55, s55, 0xff")
        k.e("s_lshl_b32 s50, s55, 4")
    else:
        k.e("s_lshl_b32 s50, s54, 7")
    k.e("v_add_u32 v204, s50, v204")
    k.e("v_lshlrev_b32 v204, 10, v204")
    k.e("s_lshl_b32 s96, s50, 7")
    k.e("s_lshl_b32 s50, s53, 7")
    k.e("v_add3_u32 v205, v204, v206, s50")
    k.e(f"s_add_u32 s96, s96, {WO_L}")
    k.e("s_mov_b32 s97, 0")

def wo_pair(k):
    k.e("s_mov_b32 m0, s96")
    k.e("s_add_u32 s98, s97, 7168")
    k.e(f"buffer_load_dwordx4 v205, {sr(SRD_WO,4)}, s97 offen lds")
    k.e(f"buffer_load_dwordx4 v205, {sr(SRD_WO,4)}, s98 offen offset:1024 lds")
    k.e("s_add_u32 s96, s96, 2048")
    k.e("s_add_u32 s97, s97, 16384")

KVL = 0
def kv_loads(k):
    k.stamp(14)
    k.e(f"s_lshl_b32 s50, s{S_G}, 13")
    k.e(f"s_add_u32 s50, s50, {KVACC}")
    k.e("s_add_u32 s51, s50, 4096")
    k.e(f"buffer_load_dwordx4 {vr(KVR,4)}, v1, {WS}, s50 offen sc1")
    k.e(f"buffer_load_dwordx4 {vr(KVR+4,4)}, v1, {WS}, s50 offen offset:1024 sc1")
    k.e(f"buffer_load_dwordx4 {vr(164,4)}, v1, {WS}, s51 offen sc1")
    k.e(f"buffer_load_dwordx4 {vr(168,4)}, v1, {WS}, s51 offen offset:1024 sc1")
    k.e("v_lshrrev_b32 v202, 5, v0")
    k.e("v_lshlrev_b32 v202, 12, v202")
    k.e("v_and_b32 v203, 31, v0")
    k.e("v_lshl_add_u32 v202, v203, 2, v202")
    k.e(f"buffer_load_dword v172, v202, {WS}, s50 offen offset:2048 sc1")

def attention(k):
    k.c("attention: i = w&1 (s26), hh = w>>1 (s27), qt = s48, s99 = kv loads issued flag")
    if OPT['lprio'] >= 0:
        sk = k.u("lp")
        k.e(f"s_cmp_ge_u32 s{S_WAVE}, 4")
        k.e(f"s_cbranch_scc0 {sk}")
        k.e("s_setprio 1")
        k.lab(sk)
    k.e(f"s_and_b32 s26, s{S_WAVE}, 1")
    k.e(f"s_lshr_b32 s27, s{S_WAVE}, 1")
    k.e(f"s_lshl_b32 s48, s{S_RB}, 1")
    k.e("s_add_u32 s48, s48, s26")
    k.e("v_lshlrev_b32 v1, 4, v0")
    k.e("s_lshl_b32 s49, s27, 11")
    k.e("s_lshl_b32 s50, s26, 10")
    k.e("s_add_u32 s49, s49, s50")
    k.e(f"s_add_u32 s49, s49, {Q_L}")
    k.e("v_add_u32 v2, s49, v1")
    k.e(f"ds_read_b128 {vr(AQ_,4)}, v2")
    def kaddr(p): return (AK0, RK_L + p*1024) if p <= 6 else ((AK7, 0) if p == 7 else (AK8, 0))
    def vaddr(p): return (AV0, p*1024) if p <= 6 else ((AV7, 0) if p == 7 else (AV8, 0))
    for p in range(9):
        a, o = kaddr(p); k.e(f"ds_read_b128 {vr(AKF+4*p,4)}, v{a} offset:{o}")
    k.e("s_mov_b32 s64, 0xffff")
    k.e("s_mov_b32 s65, 0xffff")
    k.e("s_mov_b32 s99, 0")
    for b in range(2):
        for j in range(8): k.e(f"v_mov_b32 v{AVB[b]+j}, 0x3f803f80")
    def wo_block():
        sk = k.u("nowo")
        k.e(f"s_cmp_ge_u32 s{S_WAVE}, 4")
        k.e(f"s_cbranch_scc0 {sk}")
        wo_setup(k)
        if OPT['wosplit']:
            a = OPT['wosplit']
            for j in range(a): wo_pair(k)
            k.e(f"s_cmp_ge_u32 s{S_WAVE}, 6")
            k.e(f"s_cbranch_scc0 {sk}")
            for j in range(16 - 2*a): wo_pair(k)
        else:
            for j in range(8): wo_pair(k)
        k.lab(sk)
    if OPT['wopos'] == 0: wo_block()
    Q = vr(AQ_, 4)
    def qk(dst, p, c): k.e(f"{MF} {vr(dst,16)}, {vr(AKF+4*p,4)}, {Q}, {c}")
    def c1(p): return vr(AMF,16) if p == 0 else (vr(AMD,16) if p == 8 else "0")
    def c2(p): return vr(AMF,16) if p == 0 else (vr(AMD,16) if p == 8 else vr(ACN,16))
    k.e("s_sub_i32 s95, 8, s48")
    k.e("s_max_i32 s95, s95, 0")
    P1 = [k.u(f"p1_{p}") for p in range(9)]
    P2 = [k.u(f"p2_{p}") for p in range(9)]
    E1 = [k.u(f"e1_{p}") for p in range(9)]
    E2 = [k.u(f"e2_{p}") for p in range(9)]
    k.e("s_waitcnt lgkmcnt(0)")
    for p in range(1, 9):
        k.e(f"s_cmp_eq_u32 s95, {p}")
        k.e(f"s_cbranch_scc1 {E1[p]}")
    qk(AS[0], 0, c1(0)); qk(AS[1], 1, c1(1)); qk(AS[2], 2, c1(2))
    k.e("s_nop 9")
    for p in range(9):
        k.lab(P1[p])
        s_ = AS[p % 3]
        for j in range(8): k.e(f"v_max3_f32 v{AM}, v{s_+2*j}, v{s_+2*j+1}, v{AM}")
        if p + 3 <= 8: qk(s_, p + 3, c1(p + 3))
    k.e(f"v_mov_b32 v{AT}, v{AM}")
    k.e("s_nop 1")
    k.e(f"v_permlane32_swap_b32 v{AM}, v{AT}")
    k.e(f"v_max_f32 v{AM}, v{AM}, v{AT}")
    k.e(f"v_sub_f32 v{AM}, 0, v{AM}")
    for i in range(16): k.e(f"v_mov_b32 v{ACN+i}, v{AM}")
    MRG = OPT['merge']
    if not MRG:
        for i in range(16): k.e(f"v_add_f32 v{AMD+i}, v{AMD+i}, v{AM}")
    if OPT['wopos'] == 1: wo_block()
    k.stamp(8)
    k.e("s_cmp_eq_u32 s95, 0")
    sh = k.u("short2")
    k.e(f"s_cbranch_scc0 {sh}")
    if MRG:
        k.e("s_mov_b32 s62, 0xffff")
        for i in range(16): k.e(f"v_ashrrev_i32 v{AMF+i}, 31, v{AMD+i}")
        v_reads(k, 1, *vaddr(1))
        qk(AS[1], 1, c2(1))
        for j in range(8): k.e(f"v_bfi_b32 v{AMD+j}, s62, v{AMF+2*j}, v{AMF+2*j+1}")
    else:
        for i in range(16): k.e(f"v_add_f32 v{AMF+i}, v{AMF+i}, v{AM}")
        v_reads(k, 0, *vaddr(0))
        k.e("s_nop 0")
        qk(AS[0], 0, c2(0))
        k.e("s_nop 6")
    mrgblk = k.u("merged"); afterm = k.u("afterm")
    for p in range(9):
        if MRG and p == 0: continue
        k.lab(P2[p])
        cur = AS[p % 2]; nxt = AS[(p + 1) % 2]
        if MRG and p == 8:
            k.e("s_cmp_eq_u32 s95, 0")
            k.e(f"s_cbranch_scc1 {mrgblk}")
        if p < 8:
            if MRG and p == 7:
                sk7 = k.u("m7"); j7 = k.u("j7")
                k.e("s_cmp_eq_u32 s95, 0")
                k.e(f"s_cbranch_scc0 {sk7}")
                qk(nxt, 8, vr(ACN,16)); qk(AS[2], 0, vr(ACN,16))
                k.e(f"s_branch {j7}")
                k.lab(sk7)
                qk(nxt, 8, vr(AMD,16))
                k.lab(j7)
            else:
                qk(nxt, p + 1, c2(p + 1))
            v_reads(k, (p + 1) % 2, *vaddr(p + 1))
        hooks = k.u("nohook")
        if p == OPT['lprio']: k.e("s_setprio 0")
        if p == OPT['sigp']:
            k.e("s_cmp_eq_u32 s95, 0")
            k.e(f"s_cbranch_scc0 {hooks}")
            sig_f1a(k)
            k.lab(hooks)
        if p >= OPT['pollp'] and (p - OPT['pollp']) % OPT['pollstep'] == 0:
            hk = k.u("hk")
            vp = VPOLL if (p - OPT['pollp']) % 2 == 0 else VPOLL2
            k.e(f"s_cmp_eq_u32 s{S_WAVE}, 4")
            k.e(f"s_cbranch_scc0 {hk}")
            k.e("s_cmp_eq_u32 s95, 0")
            k.e(f"s_cbranch_scc0 {hk}")
            k.e("s_cmp_eq_u32 s99, 0")
            k.e(f"s_cbranch_scc0 {hk}")
            if p >= OPT['pollp'] + 2:
                got = k.u("got")
                k.e(f"s_waitcnt vmcnt({1 if OPT['pollstep'] == 1 else 0})")
                k.e(f"v_cmp_ne_u32 vcc, s{S_NONCE}, v{vp}")
                k.e("s_nop 1")
                k.e(f"s_cbranch_vccz {got}")
                k.e(f"buffer_load_dword v{vp}, v{VPA}, {WS}, 0 offen sc1")
                k.e(f"s_branch {hk}")
                k.lab(got)
                kv_loads(k)
                k.e("s_mov_b32 s99, 1")
            else:
                k.e(f"buffer_load_dword v{vp}, v{VPA}, {WS}, 0 offen sc1")
            k.lab(hk)
        for j in range(16): k.e(f"v_exp_f32 v{cur+j}, v{cur+j}")
        for j in range(8): k.e(f"v_cvt_pk_bf16_f32 v{AP+j}, v{cur+2*j}, v{cur+2*j+1}")
        k.e(f"s_waitcnt lgkmcnt({2 if p < 8 else 0})")
        vb = AVB[p % 2]
        k.e(f"{MF} {vr(AO,16)}, {vr(vb,4)}, {vr(AP,4)}, {'0' if p == (1 if MRG else 0) else vr(AO,16)}")
        k.e("s_nop 0")
        k.e(f"{MF} {vr(AO,16)}, {vr(vb+4,4)}, {vr(AP+4,4)}, {vr(AO,16)}")
    done = k.u("attdone")
    k.e(f"s_branch {done}")
    if MRG:
        k.lab(mrgblk)
        SD, SF = AS[0], AS[2]
        v_reads(k, 1, *vaddr(0))
        hk = k.u("hkm"); got = k.u("gotm")
        vp = VPOLL if (8 - OPT['pollp']) % 2 == 0 else VPOLL2
        k.e(f"s_cmp_eq_u32 s{S_WAVE}, 4")
        k.e(f"s_cbranch_scc0 {hk}")
        k.e("s_cmp_eq_u32 s99, 0")
        k.e(f"s_cbranch_scc0 {hk}")
        k.e("s_waitcnt vmcnt(1)")
        k.e(f"v_cmp_ne_u32 vcc, s{S_NONCE}, v{vp}")
        k.e("s_nop 1")
        k.e(f"s_cbranch_vccnz {hk}")
        kv_loads(k)
        k.e("s_mov_b32 s99, 1")
        k.lab(hk)
        k.e("s_nop 3")
        for i in range(16): k.e(f"v_bfi_b32 v{SD+i}, v{AMF+i}, v{SF+i}, v{SD+i}")
        for j in range(16): k.e(f"v_exp_f32 v{SD+j}, v{SD+j}")
        for j in range(8): k.e(f"v_cvt_pk_bf16_f32 v{AP+j}, v{SD+2*j}, v{SD+2*j+1}")
        for j in range(8): k.e(f"v_and_b32 v{SF+j}, v{AP+j}, v{AMD+j}")
        for j in range(8): k.e(f"v_xor_b32 v{AP+j}, v{AP+j}, v{SF+j}")
        k.e("s_waitcnt lgkmcnt(0)")
        k.e(f"{MF} {vr(AO,16)}, {vr(AVB[1],4)}, {vr(SF,4)}, {vr(AO,16)}")
        k.e(f"{MF} {vr(AO,16)}, {vr(AVB[1]+4,4)}, {vr(SF+4,4)}, {vr(AO,16)}")
        k.e(f"{MF} {vr(AO,16)}, {vr(AVB[0],4)}, {vr(AP,4)}, {vr(AO,16)}")
        k.e(f"{MF} {vr(AO,16)}, {vr(AVB[0]+4,4)}, {vr(AP+4,4)}, {vr(AO,16)}")
        k.e(f"s_branch {done}")
    for p in range(1, 9):
        k.lab(E1[p])
        for q in range(p, min(p + 3, 9)): qk(AS[q % 3], q, c1(q))
        k.e("s_nop 10")
        k.e(f"s_branch {P1[p]}")
    k.lab(sh)
    if MRG:
        for i in range(16): k.e(f"v_add_f32 v{AMD+i}, v{AMD+i}, v{AM}")
    for i in range(16): k.e(f"v_mov_b32 v{AO+i}, 0")
    sig_f1a(k)
    sk = k.u("shpoll")
    k.e(f"s_cmp_eq_u32 s{S_WAVE}, 4")
    k.e(f"s_cbranch_scc0 {sk}")
    k.e(f"buffer_load_dword v{VPOLL}, v{VPA}, {WS}, 0 offen sc1")
    k.lab(sk)
    for p in range(1, 9):
        k.e(f"s_cmp_eq_u32 s95, {p}")
        k.e(f"s_cbranch_scc1 {E2[p]}")
    k.e(f"s_branch {E2[8]}")
    for p in range(1, 9):
        k.lab(E2[p])
        qk(AS[p % 2], p, c2(p))
        v_reads(k, p % 2, *vaddr(p))
        k.e("s_nop 6")
        k.e(f"s_branch {P2[p]}")
    k.lab(done)

def apart(k):
    sk = k.u("kvdone")
    k.e(f"s_cmp_eq_u32 s{S_WAVE}, 4")
    k.e(f"s_cbranch_scc0 {sk}")
    k.e("s_cmp_eq_u32 s99, 1")
    k.e(f"s_cbranch_scc1 {sk}")
    poll_flags(k, VPA, VPOLL, "f1a")
    kv_loads(k)
    k.lab(sk)
    k.e("s_nop 8")
    k.e(f"v_rcp_f32 v{AT}, v{AO+8}")
    k.e("s_nop 0")
    for j in range(8): k.e(f"v_mul_f32 v{AO+j}, v{AO+j}, v{AT}")
    cvt8(k, AP, AO)
    k.e(f"s_lshl_b32 s49, s{S_G}, 2")
    k.e("s_add_u32 s49, s49, s27")
    k.e("s_lshl_b32 s50, s48, 5")
    k.e("s_add_u32 s49, s49, s50")
    k.e("s_lshl_b32 s49, s49, 10")
    k.e(f"s_add_u32 s50, s49, {O_G + (2<<20)}")
    k.e(f"buffer_store_dwordx4 {vr(AP,4)}, v1, {WS}, s50 offen sc1")
    k.e("s_barrier")
    sk = k.u("nokvw")
    k.e(f"s_cmp_eq_u32 s{S_WAVE}, 4")
    k.e(f"s_cbranch_scc0 {sk}")
    k.e("s_waitcnt vmcnt(1)")
    k.e(f"ds_write_b128 v1, {vr(KVR,4)} offset:{KVL}")
    k.e(f"ds_write_b128 v1, {vr(KVR+4,4)} offset:{KVL+1024}")
    k.e(f"ds_write_b128 v1, {vr(164,4)} offset:{KVL+4096}")
    k.e(f"ds_write_b128 v1, {vr(168,4)} offset:{KVL+4096+1024}")
    k.e("v_lshrrev_b32 v202, 5, v0")
    k.e("v_lshlrev_b32 v202, 12, v202")
    k.e("v_and_b32 v203, 31, v0")
    k.e("v_lshl_add_u32 v202, v203, 2, v202")
    k.e(f"ds_write_b32 v202, v172 offset:{KVL+2048}")
    k.e("s_waitcnt lgkmcnt(0)")
    k.lab(sk)
    k.e("s_lshr_b32 s51, s27, 1")
    k.e("s_lshl_b32 s51, s51, 12")
    k.e("s_and_b32 s52, s27, 1")
    k.e("s_lshl_b32 s52, s52, 6")
    k.e("s_add_u32 s51, s51, s52")
    k.e("v_lshrrev_b32 v203, 5, v0")
    k.e("v_and_b32 v202, 15, v0")
    k.e("v_lshl_add_u32 v202, v203, 5, v202")
    k.e("v_lshlrev_b32 v202, 2, v202")
    k.e("v_add_u32 v202, s51, v202")
    k.e("v_lshlrev_b32 v203, 4, v203")
    k.e("v_add_u32 v203, s51, v203")
    k.e("s_lshl_b32 s51, s27, 11")
    k.e("s_lshl_b32 s50, s26, 10")
    k.e("s_add_u32 s51, s51, s50")
    k.e(f"s_add_u32 s51, s51, {PQ_L}")
    k.e("v_add_u32 v2, s51, v1")
    k.e(f"ds_read_b128 {vr(AQ_,4)}, v2")
    k.e("s_barrier")
    k.stamp(15)
    k.e("s_mov_b64 exec, s[64:65]")
    for t in range(8): k.e(f"ds_read_b32 v{KVR+t}, v202 offset:{KVL + t*256}")
    k.e("s_not_b64 exec, s[64:65]")
    k.e(f"ds_read_b128 {vr(KVR,4)}, v203 offset:{KVL+2048}")
    k.e(f"ds_read_b128 {vr(KVR+4,4)}, v203 offset:{KVL+2048+32}")
    k.e("s_mov_b64 exec, -1")
    k.e("s_waitcnt lgkmcnt(0)")
    cvt8(k, 8, KVR)
    k.e("s_nop 1")
    k.e(f"{MF} {vr(44,16)}, {vr(8,4)}, {vr(AQ_,4)}, 0")
    k.e(f"s_mov_b32 s62, {lit(1e-6)}")
    k.e("s_nop 10")
    k.e("v_add_f32 v12, s62, v52")
    k.e("v_rcp_f32 v12, v12")
    k.e("s_nop 0")
    for j in range(8): k.e(f"v_mul_f32 v{44+j}, v{44+j}, v12")
    cvt8(k, 16, 44)
    k.e(f"s_add_u32 s50, s49, {O_G}")
    k.e(f"buffer_store_dwordx4 {vr(16,4)}, v1, {WS}, s50 offen sc1")

def p3(k):
    k.c("P3: out tile 128x64")
    k.e("s_and_b32 s48, s2, 7")
    k.e("s_lshr_b32 s49, s2, 3")
    k.e("s_lshr_b32 s66, s48, 2")
    k.e("s_and_b32 s67, s48, 3")
    k.e("s_lshl_b32 s67, s67, 2")
    k.e("s_and_b32 s50, s49, 3")
    k.e("s_add_u32 s67, s67, s50")
    k.e("s_lshr_b32 s68, s49, 2")
    k.e("s_lshl_b32 s48, s67, 11")
    k.e(f"s_add_u32 s48, s48, {F2}")
    k.e("v_and_b32 v8, 15, v0")
    k.e("v_lshlrev_b32 v8, 7, v8")
    k.e("v_add_u32 v8, s48, v8")
    OF, ACC3, WF = 8+4, 144, [176, 184]
    VA0, VA1 = 192, 193
    k.e("v_bfe_u32 v2, v0, 2, 2")
    k.e("v_and_b32 v3, 3, v0")
    k.e("v_bfe_u32 v4, v0, 4, 1")
    k.e("v_lshrrev_b32 v5, 5, v0")
    k.e("v_lshlrev_b32 v5, 2, v5")
    k.e("v_add_u32 v5, v5, v2")
    k.e("v_lshlrev_b32 v5, 7, v5")
    k.e("v_and_b32 v6, 1, v3")
    k.e("v_lshlrev_b32 v6, 1, v6")
    k.e("v_add_u32 v6, v6, v4")
    k.e("v_and_b32 v7, 2, v2")
    k.e("v_lshlrev_b32 v7, 1, v7")
    k.e("v_xor_b32 v6, v6, v7")
    k.e("v_lshlrev_b32 v6, 4, v6")
    k.e("v_lshrrev_b32 v3, 1, v3")
    k.e("v_lshlrev_b32 v3, 3, v3")
    k.e("v_add3_u32 v5, v5, v6, v3")
    SLOWG = OPT['slowg']
    VB0 = 194
    k.e(f"v_add_u32 v{VB0}, {WO_L}, v5")
    k.e("s_lshl_b32 s48, s67, 2")
    k.e(f"s_add_u32 s48, s48, s{S_WAVE}")
    k.e("s_lshl_b32 s49, s48, 15")
    k.e("s_lshl_b32 s50, s66, 21")
    k.e("s_add_u32 s49, s49, s50")
    k.e(f"s_add_u32 s49, s49, {O_G}")
    k.e("v_lshlrev_b32 v1, 4, v0")
    GR = [86, 87, 88, 89, 92, 93, 94, 100]
    NOSLOW = SLOWG == 8
    if NOSLOW:
        for u in range(8):
            k.e(f"s_add_u32 s52, s68, {u}")
            k.e(f"s_and_b32 s{GR[u]}, s52, 7")
    k.e("s_cmp_eq_u32 s68, 7")
    k.e("s_cselect_b32 s51, 0, s68")
    for u in range(0 if NOSLOW else 7):
        k.e(f"s_add_u32 s52, s51, {u}")
        k.e("s_cmp_ge_u32 s52, 7")
        k.e("s_cselect_b32 s53, 7, 0")
        k.e("s_sub_u32 s52, s52, s53")
        k.e(f"s_cmp_ge_u32 s52, {SLOWG}")
        k.e("s_cselect_b32 s53, 1, 0")
        k.e(f"s_add_u32 s{GR[u]}, s52, s53")
    if not NOSLOW: k.e(f"s_mov_b32 s{GR[7]}, {SLOWG}")
    GO = [55, 56, 57, 58, 59, 61, 62, 64]
    if OPT['gopre']:
        for u in range(8):
            k.e(f"s_lshl_b32 s52, s{GR[u]}, 12")
            k.e(f"s_add_u32 s{GO[u]}, s52, s49")
    k.e(f"s_lshr_b32 s52, s{S_WAVE}, 1")
    k.e("s_and_b32 s52, s52, 1")
    k.e("s_lshl_b32 s52, s52, 3")
    k.e(f"s_add_u32 s52, s52, {SLOWG}")
    k.e("s_lshl_b32 s52, s52, 7")
    k.e("s_lshl_b32 s53, s67, 11")
    k.e("s_add_u32 s52, s52, s53")
    k.e(f"s_add_u32 s52, s52, {F2}")
    k.e("v_mov_b32 v10, s52")
    sk = k.u("nof2poll")
    k.e(f"s_cmp_eq_u32 s{S_WAVE}, 0")
    k.e(f"s_cbranch_scc0 {sk}")
    k.e(f"s_mov_b64 exec, 0x{0xffff if NOSLOW else 0xffff & ~((1 << SLOWG) | (1 << (8 + SLOWG))):x}")
    poll_flags(k, 8, 9, "f2")
    k.e("s_mov_b64 exec, -1")
    k.lab(sk)
    k.e("s_barrier")
    k.e(f"s_cmp_ge_u32 s{S_WAVE}, 4")
    k.e("s_cbranch_scc1 L_fin")
    k.stamp(12)
    def oload(hd):
        u = hd >> 2
        if OPT['gopre']:
            k.e(f"buffer_load_dwordx4 {vr(OF+4*hd,4)}, v1, {WS}, s{GO[u]} offen offset:{(hd%4)*1024} sc1")
            return
        k.e(f"s_lshl_b32 s52, s{GR[u]}, 12")
        k.e("s_add_u32 s52, s52, s49")
        k.e(f"buffer_load_dwordx4 {vr(OF+4*hd,4)}, v1, {WS}, s52 offen offset:{(hd%4)*1024} sc1")
    for hd in range(16): oload(hd)
    def setva(u):
        k.e(f"s_lshl_b32 s52, s{GR[u]}, 13")
        k.e(f"v_add_u32 v{VA0}, s52, v{VB0}")
        k.e(f"v_xor_b32 v{VA1}, 64, v{VA0}")
    def wreads(buf, j):
        for b in range(2):
            for s2 in range(2):
                k.e(f"ds_read_b64_tr_b16 {vr(WF[buf]+4*b+2*s2,2)}, v{VA0+b} offset:{j*2048 + s2*1024}")
    def slow_loads():
        for hd in range(28, 32): oload(hd)
        k.e("s_mov_b32 s54, 1")
    PI, PC = OPT['p3poll'], OPT['p3chk']
    k.e("s_mov_b32 s54, 0")
    setva(0)
    wreads(0, 0)
    for hd in range(32 if NOSLOW else 0):
        if hd < 31:
            nj = (hd + 1) % 4
            if nj == 0: setva((hd + 1)//4)
            wreads((hd + 1) % 2, nj)
        last = min(31, 15 + hd)
        k.e(f"s_waitcnt vmcnt({last - hd}) lgkmcnt({4 if hd < 31 else 0})")
        if 16 + hd <= 31: oload(16 + hd)
        for b in range(2):
            k.e(f"{MF} {vr(ACC3+16*b,16)}, {vr(WF[hd%2]+4*b,4)}, {vr(OF+4*hd,4)}, {'0' if hd == 0 else vr(ACC3+16*b,16)}")
    for hd in range(0 if NOSLOW else 32):
        if hd == 28:
            sk = k.u("slowok")
            k.e("s_cmp_eq_u32 s54, 1")
            k.e(f"s_cbranch_scc1 {sk}")
            k.e("s_mov_b64 exec, 1")
            poll_flags(k, 10, 9, "f2s")
            k.e("s_mov_b64 exec, -1")
            slow_loads()
            k.lab(sk)
        if hd < 31:
            nj = (hd + 1) % 4
            if nj == 0: setva((hd + 1)//4)
            wreads((hd + 1) % 2, nj)
        if hd < 28:
            last = min(27, 15 + hd)
            n = last - hd + (1 if hd > PI else 0)
            if hd >= PC: n = None
        else:
            n = 31 - hd
        if hd == PC:
            k.e(f"s_waitcnt vmcnt(0) lgkmcnt(4)")
            sk = k.u("notyet")
            k.e("s_mov_b64 exec, 1")
            k.e(f"v_cmp_ne_u32 vcc, s{S_NONCE}, v9")
            k.e("s_mov_b64 exec, -1")
            k.e("s_nop 0")
            k.e(f"s_cbranch_vccnz {sk}")
            slow_loads()
            k.lab(sk)
        elif n is None:
            k.e("s_waitcnt lgkmcnt(4)")
        else:
            k.e(f"s_waitcnt vmcnt({n}) lgkmcnt({4 if hd < 31 else 0})")
        if 16 + hd <= 27: oload(16 + hd)
        if hd == PI:
            k.e("s_mov_b64 exec, 1")
            k.e(f"buffer_load_dword v9, v10, {WS}, 0 offen sc1")
            k.e("s_mov_b64 exec, -1")
        if OPT.get('p3st') and hd in (0, 8, 31):
            k.stamp({0: 5, 8: 6, 31: 8}[hd])
        for b in range(2):
            k.e(f"{MF} {vr(ACC3+16*b,16)}, {vr(WF[hd%2]+4*b,4)}, {vr(OF+4*hd,4)}, {'0' if hd == 0 else vr(ACC3+16*b,16)}")
    srd(k, SRD_T, P_OUT, 4 << 20)
    k.e("v_and_b32 v2, 31, v0")
    k.e("s_lshl_b32 s49, s48, 5")
    k.e("v_add_u32 v2, s49, v2")
    k.e("v_lshlrev_b32 v2, 11, v2")
    k.e("v_lshrrev_b32 v3, 5, v0")
    k.e("v_lshlrev_b32 v3, 5, v3")
    k.e("s_lshl_b32 s49, s66, 10")
    k.e("s_lshl_b32 s50, s68, 7")
    k.e("s_add_u32 s49, s49, s50")
    k.e("v_add3_u32 v2, v2, v3, s49")
    k.e("s_nop 3")
    for b in range(2):
        for j in range(8): k.e(f"v_cvt_pk_bf16_f32 v{12+8*b+j}, v{ACC3+16*b+2*j}, v{ACC3+16*b+2*j+1}")
    for b in range(2):
        fl = {0: "", 1: " sc1", 2: " nt", 3: " sc0 sc1"}[OPT['outf']]
        k.e(f"buffer_store_dwordx4 {vr(12+8*b,4)}, v2, {sr(SRD_T,4)}, 0 offen offset:{64*b}{fl}")
        k.e(f"buffer_store_dwordx4 {vr(16+8*b,4)}, v2, {sr(SRD_T,4)}, 0 offen offset:{64*b+16}{fl}")

HDR = """; Kernarg layout for this problem (72 bytes, ptrs only, base s[0:1]):
;   offset   0: d_in[0] A_x  shape=(1, 2048, 512) dtype=bfloat16 strides=(2097152, 1024, 2) contiguous=True
;   offset   8: d_in[1] A_wqkv  shape=(512, 1536) dtype=bfloat16 strides=(3072, 2) contiguous=True
;   offset  16: d_in[2] A_wo  shape=(512, 512) dtype=bfloat16 strides=(1024, 2) contiguous=True
;   offset  24: d_in[3] B_x  shape=(1, 2048, 512) dtype=bfloat16 strides=(2097152, 1024, 2) contiguous=True
;   offset  32: d_in[4] B_wqkv  shape=(512, 1536) dtype=bfloat16 strides=(3072, 2) contiguous=True
;   offset  40: d_in[5] B_wo  shape=(512, 512) dtype=bfloat16 strides=(1024, 2) contiguous=True
;   offset  48: d_out     shape=(1, 2048, 1024) dtype=bfloat16 (2 bytes/elem)
;   offset  56: d_debug   256 bytes
;   offset  64: d_ws      268435456 bytes workspace
;
; One persistent launch, 256 workgroups (one per CU) x 8 waves.  Workgroup = (64-row block rb, 4-head group g).
;   P1  QKV GEMMs (branch B tile, then branch A tile): waves 4-7 stream x / W through a 4-slot LDS ring (LDS-DMA),
;       waves 0,1 accumulate k,v and waves 2,3 accumulate q.  B's K/V fragments go to d_ws for the neighbouring row
;       blocks, A's phi(k)^T v and sum phi(k) are accumulated in d_ws with f32 atomics.
;   P2  sliding-window attention, one (32-query tile, head) unit per wave (two passes: true row max, then exp / PV),
;       then the linear-attention output of the same unit.
;   P3  output projection, 128x64 tile per workgroup.
; Hand-offs between workgroups: write-through (sc1) stores, drained, then a flag word holding a per-launch nonce.
; @launch grid=(256,1,1) block=(512,1,1) lds=163840
.amdgcn_target "amdgcn-amd-amdhsa--gfx950"
.text
.globl KNAME
.p2align 8
.type KNAME,@function
""".replace("KNAME", KNAME)

TAIL = """.section .rodata,"a"
.p2align 6
.amdhsa_kernel KNAME
  .amdhsa_next_free_vgpr 256
  .amdhsa_next_free_sgpr 102
  .amdhsa_accum_offset 256
  .amdhsa_group_segment_fixed_size 0
  .amdhsa_kernarg_size 72
  .amdhsa_user_sgpr_count 2
  .amdhsa_user_sgpr_kernarg_segment_ptr 1
  .amdhsa_system_sgpr_workgroup_id_x 1
.end_amdhsa_kernel
""".replace("KNAME", KNAME)

def build(stamps=False):
    k = gen(stamps)
    body = "\n".join(k.L)
    body = body.replace("PF_BACK", f"((L_pc - {KNAME}) & 0xffffff00)")
    pad = "\n    .fill 2048, 4, 0xbf800000\n"
    hdr, tail = HDR, TAIL
    if OPT['extra']:
        hdr = hdr.replace("; @launch grid=(256,1,1) block=(512,1,1) lds=163840", f"; @launch kernel={KNAME} grid=(256,1,1) block=(512,1,1) lds=163840\n; @launch kernel=nop_kernel grid=(1,1,1) block=(64,1,1) lds=0")
        pad += ".globl nop_kernel\n.p2align 8\n.type nop_kernel,@function\nnop_kernel:\n    s_endpgm\n"
        tail += """.p2align 6
.amdhsa_kernel nop_kernel
  .amdhsa_next_free_vgpr 8
  .amdhsa_next_free_sgpr 16
  .amdhsa_accum_offset 8
  .amdhsa_group_segment_fixed_size 0
  .amdhsa_kernarg_size 72
  .amdhsa_user_sgpr_count 2
  .amdhsa_user_sgpr_kernarg_segment_ptr 1
  .amdhsa_system_sgpr_workgroup_id_x 1
.end_amdhsa_kernel
"""
    return hdr + body + pad + "\n" + tail

if __name__ == "__main__":
    out = sys.argv[1] if len(sys.argv) > 1 else "out.s"
    stamps = "stamps" in sys.argv[2:]
    for a in sys.argv[2:]:
        if "=" in a:
            kk, vv = a.split("="); OPT[kk] = int(vv)
    txt = build(stamps)
    open(out, "w").write(txt)
    import hz
    pr = hz.check(txt)
    import subprocess
    r = subprocess.run(["clang", "-x", "assembler", "-target", "amdgcn-amd-amdhsa", "-mcpu=gfx950", "-c", out, "-o", "_chk.o"], capture_output=True, text=True)
    print("hazards:", len(pr), "lines:", txt.count("\n"), "asm:", "ok" if r.returncode == 0 else r.stderr)
```
